```python
import torch

def _softmax(x, axis=-1):
    return torch.softmax(x, dim=axis)

def _gelu(x):
    return torch.nn.functional.gelu(x, approximate='tanh')

def _silu(x):
    return torch.nn.functional.silu(x)

def _sigmoid(x):
    return torch.sigmoid(x)

def _layernorm(x, axis=-1, eps=1e-05):
    m = x.mean(dim=axis, keepdim=True)
    v = x.var(dim=axis, keepdim=True, unbiased=False)
    return (x - m) / torch.sqrt(v + eps)

def _scatter_add(tgt, idx, src, axis=0):
    return tgt.clone().index_add_(axis, idx, src)

def _segment_sum(src, seg, n):
    out = torch.zeros((n,) + src.shape[1:], dtype=src.dtype)
    return out.index_add_(0, seg, src)

def _pad(x, pw):
    flat = tuple((v for pair in reversed(pw) for v in pair))
    return torch.nn.functional.pad(x, flat)
kernel_name = 'adaLN_cond__ssm_conv_h3__glu_gated_bilinear__prompt'

def setup_inputs():

    _w = lambda a: (lambda t: t.to(torch.bfloat16) if t.is_floating_point() else t)(torch.as_tensor(a))

    def _A_setup():
        B, S, D = (1, 2048, 512)
        ks = 4
        return {'q': _w((lambda *s: torch.randn(*s, dtype=torch.bfloat16) * 0.05)(B, S, D)), 'k': _w((lambda *s: torch.randn(*s, dtype=torch.bfloat16) * 0.8)(B, S, D)), 'v': _w((lambda *s: torch.randn(*s, dtype=torch.bfloat16) * 0.8)(B, S, D)), 'shift_k': _w((lambda *s: torch.randn(*s, dtype=torch.bfloat16) * 0.8)(D, ks) * 0.5), 'ssm_k': _w((lambda *s: torch.randn(*s, dtype=torch.bfloat16) * 0.8)(D, S) * (1.0 / S ** 0.5)), 'ssm_D': _w((lambda *s: torch.randn(*s, dtype=torch.bfloat16) * 0.8)(D))}
    _A_in = _A_setup()

    def _B_setup():
        B, S, D, F = (1, 2048, 512, 1792)
        return {'x': _w((lambda *s: torch.randn(*s, dtype=torch.bfloat16) * 0.05)(B, S, D)), 'w_gate': _w((lambda *s: torch.randn(*s, dtype=torch.bfloat16) * 0.8)(D, F) * D ** (-0.5)), 'w_up': _w((lambda *s: torch.randn(*s, dtype=torch.bfloat16) * 0.8)(D, F) * D ** (-0.5)), 'w_down': _w((lambda *s: torch.randn(*s, dtype=torch.bfloat16) * 0.8)(F, D) * F ** (-0.5))}
    _B_in = _B_setup()
    return {'A_q': _A_in['q'], 'A_k': _A_in['k'], 'A_v': _A_in['v'], 'A_shift_k': _A_in['shift_k'], 'A_ssm_k': _A_in['ssm_k'], 'A_ssm_D': _A_in['ssm_D'], 'B_x': _B_in['x'], 'B_w_gate': _B_in['w_gate'], 'B_w_up': _B_in['w_up'], 'B_w_down': _B_in['w_down'], 'c': _w((lambda *s: torch.randn(*s, dtype=torch.bfloat16) * 0.2)(1, 512) * 8.0), 'w_mod': _w((lambda *s: torch.randn(*s, dtype=torch.bfloat16) * 0.2)(512, 6 * 512) * 512 ** (-0.5) * 8.0)}

def reference(A_q, A_k, A_v, A_shift_k, A_ssm_k, A_ssm_D, B_x, B_w_gate, B_w_up, B_w_down, c, w_mod):

    def _A_ref(q, k, v, shift_k, ssm_k, ssm_D):
        B, S, D = q.shape
        ks = shift_k.shape[-1]
        k_pad = _pad(k, ((0, 0), (ks - 1, 0), (0, 0)))
        k_shift = torch.zeros_like(k)
        for t in range(ks):
            k_shift = k_shift + k_pad[:, t:t + S, :] * shift_k[:, ks - 1 - t][None, None, :]
        kv = k_shift * v
        L = 2 * S
        kv_pad = _pad(kv, ((0, 0), (0, S), (0, 0)))
        kf_pad = _pad(ssm_k, ((0, 0), (0, S)))
        kv_f = (lambda x, axes=(-2, -1): torch.fft.rfft2(x.float(), dim=axes))(kv_pad[:, None, :, :], axes=(1, 2))
        kf_f = (lambda x, axes=(-2, -1): torch.fft.rfft2(x.float(), dim=axes))(kf_pad[:, None, :], axes=(1, 2))
        kf_f = (lambda x, *d: x.permute(*d))(kf_f, 1, 2, 0)
        y_f = kv_f * kf_f[None, :, :, :]
        y = (lambda x, s, axes=(-2, -1): torch.fft.irfft2(x, s=s, dim=axes).to(torch.bfloat16))(y_f, (1, L), axes=(1, 2))[:, 0, :S, :]
        y = y + kv * ssm_D[None, None, :]
        return q * y

    def _B_ref(x, w_gate, w_up, w_down):
        g = torch.einsum('bsd,df->bsf', x, w_gate)
        u = torch.einsum('bsd,df->bsf', x, w_up)
        h = g * u
        return torch.einsum('bsf,fd->bsd', h, w_down)
    x = A_q
    mod = (_silu(c) @ w_mod).reshape(c.shape[0], 6, 1, -1)
    sa, ca, ga, sb, cb, gb = (mod[:, 0].clone(), mod[:, 1].clone(), mod[:, 2].clone(), mod[:, 3].clone(), mod[:, 4].clone(), mod[:, 5].clone())
    h = _layernorm(x, axis=-1) * (1 + ca) + sa
    x = x + ga * _A_ref(h, A_k, A_v, A_shift_k, A_ssm_k, A_ssm_D)
    h = _layernorm(x, axis=-1) * (1 + cb) + sb
    x = x + gb * _B_ref(h, B_w_gate, B_w_up, B_w_down)
    return x
```

```python
import re

class RegPool:
    def __init__(self, n, prefix):
        self.n = n; self.free_ = [True]*n; self.prefix = prefix; self.hi = 0
    def alloc(self, cnt=1, align=None):
        if align is None: align = 1 if cnt == 1 else 2
        for b in range(0, self.n-cnt+1, align):
            if all(self.free_[b:b+cnt]):
                for i in range(b, b+cnt): self.free_[i] = False
                self.hi = max(self.hi, b+cnt)
                return Reg(self.prefix, b, cnt, self)
        raise RuntimeError(f"out of {self.prefix} registers (need {cnt})")
    def reserve(self, b, cnt):
        for i in range(b, b+cnt):
            assert self.free_[i], (self.prefix, i)
            self.free_[i] = False
        self.hi = max(self.hi, b+cnt)
        return Reg(self.prefix, b, cnt, self)
    def nfree(self): return sum(self.free_)

class Reg:
    def __init__(self, p, b, n, pool=None):
        self.p = p; self.b = b; self.n = n; self.pool = pool
    def __str__(self):
        return f"{self.p}{self.b}" if self.n == 1 else f"{self.p}[{self.b}:{self.b+self.n-1}]"
    def __getitem__(self, i):
        if isinstance(i, slice):
            s = i.start or 0; e = self.n if i.stop is None else i.stop
            assert 0 <= s < e <= self.n, (s, e, self.n)
            return Reg(self.p, self.b+s, e-s)
        assert 0 <= i < self.n, (i, self.n)
        return Reg(self.p, self.b+i, 1)
    def free(self):
        for i in range(self.b, self.b+self.n):
            assert not self.pool.free_[i]
            self.pool.free_[i] = True

REG_RE = re.compile(r'\b([vas])(\d+)\b|\b([vas])\[(\d+):(\d+)\]|\b(vcc|exec|m0|scc)\b|\b(vcc_lo|vcc_hi|exec_lo|exec_hi)\b')
def regs_of(op):
    out = set()
    for m in REG_RE.finditer(op):
        if m.group(1): out.add((m.group(1), int(m.group(2))))
        elif m.group(3):
            for i in range(int(m.group(4)), int(m.group(5))+1): out.add((m.group(3), i))
        elif m.group(6): out.add((m.group(6), 0))
        elif m.group(7): out.add((m.group(7)[:-3], 0))
    return out

TRANS = ('v_exp_f32','v_log_f32','v_rcp_f32','v_rsq_f32','v_sqrt_f32','v_sin_f32','v_cos_f32')
class Ins:
    __slots__ = ('text','op','ops','kind','dst','src','passes','srcA','srcB','srcC','dpp')
    def __init__(self, text):
        self.text = text
        t = text.split(';')[0].strip()
        self.dst = set(); self.src = set(); self.kind = 'other'; self.passes = 0
        self.srcA = self.srcB = self.srcC = set(); self.dpp = False
        if not t or t.endswith(':') or t.startswith('.'):
            self.op = ''; self.kind = 'label' if t.endswith(':') else 'none'; return
        sp = t.split(None, 1); op = self.op = sp[0]
        rest = sp[1] if len(sp) > 1 else ''
        ops = [o.strip() for o in re.split(r',(?![^\[]*\])', rest)] if rest else []
        self.ops = ops
        R = [regs_of(o) for o in ops]
        allr = set().union(*R) if R else set()
        if op.startswith('v_mfma'):
            self.kind = 'mfma'; self.dst = R[0]; self.srcA = R[1]; self.srcB = R[2]; self.srcC = R[3]
            self.src = R[1] | R[2] | R[3]
            self.passes = 8 if '32x32' in op else 4
        elif op.startswith('v_'):
            self.kind = 'valu'
            self.dpp = ('dpp' in op) or ('row_' in rest) or ('quad_perm' in rest)
            if op.startswith('v_cmp'):
                self.dst = R[0]; self.src = set().union(*R[1:])
                if op.startswith('v_cmpx'): self.dst = self.dst | {('exec',0)}
            elif op.startswith('v_permlane') and 'swap' in op:
                self.dst = R[0] | R[1]; self.src = R[0] | R[1]
            elif '_co_' in op:
                self.dst = R[0] | R[1]; self.src = set().union(*R[2:])
            else:
                self.dst = R[0]; self.src = set().union(*R[1:]) if len(R) > 1 else set()
                if op.startswith(('v_fmac','v_dot2c','v_pk_fmac')) or self.dpp: self.src |= R[0]
                if op.startswith('v_cndmask') and len(ops) == 3: self.src |= {('vcc',0)}
        elif op.startswith('ds_'):
            self.kind = 'ds'
            if 'read' in op or 'bpermute' in op or 'swizzle' in op or 'permute' in op or '_rtn' in op:
                self.dst = R[0]; self.src = set().union(*R[1:])
            else: self.src = allr
        elif op.startswith(('buffer_','global_')):
            self.kind = 'vmem'
            islds = bool(re.search(r'\blds\b', rest)) or '_lds_' in op
            if 'load' in op and not islds:
                self.dst = R[0]; self.src = set().union(*R[1:])
            else:
                self.src = allr
                if islds: self.src = self.src | {('m0',0)}
        elif op.startswith('s_'):
            self.kind = 'salu'
            if op.startswith(('s_load','s_buffer_load','s_memtime','s_memrealtime')): self.kind = 'smem'
            if op.startswith(('s_cmp','s_cbranch','s_branch','s_waitcnt','s_barrier','s_nop','s_endpgm','s_sleep','s_setprio')):
                self.src = allr
            else:
                self.dst = R[0] if R else set(); self.src = set().union(*R[1:]) if len(R) > 1 else set()
                if 'saveexec' in op: self.dst = self.dst | {('exec',0)}
    def states(self):
        if self.kind in ('label','none'): return 0
        if self.op == 's_nop': return int(self.ops[0], 0)+1
        return 1

def isv(r): return r[0] in ('v','a')
def iss(r): return r[0] in ('s','vcc')

def need_states(p, c):
    n = 0
    if p.kind == 'valu':
        vd = {r for r in p.dst if isv(r)}; sd = {r for r in p.dst if iss(r)}
        if c.kind == 'mfma' and vd & c.src: n = max(n, 2)
        if c.kind == 'valu':
            if c.dpp and vd & c.src: n = max(n, 2)
            if c.op.startswith('v_permlane') and vd & c.src: n = max(n, 2)
            if c.op.startswith(('v_readlane','v_readfirstlane')) and vd & c.src: n = max(n, 1)
            if p.op.startswith(TRANS) and vd & c.src: n = max(n, 1)
            if sd & c.src: n = max(n, 4 if c.op.startswith(('v_readlane','v_writelane')) else 2)
            if p.op.startswith('v_dot'):
                if vd & (c.src | c.dst):
                    same_acc = (c.op == p.op) and not (vd & set().union(*[regs_of(o) for o in c.ops[1:3]]))
                    if not same_acc: n = max(n, 3)
            if ('op_sel' in p.text or 'sdwa' in p.text) and vd & (c.src | c.dst) and not p.op.startswith('v_pk'): n = max(n, 1)
        if p.op.startswith('v_dot') and c.kind in ('mfma','vmem','ds') and vd & (c.src | c.dst): n = max(n, 3)
        if c.kind == 'vmem' and sd & c.src: n = max(n, 5)
        if c.kind in ('salu','smem') and sd & c.src: n = max(n, 4)
        if c.op.startswith('s_cbranch_vcc') and ('vcc',0) in p.dst: n = max(n, 5)
        if ('exec',0) in p.dst and c.kind in ('valu','mfma'): n = max(n, 5)
    if p.kind == 'salu':
        if ('m0',0) in p.dst and ('m0',0) in c.src and c.kind in ('vmem','ds'): n = max(n, 1)
    if p.kind == 'mfma':
        big = 12 if p.passes == 8 else 8
        if c.kind == 'mfma':
            if p.dst & (c.srcA | c.srcB): n = max(n, big)
            if p.dst & c.srcC and not (p.dst == c.srcC and p.passes == c.passes): n = max(n, big-2)
            if p.dst & c.dst and not (p.dst == c.srcC): n = max(n, big)
        elif c.kind in ('valu','vmem','ds'):
            if p.dst & (c.src | c.dst): n = max(n, big)
            if c.kind == 'valu' and p.srcC & c.dst: n = max(n, 7 if p.passes == 8 else 3)
    if p.kind == 'vmem' and ('store' in p.op) and ('x4' in p.op or 'x3' in p.op):
        data = regs_of(p.ops[0]) if p.op.startswith('buffer') else regs_of(p.ops[1])
        if data & c.dst: n = max(n, 2)
    if p.kind == 'ds' and 'write_b128' in p.op:
        if regs_of(p.ops[1]) & c.dst and c.kind == 'valu': n = max(n, 2)
    return n

class Prog:
    def __init__(self):
        self.ins = []
        self.vm = 0; self.lg = 0
        self.vm_done = 0; self.lg_done = 0
        self.V = RegPool(256, 'v'); self.A = RegPool(256, 'a'); self.S = RegPool(102, 's')
        self.nlabel = 0
    def I(self, text):
        tok = None
        for line in str(text).split('\n'):
            line = line.strip()
            if not line: continue
            i = Ins(line); self.ins.append(i)
            if i.kind == 'vmem': tok = ('vm', self.vm); self.vm += 1
            elif i.kind == 'ds': tok = ('lg', self.lg); self.lg += 1
        return tok
    def wait(self, *toks):
        vm = lg = None
        def flat(ts):
            for t in ts:
                if t is None: continue
                if isinstance(t, (list, tuple)) and not (len(t) == 2 and t[0] in ('vm','lg')): yield from flat(t)
                else: yield t
        for k, i in flat(toks):
            if k == 'vm' and i >= self.vm_done: vm = i if vm is None else max(vm, i)
            if k == 'lg' and i >= self.lg_done: lg = i if lg is None else max(lg, i)
        parts = []
        if vm is not None:
            n = min(self.vm - vm - 1, 63); parts.append(f"vmcnt({n})"); self.vm_done = self.vm - n
        if lg is not None:
            n = min(self.lg - lg - 1, 15); parts.append(f"lgkmcnt({n})"); self.lg_done = self.lg - n
        if parts: self.I("s_waitcnt " + " ".join(parts))
    def wait_all(self, vm=True, lg=True):
        parts = []
        if vm: parts.append("vmcnt(0)"); self.vm_done = self.vm
        if lg: parts.append("lgkmcnt(0)"); self.lg_done = self.lg
        self.I("s_waitcnt " + " ".join(parts))
    def label(self, base='L'):
        self.nlabel += 1; return f"{base}_{self.nlabel}"
    def finalize(self):
        out = []; nn = 0
        for c in self.ins:
            if c.kind not in ('label','none'):
                need = 0; dist = 0
                for p in reversed(out):
                    if dist >= 20: break
                    r = need_states(p, c) - dist
                    if r > need: need = r
                    dist += p.states()
                while need > 0:
                    k = min(need, 16); out.append(Ins(f"s_nop {k-1}")); need -= k; nn += 1
            out.append(c)
        self.nops = nn
        return "\n".join(("" if i.kind == 'label' else "  ") + i.text for i in out)
```

```python
import sys
from dsl import *

NAME = "adaLN_cond__ssm_conv_h3__glu_gated_bilinear__prompt"
TSTAMP = '--ts' in sys.argv

EPOCH=0; F1=0x10000; F3=0x18000; F2=0x20000; F4=0x40000; F5=0x60000
MODP=0x90000; ST1=0xA0000; C12=0xB0000
KVT=0x100000; XT=0x300000; X1T=0x500000; WP=0x700000; WDP=0xB00000; HH=0xD00000; TS=0x1400000
WS_SIZE=0x1500000
OOB=0x80000000
FSH=6

TAPS=15360; TCOPY=4160; TCH=33280
UB=0; UCH=4608
MODL=9216
CBL=10240
C12L=11264
RED=131072
WL=0; XS=131072; XSW=7168; CT=159744
LDS_SIZE=163840

P = Prog(); I = P.I; V = P.V; A = P.A; S = P.S
S.reserve(0, 3)
v0 = V.reserve(0, 1)
def srd(): return S.alloc(4, 4)
rX, rK, rV, rSH, rTP, rW, rWD, rC, rWM, rOUT, rWS = [srd() for _ in range(11)]
sPG = S.alloc(2, 2); sPU = S.alloc(2, 2); sPD = S.alloc(2, 2)
sXJ = S.alloc(); sGI = S.alloc(); sWv = S.alloc(); sSpin = S.alloc()
sT = [S.alloc() for _ in range(8)]
sC4096 = S.alloc(); sC8192 = S.alloc(); sC12288 = S.alloc()
sPL = S.alloc(); sPH = S.alloc()
sD = S.alloc(); sD0 = S.alloc()
sTs = S.alloc(2, 2); sT0 = S.alloc(2, 2)

class Frags:
    def __init__(self, n): self.g = [V.alloc(4) for _ in range(n)]
    def __getitem__(self, i):
        if isinstance(i, slice):
            assert i.start//4 == (i.stop-1)//4
            return self.g[i.start//4][i.start%4:(i.stop-1)%4+1]
        return self.g[i//4][i%4]
    def free(self):
        for g in self.g: g.free()
nts = [0]
def stamp(name=""):
    if not TSTAMP: return
    I(f"s_memtime {sTs}")
    I("s_waitcnt lgkmcnt(0)"); P.lg_done = P.lg
    I(f"s_sub_u32 {sTs[0]}, {sTs[0]}, {sT0[0]}")
    I(f"v_mov_b32 {vTsV}, {sTs[0]}")
    I(f"buffer_store_dword {vTsV}, {vTsA}, {rWS}, 0 offen offset:{4*nts[0]}")
    print(f"; ts slot {nts[0]} = {name}", file=sys.stderr)
    nts[0] += 1

I("s_cmp_ge_u32 s2, 256")
I("s_cbranch_scc1 L_end")
if TSTAMP: I(f"s_memtime {sT0}")
for r, off in ((rK,8),(rV,16),(rSH,24),(rWS,112),(rC,80),(rWM,88),(rX,0),(rTP,32),(rWD,72),(rOUT,96)):
    I(f"s_load_dwordx2 {r[0:2]}, s[0:1], {off}")
I(f"s_load_dwordx2 {sPG}, s[0:1], 56")
I(f"s_load_dwordx2 {sPU}, s[0:1], 64")
I(f"s_load_dwordx2 {sPD}, s[0:1], 40")
for r, n in ((rK,2097152),(rV,2097152),(rSH,4096),(rWS,WS_SIZE),(rC,1024),(rWM,3145728),(rX,2097152),(rTP,2097152),(rWD,1835008),(rOUT,2097152),(rW,1835008)):
    I(f"s_mov_b32 {r[2]}, {n}")
    I(f"s_mov_b32 {r[3]}, 0x20000")
vL = V.alloc(); vL16 = V.alloc(); vTag = V.alloc()
if TSTAMP: vTsV = V.alloc(); vTsA = V.alloc()
t0 = V.alloc(); t1 = V.alloc(); t2 = V.alloc()
I(f"s_and_b32 {sXJ}, s2, 7")
I(f"s_lshr_b32 {sGI}, s2, 3")
I(f"v_lshrrev_b32 {t0}, 6, v0")
I(f"v_and_b32 {vL}, 63, v0")
I(f"v_readfirstlane_b32 {sWv}, {t0}")
I(f"v_lshlrev_b32 {vL16}, 4, {vL}")
I(f"s_mov_b32 {sSpin}, 0")
I(f"s_movk_i32 {sC4096}, 0x1000")
I(f"s_movk_i32 {sC8192}, 0x2000")
I(f"s_movk_i32 {sC12288}, 0x3000")
I(f"s_mov_b32 {sPL}, 0x05040100")
I(f"s_mov_b32 {sPH}, 0x07060302")
vB = V.alloc(); vH = V.alloc()
I(f"s_lshl_b32 {sT[0]}, {sGI}, 16")
I(f"s_lshl_b32 {sT[1]}, {sXJ}, 7")
I(f"s_lshl_b32 {sT[2]}, {sWv}, 5")
I(f"s_add_u32 {sT[1]}, {sT[1]}, {sT[2]}")
I(f"s_add_u32 {sT[0]}, {sT[0]}, {sT[1]}")
I(f"v_lshrrev_b32 {t0}, 3, {vL}")
I(f"v_and_b32 {t1}, 7, {vL}")
I(f"v_lshlrev_b32 {vB}, 13, {t0}")
I(f"v_lshl_add_u32 {vB}, {t1}, 2, {vB}")
I(f"v_add_u32 {vB}, {sT[0]}, {vB}")
I(f"v_subrev_u32 {vH}, 3072, {vB}")
vSH = V.alloc()
I(f"s_lshl_b32 {sT[2]}, {sT[1]}, 2")
I(f"v_lshlrev_b32 {vSH}, 4, {t1}")
I(f"v_add_u32 {vSH}, {sT[2]}, {vSH}")
vKS = V.alloc(); vXS = V.alloc()
I(f"s_lshl_b32 {sT[2]}, {sT[1]}, 11")
I(f"s_lshl_b32 {sT[3]}, {sGI}, 7")
I(f"v_lshlrev_b32 {vXS}, 13, {t1}")
I(f"v_add_u32 {vXS}, {sT[2]}, {vXS}")
I(f"v_lshlrev_b32 {t2}, 4, {t0}")
I(f"v_add_u32 {t2}, {sT[3]}, {t2}")
I(f"v_sub_u32 {vKS}, {vXS}, {t2}")
I(f"v_add_u32 {vKS}, {KVT+4080}, {vKS}")
I(f"v_add_u32 {vXS}, {vXS}, {t2}")
I(f"v_add_u32 {vXS}, {XT}, {vXS}")
I("s_waitcnt lgkmcnt(0)")
Kr = V.alloc(11, 1); Vr = V.alloc(8, 1); SHr = V.alloc(4); Xr = V.alloc(8, 1)
NT = ""
tk = []
for e in range(3): tk.append(I(f"buffer_load_dword {Kr[e]}, {vH}, {rK}, 0 offen offset:{e*1024} {NT}"))
for e in range(8): tk.append(I(f"buffer_load_dword {Kr[3+e]}, {vB}, {rK}, {sC4096 if e>=4 else 0} offen offset:{(e&3)*1024} {NT}"))
tsh = I(f"buffer_load_dwordx4 {SHr}, {vSH}, {rSH}, 0 offen")
tv = [I(f"buffer_load_dword {Vr[e]}, {vB}, {rV}, {sC4096 if e>=4 else 0} offen offset:{(e&3)*1024} {NT}") for e in range(8)]
I(f"v_mov_b32 {t2}, {EPOCH}")
tep = I(f"buffer_load_dword {vTag}, {t2}, {rWS}, 0 offen sc1")
if TSTAMP:
    I(f"s_lshl_b32 {sT[4]}, s2, 8")
    I(f"s_add_u32 {sT[4]}, {sT[4]}, {TS}")
    I(f"s_cmp_eq_u32 {sWv}, 0")
    I(f"s_cselect_b32 {sT[4]}, {sT[4]}, {OOB}")
    I(f"v_mov_b32 {vTsA}, {sT[4]}")
I(f"s_and_b32 {sT[4]}, {sGI}, 1")
I(f"s_cmp_eq_u32 {sT[4]}, 0")
I(f"s_cselect_b32 {rW[0]}, {sPG[0]}, {sPU[0]}")
I(f"s_cselect_b32 {rW[1]}, {sPG[1]}, {sPU[1]}")
I(f"s_lshl_b32 {sD0}, {sXJ}, 6")
I(f"s_lshl_b32 {sT[4]}, {sGI}, 1")
I(f"s_add_u32 {sD0}, {sD0}, {sT[4]}")
I(f"s_lshl_b32 {sT[4]}, {sD0}, 1")
I(f"s_load_dword {sD}, {sPD}, {sT[4]}")
vMW = V.alloc(); vMC = V.alloc()
Cr = V.alloc(4, 1); WMr = V.alloc(16)
I(f"s_and_b32 {sT[4]}, {sGI}, 3")
I(f"s_lshl_b32 {sT[4]}, {sT[4]}, 7")
I(f"v_lshrrev_b32 {t2}, 3, v0")
I(f"v_add_u32 {t2}, {sT[4]}, {t2}")
I(f"v_lshlrev_b32 {vMC}, 1, {t2}")
I(f"v_mul_u32_u24 {vMW}, 6144, {t2}")
I(f"v_lshl_add_u32 {vMW}, {t1}, 4, {vMW}")
I(f"s_lshr_b32 {sT[4]}, {sGI}, 2")
I(f"s_lshl_b32 {sT[4]}, {sT[4]}, 10")
I(f"s_lshl_b32 {sT[5]}, {sXJ}, 7")
I(f"s_add_u32 {sT[4]}, {sT[4]}, {sT[5]}")
I(f"s_cmp_lt_u32 {sGI}, 24")
I(f"s_cselect_b32 {sT[4]}, {sT[4]}, {OOB}")
I(f"v_add_u32 {vMW}, {sT[4]}, {vMW}")
tc = [I(f"buffer_load_ushort {Cr[i]}, {vMC}, {rC}, 0 offen offset:{64*i}") for i in range(4)]
twm = []
for i in range(4):
    I(f"s_mov_b32 {sT[5]}, {i*32*6144}")
    twm.append(I(f"buffer_load_dwordx4 {WMr[4*i:4*i+4]}, {vMW}, {rWM}, {sT[5]} offen {NT}"))
tx = [I(f"buffer_load_dword {Xr[e]}, {vB}, {rX}, {sC4096 if e>=4 else 0} offen offset:{(e&3)*1024}") for e in range(8)]
vMW.free(); vMC.free(); vSH.free(); vH.free(); vB.free()

z4 = V.alloc(4)
for i in range(4): I(f"v_mov_b32 {z4[i]}, 0")
I(f"v_and_b32 {t2}, 31, {vL}")
I(f"v_lshlrev_b32 {t2}, 4, {t2}")
I(f"v_lshrrev_b32 {t0}, 5, {vL}")
I(f"v_mul_u32_u24 {t0}, {UCH}, {t0}")
I(f"v_add_u32 {t2}, {t2}, {t0}")
I(f"ds_write_b128 {t2}, {z4} offset:{UB+4096}")
z4.free()

kf = V.alloc(22); wp = V.alloc(8); acc = V.alloc(16); vf = V.alloc(2)
P.wait(tsh)
for j in range(4):
    for c in range(2):
        src = SHr[2*c + (j>>1)]
        I(f"v_lshlrev_b32 {wp[2*j+c]}, 16, {src}" if j%2==0 else f"v_and_b32 {wp[2*j+c]}, 0xffff0000, {src}")
for e in range(11):
    I(f"v_lshlrev_b32 {kf[2*e]}, 16, {Kr[e]}")
    I(f"v_and_b32 {kf[2*e+1]}, 0xffff0000, {Kr[e]}")
for e in range(8):
    I(f"v_pk_mul_f32 {acc[2*e:2*e+2]}, {kf[2*e:2*e+2]}, {wp[6:8]}")
for j in (2, 1, 0):
    for e in range(8):
        q = e + 3 - j
        I(f"v_pk_fma_f32 {acc[2*e:2*e+2]}, {kf[2*q:2*q+2]}, {wp[2*j:2*j+2]}, {acc[2*e:2*e+2]}")
P.wait(tv)
for e in range(8):
    I(f"v_lshlrev_b32 {kf[2*e]}, 16, {Vr[e]}")
    I(f"v_and_b32 {kf[2*e+1]}, 0xffff0000, {Vr[e]}")
for e in range(8):
    I(f"v_pk_mul_f32 {acc[2*e:2*e+2]}, {acc[2*e:2*e+2]}, {kf[2*e:2*e+2]}")
ko = V.alloc(8)
for c in range(2):
    for n in range(4):
        I(f"v_cvt_pk_bf16_f32 {ko[4*c+n]}, {acc[2*(7-2*n)+c]}, {acc[2*(6-2*n)+c]}")
tks = [I(f"buffer_store_dwordx4 {ko[0:4]}, {vKS}, {rWS}, 0 offen sc1"),
       I(f"buffer_store_dwordx4 {ko[4:8]}, {vKS}, {rWS}, {sC4096} offen sc1")]
for r in (kf, wp, acc, vf, Kr, Vr, SHr, vKS): r.free()
stamp("kv stores issued")

XR = V.alloc(8)
I(f"s_lshl_b32 {sT[0]}, s2, 13")
I(f"s_lshl_b32 {sT[1]}, {sWv}, 11")
I(f"s_add_u32 {sT[0]}, {sT[0]}, {sT[1]}")
txr = [I(f"buffer_load_dwordx4 {XR[4*i:4*i+4]}, {vL16}, {rX}, {sT[0]} offen offset:{1024*i}") for i in range(2)]
vTH = V.alloc(); vTHa = V.alloc()
I(f"v_and_b32 {t0}, 15, v0")
I(f"v_bfe_u32 {t1}, v0, 4, 3")
I(f"v_lshrrev_b32 {t2}, 7, v0")
I(f"v_mul_u32_u24 {vTHa}, {TCOPY}, {t1}")
I(f"v_lshl_add_u32 {vTHa}, {t0}, 1, {vTHa}")
I(f"v_add_u32 {t0}, {t0}, {t1}")
I(f"v_mul_u32_u24 {t1}, {TCH}, {t2}")
I(f"v_add_u32 {vTHa}, {vTHa}, {t1}")
I(f"v_add_u32 {t2}, {sD0}, {t2}")
I(f"v_lshlrev_b32 {t2}, 12, {t2}")
I(f"v_lshl_add_u32 {t2}, {t0}, 1, {t2}")
I(f"v_subrev_u32 {t2}, 30, {t2}")
I(f"v_cmp_gt_u32 vcc, 15, {t0}")
I(f"v_mov_b32 {t1}, {OOB}")
I(f"v_cndmask_b32 {t2}, {t2}, {t1}, vcc")
tth = I(f"buffer_load_ushort {vTH}, {t2}, {rTP}, 0 offen")
I(f"s_lshr_b32 {sT[0]}, {sWv}, 1")
I(f"s_and_b32 {sT[1]}, {sWv}, 1")
I(f"s_add_u32 {sT[2]}, {sD0}, {sT[0]}")
I(f"s_lshl_b32 {sT[2]}, {sT[2]}, 12")
I(f"s_lshl_b32 {sT[3]}, {sT[1]}, 3")
I(f"s_add_u32 {sT[2]}, {sT[2]}, {sT[3]}")
I(f"s_add_u32 {sT[2]}, {sT[2]}, 2")
I(f"s_mul_i32 {sT[0]}, {sT[0]}, {TCH}")
I(f"s_mul_i32 {sT[1]}, {sT[1]}, {4*TCOPY}")
I(f"s_add_u32 {sT[0]}, {sT[0]}, {sT[1]}")
I(f"v_add_u32 {t0}, {sT[2]}, {vL16}")
ttp = []
for cc in range(4):
    I(f"s_add_u32 m0, {sT[0]}, {TAPS + 32 + cc*TCOPY}")
    if cc: I(f"v_add_u32 {t0}, 2, {t0}")
    for n in range(4):
        ttp.append(I(f"buffer_load_dwordx4 {t0}, {rTP}, 0 offen offset:{1024*n} lds"))
WR = V.alloc(16)
vHH = V.alloc(); vQ = V.alloc()
sKS = S.alloc(); sCB = S.alloc()
I(f"v_lshrrev_b32 {vHH}, 5, {vL}")
I(f"v_and_b32 {vQ}, 31, {vL}")
I(f"s_lshl_b32 {sKS}, {sXJ}, 2")
I(f"s_add_u32 {sKS}, {sKS}, {sWv}")
I(f"s_lshr_b32 {sCB}, {sGI}, 1")
I(f"s_mul_i32 {sT[0]}, {sKS}, {16*3584}")
I(f"s_mul_i32 {sT[1]}, {sCB}, 224")
I(f"s_add_u32 {sT[0]}, {sT[0]}, {sT[1]}")
I(f"v_mul_u32_u24 {t0}, {8*3584}, {vHH}")
I(f"v_lshl_add_u32 {t0}, {vQ}, 3, {t0}")
twr = []
for e in range(8):
    if e and e % 2 == 0: I(f"s_add_u32 {sT[0]}, {sT[0]}, 7168")
    twr.append(I(f"buffer_load_dwordx2 {WR[2*e:2*e+2]}, {t0}, {rW}, {sT[0]} offen offset:{(e&1)*3584} {NT}"))
WDr = V.alloc(8, 1)
I(f"s_lshl_b32 {sT[0]}, {sGI}, 2")
I(f"s_add_u32 {sT[0]}, {sT[0]}, {sWv}")
I(f"s_lshl_b32 {sT[1]}, {sT[0]}, 14")
I(f"s_lshl_b32 {sT[2]}, {sXJ}, 7")
I(f"s_add_u32 {sT[1]}, {sT[1]}, {sT[2]}")
I(f"v_lshlrev_b32 {t0}, 10, {vHH}")
I(f"v_lshl_add_u32 {t0}, {vQ}, 2, {t0}")
I(f"v_add_u32 {t0}, {sT[1]}, {t0}")
twd = []
for e in range(8):
    g, r = e >> 2, e & 3
    twd.append(I(f"buffer_load_dword {WDr[e]}, {t0}, {rWD}, {[0,sC4096,sC8192,sC12288][r]} offen offset:{2048*g} {NT}"))
vWDS = V.alloc()
I(f"s_mul_i32 {sT[1]}, {sXJ}, 112")
I(f"s_add_u32 {sT[1]}, {sT[1]}, {sT[0]}")
I(f"s_lshl_b32 {sT[1]}, {sT[1]}, 11")
I(f"s_add_u32 {sT[1]}, {sT[1]}, {WDP}")
I(f"s_cmp_lt_u32 {sGI}, 28")
I(f"s_cselect_b32 {sT[1]}, {sT[1]}, {OOB}")
I(f"v_lshrrev_b32 {t0}, 4, {vQ}")
I(f"v_lshlrev_b32 {vWDS}, 10, {t0}")
I(f"v_lshl_add_u32 {vWDS}, {vHH}, 9, {vWDS}")
I(f"v_bfe_u32 {t0}, {vQ}, 2, 1")
I(f"v_lshl_add_u32 {vWDS}, {t0}, 7, {vWDS}")
I(f"v_bfe_u32 {t0}, {vQ}, 3, 1")
I(f"v_lshl_add_u32 {vWDS}, {t0}, 6, {vWDS}")
I(f"v_and_b32 {t0}, 3, {vQ}")
I(f"v_lshl_add_u32 {vWDS}, {t0}, 4, {vWDS}")
I(f"v_add_u32 {vWDS}, {sT[1]}, {vWDS}")

P.wait(tep)
I(f"s_mov_b32 {sT[0]}, 0x9E3779B1")
I(f"v_mul_lo_u32 {vTag}, {vTag}, {sT[0]}")
I(f"v_add_u32 {vTag}, 0x7F4A7C15, {vTag}")

P.wait(tc)
sl = V.alloc(4, 1); sp = V.alloc(2, 1)
for i in range(4): I(f"v_lshlrev_b32 {Cr[i]}, 16, {Cr[i]}")
for i in range(4): I(f"v_mul_f32 {sl[i]}, 0xbfb8aa3b, {Cr[i]}")
for i in range(4): I(f"v_exp_f32 {sl[i]}, {sl[i]}")
for i in range(4): I(f"v_add_f32 {sl[i]}, 1.0, {sl[i]}")
for i in range(4): I(f"v_rcp_f32 {sl[i]}, {sl[i]}")
for i in range(4): I(f"v_mul_f32 {sl[i]}, {sl[i]}, {Cr[i]}")
I(f"v_cvt_pk_bf16_f32 {sp[0]}, {sl[0]}, {sl[1]}")
I(f"v_cvt_pk_bf16_f32 {sp[1]}, {sl[2]}, {sl[3]}")
P.wait(twm)
ma = V.alloc(8, 1); mp = V.alloc(8, 1)
for half in range(2):
    for j in range(4):
        I(f"v_perm_b32 {mp[2*j]}, {WMr[8*half+4+j]}, {WMr[8*half+j]}, {sPL}")
        I(f"v_perm_b32 {mp[2*j+1]}, {WMr[8*half+4+j]}, {WMr[8*half+j]}, {sPH}")
    for j in range(8):
        I(f"v_dot2_f32_bf16 {ma[j]}, {mp[j]}, {sp[half]}, {0 if half==0 else ma[j]}")
for i in range(4): I(f"v_permlane32_swap_b32 {ma[i]}, {ma[i+4]}")
for i in range(4): I(f"v_add_f32 {ma[i]}, {ma[i]}, {ma[i+4]}")
for i in range(2): I(f"v_permlane16_swap_b32 {ma[i]}, {ma[i+2]}")
for i in range(2): I(f"v_add_f32 {ma[i]}, {ma[i]}, {ma[i+2]}")
for i in range(2): I(f"v_add_f32_dpp {ma[i]}, {ma[i]}, {ma[i]} row_ror:8 row_mask:0xf bank_mask:0xf")
I(f"v_and_b32 {t0}, 7, {vL}")
I(f"v_lshlrev_b32 {t0}, 7, {t0}")
I(f"v_lshrrev_b32 {t1}, 4, {vL}")
I(f"v_lshl_add_u32 {t0}, {t1}, 5, {t0}")
I(f"s_lshl_b32 {sT[0]}, {sWv}, 2")
I(f"v_add_u32 {t0}, {sT[0]}, {t0}")
I(f"ds_write_b32 {t0}, {ma[0]} offset:{MODL}")
I(f"ds_write_b32 {t0}, {ma[1]} offset:{MODL+16}")
for r in (sl, sp, ma, mp, Cr, WMr): r.free()

sIDX = S.alloc()
vF1 = V.alloc()
vF8 = V.alloc()
I(f"s_lshl_b32 {sIDX}, {sXJ}, 5")
I(f"s_add_u32 {sIDX}, {sIDX}, {sGI}")
I(f"s_lshl_b32 {sT[0]}, {sIDX}, {FSH}")
I(f"v_lshlrev_b32 {vF8}, {FSH+8}, v0")
I(f"v_add_u32 {vF8}, {sT[0]}, {vF8}")
I(f"v_mov_b32 {t1}, {OOB}")
I(f"v_cmp_gt_u32 vcc, 8, v0")
I(f"v_cndmask_b32 {vF8}, {t1}, {vF8}, vcc")
I(f"v_cmp_eq_u32 vcc, 0, v0")
I(f"v_cndmask_b32 {vF1}, {t1}, {vF8}, vcc")

def post_flag(vaddr, base):
    I(f"s_mov_b32 {sT[7]}, {base}")
    return I(f"buffer_store_dword {vTag}, {vaddr}, {rWS}, {sT[7]} offen sc1")

def poll(vaddr, base):
    L = P.label("poll"); D = P.label("done")
    vp = V.alloc()
    I(f"s_mov_b32 {sT[6]}, {base}")
    I(f"{L}:")
    I(f"buffer_load_dword {vp}, {vaddr}, {rWS}, {sT[6]} offen sc1")
    P.wait_all(lg=False)
    I(f"v_cmp_ne_u32 vcc, {vp}, {vTag}")
    I(f"s_cbranch_vccz {D}")
    I(f"s_add_u32 {sSpin}, {sSpin}, 1")
    I(f"s_cmp_lt_u32 {sSpin}, 200000")
    I(f"s_cbranch_scc1 {L}")
    I(f"{D}:")
    vp.free()

P.wait(tks)
I("s_waitcnt lgkmcnt(0)"); P.lg_done = P.lg
I("s_barrier")
post_flag(vF1, F1)
stamp("F1 posted")
ko.free()
m4 = V.alloc(4)
tl = I(f"ds_read_b128 {m4}, {vL16} offset:{MODL}")
I(f"s_lshl_b32 {sT[0]}, {sGI}, 11")
I(f"s_lshl_b32 {sT[1]}, {sXJ}, 8")
I(f"s_add_u32 {sT[0]}, {sT[0]}, {sT[1]}")
I(f"s_add_u32 {sT[0]}, {sT[0]}, {MODP}")
I(f"s_cmp_lt_u32 {sGI}, 24")
I(f"s_cselect_b32 {sT[0]}, {sT[0]}, {OOB}")
I(f"s_cmp_eq_u32 {sWv}, 1")
I(f"s_cselect_b32 {sT[0]}, {sT[0]}, {OOB}")
I(f"v_lshlrev_b32 {t0}, 2, {vL}")
I(f"v_add_u32 {t0}, {sT[0]}, {t0}")
P.wait(tl)
I(f"v_add_f32 {m4[0]}, {m4[0]}, {m4[1]}")
I(f"v_add_f32 {m4[2]}, {m4[2]}, {m4[3]}")
I(f"v_add_f32 {m4[0]}, {m4[0]}, {m4[2]}")
I(f"buffer_store_dword {m4[0]}, {t0}, {rWS}, 0 offen sc1")
xo = V.alloc(8)
P.wait(tx)
for c in range(2):
    for n in range(4):
        I(f"v_perm_b32 {xo[4*c+n]}, {Xr[2*n+1]}, {Xr[2*n]}, {sPH if c else sPL}")
I(f"buffer_store_dwordx4 {xo[0:4]}, {vXS}, {rWS}, 0 offen sc1")
I(f"buffer_store_dwordx4 {xo[4:8]}, {vXS}, {rWS}, {sC4096} offen sc1")
Xr.free(); vXS.free()
sONE = S.alloc()
I(f"s_mov_b32 {sONE}, 0x3f803f80")
P.wait(txr)
q4 = V.alloc(4)
for n in range(4):
    for r in range(2):
        I(f"v_dot2_f32_bf16 {q4[2*r]}, {XR[4*r+n]}, {sONE}, {0 if n==0 else q4[2*r]}")
        I(f"v_dot2_f32_bf16 {q4[2*r+1]}, {XR[4*r+n]}, {XR[4*r+n]}, {0 if n==0 else q4[2*r+1]}")
I(f"v_permlane32_swap_b32 {q4[0]}, {q4[2]}")
I(f"v_permlane32_swap_b32 {q4[1]}, {q4[3]}")
I(f"v_add_f32 {q4[0]}, {q4[0]}, {q4[2]}")
I(f"v_add_f32 {q4[1]}, {q4[1]}, {q4[3]}")
I(f"v_permlane16_swap_b32 {q4[0]}, {q4[1]}")
I(f"v_add_f32 {q4[0]}, {q4[0]}, {q4[1]}")
for sh in (8, 4, 2, 1):
    I(f"v_add_f32_dpp {q4[0]}, {q4[0]}, {q4[0]} row_ror:{sh} row_mask:0xf bank_mask:0xf")
I(f"v_mov_b32 {q4[1]}, {q4[0]}")
I(f"v_permlane16_swap_b32 {q4[0]}, {q4[1]}")
def finish_stats(vsum, vsq, vrs, vnm, tmp):
    I(f"v_mul_f32 {vnm}, 0xbb000000, {vsum}")
    I(f"v_mul_f32 {tmp}, {vnm}, {vnm}")
    I(f"v_mov_b32 {vrs}, 0x3b000000")
    I(f"v_fma_f32 {tmp}, {vsq}, {vrs}, -{tmp}")
    I(f"v_max_f32 {tmp}, 0, {tmp}")
    I(f"v_add_f32 {tmp}, 0x3727c5ac, {tmp}")
    I(f"v_rsq_f32 {vrs}, {tmp}")
finish_stats(q4[0], q4[1], q4[2], q4[3], t0)
I(f"v_mul_f32 {q4[3]}, {q4[3]}, {q4[2]}")
I(f"s_lshl_b32 {sT[0]}, s2, 6")
I(f"s_lshl_b32 {sT[1]}, {sWv}, 4")
I(f"s_add_u32 {sT[0]}, {sT[0]}, {sT[1]}")
I(f"s_add_u32 {sT[0]}, {sT[0]}, {ST1}")
I(f"v_lshlrev_b32 {t0}, 3, {vHH}")
I(f"v_mov_b32 {t1}, {OOB}")
I(f"v_cmp_eq_u32 vcc, 0, {vQ}")
I(f"v_cndmask_b32 {t0}, {t1}, {t0}, vcc")
I(f"buffer_store_dwordx2 {q4[2:4]}, {t0}, {rWS}, {sT[0]} offen sc1")
XR.free()
P.wait(tth)
I(f"ds_write_b16 {vTHa}, {vTH} offset:{TAPS}")
vTH.free(); vTHa.free()
P.wait(twd)
wo = V.alloc(8)
for j in range(2):
    for n in range(4):
        I(f"v_perm_b32 {wo[4*j+n]}, {WDr[2*n+1]}, {WDr[2*n]}, {sPH if j else sPL}")
I(f"buffer_store_dwordx4 {wo[0:4]}, {vWDS}, {rWS}, 0 offen sc1")
I(f"buffer_store_dwordx4 {wo[4:8]}, {vWDS}, {rWS}, 0 offen offset:256 sc1")
WDr.free(); vWDS.free()
P.wait_all()
I("s_barrier")
post_flag(vF8, F2)
stamp("F2 posted")
for r in (m4, xo, q4, wo): r.free()

vPG = V.alloc()
vPA = V.alloc()
I(f"s_lshl_b32 {sT[0]}, {sXJ}, {5+FSH}")
I(f"v_lshlrev_b32 {vPG}, {FSH}, {vQ}")
I(f"v_add_u32 {vPG}, {sT[0]}, {vPG}")
I(f"s_lshl_b32 {sT[0]}, {sXJ}, {8+FSH}")
I(f"v_lshlrev_b32 {vPA}, {FSH}, v0")
I(f"v_add_u32 {vPA}, {sT[0]}, {vPA}")
poll(vPG, F1)
stamp("F1 seen")
I(f"s_lshl_b32 {sT[0]}, {sD0}, 12")
I(f"s_lshl_b32 {sT[1]}, {sWv}, 11")
I(f"s_add_u32 {sT[0]}, {sT[0]}, {sT[1]}")
I(f"s_add_u32 {sT[0]}, {sT[0]}, {KVT}")
I(f"s_lshr_b32 {sT[2]}, {sWv}, 1")
I(f"s_lshl_b32 {sT[2]}, {sT[2]}, 9")
I(f"s_add_u32 {sT[1]}, {sT[1]}, {sT[2]}")
I(f"s_add_u32 m0, {sT[1]}, {UB}")
for n in range(2): I(f"buffer_load_dwordx4 {vL16}, {rWS}, {sT[0]} offen offset:{1024*n} sc1 lds")
poll(vPA, F2)
I("s_barrier")
stamp("F2 seen, U landed")

ma2 = V.alloc(2, 1)
I(f"v_and_b32 {t0}, 15, {vL}")
I(f"v_bfe_u32 {t1}, {vL}, 4, 1")
I(f"v_lshlrev_b32 {t0}, 2, {t0}")
I(f"v_lshl_add_u32 {t0}, {t1}, 13, {t0}")
I(f"v_lshl_add_u32 {t0}, {vHH}, 12, {t0}")
I(f"s_lshl_b32 {sT[0]}, {sKS}, 6")
I(f"s_add_u32 {sT[0]}, {sT[0]}, {MODP + 3*8192}")
tm2 = [I(f"buffer_load_dword {ma2[n]}, {t0}, {rWS}, {sT[0]} offen offset:{2048*n} sc1") for n in range(2)]
mb = V.alloc()
I(f"v_and_b32 {t0}, 3, {vL}")
I(f"v_lshlrev_b32 {t0}, 11, {t0}")
I(f"v_bfe_u32 {t2}, {vL}, 2, 1")
I(f"v_lshl_add_u32 {t0}, {t2}, 2, {t0}")
I(f"v_bfe_u32 {t2}, {vL}, 3, 2")
I(f"v_lshl_add_u32 {t0}, {t2}, 13, {t0}")
I(f"s_lshl_b32 {sT[0]}, {sD0}, 2")
I(f"s_add_u32 {sT[0]}, {sT[0]}, {MODP}")
tmb = I(f"buffer_load_dword {mb}, {t0}, {rWS}, {sT[0]} offen sc1")
STr = V.alloc(16); XTr = V.alloc(8)
vT16 = V.alloc()
I(f"v_lshlrev_b32 {vT16}, 4, v0")
I(f"v_lshlrev_b32 {t0}, 6, v0")
I(f"s_mov_b32 {sT[0]}, {ST1}")
tst = [I(f"buffer_load_dwordx4 {STr[4*n:4*n+4]}, {t0}, {rWS}, {sT[0]} offen offset:{16*n} sc1") for n in range(4)]
I(f"s_lshl_b32 {sT[0]}, {sD0}, 12")
I(f"s_add_u32 {sT[0]}, {sT[0]}, {XT}")
I(f"s_add_u32 {sT[1]}, {sT[0]}, 4096")
txt = [I(f"buffer_load_dwordx4 {XTr[4*c:4*c+4]}, {vT16}, {rWS}, {sT[c]} offen sc1") for c in range(2)]
AWD = A.reserve(0, 224)
sR64 = S.alloc(); sDB = S.alloc()
I(f"s_lshr_b32 {sR64}, {sGI}, 3")
I(f"s_lshl_b32 {sT[0]}, {sXJ}, 2")
I(f"s_add_u32 {sR64}, {sR64}, {sT[0]}")
I(f"s_and_b32 {sDB}, {sGI}, 7")
def load_wd(n0, n1):
    vA0 = V.alloc(); vA1 = V.alloc()
    I(f"s_mul_i32 {sT[0]}, {sDB}, 112")
    I(f"s_mul_i32 {sT[1]}, {sWv}, 28")
    I(f"s_add_u32 {sT[0]}, {sT[0]}, {sT[1]}")
    I(f"s_lshl_b32 {sT[0]}, {sT[0]}, 11")
    I(f"s_add_u32 {sT[0]}, {sT[0]}, {WDP + n0*2048}")
    I(f"s_and_b32 {sT[1]}, {sWv}, 1")
    I(f"s_lshl_b32 {sT[1]}, {sT[1]}, 10")
    I(f"v_add_u32 {vA0}, {sT[1]}, {vL16}")
    I(f"v_xor_b32 {vA1}, 1024, {vA0}")
    toks = []
    for n in range(n0, n1):
        if n > n0 and (n-n0) % 2 == 0: I(f"s_add_u32 {sT[0]}, {sT[0]}, 4096")
        o = ((n-n0) & 1)*2048
        toks.append(I(f"buffer_load_dwordx4 {AWD[8*n:8*n+4]}, {vA0}, {rWS}, {sT[0]} offen offset:{o} sc1"))
        toks.append(I(f"buffer_load_dwordx4 {AWD[8*n+4:8*n+8]}, {vA1}, {rWS}, {sT[0]} offen offset:{o} sc1"))
    vA0.free(); vA1.free()
    return toks

def round_bf16(dst, src):
    I(f"v_cvt_pk_bf16_f32 {dst}, {src}, {src}")
    I(f"v_and_b32 {dst}, 0xffff0000, {dst}")

P.wait(tm2)
I(f"v_add_f32 {ma2[0]}, {ma2[0]}, {ma2[1]}")
I(f"v_mov_b32 {ma2[1]}, {ma2[0]}")
I(f"v_permlane32_swap_b32 {ma2[0]}, {ma2[1]}")
I(f"v_add_f32 {ma2[0]}, {ma2[0]}, {ma2[1]}")
round_bf16(ma2[0], ma2[0])
I(f"v_cvt_f32_u32 {t1}, {t1}")
I(f"v_add_f32 {ma2[0]}, {ma2[0]}, {t1}")
round_bf16(ma2[0], ma2[0])
I(f"s_lshl_b32 {sT[0]}, {sWv}, 7")
I(f"v_lshlrev_b32 {t0}, 2, {vQ}")
I(f"v_add_u32 {t0}, {sT[0]}, {t0}")
I(f"ds_write_b32 {t0}, {ma2[0]} offset:{CBL}")
I(f"v_lshlrev_b32 {t0}, 5, {vHH}")
I(f"v_add_u32 {t0}, {sT[0]}, {t0}")
SBv = V.alloc(8); CBv = V.alloc(8)
tl = [I(f"ds_read_b128 {SBv[0:4]}, {t0} offset:{CBL}"), I(f"ds_read_b128 {SBv[4:8]}, {t0} offset:{CBL+16}"),
      I(f"ds_read_b128 {CBv[0:4]}, {t0} offset:{CBL+64}"), I(f"ds_read_b128 {CBv[4:8]}, {t0} offset:{CBL+80}")]
ma2.free()
wf = V.alloc(32)
for e in range(8):
    for h in range(2):
        I(f"v_lshlrev_b32 {wf[4*e+2*h]}, 16, {WR[2*e+h]}")
        I(f"v_and_b32 {wf[4*e+2*h+1]}, 0xffff0000, {WR[2*e+h]}")
P.wait(tl)
c2 = V.alloc(4); c1 = V.alloc(4, 1)
for e in range(8):
    x = e & 1; pe = e & ~1
    for h in range(2):
        if e == 0:
            I(f"v_pk_mul_f32 {c2[2*h:2*h+2]}, {wf[4*e+2*h:4*e+2*h+2]}, {SBv[pe:pe+2]} op_sel:[0,{x}] op_sel_hi:[1,{x}]")
        else:
            I(f"v_pk_fma_f32 {c2[2*h:2*h+2]}, {wf[4*e+2*h:4*e+2*h+2]}, {SBv[pe:pe+2]}, {c2[2*h:2*h+2]} op_sel:[0,{x},0] op_sel_hi:[1,{x},1]")
        I(f"v_pk_mul_f32 {wf[4*e+2*h:4*e+2*h+2]}, {wf[4*e+2*h:4*e+2*h+2]}, {CBv[pe:pe+2]} op_sel:[0,{x}] op_sel_hi:[1,{x}]")
for j in range(4):
    for n in range(4):
        I(f"v_cvt_pk_bf16_f32 {WR[4*j+n]}, {wf[8*n+j]}, {wf[8*n+4+j]}")
sM = S.alloc()
I(f"s_and_b32 {sM}, {sGI}, 1")
I(f"s_mul_i32 {sT[0]}, {sCB}, 229376")
I(f"s_lshl_b32 {sT[1]}, {sM}, 9")
I(f"s_add_u32 {sT[0]}, {sT[0]}, {sT[1]}")
I(f"s_add_u32 {sT[0]}, {sT[0]}, {WP}")
I(f"s_lshl_b32 {sT[1]}, {sKS}, 12")
I(f"s_lshl_b32 {sT[2]}, {sKS}, 10")
I(f"v_lshrrev_b32 {t0}, 2, {vQ}")
I(f"v_lshlrev_b32 {t1}, 10, {t0}")
I(f"v_add_u32 {t1}, {sT[1]}, {t1}")
I(f"v_lshlrev_b32 {t2}, 15, {t0}")
I(f"v_add_u32 {t2}, {sT[2]}, {t2}")
I(f"v_cmp_gt_u32 vcc, 4, {t0}")
I(f"v_cndmask_b32 {t1}, {t2}, {t1}, vcc")
I(f"v_mov_b32 {t2}, {OOB}")
I(f"v_cmp_gt_u32 vcc, 7, {t0}")
I(f"v_cndmask_b32 {t1}, {t2}, {t1}, vcc")
I(f"v_xor_b32 {t2}, {sM}, {vHH}")
I(f"v_lshl_add_u32 {t1}, {t2}, 6, {t1}")
I(f"v_and_b32 {t2}, 3, {vQ}")
I(f"v_lshl_add_u32 {t1}, {t2}, 4, {t1}")
for j in range(4):
    I(f"buffer_store_dwordx4 {WR[4*j:4*j+4]}, {t1}, {rWS}, {sT[0]} offen offset:{128*j} sc1")
for n in range(4):
    for j in range(4):
        I(f"v_dot2_f32_bf16 {c1[j]}, {WR[4*j+n]}, {sONE}, {0 if n==0 else c1[j]}")
for j in range(4): I(f"v_permlane32_swap_b32 {c1[j]}, {c2[j]}")
for j in range(4): I(f"v_add_f32 {c1[j]}, {c1[j]}, {c2[j]}")
I(f"v_lshlrev_b32 {t0}, 6, {t0}")
I(f"v_lshl_add_u32 {t0}, {t2}, 2, {t0}")
I(f"v_lshl_add_u32 {t0}, {vHH}, 9, {t0}")
I(f"s_lshl_b32 {sT[0]}, {sWv}, 10")
I(f"v_add_u32 {t0}, {sT[0]}, {t0}")
for j in range(4): I(f"ds_write_b32 {t0}, {c1[j]} offset:{C12L+16*j}")
for r in (wf, c1, c2, SBv, CBv): r.free()
P.wait_all()
I("s_barrier")
post_flag(vF1, F3)
WR.free()
stamp("W' done")
twdl = load_wd(0, 28)
c4 = V.alloc(4, 1)
I(f"v_lshlrev_b32 {t0}, 2, v0")
tl = [I(f"ds_read_b32 {c4[w]}, {t0} offset:{C12L+1024*w}") for w in range(4)]
I(f"s_lshl_b32 {sT[0]}, {sCB}, 3")
I(f"s_add_u32 {sT[0]}, {sT[0]}, {sXJ}")
I(f"s_mul_i32 {sT[0]}, {sT[0]}, 1792")
I(f"s_lshl_b32 {sT[1]}, {sM}, 6")
I(f"s_add_u32 {sT[0]}, {sT[0]}, {sT[1]}")
I(f"s_add_u32 {sT[0]}, {sT[0]}, {C12}")
I(f"v_lshrrev_b32 {t0}, 7, v0")
I(f"v_mul_u32_u24 {t0}, 896, {t0}")
I(f"v_bfe_u32 {t1}, v0, 4, 3")
I(f"v_lshl_add_u32 {t0}, {t1}, 7, {t0}")
I(f"v_and_b32 {t2}, 15, v0")
I(f"v_lshl_add_u32 {t0}, {t2}, 2, {t0}")
I(f"v_mov_b32 {t2}, {OOB}")
I(f"v_cmp_gt_u32 vcc, 7, {t1}")
I(f"v_cndmask_b32 {t0}, {t2}, {t0}, vcc")
P.wait(tl)
I(f"v_add_f32 {c4[0]}, {c4[0]}, {c4[1]}")
I(f"v_add_f32 {c4[2]}, {c4[2]}, {c4[3]}")
I(f"v_add_f32 {c4[0]}, {c4[0]}, {c4[2]}")
I(f"buffer_store_dword {c4[0]}, {t0}, {rWS}, {sT[0]} offen sc1")

I(f"v_add_f32_dpp {mb}, {mb}, {mb} quad_perm:[1,0,3,2] row_mask:0xf bank_mask:0xf")
I(f"v_add_f32_dpp {mb}, {mb}, {mb} quad_perm:[2,3,0,1] row_mask:0xf bank_mask:0xf")
round_bf16(mb, mb)
I(f"v_add_f32 {t0}, 1.0, {mb}")
round_bf16(t0, t0)
PQ = V.alloc(4, 1)
for c in range(2):
    I(f"v_readlane_b32 {sT[0]}, {mb}, {4*c}")
    I(f"v_readlane_b32 {sT[1]}, {t0}, {8+4*c}")
    I(f"v_readlane_b32 {sT[2]}, {mb}, {16+4*c}")
    I(f"v_mov_b32 {t1}, {sT[2]}")
    I(f"v_mul_f32 {PQ[2*c]}, {sT[1]}, {t1}")
    I(f"v_mul_f32 {PQ[2*c+1]}, {sT[0]}, {t1}")
mb.free()
sDf = [S.alloc(), S.alloc()]
I(f"s_lshl_b32 {sDf[0]}, {sD}, 16")
I(f"s_and_b32 {sDf[1]}, {sD}, 0xffff0000")
KVr = V.alloc(8)
I(f"v_sub_u32 {t0}, 4080, {vT16}")
tl = [I(f"ds_read_b128 {KVr[4*c:4*c+4]}, {t0} offset:{UB+c*UCH}") for c in range(2)]
HG = V.alloc(16, 1); BS = V.alloc(16, 1)
P.wait(tl)
for c in range(2):
    for e in range(8):
        xs = XTr[4*c + (e>>1)]; ks_ = KVr[4*c + ((7-e)>>1)]
        hg = HG[8*c+e]; bs = BS[8*c+e]
        I(f"v_lshlrev_b32 {bs}, 16, {xs}" if e%2==0 else f"v_and_b32 {bs}, 0xffff0000, {xs}")
        I(f"v_lshlrev_b32 {t1}, 16, {ks_}" if (7-e)%2==0 else f"v_and_b32 {t1}, 0xffff0000, {ks_}")
        I(f"v_fma_f32 {hg}, {bs}, {STr[2*e]}, {STr[2*e+1]}")
        I(f"v_mul_f32 {t1}, {sDf[c]}, {t1}")
        I(f"v_fma_f32 {hg}, {hg}, {PQ[2*c]}, {PQ[2*c+1]}")
        I(f"v_fmac_f32 {bs}, {hg}, {t1}")
for r in (KVr, STr, XTr, PQ, c4): r.free()
stamp("pre done")

vAa = V.alloc(); vBa = V.alloc()
I(f"s_lshr_b32 {sT[0]}, {sWv}, 1")
I(f"s_and_b32 {sT[1]}, {sWv}, 1")
I(f"s_lshl_b32 {sT[1]}, {sT[1]}, 8")
I(f"s_mul_i32 {sT[2]}, {sT[0]}, {TCH}")
I(f"s_add_u32 {sT[2]}, {sT[2]}, {sT[1]}")
I(f"s_mul_i32 {sT[3]}, {sT[0]}, {UCH}")
I(f"s_add_u32 {sT[3]}, {sT[3]}, {sT[1]}")
I(f"s_add_u32 {sT[3]}, {sT[3]}, {UB+480}")
I(f"v_and_b32 {t0}, 7, {vL}")
I(f"v_mul_u32_u24 {vAa}, {TCOPY}, {t0}")
I(f"v_bfe_u32 {t0}, {vL}, 3, 1")
I(f"v_lshrrev_b32 {t1}, 4, {vL}")
I(f"v_add_u32 {t0}, {t0}, {t1}")
I(f"v_lshl_add_u32 {vAa}, {t0}, 4, {vAa}")
I(f"v_add_u32 {vAa}, {sT[2]}, {vAa}")
I(f"v_and_b32 {t0}, 15, {vL}")
I(f"v_lshlrev_b32 {t2}, 5, {t0}")
I(f"v_lshlrev_b32 {vBa}, 4, {t1}")
I(f"v_sub_u32 {vBa}, {vBa}, {t2}")
I(f"v_add_u32 {vBa}, {sT[3]}, {vBa}")
vRW = V.alloc()
I(f"v_and_b32 {vRW}, 1, {t1}")
I(f"v_lshlrev_b32 {vRW}, 12, {vRW}")
I(f"v_add_u32 {vRW}, {vRW}, {t2}")
I(f"v_lshrrev_b32 {t1}, 1, {t1}")
I(f"v_lshl_add_u32 {vRW}, {t1}, 4, {vRW}")
I(f"s_lshl_b32 {sT[0]}, {sWv}, 13")
I(f"s_add_u32 {sT[0]}, {sT[0]}, {RED}")
I(f"v_add_u32 {vRW}, {sT[0]}, {vRW}")
D = Frags(8)
FA = [Frags(8), Frags(8)]; FB = [Frags(8), Frags(8)]
def conv_reads(n):
    b = n & 1; out = []
    for t in range(8):
        out.append(lambda t=t: I(f"ds_read_b128 {FA[b][4*t:4*t+4]}, {vAa} offset:{TAPS + 64*n + 512*t}"))
        out.append(lambda t=t: I(f"ds_read_b128 {FB[b][4*t:4*t+4]}, {vBa} offset:{512*(7-t) + 64*n}"))
    return out
ctok = {}
rd = conv_reads(0)
ctok[0] = [f() for f in rd]
for n in range(4):
    b = n & 1
    nxt = conv_reads(n+1) if n < 3 else []
    ctok[n+1] = []
    pairs = sorted([(t, jj) for t in range(8) for jj in range(8-t)], key=lambda p: (max(p), p))
    seen = set()
    for i, (t, jj) in enumerate(pairs):
        P.wait(ctok[n][2*t], ctok[n][2*jj+1])
        j = t + jj
        first = (n == 0 and j not in seen); seen.add(j)
        I(f"v_mfma_f32_16x16x32_bf16 {D[4*j:4*j+4]}, {FA[b][4*t:4*t+4]}, {FB[b][4*jj:4*jj+4]}, {0 if first else D[4*j:4*j+4]}")
        if nxt and i >= 2 and i % 2 == 0: ctok[n+1].append(nxt.pop(0)())
    while nxt: ctok[n+1].append(nxt.pop(0)())
for j in range(8): I(f"ds_write_b128 {vRW}, {D[4*j:4*j+4]} offset:{512*j}")
for r in FA + FB + [vAa, vBa, vRW]: r.free()
P.wait_all(vm=False)
I("s_barrier")
stamp("conv done")
D.free()
Y = Frags(8)
I(f"v_add_u32 {t0}, {RED}, {vT16}")
tl = []
for c in range(2):
    for kh in range(2):
        for h in range(2):
            tl.append(I(f"ds_read_b128 {Y[16*c+8*kh+4*h:16*c+8*kh+4*h+4]}, {t0} offset:{(2*c+kh)*8192 + 4096*h}"))
xo = V.alloc(8)
I(f"v_lshrrev_b32 {t1}, 2, v0")
I(f"v_lshlrev_b32 {t1}, 15, {t1}")
I(f"v_and_b32 {t2}, 3, v0")
I(f"v_lshl_add_u32 {t1}, {t2}, 4, {t1}")
I(f"s_lshl_b32 {sT[0]}, {sD0}, 6")
I(f"s_add_u32 {sT[0]}, {sT[0]}, {X1T}")
for c in range(2):
    P.wait(tl[4*c:4*c+4])
    for e in range(8): I(f"v_add_f32 {Y[16*c+e]}, {Y[16*c+e]}, {Y[16*c+8+e]}")
    for e in range(8): I(f"v_fmac_f32 {BS[8*c+e]}, {HG[8*c+e]}, {Y[16*c+e]}")
    for n in range(4): I(f"v_cvt_pk_bf16_f32 {xo[4*c+n]}, {BS[8*c+2*n]}, {BS[8*c+2*n+1]}")
    I(f"buffer_store_dwordx4 {xo[4*c:4*c+4]}, {t1}, {rWS}, {sT[0]} offen offset:{64*c} sc1")
for r in (Y, HG, BS): r.free()
P.wait_all()
I("s_barrier")
post_flag(vF8, F4)
xo.free()
stamp("F4 posted")

sRB = S.alloc(); sC1 = S.alloc()
I(f"s_and_b32 {sRB}, {sXJ}, 1")
I(f"s_lshl_b32 {sRB}, {sRB}, 3")
I(f"s_lshr_b32 {sT[0]}, {sGI}, 2")
I(f"s_add_u32 {sRB}, {sRB}, {sT[0]}")
I(f"s_lshr_b32 {sC1}, {sXJ}, 1")
I(f"s_lshl_b32 {sC1}, {sC1}, 2")
I(f"s_and_b32 {sT[0]}, {sGI}, 3")
I(f"s_add_u32 {sC1}, {sC1}, {sT[0]}")
I(f"v_bfe_u32 {t0}, {vL}, 1, 3")
I(f"v_lshlrev_b32 {t0}, 5, {t0}")
I(f"v_and_b32 {t1}, 1, {vL}")
I(f"v_add_u32 {t0}, {t0}, {t1}")
I(f"s_lshl_b32 {sT[0]}, {sC1}, 1")
I(f"v_add_u32 {t0}, {sT[0]}, {t0}")
I(f"v_lshlrev_b32 {vPG}, {FSH}, {t0}")
poll(vPG, F3)
sWsrc = S.alloc(); sWdst = S.alloc()
I(f"s_mul_i32 {sWsrc}, {sC1}, 229376")
I(f"s_lshl_b32 {sWdst}, {sWv}, 12")
I(f"s_add_u32 {sWsrc}, {sWsrc}, {sWdst}")
I(f"s_add_u32 {sWsrc}, {sWsrc}, {WP}")
def w_dma(src_off, dst_off):
    I(f"s_add_u32 {sT[0]}, {sWsrc}, {src_off}")
    I(f"s_add_u32 m0, {sWdst}, {WL + dst_off}")
    return [I(f"buffer_load_dwordx4 {vL16}, {rWS}, {sT[0]} offen offset:{1024*n} sc1 lds") for n in range(4)]
for i in range(8): w_dma(16384*i, 16384*i)
poll(vPA, F4)
I("s_barrier")
stamp("F4 seen")
I(f"s_cmp_eq_u32 s2, 0")
I(f"s_cselect_b32 {sT[0]}, {EPOCH}, {OOB}")
I(f"v_or_b32 {t0}, {sT[0]}, {vF1}")
I(f"buffer_store_dword {vTag}, {t0}, {rWS}, 0 offen sc1")
sXsrc = S.alloc(); sXdst = S.alloc(); sSB = S.alloc()
I(f"s_lshl_b32 {sSB}, {sRB}, 2")
I(f"s_add_u32 {sSB}, {sSB}, {sWv}")
I(f"s_lshl_b32 {sXsrc}, {sSB}, 15")
I(f"s_add_u32 {sXsrc}, {sXsrc}, {X1T}")
I(f"s_mul_i32 {sXdst}, {sWv}, {XSW}")
I(f"s_add_u32 {sXdst}, {sXdst}, {XS}")
xt = {}
def x_dma(ks):
    I(f"s_add_u32 {sT[1]}, {sXsrc}, {1024*ks}")
    I(f"s_add_u32 m0, {sXdst}, {1024*(ks%7)}")
    xt[ks] = I(f"buffer_load_dwordx4 {vL16}, {rWS}, {sT[1]} offen sc1 lds")
for ks in range(7): x_dma(ks)
c8 = V.alloc(16)
I(f"s_mul_i32 {sT[0]}, {sC1}, {8*1792}")
I(f"s_add_u32 {sT[0]}, {sT[0]}, {C12}")
I(f"v_lshlrev_b32 {t2}, 3, v0")
tcc = []
for g in range(8):
    if g and g % 2 == 0: I(f"s_add_u32 {sT[0]}, {sT[0]}, 3584")
    tcc.append(I(f"buffer_load_dwordx2 {c8[2*g:2*g+2]}, {t2}, {rWS}, {sT[0]} offen offset:{(g&1)*1792} sc1"))
vAd = V.alloc(); vAd2 = V.alloc(); vTr = V.alloc(); vCT = V.alloc()
I(f"v_bfe_u32 {t0}, {vL}, 2, 3")
I(f"v_lshlrev_b32 {vAd}, 7, {t0}")
I(f"v_bfe_u32 {t0}, {vL}, 4, 1")
I(f"v_xor_b32 {t0}, {t0}, {vHH}")
I(f"v_lshl_add_u32 {vAd}, {t0}, 6, {vAd}")
I(f"v_and_b32 {t0}, 3, {vL}")
I(f"v_lshl_add_u32 {vAd}, {t0}, 4, {vAd}")
I(f"v_add_u32 {vAd2}, 65536, {vAd}")
I(f"v_lshlrev_b32 {vTr}, 3, {t0}")
I(f"v_bfe_u32 {t0}, {vL}, 4, 1")
I(f"v_lshl_add_u32 {vTr}, {t0}, 5, {vTr}")
I(f"v_bfe_u32 {t0}, {vL}, 2, 2")
I(f"v_lshl_add_u32 {vTr}, {t0}, 6, {vTr}")
vTr0 = V.alloc()
I(f"v_mov_b32 {vTr0}, {vTr}")
I(f"v_lshl_add_u32 {vTr}, {vHH}, 9, {vTr}")
I(f"v_add_u32 {vTr}, {sXdst}, {vTr}")
I(f"v_lshlrev_b32 {vCT}, 4, {vHH}")
I(f"v_add_u32 {vCT}, {CT}, {vCT}")
P.wait(tcc)
for st in (4, 2, 1):
    for g in range(st):
        I(f"v_pk_add_f32 {c8[2*g:2*g+2]}, {c8[2*g:2*g+2]}, {c8[2*(g+st):2*(g+st)+2]}")
I(f"v_min_u32 {t2}, 2040, {t2}")
I(f"v_add_u32 {t2}, {CT}, {t2}")
I(f"ds_write_b64 {t2}, {c8[0:2]}")
c8.free()
Bf = Frags(32)
AR = A.reserve(224, 32)
ACC = [V.alloc(16) for _ in range(5)]
vSum = V.alloc(); vSq = V.alloc()
def a_read(slot, off):
    if off < 65536: return I(f"ds_read_b128 {AR[4*slot:4*slot+4]}, {vAd} offset:{off}")
    return I(f"ds_read_b128 {AR[4*slot:4*slot+4]}, {vAd2} offset:{off-65536}")
def b_read(ks):
    P.wait(xt[ks])
    o = 1024*(ks % 7)
    return [I(f"ds_read_b64_tr_b16 {Bf[4*ks:4*ks+2]}, {vTr} offset:{o}"),
            I(f"ds_read_b64_tr_b16 {Bf[4*ks+2:4*ks+4]}, {vTr} offset:{o+256}")]
jobs = [(it, ks, (ks*4+it)*1024) for ks in range(32) for it in range(4)]
jobs += [(it, ks, (it-4)*32768 + ks*1024) for it in range(4, 7) for ks in range(32)]
accmap = {0:0, 1:1, 2:2, 3:3, 4:4, 5:0, 6:1}
LOOK = 6
atok = {}; btok = {}
btok[0] = b_read(0)
for n in range(LOOK): atok[n] = a_read(n % 8, jobs[n][2])
side = []
vRS = V.alloc(); vNM = V.alloc()
vHS = V.alloc()
sHS = S.alloc()
I(f"s_mul_i32 {sHS}, {sSB}, 112")
I(f"s_mul_i32 {sT[0]}, {sC1}, 7")
I(f"s_add_u32 {sHS}, {sHS}, {sT[0]}")
I(f"s_lshl_b32 {sHS}, {sHS}, 10")
I(f"s_add_u32 {sHS}, {sHS}, {HH}")
I(f"v_add_u32 {vHS}, 4096, {vL16}")
cT = V.alloc(8); hp = V.alloc(4)
hst = {}
def epilogue(it):
    ac = ACC[accmap[it]]; ops = []; tk = {}
    for g in range(4):
        def rd(g=g):
            tk[g] = [I(f"ds_read_b128 {cT[0:4]}, {vCT} offset:{it*128 + g*32}"),
                     I(f"ds_read_b128 {cT[4:8]}, {vCT} offset:{896 + it*128 + g*32}")]
        ops.append(rd)
        ops.append(None); ops.append(None); ops.append(None)
        for r in range(4):
            def f1(g=g, r=r):
                if r == 0: P.wait(tk[g])
                I(f"v_fmac_f32 {ac[4*g+r]}, {vNM}, {cT[r]}")
            ops.append(f1)
        for r in range(4):
            ops.append(lambda g=g, r=r: I(f"v_fma_f32 {ac[4*g+r]}, {ac[4*g+r]}, {vRS}, {cT[4+r]}"))
    for r in range(8): ops.append(lambda r=r: I(f"v_mul_f32 {ac[r]}, {ac[r]}, {ac[8+r]}"))
    for n in range(4): ops.append(lambda n=n: I(f"v_cvt_pk_bf16_f32 {hp[n]}, {ac[2*n]}, {ac[2*n+1]}"))
    def st():
        hst[it] = I(f"buffer_store_dwordx4 {hp}, {vL16 if it < 4 else vHS}, {rWS}, {sHS} offen offset:{1024*(it&3)} sc1")
    ops.append(st)
    return ops
vF5 = V.alloc()
I(f"s_lshl_b32 {sT[0]}, {sSB}, 4")
I(f"s_add_u32 {sT[0]}, {sT[0]}, {sC1}")
I(f"s_lshl_b32 {sT[0]}, {sT[0]}, {FSH}")
I(f"v_mov_b32 {vF5}, {sT[0]}")
I(f"v_mov_b32 {t1}, {OOB}")
I(f"v_cmp_eq_u32 vcc, 0, {vL}")
I(f"v_cndmask_b32 {vF5}, {t1}, {vF5}, vcc")
wtok = {}
for n, (it, ks, off) in enumerate(jobs):
    if it == 0 and ks in (8, 16, 24):
        P.wait(atok[n])
        I("s_barrier")
        tt = ks//8 - 1
        wtok[tt] = w_dma(131072 + tt*32768, tt*32768) + w_dma(131072 + tt*32768 + 16384, tt*32768 + 16384)
    if n == 128 + 16:
        P.wait(wtok[2]); I("s_barrier")
    P.wait(atok[n], btok[ks])
    ac = ACC[accmap[it]]
    I(f"v_mfma_f32_32x32x16_bf16 {ac}, {AR[4*(n%8):4*(n%8)+4]}, {Bf[4*ks:4*ks+4]}, {0 if ks==0 else ac}")
    if n + LOOK < len(jobs): atok[n+LOOK] = a_read((n+LOOK) % 8, jobs[n+LOOK][2])
    if it < 4:
        if it == 0 and ks+1 < 32: btok[ks+1] = b_read(ks+1)
        if it == 1 and ks+7 < 32: x_dma(ks+7)
        if it >= 2:
            for r in (2*(it-2), 2*(it-2)+1):
                z = (ks == 0 and r == 0)
                I(f"v_dot2_f32_bf16 {vSum}, {Bf[4*ks+r]}, {sONE}, {0 if z else vSum}")
                I(f"v_dot2_f32_bf16 {vSq}, {Bf[4*ks+r]}, {Bf[4*ks+r]}, {0 if z else vSq}")
    if n == 128:
        I(f"v_mov_b32 {t0}, {vSum}")
        I(f"v_mov_b32 {t1}, {vSq}")
        I(f"v_permlane32_swap_b32 {vSum}, {t0}")
        I(f"v_permlane32_swap_b32 {vSq}, {t1}")
        I(f"v_add_f32 {vSum}, {vSum}, {t0}")
        I(f"v_add_f32 {vSq}, {vSq}, {t1}")
        finish_stats(vSum, vSq, vRS, vNM, t0)
        for e in range(4): side += epilogue(e)
    if n == 161: side += epilogue(4)
    if n == 193: side += epilogue(5)
    if n > 128:
        k = 0
        while side and k < 4:
            f = side.pop(0); k += 1
            if f: f()
    if n == 159: assert 0 in hst, "tile0 epilogue not done"
    if n == 191: assert 1 in hst
while side:
    f = side.pop(0)
    if f: f()
for f in epilogue(6):
    if f: f()
stamp("gemm1 done")
P.wait_all()
post_flag(vF5, F5)
for r in ACC + [Bf, vSum, vSq, vRS, vNM, vHS, cT, hp, vAd, vAd2, vTr, vCT, vF5]: r.free()

sSQ = S.alloc(); sDQ = S.alloc()
I(f"s_lshr_b32 {sT[0]}, {sWv}, 1")
I(f"s_lshl_b32 {sSQ}, {sR64}, 1")
I(f"s_add_u32 {sSQ}, {sSQ}, {sT[0]}")
I(f"s_and_b32 {sT[0]}, {sWv}, 1")
I(f"s_lshl_b32 {sT[0]}, {sT[0]}, 5")
I(f"s_lshl_b32 {sDQ}, {sDB}, 6")
I(f"s_add_u32 {sDQ}, {sDQ}, {sT[0]}")
I(f"s_lshl_b32 {sT[0]}, {sSQ}, 15")
I(f"s_lshl_b32 {sT[1]}, {sDQ}, 6")
I(f"s_add_u32 {sT[0]}, {sT[0]}, {sT[1]}")
I(f"s_add_u32 {sT[0]}, {sT[0]}, {X1T}")
I(f"s_mov_b32 m0, {sXdst}")
for n in range(2): I(f"buffer_load_dwordx4 {vL16}, {rWS}, {sT[0]} offen offset:{1024*n} sc1 lds")
gb2 = V.alloc(2, 1)
I(f"v_lshlrev_b32 {t0}, 2, {vQ}")
I(f"v_lshl_add_u32 {t1}, {vHH}, 12, {t0}")
I(f"s_lshl_b32 {sT[0]}, {sDQ}, 2")
I(f"s_add_u32 {sT[0]}, {sT[0]}, {MODP + 5*8192}")
for n in range(2): I(f"buffer_load_dword {gb2[n]}, {t1}, {rWS}, {sT[0]} offen offset:{2048*n} sc1")
I(f"v_and_b32 {t1}, 1, {vL}")
I(f"v_lshlrev_b32 {t1}, 4, {t1}")
I(f"v_bfe_u32 {t2}, {vL}, 1, 2")
I(f"v_add_u32 {t1}, {t1}, {t2}")
I(f"s_lshl_b32 {sT[0]}, {sR64}, 5")
I(f"s_lshl_b32 {sT[1]}, {sWv}, 2")
I(f"s_add_u32 {sT[0]}, {sT[0]}, {sT[1]}")
I(f"v_add_u32 {t1}, {sT[0]}, {t1}")
I(f"v_lshlrev_b32 {vPG}, {FSH}, {t1}")
poll(vPG, F5)
stamp("F5 seen")
I(f"v_add_f32 {gb2[0]}, {gb2[0]}, {gb2[1]}")
I(f"v_mov_b32 {gb2[1]}, {gb2[0]}")
I(f"v_permlane32_swap_b32 {gb2[0]}, {gb2[1]}")
I(f"v_add_f32 {gb2[0]}, {gb2[0]}, {gb2[1]}")
round_bf16(gb2[0], gb2[0])
I(f"v_add_u32 {t0}, {sXdst}, {t0}")
I(f"ds_write_b32 {t0}, {gb2[0]} offset:2048")
gb2.free()
sH0 = S.alloc(); sH1 = S.alloc()
I(f"s_mul_i32 {sT[1]}, {sWv}, 28")
I(f"s_mul_i32 {sH0}, {sSQ}, 112")
I(f"s_add_u32 {sH0}, {sH0}, {sT[1]}")
I(f"s_lshl_b32 {sH0}, {sH0}, 10")
I(f"s_add_u32 {sH0}, {sH0}, {HH}")
I(f"s_xor_b32 {sT[0]}, {sSQ}, 1")
I(f"s_mul_i32 {sH1}, {sT[0]}, 112")
I(f"s_add_u32 {sH1}, {sH1}, {sT[1]}")
I(f"s_lshl_b32 {sH1}, {sH1}, 10")
I(f"s_add_u32 {sH1}, {sH1}, {HH}")
G = [V.alloc(16) for _ in range(4)]
NB = 20
HB = Frags(2*NB)
ht = {}
def h_load(n):
    if n and n % 4 == 0:
        I(f"s_add_u32 {sH0}, {sH0}, 4096"); I(f"s_add_u32 {sH1}, {sH1}, 4096")
    s_ = n % NB
    ht[n] = [I(f"buffer_load_dwordx4 {HB[8*s_:8*s_+4]}, {vL16}, {rWS}, {sH0} offen offset:{1024*(n&3)} sc1"),
             I(f"buffer_load_dwordx4 {HB[8*s_+4:8*s_+8]}, {vL16}, {rWS}, {sH1} offen offset:{1024*(n&3)} sc1")]
for n in range(NB): h_load(n)
P.wait(twdl)
for n in range(28):
    s_ = n % NB
    for q in range(4):
        dt, st = q & 1, q >> 1
        P.wait(ht[n][st])
        I(f"v_mfma_f32_32x32x16_bf16 {G[q]}, {AWD[8*n+4*dt:8*n+4*dt+4]}, {HB[8*s_+4*st:8*s_+4*st+4]}, {0 if n==0 else G[q]}")
    if n + NB < 28: h_load(n + NB)
HB.free()
stamp("gemm2 mfma done")
I("s_barrier")
for q in range(1, 4):
    I(f"s_xor_b32 {sT[0]}, {sWv}, {q}")
    I(f"s_mul_i32 {sT[0]}, {sT[0]}, 12288")
    I(f"v_add_u32 {t0}, {sT[0]}, {vL16}")
    for r in range(4):
        I(f"ds_write_b128 {t0}, {G[q][4*r:4*r+4]} offset:{(q-1)*4096 + r*1024}")
XQ = V.alloc(8); GB = V.alloc(16)
I(f"v_lshl_add_u32 {t1}, {vHH}, 10, {vTr0}")
I(f"v_add_u32 {t1}, {sXdst}, {t1}")
for n in range(4): I(f"ds_read_b64_tr_b16 {XQ[2*n:2*n+2]}, {t1} offset:{256*n}")
I(f"v_lshlrev_b32 {t1}, 6, {vHH}")
I(f"v_add_u32 {t1}, {sXdst}, {t1}")
for n in range(4): I(f"ds_read_b128 {GB[4*n:4*n+4]}, {t1} offset:{2048+16*n}")
P.wait_all(vm=False)
I("s_barrier")
I(f"s_mul_i32 {sT[0]}, {sWv}, 12288")
I(f"v_add_u32 {t0}, {sT[0]}, {vL16}")
tl = {}
for q in range(1, 4):
    tl[q] = [I(f"ds_read_b128 {G[q][4*r:4*r+4]}, {t0} offset:{(q-1)*4096 + r*1024}") for r in range(4)]
I(f"s_lshl_b32 {sT[0]}, {sSQ}, 15")
I(f"s_lshl_b32 {sT[1]}, {sDQ}, 1")
I(f"s_add_u32 {sT[0]}, {sT[0]}, {sT[1]}")
I(f"v_lshlrev_b32 {t1}, 10, {vQ}")
I(f"v_lshl_add_u32 {t1}, {vHH}, 5, {t1}")
for q in range(1, 4):
    P.wait(tl[q])
    for r in range(0, 16, 2):
        I(f"v_pk_add_f32 {G[0][r:r+2]}, {G[0][r:r+2]}, {G[q][r:r+2]}")
OUTr = V.alloc(8)
for rho in range(8):
    I(f"v_lshlrev_b32 {G[1][0]}, 16, {XQ[rho]}")
    I(f"v_and_b32 {G[1][1]}, 0xffff0000, {XQ[rho]}")
    I(f"v_fmac_f32 {G[1][0]}, {G[0][rho]}, {GB[2*rho]}")
    I(f"v_fmac_f32 {G[1][1]}, {G[0][rho+8]}, {GB[2*rho+1]}")
    I(f"v_cvt_pk_bf16_f32 {OUTr[rho]}, {G[1][0]}, {G[1][1]}")
I(f"buffer_store_dwordx4 {OUTr[0:4]}, {t1}, {rOUT}, {sT[0]} offen")
I(f"buffer_store_dwordx4 {OUTr[4:8]}, {t1}, {rOUT}, {sT[0]} offen offset:16")
stamp("end")
I("L_end:")
I("s_endpgm")

body = P.finalize()
ref = open(f"cdna_kernels/{NAME}.s.ref").read()
hdr = "".join(l + "\n" for l in ref.split("\n") if l.startswith(";") and "@launch" not in l)
out = hdr + f"; @launch grid=(256,1,1) block=(256,1,1) lds={LDS_SIZE}\n"
out += f"""; generated by gen1.py
.amdgcn_target "amdgcn-amd-amdhsa--gfx950"
.text
.globl {NAME}_kernel
.p2align 8
.type {NAME}_kernel,@function
{NAME}_kernel:
{body}
.section .rodata,"a"
.p2align 6
.amdhsa_kernel {NAME}_kernel
  .amdhsa_next_free_vgpr 512
  .amdhsa_next_free_sgpr 102
  .amdhsa_accum_offset 256
  .amdhsa_group_segment_fixed_size 0
  .amdhsa_kernarg_size 120
  .amdhsa_user_sgpr_count 2
  .amdhsa_user_sgpr_kernarg_segment_ptr 1
  .amdhsa_system_sgpr_workgroup_id_x 1
.end_amdhsa_kernel
"""
dst = [a for a in sys.argv[1:] if not a.startswith('--')][0]
open(dst, "w").write(out)
print(f"instrs {len(P.ins)} nops {P.nops} vgpr hi {V.hi} sgpr hi {S.hi}", file=sys.stderr)
```

```python
import sys
from dsl import *

NAME = "adaLN_cond__ssm_conv_h3__glu_gated_bilinear__prompt"
TSTAMP = '--ts' in sys.argv
PROBE = None
for a_ in sys.argv:
    if a_.startswith('--probe='): PROBE = tuple(int(x) for x in a_[8:].split(','))

EPOCH=0; F1=0x10000; F3=0x18000; F2=0x20000; F4=0x40000; F5=0x60000
MODP=0x90000; ST1=0xA0000; C12=0xB0000
KVT=0x100000; XT=0x300000; X1T=0x500000; WP=0x700000; WDP=0xB00000; HH=0xD00000; TS=0x1400000
WS_SIZE=0x1500000
OOB=0x80000000
FSH=6

TAPS=15360; TCOPY=4160; TCH=33280
UB=0; UCH=4608
MODL=9216
CBL=10240
C12L=11264
RED=131072
WL=0; XS=131072; XSW=7168; CT=159744
LDS_SIZE=163840

P = Prog(); I = P.I; V = P.V; A = P.A; S = P.S
S.reserve(0, 3)
v0 = V.reserve(0, 1)
def srd(): return S.alloc(4, 4)
rX, rK, rV, rSH, rTP, rW, rWD, rC, rWM, rOUT, rWS = [srd() for _ in range(11)]
sPG = S.alloc(2, 2); sPU = S.alloc(2, 2); sPD = S.alloc(2, 2)
sXJ = S.alloc(); sGI = S.alloc(); sWv = S.alloc(); sSpin = S.alloc()
sT = [S.alloc() for _ in range(8)]
sC4096 = S.alloc(); sC8192 = S.alloc(); sC12288 = S.alloc()
sPL = S.alloc(); sPH = S.alloc()
sD = S.alloc(); sD0 = S.alloc()
sTs = S.alloc(2, 2); sT0 = S.alloc(2, 2)

class Frags:
    def __init__(self, n): self.g = [V.alloc(4) for _ in range(n)]
    def __getitem__(self, i):
        if isinstance(i, slice):
            assert i.start//4 == (i.stop-1)//4
            return self.g[i.start//4][i.start%4:(i.stop-1)%4+1]
        return self.g[i//4][i%4]
    def free(self):
        for g in self.g: g.free()
nts = [0]
def stamp(name=""):
    if PROBE:
        if nts[0] == PROBE[0]: I(f"s_memrealtime {sT0}"); I("s_waitcnt lgkmcnt(0)"); P.lg_done = P.lg
        if nts[0] == PROBE[1]: I(f"s_memrealtime {sTs}"); I("s_waitcnt lgkmcnt(0)"); P.lg_done = P.lg
        nts[0] += 1
        return
    if not TSTAMP: return
    I(f"s_memtime {sTs}")
    I("s_waitcnt lgkmcnt(0)"); P.lg_done = P.lg
    I(f"s_sub_u32 {sTs[0]}, {sTs[0]}, {sT0[0]}")
    I(f"v_mov_b32 {vTsV}, {sTs[0]}")
    I(f"buffer_store_dword {vTsV}, {vTsA}, {rWS}, 0 offen offset:{4*nts[0]}")
    print(f"; ts slot {nts[0]} = {name}", file=sys.stderr)
    nts[0] += 1

I("s_cmp_ge_u32 s2, 256")
I("s_cbranch_scc1 L_end")
if PROBE and PROBE[0] == -1: I(f"s_memrealtime {sT0}")
if TSTAMP:
    I(f"s_memtime {sT0}")
    sR0 = S.alloc(2, 2)
    I(f"s_memrealtime {sR0}")
for r, off in ((rK,8),(rV,16),(rSH,24),(rWS,112),(rC,80),(rWM,88),(rX,0),(rTP,32),(rWD,72),(rOUT,96)):
    I(f"s_load_dwordx2 {r[0:2]}, s[0:1], {off}")
I(f"s_load_dwordx2 {sPG}, s[0:1], 56")
I(f"s_load_dwordx2 {sPU}, s[0:1], 64")
I(f"s_load_dwordx2 {sPD}, s[0:1], 40")
for r, n in ((rK,2097152),(rV,2097152),(rSH,4096),(rWS,WS_SIZE),(rC,1024),(rWM,3145728),(rX,2097152),(rTP,2097152),(rWD,1835008),(rOUT,2097152),(rW,1835008)):
    I(f"s_mov_b32 {r[2]}, {n}")
    I(f"s_mov_b32 {r[3]}, 0x20000")
vL = V.alloc(); vL16 = V.alloc(); vTag = V.alloc()
if TSTAMP: vTsV = V.alloc(); vTsA = V.alloc()
t0 = V.alloc(); t1 = V.alloc(); t2 = V.alloc()
I(f"s_and_b32 {sXJ}, s2, 7")
I(f"s_lshr_b32 {sGI}, s2, 3")
I(f"v_lshrrev_b32 {t0}, 6, v0")
I(f"v_and_b32 {vL}, 63, v0")
I(f"v_readfirstlane_b32 {sWv}, {t0}")
I(f"v_lshlrev_b32 {vL16}, 4, {vL}")
I(f"s_mov_b32 {sSpin}, 0")
I(f"s_movk_i32 {sC4096}, 0x1000")
I(f"s_movk_i32 {sC8192}, 0x2000")
I(f"s_movk_i32 {sC12288}, 0x3000")
I(f"s_mov_b32 {sPL}, 0x05040100")
I(f"s_mov_b32 {sPH}, 0x07060302")
vB = V.alloc(); vH = V.alloc()
I(f"s_lshl_b32 {sT[0]}, {sGI}, 16")
I(f"s_lshl_b32 {sT[1]}, {sXJ}, 7")
I(f"s_lshl_b32 {sT[2]}, {sWv}, 5")
I(f"s_add_u32 {sT[1]}, {sT[1]}, {sT[2]}")
I(f"s_add_u32 {sT[0]}, {sT[0]}, {sT[1]}")
I(f"v_lshrrev_b32 {t0}, 3, {vL}")
I(f"v_and_b32 {t1}, 7, {vL}")
I(f"v_lshlrev_b32 {vB}, 13, {t0}")
I(f"v_lshl_add_u32 {vB}, {t1}, 2, {vB}")
I(f"v_add_u32 {vB}, {sT[0]}, {vB}")
I(f"v_subrev_u32 {vH}, 3072, {vB}")
vSH = V.alloc()
I(f"s_lshl_b32 {sT[2]}, {sT[1]}, 2")
I(f"v_lshlrev_b32 {vSH}, 4, {t1}")
I(f"v_add_u32 {vSH}, {sT[2]}, {vSH}")
vKS = V.alloc(); vXS = V.alloc()
I(f"s_lshl_b32 {sT[2]}, {sT[1]}, 11")
I(f"s_lshl_b32 {sT[3]}, {sGI}, 7")
I(f"v_lshlrev_b32 {vXS}, 13, {t1}")
I(f"v_add_u32 {vXS}, {sT[2]}, {vXS}")
I(f"v_lshlrev_b32 {t2}, 4, {t0}")
I(f"v_add_u32 {t2}, {sT[3]}, {t2}")
I(f"v_sub_u32 {vKS}, {vXS}, {t2}")
I(f"v_add_u32 {vKS}, {KVT+4080}, {vKS}")
I(f"v_add_u32 {vXS}, {vXS}, {t2}")
I(f"v_add_u32 {vXS}, {XT}, {vXS}")
I("s_waitcnt lgkmcnt(0)")
Kr = V.alloc(11, 1); Vr = V.alloc(8, 1); SHr = V.alloc(4); Xr = V.alloc(8, 1)
NT = ""
tk = []
for e in range(3): tk.append(I(f"buffer_load_dword {Kr[e]}, {vH}, {rK}, 0 offen offset:{e*1024} {NT}"))
for e in range(8): tk.append(I(f"buffer_load_dword {Kr[3+e]}, {vB}, {rK}, {sC4096 if e>=4 else 0} offen offset:{(e&3)*1024} {NT}"))
tsh = I(f"buffer_load_dwordx4 {SHr}, {vSH}, {rSH}, 0 offen")
tv = [I(f"buffer_load_dword {Vr[e]}, {vB}, {rV}, {sC4096 if e>=4 else 0} offen offset:{(e&3)*1024} {NT}") for e in range(8)]
I(f"v_mov_b32 {t2}, {EPOCH}")
tep = I(f"buffer_load_dword {vTag}, {t2}, {rWS}, 0 offen sc1")
if TSTAMP:
    I(f"s_lshl_b32 {sT[4]}, s2, 8")
    I(f"s_add_u32 {sT[4]}, {sT[4]}, {TS}")
    I(f"s_cmp_eq_u32 {sWv}, 0")
    I(f"s_cselect_b32 {sT[4]}, {sT[4]}, {OOB}")
    I(f"v_mov_b32 {vTsA}, {sT[4]}")
I(f"s_and_b32 {sT[4]}, {sGI}, 1")
I(f"s_cmp_eq_u32 {sT[4]}, 0")
I(f"s_cselect_b32 {rW[0]}, {sPG[0]}, {sPU[0]}")
I(f"s_cselect_b32 {rW[1]}, {sPG[1]}, {sPU[1]}")
I(f"s_lshl_b32 {sD0}, {sXJ}, 6")
I(f"s_lshl_b32 {sT[4]}, {sGI}, 1")
I(f"s_add_u32 {sD0}, {sD0}, {sT[4]}")
I(f"s_lshl_b32 {sT[4]}, {sD0}, 1")
I(f"s_load_dword {sD}, {sPD}, {sT[4]}")
vMW = V.alloc(); vMC = V.alloc()
Cr = V.alloc(4, 1); WMr = V.alloc(16)
I(f"s_and_b32 {sT[4]}, {sGI}, 3")
I(f"s_lshl_b32 {sT[4]}, {sT[4]}, 7")
I(f"v_lshrrev_b32 {t2}, 3, v0")
I(f"v_add_u32 {t2}, {sT[4]}, {t2}")
I(f"v_lshlrev_b32 {vMC}, 1, {t2}")
I(f"v_mul_u32_u24 {vMW}, 6144, {t2}")
I(f"v_lshl_add_u32 {vMW}, {t1}, 4, {vMW}")
I(f"s_lshr_b32 {sT[4]}, {sGI}, 2")
I(f"s_lshl_b32 {sT[4]}, {sT[4]}, 10")
I(f"s_lshl_b32 {sT[5]}, {sXJ}, 7")
I(f"s_add_u32 {sT[4]}, {sT[4]}, {sT[5]}")
I(f"s_cmp_lt_u32 {sGI}, 24")
I(f"s_cselect_b32 {sT[4]}, {sT[4]}, {OOB}")
I(f"v_add_u32 {vMW}, {sT[4]}, {vMW}")
tc = [I(f"buffer_load_ushort {Cr[i]}, {vMC}, {rC}, 0 offen offset:{64*i}") for i in range(4)]
twm = []
for i in range(4):
    I(f"s_mov_b32 {sT[5]}, {i*32*6144}")
    twm.append(I(f"buffer_load_dwordx4 {WMr[4*i:4*i+4]}, {vMW}, {rWM}, {sT[5]} offen {NT}"))
tx = [I(f"buffer_load_dword {Xr[e]}, {vB}, {rX}, {sC4096 if e>=4 else 0} offen offset:{(e&3)*1024}") for e in range(8)]
vMW.free(); vMC.free(); vSH.free(); vH.free(); vB.free()

z4 = V.alloc(4)
for i in range(4): I(f"v_mov_b32 {z4[i]}, 0")
I(f"v_and_b32 {t2}, 31, {vL}")
I(f"v_lshlrev_b32 {t2}, 4, {t2}")
I(f"v_lshrrev_b32 {t0}, 5, {vL}")
I(f"v_mul_u32_u24 {t0}, {UCH}, {t0}")
I(f"v_add_u32 {t2}, {t2}, {t0}")
I(f"ds_write_b128 {t2}, {z4} offset:{UB+4096}")
z4.free()

kf = V.alloc(22); wp = V.alloc(8); acc = V.alloc(16); vf = V.alloc(2)
P.wait(tsh)
for j in range(4):
    for c in range(2):
        src = SHr[2*c + (j>>1)]
        I(f"v_lshlrev_b32 {wp[2*j+c]}, 16, {src}" if j%2==0 else f"v_and_b32 {wp[2*j+c]}, 0xffff0000, {src}")
for e in range(11):
    I(f"v_lshlrev_b32 {kf[2*e]}, 16, {Kr[e]}")
    I(f"v_and_b32 {kf[2*e+1]}, 0xffff0000, {Kr[e]}")
for e in range(8):
    I(f"v_pk_mul_f32 {acc[2*e:2*e+2]}, {kf[2*e:2*e+2]}, {wp[6:8]}")
for j in (2, 1, 0):
    for e in range(8):
        q = e + 3 - j
        I(f"v_pk_fma_f32 {acc[2*e:2*e+2]}, {kf[2*q:2*q+2]}, {wp[2*j:2*j+2]}, {acc[2*e:2*e+2]}")
P.wait(tv)
for e in range(8):
    I(f"v_lshlrev_b32 {kf[2*e]}, 16, {Vr[e]}")
    I(f"v_and_b32 {kf[2*e+1]}, 0xffff0000, {Vr[e]}")
for e in range(8):
    I(f"v_pk_mul_f32 {acc[2*e:2*e+2]}, {acc[2*e:2*e+2]}, {kf[2*e:2*e+2]}")
ko = V.alloc(8)
for c in range(2):
    for n in range(4):
        I(f"v_cvt_pk_bf16_f32 {ko[4*c+n]}, {acc[2*(7-2*n)+c]}, {acc[2*(6-2*n)+c]}")
tks = [I(f"buffer_store_dwordx4 {ko[0:4]}, {vKS}, {rWS}, 0 offen sc1"),
       I(f"buffer_store_dwordx4 {ko[4:8]}, {vKS}, {rWS}, {sC4096} offen sc1")]
for r in (kf, wp, acc, vf, Kr, Vr, SHr, vKS): r.free()
stamp("kv stores issued")

XR = V.alloc(8)
I(f"s_lshl_b32 {sT[0]}, s2, 13")
I(f"s_lshl_b32 {sT[1]}, {sWv}, 11")
I(f"s_add_u32 {sT[0]}, {sT[0]}, {sT[1]}")
txr = [I(f"buffer_load_dwordx4 {XR[4*i:4*i+4]}, {vL16}, {rX}, {sT[0]} offen offset:{1024*i}") for i in range(2)]
vTH = V.alloc(); vTHa = V.alloc()
I(f"v_and_b32 {t0}, 15, v0")
I(f"v_bfe_u32 {t1}, v0, 4, 3")
I(f"v_lshrrev_b32 {t2}, 7, v0")
I(f"v_mul_u32_u24 {vTHa}, {TCOPY}, {t1}")
I(f"v_lshl_add_u32 {vTHa}, {t0}, 1, {vTHa}")
I(f"v_add_u32 {t0}, {t0}, {t1}")
I(f"v_mul_u32_u24 {t1}, {TCH}, {t2}")
I(f"v_add_u32 {vTHa}, {vTHa}, {t1}")
I(f"v_add_u32 {t2}, {sD0}, {t2}")
I(f"v_lshlrev_b32 {t2}, 12, {t2}")
I(f"v_lshl_add_u32 {t2}, {t0}, 1, {t2}")
I(f"v_subrev_u32 {t2}, 30, {t2}")
I(f"v_cmp_gt_u32 vcc, 15, {t0}")
I(f"v_mov_b32 {t1}, {OOB}")
I(f"v_cndmask_b32 {t2}, {t2}, {t1}, vcc")
tth = I(f"buffer_load_ushort {vTH}, {t2}, {rTP}, 0 offen")
I(f"s_lshr_b32 {sT[0]}, {sWv}, 1")
I(f"s_and_b32 {sT[1]}, {sWv}, 1")
I(f"s_add_u32 {sT[2]}, {sD0}, {sT[0]}")
I(f"s_lshl_b32 {sT[2]}, {sT[2]}, 12")
I(f"s_lshl_b32 {sT[3]}, {sT[1]}, 3")
I(f"s_add_u32 {sT[2]}, {sT[2]}, {sT[3]}")
I(f"s_add_u32 {sT[2]}, {sT[2]}, 2")
I(f"s_mul_i32 {sT[0]}, {sT[0]}, {TCH}")
I(f"s_mul_i32 {sT[1]}, {sT[1]}, {4*TCOPY}")
I(f"s_add_u32 {sT[0]}, {sT[0]}, {sT[1]}")
I(f"v_add_u32 {t0}, {sT[2]}, {vL16}")
ttp = []
for cc in range(4):
    I(f"s_add_u32 m0, {sT[0]}, {TAPS + 32 + cc*TCOPY}")
    if cc: I(f"v_add_u32 {t0}, 2, {t0}")
    for n in range(4):
        ttp.append(I(f"buffer_load_dwordx4 {t0}, {rTP}, 0 offen offset:{1024*n} lds"))
WR = V.alloc(16)
vHH = V.alloc(); vQ = V.alloc()
sKS = S.alloc(); sCB = S.alloc()
I(f"v_lshrrev_b32 {vHH}, 5, {vL}")
I(f"v_and_b32 {vQ}, 31, {vL}")
I(f"s_lshl_b32 {sKS}, {sXJ}, 2")
I(f"s_add_u32 {sKS}, {sKS}, {sWv}")
I(f"s_lshr_b32 {sCB}, {sGI}, 1")
I(f"s_mul_i32 {sT[0]}, {sKS}, {16*3584}")
I(f"s_mul_i32 {sT[1]}, {sCB}, 224")
I(f"s_add_u32 {sT[0]}, {sT[0]}, {sT[1]}")
I(f"v_mul_u32_u24 {t0}, {8*3584}, {vHH}")
I(f"v_lshl_add_u32 {t0}, {vQ}, 3, {t0}")
twr = []
for e in range(8):
    if e and e % 2 == 0: I(f"s_add_u32 {sT[0]}, {sT[0]}, 7168")
    twr.append(I(f"buffer_load_dwordx2 {WR[2*e:2*e+2]}, {t0}, {rW}, {sT[0]} offen offset:{(e&1)*3584} {NT}"))
WDr = V.alloc(8, 1)
I(f"s_lshl_b32 {sT[0]}, {sGI}, 2")
I(f"s_add_u32 {sT[0]}, {sT[0]}, {sWv}")
I(f"s_lshl_b32 {sT[1]}, {sT[0]}, 14")
I(f"s_lshl_b32 {sT[2]}, {sXJ}, 7")
I(f"s_add_u32 {sT[1]}, {sT[1]}, {sT[2]}")
I(f"v_lshlrev_b32 {t0}, 10, {vHH}")
I(f"v_lshl_add_u32 {t0}, {vQ}, 2, {t0}")
I(f"v_add_u32 {t0}, {sT[1]}, {t0}")
twd = []
for e in range(8):
    g, r = e >> 2, e & 3
    twd.append(I(f"buffer_load_dword {WDr[e]}, {t0}, {rWD}, {[0,sC4096,sC8192,sC12288][r]} offen offset:{2048*g} {NT}"))
vWDS = V.alloc()
I(f"s_mul_i32 {sT[1]}, {sXJ}, 112")
I(f"s_add_u32 {sT[1]}, {sT[1]}, {sT[0]}")
I(f"s_lshl_b32 {sT[1]}, {sT[1]}, 11")
I(f"s_add_u32 {sT[1]}, {sT[1]}, {WDP}")
I(f"s_cmp_lt_u32 {sGI}, 28")
I(f"s_cselect_b32 {sT[1]}, {sT[1]}, {OOB}")
I(f"v_lshrrev_b32 {t0}, 4, {vQ}")
I(f"v_lshlrev_b32 {vWDS}, 10, {t0}")
I(f"v_lshl_add_u32 {vWDS}, {vHH}, 9, {vWDS}")
I(f"v_bfe_u32 {t0}, {vQ}, 2, 1")
I(f"v_lshl_add_u32 {vWDS}, {t0}, 7, {vWDS}")
I(f"v_bfe_u32 {t0}, {vQ}, 3, 1")
I(f"v_lshl_add_u32 {vWDS}, {t0}, 6, {vWDS}")
I(f"v_and_b32 {t0}, 3, {vQ}")
I(f"v_lshl_add_u32 {vWDS}, {t0}, 4, {vWDS}")
I(f"v_add_u32 {vWDS}, {sT[1]}, {vWDS}")

P.wait(tep)
I(f"s_mov_b32 {sT[0]}, 0x9E3779B1")
I(f"v_mul_lo_u32 {vTag}, {vTag}, {sT[0]}")
I(f"v_add_u32 {vTag}, 0x7F4A7C15, {vTag}")

P.wait(tc)
sl = V.alloc(4, 1); sp = V.alloc(2, 1)
for i in range(4): I(f"v_lshlrev_b32 {Cr[i]}, 16, {Cr[i]}")
for i in range(4): I(f"v_mul_f32 {sl[i]}, 0xbfb8aa3b, {Cr[i]}")
for i in range(4): I(f"v_exp_f32 {sl[i]}, {sl[i]}")
for i in range(4): I(f"v_add_f32 {sl[i]}, 1.0, {sl[i]}")
for i in range(4): I(f"v_rcp_f32 {sl[i]}, {sl[i]}")
for i in range(4): I(f"v_mul_f32 {sl[i]}, {sl[i]}, {Cr[i]}")
I(f"v_cvt_pk_bf16_f32 {sp[0]}, {sl[0]}, {sl[1]}")
I(f"v_cvt_pk_bf16_f32 {sp[1]}, {sl[2]}, {sl[3]}")
P.wait(twm)
ma = V.alloc(8, 1); mp = V.alloc(8, 1)
for half in range(2):
    for j in range(4):
        I(f"v_perm_b32 {mp[2*j]}, {WMr[8*half+4+j]}, {WMr[8*half+j]}, {sPL}")
        I(f"v_perm_b32 {mp[2*j+1]}, {WMr[8*half+4+j]}, {WMr[8*half+j]}, {sPH}")
    for j in range(8):
        I(f"v_dot2_f32_bf16 {ma[j]}, {mp[j]}, {sp[half]}, {0 if half==0 else ma[j]}")
for i in range(4): I(f"v_permlane32_swap_b32 {ma[i]}, {ma[i+4]}")
for i in range(4): I(f"v_add_f32 {ma[i]}, {ma[i]}, {ma[i+4]}")
for i in range(2): I(f"v_permlane16_swap_b32 {ma[i]}, {ma[i+2]}")
for i in range(2): I(f"v_add_f32 {ma[i]}, {ma[i]}, {ma[i+2]}")
for i in range(2): I(f"v_add_f32_dpp {ma[i]}, {ma[i]}, {ma[i]} row_ror:8 row_mask:0xf bank_mask:0xf")
I(f"v_and_b32 {t0}, 7, {vL}")
I(f"v_lshlrev_b32 {t0}, 7, {t0}")
I(f"v_lshrrev_b32 {t1}, 4, {vL}")
I(f"v_lshl_add_u32 {t0}, {t1}, 5, {t0}")
I(f"s_lshl_b32 {sT[0]}, {sWv}, 2")
I(f"v_add_u32 {t0}, {sT[0]}, {t0}")
I(f"ds_write_b32 {t0}, {ma[0]} offset:{MODL}")
I(f"ds_write_b32 {t0}, {ma[1]} offset:{MODL+16}")
for r in (sl, sp, ma, mp, Cr, WMr): r.free()

sIDX = S.alloc()
vF1 = V.alloc()
vF8 = V.alloc()
I(f"s_lshl_b32 {sIDX}, {sXJ}, 5")
I(f"s_add_u32 {sIDX}, {sIDX}, {sGI}")
I(f"s_lshl_b32 {sT[0]}, {sIDX}, {FSH}")
I(f"v_lshlrev_b32 {vF8}, {FSH+8}, v0")
I(f"v_add_u32 {vF8}, {sT[0]}, {vF8}")
I(f"v_mov_b32 {t1}, {OOB}")
I(f"v_cmp_gt_u32 vcc, 8, v0")
I(f"v_cndmask_b32 {vF8}, {t1}, {vF8}, vcc")
I(f"v_cmp_eq_u32 vcc, 0, v0")
I(f"v_cndmask_b32 {vF1}, {t1}, {vF8}, vcc")

def post_flag(vaddr, base):
    I(f"s_mov_b32 {sT[7]}, {base}")
    return I(f"buffer_store_dword {vTag}, {vaddr}, {rWS}, {sT[7]} offen sc1")

def poll(vaddr, base):
    L = P.label("poll"); D = P.label("done")
    vp = V.alloc()
    I(f"s_mov_b32 {sT[6]}, {base}")
    I(f"{L}:")
    I(f"buffer_load_dword {vp}, {vaddr}, {rWS}, {sT[6]} offen sc1")
    P.wait_all(lg=False)
    I(f"v_cmp_ne_u32 vcc, {vp}, {vTag}")
    I(f"s_cbranch_vccz {D}")
    I(f"s_add_u32 {sSpin}, {sSpin}, 1")
    I(f"s_cmp_lt_u32 {sSpin}, 200000")
    I(f"s_cbranch_scc1 {L}")
    I(f"{D}:")
    vp.free()

P.wait(tks)
I("s_waitcnt lgkmcnt(0)"); P.lg_done = P.lg
I("s_barrier")
post_flag(vF1, F1)
stamp("F1 posted")
ko.free()
m4 = V.alloc(4)
tl = I(f"ds_read_b128 {m4}, {vL16} offset:{MODL}")
I(f"s_lshl_b32 {sT[0]}, {sGI}, 11")
I(f"s_lshl_b32 {sT[1]}, {sXJ}, 8")
I(f"s_add_u32 {sT[0]}, {sT[0]}, {sT[1]}")
I(f"s_add_u32 {sT[0]}, {sT[0]}, {MODP}")
I(f"s_cmp_lt_u32 {sGI}, 24")
I(f"s_cselect_b32 {sT[0]}, {sT[0]}, {OOB}")
I(f"s_cmp_eq_u32 {sWv}, 1")
I(f"s_cselect_b32 {sT[0]}, {sT[0]}, {OOB}")
I(f"v_lshlrev_b32 {t0}, 2, {vL}")
I(f"v_add_u32 {t0}, {sT[0]}, {t0}")
P.wait(tl)
I(f"v_add_f32 {m4[0]}, {m4[0]}, {m4[1]}")
I(f"v_add_f32 {m4[2]}, {m4[2]}, {m4[3]}")
I(f"v_add_f32 {m4[0]}, {m4[0]}, {m4[2]}")
I(f"buffer_store_dword {m4[0]}, {t0}, {rWS}, 0 offen sc1")
xo = V.alloc(8)
P.wait(tx)
for c in range(2):
    for n in range(4):
        I(f"v_perm_b32 {xo[4*c+n]}, {Xr[2*n+1]}, {Xr[2*n]}, {sPH if c else sPL}")
I(f"buffer_store_dwordx4 {xo[0:4]}, {vXS}, {rWS}, 0 offen sc1")
I(f"buffer_store_dwordx4 {xo[4:8]}, {vXS}, {rWS}, {sC4096} offen sc1")
Xr.free(); vXS.free()
sONE = S.alloc()
I(f"s_mov_b32 {sONE}, 0x3f803f80")
P.wait(txr)
q4 = V.alloc(4)
for n in range(4):
    for r in range(2):
        I(f"v_dot2_f32_bf16 {q4[2*r]}, {XR[4*r+n]}, {sONE}, {0 if n==0 else q4[2*r]}")
        I(f"v_dot2_f32_bf16 {q4[2*r+1]}, {XR[4*r+n]}, {XR[4*r+n]}, {0 if n==0 else q4[2*r+1]}")
I(f"v_permlane32_swap_b32 {q4[0]}, {q4[2]}")
I(f"v_permlane32_swap_b32 {q4[1]}, {q4[3]}")
I(f"v_add_f32 {q4[0]}, {q4[0]}, {q4[2]}")
I(f"v_add_f32 {q4[1]}, {q4[1]}, {q4[3]}")
I(f"v_permlane16_swap_b32 {q4[0]}, {q4[1]}")
I(f"v_add_f32 {q4[0]}, {q4[0]}, {q4[1]}")
for sh in (8, 4, 2, 1):
    I(f"v_add_f32_dpp {q4[0]}, {q4[0]}, {q4[0]} row_ror:{sh} row_mask:0xf bank_mask:0xf")
I(f"v_mov_b32 {q4[1]}, {q4[0]}")
I(f"v_permlane16_swap_b32 {q4[0]}, {q4[1]}")
def finish_stats(vsum, vsq, vrs, vnm, tmp):
    I(f"v_mul_f32 {vnm}, 0xbb000000, {vsum}")
    I(f"v_mul_f32 {tmp}, {vnm}, {vnm}")
    I(f"v_mov_b32 {vrs}, 0x3b000000")
    I(f"v_fma_f32 {tmp}, {vsq}, {vrs}, -{tmp}")
    I(f"v_max_f32 {tmp}, 0, {tmp}")
    I(f"v_add_f32 {tmp}, 0x3727c5ac, {tmp}")
    I(f"v_rsq_f32 {vrs}, {tmp}")
finish_stats(q4[0], q4[1], q4[2], q4[3], t0)
I(f"v_mul_f32 {q4[3]}, {q4[3]}, {q4[2]}")
I(f"s_lshl_b32 {sT[0]}, s2, 6")
I(f"s_lshl_b32 {sT[1]}, {sWv}, 4")
I(f"s_add_u32 {sT[0]}, {sT[0]}, {sT[1]}")
I(f"s_add_u32 {sT[0]}, {sT[0]}, {ST1}")
I(f"v_lshlrev_b32 {t0}, 3, {vHH}")
I(f"v_mov_b32 {t1}, {OOB}")
I(f"v_cmp_eq_u32 vcc, 0, {vQ}")
I(f"v_cndmask_b32 {t0}, {t1}, {t0}, vcc")
I(f"buffer_store_dwordx2 {q4[2:4]}, {t0}, {rWS}, {sT[0]} offen sc1")
XR.free()
P.wait(tth)
I(f"ds_write_b16 {vTHa}, {vTH} offset:{TAPS}")
vTH.free(); vTHa.free()
P.wait(twd)
wo = V.alloc(8)
for j in range(2):
    for n in range(4):
        I(f"v_perm_b32 {wo[4*j+n]}, {WDr[2*n+1]}, {WDr[2*n]}, {sPH if j else sPL}")
I(f"buffer_store_dwordx4 {wo[0:4]}, {vWDS}, {rWS}, 0 offen sc1")
I(f"buffer_store_dwordx4 {wo[4:8]}, {vWDS}, {rWS}, 0 offen offset:256 sc1")
WDr.free(); vWDS.free()
P.wait_all()
I("s_barrier")
post_flag(vF8, F2)
stamp("F2 posted")
for r in (m4, xo, q4, wo): r.free()

vPG = V.alloc()
vPA = V.alloc()
I(f"s_lshl_b32 {sT[0]}, {sXJ}, {5+FSH}")
I(f"v_lshlrev_b32 {vPG}, {FSH}, {vQ}")
I(f"v_add_u32 {vPG}, {sT[0]}, {vPG}")
I(f"s_lshl_b32 {sT[0]}, {sXJ}, {8+FSH}")
I(f"v_lshlrev_b32 {vPA}, {FSH}, v0")
I(f"v_add_u32 {vPA}, {sT[0]}, {vPA}")
poll(vPG, F1)
stamp("F1 seen")
I(f"s_lshl_b32 {sT[0]}, {sD0}, 12")
I(f"s_lshl_b32 {sT[1]}, {sWv}, 11")
I(f"s_add_u32 {sT[0]}, {sT[0]}, {sT[1]}")
I(f"s_add_u32 {sT[0]}, {sT[0]}, {KVT}")
I(f"s_lshr_b32 {sT[2]}, {sWv}, 1")
I(f"s_lshl_b32 {sT[2]}, {sT[2]}, 9")
I(f"s_add_u32 {sT[1]}, {sT[1]}, {sT[2]}")
I(f"s_add_u32 m0, {sT[1]}, {UB}")
for n in range(2): I(f"buffer_load_dwordx4 {vL16}, {rWS}, {sT[0]} offen offset:{1024*n} sc1 lds")
poll(vPA, F2)
I("s_barrier")
stamp("F2 seen, U landed")

ma2 = V.alloc(2, 1)
I(f"v_and_b32 {t0}, 15, {vL}")
I(f"v_bfe_u32 {t1}, {vL}, 4, 1")
I(f"v_lshlrev_b32 {t0}, 2, {t0}")
I(f"v_lshl_add_u32 {t0}, {t1}, 13, {t0}")
I(f"v_lshl_add_u32 {t0}, {vHH}, 12, {t0}")
I(f"s_lshl_b32 {sT[0]}, {sKS}, 6")
I(f"s_add_u32 {sT[0]}, {sT[0]}, {MODP + 3*8192}")
tm2 = [I(f"buffer_load_dword {ma2[n]}, {t0}, {rWS}, {sT[0]} offen offset:{2048*n} sc1") for n in range(2)]
mb = V.alloc()
I(f"v_and_b32 {t0}, 3, {vL}")
I(f"v_lshlrev_b32 {t0}, 11, {t0}")
I(f"v_bfe_u32 {t2}, {vL}, 2, 1")
I(f"v_lshl_add_u32 {t0}, {t2}, 2, {t0}")
I(f"v_bfe_u32 {t2}, {vL}, 3, 2")
I(f"v_lshl_add_u32 {t0}, {t2}, 13, {t0}")
I(f"s_lshl_b32 {sT[0]}, {sD0}, 2")
I(f"s_add_u32 {sT[0]}, {sT[0]}, {MODP}")
tmb = I(f"buffer_load_dword {mb}, {t0}, {rWS}, {sT[0]} offen sc1")
STr = V.alloc(16); XTr = V.alloc(8)
vT16 = V.alloc()
I(f"v_lshlrev_b32 {vT16}, 4, v0")
I(f"v_lshlrev_b32 {t0}, 6, v0")
I(f"s_mov_b32 {sT[0]}, {ST1}")
tst = [I(f"buffer_load_dwordx4 {STr[4*n:4*n+4]}, {t0}, {rWS}, {sT[0]} offen offset:{16*n} sc1") for n in range(4)]
I(f"s_lshl_b32 {sT[0]}, {sD0}, 12")
I(f"s_add_u32 {sT[0]}, {sT[0]}, {XT}")
I(f"s_add_u32 {sT[1]}, {sT[0]}, 4096")
txt = [I(f"buffer_load_dwordx4 {XTr[4*c:4*c+4]}, {vT16}, {rWS}, {sT[c]} offen sc1") for c in range(2)]
AWD = A.reserve(0, 224)
sR64 = S.alloc(); sDB = S.alloc()
I(f"s_lshr_b32 {sR64}, {sGI}, 3")
I(f"s_lshl_b32 {sT[0]}, {sXJ}, 2")
I(f"s_add_u32 {sR64}, {sR64}, {sT[0]}")
I(f"s_and_b32 {sDB}, {sGI}, 7")
def load_wd(n0, n1):
    vA0 = V.alloc(); vA1 = V.alloc()
    I(f"s_mul_i32 {sT[0]}, {sDB}, 112")
    I(f"s_mul_i32 {sT[1]}, {sWv}, 28")
    I(f"s_add_u32 {sT[0]}, {sT[0]}, {sT[1]}")
    I(f"s_lshl_b32 {sT[0]}, {sT[0]}, 11")
    I(f"s_add_u32 {sT[0]}, {sT[0]}, {WDP + n0*2048}")
    I(f"s_and_b32 {sT[1]}, {sWv}, 1")
    I(f"s_lshl_b32 {sT[1]}, {sT[1]}, 10")
    I(f"v_add_u32 {vA0}, {sT[1]}, {vL16}")
    I(f"v_xor_b32 {vA1}, 1024, {vA0}")
    toks = []
    for n in range(n0, n1):
        if n > n0 and (n-n0) % 2 == 0: I(f"s_add_u32 {sT[0]}, {sT[0]}, 4096")
        o = ((n-n0) & 1)*2048
        toks.append(I(f"buffer_load_dwordx4 {AWD[8*n:8*n+4]}, {vA0}, {rWS}, {sT[0]} offen offset:{o} sc1"))
        toks.append(I(f"buffer_load_dwordx4 {AWD[8*n+4:8*n+8]}, {vA1}, {rWS}, {sT[0]} offen offset:{o} sc1"))
    vA0.free(); vA1.free()
    return toks

def round_bf16(dst, src):
    I(f"v_cvt_pk_bf16_f32 {dst}, {src}, {src}")
    I(f"v_and_b32 {dst}, 0xffff0000, {dst}")

P.wait(tm2)
I(f"v_add_f32 {ma2[0]}, {ma2[0]}, {ma2[1]}")
I(f"v_mov_b32 {ma2[1]}, {ma2[0]}")
I(f"v_permlane32_swap_b32 {ma2[0]}, {ma2[1]}")
I(f"v_add_f32 {ma2[0]}, {ma2[0]}, {ma2[1]}")
round_bf16(ma2[0], ma2[0])
I(f"v_cvt_f32_u32 {t1}, {t1}")
I(f"v_add_f32 {ma2[0]}, {ma2[0]}, {t1}")
round_bf16(ma2[0], ma2[0])
I(f"s_lshl_b32 {sT[0]}, {sWv}, 7")
I(f"v_lshlrev_b32 {t0}, 2, {vQ}")
I(f"v_add_u32 {t0}, {sT[0]}, {t0}")
I(f"ds_write_b32 {t0}, {ma2[0]} offset:{CBL}")
I(f"v_lshlrev_b32 {t0}, 5, {vHH}")
I(f"v_add_u32 {t0}, {sT[0]}, {t0}")
SBv = V.alloc(8); CBv = V.alloc(8)
tl = [I(f"ds_read_b128 {SBv[0:4]}, {t0} offset:{CBL}"), I(f"ds_read_b128 {SBv[4:8]}, {t0} offset:{CBL+16}"),
      I(f"ds_read_b128 {CBv[0:4]}, {t0} offset:{CBL+64}"), I(f"ds_read_b128 {CBv[4:8]}, {t0} offset:{CBL+80}")]
ma2.free()
wf = V.alloc(32)
for e in range(8):
    for h in range(2):
        I(f"v_lshlrev_b32 {wf[4*e+2*h]}, 16, {WR[2*e+h]}")
        I(f"v_and_b32 {wf[4*e+2*h+1]}, 0xffff0000, {WR[2*e+h]}")
P.wait(tl)
c2 = V.alloc(4); c1 = V.alloc(4, 1)
for e in range(8):
    x = e & 1; pe = e & ~1
    for h in range(2):
        if e == 0:
            I(f"v_pk_mul_f32 {c2[2*h:2*h+2]}, {wf[4*e+2*h:4*e+2*h+2]}, {SBv[pe:pe+2]} op_sel:[0,{x}] op_sel_hi:[1,{x}]")
        else:
            I(f"v_pk_fma_f32 {c2[2*h:2*h+2]}, {wf[4*e+2*h:4*e+2*h+2]}, {SBv[pe:pe+2]}, {c2[2*h:2*h+2]} op_sel:[0,{x},0] op_sel_hi:[1,{x},1]")
        I(f"v_pk_mul_f32 {wf[4*e+2*h:4*e+2*h+2]}, {wf[4*e+2*h:4*e+2*h+2]}, {CBv[pe:pe+2]} op_sel:[0,{x}] op_sel_hi:[1,{x}]")
for j in range(4):
    for n in range(4):
        I(f"v_cvt_pk_bf16_f32 {WR[4*j+n]}, {wf[8*n+j]}, {wf[8*n+4+j]}")
sM = S.alloc()
I(f"s_and_b32 {sM}, {sGI}, 1")
I(f"s_mul_i32 {sT[0]}, {sCB}, 229376")
I(f"s_lshl_b32 {sT[1]}, {sM}, 9")
I(f"s_add_u32 {sT[0]}, {sT[0]}, {sT[1]}")
I(f"s_add_u32 {sT[0]}, {sT[0]}, {WP}")
I(f"s_lshl_b32 {sT[1]}, {sKS}, 12")
I(f"s_lshl_b32 {sT[2]}, {sKS}, 10")
I(f"v_lshrrev_b32 {t0}, 2, {vQ}")
I(f"v_lshlrev_b32 {t1}, 10, {t0}")
I(f"v_add_u32 {t1}, {sT[1]}, {t1}")
I(f"v_lshlrev_b32 {t2}, 15, {t0}")
I(f"v_add_u32 {t2}, {sT[2]}, {t2}")
I(f"v_cmp_gt_u32 vcc, 4, {t0}")
I(f"v_cndmask_b32 {t1}, {t2}, {t1}, vcc")
I(f"v_mov_b32 {t2}, {OOB}")
I(f"v_cmp_gt_u32 vcc, 7, {t0}")
I(f"v_cndmask_b32 {t1}, {t2}, {t1}, vcc")
I(f"v_xor_b32 {t2}, {sM}, {vHH}")
I(f"v_lshl_add_u32 {t1}, {t2}, 6, {t1}")
I(f"v_and_b32 {t2}, 3, {vQ}")
I(f"v_lshl_add_u32 {t1}, {t2}, 4, {t1}")
for j in range(4):
    I(f"buffer_store_dwordx4 {WR[4*j:4*j+4]}, {t1}, {rWS}, {sT[0]} offen offset:{128*j} sc1")
for n in range(4):
    for j in range(4):
        I(f"v_dot2_f32_bf16 {c1[j]}, {WR[4*j+n]}, {sONE}, {0 if n==0 else c1[j]}")
for j in range(4): I(f"v_permlane32_swap_b32 {c1[j]}, {c2[j]}")
for j in range(4): I(f"v_add_f32 {c1[j]}, {c1[j]}, {c2[j]}")
I(f"v_lshlrev_b32 {t0}, 6, {t0}")
I(f"v_lshl_add_u32 {t0}, {t2}, 2, {t0}")
I(f"v_lshl_add_u32 {t0}, {vHH}, 9, {t0}")
I(f"s_lshl_b32 {sT[0]}, {sWv}, 10")
I(f"v_add_u32 {t0}, {sT[0]}, {t0}")
for j in range(4): I(f"ds_write_b32 {t0}, {c1[j]} offset:{C12L+16*j}")
for r in (wf, c1, c2, SBv, CBv): r.free()
P.wait_all()
I("s_barrier")
post_flag(vF1, F3)
WR.free()
stamp("W' done")
twdl = load_wd(0, 28)
c4 = V.alloc(4, 1)
I(f"v_lshlrev_b32 {t0}, 2, v0")
tl = [I(f"ds_read_b32 {c4[w]}, {t0} offset:{C12L+1024*w}") for w in range(4)]
I(f"s_lshl_b32 {sT[0]}, {sCB}, 3")
I(f"s_add_u32 {sT[0]}, {sT[0]}, {sXJ}")
I(f"s_mul_i32 {sT[0]}, {sT[0]}, 1792")
I(f"s_lshl_b32 {sT[1]}, {sM}, 6")
I(f"s_add_u32 {sT[0]}, {sT[0]}, {sT[1]}")
I(f"s_add_u32 {sT[0]}, {sT[0]}, {C12}")
I(f"v_lshrrev_b32 {t0}, 7, v0")
I(f"v_mul_u32_u24 {t0}, 896, {t0}")
I(f"v_bfe_u32 {t1}, v0, 4, 3")
I(f"v_lshl_add_u32 {t0}, {t1}, 7, {t0}")
I(f"v_and_b32 {t2}, 15, v0")
I(f"v_lshl_add_u32 {t0}, {t2}, 2, {t0}")
I(f"v_mov_b32 {t2}, {OOB}")
I(f"v_cmp_gt_u32 vcc, 7, {t1}")
I(f"v_cndmask_b32 {t0}, {t2}, {t0}, vcc")
P.wait(tl)
I(f"v_add_f32 {c4[0]}, {c4[0]}, {c4[1]}")
I(f"v_add_f32 {c4[2]}, {c4[2]}, {c4[3]}")
I(f"v_add_f32 {c4[0]}, {c4[0]}, {c4[2]}")
I(f"buffer_store_dword {c4[0]}, {t0}, {rWS}, {sT[0]} offen sc1")

I(f"v_add_f32_dpp {mb}, {mb}, {mb} quad_perm:[1,0,3,2] row_mask:0xf bank_mask:0xf")
I(f"v_add_f32_dpp {mb}, {mb}, {mb} quad_perm:[2,3,0,1] row_mask:0xf bank_mask:0xf")
round_bf16(mb, mb)
I(f"v_add_f32 {t0}, 1.0, {mb}")
round_bf16(t0, t0)
PQ = V.alloc(4, 1)
for c in range(2):
    I(f"v_readlane_b32 {sT[0]}, {mb}, {4*c}")
    I(f"v_readlane_b32 {sT[1]}, {t0}, {8+4*c}")
    I(f"v_readlane_b32 {sT[2]}, {mb}, {16+4*c}")
    I(f"v_mov_b32 {t1}, {sT[2]}")
    I(f"v_mul_f32 {PQ[2*c]}, {sT[1]}, {t1}")
    I(f"v_mul_f32 {PQ[2*c+1]}, {sT[0]}, {t1}")
mb.free()
sDf = [S.alloc(), S.alloc()]
I(f"s_lshl_b32 {sDf[0]}, {sD}, 16")
I(f"s_and_b32 {sDf[1]}, {sD}, 0xffff0000")
KVr = V.alloc(8)
I(f"v_sub_u32 {t0}, 4080, {vT16}")
tl = [I(f"ds_read_b128 {KVr[4*c:4*c+4]}, {t0} offset:{UB+c*UCH}") for c in range(2)]
HG = V.alloc(16, 1); BS = V.alloc(16, 1)
P.wait(tl)
for c in range(2):
    for e in range(8):
        xs = XTr[4*c + (e>>1)]; ks_ = KVr[4*c + ((7-e)>>1)]
        hg = HG[8*c+e]; bs = BS[8*c+e]
        I(f"v_lshlrev_b32 {bs}, 16, {xs}" if e%2==0 else f"v_and_b32 {bs}, 0xffff0000, {xs}")
        I(f"v_lshlrev_b32 {t1}, 16, {ks_}" if (7-e)%2==0 else f"v_and_b32 {t1}, 0xffff0000, {ks_}")
        I(f"v_fma_f32 {hg}, {bs}, {STr[2*e]}, {STr[2*e+1]}")
        I(f"v_mul_f32 {t1}, {sDf[c]}, {t1}")
        I(f"v_fma_f32 {hg}, {hg}, {PQ[2*c]}, {PQ[2*c+1]}")
        I(f"v_fmac_f32 {bs}, {hg}, {t1}")
for r in (KVr, STr, XTr, PQ, c4): r.free()
stamp("pre done")

vAa = V.alloc(); vBa = V.alloc()
I(f"s_lshr_b32 {sT[0]}, {sWv}, 1")
I(f"s_and_b32 {sT[1]}, {sWv}, 1")
I(f"s_lshl_b32 {sT[1]}, {sT[1]}, 8")
I(f"s_mul_i32 {sT[2]}, {sT[0]}, {TCH}")
I(f"s_add_u32 {sT[2]}, {sT[2]}, {sT[1]}")
I(f"s_mul_i32 {sT[3]}, {sT[0]}, {UCH}")
I(f"s_add_u32 {sT[3]}, {sT[3]}, {sT[1]}")
I(f"s_add_u32 {sT[3]}, {sT[3]}, {UB+480}")
I(f"v_and_b32 {t0}, 7, {vL}")
I(f"v_mul_u32_u24 {vAa}, {TCOPY}, {t0}")
I(f"v_bfe_u32 {t0}, {vL}, 3, 1")
I(f"v_lshrrev_b32 {t1}, 4, {vL}")
I(f"v_add_u32 {t0}, {t0}, {t1}")
I(f"v_lshl_add_u32 {vAa}, {t0}, 4, {vAa}")
I(f"v_add_u32 {vAa}, {sT[2]}, {vAa}")
I(f"v_and_b32 {t0}, 15, {vL}")
I(f"v_lshlrev_b32 {t2}, 5, {t0}")
I(f"v_lshlrev_b32 {vBa}, 4, {t1}")
I(f"v_sub_u32 {vBa}, {vBa}, {t2}")
I(f"v_add_u32 {vBa}, {sT[3]}, {vBa}")
vRW = V.alloc()
I(f"v_and_b32 {vRW}, 1, {t1}")
I(f"v_lshlrev_b32 {vRW}, 12, {vRW}")
I(f"v_add_u32 {vRW}, {vRW}, {t2}")
I(f"v_lshrrev_b32 {t1}, 1, {t1}")
I(f"v_lshl_add_u32 {vRW}, {t1}, 4, {vRW}")
I(f"s_lshl_b32 {sT[0]}, {sWv}, 13")
I(f"s_add_u32 {sT[0]}, {sT[0]}, {RED}")
I(f"v_add_u32 {vRW}, {sT[0]}, {vRW}")
D = Frags(8)
FA = [Frags(8), Frags(8)]; FB = [Frags(8), Frags(8)]
def conv_reads(n):
    b = n & 1; out = []
    for t in range(8):
        out.append(lambda t=t: I(f"ds_read_b128 {FA[b][4*t:4*t+4]}, {vAa} offset:{TAPS + 64*n + 512*t}"))
        out.append(lambda t=t: I(f"ds_read_b128 {FB[b][4*t:4*t+4]}, {vBa} offset:{512*(7-t) + 64*n}"))
    return out
ctok = {}
rd = conv_reads(0)
ctok[0] = [f() for f in rd]
for n in range(4):
    b = n & 1
    nxt = conv_reads(n+1) if n < 3 else []
    ctok[n+1] = []
    pairs = sorted([(t, jj) for t in range(8) for jj in range(8-t)], key=lambda p: (max(p), p))
    seen = set()
    for i, (t, jj) in enumerate(pairs):
        P.wait(ctok[n][2*t], ctok[n][2*jj+1])
        j = t + jj
        first = (n == 0 and j not in seen); seen.add(j)
        I(f"v_mfma_f32_16x16x32_bf16 {D[4*j:4*j+4]}, {FA[b][4*t:4*t+4]}, {FB[b][4*jj:4*jj+4]}, {0 if first else D[4*j:4*j+4]}")
        if nxt and i >= 2 and i % 2 == 0: ctok[n+1].append(nxt.pop(0)())
    while nxt: ctok[n+1].append(nxt.pop(0)())
for j in range(8): I(f"ds_write_b128 {vRW}, {D[4*j:4*j+4]} offset:{512*j}")
for r in FA + FB + [vAa, vBa, vRW]: r.free()
P.wait_all(vm=False)
I("s_barrier")
stamp("conv done")
D.free()
Y = Frags(8)
I(f"v_add_u32 {t0}, {RED}, {vT16}")
tl = []
for c in range(2):
    for kh in range(2):
        for h in range(2):
            tl.append(I(f"ds_read_b128 {Y[16*c+8*kh+4*h:16*c+8*kh+4*h+4]}, {t0} offset:{(2*c+kh)*8192 + 4096*h}"))
xo = V.alloc(8)
I(f"v_lshrrev_b32 {t1}, 2, v0")
I(f"v_lshlrev_b32 {t1}, 15, {t1}")
I(f"v_and_b32 {t2}, 3, v0")
I(f"v_lshl_add_u32 {t1}, {t2}, 4, {t1}")
I(f"s_lshl_b32 {sT[0]}, {sD0}, 6")
I(f"s_add_u32 {sT[0]}, {sT[0]}, {X1T}")
for c in range(2):
    P.wait(tl[4*c:4*c+4])
    for e in range(8): I(f"v_add_f32 {Y[16*c+e]}, {Y[16*c+e]}, {Y[16*c+8+e]}")
    for e in range(8): I(f"v_fmac_f32 {BS[8*c+e]}, {HG[8*c+e]}, {Y[16*c+e]}")
    for n in range(4): I(f"v_cvt_pk_bf16_f32 {xo[4*c+n]}, {BS[8*c+2*n]}, {BS[8*c+2*n+1]}")
    I(f"buffer_store_dwordx4 {xo[4*c:4*c+4]}, {t1}, {rWS}, {sT[0]} offen offset:{64*c} sc1")
for r in (Y, HG, BS): r.free()
P.wait_all()
I("s_barrier")
post_flag(vF8, F4)
xo.free()
stamp("F4 posted")

sRB = S.alloc(); sC1 = S.alloc()
I(f"s_and_b32 {sRB}, {sXJ}, 1")
I(f"s_lshl_b32 {sRB}, {sRB}, 3")
I(f"s_lshr_b32 {sT[0]}, {sGI}, 2")
I(f"s_add_u32 {sRB}, {sRB}, {sT[0]}")
I(f"s_lshr_b32 {sC1}, {sXJ}, 1")
I(f"s_lshl_b32 {sC1}, {sC1}, 2")
I(f"s_and_b32 {sT[0]}, {sGI}, 3")
I(f"s_add_u32 {sC1}, {sC1}, {sT[0]}")
I(f"v_bfe_u32 {t0}, {vL}, 1, 3")
I(f"v_lshlrev_b32 {t0}, 5, {t0}")
I(f"v_and_b32 {t1}, 1, {vL}")
I(f"v_add_u32 {t0}, {t0}, {t1}")
I(f"s_lshl_b32 {sT[0]}, {sC1}, 1")
I(f"v_add_u32 {t0}, {sT[0]}, {t0}")
I(f"v_lshlrev_b32 {vPG}, {FSH}, {t0}")
poll(vPG, F3)
sWsrc = S.alloc(); sWdst = S.alloc()
I(f"s_mul_i32 {sWsrc}, {sC1}, 229376")
I(f"s_lshl_b32 {sWdst}, {sWv}, 12")
I(f"s_add_u32 {sWsrc}, {sWsrc}, {sWdst}")
I(f"s_add_u32 {sWsrc}, {sWsrc}, {WP}")
def w_dma(src_off, dst_off):
    I(f"s_add_u32 {sT[0]}, {sWsrc}, {src_off}")
    I(f"s_add_u32 m0, {sWdst}, {WL + dst_off}")
    return [I(f"buffer_load_dwordx4 {vL16}, {rWS}, {sT[0]} offen offset:{1024*n} sc1 lds") for n in range(4)]
for i in range(8): w_dma(16384*i, 16384*i)
poll(vPA, F4)
I("s_barrier")
stamp("F4 seen")
I(f"s_cmp_eq_u32 s2, 0")
I(f"s_cselect_b32 {sT[0]}, {EPOCH}, {OOB}")
I(f"v_or_b32 {t0}, {sT[0]}, {vF1}")
I(f"buffer_store_dword {vTag}, {t0}, {rWS}, 0 offen sc1")
sXsrc = S.alloc(); sXdst = S.alloc(); sSB = S.alloc()
I(f"s_lshl_b32 {sSB}, {sRB}, 2")
I(f"s_add_u32 {sSB}, {sSB}, {sWv}")
I(f"s_lshl_b32 {sXsrc}, {sSB}, 15")
I(f"s_add_u32 {sXsrc}, {sXsrc}, {X1T}")
I(f"s_mul_i32 {sXdst}, {sWv}, {XSW}")
I(f"s_add_u32 {sXdst}, {sXdst}, {XS}")
xt = {}
def x_dma(ks):
    I(f"s_add_u32 {sT[1]}, {sXsrc}, {1024*ks}")
    I(f"s_add_u32 m0, {sXdst}, {1024*(ks%7)}")
    xt[ks] = I(f"buffer_load_dwordx4 {vL16}, {rWS}, {sT[1]} offen sc1 lds")
for ks in range(7): x_dma(ks)
c8 = V.alloc(16)
I(f"s_mul_i32 {sT[0]}, {sC1}, {8*1792}")
I(f"s_add_u32 {sT[0]}, {sT[0]}, {C12}")
I(f"v_lshlrev_b32 {t2}, 3, v0")
tcc = []
for g in range(8):
    if g and g % 2 == 0: I(f"s_add_u32 {sT[0]}, {sT[0]}, 3584")
    tcc.append(I(f"buffer_load_dwordx2 {c8[2*g:2*g+2]}, {t2}, {rWS}, {sT[0]} offen offset:{(g&1)*1792} sc1"))
vAd = V.alloc(); vAd2 = V.alloc(); vTr = V.alloc(); vCT = V.alloc()
I(f"v_bfe_u32 {t0}, {vL}, 2, 3")
I(f"v_lshlrev_b32 {vAd}, 7, {t0}")
I(f"v_bfe_u32 {t0}, {vL}, 4, 1")
I(f"v_xor_b32 {t0}, {t0}, {vHH}")
I(f"v_lshl_add_u32 {vAd}, {t0}, 6, {vAd}")
I(f"v_and_b32 {t0}, 3, {vL}")
I(f"v_lshl_add_u32 {vAd}, {t0}, 4, {vAd}")
I(f"v_add_u32 {vAd2}, 65536, {vAd}")
I(f"v_lshlrev_b32 {vTr}, 3, {t0}")
I(f"v_bfe_u32 {t0}, {vL}, 4, 1")
I(f"v_lshl_add_u32 {vTr}, {t0}, 5, {vTr}")
I(f"v_bfe_u32 {t0}, {vL}, 2, 2")
I(f"v_lshl_add_u32 {vTr}, {t0}, 6, {vTr}")
vTr0 = V.alloc()
I(f"v_mov_b32 {vTr0}, {vTr}")
I(f"v_lshl_add_u32 {vTr}, {vHH}, 9, {vTr}")
I(f"v_add_u32 {vTr}, {sXdst}, {vTr}")
I(f"v_lshlrev_b32 {vCT}, 4, {vHH}")
I(f"v_add_u32 {vCT}, {CT}, {vCT}")
P.wait(tcc)
for st in (4, 2, 1):
    for g in range(st):
        I(f"v_pk_add_f32 {c8[2*g:2*g+2]}, {c8[2*g:2*g+2]}, {c8[2*(g+st):2*(g+st)+2]}")
I(f"v_min_u32 {t2}, 2040, {t2}")
I(f"v_add_u32 {t2}, {CT}, {t2}")
I(f"ds_write_b64 {t2}, {c8[0:2]}")
c8.free()
Bf = Frags(32)
AR = A.reserve(224, 32)
ACC = [V.alloc(16) for _ in range(5)]
vSum = V.alloc(); vSq = V.alloc()
def a_read(slot, off):
    if off < 65536: return I(f"ds_read_b128 {AR[4*slot:4*slot+4]}, {vAd} offset:{off}")
    return I(f"ds_read_b128 {AR[4*slot:4*slot+4]}, {vAd2} offset:{off-65536}")
def b_read(ks):
    P.wait(xt[ks])
    o = 1024*(ks % 7)
    return [I(f"ds_read_b64_tr_b16 {Bf[4*ks:4*ks+2]}, {vTr} offset:{o}"),
            I(f"ds_read_b64_tr_b16 {Bf[4*ks+2:4*ks+4]}, {vTr} offset:{o+256}")]
jobs = [(it, ks, (ks*4+it)*1024) for ks in range(32) for it in range(4)]
jobs += [(it, ks, (it-4)*32768 + ks*1024) for it in range(4, 7) for ks in range(32)]
accmap = {0:0, 1:1, 2:2, 3:3, 4:4, 5:0, 6:1}
LOOK = 6
atok = {}; btok = {}
btok[0] = b_read(0)
for n in range(LOOK): atok[n] = a_read(n % 8, jobs[n][2])
side = []
vRS = V.alloc(); vNM = V.alloc()
vHS = V.alloc()
sHS = S.alloc()
I(f"s_mul_i32 {sHS}, {sSB}, 112")
I(f"s_mul_i32 {sT[0]}, {sC1}, 7")
I(f"s_add_u32 {sHS}, {sHS}, {sT[0]}")
I(f"s_lshl_b32 {sHS}, {sHS}, 10")
I(f"s_add_u32 {sHS}, {sHS}, {HH}")
I(f"v_add_u32 {vHS}, 4096, {vL16}")
cT = V.alloc(8); hp = V.alloc(4)
hst = {}
def epilogue(it):
    ac = ACC[accmap[it]]; ops = []; tk = {}
    for g in range(4):
        def rd(g=g):
            tk[g] = [I(f"ds_read_b128 {cT[0:4]}, {vCT} offset:{it*128 + g*32}"),
                     I(f"ds_read_b128 {cT[4:8]}, {vCT} offset:{896 + it*128 + g*32}")]
        ops.append(rd)
        ops.append(None); ops.append(None); ops.append(None)
        for r in range(4):
            def f1(g=g, r=r):
                if r == 0: P.wait(tk[g])
                I(f"v_fmac_f32 {ac[4*g+r]}, {vNM}, {cT[r]}")
            ops.append(f1)
        for r in range(4):
            ops.append(lambda g=g, r=r: I(f"v_fma_f32 {ac[4*g+r]}, {ac[4*g+r]}, {vRS}, {cT[4+r]}"))
    for r in range(8): ops.append(lambda r=r: I(f"v_mul_f32 {ac[r]}, {ac[r]}, {ac[8+r]}"))
    for n in range(4): ops.append(lambda n=n: I(f"v_cvt_pk_bf16_f32 {hp[n]}, {ac[2*n]}, {ac[2*n+1]}"))
    def st():
        hst[it] = I(f"buffer_store_dwordx4 {hp}, {vL16 if it < 4 else vHS}, {rWS}, {sHS} offen offset:{1024*(it&3)} sc1")
    ops.append(st)
    return ops
vF5 = V.alloc()
I(f"s_lshl_b32 {sT[0]}, {sSB}, 4")
I(f"s_add_u32 {sT[0]}, {sT[0]}, {sC1}")
I(f"s_lshl_b32 {sT[0]}, {sT[0]}, {FSH}")
I(f"v_mov_b32 {vF5}, {sT[0]}")
I(f"v_mov_b32 {t1}, {OOB}")
I(f"v_cmp_eq_u32 vcc, 0, {vL}")
I(f"v_cndmask_b32 {vF5}, {t1}, {vF5}, vcc")
wtok = {}
for n, (it, ks, off) in enumerate(jobs):
    if it == 0 and ks in (8, 16, 24):
        P.wait(atok[n])
        I("s_barrier")
        tt = ks//8 - 1
        wtok[tt] = w_dma(131072 + tt*32768, tt*32768) + w_dma(131072 + tt*32768 + 16384, tt*32768 + 16384)
    if n == 128 + 16:
        P.wait(wtok[2]); I("s_barrier")
    P.wait(atok[n], btok[ks])
    ac = ACC[accmap[it]]
    I(f"v_mfma_f32_32x32x16_bf16 {ac}, {AR[4*(n%8):4*(n%8)+4]}, {Bf[4*ks:4*ks+4]}, {0 if ks==0 else ac}")
    if n + LOOK < len(jobs): atok[n+LOOK] = a_read((n+LOOK) % 8, jobs[n+LOOK][2])
    if it < 4:
        if it == 0 and ks+1 < 32: btok[ks+1] = b_read(ks+1)
        if it == 1 and ks+7 < 32: x_dma(ks+7)
        if it >= 2:
            for r in (2*(it-2), 2*(it-2)+1):
                z = (ks == 0 and r == 0)
                I(f"v_dot2_f32_bf16 {vSum}, {Bf[4*ks+r]}, {sONE}, {0 if z else vSum}")
                I(f"v_dot2_f32_bf16 {vSq}, {Bf[4*ks+r]}, {Bf[4*ks+r]}, {0 if z else vSq}")
    if n == 128:
        I(f"v_mov_b32 {t0}, {vSum}")
        I(f"v_mov_b32 {t1}, {vSq}")
        I(f"v_permlane32_swap_b32 {vSum}, {t0}")
        I(f"v_permlane32_swap_b32 {vSq}, {t1}")
        I(f"v_add_f32 {vSum}, {vSum}, {t0}")
        I(f"v_add_f32 {vSq}, {vSq}, {t1}")
        finish_stats(vSum, vSq, vRS, vNM, t0)
        for e in range(4): side += epilogue(e)
    if n == 161: side += epilogue(4)
    if n == 193: side += epilogue(5)
    if n > 128:
        k = 0
        while side and k < 4:
            f = side.pop(0); k += 1
            if f: f()
    if n == 159: assert 0 in hst, "tile0 epilogue not done"
    if n == 191: assert 1 in hst
while side:
    f = side.pop(0)
    if f: f()
for f in epilogue(6):
    if f: f()
stamp("gemm1 done")
P.wait_all()
post_flag(vF5, F5)
for r in ACC + [Bf, vSum, vSq, vRS, vNM, vHS, cT, hp, vAd, vAd2, vTr, vCT, vF5]: r.free()

sSQ = S.alloc(); sDQ = S.alloc()
I(f"s_lshr_b32 {sT[0]}, {sWv}, 1")
I(f"s_lshl_b32 {sSQ}, {sR64}, 1")
I(f"s_add_u32 {sSQ}, {sSQ}, {sT[0]}")
I(f"s_and_b32 {sT[0]}, {sWv}, 1")
I(f"s_lshl_b32 {sT[0]}, {sT[0]}, 5")
I(f"s_lshl_b32 {sDQ}, {sDB}, 6")
I(f"s_add_u32 {sDQ}, {sDQ}, {sT[0]}")
I(f"s_lshl_b32 {sT[0]}, {sSQ}, 15")
I(f"s_lshl_b32 {sT[1]}, {sDQ}, 6")
I(f"s_add_u32 {sT[0]}, {sT[0]}, {sT[1]}")
I(f"s_add_u32 {sT[0]}, {sT[0]}, {X1T}")
I(f"s_mov_b32 m0, {sXdst}")
for n in range(2): I(f"buffer_load_dwordx4 {vL16}, {rWS}, {sT[0]} offen offset:{1024*n} sc1 lds")
gb2 = V.alloc(2, 1)
I(f"v_lshlrev_b32 {t0}, 2, {vQ}")
I(f"v_lshl_add_u32 {t1}, {vHH}, 12, {t0}")
I(f"s_lshl_b32 {sT[0]}, {sDQ}, 2")
I(f"s_add_u32 {sT[0]}, {sT[0]}, {MODP + 5*8192}")
for n in range(2): I(f"buffer_load_dword {gb2[n]}, {t1}, {rWS}, {sT[0]} offen offset:{2048*n} sc1")
I(f"v_and_b32 {t1}, 1, {vL}")
I(f"v_lshlrev_b32 {t1}, 4, {t1}")
I(f"v_bfe_u32 {t2}, {vL}, 1, 2")
I(f"v_add_u32 {t1}, {t1}, {t2}")
I(f"s_lshl_b32 {sT[0]}, {sR64}, 5")
I(f"s_lshl_b32 {sT[1]}, {sWv}, 2")
I(f"s_add_u32 {sT[0]}, {sT[0]}, {sT[1]}")
I(f"v_add_u32 {t1}, {sT[0]}, {t1}")
I(f"v_lshlrev_b32 {vPG}, {FSH}, {t1}")
poll(vPG, F5)
stamp("F5 seen")
I(f"v_add_f32 {gb2[0]}, {gb2[0]}, {gb2[1]}")
I(f"v_mov_b32 {gb2[1]}, {gb2[0]}")
I(f"v_permlane32_swap_b32 {gb2[0]}, {gb2[1]}")
I(f"v_add_f32 {gb2[0]}, {gb2[0]}, {gb2[1]}")
round_bf16(gb2[0], gb2[0])
I(f"v_add_u32 {t0}, {sXdst}, {t0}")
I(f"ds_write_b32 {t0}, {gb2[0]} offset:2048")
gb2.free()
sH0 = S.alloc(); sH1 = S.alloc()
I(f"s_mul_i32 {sT[1]}, {sWv}, 28")
I(f"s_mul_i32 {sH0}, {sSQ}, 112")
I(f"s_add_u32 {sH0}, {sH0}, {sT[1]}")
I(f"s_lshl_b32 {sH0}, {sH0}, 10")
I(f"s_add_u32 {sH0}, {sH0}, {HH}")
I(f"s_xor_b32 {sT[0]}, {sSQ}, 1")
I(f"s_mul_i32 {sH1}, {sT[0]}, 112")
I(f"s_add_u32 {sH1}, {sH1}, {sT[1]}")
I(f"s_lshl_b32 {sH1}, {sH1}, 10")
I(f"s_add_u32 {sH1}, {sH1}, {HH}")
G = [V.alloc(16) for _ in range(4)]
NB = 20
HB = Frags(2*NB)
ht = {}
def h_load(n):
    if n and n % 4 == 0:
        I(f"s_add_u32 {sH0}, {sH0}, 4096"); I(f"s_add_u32 {sH1}, {sH1}, 4096")
    s_ = n % NB
    ht[n] = [I(f"buffer_load_dwordx4 {HB[8*s_:8*s_+4]}, {vL16}, {rWS}, {sH0} offen offset:{1024*(n&3)} sc1"),
             I(f"buffer_load_dwordx4 {HB[8*s_+4:8*s_+8]}, {vL16}, {rWS}, {sH1} offen offset:{1024*(n&3)} sc1")]
for n in range(NB): h_load(n)
P.wait(twdl)
for n in range(28):
    s_ = n % NB
    for q in range(4):
        dt, st = q & 1, q >> 1
        P.wait(ht[n][st])
        I(f"v_mfma_f32_32x32x16_bf16 {G[q]}, {AWD[8*n+4*dt:8*n+4*dt+4]}, {HB[8*s_+4*st:8*s_+4*st+4]}, {0 if n==0 else G[q]}")
    if n + NB < 28: h_load(n + NB)
HB.free()
stamp("gemm2 mfma done")
I("s_barrier")
for q in range(1, 4):
    I(f"s_xor_b32 {sT[0]}, {sWv}, {q}")
    I(f"s_mul_i32 {sT[0]}, {sT[0]}, 12288")
    I(f"v_add_u32 {t0}, {sT[0]}, {vL16}")
    for r in range(4):
        I(f"ds_write_b128 {t0}, {G[q][4*r:4*r+4]} offset:{(q-1)*4096 + r*1024}")
XQ = V.alloc(8); GB = V.alloc(16)
I(f"v_lshl_add_u32 {t1}, {vHH}, 10, {vTr0}")
I(f"v_add_u32 {t1}, {sXdst}, {t1}")
for n in range(4): I(f"ds_read_b64_tr_b16 {XQ[2*n:2*n+2]}, {t1} offset:{256*n}")
I(f"v_lshlrev_b32 {t1}, 6, {vHH}")
I(f"v_add_u32 {t1}, {sXdst}, {t1}")
for n in range(4): I(f"ds_read_b128 {GB[4*n:4*n+4]}, {t1} offset:{2048+16*n}")
P.wait_all(vm=False)
I("s_barrier")
I(f"s_mul_i32 {sT[0]}, {sWv}, 12288")
I(f"v_add_u32 {t0}, {sT[0]}, {vL16}")
tl = {}
for q in range(1, 4):
    tl[q] = [I(f"ds_read_b128 {G[q][4*r:4*r+4]}, {t0} offset:{(q-1)*4096 + r*1024}") for r in range(4)]
I(f"s_lshl_b32 {sT[0]}, {sSQ}, 15")
I(f"s_lshl_b32 {sT[1]}, {sDQ}, 1")
I(f"s_add_u32 {sT[0]}, {sT[0]}, {sT[1]}")
I(f"v_lshlrev_b32 {t1}, 10, {vQ}")
I(f"v_lshl_add_u32 {t1}, {vHH}, 5, {t1}")
for q in range(1, 4):
    P.wait(tl[q])
    for r in range(0, 16, 2):
        I(f"v_pk_add_f32 {G[0][r:r+2]}, {G[0][r:r+2]}, {G[q][r:r+2]}")
OUTr = V.alloc(8)
for rho in range(8):
    I(f"v_lshlrev_b32 {G[1][0]}, 16, {XQ[rho]}")
    I(f"v_and_b32 {G[1][1]}, 0xffff0000, {XQ[rho]}")
    I(f"v_fmac_f32 {G[1][0]}, {G[0][rho]}, {GB[2*rho]}")
    I(f"v_fmac_f32 {G[1][1]}, {G[0][rho+8]}, {GB[2*rho+1]}")
    I(f"v_cvt_pk_bf16_f32 {OUTr[rho]}, {G[1][0]}, {G[1][1]}")
I(f"buffer_store_dwordx4 {OUTr[0:4]}, {t1}, {rOUT}, {sT[0]} offen")
I(f"buffer_store_dwordx4 {OUTr[4:8]}, {t1}, {rOUT}, {sT[0]} offen offset:16")
stamp("end")
if TSTAMP:
    P.wait_all()
    stamp("drained")
    I(f"s_memrealtime {sTs}")
    I("s_waitcnt lgkmcnt(0)")
    I(f"v_mov_b32 {vTsV}, {sR0[0]}")
    I(f"buffer_store_dword {vTsV}, {vTsA}, {rWS}, 0 offen offset:248")
    I(f"v_mov_b32 {t0}, {sTs[0]}")
    I(f"buffer_store_dword {t0}, {vTsA}, {rWS}, 0 offen offset:252")
if PROBE:
    I(f"s_sub_u32 {sT[0]}, {sTs[0]}, {sT0[0]}")
    I(f"s_min_u32 {sT[0]}, {sT[0]}, 100000")
    I(f"s_memrealtime {sT0}")
    I("L_spin:")
    I(f"s_memrealtime {sTs}")
    I("s_waitcnt lgkmcnt(0)")
    I(f"s_sub_u32 {sT[1]}, {sTs[0]}, {sT0[0]}")
    I(f"s_cmp_lt_u32 {sT[1]}, {sT[0]}")
    I("s_cbranch_scc1 L_spin")
I("L_end:")
I("s_endpgm")

body = P.finalize()
ref = open(f"cdna_kernels/{NAME}.s.ref").read()
hdr = "".join(l + "\n" for l in ref.split("\n") if l.startswith(";") and "@launch" not in l)
out = hdr + f"; @launch grid=(256,1,1) block=(256,1,1) lds={LDS_SIZE}\n"
out += f"""; generated by gen1.py
.amdgcn_target "amdgcn-amd-amdhsa--gfx950"
.text
.globl {NAME}_kernel
.p2align 8
.type {NAME}_kernel,@function
{NAME}_kernel:
{body}
.section .rodata,"a"
.p2align 6
.amdhsa_kernel {NAME}_kernel
  .amdhsa_next_free_vgpr 512
  .amdhsa_next_free_sgpr 102
  .amdhsa_accum_offset 256
  .amdhsa_group_segment_fixed_size 0
  .amdhsa_kernarg_size 120
  .amdhsa_user_sgpr_count 2
  .amdhsa_user_sgpr_kernarg_segment_ptr 1
  .amdhsa_system_sgpr_workgroup_id_x 1
.end_amdhsa_kernel
"""
dst = [a for a in sys.argv[1:] if not a.startswith('--')][0]
open(dst, "w").write(out)
print(f"instrs {len(P.ins)} nops {P.nops} vgpr hi {V.hi} sgpr hi {S.hi}", file=sys.stderr)
```

```python
import sys
from dsl import *

NAME = "adaLN_cond__ssm_conv_h3__glu_gated_bilinear__prompt"
OPT = {}
for a_ in sys.argv[1:]:
    if a_.startswith('--'):
        k, _, v = a_[2:].partition('='); OPT[k] = v if v else '1'
def opt(k, d=0): return type(d)(OPT.get(k, d))
TSTAMP = opt('ts')
PROBE = tuple(int(x) for x in OPT['probe'].split(',')) if 'probe' in OPT else None
NT = "nt" if opt('nt') else ""

EPOCH=0; F3=0x10000; FW=0x20000; F4=0x40000; F5=0x60000
MODG=0x90000; STG=0xA8000; C12=0xB0000
KVG=0x100000; XG=0x500000; X1T=0x900000; WP=0xB00000; WDP=0xF00000; HH=0x1100000; SG=0x1800000; TS=0x1900000
WS_SIZE=0x1A00000
OOB=0x80000000
FSH=6
UB=0; UCH=4608; MODL=9216; CBL=10240; C12L=11264
TAPS=15360; TCOPY=4160; TCH=33280
RED=131072
WL=0; XS=131072; XSW=7168; EX=159744
LDS_SIZE=163840

P = Prog(); I = P.I; V = P.V; A = P.A; S = P.S
S.reserve(0, 3); V.reserve(0, 1)
def srd(): return S.alloc(4, 4)
rX, rK, rV, rSH, rTP, rW, rWD, rC, rWM, rOUT, rWS = [srd() for _ in range(11)]
sPG = S.alloc(2, 2); sPU = S.alloc(2, 2); sPD = S.alloc(2, 2)
sXJ = S.alloc(); sGI = S.alloc(); sWv = S.alloc(); sSpin = S.alloc()
sT = [S.alloc() for _ in range(6)]
sZ = [S.alloc() for _ in range(2)]
sC4096 = S.alloc(); sC8192 = S.alloc(); sC12288 = S.alloc()
sPL = S.alloc(); sPH = S.alloc(); sHI = S.alloc(); sONE = S.alloc()
sD = S.alloc(); sD0 = S.alloc()
sTp = [S.alloc(2, 2), S.alloc(2, 2)]; sT0 = S.alloc(2, 2)

class Frags:
    def __init__(self, n): self.g = [V.alloc(4) for _ in range(n)]
    def __getitem__(self, i):
        if isinstance(i, slice):
            assert i.start//4 == (i.stop-1)//4
            return self.g[i.start//4][i.start%4:(i.stop-1)%4+1]
        return self.g[i//4][i%4]
    def free(self):
        for g in self.g: g.free()

nts = [0]
def stamp(name=""):
    n = nts[0]; nts[0] += 1
    if PROBE:
        if n == PROBE[0]: I(f"s_memrealtime {sT0}")
        if n == PROBE[1]: I(f"s_memrealtime {sTp[0]}")
        return
    if not TSTAMP: return
    if n >= 2: I(f"v_writelane_b32 {vTs}, {sTp[n&1][0]}, {n-2}")
    I(f"s_memtime {sTp[n&1]}")
    print(f"{n}:{name}", file=sys.stderr, end="  ")

slow = []
def check_tags(tags, reissue, toks):
    R = P.label("chk"); SL = P.label("slow"); D = P.label("ok")
    P.wait(toks)
    mn = V.alloc(); mx = V.alloc()
    I(f"{R}:")
    tg = list(tags)
    if len(tg) == 1:
        I(f"v_cmp_ne_u32 vcc, {tg[0]}, {vTag}")
    else:
        if len(tg) % 2: tg.append(tg[0])
        for i in range(0, len(tg), 2):
            I(f"v_min3_u32 {mn}, {vTag if i==0 else mn}, {tg[i]}, {tg[i+1]}")
            I(f"v_max3_u32 {mx}, {vTag if i==0 else mx}, {tg[i]}, {tg[i+1]}")
        I(f"v_cmp_ne_u32 vcc, {mn}, {mx}")
    I(f"s_cbranch_vccnz {SL}")
    I(f"{D}:")
    mn.free(); mx.free()
    save = (P.ins, P.vm, P.lg, P.vm_done, P.lg_done)
    P.ins = []
    I(f"{SL}:")
    I(f"s_add_u32 {sSpin}, {sSpin}, 1")
    I(f"s_cmp_gt_u32 {sSpin}, 200000")
    I(f"s_cbranch_scc1 {D}")
    reissue()
    I("s_waitcnt vmcnt(0)")
    I(f"s_branch {R}")
    slow.extend(P.ins)
    P.ins, P.vm, P.lg, P.vm_done, P.lg_done = save

def post_flag(vaddr, base):
    I(f"s_mov_b32 {sZ[0]}, {base}")
    return I(f"buffer_store_dword {vTag}, {vaddr}, {rWS}, {sZ[0]} offen sc1")
def flag_load(vp, vaddr, base):
    I(f"s_mov_b32 {sZ[0]}, {base}")
    return I(f"buffer_load_dword {vp}, {vaddr}, {rWS}, {sZ[0]} offen sc1")
def poll(vaddr, base):
    vp = V.alloc()
    t = flag_load(vp, vaddr, base)
    check_tags([vp], lambda: flag_load(vp, vaddr, base), t)
    vp.free()
def unpack(dst, src, hi):
    I(f"v_and_b32 {dst}, {sHI}, {src}" if hi else f"v_lshlrev_b32 {dst}, 16, {src}")
def round_bf16(dst, src):
    I(f"v_cvt_pk_bf16_f32 {dst}, {src}, {src}")
    I(f"v_and_b32 {dst}, {sHI}, {dst}")
def lane0(dst, sval, tmp):
    I(f"v_mov_b32 {dst}, {OOB}")
    I(f"v_writelane_b32 {dst}, {sval}, 0")

I("s_cmp_ge_u32 s2, 256")
I("s_cbranch_scc1 L_end")
if PROBE and PROBE[0] == -1: I(f"s_memrealtime {sT0}")
if TSTAMP:
    I(f"s_memtime {sT0}")
    sR0 = S.alloc(2, 2); I(f"s_memrealtime {sR0}")
for r, off in ((rK,8),(rV,16),(rSH,24),(rWS,112),(rC,80),(rWM,88),(rX,0),(rTP,32),(rWD,72),(rOUT,96)):
    I(f"s_load_dwordx2 {r[0:2]}, s[0:1], {off}")
I(f"s_load_dwordx2 {sPG}, s[0:1], 56")
I(f"s_load_dwordx2 {sPU}, s[0:1], 64")
I(f"s_load_dwordx2 {sPD}, s[0:1], 40")
vL = V.alloc(); vL16 = V.alloc(); vTag = V.alloc(); vHH = V.alloc(); vQ = V.alloc(); vT16 = V.alloc()
if TSTAMP: vTs = V.alloc()
t0 = V.alloc(); t1 = V.alloc(); t2 = V.alloc()
I(f"s_and_b32 {sXJ}, s2, 7")
I(f"s_lshr_b32 {sGI}, s2, 3")
I(f"v_lshrrev_b32 {t0}, 6, v0")
I(f"v_and_b32 {vL}, 63, v0")
I(f"v_readfirstlane_b32 {sWv}, {t0}")
I(f"v_lshlrev_b32 {vL16}, 4, {vL}")
I(f"v_lshlrev_b32 {vT16}, 4, v0")
if opt('cpf'):
    cpa = V.alloc(2); cpd = V.alloc(4)
    I(f"s_getpc_b64 {sTp[0]}")
    I(f"s_and_b32 {sT[0]}, {sGI}, 7")
    I(f"s_min_u32 {sT[0]}, {sT[0]}, 5")
    I(f"s_lshl_b32 {sT[0]}, {sT[0]}, 12")
    I(f"s_add_u32 {sTp[0][0]}, {sTp[0][0]}, {sT[0]}")
    I(f"s_addc_u32 {sTp[0][1]}, {sTp[0][1]}, 0")
    I(f"v_mov_b32 {cpa[1]}, {sTp[0][1]}")
    I(f"v_add_co_u32 {cpa[0]}, vcc, {sTp[0][0]}, {vT16}")
    I(f"v_addc_co_u32 {cpa[1]}, vcc, 0, {cpa[1]}, vcc")
    I(f"global_load_dwordx4 {cpd}, {cpa}, off")
for r, n in ((rK,2097152),(rV,2097152),(rSH,4096),(rWS,WS_SIZE),(rC,1024),(rWM,3145728),(rX,2097152),(rTP,2097152),(rWD,1835008),(rOUT,2097152),(rW,1835008)):
    I(f"s_mov_b32 {r[2]}, {n}")
    I(f"s_mov_b32 {r[3]}, 0x20000")
I(f"v_lshrrev_b32 {vHH}, 5, {vL}")
I(f"v_and_b32 {vQ}, 31, {vL}")
I(f"s_mov_b32 {sSpin}, 0")
I(f"s_movk_i32 {sC4096}, 0x1000")
I(f"s_movk_i32 {sC8192}, 0x2000")
I(f"s_movk_i32 {sC12288}, 0x3000")
vB = V.alloc(); vH = V.alloc(); vSH = V.alloc(); vGS = V.alloc()
I(f"s_lshl_b32 {sT[0]}, {sGI}, 16")
I(f"s_lshl_b32 {sT[1]}, {sXJ}, 7")
I(f"s_lshl_b32 {sT[2]}, {sWv}, 5")
I(f"s_add_u32 {sT[1]}, {sT[1]}, {sT[2]}")
I(f"s_add_u32 {sT[0]}, {sT[0]}, {sT[1]}")
I(f"v_lshrrev_b32 {t0}, 3, {vL}")
I(f"v_and_b32 {t1}, 7, {vL}")
I(f"v_lshlrev_b32 {vB}, 13, {t0}")
I(f"v_lshl_add_u32 {vB}, {t1}, 2, {vB}")
I(f"v_add_u32 {vB}, {sT[0]}, {vB}")
I(f"v_subrev_u32 {vH}, 3072, {vB}")
I(f"s_lshl_b32 {sT[2]}, {sT[1]}, 2")
I(f"v_lshlrev_b32 {vSH}, 4, {t1}")
I(f"v_add_u32 {vSH}, {sT[2]}, {vSH}")
I(f"v_mov_b32 {t2}, {EPOCH}")
I("s_waitcnt lgkmcnt(0)")
WSOFF = opt('wsoff', 0) << 20
if WSOFF:
    I(f"s_add_u32 {rWS[0]}, {rWS[0]}, {WSOFF}")
    I(f"s_addc_u32 {rWS[1]}, {rWS[1]}, 0")
Kr = V.alloc(11, 1); Vr = V.alloc(8, 1); SHr = V.alloc(4)
tep = I(f"buffer_load_dword {vTag}, {t2}, {rWS}, 0 offen sc1")
tsh = I(f"buffer_load_dwordx4 {SHr}, {vSH}, {rSH}, 0 offen")
tk = []
for e in range(3): tk.append(I(f"buffer_load_dword {Kr[e]}, {vH}, {rK}, 0 offen offset:{e*1024} {NT}"))
for e in range(8): tk.append(I(f"buffer_load_dword {Kr[3+e]}, {vB}, {rK}, {sC4096 if e>=4 else 0} offen offset:{(e&3)*1024} {NT}"))
tv = [I(f"buffer_load_dword {Vr[e]}, {vB}, {rV}, {sC4096 if e>=4 else 0} offen offset:{(e&3)*1024} {NT}") for e in range(8)]
vH.free(); vSH.free()
I(f"s_lshl_b32 {sT[2]}, {sT[1]}, 12")
I(f"s_lshl_b32 {sT[3]}, {sGI}, 8")
I(f"s_add_u32 {sT[2]}, {sT[2]}, {sT[3]}")
I(f"v_lshlrev_b32 {vGS}, 14, {t1}")
I(f"v_lshl_add_u32 {vGS}, {t0}, 4, {vGS}")
I(f"v_add_u32 {vGS}, {sT[2]}, {vGS}")
I(f"s_mov_b32 {sPL}, 0x05040100")
I(f"s_mov_b32 {sPH}, 0x07060302")
I(f"s_mov_b32 {sHI}, 0xffff0000")
I(f"s_mov_b32 {sONE}, 0x3f803f80")
sM = S.alloc(); sKS = S.alloc(); sCB = S.alloc()
I(f"s_and_b32 {sM}, {sGI}, 1")
I(f"s_cmp_eq_u32 {sM}, 0")
I(f"s_cselect_b32 {rW[0]}, {sPG[0]}, {sPU[0]}")
I(f"s_cselect_b32 {rW[1]}, {sPG[1]}, {sPU[1]}")
I(f"s_lshl_b32 {sD0}, {sXJ}, 6")
I(f"s_lshl_b32 {sT[4]}, {sGI}, 1")
I(f"s_add_u32 {sD0}, {sD0}, {sT[4]}")
I(f"s_lshl_b32 {sT[4]}, {sD0}, 1")
I(f"s_load_dword {sD}, {sPD}, {sT[4]}")
I(f"s_lshl_b32 {sKS}, {sXJ}, 2")
I(f"s_add_u32 {sKS}, {sKS}, {sWv}")
I(f"s_lshr_b32 {sCB}, {sGI}, 1")
for r in (sPG, sPU): r.free()

G = {}
def L_mod():
    vMW = V.alloc(); vMC = V.alloc()
    G['Cr'] = Cr = V.alloc(4, 1); G['WMr'] = WMr = V.alloc(16)
    I(f"s_and_b32 {sT[4]}, {sGI}, 3")
    I(f"s_lshl_b32 {sT[4]}, {sT[4]}, 7")
    I(f"v_lshrrev_b32 {t2}, 3, v0")
    I(f"v_add_u32 {t2}, {sT[4]}, {t2}")
    I(f"v_lshlrev_b32 {vMC}, 1, {t2}")
    I(f"v_mul_u32_u24 {vMW}, 6144, {t2}")
    I(f"v_and_b32 {t2}, 7, v0")
    I(f"v_lshl_add_u32 {vMW}, {t2}, 4, {vMW}")
    I(f"s_lshr_b32 {sT[4]}, {sGI}, 2")
    I(f"s_lshl_b32 {sT[4]}, {sT[4]}, 10")
    I(f"s_lshl_b32 {sT[5]}, {sXJ}, 7")
    I(f"s_add_u32 {sT[4]}, {sT[4]}, {sT[5]}")
    I(f"s_cmp_lt_u32 {sGI}, 24")
    I(f"s_cselect_b32 {sT[4]}, {sT[4]}, {OOB}")
    I(f"v_add_u32 {vMW}, {sT[4]}, {vMW}")
    G['tc'] = [I(f"buffer_load_ushort {Cr[i]}, {vMC}, {rC}, 0 offen offset:{64*i}") for i in range(4)]
    G['twm'] = []
    for i in range(4):
        I(f"s_mov_b32 {sT[5]}, {i*32*6144}")
        G['twm'].append(I(f"buffer_load_dwordx4 {WMr[4*i:4*i+4]}, {vMW}, {rWM}, {sT[5]} offen {NT}"))
    vMW.free(); vMC.free()
def L_taps():
    G['TP'] = TP = [V.alloc(8), V.alloc(8)]
    I(f"s_lshl_b32 {sT[4]}, {sD0}, 12")
    I(f"s_add_u32 {sT[5]}, {sT[4]}, 4096")
    I(f"v_subrev_u32 {t2}, 16, {vT16}")
    I(f"v_min_u32 {t2}, {OOB}, {t2}")
    G['ttp'] = []
    for c in range(2):
        G['ttp'].append([I(f"buffer_load_dwordx4 {TP[c][4:8]}, {vT16}, {rTP}, {sT[4+c]} offen"),
                         I(f"buffer_load_dwordx4 {TP[c][0:4]}, {t2}, {rTP}, {sT[4+c]} offen")])
def L_w():
    G['WR'] = WR = V.alloc(16)
    I(f"s_mul_i32 {sT[0]}, {sKS}, {16*3584}")
    I(f"s_mul_i32 {sT[1]}, {sCB}, 224")
    I(f"s_add_u32 {sT[0]}, {sT[0]}, {sT[1]}")
    I(f"v_mul_u32_u24 {t2}, {8*3584}, {vHH}")
    I(f"v_lshl_add_u32 {t2}, {vQ}, 3, {t2}")
    G['twr'] = []
    for e in range(8):
        if e and e % 2 == 0: I(f"s_add_u32 {sT[0]}, {sT[0]}, 7168")
        G['twr'].append(I(f"buffer_load_dwordx2 {WR[2*e:2*e+2]}, {t2}, {rW}, {sT[0]} offen offset:{(e&1)*3584} {NT}"))
def L_x():
    G['Xr'] = Xr = V.alloc(8, 1); G['XR'] = XR = V.alloc(8)
    G['tx'] = [I(f"buffer_load_dword {Xr[e]}, {vB}, {rX}, {sC4096 if e>=4 else 0} offen offset:{(e&3)*1024}") for e in range(8)]
    I(f"s_lshl_b32 {sT[0]}, s2, 13")
    I(f"s_lshl_b32 {sT[1]}, {sWv}, 11")
    I(f"s_add_u32 {sT[0]}, {sT[0]}, {sT[1]}")
    G['txr'] = [I(f"buffer_load_dwordx4 {XR[4*i:4*i+4]}, {vL16}, {rX}, {sT[0]} offen offset:{1024*i}") for i in range(2)]
    vB.free()
def L_wd():
    G['WDr'] = WDr = V.alloc(8, 1)
    I(f"s_lshl_b32 {sT[0]}, {sGI}, 2")
    I(f"s_add_u32 {sT[0]}, {sT[0]}, {sWv}")
    I(f"s_lshl_b32 {sT[1]}, {sT[0]}, 14")
    I(f"s_lshl_b32 {sT[2]}, {sXJ}, 7")
    I(f"s_add_u32 {sT[1]}, {sT[1]}, {sT[2]}")
    I(f"v_lshlrev_b32 {t2}, 10, {vHH}")
    I(f"v_lshl_add_u32 {t2}, {vQ}, 2, {t2}")
    I(f"v_add_u32 {t2}, {sT[1]}, {t2}")
    G['twd'] = []
    for e in range(8):
        g, r = e >> 2, e & 3
        G['twd'].append(I(f"buffer_load_dword {WDr[e]}, {t2}, {rWD}, {[0,sC4096,sC8192,sC12288][r]} offen offset:{2048*g} {NT}"))
def zero_pads():
    z4 = V.alloc(4)
    for i in range(4): I(f"v_mov_b32 {z4[i]}, 0")
    I(f"v_lshlrev_b32 {t2}, 4, {vQ}")
    I(f"v_mul_u32_u24 {t0}, {UCH}, {vHH}")
    I(f"v_add_u32 {t2}, {t2}, {t0}")
    I(f"ds_write_b128 {t2}, {z4} offset:{UB+4096}")
    I(f"v_and_b32 {t2}, 15, {vL}")
    I(f"v_mul_u32_u24 {t2}, {TCOPY}, {t2}")
    I(f"ds_write_b128 {t2}, {z4} offset:{TAPS}")
    z4.free()
def C_tag():
    P.wait(tep)
    if opt('cpf'): cpa.free(); cpd.free()
    I(f"s_mov_b32 {sT[0]}, 0x9E3779B1")
    I(f"v_mul_lo_u32 {vTag}, {vTag}, {sT[0]}")
    I(f"v_add_u32 {vTag}, 0x7F4A7C15, {vTag}")
    G['GR'] = GR = V.alloc(16)
    for i in range(8): I(f"v_mov_b32 {GR[2*i+1]}, {vTag}")
def gran_store(base):
    GR = G['GR']
    I(f"s_mov_b32 {sT[0]}, {base}")
    I(f"s_mov_b32 {sT[1]}, {base+8192}")
    for c in range(2):
        for h in range(2):
            I(f"buffer_store_dwordx4 {GR[8*c+4*h:8*c+4*h+4]}, {vGS}, {rWS}, {sT[c]} offen offset:{128*h} sc1")
def C_kv():
    GR = G['GR']
    kf = V.alloc(22); wp = V.alloc(8); acc = V.alloc(16)
    P.wait(tsh)
    for j in range(4):
        for c in range(2): unpack(wp[2*j+c], SHr[2*c + (j>>1)], j & 1)
    P.wait(tk)
    for e in range(11):
        unpack(kf[2*e], Kr[e], 0); unpack(kf[2*e+1], Kr[e], 1)
    for e in range(8): I(f"v_pk_mul_f32 {acc[2*e:2*e+2]}, {kf[2*e:2*e+2]}, {wp[6:8]}")
    for j in (2, 1, 0):
        for e in range(8):
            q = e + 3 - j
            I(f"v_pk_fma_f32 {acc[2*e:2*e+2]}, {kf[2*q:2*q+2]}, {wp[2*j:2*j+2]}, {acc[2*e:2*e+2]}")
    P.wait(tv)
    for e in range(8):
        unpack(kf[2*e], Vr[e], 0); unpack(kf[2*e+1], Vr[e], 1)
    for e in range(8): I(f"v_pk_mul_f32 {acc[2*e:2*e+2]}, {acc[2*e:2*e+2]}, {kf[2*e:2*e+2]}")
    for c in range(2):
        for n in range(4):
            I(f"v_cvt_pk_bf16_f32 {GR[8*c+2*n]}, {acc[2*(7-2*n)+c]}, {acc[2*(6-2*n)+c]}")
    gran_store(KVG)
    for r in (kf, wp, acc, Kr, Vr, SHr): r.free()
def C_mod():
    Cr, WMr = G['Cr'], G['WMr']
    P.wait(G['tc'])
    sl = V.alloc(4, 1); sp = V.alloc(2, 1)
    for i in range(4): I(f"v_lshlrev_b32 {Cr[i]}, 16, {Cr[i]}")
    for i in range(4): I(f"v_mul_f32 {sl[i]}, 0xbfb8aa3b, {Cr[i]}")
    for i in range(4): I(f"v_exp_f32 {sl[i]}, {sl[i]}")
    for i in range(4): I(f"v_add_f32 {sl[i]}, 1.0, {sl[i]}")
    for i in range(4): I(f"v_rcp_f32 {sl[i]}, {sl[i]}")
    for i in range(4): I(f"v_mul_f32 {sl[i]}, {sl[i]}, {Cr[i]}")
    I(f"v_cvt_pk_bf16_f32 {sp[0]}, {sl[0]}, {sl[1]}")
    I(f"v_cvt_pk_bf16_f32 {sp[1]}, {sl[2]}, {sl[3]}")
    I(f"v_and_b32 {t0}, 7, {vL}")
    I(f"v_lshlrev_b32 {t0}, 7, {t0}")
    I(f"v_lshrrev_b32 {t1}, 4, {vL}")
    I(f"v_lshl_add_u32 {t0}, {t1}, 5, {t0}")
    I(f"s_lshl_b32 {sT[0]}, {sWv}, 2")
    I(f"v_add_u32 {t0}, {sT[0]}, {t0}")
    ma = V.alloc(8, 1); mp = V.alloc(8, 1)
    for half in range(2):
        P.wait(G['twm'][2*half:2*half+2])
        for j in range(4):
            I(f"v_perm_b32 {mp[2*j]}, {WMr[8*half+4+j]}, {WMr[8*half+j]}, {sPL}")
            I(f"v_perm_b32 {mp[2*j+1]}, {WMr[8*half+4+j]}, {WMr[8*half+j]}, {sPH}")
        for j in range(8):
            I(f"v_dot2_f32_bf16 {ma[j]}, {mp[j]}, {sp[half]}, {0 if half==0 else ma[j]}")
    for i in range(4): I(f"v_permlane32_swap_b32 {ma[i]}, {ma[i+4]}")
    for i in range(4): I(f"v_add_f32 {ma[i]}, {ma[i]}, {ma[i+4]}")
    for i in range(2): I(f"v_permlane16_swap_b32 {ma[i]}, {ma[i+2]}")
    for i in range(2): I(f"v_add_f32 {ma[i]}, {ma[i]}, {ma[i+2]}")
    for i in range(2): I(f"v_add_f32_dpp {ma[i]}, {ma[i]}, {ma[i]} row_ror:8 row_mask:0xf bank_mask:0xf")
    I(f"ds_write_b32 {t0}, {ma[0]} offset:{MODL}")
    I(f"ds_write_b32 {t0}, {ma[1]} offset:{MODL+16}")
    for r in (sl, sp, ma, mp, Cr, WMr): r.free()
    I(f"s_lshl_b32 {sT[0]}, {sGI}, 12")
    I(f"s_lshl_b32 {sT[1]}, {sXJ}, 9")
    I(f"s_add_u32 {sT[0]}, {sT[0]}, {sT[1]}")
    I(f"s_add_u32 {sT[0]}, {sT[0]}, {MODG}")
    I(f"s_cmp_lt_u32 {sGI}, 24")
    I(f"s_cselect_b32 {sT[0]}, {sT[0]}, {OOB}")
    I(f"s_cmp_eq_u32 {sWv}, 1")
    I(f"s_cselect_b32 {sT[0]}, {sT[0]}, {OOB}")
    I(f"v_lshlrev_b32 {t0}, 3, {vL}")
    I(f"v_add_u32 {t0}, {sT[0]}, {t0}")
    I("s_waitcnt lgkmcnt(0)"); P.lg_done = P.lg
    I("s_barrier")
    m4 = V.alloc(4)
    tl = I(f"ds_read_b128 {m4}, {vL16} offset:{MODL}")
    P.wait(tl)
    I(f"v_add_f32 {m4[0]}, {m4[0]}, {m4[1]}")
    I(f"v_add_f32 {m4[2]}, {m4[2]}, {m4[3]}")
    I(f"v_mov_b32 {m4[1]}, {vTag}")
    I(f"v_add_f32 {m4[0]}, {m4[0]}, {m4[2]}")
    I(f"buffer_store_dwordx2 {m4[0:2]}, {t0}, {rWS}, 0 offen sc1")
    m4.free()
def C_taps():
    TP = G['TP']
    E1 = V.alloc(6); O0 = V.alloc(6); O1 = V.alloc(6)
    I(f"v_add_u32 {t2}, {TCH}, {vT16}")
    for c in range(2):
        d = TP[c]; ad = vT16 if c == 0 else t2
        P.wait(G['ttp'][c])
        def wr(o, regs): I(f"ds_write_b128 {ad}, {regs} offset:{TAPS + 16 + (o-1)*TCOPY}")
        wr(4, d[2:6]); wr(8, d[4:8])
        for j in range(6): I(f"v_alignbit_b32 {O0[j]}, {d[j+1]}, {d[j]}, 16")
        wr(1, O0[0:4]); wr(5, O0[2:6])
        for j in range(6): I(f"v_alignbit_b32 {O1[j]}, {d[j+2]}, {d[j+1]}, 16")
        wr(3, O1[0:4]); wr(7, O1[2:6])
        for j in range(6): I(f"v_mov_b32 {E1[j]}, {d[j+1]}")
        wr(2, E1[0:4]); wr(6, E1[2:6])
    for r in TP + [E1, O0, O1]: r.free()
def gran_addr():
    G['vGL'] = vGL = V.alloc()
    I(f"v_lshrrev_b32 {t0}, 3, v0")
    I(f"v_and_b32 {t1}, 7, v0")
    I(f"v_lshlrev_b32 {vGL}, 8, {t0}")
    I(f"v_lshl_add_u32 {vGL}, {t1}, 4, {vGL}")
    I(f"s_lshl_b32 {sT[0]}, {sD0}, 13")
    I(f"v_add_u32 {vGL}, {sT[0]}, {vGL}")
def gran_load(R, base):
    I(f"s_mov_b32 {sZ[0]}, {base}")
    I(f"s_mov_b32 {sZ[1]}, {base+8192}")
    return [I(f"buffer_load_dwordx4 {R[8*c+4*h:8*c+4*h+4]}, {G['vGL']}, {rWS}, {sZ[c]} offen offset:{128*h} sc1") for c in range(2) for h in range(2)]
def L_u():
    G['UR'] = Frags(4)
    G['tu'] = gran_load(G['UR'], KVG)
def C_u():
    UR = G['UR']
    I(f"v_sub_u32 {t2}, 4080, {vT16}")
    check_tags([UR[2*i+1] for i in range(8)], lambda: gran_load(UR, KVG), G['tu'])
    for c in range(2):
        I(f"v_mov_b32 {UR[8*c+1]}, {UR[8*c+2]}")
        I(f"v_mov_b32 {UR[8*c+2]}, {UR[8*c+4]}")
        I(f"v_mov_b32 {UR[8*c+3]}, {UR[8*c+6]}")
        I(f"ds_write_b128 {t2}, {UR[8*c:8*c+4]} offset:{UB+c*UCH}")
    UR.g[1].free(); UR.g[3].free()
    G['KVr'] = [UR.g[0], UR.g[2]]
def C_x():
    Xr, XR, GR = G['Xr'], G['XR'], G['GR']
    P.wait(G['tx'])
    for c in range(2):
        for n in range(4):
            I(f"v_perm_b32 {GR[8*c+2*n]}, {Xr[2*n+1]}, {Xr[2*n]}, {sPH if c else sPL}")
    gran_store(XG)
    Xr.free(); vGS.free()
    P.wait(G['txr'])
    q4 = V.alloc(4)
    for n in range(4):
        for r in range(2):
            I(f"v_dot2_f32_bf16 {q4[2*r]}, {XR[4*r+n]}, {sONE}, {0 if n==0 else q4[2*r]}")
            I(f"v_dot2_f32_bf16 {q4[2*r+1]}, {XR[4*r+n]}, {XR[4*r+n]}, {0 if n==0 else q4[2*r+1]}")
    I(f"v_permlane32_swap_b32 {q4[0]}, {q4[2]}")
    I(f"v_permlane32_swap_b32 {q4[1]}, {q4[3]}")
    I(f"v_add_f32 {q4[0]}, {q4[0]}, {q4[2]}")
    I(f"v_add_f32 {q4[1]}, {q4[1]}, {q4[3]}")
    I(f"v_permlane16_swap_b32 {q4[0]}, {q4[1]}")
    I(f"v_add_f32 {q4[0]}, {q4[0]}, {q4[1]}")
    for sh in (8, 4, 2, 1):
        I(f"v_add_f32_dpp {q4[0]}, {q4[0]}, {q4[0]} row_ror:{sh} row_mask:0xf bank_mask:0xf")
    I(f"v_mov_b32 {q4[1]}, {q4[0]}")
    I(f"v_permlane16_swap_b32 {q4[0]}, {q4[1]}")
    finish_stats(q4[0], q4[1], q4[3], t0)
    I(f"v_rsq_f32 {q4[2]}, {t0}")
    I(f"s_lshl_b32 {sT[0]}, s2, 4")
    I(f"s_lshl_b32 {sT[1]}, {sWv}, 12")
    I(f"s_add_u32 {sT[0]}, {sT[0]}, {sT[1]}")
    I(f"s_add_u32 {sT[0]}, {sT[0]}, {STG}")
    I(f"v_cvt_pk_bf16_f32 {q4[0]}, {q4[3]}, {q4[2]}")
    I(f"v_mov_b32 {q4[1]}, {vTag}")
    I(f"v_mov_b32 {q4[2]}, {q4[0]}")
    I(f"v_mov_b32 {q4[3]}, {vTag}")
    I(f"v_permlane32_swap_b32 {q4[0]}, {q4[2]}")
    lane0(t0, sT[0], t1)
    I(f"buffer_store_dwordx4 {q4}, {t0}, {rWS}, 0 offen sc1")
    XR.free(); q4.free(); GR.free()
def finish_stats(vsum, vsq, vnm, vve):
    I(f"v_mul_f32 {vnm}, 0xbb000000, {vsum}")
    I(f"v_mul_f32 {vsq}, 0x3b000000, {vsq}")
    I(f"v_fma_f32 {vve}, -{vnm}, {vnm}, {vsq}")
    I(f"v_max_f32 {vve}, 0, {vve}")
    I(f"v_add_f32 {vve}, 0x3727c5ac, {vve}")
def C_wd():
    WDr = G['WDr']
    vWDS = V.alloc(); wo = V.alloc(8)
    I(f"s_lshl_b32 {sT[0]}, {sGI}, 2")
    I(f"s_add_u32 {sT[0]}, {sT[0]}, {sWv}")
    I(f"s_mul_i32 {sT[1]}, {sXJ}, 112")
    I(f"s_add_u32 {sT[1]}, {sT[1]}, {sT[0]}")
    I(f"s_lshl_b32 {sT[1]}, {sT[1]}, 11")
    I(f"s_add_u32 {sT[1]}, {sT[1]}, {WDP}")
    I(f"s_cmp_lt_u32 {sGI}, 28")
    I(f"s_cselect_b32 {sT[1]}, {sT[1]}, {OOB}")
    I(f"v_lshrrev_b32 {t0}, 4, {vQ}")
    I(f"v_lshlrev_b32 {vWDS}, 10, {t0}")
    I(f"v_lshl_add_u32 {vWDS}, {vHH}, 9, {vWDS}")
    I(f"v_bfe_u32 {t0}, {vQ}, 2, 1")
    I(f"v_lshl_add_u32 {vWDS}, {t0}, 7, {vWDS}")
    I(f"v_bfe_u32 {t0}, {vQ}, 3, 1")
    I(f"v_lshl_add_u32 {vWDS}, {t0}, 6, {vWDS}")
    I(f"v_and_b32 {t0}, 3, {vQ}")
    I(f"v_lshl_add_u32 {vWDS}, {t0}, 4, {vWDS}")
    I(f"v_add_u32 {vWDS}, {sT[1]}, {vWDS}")
    P.wait(G['twd'])
    for j in range(2):
        for n in range(4):
            I(f"v_perm_b32 {wo[4*j+n]}, {WDr[2*n+1]}, {WDr[2*n]}, {sPH if j else sPL}")
    G['twds'] = [I(f"buffer_store_dwordx4 {wo[0:4]}, {vWDS}, {rWS}, 0 offen sc1"),
                 I(f"buffer_store_dwordx4 {wo[4:8]}, {vWDS}, {rWS}, 0 offen offset:256 sc1")]
    for r in (WDr, vWDS, wo): r.free()
def F_wd():
    I(f"s_lshl_b32 {sT[0]}, {sXJ}, 7")
    I(f"s_lshl_b32 {sT[1]}, {sGI}, 2")
    I(f"s_add_u32 {sT[0]}, {sT[0]}, {sT[1]}")
    I(f"s_add_u32 {sT[0]}, {sT[0]}, {sWv}")
    I(f"s_lshl_b32 {sT[0]}, {sT[0]}, {FSH}")
    lane0(t0, sT[0], t1)
    P.wait(G['twds'])
    post_flag(t0, FW)
def L_m():
    G['MA'] = MA = V.alloc(6); G['vMa'] = vMa = V.alloc(); G['vMb'] = vMb = V.alloc()
    I(f"v_and_b32 {t0}, 15, {vL}")
    I(f"v_bfe_u32 {t1}, {vL}, 4, 1")
    I(f"v_lshlrev_b32 {vMa}, 3, {t0}")
    I(f"v_lshl_add_u32 {vMa}, {t1}, 14, {vMa}")
    I(f"v_lshl_add_u32 {vMa}, {vHH}, 13, {vMa}")
    I(f"s_lshl_b32 {sT[0]}, {sKS}, 7")
    I(f"s_add_u32 {sT[0]}, {sT[0]}, {MODG + 3*16384}")
    I(f"v_add_u32 {vMa}, {sT[0]}, {vMa}")
    I(f"v_and_b32 {t0}, 3, {vL}")
    I(f"v_lshlrev_b32 {vMb}, 12, {t0}")
    I(f"v_bfe_u32 {t0}, {vL}, 2, 1")
    I(f"v_lshl_add_u32 {vMb}, {t0}, 3, {vMb}")
    I(f"v_bfe_u32 {t0}, {vL}, 3, 2")
    I(f"v_lshl_add_u32 {vMb}, {t0}, 14, {vMb}")
    I(f"s_lshl_b32 {sT[0]}, {sD0}, 3")
    I(f"s_add_u32 {sT[0]}, {sT[0]}, {MODG}")
    I(f"v_add_u32 {vMb}, {sT[0]}, {vMb}")
    G['tm'] = m_loads()
def m_loads():
    MA = G['MA']
    return [I(f"buffer_load_dwordx2 {MA[0:2]}, {G['vMa']}, {rWS}, 0 offen sc1"),
            I(f"buffer_load_dwordx2 {MA[2:4]}, {G['vMa']}, {rWS}, {sC4096} offen sc1"),
            I(f"buffer_load_dwordx2 {MA[4:6]}, {G['vMb']}, {rWS}, 0 offen sc1")]
def C_wunpack():
    WR = G['WR']
    G['wf'] = wf = Frags(8)
    P.wait(G['twr'])
    for e in range(8):
        for h in range(2):
            unpack(wf[4*e+2*h], WR[2*e+h], 0); unpack(wf[4*e+2*h+1], WR[2*e+h], 1)
def C_w():
    MA, WR, wf = G['MA'], G['WR'], G['wf']
    check_tags([MA[1], MA[3], MA[5]], m_loads, G['tm'])
    G['vMa'].free(); G['vMb'].free()
    I(f"v_add_f32 {MA[0]}, {MA[0]}, {MA[2]}")
    I(f"v_bfe_u32 {t1}, {vL}, 4, 1")
    I(f"v_mov_b32 {MA[2]}, {MA[0]}")
    I(f"v_cvt_f32_u32 {t1}, {t1}")
    I(f"s_lshl_b32 {sT[0]}, {sWv}, 7")
    I(f"v_permlane32_swap_b32 {MA[0]}, {MA[2]}")
    I(f"v_lshlrev_b32 {t0}, 2, {vQ}")
    I(f"v_add_f32 {MA[0]}, {MA[0]}, {MA[2]}")
    round_bf16(MA[0], MA[0])
    I(f"v_add_f32 {MA[0]}, {MA[0]}, {t1}")
    round_bf16(MA[0], MA[0])
    I(f"v_add_u32 {t0}, {sT[0]}, {t0}")
    I(f"ds_write_b32 {t0}, {MA[0]} offset:{CBL}")
    I(f"v_lshlrev_b32 {t0}, 5, {vHH}")
    I(f"v_add_u32 {t0}, {sT[0]}, {t0}")
    SBv = Frags(2); CBv = Frags(2)
    tl = [I(f"ds_read_b128 {CBv[0:4]}, {t0} offset:{CBL+64}"), I(f"ds_read_b128 {CBv[4:8]}, {t0} offset:{CBL+80}"),
          I(f"ds_read_b128 {SBv[0:4]}, {t0} offset:{CBL}"), I(f"ds_read_b128 {SBv[4:8]}, {t0} offset:{CBL+16}")]
    I(f"s_mul_i32 {sT[0]}, {sCB}, 229376")
    I(f"s_lshl_b32 {sT[1]}, {sM}, 9")
    I(f"s_add_u32 {sT[0]}, {sT[0]}, {sT[1]}")
    I(f"s_add_u32 {sT[0]}, {sT[0]}, {WP}")
    I(f"s_lshl_b32 {sT[1]}, {sKS}, 12")
    I(f"s_lshl_b32 {sT[2]}, {sKS}, 10")
    I(f"v_lshrrev_b32 {t0}, 2, {vQ}")
    I(f"v_lshlrev_b32 {t1}, 10, {t0}")
    I(f"v_add_u32 {t1}, {sT[1]}, {t1}")
    I(f"v_lshlrev_b32 {t2}, 15, {t0}")
    I(f"v_add_u32 {t2}, {sT[2]}, {t2}")
    I(f"v_cmp_gt_u32 vcc, 4, {t0}")
    I(f"v_cndmask_b32 {t1}, {t2}, {t1}, vcc")
    I(f"v_mov_b32 {t2}, {OOB}")
    I(f"v_cmp_gt_u32 vcc, 7, {t0}")
    I(f"v_cndmask_b32 {t1}, {t2}, {t1}, vcc")
    I(f"v_xor_b32 {t2}, {sM}, {vHH}")
    I(f"v_lshl_add_u32 {t1}, {t2}, 6, {t1}")
    I(f"v_and_b32 {t2}, 3, {vQ}")
    I(f"v_lshl_add_u32 {t1}, {t2}, 4, {t1}")
    c2 = V.alloc(4); c1 = V.alloc(4); pr = Frags(2)
    P.wait(tl[0:2])
    for n in range(4):
        for ee in range(2):
            e = 2*n+ee
            for h in range(2):
                I(f"v_pk_mul_f32 {pr[4*ee+2*h:4*ee+2*h+2]}, {wf[4*e+2*h:4*e+2*h+2]}, {CBv[2*n:2*n+2]} op_sel:[0,{ee}] op_sel_hi:[1,{ee}]")
        for j in range(4): I(f"v_cvt_pk_bf16_f32 {WR[4*j+n]}, {pr[j]}, {pr[4+j]}")
    G['tws'] = [I(f"buffer_store_dwordx4 {WR[4*j:4*j+4]}, {t1}, {rWS}, {sT[0]} offen offset:{128*j} sc1") for j in range(4)]
    P.wait(tl)
    for e in range(8):
        x = e & 1; pe = e & ~1
        for h in range(2):
            if e == 0: I(f"v_pk_mul_f32 {c2[2*h:2*h+2]}, {wf[4*e+2*h:4*e+2*h+2]}, {SBv[pe:pe+2]} op_sel:[0,{x}] op_sel_hi:[1,{x}]")
            else: I(f"v_pk_fma_f32 {c2[2*h:2*h+2]}, {wf[4*e+2*h:4*e+2*h+2]}, {SBv[pe:pe+2]}, {c2[2*h:2*h+2]} op_sel:[0,{x},0] op_sel_hi:[1,{x},1]")
    for n in range(4):
        for j in range(4):
            I(f"v_dot2_f32_bf16 {c1[j]}, {WR[4*j+n]}, {sONE}, {0 if n==0 else c1[j]}")
    I(f"v_lshlrev_b32 {t0}, 6, {t0}")
    I(f"v_lshl_add_u32 {t0}, {t2}, 2, {t0}")
    I(f"v_lshl_add_u32 {t0}, {vHH}, 9, {t0}")
    I(f"s_lshl_b32 {sT[0]}, {sWv}, 10")
    I(f"v_add_u32 {t0}, {sT[0]}, {t0}")
    for j in range(4): I(f"v_permlane32_swap_b32 {c1[j]}, {c2[j]}")
    for j in range(4): I(f"v_add_f32 {c1[j]}, {c1[j]}, {c2[j]}")
    for j in range(4): I(f"ds_write_b32 {t0}, {c1[j]} offset:{C12L+16*j}")
    for r in (wf, c1, c2, SBv, CBv, pr, WR): r.free()
def F_w():
    I(f"s_lshl_b32 {sT[0]}, {sGI}, 5")
    I(f"s_add_u32 {sT[0]}, {sT[0]}, {sKS}")
    I(f"s_lshl_b32 {sT[0]}, {sT[0]}, {FSH}")
    lane0(t0, sT[0], t1)
    P.wait(G['tws'])
    post_flag(t0, F3)
def xs_loads():
    t = gran_load(G['XL'], XG)
    I(f"s_mov_b32 {sZ[0]}, {STG}")
    I(f"s_mov_b32 {sZ[1]}, {STG+8192}")
    SL = G['SL']
    t += [I(f"buffer_load_dwordx4 {SL[0:4]}, {vT16}, {rWS}, {sZ[0]} offen sc1"),
          I(f"buffer_load_dwordx4 {SL[4:8]}, {G['vT16b']}, {rWS}, {sZ[0]} offen sc1"),
          I(f"buffer_load_dwordx4 {SL[8:12]}, {vT16}, {rWS}, {sZ[1]} offen sc1"),
          I(f"buffer_load_dwordx4 {SL[12:16]}, {G['vT16b']}, {rWS}, {sZ[1]} offen sc1")]
    return t
def L_xs():
    G['XL'] = Frags(4); G['SL'] = Frags(4); G['vT16b'] = V.alloc()
    I(f"v_add_u32 {G['vT16b']}, 4096, {vT16}")
    G['txs'] = xs_loads()
def C_pre():
    MA, XL, SL, KVr = G['MA'], G['XL'], G['SL'], G['KVr']
    mb = MA[4]
    I(f"v_add_f32_dpp {mb}, {mb}, {mb} quad_perm:[1,0,3,2] row_mask:0xf bank_mask:0xf")
    I(f"v_add_f32_dpp {mb}, {mb}, {mb} quad_perm:[2,3,0,1] row_mask:0xf bank_mask:0xf")
    round_bf16(mb, mb)
    I(f"v_add_f32 {t0}, 1.0, {mb}")
    round_bf16(t0, t0)
    PQ = V.alloc(4, 1)
    for c in range(2):
        I(f"v_readlane_b32 {sT[0]}, {mb}, {4*c}")
        I(f"v_readlane_b32 {sT[1]}, {t0}, {8+4*c}")
        I(f"v_readlane_b32 {sT[2]}, {mb}, {16+4*c}")
        I(f"v_mov_b32 {t1}, {sT[2]}")
        I(f"v_mul_f32 {PQ[2*c]}, {sT[1]}, {t1}")
        I(f"v_mul_f32 {PQ[2*c+1]}, {sT[0]}, {t1}")
    MA.free()
    I(f"s_lshl_b32 {sT[0]}, {sD}, 16")
    I(f"s_and_b32 {sT[1]}, {sD}, {sHI}")
    check_tags([XL[2*i+1] for i in range(8)] + [SL[2*i+1] for i in range(8)], xs_loads, G['txs'])
    G['vT16b'].free(); G['vGL'].free()
    G['HG'] = HG = V.alloc(16, 1); G['BS'] = BS = V.alloc(16, 1)
    for e in range(8):
        a = SL[2*e]; b = SL[2*e+1]
        unpack(b, a, 0); unpack(a, a, 1)
        I(f"v_mul_f32 {b}, {b}, {a}")
    for c in range(2):
        for e in range(8):
            hg = HG[8*c+e]; bs = BS[8*c+e]
            unpack(bs, XL[8*c + 2*(e>>1)], e & 1)
            unpack(t1, KVr[c][(7-e)>>1], (7-e) & 1)
            I(f"v_fma_f32 {hg}, {bs}, {SL[2*e]}, {SL[2*e+1]}")
            I(f"v_mul_f32 {t1}, {sT[c]}, {t1}")
            I(f"v_fma_f32 {hg}, {hg}, {PQ[2*c]}, {PQ[2*c+1]}")
            I(f"v_fmac_f32 {bs}, {hg}, {t1}")
    for r in KVr + [XL, SL, PQ]: r.free()

AWD = A.reserve(0, 224)
sR64 = S.alloc(); sDB = S.alloc(); sWD = S.alloc()
def wd_setup(dopoll=True):
    G['vA0'] = vA0 = V.alloc(); G['vA1'] = vA1 = V.alloc()
    I(f"s_lshr_b32 {sR64}, {sGI}, 3")
    I(f"s_lshl_b32 {sT[0]}, {sXJ}, 2")
    I(f"s_add_u32 {sR64}, {sR64}, {sT[0]}")
    I(f"s_and_b32 {sDB}, {sGI}, 7")
    I(f"s_mul_i32 {sT[0]}, {sDB}, 112")
    I(f"s_mul_i32 {sT[1]}, {sWv}, 28")
    I(f"s_add_u32 {sT[0]}, {sT[0]}, {sT[1]}")
    I(f"s_lshl_b32 {sWD}, {sT[0]}, 11")
    I(f"s_add_u32 {sWD}, {sWD}, {WDP}")
    I(f"s_and_b32 {sT[2]}, {sWv}, 1")
    I(f"s_lshl_b32 {sT[2]}, {sT[2]}, 10")
    I(f"v_add_u32 {vA0}, {sT[2]}, {vL16}")
    I(f"v_xor_b32 {vA1}, 1024, {vA0}")
    G['wdn'] = 0; G['twdl'] = []
    if not dopoll: return
    I(f"s_lshl_b32 {sT[0]}, {sDB}, 7")
    I(f"s_add_u32 {sT[0]}, {sT[0]}, {sT[1]}")
    I(f"v_min_u32 {t0}, 27, {vL}")
    I(f"v_add_u32 {t0}, {sT[0]}, {t0}")
    I(f"v_lshlrev_b32 {t0}, {FSH}, {t0}")
    poll(t0, FW)
def wd_load(cnt=1):
    for _ in range(cnt):
        i = G['wdn']
        if i >= 56: return
        n, dt = i >> 1, i & 1
        if i and i % 4 == 0: I(f"s_add_u32 {sWD}, {sWD}, 4096")
        G['twdl'].append(I(f"buffer_load_dwordx4 {AWD[8*n+4*dt:8*n+4*dt+4]}, {G['vA1'] if dt else G['vA0']}, {rWS}, {sWD} offen offset:{(n&1)*2048} sc1"))
        G['wdn'] = i+1

def conv(side_per=None):
    vAa = V.alloc(); vBa = V.alloc(); vRW = V.alloc()
    I(f"s_lshr_b32 {sT[0]}, {sWv}, 1")
    I(f"s_and_b32 {sT[1]}, {sWv}, 1")
    I(f"s_lshl_b32 {sT[1]}, {sT[1]}, 8")
    I(f"s_mul_i32 {sT[2]}, {sT[0]}, {TCH}")
    I(f"s_add_u32 {sT[2]}, {sT[2]}, {sT[1]}")
    I(f"s_mul_i32 {sT[3]}, {sT[0]}, {UCH}")
    I(f"s_add_u32 {sT[3]}, {sT[3]}, {sT[1]}")
    I(f"s_add_u32 {sT[3]}, {sT[3]}, {UB+480}")
    I(f"v_and_b32 {t0}, 7, {vL}")
    I(f"v_mul_u32_u24 {vAa}, {TCOPY}, {t0}")
    I(f"v_bfe_u32 {t0}, {vL}, 3, 1")
    I(f"v_lshrrev_b32 {t1}, 4, {vL}")
    I(f"v_add_u32 {t0}, {t0}, {t1}")
    I(f"v_lshl_add_u32 {vAa}, {t0}, 4, {vAa}")
    I(f"v_add_u32 {vAa}, {sT[2]}, {vAa}")
    I(f"v_and_b32 {t0}, 15, {vL}")
    I(f"v_lshlrev_b32 {t2}, 5, {t0}")
    I(f"v_lshlrev_b32 {vBa}, 4, {t1}")
    I(f"v_sub_u32 {vBa}, {vBa}, {t2}")
    I(f"v_add_u32 {vBa}, {sT[3]}, {vBa}")
    I(f"v_and_b32 {vRW}, 1, {t1}")
    I(f"v_lshlrev_b32 {vRW}, 12, {vRW}")
    I(f"v_add_u32 {vRW}, {vRW}, {t2}")
    I(f"v_lshrrev_b32 {t1}, 1, {t1}")
    I(f"v_lshl_add_u32 {vRW}, {t1}, 4, {vRW}")
    I(f"s_lshl_b32 {sT[0]}, {sWv}, 13")
    I(f"s_add_u32 {sT[0]}, {sT[0]}, {RED}")
    I(f"v_add_u32 {vRW}, {sT[0]}, {vRW}")
    G['convaddr'] = (vAa, vBa, vRW)
def conv_run(hook=None):
    vAa, vBa, vRW = G['convaddr']
    D = Frags(8); FA = [Frags(8), Frags(8)]; FB = [Frags(8), Frags(8)]
    def reads(n):
        b = n & 1; out = []
        for t in range(8):
            out.append(lambda t=t: I(f"ds_read_b128 {FA[b][4*t:4*t+4]}, {vAa} offset:{TAPS + 64*n + 512*t}"))
            out.append(lambda t=t: I(f"ds_read_b128 {FB[b][4*t:4*t+4]}, {vBa} offset:{512*(7-t) + 64*n}"))
        return out
    ctok = {0: [f() for f in reads(0)]}
    cnt = 0
    for n in range(4):
        b = n & 1
        nxt = reads(n+1) if n < 3 else []
        ctok[n+1] = []
        if n < 3: pairs = sorted([(t, jj) for t in range(8) for jj in range(8-t)], key=lambda p: (max(p), p))
        else: pairs = sorted([(t, jj) for t in range(8) for jj in range(8-t)], key=lambda p: (p[0]+p[1], p))
        seen = set(); done = {}
        if n > 0: P.wait(ctok[n])
        for i, (t, jj) in enumerate(pairs):
            P.wait(ctok[n][2*t], ctok[n][2*jj+1])
            j = t + jj
            first = (n == 0 and j not in seen); seen.add(j)
            I(f"v_mfma_f32_16x16x32_bf16 {D[4*j:4*j+4]}, {FA[b][4*t:4*t+4]}, {FB[b][4*jj:4*jj+4]}, {0 if first else D[4*j:4*j+4]}")
            if nxt and i >= 1 and i % 2 == 1: ctok[n+1].append(nxt.pop(0)())
            if n == 3:
                if t == j: done[j] = i
                for jd, idn in list(done.items()):
                    if i >= idn + 5:
                        I(f"ds_write_b128 {vRW}, {D[4*jd:4*jd+4]} offset:{512*jd}"); del done[jd]
            if hook: hook(cnt)
            cnt += 1
        while nxt: ctok[n+1].append(nxt.pop(0)())
    for jd in sorted(done): I(f"ds_write_b128 {vRW}, {D[4*jd:4*jd+4]} offset:{512*jd}")
    for r in FA + FB + [vAa, vBa, vRW, D]: r.free()

def C_x1():
    HG, BS = G['HG'], G['BS']
    Y = Frags(8); xo = Frags(2)
    I(f"v_add_u32 {t0}, {RED}, {vT16}")
    tl = []
    for c in range(2):
        for kh in range(2):
            for h in range(2):
                tl.append(I(f"ds_read_b128 {Y[16*c+8*kh+4*h:16*c+8*kh+4*h+4]}, {t0} offset:{(2*c+kh)*8192 + 4096*h}"))
    c4 = V.alloc(4, 1)
    I(f"v_lshlrev_b32 {t0}, 2, v0")
    tc4 = [I(f"ds_read_b32 {c4[w]}, {t0} offset:{C12L+1024*w}") for w in range(4)]
    I(f"v_lshrrev_b32 {t1}, 2, v0")
    I(f"v_lshlrev_b32 {t1}, 15, {t1}")
    I(f"v_and_b32 {t2}, 3, v0")
    I(f"v_lshl_add_u32 {t1}, {t2}, 4, {t1}")
    I(f"s_lshl_b32 {sT[0]}, {sD0}, 6")
    I(f"s_add_u32 {sT[0]}, {sT[0]}, {X1T}")
    for c in range(2):
        P.wait(tl[4*c:4*c+4])
        for e in range(0, 8, 2): I(f"v_pk_add_f32 {Y[16*c+e:16*c+e+2]}, {Y[16*c+e:16*c+e+2]}, {Y[16*c+8+e:16*c+8+e+2]}")
        for e in range(8): I(f"v_fmac_f32 {BS[8*c+e]}, {HG[8*c+e]}, {Y[16*c+e]}")
        for n in range(4): I(f"v_cvt_pk_bf16_f32 {xo[4*c+n]}, {BS[8*c+2*n]}, {BS[8*c+2*n+1]}")
        I(f"buffer_store_dwordx4 {xo[4*c:4*c+4]}, {t1}, {rWS}, {sT[0]} offen offset:{64*c} sc1")
    I(f"s_lshl_b32 {sT[0]}, {sCB}, 3")
    I(f"s_add_u32 {sT[0]}, {sT[0]}, {sXJ}")
    I(f"s_mul_i32 {sT[0]}, {sT[0]}, 1792")
    I(f"s_lshl_b32 {sT[1]}, {sM}, 7")
    I(f"s_add_u32 {sT[0]}, {sT[0]}, {sT[1]}")
    I(f"s_add_u32 {sT[0]}, {sT[0]}, {C12}")
    I(f"v_lshrrev_b32 {t0}, 7, v0")
    I(f"v_lshlrev_b32 {t0}, 2, {t0}")
    I(f"v_bfe_u32 {t1}, v0, 4, 3")
    I(f"v_lshl_add_u32 {t0}, {t1}, 8, {t0}")
    I(f"v_and_b32 {t2}, 15, v0")
    I(f"v_lshl_add_u32 {t0}, {t2}, 3, {t0}")
    I(f"v_mov_b32 {t2}, {OOB}")
    I(f"v_cmp_gt_u32 vcc, 7, {t1}")
    I(f"v_cndmask_b32 {t0}, {t2}, {t0}, vcc")
    P.wait(tc4)
    I(f"v_add_f32 {c4[0]}, {c4[0]}, {c4[1]}")
    I(f"v_add_f32 {c4[2]}, {c4[2]}, {c4[3]}")
    I(f"v_add_f32 {c4[0]}, {c4[0]}, {c4[2]}")
    G['tx1'] = I(f"buffer_store_dword {c4[0]}, {t0}, {rWS}, {sT[0]} offen sc1")
    for r in (Y, HG, BS, xo, c4): r.free()

L_mod(); L_taps(); L_w()
zero_pads(); gran_addr(); conv()
C_tag(); C_kv(); stamp("kv st")
C_mod(); stamp("mod st")
C_taps(); stamp("taps")
L_u(); L_m(); L_x(); L_wd()
C_wunpack()
C_u(); stamp("U ok")
C_w(); stamp("W st")
C_x(); C_wd(); stamp("x,wd st")
P.wait_all(vm=False); I("s_barrier")
stamp("bar")
def hook(c):
    if c == 20: F_w()
    if c == 70: L_xs()
conv_run(hook)
stamp("conv")
C_pre(); stamp("pre")
P.wait_all(vm=False); I("s_barrier")
C_x1(); stamp("x1 st")

sRB = S.alloc(); sC1 = S.alloc(); sWsrc = S.alloc(); sWdst = S.alloc()
vF8 = V.alloc(); vPA = V.alloc(); vP3 = V.alloc(); vp3 = V.alloc()
I(f"s_and_b32 {sRB}, {sXJ}, 1")
I(f"s_lshl_b32 {sRB}, {sRB}, 3")
I(f"s_lshr_b32 {sT[0]}, {sGI}, 2")
I(f"s_add_u32 {sRB}, {sRB}, {sT[0]}")
I(f"s_lshr_b32 {sC1}, {sXJ}, 1")
I(f"s_lshl_b32 {sC1}, {sC1}, 2")
I(f"s_and_b32 {sT[0]}, {sGI}, 3")
I(f"s_add_u32 {sC1}, {sC1}, {sT[0]}")
I(f"s_lshl_b32 {sT[0]}, {sC1}, {6+FSH}")
I(f"v_lshlrev_b32 {vP3}, {FSH}, {vL}")
I(f"v_add_u32 {vP3}, {sT[0]}, {vP3}")
tp3 = flag_load(vp3, vP3, F3)
I(f"s_lshl_b32 {sT[0]}, {sXJ}, 5")
I(f"s_add_u32 {sT[0]}, {sT[0]}, {sGI}")
I(f"s_lshl_b32 {sT[0]}, {sT[0]}, {FSH}")
I(f"v_lshlrev_b32 {vF8}, {FSH+8}, v0")
I(f"v_add_u32 {vF8}, {sT[0]}, {vF8}")
I(f"v_mov_b32 {t1}, {OOB}")
I(f"v_cmp_gt_u32 vcc, 8, v0")
I(f"v_cndmask_b32 {vF8}, {t1}, {vF8}, vcc")
I(f"s_lshl_b32 {sT[0]}, {sXJ}, {8+FSH}")
I(f"v_lshlrev_b32 {vPA}, {FSH}, v0")
I(f"v_add_u32 {vPA}, {sT[0]}, {vPA}")
I(f"s_mul_i32 {sWsrc}, {sC1}, 229376")
I(f"s_lshl_b32 {sWdst}, {sWv}, 12")
I(f"s_add_u32 {sWsrc}, {sWsrc}, {sWdst}")
I(f"s_add_u32 {sWsrc}, {sWsrc}, {WP}")
P.wait(G['tx1'])
I("s_barrier")
post_flag(vF8, F4)
stamp("F4 post")
vF8.free()
check_tags([vp3], lambda: flag_load(vp3, vP3, F3), tp3)
vp3.free(); vP3.free()
stamp("F3 ok")
def w_dma(src_off, dst_off, n0=0, n1=4):
    I(f"s_add_u32 {sT[0]}, {sWsrc}, {src_off}")
    I(f"s_add_u32 m0, {sWdst}, {WL + dst_off}")
    return [I(f"buffer_load_dwordx4 {vL16}, {rWS}, {sT[0]} offen offset:{1024*n} sc1 lds") for n in range(n0, n1)]
NPRE = opt('npre', 5)
wpre = []
for i in range(NPRE): wpre += w_dma(16384*i, 16384*i)
stamp("W pre")
sXsrc = S.alloc(); sXdst = S.alloc(); sSB = S.alloc(); sHS = S.alloc(); sSG = S.alloc()
I(f"s_lshl_b32 {sSB}, {sRB}, 2")
I(f"s_add_u32 {sSB}, {sSB}, {sWv}")
I(f"s_lshl_b32 {sXsrc}, {sSB}, 15")
I(f"s_add_u32 {sXsrc}, {sXsrc}, {X1T}")
I(f"s_mul_i32 {sXdst}, {sWv}, {XSW}")
I(f"s_add_u32 {sXdst}, {sXdst}, {XS}")
I(f"s_mul_i32 {sHS}, {sSB}, 112")
I(f"s_mul_i32 {sT[0]}, {sC1}, 7")
I(f"s_add_u32 {sHS}, {sHS}, {sT[0]}")
I(f"s_lshl_b32 {sHS}, {sHS}, 10")
I(f"s_add_u32 {sHS}, {sHS}, {HH}")
I(f"s_lshl_b32 {sSG}, {sSB}, 13")
I(f"s_add_u32 {sSG}, {sSG}, {SG}")
ACC = [V.alloc(16) for _ in range(5)]
vAd = V.alloc(); vAd2 = V.alloc(); vTr = V.alloc(); vTr0 = V.alloc(); vEx = V.alloc(); vL16b = V.alloc(); vF5 = V.alloc()
I(f"v_bfe_u32 {t0}, {vL}, 2, 3")
I(f"v_lshlrev_b32 {vAd}, 7, {t0}")
I(f"v_bfe_u32 {t0}, {vL}, 4, 1")
I(f"v_xor_b32 {t0}, {t0}, {vHH}")
I(f"v_lshl_add_u32 {vAd}, {t0}, 6, {vAd}")
I(f"v_and_b32 {t0}, 3, {vL}")
I(f"v_lshl_add_u32 {vAd}, {t0}, 4, {vAd}")
I(f"v_add_u32 {vAd2}, 65536, {vAd}")
I(f"v_lshlrev_b32 {vTr0}, 3, {t0}")
I(f"v_bfe_u32 {t0}, {vL}, 4, 1")
I(f"v_lshl_add_u32 {vTr0}, {t0}, 5, {vTr0}")
I(f"v_bfe_u32 {t0}, {vL}, 2, 2")
I(f"v_lshl_add_u32 {vTr0}, {t0}, 6, {vTr0}")
I(f"v_add_u32 {vTr0}, {sXdst}, {vTr0}")
I(f"v_lshl_add_u32 {vTr}, {vHH}, 9, {vTr0}")
I(f"v_lshlrev_b32 {vEx}, 4, {vQ}")
I(f"v_add_u32 {vEx}, {EX}, {vEx}")
I(f"v_add_u32 {vL16b}, 4096, {vL16}")
I(f"s_lshl_b32 {sT[0]}, {sSB}, 4")
I(f"s_add_u32 {sT[0]}, {sT[0]}, {sC1}")
I(f"s_lshl_b32 {sT[0]}, {sT[0]}, {FSH}")
lane0(vF5, sT[0], t1)
wd_setup(False)
poll(vPA, F4)
vPA.free()
P.wait(wpre)
I("s_barrier")
stamp("F4 ok")

xt = {}
def x_dma(item):
    if item < 2:
        I(f"s_lshl_b32 {sT[1]}, {sC1}, 11")
        I(f"s_add_u32 {sT[1]}, {sT[1]}, {sXsrc}")
        if item: I(f"s_add_u32 {sT[1]}, {sT[1]}, 1024")
    else:
        I(f"s_add_u32 {sT[1]}, {sXsrc}, {1024*(item-2)}")
    I(f"s_add_u32 m0, {sXdst}, {1024*(item%7)}")
    xt[item] = I(f"buffer_load_dwordx4 {vL16}, {rWS}, {sT[1]} offen sc1 lds")
for it_ in range(7): x_dma(it_)
wrest = []
for i in range(NPRE, 8): wrest += w_dma(16384*i, 16384*i)
I(f"s_cmp_eq_u32 s2, 0")
I(f"s_cselect_b32 {sT[0]}, {EPOCH}, {OOB}")
I(f"s_cmp_eq_u32 {sWv}, 0")
I(f"s_cselect_b32 {sT[0]}, {sT[0]}, {OOB}")
lane0(t0, sT[0], t1)
I(f"buffer_store_dword {vTag}, {t0}, {rWS}, 0 offen sc1")
Bf = Frags(32)
AR = A.reserve(224, 32)
BX = V.alloc(4); vRS2 = V.alloc(); hp = V.alloc(4)
TMP = ACC[4]
def a_read(slot, off):
    if off == 'x': raise
    if off < 65536: return I(f"ds_read_b128 {AR[4*slot:4*slot+4]}, {vAd} offset:{off}")
    return I(f"ds_read_b128 {AR[4*slot:4*slot+4]}, {vAd2} offset:{off-65536}")
def tr_read(dst, item):
    P.wait(xt[item])
    o = 1024*(item % 7)
    return [I(f"ds_read_b64_tr_b16 {dst[0:2]}, {vTr} offset:{o}"), I(f"ds_read_b64_tr_b16 {dst[2:4]}, {vTr} offset:{o+256}")]
jobs = [(it, ks, (ks*4+it)*1024) for ks in range(32) for it in range(4)]
jobs += [(it, 'x', None) for it in range(4)]
for it in range(4, 7):
    jobs += [(it, 'x', None)] + [(it, ks, (it-4)*32768 + ks*1024) for ks in range(32)]
accmap = {0:0, 1:1, 2:2, 3:3, 4:4, 5:0, 6:1}
def job_read(n):
    it, ks, off = jobs[n]
    if ks == 'x': return I(f"ds_read_b128 {AR[4*(n%8):4*(n%8)+4]}, {vEx} offset:{512*it}")
    return a_read(n % 8, off)
LOOK = 6
atok = {}; btok = {}
for n in range(LOOK): atok[n] = job_read(n)
ts_ = tr_read(TMP[0:4], 0) + tr_read(TMP[4:8], 1)
btok[0] = tr_read(Bf[0:4], 2)
P.wait(ts_)
x_dma(7); x_dma(8)
for r in range(8):
    I(f"v_dot2_f32_bf16 {TMP[8]}, {TMP[r]}, {sONE}, {0 if r==0 else TMP[8]}")
    I(f"v_dot2_f32_bf16 {TMP[10]}, {TMP[r]}, {TMP[r]}, {0 if r==0 else TMP[10]}")
I(f"v_mov_b32 {TMP[9]}, {vTag}")
I(f"s_lshl_b32 {sT[0]}, {sC1}, 9")
I(f"s_add_u32 {sT[0]}, {sT[0]}, {sSG}")
I(f"v_lshlrev_b32 {t0}, 4, {vQ}")
I(f"v_lshl_add_u32 {t0}, {vHH}, 3, {t0}")
I(f"v_permlane32_swap_b32 {TMP[8]}, {TMP[10]}")
I(f"v_add_f32 {TMP[8]}, {TMP[8]}, {TMP[10]}")
I(f"buffer_store_dwordx2 {TMP[8:10]}, {t0}, {rWS}, {sT[0]} offen sc1")
stamp("g1 start")

side = []
def c12_ops():
    ops = []; tk = []
    CL = TMP
    def l(g):
        if g == 0:
            I(f"s_mul_i32 {sT[2]}, {sC1}, {8*1792}")
            I(f"s_add_u32 {sT[2]}, {sT[2]}, {C12}")
            I(f"v_lshlrev_b32 {t2}, 3, v0")
        if g and g % 2 == 0: I(f"s_add_u32 {sT[2]}, {sT[2]}, 3584")
        tk.append(I(f"buffer_load_dwordx2 {CL[2*g:2*g+2]}, {t2}, {rWS}, {sT[2]} offen offset:{(g&1)*1792} sc1"))
    for g in range(8): ops.append(lambda g=g: l(g)); ops += [None]*3
    ops2 = [lambda: P.wait(tk)]
    for st in (4, 2, 1):
        for g in range(st):
            for h in range(2):
                ops2.append(lambda g=g, st=st, h=h: I(f"v_add_f32 {CL[2*g+h]}, {CL[2*g+h]}, {CL[2*(g+st)+h]}"))
    seq = [f"v_cvt_pk_bf16_f32 {CL[5]}, {CL[0]}, {CL[1]}",
           f"v_lshlrev_b32 {CL[2]}, 16, {CL[5]}",
           f"v_and_b32 {CL[3]}, {sHI}, {CL[5]}",
           f"v_sub_f32 {CL[0]}, {CL[0]}, {CL[2]}",
           f"v_sub_f32 {CL[1]}, {CL[1]}, {CL[3]}",
           f"v_cvt_pk_bf16_f32 {CL[4]}, {CL[2]}, {CL[0]}",
           f"v_cvt_pk_bf16_f32 {CL[6]}, {CL[1]}, {CL[3]}",
           f"v_mov_b32 {CL[7]}, 0",
           f"v_add_u32 {t2}, {EX}, {vT16}",
           f"ds_write_b128 {t2}, {CL[4:8]}"]
    for s_ in seq: ops2.append(lambda s_=s_: I(s_))
    return ops, ops2
SGX = Frags(4)
def sg_loads(j0=0, j1=8):
    out = []
    for j in range(j0, j1):
        dst = TMP[4*j:4*j+4] if j < 4 else SGX[4*(j-4):4*(j-4)+4]
        out.append(I(f"buffer_load_dwordx4 {dst}, {vL16 if j < 4 else vL16b}, {rWS}, {sSG} offen offset:{1024*(j&3)} sc1"))
    return out
def sg_reg(j, i): return TMP[4*j+i] if j < 4 else SGX[4*(j-4)+i]
def stats2_ops(tk):
    ops = [lambda: check_tags([sg_reg(j, i) for j in range(8) for i in (1, 3)], sg_loads, tk)]
    for st in (4, 2, 1):
        for j in range(st):
            for i in (0, 2):
                ops.append(lambda j=j, st=st, i=i: I(f"v_add_f32 {sg_reg(j,i)}, {sg_reg(j,i)}, {sg_reg(j+st,i)}"))
    a, b, c, d, e, f = TMP[0], TMP[1], TMP[2], TMP[3], TMP[4], TMP[5]
    seq = [f"v_mov_b32 {b}, {a}", f"v_mov_b32 {d}, {c}", None,
           f"v_permlane32_swap_b32 {a}, {b}", f"v_permlane32_swap_b32 {c}, {d}",
           f"v_add_f32 {a}, {a}, {b}", f"v_add_f32 {c}, {c}, {d}",
           f"v_mul_f32 {b}, 0xbb000000, {a}", f"v_mul_f32 {c}, 0x3b000000, {c}",
           f"v_fma_f32 {d}, -{b}, {b}, {c}", f"v_max_f32 {d}, 0, {d}", f"v_add_f32 {d}, 0x3727c5ac, {d}",
           f"v_sqrt_f32 {c}, {d}", f"v_rcp_f32 {vRS2}, {d}",
           f"v_cmp_eq_u32 vcc, 0, {vHH}",
           f"v_mov_b32 {BX[3]}, 0",
           f"v_cndmask_b32 {b}, 0, {b}, vcc", f"v_cndmask_b32 {c}, 0, {c}, vcc",
           f"v_cvt_pk_bf16_f32 {BX[0]}, {b}, {b}",
           f"v_cvt_pk_bf16_f32 {e}, {c}, {c}",
           f"v_and_b32 {a}, {sHI}, {BX[0]}", f"v_and_b32 {e}, {sHI}, {e}",
           f"v_sub_f32 {b}, {b}, {a}", f"v_sub_f32 {c}, {c}, {e}",
           f"v_cvt_pk_bf16_f32 {BX[1]}, {b}, {e}",
           f"v_cvt_pk_bf16_f32 {BX[2]}, {e}, {c}"]
    for s_ in seq: ops.append((lambda s_=s_: I(s_)) if s_ else None)
    return ops
hst = {}
def epilogue(it):
    ac = ACC[accmap[it]]; ops = []
    for r in range(8): ops.append(lambda r=r: I(f"v_mul_f32 {ac[r]}, {ac[r]}, {ac[8+r]}"))
    for r in range(8): ops.append(lambda r=r: I(f"v_mul_f32 {ac[r]}, {ac[r]}, {vRS2}"))
    for n in range(4): ops.append(lambda n=n: I(f"v_cvt_pk_bf16_f32 {hp[n]}, {ac[2*n]}, {ac[2*n+1]}"))
    def st():
        hst[it] = I(f"buffer_store_dwordx4 {hp}, {vL16 if it < 4 else vL16b}, {rWS}, {sHS} offen offset:{1024*(it&3)} sc1")
    ops.append(st); ops.append(None)
    return ops
def lvl_flag(level, tiles):
    def f():
        P.wait([hst[t] for t in tiles])
        post_flag(vF5, F5 + level*0x10000)
    return f
wq = []; wtok = {0: [], 1: [], 2: []}
c12a, c12b = c12_ops()
sgt = []
NJ = len(jobs)
T4, T5, T6 = 132, 165, 198
for n, (it, ks, off) in enumerate(jobs):
    if n < 128 and it == 0 and ks in (8, 16, 24):
        P.wait(atok[n])
        if ks == 16: P.wait(wrest)
        I("s_barrier")
        tt = ks//8 - 1
        for hb in range(2):
            for q in range(2):
                wq.append(lambda tt=tt, hb=hb, q=q: wtok[tt].extend(w_dma(131072 + tt*32768 + hb*16384, tt*32768 + hb*16384, 2*q, 2*q+2)))
    if n == T4 - 8: P.wait(wtok[0], wtok[1]); P.wait_all(vm=False); I("s_barrier")
    if n == T5 + 8: P.wait(wtok[2]); I("s_barrier")
    if n in (32, 64, 96, 128, T5, T6): stamp(f"n{n}")
    if n % 2 == 0: P.wait(atok[n], atok.get(n+1), btok.get(ks))
    else: P.wait(atok[n])
    ac = ACC[accmap[it]]
    bsrc = BX if ks == 'x' else Bf[4*ks:4*ks+4]
    first = (ks == 0 and it < 4) or (ks == 'x' and it >= 4)
    I(f"v_mfma_f32_32x32x16_bf16 {ac}, {AR[4*(n%8):4*(n%8)+4]}, {bsrc}, {0 if first else ac}")
    if n + LOOK < NJ: atok[n+LOOK] = job_read(n+LOOK)
    budget = 4
    if n < 128:
        if it == 0 and ks+1 < 32: btok[ks+1] = tr_read(Bf[4*(ks+1):4*(ks+1)+4], ks+3); budget = 1
        if it == 1 and ks+9 < 34: x_dma(ks+9); budget = 1
        if it == 2 and wq and ks % 2 == 0: wq.pop(0)(); budget = 0
    if n == 8: side += c12a
    if n == 44: side += c12b
    if n == 66:
        for j in range(8): side += [lambda j=j: sgt.extend(sg_loads(j, j+1)), None, None]
    if n == 100: side += stats2_ops(sgt)
    if n == 127: assert not side, len(side)
    if n == T4 + 1:
        SGX.free()
        vP5 = V.alloc(); vp5 = V.alloc()
        for e in range(4): side += epilogue(e)
    if n > T4 + 26 and n % 1 == 0 and n < NJ - 8: wd_load(1); budget -= 1
    if n == T5 + 4: side += epilogue(4)
    if n == T5 + 20: side += [lvl_flag(0, (0, 1, 2, 3))]
    if n == T6 + 4: side += epilogue(5)
    if n == T6 + 14:
        def p5setup():
            I(f"v_and_b32 {t1}, 1, {vL}")
            I(f"v_lshlrev_b32 {t1}, 4, {t1}")
            I(f"v_bfe_u32 {t2}, {vL}, 1, 2")
            I(f"v_add_u32 {t1}, {t1}, {t2}")
        def p5setup2():
            I(f"s_lshl_b32 {sT[0]}, {sR64}, 5")
            I(f"s_lshl_b32 {sT[1]}, {sWv}, 2")
            I(f"s_add_u32 {sT[0]}, {sT[0]}, {sT[1]}")
            I(f"v_add_u32 {t1}, {sT[0]}, {t1}")
        def p5setup3():
            I(f"v_lshlrev_b32 {vP5}, {FSH}, {t1}")
            G['tp5'] = flag_load(vp5, vP5, F5)
        side += [p5setup, None, None, None, p5setup2, None, None, None, p5setup3]
    k = 0
    while side and k < budget:
        f = side.pop(0); k += 1
        if f: f()
    if n == T5 - 1: assert 0 in hst
    if n == T6 - 1: assert 1 in hst
assert not side
sSQ = S.alloc(); sDQ = S.alloc(); sH0 = S.alloc(); sH1 = S.alloc()
I(f"s_lshr_b32 {sT[0]}, {sWv}, 1")
I(f"s_lshl_b32 {sSQ}, {sR64}, 1")
I(f"s_add_u32 {sSQ}, {sSQ}, {sT[0]}")
I(f"s_mul_i32 {sT[1]}, {sWv}, 28")
I(f"s_mul_i32 {sH0}, {sSQ}, 112")
I(f"s_add_u32 {sH0}, {sH0}, {sT[1]}")
I(f"s_lshl_b32 {sH0}, {sH0}, 10")
I(f"s_add_u32 {sH0}, {sH0}, {HH}")
I(f"s_xor_b32 {sT[0]}, {sSQ}, 1")
I(f"s_mul_i32 {sH1}, {sT[0]}, 112")
I(f"s_add_u32 {sH1}, {sH1}, {sT[1]}")
I(f"s_lshl_b32 {sH1}, {sH1}, 10")
I(f"s_add_u32 {sH1}, {sH1}, {HH}")
for f in epilogue(6):
    if f: f()
lvl_flag(1, (4, 5))()
stamp("g1 done")
for r in ACC + [Bf, BX, vRS2, vAd, vAd2, vTr, vEx]: r.free()
wd_load(56)
G['vA0'].free(); G['vA1'].free()

GA = [V.alloc(16) for _ in range(4)]
order = [(c, it) for c in range(4) for it in range(4)] + [(c, it) for c in range(4) for it in (4, 5)] + [(c, 6) for c in range(4)]
NB = opt('nb', 20)
HB = Frags(2*NB)
ht = {}
def h_load(i):
    c, it = order[i]; n = c*7 + it; s_ = i % NB
    I(f"s_add_u32 {sT[0]}, {sH0}, {1024*(n & ~3)}")
    I(f"s_add_u32 {sT[1]}, {sH1}, {1024*(n & ~3)}")
    ht[i] = [I(f"buffer_load_dwordx4 {HB[8*s_:8*s_+4]}, {vL16}, {rWS}, {sT[0]} offen offset:{1024*(n&3)} sc1"),
             I(f"buffer_load_dwordx4 {HB[8*s_+4:8*s_+8]}, {vL16}, {rWS}, {sT[1]} offen offset:{1024*(n&3)} sc1")]
check_tags([vp5], lambda: flag_load(vp5, vP5, F5), G['tp5'])
stamp("L0 ok")
for i in range(4): h_load(i)
lvl_flag(2, (6,))()
hp.free(); vF5.free()
for i in range(4, 12): h_load(i)
tp = flag_load(vp5, vP5, F5 + 0x10000)
for i in range(12, 16): h_load(i)
I(f"s_and_b32 {sT[0]}, {sWv}, 1")
I(f"s_lshl_b32 {sT[0]}, {sT[0]}, 5")
I(f"s_lshl_b32 {sDQ}, {sDB}, 6")
I(f"s_add_u32 {sDQ}, {sDQ}, {sT[0]}")
I(f"s_lshl_b32 {sT[0]}, {sSQ}, 15")
I(f"s_lshl_b32 {sT[1]}, {sDQ}, 6")
I(f"s_add_u32 {sT[0]}, {sT[0]}, {sT[1]}")
I(f"s_add_u32 {sT[0]}, {sT[0]}, {X1T}")
I(f"s_mov_b32 m0, {sXdst}")
txq = [I(f"buffer_load_dwordx4 {vL16}, {rWS}, {sT[0]} offen offset:{1024*n} sc1 lds") for n in range(2)]
gb2 = V.alloc(2, 1)
I(f"v_lshlrev_b32 {t0}, 3, {vQ}")
I(f"v_lshl_add_u32 {t0}, {vHH}, 13, {t0}")
I(f"s_lshl_b32 {sT[0]}, {sDQ}, 3")
I(f"s_add_u32 {sT[0]}, {sT[0]}, {MODG + 5*16384}")
I(f"s_add_u32 {sT[1]}, {sT[0]}, 4096")
tgb = [I(f"buffer_load_dword {gb2[n]}, {t0}, {rWS}, {sT[n]} offen sc1") for n in range(2)]
def g2_mfma(i):
    c, it = order[i]; n = c*7 + it; s_ = i % NB
    for q in range(4):
        dt, st = q & 1, q >> 1
        P.wait(ht[i][st])
        I(f"v_mfma_f32_32x32x16_bf16 {GA[q]}, {AWD[8*n+4*dt:8*n+4*dt+4]}, {HB[8*s_+4*st:8*s_+4*st+4]}, {0 if i==0 else GA[q]}")
P.wait(G['twdl'])
for i in range(8): g2_mfma(i)
check_tags([vp5], lambda: flag_load(vp5, vP5, F5 + 0x10000), tp)
stamp("L1 ok")
for i in range(16, 20): h_load(i)
tp = flag_load(vp5, vP5, F5 + 0x20000)
for i in range(20, 24): h_load(i)
for i in range(8, 16): g2_mfma(i)
check_tags([vp5], lambda: flag_load(vp5, vP5, F5 + 0x20000), tp)
stamp("L2 ok")
for i in range(24, 28): h_load(i)
P.wait(tgb)
I(f"v_add_f32 {gb2[0]}, {gb2[0]}, {gb2[1]}")
I(f"v_lshlrev_b32 {t0}, 2, {vQ}")
I(f"v_mov_b32 {gb2[1]}, {gb2[0]}")
I(f"v_add_u32 {t0}, {sXdst}, {t0}")
I(f"v_permlane32_swap_b32 {gb2[0]}, {gb2[1]}")
I(f"v_add_f32 {gb2[0]}, {gb2[0]}, {gb2[1]}")
round_bf16(gb2[0], gb2[0])
I(f"ds_write_b32 {t0}, {gb2[0]} offset:2048")
gb2.free()
for i in range(16, 28): g2_mfma(i)
HB.free()
stamp("g2 mfma")
I("s_barrier")
XQ = V.alloc(8); GB = Frags(4)
I(f"v_lshl_add_u32 {t1}, {vHH}, 10, {vTr0}")
for n in range(4): I(f"ds_read_b64_tr_b16 {XQ[2*n:2*n+2]}, {t1} offset:{256*n}")
I(f"v_lshlrev_b32 {t1}, 6, {vHH}")
I(f"v_add_u32 {t1}, {sXdst}, {t1}")
for n in range(4): I(f"ds_read_b128 {GB[4*n:4*n+4]}, {t1} offset:{2048+16*n}")
for q in range(1, 4):
    I(f"s_xor_b32 {sT[0]}, {sWv}, {q}")
    I(f"s_mul_i32 {sT[0]}, {sT[0]}, 12288")
    I(f"v_add_u32 {t0}, {sT[0]}, {vL16}")
    for r in range(4):
        I(f"ds_write_b128 {t0}, {GA[q][4*r:4*r+4]} offset:{(q-1)*4096 + r*1024}")
I(f"s_mul_i32 {sT[0]}, {sWv}, 12288")
I(f"v_add_u32 {t0}, {sT[0]}, {vL16}")
I(f"s_lshl_b32 {sT[0]}, {sSQ}, 15")
I(f"s_lshl_b32 {sT[1]}, {sDQ}, 1")
I(f"s_add_u32 {sT[0]}, {sT[0]}, {sT[1]}")
I(f"v_lshlrev_b32 {t1}, 10, {vQ}")
I(f"v_lshl_add_u32 {t1}, {vHH}, 5, {t1}")
XF = V.alloc(16, 1)
P.wait_all(vm=False)
I("s_barrier")
tl = {}
for q in range(1, 4):
    tl[q] = [I(f"ds_read_b128 {GA[q][4*r:4*r+4]}, {t0} offset:{(q-1)*4096 + r*1024}") for r in range(4)]
for rho in range(8):
    unpack(XF[2*rho], XQ[rho], 0); unpack(XF[2*rho+1], XQ[rho], 1)
for q in range(1, 4):
    P.wait(tl[q])
    for r in range(0, 16, 2):
        I(f"v_pk_add_f32 {GA[0][r:r+2]}, {GA[0][r:r+2]}, {GA[q][r:r+2]}")
OST = OPT.get('ost', '')
for rho in range(8):
    I(f"v_fmac_f32 {XF[2*rho]}, {GA[0][rho]}, {GB[2*rho]}")
    I(f"v_fmac_f32 {XF[2*rho+1]}, {GA[0][rho+8]}, {GB[2*rho+1]}")
    I(f"v_cvt_pk_bf16_f32 {XQ[rho]}, {XF[2*rho]}, {XF[2*rho+1]}")
    if rho == 3: I(f"buffer_store_dwordx4 {XQ[0:4]}, {t1}, {rOUT}, {sT[0]} offen {OST}")
I(f"buffer_store_dwordx4 {XQ[4:8]}, {t1}, {rOUT}, {sT[0]} offen offset:16 {OST}")
stamp("end")
if TSTAMP:
    P.wait_all()
    stamp("drained")
    n = nts[0]
    I("s_waitcnt lgkmcnt(0)")
    I(f"v_writelane_b32 {vTs}, {sTp[n&1][0]}, {n-2}")
    I(f"v_writelane_b32 {vTs}, {sTp[(n+1)&1][0]}, {n-1}")
    I(f"v_subrev_u32 {vTs}, {sT0[0]}, {vTs}")
    I(f"s_memrealtime {sTp[0]}")
    I("s_waitcnt lgkmcnt(0)")
    I(f"v_writelane_b32 {vTs}, {sR0[0]}, 62")
    I(f"v_writelane_b32 {vTs}, {sTp[0][0]}, 63")
    I(f"v_writelane_b32 {vTs}, {sSpin}, 61")
    I(f"s_lshl_b32 {sT[0]}, s2, 10")
    I(f"s_add_u32 {sT[0]}, {sT[0]}, {TS}")
    I(f"v_lshlrev_b32 {t0}, 2, v0")
    I(f"buffer_store_dword {vTs}, {t0}, {rWS}, {sT[0]} offen")
    print(f"\nNTS={n}", file=sys.stderr)
if PROBE:
    I("s_waitcnt lgkmcnt(0)")
    I(f"s_sub_u32 {sT[0]}, {sTp[0][0]}, {sT0[0]}")
    I(f"s_min_u32 {sT[0]}, {sT[0]}, 100000")
    I(f"s_memrealtime {sT0}")
    I("L_spin:")
    I(f"s_memrealtime {sTp[0]}")
    I("s_waitcnt lgkmcnt(0)")
    I(f"s_sub_u32 {sT[1]}, {sTp[0][0]}, {sT0[0]}")
    I(f"s_cmp_lt_u32 {sT[1]}, {sT[0]}")
    I("s_cbranch_scc1 L_spin")
I("L_end:")
I("s_endpgm")
P.ins.extend(slow)
if opt('cpf'):
    I(".fill 1024, 4, 0xbf800000")

body = P.finalize()
ref = open(f"cdna_kernels/{NAME}.s.ref").read()
hdr = "".join(l + "\n" for l in ref.split("\n") if l.startswith(";") and "@launch" not in l)
out = hdr + f"; @launch grid=(256,1,1) block=(256,1,1) lds={LDS_SIZE}\n"
out += f"""; NTS={nts[0] if TSTAMP else 0} LAYOUT=2 WSOFF={WSOFF}
.amdgcn_target "amdgcn-amd-amdhsa--gfx950"
.text
.globl {NAME}_kernel
.p2align 8
.type {NAME}_kernel,@function
{NAME}_kernel:
{body}
.section .rodata,"a"
.p2align 6
.amdhsa_kernel {NAME}_kernel
  .amdhsa_next_free_vgpr 512
  .amdhsa_next_free_sgpr 102
  .amdhsa_accum_offset 256
  .amdhsa_group_segment_fixed_size 0
  .amdhsa_kernarg_size 120
  .amdhsa_user_sgpr_count 2
  .amdhsa_user_sgpr_kernarg_segment_ptr 1
  .amdhsa_system_sgpr_workgroup_id_x 1
.end_amdhsa_kernel
"""
dst = [a for a in sys.argv[1:] if not a.startswith('--')][0]
open(dst, "w").write(out)
print(f"instrs {len(P.ins)} nops {P.nops} vgpr hi {V.hi} sgpr hi {S.hi}", file=sys.stderr)
```

```python
import sys
from dsl import *

NAME = "adaLN_cond__ssm_conv_h3__glu_gated_bilinear__prompt"
OPT = {}
for a_ in sys.argv[1:]:
    if a_.startswith('--'):
        k, _, v = a_[2:].partition('='); OPT[k] = v if v else '1'
def opt(k, d=0): return type(d)(OPT.get(k, d))
TSTAMP = opt('ts')
PROBE = tuple(int(x) for x in OPT['probe'].split(',')) if 'probe' in OPT else None
NT = "nt" if opt('nt') else ""

EPOCH=0; F3=0x10000; F1=0x20000; FX=0x30000; F4=0x40000; F5=0x60000
MODG=0x90000; STG=0xA8000; C12=0xB0000; MODL2=0x880000
KVG=0x100000; XG=0x500000; X1T=0x900000; WP=0xB00000; WDP=0xF00000; HH=0x1100000; SG=0x1800000; TS=0x1900000
WS_SIZE=0x1A00000
OOB=0x80000000
FSH=opt('fsh', 4); F6=0x18000 if FSH <= 5 else 0xF0000
UB=0; UCH=4608; MODL=9216; CBL=10240; C12L=11264
TAPS=15360; TCOPY=4160; TCH=33280
RED=131072
WL=0; NXS=11; XS=114688; XSW=NXS*1024; EX=159744; NG=7
WDS0=81920; WDW0=12288
LDS_SIZE=163840

P = Prog(); I = P.I; V = P.V; A = P.A; S = P.S
S.reserve(0, 3); V.reserve(0, 1)
def srd(): return S.alloc(4, 4)
rX, rK, rV, rSH, rTP, rW, rWD, rC, rWM, rOUT, rWS = [srd() for _ in range(11)]
sPG = S.alloc(2, 2); sPU = S.alloc(2, 2); sPD = S.alloc(2, 2)
sXJ = S.alloc(); sGI = S.alloc(); sWv = S.alloc(); sSpin = S.alloc()
sT = [S.alloc() for _ in range(6)]
sZ = [S.alloc() for _ in range(2)]
sC4096 = S.alloc(); sC8192 = S.alloc(); sC12288 = S.alloc()
sPL = S.alloc(); sPH = S.alloc(); sHI = S.alloc(); sONE = S.alloc()
sD = S.alloc(); sD0 = S.alloc()
sTp = [S.alloc(2, 2), S.alloc(2, 2)]; sT0 = S.alloc(2, 2)

class Frags:
    def __init__(self, n, pool=None): self.g = [(pool or V).alloc(4) for _ in range(n)]
    def __getitem__(self, i):
        if isinstance(i, slice):
            assert i.start//4 == (i.stop-1)//4
            return self.g[i.start//4][i.start%4:(i.stop-1)%4+1]
        return self.g[i//4][i%4]
    def free(self):
        for g in self.g: g.free()

nts = [0]
def stamp(name=""):
    n = nts[0]; nts[0] += 1
    if PROBE:
        if n == PROBE[0]: I(f"s_memrealtime {sT0}")
        if n == PROBE[1]: I(f"s_memrealtime {sTp[0]}")
        return
    if not TSTAMP: return
    if n >= 2: I(f"v_writelane_b32 {vTs}, {sTp[n&1][0]}, {n-2}")
    I(f"s_memtime {sTp[n&1]}")
    print(f"{n}:{name}", file=sys.stderr, end="  ")

slow = []
def check_tags(tags, reissue, toks):
    R = P.label("chk"); SL = P.label("slow"); D = P.label("ok")
    P.wait(toks)
    mn = V.alloc(); mx = V.alloc()
    I(f"{R}:")
    tg = list(tags)
    if len(tg) == 1:
        I(f"v_cmp_ne_u32 vcc, {tg[0]}, {vTag}")
    else:
        if len(tg) % 2: tg.append(tg[0])
        for i in range(0, len(tg), 2):
            I(f"v_min3_u32 {mn}, {vTag if i==0 else mn}, {tg[i]}, {tg[i+1]}")
            I(f"v_max3_u32 {mx}, {vTag if i==0 else mx}, {tg[i]}, {tg[i+1]}")
        I(f"v_cmp_ne_u32 vcc, {mn}, {mx}")
    I(f"s_cbranch_vccnz {SL}")
    I(f"{D}:")
    mn.free(); mx.free()
    save = (P.ins, P.vm, P.lg, P.vm_done, P.lg_done)
    P.ins = []
    I(f"{SL}:")
    I(f"s_add_u32 {sSpin}, {sSpin}, 1")
    I(f"s_cmp_gt_u32 {sSpin}, 200000")
    I(f"s_cbranch_scc1 {D}")
    reissue()
    I("s_waitcnt vmcnt(0)")
    I(f"s_branch {R}")
    slow.extend(P.ins)
    P.ins, P.vm, P.lg, P.vm_done, P.lg_done = save

def post_flag(vaddr, base):
    I(f"s_mov_b32 {sZ[0]}, {base}")
    return I(f"buffer_store_dword {vTag}, {vaddr}, {rWS}, {sZ[0]} offen sc1")
def flag_load(vp, vaddr, base):
    I(f"s_mov_b32 {sZ[0]}, {base}")
    return I(f"buffer_load_dword {vp}, {vaddr}, {rWS}, {sZ[0]} offen sc1")
def poll(vaddr, base):
    vp = V.alloc()
    t = flag_load(vp, vaddr, base)
    check_tags([vp], lambda: flag_load(vp, vaddr, base), t)
    vp.free()
sRel = S.alloc()
def post_local(vaddr, base):
    if not LOC: return post_flag(vaddr, base)
    I(f"s_mov_b32 {sZ[0]}, {base}")
    return I(f"buffer_store_dword {vTagL}, {vaddr}, {rWS}, {sZ[0]} offen")
def check_local(vp, vpoll, vown, base, tok):
    if not LOC: return check_tags([vp], lambda: flag_load(vp, vpoll, base), tok)
    SL = P.label("lslow"); D = P.label("lok"); RL = P.label("lrel"); AG = P.label("lagain"); NR = P.label("lnorel")
    P.wait(tok)
    I(f"v_cmp_ne_u32 vcc, {vp}, {vTagL}")
    I(f"s_cbranch_vccnz {SL}")
    I(f"{D}:")
    save = (P.ins, P.vm, P.lg, P.vm_done, P.lg_done)
    P.ins = []
    I(f"{SL}:")
    I(f"s_mov_b32 {sRel}, 0")
    I(f"{AG}:")
    I(f"s_add_u32 {sSpin}, {sSpin}, 1")
    I(f"s_cmp_gt_u32 {sSpin}, 200000")
    I(f"s_cbranch_scc1 {D}")
    flag_load(vp, vpoll, base)
    I("s_waitcnt vmcnt(0)")
    I(f"v_cmp_ne_u32 vcc, {vp}, {vTagL}")
    I(f"s_cbranch_vccz {D}")
    I(f"s_cmp_ge_u32 {sRel}, 0x10000")
    I(f"s_cbranch_scc1 {NR}")
    I(f"s_add_u32 {sRel}, {sRel}, 1")
    I(f"s_cmp_ge_u32 {sRel}, {opt('ltry', 40)}")
    I(f"s_cbranch_scc1 {RL}")
    I(f"v_cmp_eq_u32 vcc, {vp}, {vTag}")
    I(f"s_cbranch_vccz {AG}")
    I(f"{RL}:")
    I("buffer_wbl2 sc1")
    I("s_waitcnt vmcnt(0)")
    post_flag(vown, base)
    I(f"s_mov_b32 {sRel}, 0x10000")
    I(f"{NR}:")
    I(f"v_cmp_ne_u32 vcc, {vp}, {vTagL}")
    I(f"v_cmp_ne_u32 {sTp2}, {vp}, {vTag}")
    I(f"s_and_b64 {sTp2}, vcc, {sTp2}")
    I(f"s_cbranch_scc1 {AG}")
    I("s_waitcnt vmcnt(0)")
    I(f"s_branch {D}")
    slow.extend(P.ins)
    P.ins, P.vm, P.lg, P.vm_done, P.lg_done = save
def unpack(dst, src, hi):
    I(f"v_and_b32 {dst}, {sHI}, {src}" if hi else f"v_lshlrev_b32 {dst}, 16, {src}")
def round_bf16(dst, src):
    I(f"v_cvt_pk_bf16_f32 {dst}, {src}, {src}")
    I(f"v_and_b32 {dst}, {sHI}, {dst}")
def lane0(dst, sval, tmp):
    I(f"v_mov_b32 {dst}, {OOB}")
    I(f"v_writelane_b32 {dst}, {sval}, 0")

I("s_cmp_ge_u32 s2, 256")
I("s_cbranch_scc1 L_end")
if PROBE and PROBE[0] == -1: I(f"s_memrealtime {sT0}")
if TSTAMP:
    I(f"s_memtime {sT0}")
    sR0 = S.alloc(2, 2); I(f"s_memrealtime {sR0}")
for r, off in ((rK,8),(rV,16),(rSH,24),(rWS,112),(rC,80),(rWM,88),(rX,0),(rTP,32),(rWD,72),(rOUT,96)):
    I(f"s_load_dwordx2 {r[0:2]}, s[0:1], {off}")
I(f"s_load_dwordx2 {sPG}, s[0:1], 56")
I(f"s_load_dwordx2 {sPU}, s[0:1], 64")
I(f"s_load_dwordx2 {sPD}, s[0:1], 40")
vL = V.alloc(); vL16 = V.alloc(); vTag = V.alloc(); vHH = V.alloc(); vQ = V.alloc(); vT16 = V.alloc()
if TSTAMP: vTs = V.alloc()
t0 = V.alloc(); t1 = V.alloc(); t2 = V.alloc()
I(f"s_and_b32 {sXJ}, s2, 7")
I(f"s_lshr_b32 {sGI}, s2, 3")
I(f"v_lshrrev_b32 {t0}, 6, v0")
I(f"v_and_b32 {vL}, 63, v0")
I(f"v_readfirstlane_b32 {sWv}, {t0}")
I(f"v_lshlrev_b32 {vL16}, 4, {vL}")
I(f"v_lshlrev_b32 {vT16}, 4, v0")
if opt('cpf'):
    cpa = V.alloc(2); cpd = V.alloc(4)
    I(f"s_getpc_b64 {sTp[0]}")
    I(f"s_and_b32 {sT[0]}, {sGI}, 7")
    I(f"s_min_u32 {sT[0]}, {sT[0]}, 5")
    I(f"s_lshl_b32 {sT[0]}, {sT[0]}, 12")
    I(f"s_add_u32 {sTp[0][0]}, {sTp[0][0]}, {sT[0]}")
    I(f"s_addc_u32 {sTp[0][1]}, {sTp[0][1]}, 0")
    I(f"v_mov_b32 {cpa[1]}, {sTp[0][1]}")
    I(f"v_add_co_u32 {cpa[0]}, vcc, {sTp[0][0]}, {vT16}")
    I(f"v_addc_co_u32 {cpa[1]}, vcc, 0, {cpa[1]}, vcc")
    I(f"global_load_dwordx4 {cpd}, {cpa}, off")
for r, n in ((rK,2097152),(rV,2097152),(rSH,4096),(rWS,WS_SIZE),(rC,1024),(rWM,3145728),(rX,2097152),(rTP,2097152),(rWD,1835008),(rOUT,2097152),(rW,1835008)):
    I(f"s_mov_b32 {r[2]}, {n}")
    I(f"s_mov_b32 {r[3]}, 0x20000")
I(f"v_lshrrev_b32 {vHH}, 5, {vL}")
I(f"v_and_b32 {vQ}, 31, {vL}")
I(f"s_mov_b32 {sSpin}, 0")
I(f"s_movk_i32 {sC4096}, 0x1000")
I(f"s_movk_i32 {sC8192}, 0x2000")
I(f"s_movk_i32 {sC12288}, 0x3000")
vB = V.alloc(); vH = V.alloc(); vSH = V.alloc(); vGS = V.alloc()
I(f"s_lshl_b32 {sT[0]}, {sGI}, 16")
I(f"s_lshl_b32 {sT[1]}, {sXJ}, 7")
I(f"s_lshl_b32 {sT[2]}, {sWv}, 5")
I(f"s_add_u32 {sT[1]}, {sT[1]}, {sT[2]}")
I(f"s_add_u32 {sT[0]}, {sT[0]}, {sT[1]}")
I(f"v_lshrrev_b32 {t0}, 3, {vL}")
I(f"v_and_b32 {t1}, 7, {vL}")
I(f"v_lshlrev_b32 {vB}, 13, {t0}")
I(f"v_lshl_add_u32 {vB}, {t1}, 2, {vB}")
I(f"v_add_u32 {vB}, {sT[0]}, {vB}")
I(f"v_subrev_u32 {vH}, 3072, {vB}")
I(f"s_lshl_b32 {sT[2]}, {sT[1]}, 2")
I(f"v_lshlrev_b32 {vSH}, 4, {t1}")
I(f"v_add_u32 {vSH}, {sT[2]}, {vSH}")
I(f"v_mov_b32 {t2}, {EPOCH}")
I("s_waitcnt lgkmcnt(0)")
WSOFF = opt('wsoff', 0) << 20
if WSOFF:
    I(f"s_add_u32 {rWS[0]}, {rWS[0]}, {WSOFF}")
    I(f"s_addc_u32 {rWS[1]}, {rWS[1]}, 0")
LOC = opt('loc', 1); LST = '' if LOC else 'sc1'
vTagL = V.alloc()
PT = V.alloc(4)
Kr = V.alloc(11, 1); Vr = V.alloc(8, 1); SHr = V.alloc(4)
tep = I(f"buffer_load_dword {vTag}, {t2}, {rWS}, 0 offen sc1")
tsh = I(f"buffer_load_dwordx4 {SHr}, {vSH}, {rSH}, 0 offen")
PTA = OPT.get('pta', 'sc1')
def pretouch(base):
    I(f"s_lshl_b32 {sZ[0]}, {sXJ}, 18")
    I(f"s_lshl_b32 {sZ[1]}, {sGI}, 13")
    I(f"s_add_u32 {sZ[0]}, {sZ[0]}, {sZ[1]}")
    I(f"s_add_u32 {sZ[0]}, {sZ[0]}, {base}")
    I(f"s_add_u32 {sZ[1]}, {sZ[0]}, 4096")
    for c in range(2): I(f"buffer_load_dwordx4 {PT}, {vT16}, {rWS}, {sZ[c]} offen {PTA}")
if LOC and opt('ptfirst', 0): pretouch(KVG)
tk = []
for e in range(3): tk.append(I(f"buffer_load_dword {Kr[e]}, {vH}, {rK}, 0 offen offset:{e*1024} {NT}"))
for e in range(8): tk.append(I(f"buffer_load_dword {Kr[3+e]}, {vB}, {rK}, {sC4096 if e>=4 else 0} offen offset:{(e&3)*1024} {NT}"))
tv = [I(f"buffer_load_dword {Vr[e]}, {vB}, {rV}, {sC4096 if e>=4 else 0} offen offset:{(e&3)*1024} {NT}") for e in range(8)]
vH.free(); vSH.free()
if LOC and not opt('ptfirst', 0): pretouch(KVG)
vBP = V.alloc()
I(f"s_lshl_b32 {sT[2]}, {sT[1]}, 11")
I(f"s_lshl_b32 {sT[3]}, {sGI}, 7")
I(f"s_add_u32 {sT[2]}, {sT[2]}, {sT[3]}")
I(f"v_lshlrev_b32 {vGS}, 13, {t0}")
I(f"v_lshl_add_u32 {vGS}, {t1}, 4, {vGS}")
I(f"v_add_u32 {vGS}, {sT[2]}, {vGS}")
I(f"v_lshlrev_b32 {vBP}, 5, {t1}")
I(f"v_lshl_add_u32 {vBP}, {t0}, 2, {vBP}")
I(f"s_mov_b32 {sPL}, 0x05040100")
I(f"s_mov_b32 {sPH}, 0x07060302")
I(f"s_mov_b32 {sHI}, 0xffff0000")
I(f"s_mov_b32 {sONE}, 0x3f803f80")
sM = S.alloc(); sKS = S.alloc(); sCB = S.alloc()
I(f"s_and_b32 {sM}, {sGI}, 1")
I(f"s_cmp_eq_u32 {sM}, 0")
I(f"s_cselect_b32 {rW[0]}, {sPG[0]}, {sPU[0]}")
I(f"s_cselect_b32 {rW[1]}, {sPG[1]}, {sPU[1]}")
I(f"s_lshl_b32 {sD0}, {sXJ}, 6")
I(f"s_lshl_b32 {sT[4]}, {sGI}, 1")
I(f"s_add_u32 {sD0}, {sD0}, {sT[4]}")
I(f"s_lshl_b32 {sT[4]}, {sD0}, 1")
I(f"s_load_dword {sD}, {sPD}, {sT[4]}")
I(f"s_lshl_b32 {sKS}, {sXJ}, 2")
I(f"s_add_u32 {sKS}, {sKS}, {sWv}")
I(f"s_lshr_b32 {sCB}, {sGI}, 1")
sPG.free(); sTp2 = sPU

G = {}
def A_mod():
    G['vMW'] = vMW = V.alloc(); G['vMC'] = vMC = V.alloc()
    I(f"s_and_b32 {sT[4]}, {sGI}, 3")
    I(f"s_lshl_b32 {sT[4]}, {sT[4]}, 7")
    I(f"v_lshrrev_b32 {t2}, 3, v0")
    I(f"v_add_u32 {t2}, {sT[4]}, {t2}")
    I(f"v_lshlrev_b32 {vMC}, 1, {t2}")
    I(f"v_mul_u32_u24 {vMW}, 6144, {t2}")
    I(f"v_and_b32 {t2}, 7, v0")
    I(f"v_lshl_add_u32 {vMW}, {t2}, 4, {vMW}")
    I(f"s_lshr_b32 {sT[4]}, {sGI}, 2")
    I(f"s_lshl_b32 {sT[4]}, {sT[4]}, 10")
    I(f"s_lshl_b32 {sT[5]}, {sXJ}, 7")
    I(f"s_add_u32 {sT[4]}, {sT[4]}, {sT[5]}")
    I(f"s_cmp_lt_u32 {sGI}, 24")
    I(f"s_cselect_b32 {sT[4]}, {sT[4]}, {OOB}")
    I(f"v_add_u32 {vMW}, {sT[4]}, {vMW}")
def L_mod():
    vMW, vMC = G['vMW'], G['vMC']
    G['Cr'] = Cr = V.alloc(4, 1); G['WMr'] = WMr = V.alloc(16)
    G['tc'] = [I(f"buffer_load_ushort {Cr[i]}, {vMC}, {rC}, 0 offen offset:{64*i}") for i in range(4)]
    G['twm'] = []
    for i in range(4):
        I(f"s_mov_b32 {sT[5]}, {i*32*6144}")
        G['twm'].append(I(f"buffer_load_dwordx4 {WMr[4*i:4*i+4]}, {vMW}, {rWM}, {sT[5]} offen {NT}"))
    vMW.free(); vMC.free()
def L_taps():
    G['TP'] = TP = [V.alloc(8), V.alloc(8)]
    I(f"s_lshl_b32 {sT[4]}, {sD0}, 12")
    I(f"s_add_u32 {sT[5]}, {sT[4]}, 4096")
    I(f"v_subrev_u32 {t2}, 16, {vT16}")
    I(f"v_min_u32 {t2}, {OOB}, {t2}")
    G['ttp'] = []
    for c in range(2):
        G['ttp'].append([I(f"buffer_load_dwordx4 {TP[c][4:8]}, {vT16}, {rTP}, {sT[4+c]} offen"),
                         I(f"buffer_load_dwordx4 {TP[c][0:4]}, {t2}, {rTP}, {sT[4+c]} offen")])
def L_w():
    G['WR'] = WR = V.alloc(16)
    I(f"s_mul_i32 {sT[0]}, {sKS}, {16*3584}")
    I(f"s_mul_i32 {sT[1]}, {sCB}, 224")
    I(f"s_add_u32 {sT[0]}, {sT[0]}, {sT[1]}")
    I(f"v_mul_u32_u24 {t2}, {8*3584}, {vHH}")
    I(f"v_lshl_add_u32 {t2}, {vQ}, 3, {t2}")
    G['twr'] = []
    for e in range(8):
        if e and e % 2 == 0: I(f"s_add_u32 {sT[0]}, {sT[0]}, 7168")
        G['twr'].append(I(f"buffer_load_dwordx2 {WR[2*e:2*e+2]}, {t2}, {rW}, {sT[0]} offen offset:{(e&1)*3584} {NT}"))
def L_x():
    G['Xr'] = Xr = V.alloc(8, 1)
    G['tx'] = [I(f"buffer_load_dword {Xr[e]}, {vB}, {rX}, {sC4096 if e>=4 else 0} offen offset:{(e&3)*1024}") for e in range(8)]
    vB.free()
def L_xr():
    G['XR'] = XR = V.alloc(8)
    I(f"s_lshl_b32 {sT[0]}, s2, 13")
    I(f"s_lshl_b32 {sT[1]}, {sWv}, 11")
    I(f"s_add_u32 {sT[0]}, {sT[0]}, {sT[1]}")
    G['txr'] = [I(f"buffer_load_dwordx4 {XR[4*i:4*i+4]}, {vL16}, {rX}, {sT[0]} offen offset:{1024*i}") for i in range(2)]
def zero_pads():
    z4 = V.alloc(4)
    for i in range(4): I(f"v_mov_b32 {z4[i]}, 0")
    I(f"v_lshlrev_b32 {t2}, 4, {vQ}")
    I(f"v_mul_u32_u24 {t0}, {UCH}, {vHH}")
    I(f"v_add_u32 {t2}, {t2}, {t0}")
    I(f"ds_write_b128 {t2}, {z4} offset:{UB+4096}")
    I(f"v_and_b32 {t2}, 15, {vL}")
    I(f"v_mul_u32_u24 {t2}, {TCOPY}, {t2}")
    I(f"ds_write_b128 {t2}, {z4} offset:{TAPS}")
    z4.free()
def C_tag():
    P.wait(tep)
    if opt('cpf'): cpa.free(); cpd.free()
    I(f"s_mov_b32 {sT[0]}, 0x9E3779B1")
    I(f"v_mul_lo_u32 {vTag}, {vTag}, {sT[0]}")
    I(f"v_add_u32 {vTag}, 0x7F4A7C15, {vTag}")
    I(f"s_getreg_b32 {sT[0]}, hwreg(HW_REG_XCC_ID, 0, 4)")
    I(f"s_add_u32 {sT[0]}, {sT[0]}, 1")
    I(f"v_xor_b32 {vTagL}, {sT[0]}, {vTag}")
def tr_store(src, base):
    GR = Frags(2)
    tl = [I(f"ds_bpermute_b32 {GR[i]}, {vBP}, {src[i]}") for i in range(8)]
    I(f"s_mov_b32 {sT[0]}, {base}")
    I(f"s_mov_b32 {sT[1]}, {base+4096}")
    out = []
    for c in range(2):
        P.wait(tl[4*c:4*c+4])
        out.append(I(f"buffer_store_dwordx4 {GR[4*c:4*c+4]}, {vGS}, {rWS}, {sT[c]} offen {LST}"))
    GR.free()
    return out
def flag_setup():
    G['vFo'] = V.alloc(); G['vFp'] = V.alloc()
    I(f"s_lshl_b32 {sT[0]}, {sKS}, 5")
    I(f"s_add_u32 {sT[0]}, {sT[0]}, {sGI}")
    I(f"s_lshl_b32 {sT[0]}, {sT[0]}, 6")
    lane0(G['vFo'], sT[0], t1)
    I(f"s_lshr_b32 {sT[0]}, {sGI}, 3")
    I(f"s_lshl_b32 {sT[1]}, {sXJ}, 2")
    I(f"s_add_u32 {sT[0]}, {sT[0]}, {sT[1]}")
    I(f"s_lshl_b32 {sT[0]}, {sT[0]}, 2")
    I(f"s_add_u32 {sT[0]}, {sT[0]}, {sWv}")
    I(f"s_lshl_b32 {sT[0]}, {sT[0]}, 3")
    I(f"v_and_b32 {t0}, 7, {vL}")
    I(f"v_add_lshl_u32 {G['vFp']}, {t0}, {sT[0]}, 6")
def C_kv():
    I('s_waitcnt lgkmcnt(0)'); P.lg_done = P.lg
    kf = V.alloc(22); wp = V.alloc(8); acc = V.alloc(16)
    P.wait(tsh)
    for j in range(4):
        for c in range(2): unpack(wp[2*j+c], SHr[2*c + (j>>1)], j & 1)
    stamp('pre-k'); P.wait(tk[:opt('kw', 3)]); G['afterk'](); P.wait(tk); stamp('k in')
    for e in range(11):
        unpack(kf[2*e], Kr[e], 0); unpack(kf[2*e+1], Kr[e], 1)
    for e in range(8): I(f"v_pk_mul_f32 {acc[2*e:2*e+2]}, {kf[2*e:2*e+2]}, {wp[6:8]}")
    for j in (2, 1, 0):
        for e in range(8):
            q = e + 3 - j
            I(f"v_pk_fma_f32 {acc[2*e:2*e+2]}, {kf[2*q:2*q+2]}, {wp[2*j:2*j+2]}, {acc[2*e:2*e+2]}")
    P.wait(tv)
    for e in range(8):
        unpack(kf[2*e], Vr[e], 0); unpack(kf[2*e+1], Vr[e], 1)
    for e in range(8): I(f"v_pk_mul_f32 {acc[2*e:2*e+2]}, {acc[2*e:2*e+2]}, {kf[2*e:2*e+2]}")
    for c in range(2):
        for n in range(4):
            I(f"v_cvt_pk_bf16_f32 {wp[4*c+n]}, {acc[2*(7-2*n)+c]}, {acc[2*(6-2*n)+c]}")
    G['tks'] = tr_store(wp, KVG)
    for r in (kf, wp, acc, Kr, Vr, SHr): r.free()
def C_mod():
    Cr, WMr = G['Cr'], G['WMr']
    P.wait(G['tc'])
    sl = V.alloc(4, 1); sp = V.alloc(2, 1)
    for i in range(4): I(f"v_lshlrev_b32 {Cr[i]}, 16, {Cr[i]}")
    for i in range(4): I(f"v_mul_f32 {sl[i]}, 0xbfb8aa3b, {Cr[i]}")
    for i in range(4): I(f"v_exp_f32 {sl[i]}, {sl[i]}")
    for i in range(4): I(f"v_add_f32 {sl[i]}, 1.0, {sl[i]}")
    for i in range(4): I(f"v_rcp_f32 {sl[i]}, {sl[i]}")
    for i in range(4): I(f"v_mul_f32 {sl[i]}, {sl[i]}, {Cr[i]}")
    I(f"v_cvt_pk_bf16_f32 {sp[0]}, {sl[0]}, {sl[1]}")
    I(f"v_cvt_pk_bf16_f32 {sp[1]}, {sl[2]}, {sl[3]}")
    I(f"v_and_b32 {t0}, 7, {vL}")
    I(f"v_lshlrev_b32 {t0}, 7, {t0}")
    I(f"v_lshrrev_b32 {t1}, 4, {vL}")
    I(f"v_lshl_add_u32 {t0}, {t1}, 5, {t0}")
    I(f"s_lshl_b32 {sT[0]}, {sWv}, 2")
    I(f"v_add_u32 {t0}, {sT[0]}, {t0}")
    ma = V.alloc(8, 1); mp = V.alloc(8, 1)
    for half in range(2):
        P.wait(G['twm'][2*half:2*half+2])
        for j in range(4):
            I(f"v_perm_b32 {mp[2*j]}, {WMr[8*half+4+j]}, {WMr[8*half+j]}, {sPL}")
            I(f"v_perm_b32 {mp[2*j+1]}, {WMr[8*half+4+j]}, {WMr[8*half+j]}, {sPH}")
        for j in range(8):
            I(f"v_dot2_f32_bf16 {ma[j]}, {mp[j]}, {sp[half]}, {0 if half==0 else ma[j]}")
    for i in range(4): I(f"v_permlane32_swap_b32 {ma[i]}, {ma[i+4]}")
    for i in range(4): I(f"v_add_f32 {ma[i]}, {ma[i]}, {ma[i+4]}")
    for i in range(2): I(f"v_permlane16_swap_b32 {ma[i]}, {ma[i+2]}")
    for i in range(2): I(f"v_add_f32 {ma[i]}, {ma[i]}, {ma[i+2]}")
    for i in range(2): I(f"v_add_f32_dpp {ma[i]}, {ma[i]}, {ma[i]} row_ror:8 row_mask:0xf bank_mask:0xf")
    I(f"ds_write_b32 {t0}, {ma[0]} offset:{MODL}")
    I(f"ds_write_b32 {t0}, {ma[1]} offset:{MODL+16}")
    for r in (sl, sp, ma, mp, Cr, WMr): r.free()
def A_mod2():
    I(f"s_lshl_b32 {sT[0]}, {sGI}, 12")
    I(f"s_lshl_b32 {sT[1]}, {sXJ}, 9")
    I(f"s_add_u32 {sT[0]}, {sT[0]}, {sT[1]}")
    I(f"s_add_u32 {sT[0]}, {sT[0]}, {MODG}")
    I(f"s_cmp_lt_u32 {sGI}, 24")
    I(f"s_cselect_b32 {sT[0]}, {sT[0]}, {OOB}")
    I(f"s_cmp_eq_u32 {sWv}, 1")
    I(f"s_cselect_b32 {sT[0]}, {sT[0]}, {OOB}")
    G['vMs'] = V.alloc()
    I(f"v_lshlrev_b32 {t0}, 3, {vL}")
    I(f"v_add_u32 {G['vMs']}, {sT[0]}, {t0}")
def C_mod2():
    vMs = G['vMs']
    I("s_waitcnt lgkmcnt(0)"); P.lg_done = P.lg
    I("s_barrier")
    m4 = V.alloc(4)
    tl = I(f"ds_read_b128 {m4}, {vL16} offset:{MODL}")
    P.wait(tl)
    I(f"v_add_f32 {m4[0]}, {m4[0]}, {m4[1]}")
    I(f"v_add_f32 {m4[2]}, {m4[2]}, {m4[3]}")
    I(f"v_mov_b32 {m4[1]}, {vTag}")
    I(f"v_add_f32 {m4[0]}, {m4[0]}, {m4[2]}")
    if LOC:
        I(f"s_mov_b32 {sT[1]}, {MODL2-MODG}")
        I(f"buffer_store_dwordx2 {m4[0:2]}, {vMs}, {rWS}, {sT[1]} offen")
    G['midmod']()
    I(f"buffer_store_dwordx2 {m4[0:2]}, {vMs}, {rWS}, 0 offen sc1")
    m4.free(); vMs.free()
def C_taps():
    TP = G['TP']
    E1 = V.alloc(6); O0 = V.alloc(6); O1 = V.alloc(6)
    I(f"v_add_u32 {t2}, {TCH}, {vT16}")
    for c in range(2):
        d = TP[c]; ad = vT16 if c == 0 else t2
        P.wait(G['ttp'][c])
        def wr(o, regs): I(f"ds_write_b128 {ad}, {regs} offset:{TAPS + 16 + (o-1)*TCOPY}")
        wr(4, d[2:6]); wr(8, d[4:8])
        for j in range(6): I(f"v_alignbit_b32 {O0[j]}, {d[j+1]}, {d[j]}, 16")
        wr(1, O0[0:4]); wr(5, O0[2:6])
        for j in range(6): I(f"v_alignbit_b32 {O1[j]}, {d[j+2]}, {d[j+1]}, 16")
        wr(3, O1[0:4]); wr(7, O1[2:6])
        for j in range(6): I(f"v_mov_b32 {E1[j]}, {d[j+1]}")
        wr(2, E1[0:4]); wr(6, E1[2:6])
    for r in TP + [E1, O0, O1]: r.free()
def tr_load(R, base):
    I(f"s_lshl_b32 {sT[0]}, {sD0}, 12")
    I(f"s_add_u32 {sT[0]}, {sT[0]}, {base}")
    I(f"s_add_u32 {sT[1]}, {sT[0]}, 4096")
    return [I(f"buffer_load_dwordx4 {R[4*c:4*c+4]}, {vT16}, {rWS}, {sT[c]} offen sc1") for c in range(2)]
def L_u():
    G['UR'] = Frags(2)
    G['tu'] = tr_load(G['UR'], KVG)
def C_u():
    UR = G['UR']
    I(f"v_sub_u32 {t2}, 4080, {vT16}")
    for c in range(2):
        P.wait(G['tu'][c])
        I(f"ds_write_b128 {t2}, {UR[4*c:4*c+4]} offset:{UB+c*UCH}")
def C_x():
    Xr = G['Xr']
    xp = V.alloc(8, 1)
    P.wait(G['tx'])
    for c in range(2):
        for n in range(4):
            I(f"v_perm_b32 {xp[4*c+n]}, {Xr[2*n+1]}, {Xr[2*n]}, {sPH if c else sPL}")
    G['txs_'] = tr_store(xp, XG)
    Xr.free(); vGS.free(); vBP.free(); xp.free()
def C_st():
    XR = G['XR']
    P.wait(G['txr'])
    q4 = V.alloc(4)
    for n in range(4):
        for r in range(2):
            I(f"v_dot2_f32_bf16 {q4[2*r]}, {XR[4*r+n]}, {sONE}, {0 if n==0 else q4[2*r]}")
            I(f"v_dot2_f32_bf16 {q4[2*r+1]}, {XR[4*r+n]}, {XR[4*r+n]}, {0 if n==0 else q4[2*r+1]}")
    I(f"v_permlane32_swap_b32 {q4[0]}, {q4[2]}")
    I(f"v_permlane32_swap_b32 {q4[1]}, {q4[3]}")
    I(f"v_add_f32 {q4[0]}, {q4[0]}, {q4[2]}")
    I(f"v_add_f32 {q4[1]}, {q4[1]}, {q4[3]}")
    I(f"v_permlane16_swap_b32 {q4[0]}, {q4[1]}")
    I(f"v_add_f32 {q4[0]}, {q4[0]}, {q4[1]}")
    for sh in (8, 4, 2, 1):
        I(f"v_add_f32_dpp {q4[0]}, {q4[0]}, {q4[0]} row_ror:{sh} row_mask:0xf bank_mask:0xf")
    I(f"v_mov_b32 {q4[1]}, {q4[0]}")
    I(f"v_permlane16_swap_b32 {q4[0]}, {q4[1]}")
    finish_stats(q4[0], q4[1], q4[3], t0)
    I(f"v_rsq_f32 {q4[2]}, {t0}")
    I(f"s_lshl_b32 {sT[0]}, s2, 4")
    I(f"s_lshl_b32 {sT[1]}, {sWv}, 12")
    I(f"s_add_u32 {sT[0]}, {sT[0]}, {sT[1]}")
    I(f"s_add_u32 {sT[0]}, {sT[0]}, {STG}")
    I(f"v_cvt_pk_bf16_f32 {q4[0]}, {q4[3]}, {q4[2]}")
    I(f"v_mov_b32 {q4[1]}, {vTag}")
    I(f"v_mov_b32 {q4[2]}, {q4[0]}")
    I(f"v_mov_b32 {q4[3]}, {vTag}")
    I(f"v_permlane32_swap_b32 {q4[0]}, {q4[2]}")
    lane0(t0, sT[0], t1)
    I(f"buffer_store_dwordx4 {q4}, {t0}, {rWS}, 0 offen sc1")
    XR.free(); q4.free()
def finish_stats(vsum, vsq, vnm, vve):
    I(f"v_mul_f32 {vnm}, 0xbb000000, {vsum}")
    I(f"v_mul_f32 {vsq}, 0x3b000000, {vsq}")
    I(f"v_fma_f32 {vve}, -{vnm}, {vnm}, {vsq}")
    I(f"v_max_f32 {vve}, 0, {vve}")
    I(f"v_add_f32 {vve}, 0x3727c5ac, {vve}")
def m_addr():
    G['MA'] = MA = V.alloc(6); G['vMa'] = vMa = V.alloc(); G['vMb'] = vMb = V.alloc()
    I(f"v_and_b32 {t0}, 15, {vL}")
    I(f"v_bfe_u32 {t1}, {vL}, 4, 1")
    I(f"v_lshlrev_b32 {vMa}, 3, {t0}")
    I(f"v_lshl_add_u32 {vMa}, {t1}, 14, {vMa}")
    I(f"v_lshl_add_u32 {vMa}, {vHH}, 13, {vMa}")
    I(f"s_lshl_b32 {sT[0]}, {sKS}, 7")
    I(f"s_add_u32 {sT[0]}, {sT[0]}, {MODG + 3*16384}")
    I(f"v_add_u32 {vMa}, {sT[0]}, {vMa}")
    I(f"v_and_b32 {t0}, 3, {vL}")
    I(f"v_lshlrev_b32 {vMb}, 12, {t0}")
    I(f"v_bfe_u32 {t0}, {vL}, 2, 1")
    I(f"v_lshl_add_u32 {vMb}, {t0}, 3, {vMb}")
    I(f"v_bfe_u32 {t0}, {vL}, 3, 2")
    I(f"v_lshl_add_u32 {vMb}, {t0}, 14, {vMb}")
    I(f"s_lshl_b32 {sT[0]}, {sD0}, 3")
    I(f"s_add_u32 {sT[0]}, {sT[0]}, {MODG}")
    I(f"v_add_u32 {vMb}, {sT[0]}, {vMb}")
def m_loads(retry=False, dst=None):
    MA = G['MA']
    if LOC and retry:
        I(f"s_and_b32 {sZ[0]}, {sSpin}, 7")
        I(f"s_cmp_eq_u32 {sZ[0]}, 0")
        I(f"s_cselect_b32 {sZ[0]}, 0, {MODL2-MODG}")
    else: I(f"s_mov_b32 {sZ[0]}, {MODL2-MODG if LOC else 0}")
    I(f"s_add_u32 {sZ[1]}, {sZ[0]}, 4096")
    return [I(f"buffer_load_dwordx2 {MA[0:2]}, {G['vMa']}, {rWS}, {sZ[0]} offen sc1"),
            I(f"buffer_load_dwordx2 {MA[2:4]}, {G['vMa']}, {rWS}, {sZ[1]} offen sc1"),
            I(f"buffer_load_dwordx2 {MA[4:6]}, {G['vMb']}, {rWS}, {sZ[0]} offen sc1")]
def C_wunpack():
    WR = G['WR']
    G['wf'] = wf = Frags(8)
    P.wait(G['twr'])
    for e in range(8):
        for h in range(2):
            unpack(wf[4*e+2*h], WR[2*e+h], 0); unpack(wf[4*e+2*h+1], WR[2*e+h], 1)
def C_m():
    MA = G['MA']
    check_tags([MA[1], MA[3], MA[5]], lambda: m_loads(True), G['tm'])
    G['vMa'].free(); G['vMb'].free()
def m_ops():
    MA = G['MA']; u0 = MA[1]; u1 = MA[3]
    seq = [f"v_add_f32 {MA[0]}, {MA[0]}, {MA[2]}",
           f"v_bfe_u32 {u1}, {vL}, 4, 1",
           f"v_mov_b32 {MA[2]}, {MA[0]}",
           f"v_cvt_f32_u32 {u1}, {u1}",
           f"v_lshlrev_b32 {u0}, 2, {vQ}",
           f"v_permlane32_swap_b32 {MA[0]}, {MA[2]}",
           f"v_add_u32 {u0}, {sWDs}, {u0}",
           f"v_add_f32 {MA[0]}, {MA[0]}, {MA[2]}",
           f"v_cvt_pk_bf16_f32 {MA[0]}, {MA[0]}, {MA[0]}", f"v_and_b32 {MA[0]}, {sHI}, {MA[0]}",
           f"v_add_f32 {MA[0]}, {MA[0]}, {u1}",
           f"v_cvt_pk_bf16_f32 {MA[0]}, {MA[0]}, {MA[0]}", f"v_and_b32 {MA[0]}, {sHI}, {MA[0]}",
           f"ds_write_b32 {u0}, {MA[0]} offset:{CBO}"]
    return [(lambda x=x: I(x)) for x in seq]
CBO = 11264; C12O = 10240
sWst = S.alloc()
def w_addr():
    G['vWs'] = vWs = V.alloc(); G['vCw'] = vCw = V.alloc()
    I(f"s_mul_i32 {sWst}, {sCB}, 229376")
    I(f"s_lshl_b32 {sT[1]}, {sM}, 9")
    I(f"s_add_u32 {sWst}, {sWst}, {sT[1]}")
    I(f"s_add_u32 {sWst}, {sWst}, {WP}")
    I(f"s_lshl_b32 {sT[1]}, {sKS}, 12")
    I(f"s_lshl_b32 {sT[2]}, {sKS}, 10")
    I(f"v_lshrrev_b32 {t0}, 2, {vQ}")
    I(f"v_lshlrev_b32 {vWs}, 10, {t0}")
    I(f"v_add_u32 {vWs}, {sT[1]}, {vWs}")
    I(f"v_lshlrev_b32 {t2}, 15, {t0}")
    I(f"v_add_u32 {t2}, {sT[2]}, {t2}")
    I(f"v_cmp_gt_u32 vcc, 4, {t0}")
    I(f"v_mov_b32 {t1}, {OOB}")
    I(f"v_cndmask_b32 {vWs}, {t2}, {vWs}, vcc")
    I(f"v_cmp_gt_u32 vcc, 7, {t0}")
    I(f"v_xor_b32 {t2}, {sM}, {vHH}")
    I(f"v_cndmask_b32 {vWs}, {t1}, {vWs}, vcc")
    I(f"v_lshl_add_u32 {vWs}, {t2}, 6, {vWs}")
    I(f"v_and_b32 {t2}, 3, {vQ}")
    I(f"v_lshl_add_u32 {vWs}, {t2}, 4, {vWs}")
    I(f"v_lshlrev_b32 {vCw}, 6, {t0}")
    I(f"v_lshl_add_u32 {vCw}, {t2}, 2, {vCw}")
    I(f"v_lshl_add_u32 {vCw}, {vHH}, 9, {vCw}")
    I(f"v_add_u32 {vCw}, {sWDs}, {vCw}")
def C_w_reads():
    I(f"v_lshlrev_b32 {t0}, 5, {vHH}")
    I(f"v_add_u32 {t0}, {sWDs}, {t0}")
    G['SBv'] = SBv = Frags(2); G['CBv'] = CBv = Frags(2)
    G['tcb'] = [I(f"ds_read_b128 {CBv[0:4]}, {t0} offset:{CBO+64}"), I(f"ds_read_b128 {CBv[4:8]}, {t0} offset:{CBO+80}"),
                I(f"ds_read_b128 {SBv[0:4]}, {t0} offset:{CBO}"), I(f"ds_read_b128 {SBv[4:8]}, {t0} offset:{CBO+16}")]
def w_ops():
    WR = G['WR']; ops = []
    def st0():
        C_w_reads(); G['WO'] = Frags(4); G['pr'] = V.alloc(4, 1)
    ops += [st0, None, None, None, None, None, lambda: P.wait(G['twr'], G['tcb'][0:2])]
    for n in range(4):
        for h in range(2):
            for ee in range(2):
                for x in range(2):
                    ops.append(lambda n=n, h=h, ee=ee, x=x: unpack(G['pr'][2*x+ee], WR[2*(2*n+ee)+h], x))
            for ee in range(2):
                for x in range(2):
                    ops.append(lambda n=n, ee=ee, x=x: I(f"v_mul_f32 {G['pr'][2*x+ee]}, {G['pr'][2*x+ee]}, {G['CBv'][2*n+ee]}"))
            for x in range(2):
                ops.append(lambda n=n, h=h, x=x: I(f"v_cvt_pk_bf16_f32 {G['WO'][4*(2*h+x)+n]}, {G['pr'][2*x]}, {G['pr'][2*x+1]}"))
    G['tws'] = []
    for j in range(4):
        ops.append(lambda j=j: G['tws'].append(I(f"buffer_store_dwordx4 {G['WO'][4*j:4*j+4]}, {G['vWs']}, {rWS}, {sWst} offen offset:{128*j} sc1")))
        ops.append(None)
    def fin(): G['pr'].free(); G['CBv'].free(); G['vWs'].free()
    ops.append(fin)
    return ops
def C_c12():
    WR, wf, SBv, tl = G['WR'], G['wf'], G['SBv'], G['tcb']
    c2 = V.alloc(4); c1 = V.alloc(4)
    P.wait(tl)
    for e in range(8):
        x = e & 1; pe = e & ~1
        for h in range(2):
            if e == 0: I(f"v_pk_mul_f32 {c2[2*h:2*h+2]}, {wf[4*e+2*h:4*e+2*h+2]}, {SBv[pe:pe+2]} op_sel:[0,{x}] op_sel_hi:[1,{x}]")
            else: I(f"v_pk_fma_f32 {c2[2*h:2*h+2]}, {wf[4*e+2*h:4*e+2*h+2]}, {SBv[pe:pe+2]}, {c2[2*h:2*h+2]} op_sel:[0,{x},0] op_sel_hi:[1,{x},1]")
    for n in range(4):
        for j in range(4):
            I(f"v_dot2_f32_bf16 {c1[j]}, {G['WO'][4*j+n]}, {sONE}, {0 if n==0 else c1[j]}")
    for j in range(4): I(f"v_permlane32_swap_b32 {c1[j]}, {c2[j]}")
    for j in range(4): I(f"v_add_f32 {c1[j]}, {c1[j]}, {c2[j]}")
    for j in range(4): I(f"ds_write_b32 {G['vCw']}, {c1[j]} offset:{C12O+16*j}")
    for r in (wf, c1, c2, SBv, WR, G['vCw'], G['WO']): r.free()
def C_c12b():
    c4 = V.alloc(4, 1)
    I(f"v_lshlrev_b32 {t0}, 2, v0")
    I(f"v_add_u32 {t0}, {WDS0+C12O}, {t0}")
    tc4 = [I(f"ds_read_b32 {c4[w]}, {t0} offset:{WDW0*w}") for w in range(4)]
    I(f"s_lshl_b32 {sT[0]}, {sCB}, 3")
    I(f"s_add_u32 {sT[0]}, {sT[0]}, {sXJ}")
    I(f"s_mul_i32 {sT[0]}, {sT[0]}, 1792")
    I(f"s_lshl_b32 {sT[1]}, {sM}, 7")
    I(f"s_add_u32 {sT[0]}, {sT[0]}, {sT[1]}")
    I(f"s_add_u32 {sT[0]}, {sT[0]}, {C12}")
    I(f"v_lshrrev_b32 {t0}, 7, v0")
    I(f"v_lshlrev_b32 {t0}, 2, {t0}")
    I(f"v_bfe_u32 {t1}, v0, 4, 3")
    I(f"v_lshl_add_u32 {t0}, {t1}, 8, {t0}")
    I(f"v_and_b32 {t2}, 15, v0")
    I(f"v_lshl_add_u32 {t0}, {t2}, 3, {t0}")
    I(f"v_mov_b32 {t2}, {OOB}")
    I(f"v_cmp_gt_u32 vcc, 7, {t1}")
    I(f"v_cndmask_b32 {t0}, {t2}, {t0}, vcc")
    P.wait(tc4)
    I(f"v_add_f32 {c4[0]}, {c4[0]}, {c4[1]}")
    I(f"v_add_f32 {c4[2]}, {c4[2]}, {c4[3]}")
    I(f"v_add_f32 {c4[0]}, {c4[0]}, {c4[2]}")
    G['tc12'] = I(f"buffer_store_dword {c4[0]}, {t0}, {rWS}, {sT[0]} offen sc1")
    c4.free()
def A_f3():
    G['vF3'] = V.alloc()
    I(f"s_lshl_b32 {sT[0]}, {sGI}, 5")
    I(f"s_add_u32 {sT[0]}, {sT[0]}, {sKS}")
    I(f"s_lshl_b32 {sT[0]}, {sT[0]}, {FSH}")
    lane0(G['vF3'], sT[0], t1)
def st_loads():
    I(f"s_mov_b32 {sZ[0]}, {STG}")
    I(f"s_mov_b32 {sZ[1]}, {STG+8192}")
    SL = G['SL']
    return [I(f"buffer_load_dwordx4 {SL[0:4]}, {vT16}, {rWS}, {sZ[0]} offen sc1"),
            I(f"buffer_load_dwordx4 {SL[4:8]}, {G['vT16b']}, {rWS}, {sZ[0]} offen sc1"),
            I(f"buffer_load_dwordx4 {SL[8:12]}, {vT16}, {rWS}, {sZ[1]} offen sc1"),
            I(f"buffer_load_dwordx4 {SL[12:16]}, {G['vT16b']}, {rWS}, {sZ[1]} offen sc1")]
def L_xs():
    G['XL'] = Frags(2); G['SL'] = Frags(4); G['vT16b'] = V.alloc()
    I(f"v_add_u32 {G['vT16b']}, 4096, {vT16}")
    G['txl'] = tr_load(G['XL'], XG)
    G['tsl'] = st_loads()
sDf = [S.alloc(), S.alloc()]
def pq_ops():
    MA = G['MA']; mb = MA[4]; u = MA[5]
    G['PQ'] = PQ = V.alloc(4, 1)
    seq = [f"v_add_f32_dpp {mb}, {mb}, {mb} quad_perm:[1,0,3,2] row_mask:0xf bank_mask:0xf", None,
           f"v_add_f32_dpp {mb}, {mb}, {mb} quad_perm:[2,3,0,1] row_mask:0xf bank_mask:0xf",
           f"v_cvt_pk_bf16_f32 {mb}, {mb}, {mb}", f"v_and_b32 {mb}, {sHI}, {mb}",
           f"v_add_f32 {u}, 1.0, {mb}",
           f"v_cvt_pk_bf16_f32 {u}, {u}, {u}", f"v_and_b32 {u}, {sHI}, {u}"]
    for c in range(2):
        seq += [f"v_readlane_b32 {sT[2]}, {mb}, {16+4*c}", f"v_readlane_b32 {sT[3]}, {mb}, {4*c}", f"v_readlane_b32 {sT[4]}, {u}, {8+4*c}",
                f"v_mov_b32 {PQ[2*c+1]}, {sT[2]}", None,
                f"v_mul_f32 {PQ[2*c]}, {sT[4]}, {PQ[2*c+1]}", f"v_mul_f32 {PQ[2*c+1]}, {sT[3]}, {PQ[2*c+1]}"]
    seq += [f"s_lshl_b32 {sDf[0]}, {sD}, 16", f"s_and_b32 {sDf[1]}, {sD}, {sHI}"]
    return [((lambda x=x: I(x)) if x else None) for x in seq] + [lambda: MA.free()]
def pre_ops():
    XL, SL, KVr, PQ = G['XL'], G['SL'], G['UR'], G['PQ']
    ops = []
    def chk():
        check_tags([SL[2*i+1] for i in range(8)], st_loads, G['tsl'])
        G['vT16b'].free()
        G['HG'] = [V.alloc() for _ in range(16)]; G['BS'] = [V.alloc() for _ in range(16)]
    ops.append(chk); ops += [None]*5
    for e in range(8):
        a = SL[2*e]; b = SL[2*e+1]
        ops.append(lambda a=a, b=b: unpack(b, a, 0)); ops.append(lambda a=a: unpack(a, a, 1))
        ops.append(lambda a=a, b=b: I(f"v_mul_f32 {b}, {b}, {a}"))
    for c in range(2):
        for e in range(8):
            i = 8*c+e; tt = [t1, t2][e & 1]
            ops.append(lambda i=i, c=c, e=e: unpack(G['BS'][i], XL[4*c + (e>>1)], e & 1))
            ops.append(lambda tt=tt, c=c, e=e: unpack(tt, KVr[4*c + ((7-e)>>1)], (7-e) & 1))
            ops.append(lambda i=i, e=e: I(f"v_fma_f32 {G['HG'][i]}, {G['BS'][i]}, {SL[2*e]}, {SL[2*e+1]}"))
            ops.append(lambda tt=tt, c=c: I(f"v_mul_f32 {tt}, {sDf[c]}, {tt}"))
            ops.append(lambda i=i, c=c: I(f"v_fma_f32 {G['HG'][i]}, {G['HG'][i]}, {PQ[2*c]}, {PQ[2*c+1]}"))
            ops.append(lambda i=i, tt=tt: I(f"v_fmac_f32 {G['BS'][i]}, {G['HG'][i]}, {tt}"))
    def fin():
        for r in (KVr, XL, SL, PQ): r.free()
    ops.append(fin)
    return ops

AWD = A.reserve(0, 224)
sR64 = S.alloc(); sDB = S.alloc(); sWD = S.alloc()
sWDs = S.alloc()
def wd_setup():
    G['vWa'] = vWa = V.alloc(); G['vWb'] = vWb = V.alloc(); G['vWr'] = [V.alloc(), V.alloc()]
    if opt('map2', 1):
        I(f"s_lshr_b32 {sR64}, {sGI}, 2")
        I(f"s_lshr_b32 {sT[0]}, {sXJ}, 1")
        I(f"s_lshl_b32 {sT[0]}, {sT[0]}, 3")
        I(f"s_add_u32 {sR64}, {sR64}, {sT[0]}")
        I(f"s_and_b32 {sDB}, {sGI}, 3")
        I(f"s_and_b32 {sT[0]}, {sXJ}, 1")
        I(f"s_lshl_b32 {sT[0]}, {sT[0]}, 2")
        I(f"s_add_u32 {sDB}, {sDB}, {sT[0]}")
    else:
        I(f"s_lshr_b32 {sR64}, {sGI}, 3")
        I(f"s_lshl_b32 {sT[0]}, {sXJ}, 2")
        I(f"s_add_u32 {sR64}, {sR64}, {sT[0]}")
        I(f"s_and_b32 {sDB}, {sGI}, 7")
    I(f"s_mul_i32 {sWD}, {sWv}, {448*1024}")
    I(f"s_lshl_b32 {sT[0]}, {sDB}, 7")
    I(f"s_add_u32 {sWD}, {sWD}, {sT[0]}")
    I(f"v_bfe_u32 {t0}, {vL}, 3, 2")
    I(f"v_lshlrev_b32 {vWa}, 12, {t0}")
    I(f"v_lshl_add_u32 {vWa}, {vHH}, 10, {vWa}")
    I(f"v_bfe_u32 {t0}, {vL}, 4, 1")
    I(f"v_lshlrev_b32 {t0}, 2, {t0}")
    I(f"v_and_b32 {t1}, 7, {vL}")
    I(f"v_xor_b32 {t0}, {t0}, {t1}")
    I(f"v_lshl_add_u32 {vWa}, {t0}, 4, {vWa}")
    I(f"v_add_u32 {vWb}, 1024, {vWa}")
    r0 = G['vWr'][0]
    I(f"v_bfe_u32 {t0}, {vL}, 2, 2")
    I(f"v_lshlrev_b32 {r0}, 7, {t0}")
    I(f"v_lshl_add_u32 {r0}, {vHH}, 9, {r0}")
    I(f"v_bfe_u32 {t0}, {vL}, 3, 1")
    I(f"s_and_b32 {sT[0]}, {sWv}, 1")
    I(f"v_xor_b32 {t0}, {sT[0]}, {t0}")
    I(f"v_lshl_add_u32 {r0}, {t0}, 6, {r0}")
    I(f"v_and_b32 {t0}, 1, {vL}")
    I(f"v_lshl_add_u32 {r0}, {t0}, 5, {r0}")
    I(f"v_bfe_u32 {t0}, {vL}, 4, 1")
    I(f"v_lshl_add_u32 {r0}, {t0}, 4, {r0}")
    I(f"v_bfe_u32 {t0}, {vL}, 1, 1")
    I(f"v_lshl_add_u32 {r0}, {t0}, 3, {r0}")
    I(f"s_mul_i32 {sWDs}, {sWv}, {WDW0}")
    I(f"s_add_u32 {sWDs}, {sWDs}, {WDS0}")
    I(f"v_add_u32 {r0}, {sWDs}, {r0}")
    I(f"v_xor_b32 {G['vWr'][1]}, 64, {r0}")
    G['wd'] = dict(nd=0, nr=0, free=list(range(5)), slot={}, dt={}, rt={})
def wd_rebase(sbase, nslots):
    W = G['wd']; assert W['nd'] == W['nr']
    I(f"s_sub_u32 {sT[0]}, {sbase}, {sWDs}")
    I(f"s_mov_b32 {sWDs}, {sbase}")
    for r in G['vWr']: I(f"v_add_u32 {r}, {sT[0]}, {r}")
    W['free'] = list(range(nslots)); W['rt'] = {}
def wd_dma():
    W = G['wd']; n = W['nd']
    if n >= 28 or not W['free']: return False
    sl = W['free'].pop(0); W['slot'][n] = sl
    P.wait(W['rt'].get(sl))
    I(f"s_add_u32 m0, {sWDs}, {2048*sl}")
    W['dt'][n] = [I(f"buffer_load_dwordx4 {G['vWa']}, {rWD}, {sWD} offen lds"),
                  I(f"buffer_load_dwordx4 {G['vWb']}, {rWD}, {sWD} offen offset:1024 lds")]
    I(f"s_add_u32 {sWD}, {sWD}, 16384")
    W['nd'] = n+1
    return True
def wd_read():
    W = G['wd']; n = W['nr']
    if n >= W['nd']: return False
    sl = W['slot'][n]
    P.wait(W['dt'][n])
    W['rt'][sl] = [I(f"ds_read_b64_tr_b16 {AWD[8*n+4*dt+2*g:8*n+4*dt+2*g+2]}, {G['vWr'][dt]} offset:{2048*sl+1024*g}") for dt in range(2) for g in range(2)]
    W['last'] = W['rt'][sl]
    W['free'].append(sl); W['nr'] = n+1
    return True

def conv(side_per=None):
    vAa = V.alloc(); vBa = V.alloc(); vRW = V.alloc()
    I(f"s_lshr_b32 {sT[0]}, {sWv}, 1")
    I(f"s_and_b32 {sT[1]}, {sWv}, 1")
    I(f"s_lshl_b32 {sT[1]}, {sT[1]}, 8")
    I(f"s_mul_i32 {sT[2]}, {sT[0]}, {TCH}")
    I(f"s_add_u32 {sT[2]}, {sT[2]}, {sT[1]}")
    I(f"s_mul_i32 {sT[3]}, {sT[0]}, {UCH}")
    I(f"s_add_u32 {sT[3]}, {sT[3]}, {sT[1]}")
    I(f"s_add_u32 {sT[3]}, {sT[3]}, {UB+480}")
    I(f"v_and_b32 {t0}, 7, {vL}")
    I(f"v_mul_u32_u24 {vAa}, {TCOPY}, {t0}")
    I(f"v_bfe_u32 {t0}, {vL}, 3, 1")
    I(f"v_lshrrev_b32 {t1}, 4, {vL}")
    I(f"v_add_u32 {t0}, {t0}, {t1}")
    I(f"v_lshl_add_u32 {vAa}, {t0}, 4, {vAa}")
    I(f"v_add_u32 {vAa}, {sT[2]}, {vAa}")
    I(f"v_and_b32 {t0}, 15, {vL}")
    I(f"v_lshlrev_b32 {t2}, 5, {t0}")
    I(f"v_lshlrev_b32 {vBa}, 4, {t1}")
    I(f"v_sub_u32 {vBa}, {vBa}, {t2}")
    I(f"v_add_u32 {vBa}, {sT[3]}, {vBa}")
    I(f"v_and_b32 {vRW}, 1, {t1}")
    I(f"v_lshlrev_b32 {vRW}, 12, {vRW}")
    I(f"v_add_u32 {vRW}, {vRW}, {t2}")
    I(f"v_lshrrev_b32 {t1}, 1, {t1}")
    I(f"v_lshl_add_u32 {vRW}, {t1}, 4, {vRW}")
    I(f"s_lshl_b32 {sT[0]}, {sWv}, 13")
    I(f"s_add_u32 {sT[0]}, {sT[0]}, {RED}")
    I(f"v_add_u32 {vRW}, {sT[0]}, {vRW}")
    G['convaddr'] = (vAa, vBa, vRW)
def conv_run(hook=None):
    vAa, vBa, vRW = G['convaddr']
    D = Frags(8); FA = [Frags(8, A), AWD[192:224]]; FB = [AWD[160:192], Frags(8)]
    def reads(n):
        b = n & 1; out = []
        for t in range(8):
            out.append(lambda t=t: I(f"ds_read_b128 {FA[b][4*t:4*t+4]}, {vAa} offset:{TAPS + 64*n + 512*t}"))
            out.append(lambda t=t: I(f"ds_read_b128 {FB[b][4*t:4*t+4]}, {vBa} offset:{512*(7-t) + 64*n}"))
        return out
    ctok = {0: [f() for f in reads(0)]}
    cnt = 0
    for n in range(4):
        b = n & 1
        nxt = reads(n+1) if n < 3 else []
        ctok[n+1] = []
        if n < 3: pairs = sorted([(t, jj) for t in range(8) for jj in range(8-t)], key=lambda p: (max(p), p))
        else: pairs = sorted([(t, jj) for t in range(8) for jj in range(8-t)], key=lambda p: (p[0]+p[1], p))
        seen = set(); done = {}
        if n > 0: P.wait(ctok[n])
        for i, (t, jj) in enumerate(pairs):
            P.wait(ctok[n][2*t], ctok[n][2*jj+1])
            j = t + jj
            first = (n == 0 and j not in seen); seen.add(j)
            I(f"v_mfma_f32_16x16x32_bf16 {D[4*j:4*j+4]}, {FA[b][4*t:4*t+4]}, {FB[b][4*jj:4*jj+4]}, {0 if first else D[4*j:4*j+4]}")
            if nxt and i >= 1 and i % 2 == 1: ctok[n+1].append(nxt.pop(0)())
            if n == 3:
                if t == j: done[j] = i
                for jd, idn in list(done.items()):
                    if i >= idn + 5:
                        I(f"ds_write_b128 {vRW}, {D[4*jd:4*jd+4]} offset:{512*jd}"); del done[jd]
            if hook: hook(cnt)
            cnt += 1
        while nxt: ctok[n+1].append(nxt.pop(0)())
    for jd in sorted(done): I(f"ds_write_b128 {vRW}, {D[4*jd:4*jd+4]} offset:{512*jd}")
    assert G['wd']['nr'] <= 20
    for r in [FA[0], FB[1], vAa, vBa, vRW, D]: r.free()

def x1_addr():
    G['vX1'] = vX1 = V.alloc(); G['vRr'] = V.alloc()
    I(f"v_lshrrev_b32 {vX1}, 2, v0")
    I(f"v_lshlrev_b32 {vX1}, 15, {vX1}")
    I(f"v_and_b32 {t2}, 3, v0")
    I(f"v_lshl_add_u32 {vX1}, {t2}, 4, {vX1}")
    I(f"s_lshl_b32 {sT[0]}, {sD0}, 6")
    I(f"s_add_u32 {sT[0]}, {sT[0]}, {X1T}")
    I(f"v_add_u32 {vX1}, {sT[0]}, {vX1}")
    I(f"v_add_u32 {G['vRr']}, {RED}, {vT16}")
def C_x1():
    HG, BS = G['HG'], G['BS']
    Y = Frags(8); xo = Frags(2)
    tl = []
    for c in range(2):
        for kh in range(2):
            for h in range(2):
                tl.append(I(f"ds_read_b128 {Y[16*c+8*kh+4*h:16*c+8*kh+4*h+4]}, {G['vRr']} offset:{(2*c+kh)*8192 + 4096*h}"))
    G['tx1'] = []
    for c in range(2):
        P.wait(tl[4*c:4*c+4])
        for e in range(0, 8, 2): I(f"v_pk_add_f32 {Y[16*c+e:16*c+e+2]}, {Y[16*c+e:16*c+e+2]}, {Y[16*c+8+e:16*c+8+e+2]}")
        for e in range(8): I(f"v_fmac_f32 {BS[8*c+e]}, {HG[8*c+e]}, {Y[16*c+e]}")
        for n in range(4): I(f"v_cvt_pk_bf16_f32 {xo[4*c+n]}, {BS[8*c+2*n]}, {BS[8*c+2*n+1]}")
        G['tx1'].append(I(f"buffer_store_dwordx4 {xo[4*c:4*c+4]}, {G['vX1']}, {rWS}, 0 offen offset:{64*c} sc1"))
    for r in [Y, xo, G['vX1'], G['vRr']] + HG + BS: r.free()

sRB = S.alloc(); sC1 = S.alloc(); sWsrc = S.alloc(); sWdst = S.alloc()
def A_g1():
    G['vF8'] = vF8 = V.alloc(); G['vPA'] = vPA = V.alloc(); G['vP3'] = vP3 = V.alloc()
    I(f"s_and_b32 {sRB}, {sXJ}, 1")
    I(f"s_lshl_b32 {sRB}, {sRB}, 3")
    I(f"s_lshr_b32 {sT[0]}, {sGI}, 2")
    I(f"s_add_u32 {sRB}, {sRB}, {sT[0]}")
    I(f"s_lshr_b32 {sC1}, {sXJ}, 1")
    I(f"s_lshl_b32 {sC1}, {sC1}, 2")
    I(f"s_and_b32 {sT[0]}, {sGI}, 3")
    I(f"s_add_u32 {sC1}, {sC1}, {sT[0]}")
    I(f"s_lshl_b32 {sT[0]}, {sC1}, 6")
    I(f"v_add_lshl_u32 {vP3}, {vL}, {sT[0]}, {FSH}")
    I(f"s_lshl_b32 {sT[0]}, {sXJ}, 5")
    I(f"s_add_u32 {sT[0]}, {sT[0]}, {sGI}")
    I(f"s_lshl_b32 {sT[0]}, {sT[0]}, {FSH}")
    I(f"v_lshlrev_b32 {vF8}, {FSH+8}, v0")
    I(f"v_add_u32 {vF8}, {sT[0]}, {vF8}")
    I(f"v_mov_b32 {t1}, {OOB}")
    I(f"v_cmp_gt_u32 vcc, 8, v0")
    I(f"s_lshl_b32 {sT[0]}, {sXJ}, 8")
    I(f"v_add_lshl_u32 {vPA}, v0, {sT[0]}, {FSH}")
    I(f"v_cndmask_b32 {vF8}, {t1}, {vF8}, vcc")
    I(f"s_mul_i32 {sWsrc}, {sC1}, 229376")
    I(f"s_lshl_b32 {sWdst}, {sWv}, 12")
    I(f"s_add_u32 {sWsrc}, {sWsrc}, {sWdst}")
    I(f"s_add_u32 {sWsrc}, {sWsrc}, {WP}")
def w_dma(src_off, dst_off, n0=0, n1=4):
    I(f"s_add_u32 m0, {sWdst}, {WL + dst_off}")
    I(f"s_add_u32 {sT[0]}, {sWsrc}, {src_off}")
    return [I(f"buffer_load_dwordx4 {vL16}, {rWS}, {sT[0]} offen offset:{1024*n} sc1 lds") for n in range(n0, n1)]
def wd_burst(n):
    for _ in range(n):
        if not wd_dma():
            wd_read(); wd_dma()
flag_setup(); m_addr()
vpf = V.alloc()
if LOC:
    flag_load(vpf, G['vFp'], F1); flag_load(vpf, G['vFp'], FX); m_loads()
zero_pads(); A_mod(); A_mod2()
conv(); wd_setup(); w_addr(); x1_addr(); A_f3(); A_g1()
def afterk():
    L_xr()
    if LOC: pretouch(XG)
    L_x()
G['afterk'] = afterk
C_tag(); C_kv(); stamp("kv st")
L_mod()
C_st(); stamp("st")
P.wait(G['tks']); post_local(G['vFo'], F1); stamp("F1 post")
L_taps()
C_x(); stamp("x st")
C_mod(); stamp("mod1")
tpf = flag_load(vpf, G['vFp'], F1)
def midmod():
    check_local(vpf, G['vFp'], G['vFo'], F1, tpf); stamp("F1 ok")
    L_u()
    post_local(G['vFo'], FX)
G['midmod'] = midmod
C_mod2()
L_w()
PT.free()
C_taps(); stamp("taps")
C_u(); stamp("U ok")
G['tpf'] = flag_load(vpf, G['vFp'], FX); G['tm'] = m_loads()
for _ in range(opt('wd0', 2)): wd_dma()
P.wait_all(vm=False); I("s_barrier")
stamp("bar")
cside = []
H1, H2, H3, WDC = opt('h1', 8), opt('h2', 20), opt('h3', 0), opt('wdc', 12)
def hook(c):
    if c == H2:
        check_local(vpf, G['vFp'], G['vFo'], FX, G['tpf']); G['vFp'].free(); G['vFo'].free(); vTagL.free()
        L_xs()
        C_m(); cside.extend(m_ops() + pq_ops() + w_ops() + pre_ops())
    if c > H1 and c % WDC == 0: wd_dma()
    if c > 30 and c % WDC == WDC//2: wd_read()
    k = 0
    while cside and k < (1 if (c < 108 and c % 2 == 1) else 2):
        f = cside.pop(0); k += 1
        if f: f()
conv_run(hook)
stamp("conv")
for f in cside:
    if f: f()
P.wait(G['tws']); post_flag(G['vF3'], F3)
P.wait_all(vm=False); I("s_barrier")
stamp("bar2")
C_x1(); stamp("x1 st")
C_wunpack(); C_c12()
vP3 = G['vP3']; vPA = G['vPA']; vp3 = vpf
tp3 = flag_load(vp3, vP3, F3)
while wd_read(): pass
P.wait(G['tx1']); P.wait_all(vm=False)
I("s_barrier")
post_flag(G['vF8'], F4); G['vF8'].free()
stamp("F4 post")
C_c12b()
check_tags([vp3], lambda: flag_load(vp3, vP3, F3), tp3)
stamp("F3 ok")
NPRE = opt('npre', 7); NP4 = opt('np4', 5)
wch = {}
vp4 = V.alloc()
for i in range(NPRE):
    if i == 2: P.wait(G['tc12']); post_flag(G['vF3'], F6); G['vF3'].free()
    if i == NP4: tp4 = flag_load(vp4, vPA, F4)
    if i == 5: I("s_barrier")
    wch[i] = w_dma(16384*i, 16384*i)
stamp("W pre")
for r in (rK, rV, rSH): r.free()
sXsrc = S.alloc(); sXdst = S.alloc(); sSB = S.alloc(); sHS = S.alloc(); sSG = S.alloc()
I(f"s_lshl_b32 {sSB}, {sRB}, 2")
I(f"s_add_u32 {sSB}, {sSB}, {sWv}")
I(f"s_lshl_b32 {sXsrc}, {sSB}, 15")
I(f"s_add_u32 {sXsrc}, {sXsrc}, {X1T}")
I(f"s_mul_i32 {sXdst}, {sWv}, {XSW}")
I(f"s_add_u32 {sXdst}, {sXdst}, {XS}")
I(f"s_mul_i32 {sHS}, {sSB}, 112")
I(f"s_mul_i32 {sT[0]}, {sC1}, 7")
I(f"s_add_u32 {sHS}, {sHS}, {sT[0]}")
I(f"s_lshl_b32 {sHS}, {sHS}, 10")
I(f"s_add_u32 {sHS}, {sHS}, {HH}")
I(f"s_lshl_b32 {sSG}, {sSB}, 13")
I(f"s_add_u32 {sSG}, {sSG}, {SG}")
ACC = [V.alloc(16) for _ in range(5)]
vAd = V.alloc(); vAd2 = V.alloc(); vTr = V.alloc(); vTr0 = V.alloc(); vEx = V.alloc(); vL16b = V.alloc(); vF5 = V.alloc()
I(f"v_bfe_u32 {t0}, {vL}, 2, 3")
I(f"v_lshlrev_b32 {vAd}, 7, {t0}")
I(f"v_bfe_u32 {t0}, {vL}, 4, 1")
I(f"v_xor_b32 {t0}, {t0}, {vHH}")
I(f"v_lshl_add_u32 {vAd}, {t0}, 6, {vAd}")
I(f"v_and_b32 {t0}, 3, {vL}")
I(f"v_lshl_add_u32 {vAd}, {t0}, 4, {vAd}")
I(f"v_add_u32 {vAd2}, 65536, {vAd}")
I(f"v_lshlrev_b32 {vTr0}, 3, {t0}")
I(f"v_bfe_u32 {t0}, {vL}, 4, 1")
I(f"v_lshl_add_u32 {vTr0}, {t0}, 5, {vTr0}")
I(f"v_bfe_u32 {t0}, {vL}, 2, 2")
I(f"v_lshl_add_u32 {vTr0}, {t0}, 6, {vTr0}")
I(f"v_add_u32 {vTr0}, {sXdst}, {vTr0}")
I(f"v_lshl_add_u32 {vTr}, {vHH}, 9, {vTr0}")
I(f"v_lshlrev_b32 {vEx}, 4, {vQ}")
I(f"v_add_u32 {vEx}, {EX}, {vEx}")
I(f"v_add_u32 {vL16b}, 4096, {vL16}")
I(f"s_lshl_b32 {sT[0]}, {sSB}, 4")
I(f"s_add_u32 {sT[0]}, {sT[0]}, {sC1}")
I(f"s_lshl_b32 {sT[0]}, {sT[0]}, {FSH}")
lane0(vF5, sT[0], t1)
check_tags([vp4], lambda: flag_load(vp4, vPA, F4), tp4)
vPA.free(); vp4.free()
P.wait_all(vm=False)
I("s_barrier")
stamp("F4 ok")

xt = {}
def x_dma(item):
    I(f"s_add_u32 m0, {sXdst}, {1024*(item%NXS)}")
    if item == 0:
        I(f"s_lshl_b32 {sT[1]}, {sC1}, 11")
        I(f"s_add_u32 {sT[1]}, {sT[1]}, {sXsrc}")
    elif item == 1: I(f"s_add_u32 {sT[1]}, {sT[1]}, 1024")
    else: I(f"s_add_u32 {sT[1]}, {sXsrc}, {1024*(item-2)}")
    xt[item] = I(f"buffer_load_dwordx4 {vL16}, {rWS}, {sT[1]} offen sc1 lds")
X0 = opt('x0', 9)
for it_ in range(X0): x_dma(it_)
Bf = Frags(32)
AR = A.reserve(224, 32)
SGX = Frags(4); BX = SGX.g[0]; hp = SGX.g[1]; vRS2 = V.alloc()
TMP = ACC[4]
def tr_read(dst, item):
    P.wait(xt[item])
    o = 1024*(item % NXS)
    return [I(f"ds_read_b64_tr_b16 {dst[0:2]}, {vTr} offset:{o}"), I(f"ds_read_b64_tr_b16 {dst[2:4]}, {vTr} offset:{o+256}")]
jobs = [(it, ks, ks*4+it) for ks in range(32) for it in range(4)]
jobs += [(it, 'x', None) for it in range(4)]
for it in range(4, 7):
    jobs += [(it, 'x', None)] + [(it, ks, 128 + (it-4)*32 + ks) for ks in range(32)]
NJ = len(jobs); T4, T5, T6 = 132, 165, 198
first_job = {}; last_job = {}
for n, (it, ks, fr) in enumerate(jobs):
    if fr is not None:
        first_job.setdefault(fr//16, n); last_job[fr//16] = n
accmap = {0:0, 1:1, 2:2, 3:3, 4:4, 5:0, 6:1}
published = set()
def job_read(n):
    it, ks, fr = jobs[n]
    dst = AR[4*(n%8):4*(n%8)+4]
    if ks == 'x': return I(f"ds_read_b128 {dst}, {vEx} offset:{512*it}")
    assert fr//16 in published, (n, fr)
    off = ((fr//16) % NG)*16384 + (fr % 16)*1024
    if off < 65536: return I(f"ds_read_b128 {dst}, {vAd} offset:{off}")
    return I(f"ds_read_b128 {dst}, {vAd2} offset:{off-65536}")
LOOK = 6
atok = {}; btok = {}
P.wait([wch[i] for i in range(NPRE)]); I("s_barrier"); published |= set(range(NPRE))
for n in range(LOOK): atok[n] = job_read(n)
for it_ in range(X0, NXS): x_dma(it_)
ts_ = tr_read(TMP[0:4], 0) + tr_read(TMP[4:8], 1)
btok[0] = tr_read(Bf[0:4], 2)
I(f"v_mov_b32 {TMP[9]}, {vTag}")
I(f"s_lshl_b32 {sT[0]}, {sC1}, 9")
I(f"s_add_u32 {sT[0]}, {sT[0]}, {sSG}")
I(f"v_lshlrev_b32 {t0}, 4, {vQ}")
I(f"v_lshl_add_u32 {t0}, {vHH}, 3, {t0}")
P.wait(ts_)
for r in range(8):
    I(f"v_dot2_f32_bf16 {TMP[8]}, {TMP[r]}, {sONE}, {0 if r==0 else TMP[8]}")
    I(f"v_dot2_f32_bf16 {TMP[10]}, {TMP[r]}, {TMP[r]}, {0 if r==0 else TMP[10]}")
I(f"v_permlane32_swap_b32 {TMP[8]}, {TMP[10]}")
I(f"v_add_f32 {TMP[8]}, {TMP[8]}, {TMP[10]}")
I(f"buffer_store_dwordx2 {TMP[8:10]}, {t0}, {rWS}, {sT[0]} offen sc1")
x_dma(NXS); x_dma(NXS+1)
stamp("g1 start")

side = []
def c12_ops():
    ops = []; tk = []
    CL = TMP
    def l(g):
        if g == 0:
            I(f"s_mul_i32 {sT[2]}, {sC1}, {8*1792}")
            I(f"s_add_u32 {sT[2]}, {sT[2]}, {C12}")
            I(f"v_lshlrev_b32 {t2}, 3, v0")
        if g and g % 2 == 0: I(f"s_add_u32 {sT[2]}, {sT[2]}, 3584")
        tk.append(I(f"buffer_load_dwordx2 {CL[2*g:2*g+2]}, {t2}, {rWS}, {sT[2]} offen offset:{(g&1)*1792} sc1"))
    for g in range(8): ops.append(lambda g=g: l(g)); ops += [None]*2
    ops2 = [lambda: P.wait(tk)]
    for st in (4, 2, 1):
        for g in range(st):
            for h in range(2):
                ops2.append(lambda g=g, st=st, h=h: I(f"v_add_f32 {CL[2*g+h]}, {CL[2*g+h]}, {CL[2*(g+st)+h]}"))
    seq = [f"v_cvt_pk_bf16_f32 {CL[5]}, {CL[0]}, {CL[1]}",
           f"v_lshlrev_b32 {CL[2]}, 16, {CL[5]}",
           f"v_and_b32 {CL[3]}, {sHI}, {CL[5]}",
           f"v_sub_f32 {CL[0]}, {CL[0]}, {CL[2]}",
           f"v_sub_f32 {CL[1]}, {CL[1]}, {CL[3]}",
           f"v_cvt_pk_bf16_f32 {CL[4]}, {CL[2]}, {CL[0]}",
           f"v_cvt_pk_bf16_f32 {CL[6]}, {CL[1]}, {CL[3]}",
           f"v_mov_b32 {CL[7]}, 0",
           f"v_add_u32 {t2}, {EX}, {vT16}"]
    for s_ in seq: ops2.append(lambda s_=s_: I(s_))
    ops2.append(lambda: G.__setitem__('tex', I(f"ds_write_b128 {t2}, {CL[4:8]}")))
    return ops, ops2
def sg_dst(j): return SGX.g[j] if j < 4 else Bf.g[28 + (j-4)]
def sg_loads(j0=0, j1=8):
    return [I(f"buffer_load_dwordx4 {sg_dst(j)}, {vL16 if j < 4 else vL16b}, {rWS}, {sSG} offen offset:{1024*(j&3)} sc1") for j in range(j0, j1)]
def stats2_ops(tk):
    R = lambda j, i: sg_dst(j)[i]
    ops = [lambda: check_tags([R(j, i) for j in range(8) for i in (1, 3)], sg_loads, tk)] + [None]*12
    for st in (4, 2):
        for j in range(st):
            for i in (0, 2):
                ops.append(lambda j=j, st=st, i=i: I(f"v_add_f32 {R(j,i)}, {R(j,i)}, {R(j+st,i)}"))
    ops.append(lambda: G.__setitem__('sgdone', True))
    Z = SGX.g[2]; a, b, c, d = Z[0], Z[1], Z[2], Z[3]; e = SGX.g[3][0]
    seq = [f"v_add_f32 {a}, {R(0,0)}, {R(1,0)}", f"v_add_f32 {c}, {R(0,2)}, {R(1,2)}",
           f"v_mov_b32 {b}, {a}", f"v_mov_b32 {d}, {c}", None,
           f"v_permlane32_swap_b32 {a}, {b}", f"v_permlane32_swap_b32 {c}, {d}",
           f"v_add_f32 {a}, {a}, {b}", f"v_add_f32 {c}, {c}, {d}",
           f"v_mul_f32 {b}, 0xbb000000, {a}", f"v_mul_f32 {c}, 0x3b000000, {c}",
           f"v_fma_f32 {d}, -{b}, {b}, {c}", f"v_max_f32 {d}, 0, {d}", f"v_add_f32 {d}, 0x3727c5ac, {d}",
           f"v_sqrt_f32 {c}, {d}", f"v_rcp_f32 {vRS2}, {d}",
           f"v_cmp_eq_u32 vcc, 0, {vHH}",
           f"v_mov_b32 {BX[3]}, 0",
           f"v_cndmask_b32 {b}, 0, {b}, vcc", f"v_cndmask_b32 {c}, 0, {c}, vcc",
           f"v_cvt_pk_bf16_f32 {BX[0]}, {b}, {b}",
           f"v_cvt_pk_bf16_f32 {e}, {c}, {c}",
           f"v_and_b32 {a}, {sHI}, {BX[0]}", f"v_and_b32 {e}, {sHI}, {e}",
           f"v_sub_f32 {b}, {b}, {a}", f"v_sub_f32 {c}, {c}, {e}",
           f"v_cvt_pk_bf16_f32 {BX[1]}, {b}, {e}",
           f"v_cvt_pk_bf16_f32 {BX[2]}, {e}, {c}"]
    for s_ in seq: ops.append((lambda s_=s_: I(s_)) if s_ else None)
    return ops
hst = {}
def epilogue(it):
    ac = ACC[accmap[it]]; ops = []
    for r in range(8): ops.append(lambda r=r: I(f"v_mul_f32 {ac[r]}, {ac[r]}, {ac[8+r]}"))
    for r in range(8): ops.append(lambda r=r: I(f"v_mul_f32 {ac[r]}, {ac[r]}, {vRS2}"))
    for n in range(4): ops.append(lambda n=n: I(f"v_cvt_pk_bf16_f32 {hp[n]}, {ac[2*n]}, {ac[2*n+1]}"))
    def st():
        hst[it] = I(f"buffer_store_dwordx4 {hp}, {vL16 if it < 4 else vL16b}, {rWS}, {sHS} offen offset:{1024*(it&3)} sc1")
    ops.append(st); ops.append(None)
    return ops
def lvl_flag(level, tiles):
    def f():
        P.wait([hst[t] for t in tiles])
        post_flag(vF5, F5 + level*0x10000)
    return f
def epoch_store():
    I(f"s_or_b32 {sT[0]}, s2, {sWv}")
    I(f"s_cselect_b32 {sT[0]}, {OOB}, {EPOCH}")
    lane0(t0, sT[0], t1)
    I(f"buffer_store_dword {vTag}, {t0}, {rWS}, 0 offen sc1")
sSQ = S.alloc(); sDQ = S.alloc(); sH0 = S.alloc(); sH1 = S.alloc()
order = [(c, it) for c in range(4) for it in range(4)] + [(c, it) for c in range(4) for it in (4, 5)] + [(c, 6) for c in range(4)]
ht = {}; hreg = {}; hfree = []
def h_load(i, st):
    c, it = order[i]; n = c*7 + it
    hreg[i, st] = r = hfree.pop(0)
    I(f"s_add_u32 {sT[0]}, {sH1 if st else sH0}, {1024*n}")
    ht[i, st] = I(f"buffer_load_dwordx4 {r}, {vL16}, {rWS}, {sT[0]} offen sc1")
def g2_setup_ops():
    seq = [f"s_lshr_b32 {sT[3]}, {sWv}, 1", f"s_lshl_b32 {sSQ}, {sR64}, 1", f"s_add_u32 {sSQ}, {sSQ}, {sT[3]}",
           f"s_mul_i32 {sT[4]}, {sWv}, 28", f"s_mul_i32 {sH0}, {sSQ}, 112", f"s_add_u32 {sH0}, {sH0}, {sT[4]}",
           f"s_lshl_b32 {sH0}, {sH0}, 10", f"s_add_u32 {sH0}, {sH0}, {HH}",
           f"s_xor_b32 {sT[3]}, {sSQ}, 1", f"s_mul_i32 {sH1}, {sT[3]}, 112", f"s_add_u32 {sH1}, {sH1}, {sT[4]}",
           f"s_lshl_b32 {sH1}, {sH1}, 10", f"s_add_u32 {sH1}, {sH1}, {HH}",
           f"s_and_b32 {sT[3]}, {sWv}, 1", f"s_lshl_b32 {sT[3]}, {sT[3]}, 5", f"s_lshl_b32 {sDQ}, {sDB}, 6", f"s_add_u32 {sDQ}, {sDQ}, {sT[3]}",
           f"v_and_b32 {t1}, 1, {vL}", f"v_lshlrev_b32 {t1}, 4, {t1}", f"v_bfe_u32 {t2}, {vL}, 1, 2", f"v_add_u32 {t1}, {t1}, {t2}",
           f"s_lshl_b32 {sT[3]}, {sR64}, 5", f"s_lshl_b32 {sT[4]}, {sWv}, 2", f"s_add_u32 {sT[3]}, {sT[3]}, {sT[4]}",
           f"v_add_lshl_u32 {vP5}, {t1}, {sT[3]}, {FSH}"]
    return [(lambda x=x: I(x)) for x in seq]
c12a, c12b = c12_ops()
sgt = []
wq = []
WP_, WDP_, HP0 = opt('wp', 6), opt('wdp', 5), opt('hp0', NJ-1)
N6, NC1, NS1, NC2, NS2 = opt('n6', 14), opt('nc1', 40), opt('ns1', 58), opt('nc2', 76), opt('ns2', 88)
nextg = NPRE; lastw = -99
for n, (it, ks, fr) in enumerate(jobs):
    need = [g for g in first_job if g not in published and first_job[g] - LOOK <= n + 1]
    freeable = nextg < 14 and (nextg - NG < 0 or last_job[nextg-NG] < n) and n % 16 == 8
    exw = (n == 112)
    if need or freeable or exw:
        ready = [g for g in wch if g not in published and len(wch[g]) == 4 and (g in need or wch[g][-1][1] < P.vm_done)]
        for g in need: assert g in ready, (n, g)
        P.wait([wch[g] for g in ready], atok[n], G.get('tex') if exw else None)
        I("s_barrier"); published |= set(ready)
        while nextg < 14 and (nextg - NG < 0 or last_job[nextg-NG] < n):
            wch[nextg] = []
            for q in range(2): wq.append(lambda g=nextg, q=q: wch[g].extend(w_dma(16384*g, 16384*(g % NG), 2*q, 2*q+2)))
            nextg += 1
    if n in (32, 64, 96, 128, T5, T6): stamp(f"n{n}")
    if n % 2 == 0: P.wait(atok[n], atok.get(n+1), btok.get(ks))
    else: P.wait(atok[n])
    ac = ACC[accmap[it]]
    bsrc = BX if ks == 'x' else Bf[4*ks:4*ks+4]
    first = (ks == 0 and it < 4) or (ks == 'x' and it >= 4)
    I(f"v_mfma_f32_32x32x16_bf16 {ac}, {AR[4*(n%8):4*(n%8)+4]}, {bsrc}, {0 if first else ac}")
    if it == 6 and ks != 'x': hfree.append(Bf.g[ks])
    if n + LOOK < NJ: atok[n+LOOK] = job_read(n+LOOK)
    budget = 4
    if n < 128 and it == 0 and ks+1 < 32:
        if ks+1 >= 28: assert G.get('sgdone')
        btok[ks+1] = tr_read(Bf[4*(ks+1):4*(ks+1)+4], ks+3); budget = 1
    elif n < 128 and it == 1 and ks+NXS+2 < 34: x_dma(ks+NXS+2); budget = 1
    elif wq and n - lastw >= WP_: wq.pop(0)(); lastw = n; budget = 0
    elif n == 126 and G['wd']['nr'] < 28: wd_rebase(sXdst, NXS//2); budget = 0
    elif n > 126 and G['wd']['nr'] < 28 and n % WDP_ == 0:
        if G['wd']['free'] and G['wd']['nd'] < 28: wd_dma()
        else: wd_read()
        budget = 0
    elif n > 126 + 5*WDP_ and G['wd']['nr'] < 28 and n % WDP_ == WDP_//2 and not G['wd']['free']: wd_read(); budget = 0
    elif n > HP0 and G.get('l0') and n % 2 == 0 and len(hfree) > 1:
        i = len(ht); h_load(i//2, i % 2); budget = 2
    if n == N6: side += [lambda: G.__setitem__('tp6', flag_load(vp3, vP3, F6)), None, None, epoch_store]
    if n == NC1: side += [lambda: (check_tags([vp3], lambda: flag_load(vp3, vP3, F6), G['tp6']), vp3.free(), vP3.free())] + c12a
    if n == NS1:
        for j in range(8): side += [lambda j=j: sgt.extend(sg_loads(j, j+1)), None, None]
    if n == NC2: side += c12b
    if n == NS2: side += stats2_ops(sgt)
    if n == 127: assert not side, len(side)
    if n == T4 + 1:
        SGX.g[2].free(); SGX.g[3].free()
        vP5 = V.alloc(); vp5 = V.alloc()
        for e in range(4): side += epilogue(e)
        side += g2_setup_ops()
    if n == T5 + 4: side += epilogue(4)
    if n == T5 + opt('l0p', 18): side += [lvl_flag(0, (0, 1, 2, 3))]
    if n == T6 + 4: side += epilogue(5)
    if opt('l1p', 30) and n == T6 + opt('l1p', 30): side += [lvl_flag(1, (4, 5))]
    if n == HP0 - opt('l0w', 14): side += [lambda: G.__setitem__('tp5', flag_load(vp5, vP5, F5))]
    if n == HP0: side += [lambda: (check_tags([vp5], lambda: flag_load(vp5, vP5, F5), G['tp5']), G.__setitem__('l0', True))]
    k = 0
    while side and k < budget:
        f = side.pop(0); k += 1
        if f: f()
    if n == T5 - 1: assert 0 in hst
    if n == T6 - 1: assert 1 in hst
assert not side and not wq
print('wd progress', G['wd']['nd'], G['wd']['nr'], 'hh early', len(ht), file=sys.stderr)
def h_next():
    i = len(ht)
    if i < G['hlim'] and hfree: h_load(i//2, i % 2); return True
    return False
G['hlim'] = 32
h_next(); h_next()
for f in epilogue(6):
    if f: f()
stamp("g1 done")
for r in ACC + [BX, vRS2, vAd, vAd2, vTr, vEx]: r.free()
while G['wd']['nr'] < 28:
    wd_read(); wd_dma(); h_next()
I("s_barrier")

GA = [V.alloc(16) for _ in range(4)]
if not opt('l1p', 30): lvl_flag(1, (4, 5))()
HD = opt('hd', 16)
while len(ht) < HD//2 + 2: h_next()
lvl_flag(2, (6,))()
hp.free(); vF5.free()
while len(ht) < HD: h_next()
P.wait(G['wd']['last'])
gb2 = V.alloc(2, 1); XQ = V.alloc(8)
def res_loads():
    I(f"s_lshl_b32 {sT[0]}, {sSQ}, 15")
    I(f"s_lshl_b32 {sT[1]}, {sDQ}, 6")
    I(f"s_add_u32 {sT[0]}, {sT[0]}, {sT[1]}")
    I(f"s_mov_b32 m0, {sXdst}")
    I(f"s_add_u32 {sT[0]}, {sT[0]}, {X1T}")
    G['txq'] = [I(f"buffer_load_dwordx4 {vL16}, {rWS}, {sT[0]} offen offset:{1024*n} sc1 lds") for n in range(2)]
def gb_loads():
    I(f"v_lshlrev_b32 {t0}, 3, {vQ}")
    I(f"v_lshl_add_u32 {t0}, {vHH}, 13, {t0}")
    I(f"s_lshl_b32 {sT[0]}, {sDQ}, 3")
    I(f"s_add_u32 {sT[0]}, {sT[0]}, {MODG + 5*16384}")
    I(f"s_add_u32 {sT[1]}, {sT[0]}, 4096")
    G['tgb'] = [I(f"buffer_load_dword {gb2[n]}, {t0}, {rWS}, {sT[n]} offen sc1") for n in range(2)]
def gb_fin():
    P.wait(G['tgb'], G['txq'])
    I(f"v_add_f32 {gb2[0]}, {gb2[0]}, {gb2[1]}")
    I(f"v_lshlrev_b32 {t0}, 2, {vQ}")
    I(f"v_mov_b32 {gb2[1]}, {gb2[0]}")
    I(f"v_add_u32 {t0}, {sXdst}, {t0}")
    I(f"v_lshl_add_u32 {t1}, {vHH}, 10, {vTr0}")
def gb_fin2():
    I(f"v_permlane32_swap_b32 {gb2[0]}, {gb2[1]}")
    I(f"v_add_f32 {gb2[0]}, {gb2[0]}, {gb2[1]}")
    round_bf16(gb2[0], gb2[0])
    I(f"ds_write_b32 {t0}, {gb2[0]} offset:2048")
def xq_reads():
    G['txqr'] = [I(f"ds_read_b64_tr_b16 {XQ[2*n:2*n+2]}, {t1} offset:{256*n}") for n in range(4)]
P1, P1C, P2, P2C = opt('p1', 4), opt('p1c', 8), opt('p2', 12), opt('p2c', 16)
mj = [(i, q) for i in range(24) for q in range(4)] + [(i, q) for q in (1, 2, 3, 0) for i in range(24, 28)]
red = []
for m, (i, q) in enumerate(mj):
    c, it = order[i]; n = c*7 + it; dt, st = q & 1, q >> 1
    if (i, st) not in ht:
        raise RuntimeError(f"hh {i} not issued")
    P.wait(ht[i, st])
    I(f"v_mfma_f32_32x32x16_bf16 {GA[q]}, {AWD[8*n+4*dt:8*n+4*dt+4]}, {hreg[i, st]}, {0 if i==0 else GA[q]}")
    if i < 24 and dt == 1: hfree.append(hreg[i, st])
    if len(ht) < 2*i + HD + 2 - (m % 2 == 0): h_next()
    if q == 0 and i < 24:
        if i == P1: G['tp'] = flag_load(vp5, vP5, F5 + 0x10000)
        if i == P1C:
            check_tags([vp5], lambda: flag_load(vp5, vP5, F5 + 0x10000), G['tp']); G['hlim'] = 48; stamp("L1 ok")
        if i == P2: G['tp'] = flag_load(vp5, vP5, F5 + 0x20000)
        if i == P2C:
            check_tags([vp5], lambda: flag_load(vp5, vP5, F5 + 0x20000), G['tp']); G['hlim'] = 56; stamp("L2 ok")
        if i == 2: res_loads()
        if i == 3: gb_loads()
        if i == 17: gb_fin()
        if i == 18: gb_fin2()
        if i == 19: xq_reads()
        if i == 20:
            G['GB'] = GB = [hfree.pop() for _ in range(4)]
            I(f"v_lshlrev_b32 {t1}, 6, {vHH}")
            I(f"v_add_u32 {t1}, {sXdst}, {t1}")
            for n_ in range(4): I(f"ds_read_b128 {GB[n_]}, {t1} offset:{2048+16*n_}")
        if i == 21:
            G['XF'] = XF = [hfree.pop() for _ in range(4)]
            P.wait(G['txqr'])
            for rho in range(8):
                red.append(lambda rho=rho: (unpack(XF[rho//2][2*(rho%2)], XQ[rho], 0), unpack(XF[rho//2][2*(rho%2)+1], XQ[rho], 1)))
        if i == 23:
            G['RA'] = RA = hfree.pop()
            for qq in range(1, 4):
                red.append(lambda qq=qq: (I(f"s_xor_b32 {sT[0]}, {sWv}, {qq}"), I(f"s_mul_i32 {sT[0]}, {sT[0]}, 12288"), I(f"v_add_u32 {RA[qq]}, {sT[0]}, {vL16}")))
            red.append(lambda: (I(f"s_mul_i32 {sT[0]}, {sWv}, 12288"), I(f"v_add_u32 {RA[0]}, {sT[0]}, {vL16}")))
            red.append(lambda: (I(f"s_lshl_b32 {sT[2]}, {sSQ}, 15"), I(f"s_lshl_b32 {sT[1]}, {sDQ}, 1"), I(f"s_add_u32 {sT[2]}, {sT[2]}, {sT[1]}"), I(f"s_add_u32 {sT[3]}, {sT[2]}, 16384")))
            red.append(lambda: (I(f"v_lshrrev_b32 {t1}, 2, {vL}"), I(f"v_lshlrev_b32 {t1}, 10, {t1}"), I(f"v_and_b32 {t2}, 3, {vL}"), I(f"v_lshl_add_u32 {t1}, {t2}, 4, {t1}")))
            red.append(lambda: (I(f"v_lshlrev_b32 {t2}, 6, {vQ}"), I(f"v_lshl_add_u32 {t2}, {vHH}, 5, {t2}"), I(f"v_add_u32 {t2}, {sXdst}, {t2}"), I(f"v_add_u32 {t0}, {sXdst}, {vL16}")))
    if m >= 101 and (m - 101) // 4 < 2:
        qq = (m - 101)//4 + 1; r = (m - 101) % 4
        I(f"ds_write_b128 {G['RA'][qq]}, {GA[qq][4*r:4*r+4]} offset:{(qq-1)*4096 + r*1024}")
    elif m >= 109:
        r = m - 109
        I(f"ds_write_b128 {G['RA'][3]}, {GA[3][4*r:4*r+4]} offset:{2*4096 + r*1024}")
    elif red: red.pop(0)()
assert not red
I(f"ds_write_b128 {G['RA'][3]}, {GA[3][12:16]} offset:{2*4096 + 3*1024}")
stamp("g2 mfma")
GB, XF, RA = G['GB'], G['XF'], G['RA']
P.wait_all(vm=False)
I("s_barrier")
tl = {}
for r in range(4):
    tl[r] = [I(f"ds_read_b128 {GA[q][4*r:4*r+4]}, {RA[0]} offset:{(q-1)*4096 + r*1024}") for q in range(1, 4)]
OST = OPT.get('ost', '')
for r in range(4):
    P.wait(tl[r])
    for h in (0, 2): I(f"v_pk_add_f32 {GA[1][4*r+h:4*r+h+2]}, {GA[1][4*r+h:4*r+h+2]}, {GA[2][4*r+h:4*r+h+2]}")
    for h in (0, 2): I(f"v_pk_add_f32 {GA[0][4*r+h:4*r+h+2]}, {GA[0][4*r+h:4*r+h+2]}, {GA[3][4*r+h:4*r+h+2]}")
    for h in (0, 2): I(f"v_pk_add_f32 {GA[0][4*r+h:4*r+h+2]}, {GA[0][4*r+h:4*r+h+2]}, {GA[1][4*r+h:4*r+h+2]}")
    for h in (0, 2): I(f"v_pk_fma_f32 {XF[r][h:h+2]}, {GA[0][4*r+h:4*r+h+2]}, {GB[r][h:h+2]}, {XF[r][h:h+2]}")
    for h in (0, 2): I(f"v_cvt_pk_bf16_f32 {XQ[2*r+h//2]}, {XF[r][h]}, {XF[r][h+1]}")
    if r % 2: I(f"ds_write_b128 {t2}, {XQ[2*r-2:2*r+2]} offset:{4096 + 8*(r-1)}")
tl = [I(f"ds_read_b128 {GB[h]}, {t0} offset:{4096+1024*h}") for h in range(2)]
for h in range(2):
    P.wait(tl[h])
    I(f"buffer_store_dwordx4 {GB[h]}, {t1}, {rOUT}, {sT[2+h]} offen {OST}")
stamp("end")
if TSTAMP:
    P.wait_all()
    stamp("drained")
    n = nts[0]
    I("s_waitcnt lgkmcnt(0)")
    I(f"v_writelane_b32 {vTs}, {sTp[n&1][0]}, {n-2}")
    I(f"v_writelane_b32 {vTs}, {sTp[(n+1)&1][0]}, {n-1}")
    I(f"v_subrev_u32 {vTs}, {sT0[0]}, {vTs}")
    I(f"s_memrealtime {sTp[0]}")
    I("s_waitcnt lgkmcnt(0)")
    I(f"v_writelane_b32 {vTs}, {sR0[0]}, 62")
    I(f"v_writelane_b32 {vTs}, {sTp[0][0]}, 63")
    I(f"v_writelane_b32 {vTs}, {sSpin}, 61")
    I(f"s_lshl_b32 {sT[0]}, s2, 10")
    I(f"s_add_u32 {sT[0]}, {sT[0]}, {TS}")
    I(f"v_lshlrev_b32 {t0}, 2, v0")
    I(f"buffer_store_dword {vTs}, {t0}, {rWS}, {sT[0]} offen")
    print(f"\nNTS={n}", file=sys.stderr)
if PROBE:
    I("s_waitcnt lgkmcnt(0)")
    I(f"s_sub_u32 {sT[0]}, {sTp[0][0]}, {sT0[0]}")
    I(f"s_min_u32 {sT[0]}, {sT[0]}, 100000")
    I(f"s_memrealtime {sT0}")
    I("L_spin:")
    I(f"s_memrealtime {sTp[0]}")
    I("s_waitcnt lgkmcnt(0)")
    I(f"s_sub_u32 {sT[1]}, {sTp[0][0]}, {sT0[0]}")
    I(f"s_cmp_lt_u32 {sT[1]}, {sT[0]}")
    I("s_cbranch_scc1 L_spin")
I("L_end:")
I("s_endpgm")
P.ins.extend(slow)
if opt('cpf'):
    I(".fill 1024, 4, 0xbf800000")

body = P.finalize()
ref = open(f"cdna_kernels/{NAME}.s.ref").read()
hdr = "".join(l + "\n" for l in ref.split("\n") if l.startswith(";") and "@launch" not in l)
out = hdr + f"; @launch grid=(256,1,1) block=(256,1,1) lds={LDS_SIZE}\n"
out += f"""; NTS={nts[0] if TSTAMP else 0} LAYOUT=3 WSOFF={WSOFF}
.amdgcn_target "amdgcn-amd-amdhsa--gfx950"
.text
.globl {NAME}_kernel
.p2align 8
.type {NAME}_kernel,@function
{NAME}_kernel:
{body}
.section .rodata,"a"
.p2align 6
.amdhsa_kernel {NAME}_kernel
  .amdhsa_next_free_vgpr 512
  .amdhsa_next_free_sgpr 102
  .amdhsa_accum_offset 256
  .amdhsa_group_segment_fixed_size 0
  .amdhsa_kernarg_size 120
  .amdhsa_user_sgpr_count 2
  .amdhsa_user_sgpr_kernarg_segment_ptr 1
  .amdhsa_system_sgpr_workgroup_id_x 1
.end_amdhsa_kernel
"""
dst = [a for a in sys.argv[1:] if not a.startswith('--')][0]
open(dst, "w").write(out)
print(f"instrs {len(P.ins)} nops {P.nops} vgpr hi {V.hi} sgpr hi {S.hi}", file=sys.stderr)
```

```python
import sys
from dsl import *

NAME = "adaLN_cond__ssm_conv_h3__glu_gated_bilinear__prompt"
OPT = {}
for a_ in sys.argv[1:]:
    if a_.startswith('--'):
        k, _, v = a_[2:].partition('='); OPT[k] = v if v else '1'
def opt(k, d=0): return type(d)(OPT.get(k, d))
TSTAMP = opt('ts')
PROBE = tuple(int(x) for x in OPT['probe'].split(',')) if 'probe' in OPT else None
TSOP = 's_memrealtime' if opt('rt') else 's_memtime'
NT = "nt" if opt('nt') else ""

EPOCH=0; F3=0x10000; F4=0x40000; F5=0x60000; F1=0x800000; FY=0x820000; S2=0x840000
MODG=0x90000; STG=0xA8000; C12=0xB0000; MODL2=0x880000
KVG=0x100000; XG=0x500000; X1T=0x900000; WP=0xB00000; WDP=0xF00000; HH=0x1100000; SG=0x1800000; TS=0x1900000
WS_SIZE=0x1A00000
OOB=0x80000000
FSH=opt('fsh', 4); F6=0x18000 if FSH <= 5 else 0xF0000
UB=0; UCH=4608; MODL=9216; CBL=10240; C12L=11264
TAPS=15360; TCOPY=4160; TCH=33280
RED=131072
WL=0; XS=131072; XSW=7168; EX=159744; NG=8
XTO=8192; C12O=10240; CBO=11264; S2O=11776
WDS0=81920; WDW0=20480; REDO=12288
LDS_SIZE=163840
NA = opt('na', 3)

P = Prog(); I = P.I; V = P.V; A = P.A; S = P.S
S.reserve(0, 3); V.reserve(0, 1)
def srd(): return S.alloc(4, 4)
rX, rK, rV, rSH, rTP, rW, rWD, rC, rWM, rOUT, rWS, rD = [srd() for _ in range(12)]
sPG = S.alloc(2, 2); sPU = S.alloc(2, 2)
sXJ = S.alloc(); sGI = S.alloc(); sWv = S.alloc(); sSpin = S.alloc()
sT = [S.alloc() for _ in range(6)]
sZ = [S.alloc() for _ in range(2)]
sC4096 = S.alloc()
sPL = S.alloc(); sPH = S.alloc(); sHI = S.alloc(); sONE = S.alloc()
sD0 = S.alloc()
sTp = [S.alloc(2, 2), S.alloc(2, 2)]; sT0 = S.alloc(2, 2)

class Frags:
    def __init__(self, n, pool=None): self.g = [(pool or V).alloc(4) for _ in range(n)]
    def __getitem__(self, i):
        if isinstance(i, slice):
            assert i.start//4 == (i.stop-1)//4
            return self.g[i.start//4][i.start%4:(i.stop-1)%4+1]
        return self.g[i//4][i%4]
    def free(self):
        for g in self.g: g.free()

nts = [0]
def stamp(name=""):
    if 'win' in OPT and not (name.startswith('w_') or name in ('end', 'drained')): return
    n = nts[0]; nts[0] += 1
    if PROBE:
        if n == PROBE[0]: I(f"s_memrealtime {sT0}")
        if n == PROBE[1]: I(f"s_memrealtime {sTp[0]}")
        return
    if not TSTAMP: return
    if n >= 2: I(f"v_writelane_b32 {vTs}, {sTp[n&1][0]}, {n-2}")
    I(f"{TSOP} {sTp[n&1]}")
    print(f"{n}:{name}", file=sys.stderr, end="  ")

slow = []
def check_tags(tags, reissue, toks):
    R = P.label("chk"); SL = P.label("slow"); D = P.label("ok")
    P.wait(toks)
    mn = V.alloc(); mx = V.alloc()
    I(f"{R}:")
    tg = list(tags)
    if len(tg) == 1:
        I(f"v_cmp_ne_u32 vcc, {tg[0]}, {vTag}")
    else:
        if len(tg) % 2: tg.append(tg[0])
        for i in range(0, len(tg), 2):
            I(f"v_min3_u32 {mn}, {vTag if i==0 else mn}, {tg[i]}, {tg[i+1]}")
            I(f"v_max3_u32 {mx}, {vTag if i==0 else mx}, {tg[i]}, {tg[i+1]}")
        I(f"v_cmp_ne_u32 vcc, {mn}, {mx}")
    I(f"s_cbranch_vccnz {SL}")
    I(f"{D}:")
    mn.free(); mx.free()
    save = (P.ins, P.vm, P.lg, P.vm_done, P.lg_done)
    P.ins = []
    I(f"{SL}:")
    I(f"s_add_u32 {sSpin}, {sSpin}, 1")
    I(f"s_cmp_gt_u32 {sSpin}, 200000")
    I(f"s_cbranch_scc1 {D}")
    reissue()
    I("s_waitcnt vmcnt(0)")
    I(f"s_branch {R}")
    slow.extend(P.ins)
    P.ins, P.vm, P.lg, P.vm_done, P.lg_done = save

def post_flag(vaddr, base):
    I(f"s_mov_b32 {sZ[0]}, {base}")
    return I(f"buffer_store_dword {vTag}, {vaddr}, {rWS}, {sZ[0]} offen sc1")
def flag_load(vp, vaddr, base):
    I(f"s_mov_b32 {sZ[0]}, {base}")
    return I(f"buffer_load_dword {vp}, {vaddr}, {rWS}, {sZ[0]} offen sc1")
def poll(vaddr, base):
    vp = V.alloc()
    t = flag_load(vp, vaddr, base)
    check_tags([vp], lambda: flag_load(vp, vaddr, base), t)
    vp.free()
sRel = S.alloc()
def post_local(vaddr, base):
    if not LOC: return post_flag(vaddr, base)
    I(f"s_mov_b32 {sZ[0]}, {base}")
    return I(f"buffer_store_dword {vTagL}, {vaddr}, {rWS}, {sZ[0]} offen")
def check_local(vp, vpoll, vown, base, tok):
    if not LOC: return check_tags([vp], lambda: flag_load(vp, vpoll, base), tok)
    SL = P.label("lslow"); D = P.label("lok"); RL = P.label("lrel"); AG = P.label("lagain"); NR = P.label("lnorel")
    P.wait(tok)
    I(f"v_cmp_ne_u32 vcc, {vp}, {vTagL}")
    I(f"s_cbranch_vccnz {SL}")
    I(f"{D}:")
    save = (P.ins, P.vm, P.lg, P.vm_done, P.lg_done)
    P.ins = []
    I(f"{SL}:")
    I(f"s_mov_b32 {sRel}, 0")
    I(f"{AG}:")
    I(f"s_add_u32 {sSpin}, {sSpin}, 1")
    I(f"s_cmp_gt_u32 {sSpin}, 200000")
    I(f"s_cbranch_scc1 {D}")
    flag_load(vp, vpoll, base)
    I("s_waitcnt vmcnt(0)")
    I(f"v_cmp_ne_u32 vcc, {vp}, {vTagL}")
    I(f"s_cbranch_vccz {D}")
    I(f"s_cmp_ge_u32 {sRel}, 0x10000")
    I(f"s_cbranch_scc1 {NR}")
    I(f"s_add_u32 {sRel}, {sRel}, 1")
    I(f"s_cmp_ge_u32 {sRel}, {opt('ltry', 40)}")
    I(f"s_cbranch_scc1 {RL}")
    I(f"v_cmp_eq_u32 vcc, {vp}, {vTag}")
    I(f"s_cbranch_vccz {AG}")
    I(f"{RL}:")
    I("buffer_wbl2 sc1")
    I("s_waitcnt vmcnt(0)")
    post_flag(vown, base)
    I(f"s_mov_b32 {sRel}, 0x10000")
    I(f"{NR}:")
    I(f"v_cmp_ne_u32 vcc, {vp}, {vTagL}")
    I(f"v_cmp_ne_u32 {sTp2}, {vp}, {vTag}")
    I(f"s_and_b64 {sTp2}, vcc, {sTp2}")
    I(f"s_cbranch_scc1 {AG}")
    I("s_waitcnt vmcnt(0)")
    I(f"s_branch {D}")
    slow.extend(P.ins)
    P.ins, P.vm, P.lg, P.vm_done, P.lg_done = save
def unpack(dst, src, hi):
    I(f"v_and_b32 {dst}, {sHI}, {src}" if hi else f"v_lshlrev_b32 {dst}, 16, {src}")
def round_bf16(dst, src):
    I(f"v_cvt_pk_bf16_f32 {dst}, {src}, {src}")
    I(f"v_and_b32 {dst}, {sHI}, {dst}")
def lane0(dst, sval, tmp):
    I(f"v_mov_b32 {dst}, {OOB}")
    I(f"v_writelane_b32 {dst}, {sval}, 0")

I("s_cmp_ge_u32 s2, 256")
I("s_cbranch_scc1 L_end")
if PROBE and PROBE[0] == -1: I(f"s_memrealtime {sT0}")
if TSTAMP:
    I(f"{TSOP} {sT0}")
    sR0 = S.alloc(2, 2); I(f"s_memrealtime {sR0}")
for r, off in ((rK,8),(rV,16),(rSH,24),(rWS,112),(rC,80),(rWM,88),(rX,0),(rTP,32),(rWD,72),(rOUT,96)):
    I(f"s_load_dwordx2 {r[0:2]}, s[0:1], {off}")
I(f"s_load_dwordx2 {sPG}, s[0:1], 56")
I(f"s_load_dwordx2 {sPU}, s[0:1], 64")
I(f"s_load_dwordx2 {rD[0:2]}, s[0:1], 40")
vL = V.alloc(); vL16 = V.alloc(); vTag = V.alloc(); vHH = V.alloc(); vQ = V.alloc(); vT16 = V.alloc()
if TSTAMP: vTs = V.alloc()
t0 = V.alloc(); t1 = V.alloc(); t2 = V.alloc()
I(f"s_and_b32 {sXJ}, s2, 7")
I(f"s_lshr_b32 {sGI}, s2, 3")
I(f"v_lshrrev_b32 {t0}, 6, v0")
I(f"v_and_b32 {vL}, 63, v0")
I(f"v_readfirstlane_b32 {sWv}, {t0}")
I(f"v_lshlrev_b32 {vL16}, 4, {vL}")
I(f"v_lshlrev_b32 {vT16}, 4, v0")
def do_cpf():
    global cpa, cpd
    cpa = V.reserve(250, 2); cpd = V.reserve(252, 4)
    I(f"s_getpc_b64 {sTp[0]}")
    I(f"s_and_b32 {sTp[0][0]}, {sTp[0][0]}, 0xffffff00")
    I(f"s_and_b32 {sT[5]}, {sGI}, 7")
    I(f"s_min_u32 {sT[5]}, {sT[5]}, 6")
    I(f"s_lshl_b32 {sT[5]}, {sT[5]}, 12")
    I(f"s_add_u32 {sTp[0][0]}, {sTp[0][0]}, {sT[5]}")
    I(f"s_addc_u32 {sTp[0][1]}, {sTp[0][1]}, 0")
    I(f"v_mov_b32 {cpa[1]}, {sTp[0][1]}")
    I(f"v_add_co_u32 {cpa[0]}, vcc, {sTp[0][0]}, {vT16}")
    I(f"v_addc_co_u32 {cpa[1]}, vcc, 0, {cpa[1]}, vcc")
    I(f"global_load_dwordx4 {cpd}, {cpa}, off")
if opt('cpf', 1) == 1: do_cpf()
for r, n in ((rK,2097152),(rV,2097152),(rSH,4096),(rWS,WS_SIZE),(rC,1024),(rWM,3145728),(rX,2097152),(rTP,2097152),(rWD,1835008),(rOUT,2097152),(rW,1835008),(rD,1024)):
    I(f"s_mov_b32 {r[2]}, {n}")
    I(f"s_mov_b32 {r[3]}, 0x20000")
I(f"v_lshrrev_b32 {vHH}, 5, {vL}")
I(f"v_and_b32 {vQ}, 31, {vL}")
I(f"s_mov_b32 {sSpin}, 0")
I(f"s_movk_i32 {sC4096}, 0x1000")
vB = V.alloc(); vH = V.alloc(); vSH = V.alloc(); vGS = V.alloc()
I(f"s_lshl_b32 {sT[0]}, {sGI}, 16")
I(f"s_lshl_b32 {sT[1]}, {sXJ}, 7")
I(f"s_lshl_b32 {sT[2]}, {sWv}, 5")
I(f"s_add_u32 {sT[1]}, {sT[1]}, {sT[2]}")
I(f"s_add_u32 {sT[0]}, {sT[0]}, {sT[1]}")
I(f"v_lshrrev_b32 {t0}, 3, {vL}")
I(f"v_and_b32 {t1}, 7, {vL}")
I(f"v_lshlrev_b32 {vB}, 13, {t0}")
I(f"v_lshl_add_u32 {vB}, {t1}, 2, {vB}")
I(f"v_add_u32 {vB}, {sT[0]}, {vB}")
I(f"v_subrev_u32 {vH}, 3072, {vB}")
I(f"s_lshl_b32 {sT[2]}, {sT[1]}, 2")
I(f"v_lshlrev_b32 {vSH}, 4, {t1}")
I(f"v_add_u32 {vSH}, {sT[2]}, {vSH}")
I(f"v_mov_b32 {t2}, {EPOCH}")
I("s_waitcnt lgkmcnt(0)")
WSOFF = opt('wsoff', 0) << 20
if WSOFF:
    I(f"s_add_u32 {rWS[0]}, {rWS[0]}, {WSOFF}")
    I(f"s_addc_u32 {rWS[1]}, {rWS[1]}, 0")
LOC = opt('loc', 1); LST = '' if LOC else 'sc1'
vTagL = V.alloc()
PT = V.alloc(4)
Kr = V.alloc(11, 1); Vr = V.alloc(8, 1); SHr = V.alloc(4)
tep = I(f"buffer_load_dword {vTag}, {t2}, {rWS}, 0 offen sc1")
tsh = I(f"buffer_load_dwordx4 {SHr}, {vSH}, {rSH}, 0 offen")
PTA = OPT.get('pta', 'sc1')
def pretouch(base):
    I(f"s_lshl_b32 {sZ[0]}, {sXJ}, 18")
    I(f"s_lshl_b32 {sZ[1]}, {sGI}, 13")
    I(f"s_add_u32 {sZ[0]}, {sZ[0]}, {sZ[1]}")
    I(f"s_add_u32 {sZ[0]}, {sZ[0]}, {base}")
    I(f"s_add_u32 {sZ[1]}, {sZ[0]}, 4096")
    for c in range(2): I(f"buffer_load_dwordx4 {PT}, {vT16}, {rWS}, {sZ[c]} offen {PTA}")
if LOC and opt('ptfirst', 0): pretouch(KVG)
tk = []
for e in range(3): tk.append(I(f"buffer_load_dword {Kr[e]}, {vH}, {rK}, 0 offen offset:{e*1024} {NT}"))
for e in range(8): tk.append(I(f"buffer_load_dword {Kr[3+e]}, {vB}, {rK}, {sC4096 if e>=4 else 0} offen offset:{(e&3)*1024} {NT}"))
tv = [I(f"buffer_load_dword {Vr[e]}, {vB}, {rV}, {sC4096 if e>=4 else 0} offen offset:{(e&3)*1024} {NT}") for e in range(8)]
vH.free(); vSH.free()
if LOC and not opt('ptfirst', 0): pretouch(KVG)
if opt('cpf', 1) == 2: do_cpf()
vBP = V.alloc()
I(f"s_lshl_b32 {sT[2]}, {sT[1]}, 11")
I(f"s_lshl_b32 {sT[3]}, {sGI}, 7")
I(f"s_add_u32 {sT[2]}, {sT[2]}, {sT[3]}")
I(f"v_lshlrev_b32 {vGS}, 13, {t0}")
I(f"v_lshl_add_u32 {vGS}, {t1}, 4, {vGS}")
I(f"s_add_u32 {sT[2]}, {sT[2]}, {KVG}")
I(f"v_add_u32 {vGS}, {sT[2]}, {vGS}")
I(f"v_lshlrev_b32 {vBP}, 5, {t1}")
I(f"v_lshl_add_u32 {vBP}, {t0}, 2, {vBP}")
I(f"s_mov_b32 {sPL}, 0x05040100")
I(f"s_mov_b32 {sPH}, 0x07060302")
I(f"s_mov_b32 {sHI}, 0xffff0000")
I(f"s_mov_b32 {sONE}, 0x3f803f80")
sM = S.alloc(); sKS = S.alloc(); sCB = S.alloc()
I(f"s_and_b32 {sM}, {sGI}, 1")
I(f"s_cmp_eq_u32 {sM}, 0")
I(f"s_cselect_b32 {rW[0]}, {sPG[0]}, {sPU[0]}")
I(f"s_cselect_b32 {rW[1]}, {sPG[1]}, {sPU[1]}")
I(f"s_lshl_b32 {sD0}, {sXJ}, 6")
I(f"s_lshl_b32 {sT[4]}, {sGI}, 1")
I(f"s_add_u32 {sD0}, {sD0}, {sT[4]}")
I(f"s_lshl_b32 {sKS}, {sXJ}, 2")
I(f"s_add_u32 {sKS}, {sKS}, {sWv}")
I(f"s_lshr_b32 {sCB}, {sGI}, 1")
sPG.free(); sTp2 = sPU

G = {}
def A_mod():
    G['vMW'] = vMW = V.alloc(); G['vMC'] = vMC = V.alloc()
    I(f"s_and_b32 {sT[4]}, {sGI}, 3")
    I(f"s_lshl_b32 {sT[4]}, {sT[4]}, 7")
    I(f"v_lshrrev_b32 {t2}, 3, v0")
    I(f"v_add_u32 {t2}, {sT[4]}, {t2}")
    I(f"v_lshlrev_b32 {vMC}, 1, {t2}")
    I(f"v_mul_u32_u24 {vMW}, 6144, {t2}")
    I(f"v_and_b32 {t2}, 7, v0")
    I(f"v_lshl_add_u32 {vMW}, {t2}, 4, {vMW}")
    I(f"s_lshr_b32 {sT[4]}, {sGI}, 2")
    I(f"s_lshl_b32 {sT[4]}, {sT[4]}, 10")
    I(f"s_lshl_b32 {sT[5]}, {sXJ}, 7")
    I(f"s_add_u32 {sT[4]}, {sT[4]}, {sT[5]}")
    I(f"s_cmp_lt_u32 {sGI}, 24")
    I(f"s_cselect_b32 {sT[4]}, {sT[4]}, {OOB}")
    I(f"v_add_u32 {vMW}, {sT[4]}, {vMW}")
def L_mod():
    vMW, vMC = G['vMW'], G['vMC']
    G['Cr'] = Cr = V.alloc(4, 1); G['WMr'] = WMr = V.alloc(16)
    G['tc'] = [I(f"buffer_load_ushort {Cr[i]}, {vMC}, {rC}, 0 offen offset:{64*i}") for i in range(4)]
    G['twm'] = []
    for i in range(4):
        I(f"s_mov_b32 {sT[5]}, {i*32*6144}")
        G['twm'].append(I(f"buffer_load_dwordx4 {WMr[4*i:4*i+4]}, {vMW}, {rWM}, {sT[5]} offen {NT}"))
    vMW.free(); vMC.free()
def L_taps():
    G['TP'] = TP = [V.alloc(8), V.alloc(8)]
    I(f"s_lshl_b32 {sT[4]}, {sD0}, 12")
    I(f"s_add_u32 {sT[5]}, {sT[4]}, 4096")
    I(f"v_subrev_u32 {t2}, 16, {vT16}")
    I(f"v_min_u32 {t2}, {OOB}, {t2}")
    G['ttp'] = []
    for c in range(2):
        G['ttp'].append([I(f"buffer_load_dwordx4 {TP[c][4:8]}, {vT16}, {rTP}, {sT[4+c]} offen"),
                         I(f"buffer_load_dwordx4 {TP[c][0:4]}, {t2}, {rTP}, {sT[4+c]} offen")])
def L_w():
    G['WR'] = WR = V.alloc(16)
    I(f"s_mul_i32 {sT[0]}, {sKS}, {16*3584}")
    I(f"s_mul_i32 {sT[1]}, {sCB}, 224")
    I(f"s_add_u32 {sT[0]}, {sT[0]}, {sT[1]}")
    I(f"v_mul_u32_u24 {t2}, {8*3584}, {vHH}")
    I(f"v_lshl_add_u32 {t2}, {vQ}, 3, {t2}")
    G['twr'] = []
    for e in range(8):
        if e and e % 2 == 0: I(f"s_add_u32 {sT[0]}, {sT[0]}, 7168")
        G['twr'].append(I(f"buffer_load_dwordx2 {WR[2*e:2*e+2]}, {t2}, {rW}, {sT[0]} offen offset:{(e&1)*3584} {NT}"))
def L_x1(e):
    if e == 0: G['Xr'] = V.alloc(8, 1); G['tx'] = []
    G['tx'].append(I(f"buffer_load_dword {G['Xr'][e]}, {vB}, {rX}, {sC4096 if e>=4 else 0} offen offset:{(e&3)*1024}"))
    if e == 7: vB.free()
def L_xr():
    G['XR'] = XR = V.alloc(8)
    I(f"s_lshl_b32 {sT[0]}, s2, 13")
    I(f"s_lshl_b32 {sT[1]}, {sWv}, 11")
    I(f"s_add_u32 {sT[0]}, {sT[0]}, {sT[1]}")
    G['txr'] = [I(f"buffer_load_dwordx4 {XR[4*i:4*i+4]}, {vL16}, {rX}, {sT[0]} offen offset:{1024*i}") for i in range(2)]
def zero_pads():
    z4 = V.alloc(4)
    for i in range(4): I(f"v_mov_b32 {z4[i]}, 0")
    I(f"v_lshlrev_b32 {t2}, 4, {vQ}")
    I(f"v_mul_u32_u24 {t0}, {UCH}, {vHH}")
    I(f"v_add_u32 {t2}, {t2}, {t0}")
    I(f"ds_write_b128 {t2}, {z4} offset:{UB+4096}")
    I(f"v_and_b32 {t2}, 15, {vL}")
    I(f"v_mul_u32_u24 {t2}, {TCOPY}, {t2}")
    I(f"ds_write_b128 {t2}, {z4} offset:{TAPS}")
    z4.free()
def C_tag():
    P.wait(tep)
    pass
    I(f"s_mov_b32 {sT[0]}, 0x9E3779B1")
    I(f"v_mul_lo_u32 {vTag}, {vTag}, {sT[0]}")
    I(f"v_add_u32 {vTag}, 0x7F4A7C15, {vTag}")
    I(f"s_getreg_b32 {sT[0]}, hwreg(HW_REG_XCC_ID, 0, 4)")
    I(f"s_add_u32 {sT[0]}, {sT[0]}, 1")
    I(f"v_xor_b32 {vTagL}, {sT[0]}, {vTag}")
def lane_tr(src):
    GR = Frags(2)
    return GR, [I(f"ds_bpermute_b32 {GR[i]}, {vBP}, {src[i]}") for i in range(8)]
def flag_setup():
    G['vFo'] = V.alloc(); G['vFp'] = V.alloc()
    I(f"s_lshl_b32 {sT[0]}, {sKS}, 5")
    I(f"s_add_u32 {sT[0]}, {sT[0]}, {sGI}")
    I(f"s_lshl_b32 {sT[0]}, {sT[0]}, 7")
    lane0(G['vFo'], sT[0], t1)
    I(f"s_lshr_b32 {sT[0]}, {sGI}, 3")
    I(f"s_lshl_b32 {sT[1]}, {sXJ}, 2")
    I(f"s_add_u32 {sT[0]}, {sT[0]}, {sT[1]}")
    I(f"s_lshl_b32 {sT[0]}, {sT[0]}, 2")
    I(f"s_add_u32 {sT[0]}, {sT[0]}, {sWv}")
    I(f"s_lshl_b32 {sT[0]}, {sT[0]}, 3")
    I(f"v_and_b32 {t0}, 7, {vL}")
    I(f"v_add_lshl_u32 {G['vFp']}, {t0}, {sT[0]}, 7")
def C_kv():
    kf = V.alloc(22); wp = V.alloc(8); acc = V.alloc(16)
    P.wait(tsh)
    for j in range(4):
        for c in range(2): unpack(wp[2*j+c], SHr[2*c + (j>>1)], j & 1)
    stamp('pre-k'); P.wait(tk[:opt('kw', 3)]); G['afterk'](); P.wait(tk); stamp('k in')
    for e in range(11):
        unpack(kf[2*e], Kr[e], 0); unpack(kf[2*e+1], Kr[e], 1)
    for e in range(8): I(f"v_pk_mul_f32 {acc[2*e:2*e+2]}, {kf[2*e:2*e+2]}, {wp[6:8]}")
    for j in (2, 1, 0):
        for e in range(8):
            q = e + 3 - j
            I(f"v_pk_fma_f32 {acc[2*e:2*e+2]}, {kf[2*q:2*q+2]}, {wp[2*j:2*j+2]}, {acc[2*e:2*e+2]}")
    P.wait(tv)
    for e in range(8):
        unpack(kf[2*e], Vr[e], 0); unpack(kf[2*e+1], Vr[e], 1)
    for e in range(8): I(f"v_pk_mul_f32 {acc[2*e:2*e+2]}, {acc[2*e:2*e+2]}, {kf[2*e:2*e+2]}")
    for c in range(2):
        for n in range(4):
            I(f"v_cvt_pk_bf16_f32 {wp[4*c+n]}, {acc[2*(7-2*n)+c]}, {acc[2*(6-2*n)+c]}")
    G['KVt'], tl = lane_tr(wp)
    G['tks'] = []
    for c in range(2):
        P.wait(tl[4*c:4*c+4])
        G['tks'].append(I(f"buffer_store_dwordx4 {G['KVt'][4*c:4*c+4]}, {vGS}, {rWS}, {sC4096 if c else 0} offen {LST}"))
    for r in (kf, wp, acc, Kr, Vr, SHr): r.free()
def C_mod():
    Cr, WMr = G['Cr'], G['WMr']
    P.wait(G['tc'])
    sl = V.alloc(4, 1); sp = V.alloc(2, 1)
    for i in range(4): I(f"v_lshlrev_b32 {Cr[i]}, 16, {Cr[i]}")
    for i in range(4): I(f"v_mul_f32 {sl[i]}, 0xbfb8aa3b, {Cr[i]}")
    for i in range(4): I(f"v_exp_f32 {sl[i]}, {sl[i]}")
    for i in range(4): I(f"v_add_f32 {sl[i]}, 1.0, {sl[i]}")
    for i in range(4): I(f"v_rcp_f32 {sl[i]}, {sl[i]}")
    for i in range(4): I(f"v_mul_f32 {sl[i]}, {sl[i]}, {Cr[i]}")
    I(f"v_cvt_pk_bf16_f32 {sp[0]}, {sl[0]}, {sl[1]}")
    I(f"v_cvt_pk_bf16_f32 {sp[1]}, {sl[2]}, {sl[3]}")
    I(f"v_and_b32 {t0}, 7, {vL}")
    I(f"v_lshlrev_b32 {t0}, 7, {t0}")
    I(f"v_lshrrev_b32 {t1}, 4, {vL}")
    I(f"v_lshl_add_u32 {t0}, {t1}, 5, {t0}")
    I(f"s_lshl_b32 {sT[0]}, {sWv}, 2")
    I(f"v_add_u32 {t0}, {sT[0]}, {t0}")
    ma = V.alloc(8, 1); mp = V.alloc(8, 1)
    for half in range(2):
        P.wait(G['twm'][2*half:2*half+2])
        for j in range(4):
            I(f"v_perm_b32 {mp[2*j]}, {WMr[8*half+4+j]}, {WMr[8*half+j]}, {sPL}")
            I(f"v_perm_b32 {mp[2*j+1]}, {WMr[8*half+4+j]}, {WMr[8*half+j]}, {sPH}")
        for j in range(8):
            I(f"v_dot2_f32_bf16 {ma[j]}, {mp[j]}, {sp[half]}, {0 if half==0 else ma[j]}")
    for i in range(4): I(f"v_permlane32_swap_b32 {ma[i]}, {ma[i+4]}")
    for i in range(4): I(f"v_add_f32 {ma[i]}, {ma[i]}, {ma[i+4]}")
    for i in range(2): I(f"v_permlane16_swap_b32 {ma[i]}, {ma[i+2]}")
    for i in range(2): I(f"v_add_f32 {ma[i]}, {ma[i]}, {ma[i+2]}")
    for i in range(2): I(f"v_add_f32_dpp {ma[i]}, {ma[i]}, {ma[i]} row_ror:8 row_mask:0xf bank_mask:0xf")
    I(f"ds_write_b32 {t0}, {ma[0]} offset:{MODL}")
    I(f"ds_write_b32 {t0}, {ma[1]} offset:{MODL+16}")
    for r in (sl, sp, ma, mp, Cr, WMr): r.free()
def A_mod2():
    I(f"s_lshl_b32 {sT[0]}, {sGI}, 12")
    I(f"s_lshl_b32 {sT[1]}, {sXJ}, 9")
    I(f"s_add_u32 {sT[0]}, {sT[0]}, {sT[1]}")
    I(f"s_add_u32 {sT[0]}, {sT[0]}, {MODG}")
    I(f"s_cmp_lt_u32 {sGI}, 24")
    I(f"s_cselect_b32 {sT[0]}, {sT[0]}, {OOB}")
    I(f"s_cmp_eq_u32 {sWv}, 1")
    I(f"s_cselect_b32 {sT[0]}, {sT[0]}, {OOB}")
    G['vMs'] = V.alloc()
    I(f"v_lshlrev_b32 {t0}, 3, {vL}")
    I(f"v_add_u32 {G['vMs']}, {sT[0]}, {t0}")
def C_mod2():
    vMs = G['vMs']
    I("s_waitcnt lgkmcnt(0)"); P.lg_done = P.lg
    I("s_barrier")
    m4 = V.alloc(4)
    tl = I(f"ds_read_b128 {m4}, {vL16} offset:{MODL}")
    P.wait(tl)
    I(f"v_add_f32 {m4[0]}, {m4[0]}, {m4[1]}")
    I(f"v_add_f32 {m4[2]}, {m4[2]}, {m4[3]}")
    I(f"v_mov_b32 {m4[1]}, {vTag}")
    I(f"v_add_f32 {m4[0]}, {m4[0]}, {m4[2]}")
    if LOC:
        I(f"s_mov_b32 {sT[1]}, {MODL2-MODG}")
        I(f"buffer_store_dwordx2 {m4[0:2]}, {vMs}, {rWS}, {sT[1]} offen")
    G['midmod']()
    I(f"buffer_store_dwordx2 {m4[0:2]}, {vMs}, {rWS}, 0 offen sc1")
    m4.free(); vMs.free()
def C_taps(hk=lambda: None):
    TP = G['TP']
    E1 = V.alloc(6); O0 = V.alloc(6); O1 = V.alloc(6)
    I(f"v_add_u32 {t2}, {TCH}, {vT16}")
    for c in range(2):
        d = TP[c]; ad = vT16 if c == 0 else t2
        P.wait(G['ttp'][c])
        def wr(o, regs):
            I(f"ds_write_b128 {ad}, {regs} offset:{TAPS + 16 + (o-1)*TCOPY}")
            if o > 4: hk()
        wr(4, d[2:6]); wr(8, d[4:8])
        for j in range(6): I(f"v_alignbit_b32 {O0[j]}, {d[j+1]}, {d[j]}, 16")
        wr(1, O0[0:4]); wr(5, O0[2:6])
        for j in range(6): I(f"v_alignbit_b32 {O1[j]}, {d[j+2]}, {d[j+1]}, 16")
        wr(3, O1[0:4]); wr(7, O1[2:6])
        for j in range(6): I(f"v_mov_b32 {E1[j]}, {d[j+1]}")
        wr(2, E1[0:4]); wr(6, E1[2:6])
    for r in TP + [E1, O0, O1]: r.free()
sUY = S.alloc(2)
def L_u():
    G['UR'] = UR = Frags(2)
    I(f"s_lshl_b32 {sUY[0]}, {sD0}, 12")
    I(f"s_add_u32 {sUY[0]}, {sUY[0]}, {KVG}")
    I(f"s_add_u32 {sUY[1]}, {sUY[0]}, 4096")
    G['tu'] = [I(f"buffer_load_dwordx4 {UR[4*c:4*c+4]}, {vT16}, {rWS}, {sUY[c]} offen sc1") for c in range(2)]
def C_u():
    UR = G['UR']
    I(f"v_sub_u32 {t2}, 4080, {vT16}")
    for c in range(2):
        P.wait(G['tu'][c])
        I(f"ds_write_b128 {t2}, {UR[4*c:4*c+4]} offset:{UB+c*UCH}")
    UR.free()
def L_d():
    G['Dr'] = V.alloc(2)
    I(f"s_lshl_b32 {sT[0]}, {sKS}, 5")
    I(f"v_lshrrev_b32 {t0}, 3, {vL}")
    I(f"v_lshlrev_b32 {t0}, 2, {t0}")
    G['td'] = I(f"buffer_load_dword {G['Dr'][0]}, {t0}, {rD}, {sT[0]} offen")
def x_ops():
    ops = []
    def a0(): G['xp'] = V.alloc(8, 1); G['Xt'] = Frags(2); G['txt'] = []; P.wait(G['tx'])
    ops.append(a0)
    for c in range(2):
        for n in range(4):
            ops.append(lambda c=c, n=n: I(f"v_perm_b32 {G['xp'][4*c+n]}, {G['Xr'][2*n+1]}, {G['Xr'][2*n]}, {sPH if c else sPL}"))
    for i in range(8): ops.append(lambda i=i: G['txt'].append(I(f"ds_bpermute_b32 {G['Xt'][i]}, {vBP}, {G['xp'][i]}")))
    ops.append(lambda: (G['Xr'].free(), vBP.free(), G['xp'].free()))
    return ops
def C_st():
    XR = G['XR']
    P.wait(G['txr'])
    q4 = V.alloc(4)
    for n in range(4):
        for r in range(2):
            I(f"v_dot2_f32_bf16 {q4[2*r]}, {XR[4*r+n]}, {sONE}, {0 if n==0 else q4[2*r]}")
            I(f"v_dot2_f32_bf16 {q4[2*r+1]}, {XR[4*r+n]}, {XR[4*r+n]}, {0 if n==0 else q4[2*r+1]}")
    I(f"v_permlane32_swap_b32 {q4[0]}, {q4[2]}")
    I(f"v_permlane32_swap_b32 {q4[1]}, {q4[3]}")
    I(f"v_add_f32 {q4[0]}, {q4[0]}, {q4[2]}")
    I(f"v_add_f32 {q4[1]}, {q4[1]}, {q4[3]}")
    I(f"v_permlane16_swap_b32 {q4[0]}, {q4[1]}")
    I(f"v_add_f32 {q4[0]}, {q4[0]}, {q4[1]}")
    for sh in (8, 4, 2, 1):
        I(f"v_add_f32_dpp {q4[0]}, {q4[0]}, {q4[0]} row_ror:{sh} row_mask:0xf bank_mask:0xf")
    I(f"v_mov_b32 {q4[1]}, {q4[0]}")
    I(f"v_permlane16_swap_b32 {q4[0]}, {q4[1]}")
    finish_stats(q4[0], q4[1], q4[3], t0)
    I(f"v_rsq_f32 {q4[2]}, {t0}")
    I(f"s_lshl_b32 {sT[0]}, s2, 4")
    I(f"s_lshl_b32 {sT[1]}, {sWv}, 12")
    I(f"s_add_u32 {sT[0]}, {sT[0]}, {sT[1]}")
    I(f"s_add_u32 {sT[0]}, {sT[0]}, {STG}")
    I(f"v_cvt_pk_bf16_f32 {q4[0]}, {q4[3]}, {q4[2]}")
    I(f"v_mov_b32 {q4[1]}, {vTag}")
    I(f"v_mov_b32 {q4[2]}, {q4[0]}")
    I(f"v_mov_b32 {q4[3]}, {vTag}")
    I(f"v_permlane32_swap_b32 {q4[0]}, {q4[2]}")
    lane0(t0, sT[0], t1)
    I(f"buffer_store_dwordx4 {q4}, {t0}, {rWS}, 0 offen sc1")
    XR.free(); q4.free()
def finish_stats(vsum, vsq, vnm, vve):
    I(f"v_mul_f32 {vnm}, 0xbb000000, {vsum}")
    I(f"v_mul_f32 {vsq}, 0x3b000000, {vsq}")
    I(f"v_fma_f32 {vve}, -{vnm}, {vnm}, {vsq}")
    I(f"v_max_f32 {vve}, 0, {vve}")
    I(f"v_add_f32 {vve}, 0x3727c5ac, {vve}")
def m_addr():
    G['MA'] = Frags(3); G['vMa'] = vMa = V.alloc()
    I(f"v_and_b32 {t0}, 7, {vL}")
    I(f"v_lshrrev_b32 {t1}, 3, {vL}")
    I(f"v_lshlrev_b32 {vMa}, 4, {t0}")
    I(f"v_lshl_add_u32 {vMa}, {t1}, 12, {vMa}")
    I(f"s_lshl_b32 {sT[0]}, {sKS}, 7")
    I(f"s_add_u32 {sT[0]}, {sT[0]}, {MODG}")
    I(f"v_add_u32 {vMa}, {sT[0]}, {vMa}")
def m_loads(retry=False):
    MA = G['MA']
    if LOC and retry:
        I(f"s_and_b32 {sZ[0]}, {sSpin}, 7")
        I(f"s_cmp_eq_u32 {sZ[0]}, 0")
        I(f"s_cselect_b32 {sZ[0]}, 0, {MODL2-MODG}")
    else: I(f"s_mov_b32 {sZ[0]}, {MODL2-MODG if LOC else 0}")
    out = []
    for j in range(3):
        if j: I(f"s_add_u32 {sZ[0]}, {sZ[0]}, 32768")
        out.append(I(f"buffer_load_dwordx4 {MA.g[j]}, {G['vMa']}, {rWS}, {sZ[0]} offen sc1"))
    return out
def C_wunpack():
    WR = G['WR']
    G['wf'] = wf = Frags(8)
    P.wait(G['twr'])
    for e in range(8):
        for h in range(2):
            unpack(wf[4*e+2*h], WR[2*e+h], 0); unpack(wf[4*e+2*h+1], WR[2*e+h], 1)
def C_m():
    MA = G['MA']
    check_tags([MA[4*j+i] for j in range(3) for i in (1, 3)], lambda: m_loads(True), G['tm'])
    G['vMa'].free()
def m_ops():
    MA = G['MA']; ad = MA[1]; one = MA[3]; on2 = MA[5]
    seq = [f"v_permlane16_swap_b32 {MA[4*j]}, {MA[4*j+2]}" for j in (2, 1, 0)]
    seq += [f"v_add_f32 {MA[4*j]}, {MA[4*j]}, {MA[4*j+2]}" for j in (2, 1, 0)]
    seq += [f"v_add_f32_dpp {MA[4*j]}, {MA[4*j]}, {MA[4*j]} row_ror:8 row_mask:0xf bank_mask:0xf" for j in (2, 1, 0)]
    seq += [f"v_and_b32 {ad}, 7, {vL}", f"v_lshlrev_b32 {ad}, 3, {ad}", f"v_bfe_u32 {one}, {vL}, 4, 1",
            f"v_lshl_add_u32 {ad}, {one}, 2, {ad}", f"v_lshl_add_u32 {ad}, {vHH}, 6, {ad}", f"v_add_u32 {ad}, {sWDs}, {ad}",
            f"v_cvt_f32_u32 {one}, {vHH}"]
    seq += [f"v_cvt_pk_bf16_f32 {MA[4*j]}, {MA[4*j]}, {MA[4*j]}" for j in (2, 1, 0)]
    seq += [f"v_sub_f32 {on2}, 1.0, {one}"]
    seq += [f"v_and_b32 {MA[4*j]}, {sHI}, {MA[4*j]}" for j in (2, 1, 0)]
    seq += [f"v_add_f32 {MA[8]}, {MA[8]}, {on2}", f"v_add_f32 {MA[0]}, {MA[0]}, {one}",
            f"v_cvt_pk_bf16_f32 {MA[8]}, {MA[8]}, {MA[8]}", f"v_cvt_pk_bf16_f32 {MA[0]}, {MA[0]}, {MA[0]}",
            f"v_and_b32 {MA[8]}, {sHI}, {MA[8]}", f"v_and_b32 {MA[0]}, {sHI}, {MA[0]}"]
    seq += [f"ds_write_b32 {ad}, {MA[4*j]} offset:{CBO+128*j}" for j in (2, 1, 0)]
    return [(lambda x=x: I(x)) for x in seq] + [lambda: MA.free()]
sWst = S.alloc()
def w_addr():
    G['vWs'] = vWs = V.alloc(); G['vCw'] = vCw = V.alloc()
    I(f"s_mul_i32 {sWst}, {sCB}, 229376")
    I(f"s_lshl_b32 {sT[1]}, {sM}, 9")
    I(f"s_add_u32 {sWst}, {sWst}, {sT[1]}")
    I(f"s_add_u32 {sWst}, {sWst}, {WP}")
    I(f"s_mul_i32 {sT[1]}, {sKS}, {NA*1024}")
    I(f"s_lshl_b32 {sT[2]}, {sKS}, 10")
    I(f"v_lshrrev_b32 {t0}, 2, {vQ}")
    I(f"v_lshlrev_b32 {vWs}, 10, {t0}")
    I(f"v_add_u32 {vWs}, {sT[1]}, {vWs}")
    I(f"v_lshlrev_b32 {t2}, 15, {t0}")
    I(f"v_add_u32 {t2}, {sT[2]}, {t2}")
    I(f"v_cmp_gt_u32 vcc, {NA}, {t0}")
    I(f"v_mov_b32 {t1}, {OOB}")
    I(f"v_cndmask_b32 {vWs}, {t2}, {vWs}, vcc")
    I(f"v_cmp_gt_u32 vcc, 7, {t0}")
    I(f"v_xor_b32 {t2}, {sM}, {vHH}")
    I(f"v_cndmask_b32 {vWs}, {t1}, {vWs}, vcc")
    I(f"v_lshl_add_u32 {vWs}, {t2}, 6, {vWs}")
    I(f"v_and_b32 {t2}, 3, {vQ}")
    I(f"v_lshl_add_u32 {vWs}, {t2}, 4, {vWs}")
    I(f"v_lshlrev_b32 {vCw}, 6, {t0}")
    I(f"v_lshl_add_u32 {vCw}, {t2}, 2, {vCw}")
    I(f"v_lshl_add_u32 {vCw}, {vHH}, 9, {vCw}")
    I(f"v_add_u32 {vCw}, {sWDs}, {vCw}")
def C_w_reads():
    I(f"v_lshlrev_b32 {t0}, 5, {vHH}")
    I(f"v_add_u32 {t0}, {sWDs}, {t0}")
    G['SBv'] = SBv = Frags(2); G['CBv'] = CBv = Frags(2)
    G['tcb'] = [I(f"ds_read_b128 {CBv[0:4]}, {t0} offset:{CBO+256}"), I(f"ds_read_b128 {CBv[4:8]}, {t0} offset:{CBO+272}"),
                I(f"ds_read_b128 {SBv[0:4]}, {t0} offset:{CBO+192}"), I(f"ds_read_b128 {SBv[4:8]}, {t0} offset:{CBO+208}")]
def wu_ops():
    WR = G['WR']; ops = []
    def st0(): G['wf'] = Frags(8); P.wait(G['twr'])
    ops.append(st0)
    for e in range(8):
        for j in range(4): ops.append(lambda e=e, j=j: unpack(G['wf'][4*e+j], WR[2*e+(j>>1)], j & 1))
    return ops
def w_ops():
    WR = G['WR']; ops = []
    def st0(): G['pr'] = V.alloc(4, 1); G['c1'] = V.alloc(4, 1); G['c2'] = V.alloc(4, 1); P.wait(G['tcb'])
    ops.append(st0)
    G['tws'] = []
    for j in range(4):
        for n in range(4):
            o = 2*(n & 1)
            for ee in range(2):
                ops.append(lambda n=n, j=j, ee=ee, o=o: I(f"v_mul_f32 {G['pr'][o+ee]}, {G['wf'][4*(2*n+ee)+j]}, {G['CBv'][2*n+ee]}"))
            ops.append(lambda n=n, j=j, o=o: I(f"v_cvt_pk_bf16_f32 {WR[4*j+n]}, {G['pr'][o]}, {G['pr'][o+1]}"))
        ops.append(lambda j=j: G['tws'].append(I(f"buffer_store_dwordx4 {WR[4*j:4*j+4]}, {G['vWs']}, {rWS}, {sWst} offen offset:{128*j} sc1")))
    return ops
def c_ops():
    ops = []
    for e in range(8):
        op = "v_mul_f32" if e == 0 else "v_fmac_f32"
        for j in range(4): ops.append(lambda e=e, j=j, op=op: I(f"{op} {G['c1'][j]}, {G['wf'][4*e+j]}, {G['CBv'][e]}"))
        for j in range(4): ops.append(lambda e=e, j=j, op=op: I(f"{op} {G['c2'][j]}, {G['wf'][4*e+j]}, {G['SBv'][e]}"))
    ops.append(None)
    for j in range(4): ops.append(lambda j=j: I(f"v_permlane32_swap_b32 {G['c1'][j]}, {G['c2'][j]}"))
    for j in range(4): ops.append(lambda j=j: I(f"v_add_f32 {G['c1'][j]}, {G['c1'][j]}, {G['c2'][j]}"))
    for j in range(4): ops.append(lambda j=j: I(f"ds_write_b32 {G['vCw']}, {G['c1'][j]} offset:{C12O+16*j}"))
    def fin():
        for k in ('pr', 'CBv', 'SBv', 'vWs', 'wf', 'c1', 'c2', 'vCw', 'WR'): G[k].free()
    ops.append(fin)
    return ops
def C_c12b():
    c4 = V.alloc(4, 1)
    I(f"v_lshlrev_b32 {t0}, 2, v0")
    I(f"v_add_u32 {t0}, {WDS0+C12O}, {t0}")
    tc4 = [I(f"ds_read_b32 {c4[w]}, {t0} offset:{WDW0*w}") for w in range(4)]
    I(f"s_lshl_b32 {sT[0]}, {sCB}, 2")
    I(f"s_lshr_b32 {sT[1]}, {sXJ}, 1")
    I(f"s_add_u32 {sT[0]}, {sT[0]}, {sT[1]}")
    I(f"s_mul_i32 {sT[0]}, {sT[0]}, 3584")
    I(f"s_lshl_b32 {sT[1]}, {sM}, 8")
    I(f"s_add_u32 {sT[0]}, {sT[0]}, {sT[1]}")
    I(f"s_and_b32 {sT[1]}, {sXJ}, 1")
    I(f"s_lshl_b32 {sT[1]}, {sT[1]}, 3")
    I(f"s_add_u32 {sT[0]}, {sT[0]}, {sT[1]}")
    I(f"s_add_u32 {sT[0]}, {sT[0]}, {C12}")
    I(f"v_lshrrev_b32 {t0}, 7, v0")
    I(f"v_lshlrev_b32 {t0}, 2, {t0}")
    I(f"v_bfe_u32 {t1}, v0, 4, 3")
    I(f"v_lshl_add_u32 {t0}, {t1}, 9, {t0}")
    I(f"v_and_b32 {t2}, 15, v0")
    I(f"v_lshl_add_u32 {t0}, {t2}, 4, {t0}")
    I(f"v_mov_b32 {t2}, {OOB}")
    I(f"v_cmp_gt_u32 vcc, 7, {t1}")
    I(f"v_cndmask_b32 {t0}, {t2}, {t0}, vcc")
    P.wait(tc4)
    I(f"v_add_f32 {c4[0]}, {c4[0]}, {c4[1]}")
    I(f"v_add_f32 {c4[2]}, {c4[2]}, {c4[3]}")
    I(f"v_add_f32 {c4[0]}, {c4[0]}, {c4[2]}")
    G['tc12'] = I(f"buffer_store_dword {c4[0]}, {t0}, {rWS}, {sT[0]} offen sc1")
    c4.free()
def A_f3():
    G['vF3'] = V.alloc()
    I(f"s_lshl_b32 {sT[0]}, {sGI}, 5")
    I(f"s_add_u32 {sT[0]}, {sT[0]}, {sKS}")
    I(f"s_lshl_b32 {sT[0]}, {sT[0]}, {FSH}")
    lane0(G['vF3'], sT[0], t1)
def st_addr():
    G['vSt'] = V.alloc()
    I(f"s_lshl_b32 {sT[0]}, {sGI}, 7")
    I(f"s_add_u32 {sT[0]}, {sT[0]}, {STG}")
    I(f"v_and_b32 {t0}, 7, {vL}")
    I(f"v_lshl_add_u32 {G['vSt']}, {t0}, 4, {sT[0]}")
def st_loads():
    SL = G['SL']; out = []
    for w in range(4):
        if w >= 2: I(f"s_movk_i32 {sZ[0]}, {4096*w}")
        out.append(I(f"buffer_load_dwordx4 {SL.g[w]}, {G['vSt']}, {rWS}, {[0, sC4096, sZ[0], sZ[0]][w]} offen sc1"))
    return out
def L_st():
    G['SL'] = Frags(4); G['tsl'] = st_loads()
def C_pre0():
    G['PQ'] = PQ = V.alloc(6)
    I(f"v_lshrrev_b32 {t0}, 3, {vL}")
    I(f"v_lshl_add_u32 {t0}, {t0}, 3, {sWDs}")
    G['tpq'] = [I(f"ds_read_b64 {PQ[2*v:2*v+2]}, {t0} offset:{CBO+64*v}") for v in range(3)]
def C_pre1():
    SL, PQ, Dr = G['SL'], G['PQ'], G['Dr']
    check_tags([SL[2*i+1] for i in range(8)], st_loads, [G['tsl'], G['td']])
    G['vSt'].free()
    for w in range(4):
        g = SL.g[w]
        unpack(g[1], g[2], 1); unpack(g[3], g[2], 0); unpack(g[2], g[0], 0); unpack(g[0], g[0], 1)
    for w in range(4): I(f"v_pk_mul_f32 {SL.g[w][2:4]}, {SL.g[w][2:4]}, {SL.g[w][0:2]}")
    unpack(Dr[1], Dr[0], 1); unpack(Dr[0], Dr[0], 0)
    P.wait(G['tpq'], G['txt'])
    I(f"v_pk_mul_f32 {PQ[0:2]}, {PQ[0:2]}, {PQ[4:6]}")
    I(f"v_pk_mul_f32 {PQ[2:4]}, {PQ[2:4]}, {PQ[4:6]}")
    G['HG'] = Frags(4); G['BS'] = Frags(4)
def C_pre2(c):
    SL, PQ, Dr, HG, BS, Xt, KVt = G['SL'], G['PQ'], G['Dr'], G['HG'], G['BS'], G['Xt'], G['KVt']
    kd = V.alloc(8)
    pr = lambda R, p: R[8*c+2*p:8*c+2*p+2]
    for p in range(4):
        unpack(BS[8*c+2*p], Xt[4*c+p], 0); unpack(BS[8*c+2*p+1], Xt[4*c+p], 1)
        unpack(kd[2*p], KVt[4*c+3-p], 1); unpack(kd[2*p+1], KVt[4*c+3-p], 0)
    for p in range(4): I(f"v_pk_fma_f32 {pr(HG,p)}, {pr(BS,p)}, {SL.g[p][0:2]}, {SL.g[p][2:4]}")
    for p in range(4): I(f"v_pk_mul_f32 {kd[2*p:2*p+2]}, {kd[2*p:2*p+2]}, {Dr} op_sel:[0,{c}] op_sel_hi:[1,{c}]")
    for p in range(4): I(f"v_pk_fma_f32 {pr(HG,p)}, {pr(HG,p)}, {PQ[2:4]}, {PQ[0:2]} op_sel:[0,{c},{c}] op_sel_hi:[1,{c},{c}]")
    for p in range(4): I(f"v_pk_fma_f32 {pr(BS,p)}, {pr(HG,p)}, {kd[2*p:2*p+2]}, {pr(BS,p)}")
    kd.free()
    if c == 1:
        for r in (SL, PQ, Dr, Xt, KVt): r.free()

AWD = A.reserve(0, 224)
sR64 = S.alloc(); sDB = S.alloc(); sWD = S.alloc()
sWDs = S.alloc()
def wd_setup():
    G['vWa'] = vWa = V.alloc(); G['vWb'] = vWb = V.alloc(); G['vWr'] = [V.alloc(), V.alloc()]
    if opt('map2', 1):
        I(f"s_lshr_b32 {sR64}, {sGI}, 2")
        I(f"s_lshr_b32 {sT[0]}, {sXJ}, 1")
        I(f"s_lshl_b32 {sT[0]}, {sT[0]}, 3")
        I(f"s_add_u32 {sR64}, {sR64}, {sT[0]}")
        I(f"s_and_b32 {sDB}, {sGI}, 3")
        I(f"s_and_b32 {sT[0]}, {sXJ}, 1")
        I(f"s_lshl_b32 {sT[0]}, {sT[0]}, 2")
        I(f"s_add_u32 {sDB}, {sDB}, {sT[0]}")
    else:
        I(f"s_lshr_b32 {sR64}, {sGI}, 3")
        I(f"s_lshl_b32 {sT[0]}, {sXJ}, 2")
        I(f"s_add_u32 {sR64}, {sR64}, {sT[0]}")
        I(f"s_and_b32 {sDB}, {sGI}, 7")
    I(f"s_mul_i32 {sWD}, {sWv}, {448*1024}")
    I(f"s_lshl_b32 {sT[0]}, {sDB}, 7")
    I(f"s_add_u32 {sWD}, {sWD}, {sT[0]}")
    I(f"v_bfe_u32 {t0}, {vL}, 3, 2")
    I(f"v_lshlrev_b32 {vWa}, 12, {t0}")
    I(f"v_lshl_add_u32 {vWa}, {vHH}, 10, {vWa}")
    I(f"v_bfe_u32 {t0}, {vL}, 4, 1")
    I(f"v_lshlrev_b32 {t0}, 2, {t0}")
    I(f"v_and_b32 {t1}, 7, {vL}")
    I(f"v_xor_b32 {t0}, {t0}, {t1}")
    I(f"v_lshl_add_u32 {vWa}, {t0}, 4, {vWa}")
    I(f"v_add_u32 {vWb}, 1024, {vWa}")
    r0 = G['vWr'][0]
    I(f"v_bfe_u32 {t0}, {vL}, 2, 2")
    I(f"v_lshlrev_b32 {r0}, 7, {t0}")
    I(f"v_lshl_add_u32 {r0}, {vHH}, 9, {r0}")
    I(f"v_bfe_u32 {t0}, {vL}, 3, 1")
    I(f"s_and_b32 {sT[0]}, {sWv}, 1")
    I(f"v_xor_b32 {t0}, {sT[0]}, {t0}")
    I(f"v_lshl_add_u32 {r0}, {t0}, 6, {r0}")
    I(f"v_and_b32 {t0}, 1, {vL}")
    I(f"v_lshl_add_u32 {r0}, {t0}, 5, {r0}")
    I(f"v_bfe_u32 {t0}, {vL}, 4, 1")
    I(f"v_lshl_add_u32 {r0}, {t0}, 4, {r0}")
    I(f"v_bfe_u32 {t0}, {vL}, 1, 1")
    I(f"v_lshl_add_u32 {r0}, {t0}, 3, {r0}")
    I(f"s_mul_i32 {sWDs}, {sWv}, {WDW0}")
    I(f"s_add_u32 {sWDs}, {sWDs}, {WDS0}")
    I(f"v_add_u32 {r0}, {sWDs}, {r0}")
    I(f"v_xor_b32 {G['vWr'][1]}, 64, {r0}")
    G['wd'] = dict(nd=0, nr=0, free=[6, 7, 8, 9, 0, 1, 2, 3], ban=set(), slot={}, dt={}, rt={}, ti={})
def wd_rebase(sbase, nslots):
    W = G['wd']; assert W['nd'] == W['nr']
    I(f"s_sub_u32 {sT[0]}, {sbase}, {sWDs}")
    I(f"s_mov_b32 {sWDs}, {sbase}")
    for r in G['vWr']: I(f"v_add_u32 {r}, {sT[0]}, {r}")
    W['free'] = list(range(nslots)); W['rt'] = {}; W['ban'] = set()
def wd_dma():
    W = G['wd']; n = W['nd']
    if n >= 28 or not W['free']: return False
    sl = W['free'].pop(0); W['slot'][n] = sl
    P.wait(W['rt'].get(sl))
    I(f"s_add_u32 m0, {sWDs}, {2048*sl}")
    W['dt'][n] = [I(f"buffer_load_dwordx4 {G['vWa']}, {rWD}, {sWD} offen lds"),
                  I(f"buffer_load_dwordx4 {G['vWb']}, {rWD}, {sWD} offen offset:1024 lds")]
    I(f"s_add_u32 {sWD}, {sWD}, 16384")
    W['nd'] = n+1
    return True
def wd_dma1():
    W = G['wd']; n = W['nd']
    if not W.get('half'):
        if n >= 28 or not W['free']: return False
        sl = W['free'].pop(0); W['slot'][n] = sl
        P.wait(W['rt'].get(sl))
        I(f"s_add_u32 m0, {sWDs}, {2048*sl}")
        I("s_nop 0")
        W['dt'][n] = [I(f"buffer_load_dwordx4 {G['vWa']}, {rWD}, {sWD} offen lds")]
        W['half'] = True
    else:
        I(f"s_add_u32 m0, {sWDs}, {2048*W['slot'][n]}")
        I("s_nop 0")
        W['dt'][n].append(I(f"buffer_load_dwordx4 {G['vWb']}, {rWD}, {sWD} offen offset:1024 lds"))
        I(f"s_add_u32 {sWD}, {sWD}, 16384")
        W['half'] = False; W['nd'] = n+1; W['ti'][n] = G.get('now', 0)
    return True
def wd_read():
    W = G['wd']; n = W['nr']
    if n >= W['nd']: return False
    sl = W['slot'][n]
    P.wait(W['dt'][n])
    W['rt'][sl] = [I(f"ds_read_b64_tr_b16 {AWD[8*n+4*dt+2*g:8*n+4*dt+2*g+2]}, {G['vWr'][dt]} offset:{2048*sl+1024*g}") for dt in range(2) for g in range(2)]
    W['last'] = W['rt'][sl]
    if sl not in W['ban']: W['free'].append(sl)
    W['nr'] = n+1
    return True

def conv(side_per=None):
    vAa = V.alloc(); vBa = V.alloc(); vRW = V.alloc()
    I(f"s_lshr_b32 {sT[0]}, {sWv}, 1")
    I(f"s_and_b32 {sT[1]}, {sWv}, 1")
    I(f"s_lshl_b32 {sT[1]}, {sT[1]}, 8")
    I(f"s_mul_i32 {sT[2]}, {sT[0]}, {TCH}")
    I(f"s_add_u32 {sT[2]}, {sT[2]}, {sT[1]}")
    I(f"s_mul_i32 {sT[3]}, {sT[0]}, {UCH}")
    I(f"s_add_u32 {sT[3]}, {sT[3]}, {sT[1]}")
    I(f"s_add_u32 {sT[3]}, {sT[3]}, {UB+480}")
    I(f"v_and_b32 {t0}, 7, {vL}")
    I(f"v_mul_u32_u24 {vAa}, {TCOPY}, {t0}")
    I(f"v_bfe_u32 {t0}, {vL}, 3, 1")
    I(f"v_lshrrev_b32 {t1}, 4, {vL}")
    I(f"v_add_u32 {t0}, {t0}, {t1}")
    I(f"v_lshl_add_u32 {vAa}, {t0}, 4, {vAa}")
    I(f"v_add_u32 {vAa}, {sT[2]}, {vAa}")
    I(f"v_and_b32 {t0}, 15, {vL}")
    I(f"v_lshlrev_b32 {t2}, 5, {t0}")
    I(f"v_lshlrev_b32 {vBa}, 4, {t1}")
    I(f"v_sub_u32 {vBa}, {vBa}, {t2}")
    I(f"v_add_u32 {vBa}, {sT[3]}, {vBa}")
    I(f"v_and_b32 {vRW}, 1, {t1}")
    I(f"v_lshlrev_b32 {vRW}, 12, {vRW}")
    I(f"v_add_u32 {vRW}, {vRW}, {t2}")
    I(f"v_lshrrev_b32 {t1}, 1, {t1}")
    I(f"v_lshl_add_u32 {vRW}, {t1}, 4, {vRW}")
    I(f"s_mul_i32 {sT[0]}, {sWv}, {WDW0}")
    I(f"s_add_u32 {sT[0]}, {sT[0]}, {WDS0+REDO}")
    I(f"v_add_u32 {vRW}, {sT[0]}, {vRW}")
    G['convaddr'] = (vAa, vBa, vRW)
def conv_run(hook=None):
    vAa, vBa, vRW = G['convaddr']
    D = Frags(8); FA = [Frags(8, A), AWD[192:224]]; FB = [AWD[160:192], Frags(8)]
    def reads(n):
        b = n & 1; out = []
        for t in range(8):
            out.append(lambda t=t: I(f"ds_read_b128 {FA[b][4*t:4*t+4]}, {vAa} offset:{TAPS + 64*n + 512*t}"))
            out.append(lambda t=t: I(f"ds_read_b128 {FB[b][4*t:4*t+4]}, {vBa} offset:{512*(7-t) + 64*n}"))
        return out
    ctok = {0: [f() for f in reads(0)]}
    cnt = 0
    for n in range(4):
        b = n & 1
        nxt = reads(n+1) if n < 3 else []
        ctok[n+1] = []
        if n < 3: pairs = sorted([(t, jj) for t in range(8) for jj in range(8-t)], key=lambda p: (max(p), p))
        else: pairs = sorted([(t, jj) for t in range(8) for jj in range(8-t)], key=lambda p: (p[0]+p[1], p))
        seen = set(); done = {}
        if n > 0: P.wait(ctok[n])
        for i, (t, jj) in enumerate(pairs):
            P.wait(ctok[n][2*t], ctok[n][2*jj+1])
            j = t + jj
            first = (n == 0 and j not in seen); seen.add(j)
            I(f"v_mfma_f32_16x16x32_bf16 {D[4*j:4*j+4]}, {FA[b][4*t:4*t+4]}, {FB[b][4*jj:4*jj+4]}, {0 if first else D[4*j:4*j+4]}")
            if nxt and i >= 1 and i % 2 == 1: ctok[n+1].append(nxt.pop(0)())
            if n == 3:
                if t == j: done[j] = i
                for jd, idn in list(done.items()):
                    if i >= idn + opt('rdel', 6):
                        I(f"ds_write_b128 {vRW}, {D[4*jd:4*jd+4]} offset:{512*jd}"); del done[jd]
            if hook: hook(cnt)
            cnt += 1
        while nxt: ctok[n+1].append(nxt.pop(0)())
    for jd in sorted(done): I(f"ds_write_b128 {vRW}, {D[4*jd:4*jd+4]} offset:{512*jd}")
    assert G['wd']['nr'] <= 20
    for r in [FA[0], FB[1], vAa, vBa, vRW, D]: r.free()

sX1 = S.alloc(2)
def x1_addr():
    G['vRr'] = V.alloc(); G['vRr2'] = V.alloc(); G['vXw'] = vXw = V.alloc(); G['vXr'] = vXr = V.alloc(); G['vS2'] = vS2 = V.alloc()
    I(f"v_add_u32 {G['vRr']}, {WDS0+REDO}, {vT16}")
    I(f"v_add_u32 {G['vRr2']}, {WDS0+REDO+2*WDW0}, {vT16}")
    I(f"v_bfe_u32 {t0}, {vL}, 2, 1")
    I(f"v_lshl_add_u32 {vXw}, {t0}, 10, {sWDs}")
    I(f"v_lshrrev_b32 {t0}, 3, {vL}")
    I(f"v_lshl_add_u32 {vXw}, {t0}, 7, {vXw}")
    I(f"v_and_b32 {t0}, 3, {vL}")
    I(f"v_lshl_add_u32 {vXw}, {t0}, 4, {vXw}")
    I(f"v_lshl_add_u32 {vXr}, {t0}, 3, {sWDs}")
    I(f"v_bfe_u32 {t0}, {vL}, 4, 1")
    I(f"v_lshl_add_u32 {vXr}, {t0}, 5, {vXr}")
    I(f"v_bfe_u32 {t0}, {vL}, 2, 2")
    I(f"v_lshl_add_u32 {vXr}, {t0}, 6, {vXr}")
    I(f"v_lshl_add_u32 {vXr}, {vHH}, 9, {vXr}")
    I(f"s_lshl_b32 {sX1[0]}, {sGI}, 6")
    I(f"s_add_u32 {sX1[0]}, {sX1[0]}, {sKS}")
    I(f"s_lshl_b32 {sX1[0]}, {sX1[0]}, 10")
    I(f"s_add_u32 {sX1[0]}, {sX1[0]}, {X1T}")
    I(f"s_add_u32 {sX1[1]}, {sX1[0]}, 32768")
    I(f"s_lshl_b32 {sT[0]}, {sGI}, 13")
    I(f"s_lshl_b32 {sT[1]}, {sXJ}, 9")
    I(f"s_add_u32 {sT[0]}, {sT[0]}, {sT[1]}")
    I(f"s_add_u32 {sT[0]}, {sT[0]}, {S2}")
    I(f"s_cmp_eq_u32 {sWv}, 0")
    I(f"s_cselect_b32 {sT[0]}, {sT[0]}, {OOB}")
    I(f"v_lshl_add_u32 {vS2}, {vQ}, 4, {sT[0]}")
    I(f"v_lshl_add_u32 {vS2}, {vHH}, 12, {vS2}")
def C_y():
    Y = Frags(8); yo = Frags(2)
    tl = []
    for c in range(2):
        for kh in range(2):
            for h in range(2):
                tl.append(I(f"ds_read_b128 {Y[16*c+8*kh+4*h:16*c+8*kh+4*h+4]}, {G['vRr2'] if c else G['vRr']} offset:{kh*WDW0 + 4096*h}"))
    C_pre0()
    G['tys'] = []
    for c in range(2):
        P.wait(tl[4*c:4*c+4])
        for e in range(0, 8, 2): I(f"v_pk_add_f32 {Y[16*c+e:16*c+e+2]}, {Y[16*c+e:16*c+e+2]}, {Y[16*c+8+e:16*c+8+e+2]}")
        for n in range(4): I(f"v_cvt_pk_bf16_f32 {yo[4*c+n]}, {Y[16*c+2*n]}, {Y[16*c+2*n+1]}")
        G['tys'].append(I(f"buffer_store_dwordx4 {yo[4*c:4*c+4]}, {vT16}, {rWS}, {sUY[c]} offen {LST}"))
    for r in [Y, yo, G['vRr'], G['vRr2']]: r.free()
def L_y():
    G['YL'] = YL = Frags(2)
    G['tyl'] = [I(f"buffer_load_dwordx4 {YL[4*c:4*c+4]}, {vGS}, {rWS}, {sC4096 if c else 0} offen sc1") for c in range(2)]
    vGS.free()
def C_x1():
    HG, BS, YL = G['HG'], G['BS'], G['YL']
    yf = V.alloc(8); F = Frags(2); q = V.alloc(4)
    for c in range(2):
        P.wait(G['tyl'][c])
        for p in range(4): unpack(yf[2*p], YL[4*c+p], 0); unpack(yf[2*p+1], YL[4*c+p], 1)
        for p in range(4): I(f"v_pk_fma_f32 {BS[8*c+2*p:8*c+2*p+2]}, {HG[8*c+2*p:8*c+2*p+2]}, {yf[2*p:2*p+2]}, {BS[8*c+2*p:8*c+2*p+2]}")
        for p in range(4): I(f"v_cvt_pk_bf16_f32 {YL[4*c+p]}, {BS[8*c+2*p]}, {BS[8*c+2*p+1]}")
        I(f"ds_write_b128 {G['vXw']}, {YL[4*c:4*c+4]} offset:{XTO+64*c}")
    tl = [I(f"ds_read_b64_tr_b16 {F[4*b+2*g:4*b+2*g+2]}, {G['vXr']} offset:{XTO+1024*b+256*g}") for b in range(2) for g in range(2)]
    I(f"v_lshl_add_u32 {t0}, {vL}, 3, {sWDs}")
    G['tx1'] = []
    for b in range(2):
        P.wait(tl[2*b:2*b+2])
        G['tx1'].append(I(f"buffer_store_dwordx4 {F.g[b]}, {vL16}, {rWS}, {sX1[b]} offen sc1"))
    for r in range(4):
        for b in range(2):
            I(f"v_dot2_f32_bf16 {q[2*b]}, {F[4*b+r]}, {sONE}, {0 if r==0 else q[2*b]}")
            I(f"v_dot2_f32_bf16 {q[2*b+1]}, {F[4*b+r]}, {F[4*b+r]}, {0 if r==0 else q[2*b+1]}")
    I(f"v_permlane32_swap_b32 {q[0]}, {q[2]}")
    I(f"v_permlane32_swap_b32 {q[1]}, {q[3]}")
    I(f"v_pk_add_f32 {q[0:2]}, {q[0:2]}, {q[2:4]}")
    I(f"ds_write_b64 {t0}, {q[0:2]} offset:{S2O}")
    for r in (HG, BS, YL, yf, F, q, G['vXw'], G['vXr']): r.free()
def C_s2():
    q = V.alloc(8)
    I(f"v_lshlrev_b32 {t0}, 3, {vL}")
    I(f"v_add_u32 {t0}, {WDS0+S2O}, {t0}")
    tl = [I(f"ds_read_b64 {q[2*w:2*w+2]}, {t0} offset:{WDW0*w}") for w in range(4)]
    P.wait(tl)
    I(f"v_pk_add_f32 {q[0:2]}, {q[0:2]}, {q[2:4]}")
    I(f"v_pk_add_f32 {q[4:6]}, {q[4:6]}, {q[6:8]}")
    I(f"v_add_f32 {q[2]}, {q[1]}, {q[5]}")
    I(f"v_add_f32 {q[0]}, {q[0]}, {q[4]}")
    I(f"v_mov_b32 {q[1]}, {vTag}")
    I(f"v_mov_b32 {q[3]}, {vTag}")
    I(f"buffer_store_dwordx4 {q[0:4]}, {G['vS2']}, {rWS}, 0 offen sc1")
    q.free(); G['vS2'].free()

sRB = S.alloc(); sC1 = S.alloc(); sWsrc = S.alloc(); sWdst = S.alloc()
def A_g1():
    G['vF8'] = vF8 = V.alloc(); G['vPA'] = vPA = V.alloc(); G['vP3'] = vP3 = V.alloc()
    I(f"s_and_b32 {sRB}, {sXJ}, 1")
    I(f"s_lshl_b32 {sRB}, {sRB}, 3")
    I(f"s_lshr_b32 {sT[0]}, {sGI}, 2")
    I(f"s_add_u32 {sRB}, {sRB}, {sT[0]}")
    I(f"s_lshr_b32 {sC1}, {sXJ}, 1")
    I(f"s_lshl_b32 {sC1}, {sC1}, 2")
    I(f"s_and_b32 {sT[0]}, {sGI}, 3")
    I(f"s_add_u32 {sC1}, {sC1}, {sT[0]}")
    I(f"s_lshl_b32 {sT[0]}, {sC1}, 6")
    I(f"v_add_lshl_u32 {vP3}, {vL}, {sT[0]}, {FSH}")
    I(f"s_lshl_b32 {sT[0]}, {sGI}, 5")
    I(f"s_add_u32 {sT[0]}, {sT[0]}, {sKS}")
    I(f"v_lshlrev_b32 {vF8}, 10, {vL}")
    I(f"v_add_lshl_u32 {vF8}, {vF8}, {sT[0]}, {FSH}")
    I(f"v_mov_b32 {t1}, {OOB}")
    I(f"v_cmp_gt_u32 vcc, 4, {vL}")
    I(f"s_lshr_b32 {sT[0]}, {sXJ}, 1")
    I(f"s_lshl_b32 {sT[0]}, {sT[0]}, 4")
    I(f"s_add_u32 {sT[0]}, {sT[0]}, {sRB}")
    I(f"s_lshl_b32 {sT[0]}, {sT[0]}, 1")
    I(f"s_lshr_b32 {sT[1]}, {sWv}, 1")
    I(f"s_add_u32 {sT[0]}, {sT[0]}, {sT[1]}")
    I(f"s_lshl_b32 {sT[0]}, {sT[0]}, 5")
    I(f"v_add_lshl_u32 {vPA}, {vQ}, {sT[0]}, {FSH}")
    I(f"v_cndmask_b32 {vF8}, {t1}, {vF8}, vcc")
    I(f"s_mul_i32 {sWsrc}, {sC1}, 229376")
    I(f"s_lshl_b32 {sWdst}, {sWv}, 12")
    I(f"s_add_u32 {sWsrc}, {sWsrc}, {sWdst}")
    I(f"s_add_u32 {sWsrc}, {sWsrc}, {WP}")
def w_dma(src_off, dst_off, n0=0, n1=4):
    I(f"s_add_u32 m0, {sWdst}, {WL + dst_off}")
    I(f"s_add_u32 {sT[0]}, {sWsrc}, {src_off}")
    return [I(f"buffer_load_dwordx4 {vL16}, {rWS}, {sT[0]} offen offset:{1024*n} sc1 lds") for n in range(n0, n1)]
def wd_burst(n):
    for _ in range(n):
        if not wd_dma():
            wd_read(); wd_dma()
flag_setup(); m_addr()
vpf = V.alloc()
if LOC:
    flag_load(vpf, G['vFp'], F1); flag_load(vpf, G['vFp'], FY); m_loads()
zero_pads(); A_mod(); A_mod2()
conv(); wd_setup(); w_addr(); x1_addr(); st_addr(); A_f3(); A_g1()
def afterk():
    L_xr(); L_mod()
G['afterk'] = afterk
C_tag(); C_kv(); stamp("kv st")
if opt('cpf', 1): cpa.free(); cpd.free()
L_taps()
C_st(); stamp("st")
C_mod(); stamp("mod1")
P.wait(G['tks']); post_local(G['vFo'], F1)
def midmod():
    stamp("mod2")
    tc = [0]
    def thk():
        tc[0] += 1
        if tc[0] == opt('f1i', 1): G['tpf'] = flag_load(vpf, G['vFp'], F1)
        if tc[0] == opt('f1c', 5):
            check_local(vpf, G['vFp'], G['vFo'], F1, G['tpf']); L_u(); G['tm'] = m_loads()
    C_taps(thk); stamp("taps")
G['midmod'] = midmod
C_mod2()
L_w(); PT.free()
C_u(); stamp("U ok")
P.wait_all(vm=False); I("s_barrier")
stamp("bar")
cside = []
H2, WDC = opt('h2', 4), opt('wdc', 8)
def hook(c):
    if c >= opt('hx', 40) and c < opt('hx', 40) + 16 and c % 2 == 0: L_x1((c - opt('hx', 40))//2)
    if c == opt('hx', 40) + 18: L_d()
    if c == H2: C_m(); cside.extend(m_ops() + [C_w_reads, None, None, None] + wu_ops() + w_ops() + c_ops() + x_ops())
    if c == opt('hst', 100): L_st()
    if c == opt('hf3', 130): assert len(G['tws']) == 4; P.wait(G['tws']); post_flag(G['vF3'], F3); G['vF3'].free()
    W = G['wd']
    if c == opt('wdban', 60): W['ban'] = {6, 7, 8, 9}; W['free'] = [x for x in W['free'] if x < 6]
    if c >= opt('wd0', 16) and c % (WDC//2) == 0 and W['nd'] < opt('wdmax', 8): wd_dma1()
    if c > opt('wdr0', 70) and c % WDC == 2 and W['nr'] < opt('wdrmax', 4): wd_read()
    if c == 107: assert all(W['slot'][n] < 6 for n in range(W['nr'], W['nd'])), "RED slots still in use"
    if opt('cfine') and c in (35, 71, 107): stamp(f'c{c}')
    k = 0
    while cside and k < (1 if (c < 108 and c % 2 == 1) else 2):
        f = cside.pop(0); k += 1
        if f: f()
conv_run(hook)
stamp("conv")
print('cside left', len(cside), file=sys.stderr)
for f in cside:
    if f: f()
P.wait_all(vm=False); I("s_barrier")
C_y(); stamp("y st")
print('wd after conv', G['wd']['nd'], G['wd']['nr'], file=sys.stderr)
vP3 = G['vP3']; vPA = G['vPA']; vp3 = V.alloc()
if opt('wda', 4):
    while wd_read(): pass
    for _ in range(opt('wda', 4)): wd_dma()
C_pre1()
P.wait(G['tys']); post_local(G['vFo'], FY); stamp("FY post")
C_pre2(0)
tpf = flag_load(vpf, G['vFp'], FY)
tp3 = flag_load(vp3, vP3, F3)
C_pre2(1)
check_local(vpf, G['vFp'], G['vFo'], FY, tpf); G['vFp'].free(); G['vFo'].free(); vTagL.free(); vpf.free()
L_y(); stamp("FY ok")
wch = {}
def w_group(): i = len(wch); wch[i] = w_dma(16384*i, 16384*i)
F3E = opt('f3e', 1)
def f3chk():
    check_tags([vp3], lambda: flag_load(vp3, vP3, F3), tp3)
if F3E:
    f3chk()
    for _ in range(opt('w1', 2)): w_group()
C_c12b()
C_x1(); stamp("x1 st")
if not F3E: f3chk()
for _ in range(opt('w15', 2)): w_group()
while wd_read(): pass
P.wait(G['tx1']); post_flag(G['vF8'], F4); G['vF8'].free()
stamp("F4 post")
P.wait_all(vm=False); I("s_barrier")
C_s2()
while len(wch) < 5: w_group()
I("s_barrier")
NPRE = opt('npre', 8); NP4 = opt('np4', 7)
vp4 = V.alloc()
while len(wch) < NPRE:
    if len(wch) == NP4: tp4 = flag_load(vp4, vPA, F4)
    w_group()
if NP4 >= NPRE: tp4 = flag_load(vp4, vPA, F4)
stamp("W pre")
for r in (rK, rV, rSH): r.free()
sXsrc = S.alloc(); sXdst = S.alloc(); sSB = S.alloc(); sHS = S.alloc(); sSG = S.alloc()
I(f"s_lshl_b32 {sSB}, {sRB}, 2")
I(f"s_add_u32 {sSB}, {sSB}, {sWv}")
I(f"s_lshl_b32 {sXsrc}, {sSB}, 15")
I(f"s_add_u32 {sXsrc}, {sXsrc}, {X1T}")
I(f"s_mul_i32 {sXdst}, {sWv}, {XSW}")
I(f"s_add_u32 {sXdst}, {sXdst}, {XS}")
I(f"s_mul_i32 {sHS}, {sSB}, 112")
I(f"s_mul_i32 {sT[0]}, {sC1}, 7")
I(f"s_add_u32 {sHS}, {sHS}, {sT[0]}")
I(f"s_lshl_b32 {sHS}, {sHS}, 10")
I(f"s_add_u32 {sHS}, {sHS}, {HH}")
I(f"s_lshl_b32 {sSG}, {sSB}, 12")
I(f"s_add_u32 {sSG}, {sSG}, {S2}")
ACC = [V.alloc(16) for _ in range(NA+1)]
vAd = V.alloc(); vAd2 = V.alloc(); vEx = V.alloc(); vL16b = V.alloc(); vF5 = V.alloc()
I(f"v_bfe_u32 {t0}, {vL}, 2, 3")
I(f"v_lshlrev_b32 {vAd}, 7, {t0}")
I(f"v_bfe_u32 {t0}, {vL}, 4, 1")
I(f"v_xor_b32 {t0}, {t0}, {vHH}")
I(f"v_lshl_add_u32 {vAd}, {t0}, 6, {vAd}")
I(f"v_and_b32 {t0}, 3, {vL}")
I(f"v_lshl_add_u32 {vAd}, {t0}, 4, {vAd}")
I(f"v_add_u32 {vAd2}, 65536, {vAd}")
I(f"v_lshlrev_b32 {vEx}, 4, {vQ}")
I(f"v_add_u32 {vEx}, {EX}, {vEx}")
I(f"v_add_u32 {vL16b}, 4096, {vL16}")
I(f"s_lshl_b32 {sT[0]}, {sSB}, 4")
I(f"s_add_u32 {sT[0]}, {sT[0]}, {sC1}")
I(f"s_lshl_b32 {sT[0]}, {sT[0]}, {FSH}")
lane0(vF5, sT[0], t1)
if G['wd']['nr'] < 28: wd_rebase(sXdst, 3)
for _ in range(opt('wdb', 0)): wd_dma()
check_tags([vp4], lambda: flag_load(vp4, vPA, F4), tp4)
vPA.free(); vp4.free()
published = set(g for g in wch if wch[g][-1][1] < P.vm_done)
stamp("F4 ok")

Bf = Frags(32)
btok = {}
def b_next():
    ks = len(btok)
    if ks >= 32: return False
    if ks and ks % 4 == 0: I(f"s_add_u32 {sXsrc}, {sXsrc}, 4096")
    btok[ks] = I(f"buffer_load_dwordx4 {Bf.g[ks]}, {vL16}, {rWS}, {sXsrc} offen offset:{1024*(ks&3)} sc1")
    return True
for _ in range(opt('b0', 12)): b_next()
I("s_barrier")
AR = A.reserve(224, 32)
SGX = Frags(4); BX = SGX.g[0]; hp = SGX.g[1]; vRS2 = V.alloc()
TMP = ACC[NA]
jobs = [(it, ks, ks*NA+it) for ks in range(32) for it in range(NA)]
jobs += [(it, 'x', None) for it in range(NA)]
for it in range(NA, 7):
    jobs += [(it, 'x', None)] + [(it, ks, it*32 + ks) for ks in range(32)]
NJ = len(jobs); TT = {it: 33*it for it in range(NA, 8)}; T4, T5, T6 = 132, 165, 198; XA = 32*NA
first_job = {}; last_job = {}
for n, (it, ks, fr) in enumerate(jobs):
    if fr is not None:
        first_job.setdefault(fr//16, n); last_job[fr//16] = n
accmap = {it: it % (NA+1) for it in range(7)}
def job_read(n):
    it, ks, fr = jobs[n]
    dst = AR[4*(n%8):4*(n%8)+4]
    if ks == 'x': return I(f"ds_read_b128 {dst}, {vEx} offset:{512*it}")
    assert fr//16 in published, (n, fr)
    off = ((fr//16) % NG)*16384 + (fr % 16)*1024
    if off < 65536: return I(f"ds_read_b128 {dst}, {vAd} offset:{off}")
    return I(f"ds_read_b128 {dst}, {vAd2} offset:{off-65536}")
LOOK = 6
atok = {}
for n in range(LOOK): atok[n] = job_read(n)
stamp("g1 start")

class VM:
    def __init__(self, f): self.f = f
    def __call__(self): return self.f()
side = []
def c12_ops():
    ops = []; tk = []
    CL = TMP
    def l(g):
        if g == 0:
            I(f"s_mul_i32 {sT[2]}, {sC1}, {8*1792}")
            I(f"s_add_u32 {sT[2]}, {sT[2]}, {C12}")
        if g == 2: I(f"s_add_u32 {sT[2]}, {sT[2]}, 7168")
        tk.append(I(f"buffer_load_dwordx4 {CL[4*g:4*g+4]}, {vT16}, {rWS}, {sT[2]} offen offset:{(g&1)*3584} sc1"))
    for g in range(4): ops.append(lambda g=g: l(g))
    ops2 = [lambda: P.wait(tk)]
    for st in (4, 2, 1):
        for g in range(st):
            for h in range(2):
                ops2.append(lambda g=g, st=st, h=h: I(f"v_add_f32 {CL[2*g+h]}, {CL[2*g+h]}, {CL[2*(g+st)+h]}"))
    seq = [f"v_cvt_pk_bf16_f32 {CL[5]}, {CL[0]}, {CL[1]}",
           f"v_lshlrev_b32 {CL[2]}, 16, {CL[5]}",
           f"v_and_b32 {CL[3]}, {sHI}, {CL[5]}",
           f"v_sub_f32 {CL[0]}, {CL[0]}, {CL[2]}",
           f"v_sub_f32 {CL[1]}, {CL[1]}, {CL[3]}",
           f"v_cvt_pk_bf16_f32 {CL[4]}, {CL[2]}, {CL[0]}",
           f"v_cvt_pk_bf16_f32 {CL[6]}, {CL[1]}, {CL[3]}",
           f"v_mov_b32 {CL[7]}, 0",
           f"v_add_u32 {t2}, {EX}, {vT16}"]
    for s_ in seq: ops2.append(lambda s_=s_: I(s_))
    ops2.append(lambda: G.__setitem__('tex', I(f"ds_write_b128 {t2}, {CL[4:8]}")))
    return ops, ops2
def sg_loads(j0=0, j1=4):
    return [I(f"buffer_load_dwordx4 {SGX.g[j]}, {vL16}, {rWS}, {sSG} offen offset:{1024*j} sc1") for j in range(j0, j1)]
def stats2_ops(tk):
    ops = [lambda: check_tags([SGX[2*i+1] for i in range(8)], sg_loads, tk)] + [None]*6
    for j in range(2):
        for i in (0, 2): ops.append(lambda i=i, j=j: I(f"v_add_f32 {SGX[4*j+i]}, {SGX[4*j+i]}, {SGX[8+4*j+i]}"))
    Z = SGX.g[2]; a, b, c, d = Z[0], Z[1], Z[2], Z[3]; e = SGX.g[3][0]
    seq = [f"v_add_f32 {a}, {SGX[0]}, {SGX[4]}", f"v_add_f32 {c}, {SGX[2]}, {SGX[6]}",
           f"v_mov_b32 {b}, {a}", f"v_mov_b32 {d}, {c}", None,
           f"v_permlane32_swap_b32 {a}, {b}", f"v_permlane32_swap_b32 {c}, {d}",
           f"v_add_f32 {a}, {a}, {b}", f"v_add_f32 {c}, {c}, {d}",
           f"v_mul_f32 {b}, 0xbb000000, {a}", f"v_mul_f32 {c}, 0x3b000000, {c}",
           f"v_fma_f32 {d}, -{b}, {b}, {c}", f"v_max_f32 {d}, 0, {d}", f"v_add_f32 {d}, 0x3727c5ac, {d}",
           f"v_sqrt_f32 {c}, {d}", f"v_rcp_f32 {vRS2}, {d}",
           f"v_cmp_eq_u32 vcc, 0, {vHH}",
           f"v_mov_b32 {BX[3]}, 0",
           f"v_cndmask_b32 {b}, 0, {b}, vcc", f"v_cndmask_b32 {c}, 0, {c}, vcc",
           f"v_cvt_pk_bf16_f32 {BX[0]}, {b}, {b}",
           f"v_cvt_pk_bf16_f32 {e}, {c}, {c}",
           f"v_and_b32 {a}, {sHI}, {BX[0]}", f"v_and_b32 {e}, {sHI}, {e}",
           f"v_sub_f32 {b}, {b}, {a}", f"v_sub_f32 {c}, {c}, {e}",
           f"v_cvt_pk_bf16_f32 {BX[1]}, {b}, {e}",
           f"v_cvt_pk_bf16_f32 {BX[2]}, {e}, {c}"]
    for s_ in seq: ops.append((lambda s_=s_: I(s_)) if s_ else None)
    return ops
hst = {}
def epilogue(it):
    ac = ACC[accmap[it]]; ops = []
    for r in range(8): ops.append(lambda r=r: I(f"v_mul_f32 {ac[r]}, {ac[r]}, {ac[8+r]}"))
    for r in range(8): ops.append(lambda r=r: I(f"v_mul_f32 {ac[r]}, {ac[r]}, {vRS2}"))
    for n in range(4): ops.append(lambda n=n: I(f"v_cvt_pk_bf16_f32 {hp[n]}, {ac[2*n]}, {ac[2*n+1]}"))
    def st():
        hst[it] = I(f"buffer_store_dwordx4 {hp}, {vL16 if it < 4 else vL16b}, {rWS}, {sHS} offen offset:{1024*(it&3)} sc1")
    ops.append(VM(st)); ops.append(None)
    return ops
def lvl_flag(level, tiles):
    def f():
        P.wait([hst[t] for t in tiles])
        post_flag(vF5, F5 + level*0x10000)
    return f
def epoch_store():
    I(f"s_or_b32 {sT[0]}, s2, {sWv}")
    I(f"s_cselect_b32 {sT[0]}, {OOB}, {EPOCH}")
    lane0(t0, sT[0], t1)
    I(f"buffer_store_dword {vTag}, {t0}, {rWS}, 0 offen sc1")
sSQ = S.alloc(); sDQ = S.alloc(); sH0 = S.alloc(); sH1 = S.alloc()
order = [(c, it) for c in range(4) for it in range(4)] + [(c, it) for c in range(4) for it in (4, 5)] + [(c, 6) for c in range(4)]
ht = {}; hreg = {}; hfree = []
def h_load(i, st):
    c, it = order[i]; n = c*7 + it
    hreg[i, st] = r = hfree.pop(0)
    I(f"s_add_u32 {sT[0]}, {sH1 if st else sH0}, {1024*n}")
    ht[i, st] = I(f"buffer_load_dwordx4 {r}, {vL16}, {rWS}, {sT[0]} offen sc1")
def g2_setup_ops():
    seq = [f"s_lshr_b32 {sT[3]}, {sWv}, 1", f"s_lshl_b32 {sSQ}, {sR64}, 1", f"s_add_u32 {sSQ}, {sSQ}, {sT[3]}",
           f"s_mul_i32 {sT[4]}, {sWv}, 28", f"s_mul_i32 {sH0}, {sSQ}, 112", f"s_add_u32 {sH0}, {sH0}, {sT[4]}",
           f"s_lshl_b32 {sH0}, {sH0}, 10", f"s_add_u32 {sH0}, {sH0}, {HH}",
           f"s_xor_b32 {sT[3]}, {sSQ}, 1", f"s_mul_i32 {sH1}, {sT[3]}, 112", f"s_add_u32 {sH1}, {sH1}, {sT[4]}",
           f"s_lshl_b32 {sH1}, {sH1}, 10", f"s_add_u32 {sH1}, {sH1}, {HH}",
           f"s_and_b32 {sT[3]}, {sWv}, 1", f"s_lshl_b32 {sT[3]}, {sT[3]}, 5", f"s_lshl_b32 {sDQ}, {sDB}, 6", f"s_add_u32 {sDQ}, {sDQ}, {sT[3]}",
           f"v_and_b32 {t1}, 1, {vL}", f"v_lshlrev_b32 {t1}, 4, {t1}", f"v_bfe_u32 {t2}, {vL}, 1, 2", f"v_add_u32 {t1}, {t1}, {t2}",
           f"s_lshl_b32 {sT[3]}, {sR64}, 5", f"s_lshl_b32 {sT[4]}, {sWv}, 2", f"s_add_u32 {sT[3]}, {sT[3]}, {sT[4]}",
           f"v_add_lshl_u32 {vP5}, {t1}, {sT[3]}, {FSH}"]
    return [(lambda x=x: I(x)) for x in seq]
def res_loads():
    I(f"s_lshl_b32 {sT[0]}, {sSQ}, 15")
    I(f"s_lshl_b32 {sT[1]}, {sDQ}, 6")
    I(f"s_add_u32 {sT[0]}, {sT[0]}, {sT[1]}")
    I(f"s_add_u32 {sT[0]}, {sT[0]}, {X1T}")
    I(f"v_lshl_add_u32 {t0}, {vHH}, 9, {vL16}")
    G['txq'] = [I(f"buffer_load_dwordx4 {XQ[4*n:4*n+4]}, {t0}, {rWS}, {sT[0]} offen offset:{512*n} sc1") for n in range(2)]
def gb_addr():
    I(f"s_lshl_b32 {sT[0]}, {sDQ}, 3")
    I(f"s_add_u32 {sT[0]}, {sT[0]}, {MODG + 5*16384}")
    I(f"v_lshl_add_u32 {vGb}, {vQ}, 3, {sT[0]}")
    I(f"v_lshl_add_u32 {vGb}, {vHH}, 13, {vGb}")
def gb_ld():
    return [I(f"buffer_load_dwordx2 {gb2[2*n:2*n+2]}, {vGb}, {rWS}, {sC4096 if n else 0} offen sc1") for n in range(2)]
def gb_loads():
    gb_addr(); G['tgb'] = gb_ld()
def gb_fin():
    check_tags([gb2[1], gb2[3]], gb_ld, [G['tgb'], G['txq']])
    I(f"v_add_f32 {gb2[0]}, {gb2[0]}, {gb2[2]}")
    I(f"v_lshlrev_b32 {t0}, 2, {vQ}")
    I(f"v_mov_b32 {gb2[1]}, {gb2[0]}")
    I(f"v_add_u32 {t0}, {sXdst}, {t0}")
def gb_fin2():
    I(f"v_permlane32_swap_b32 {gb2[0]}, {gb2[1]}")
    I(f"v_add_f32 {gb2[0]}, {gb2[0]}, {gb2[1]}")
    round_bf16(gb2[0], gb2[0])
    I(f"ds_write_b32 {t0}, {gb2[0]} offset:2048")
c12a, c12b = c12_ops()
sgt = []
wq = []
VSP, BL, WD0, WDL = opt('vsp', 2), opt('bl', 36), opt('wdg', 4), opt('wdl', 20)
vq = []; lastv = -99; lastd = -99
WP_, WDP_, HP0 = opt('wp', 6), opt('wdp', 4), opt('hp0', T6+12)
N6, NC1, NS1, NC2, NS2 = opt('n6', 6), opt('nc1', XA-64), opt('ns1', XA-54), opt('nc2', XA-34), opt('ns2', XA-22)
nextg = NPRE; lastw = -99
for n, (it, ks, fr) in enumerate(jobs):
    need = [g for g in first_job if g not in published and first_job[g] - LOOK <= n + 1]
    freeable = nextg < 14 and (nextg - NG < 0 or last_job[nextg-NG] < n) and n % opt('fb', 32) == 24
    exw = (n == XA - 8)
    if need or freeable or exw:
        ready = [g for g in wch if g not in published and len(wch[g]) == 4 and (g in need or wch[g][-1][1] < P.vm_done)]
        for g in need: assert g in ready, (n, g)
        P.wait([wch[g] for g in ready], atok[n], G.get('tex') if exw else None)
        I("s_barrier"); published |= set(ready)
        while nextg < 14 and (nextg - NG < 0 or last_job[nextg-NG] < n):
            wch[nextg] = []
            for q in range(4): wq.append((first_job[nextg] - opt('wlead', 80), first_job[nextg], lambda g=nextg, q=q: wch[g].extend(w_dma(16384*g, 16384*(g % NG), q, q+1))))
            nextg += 1
    if n in ((32, 64, 96, 128, T5, T6) if not opt('fine') else tuple(range(8, 231, 8))): stamp(f"n{n}")
    if 'win' in OPT and opt('win') <= n < opt('win') + 56*opt('wst', 1) and (n - opt('win')) % opt('wst', 1) == 0: stamp(f'w_{n}'); I(f'; job {n}')
    if n % 2 == 0: P.wait(atok[n], atok.get(n+1), btok.get(ks))
    else: P.wait(atok[n], btok.get(ks))
    ac = ACC[accmap[it]]
    bsrc = BX if ks == 'x' else Bf[4*ks:4*ks+4]
    first = (ks == 0 and it < NA) or (ks == 'x' and it >= NA)
    I(f"v_mfma_f32_32x32x16_bf16 {ac}, {AR[4*(n%8):4*(n%8)+4]}, {bsrc}, {0 if first else ac}")
    if it == 6 and ks != 'x': hfree.append(Bf.g[ks])
    if n + LOOK < NJ: atok[n+LOOK] = job_read(n+LOOK)
    budget = 4
    G['now'] = n
    Wd = G['wd']; vm0 = P.vm
    if n - lastv >= VSP and not any(isinstance(x, VM) for x in side[:3]):
        bdue = len(btok) < 32 and len(btok)*NA - n < BL
        if vq: vq.pop(0)(); budget = 2
        elif bdue: b_next(); budget = 2
        elif wq and wq[0][1] - n < 44: wq.pop(0)[2](); budget = 1
        elif G.get('l0') and len(hfree) > 1 and len(ht) < 32:
            i = len(ht); h_load(i//2, i % 2); budget = 2
        elif n >= WD0 and n - lastd >= WDP_ and wd_dma1(): lastd = n; budget = 0
        elif wq and n >= wq[0][0]: wq.pop(0)[2](); budget = 1
    if P.vm == vm0 and Wd['nr'] < Wd['nd'] and n - Wd['ti'].get(Wd['nr'], -99) >= WDL: wd_read(); budget = 0
    if n == N6: vq += [epoch_store]
    if n == NC1 - 24: vq += [lambda: G.__setitem__('tp6', flag_load(vp3, vP3, F4))]
    if n == NC1: side += [lambda: (check_tags([vp3], lambda: flag_load(vp3, vP3, F4), G['tp6']), vp3.free(), vP3.free(), vq.extend(c12a))]
    if n == NS1:
        for j in range(4): vq += [lambda j=j: sgt.extend(sg_loads(j, j+1))]
    if n == NC2: side += c12b
    if n == NS2: side += stats2_ops(sgt)
    if n == XA - 1: assert not side, len(side)
    if n == TT[NA] + 1:
        SGX.g[2].free(); SGX.g[3].free()
        vP5 = V.alloc(); vp5 = V.alloc()
        gb2 = V.alloc(4); XQ = V.alloc(8); vGb = V.alloc()
        for e in range(NA): side += epilogue(e)
        side += g2_setup_ops()
    for e in range(NA, 6):
        if n == TT[e+1] + 3: side = epilogue(e) + side
    if n == opt('gbl', 150): vq += [gb_loads]
    if n == opt('l0p', 172): vq += [lvl_flag(0, (0, 1, 2, 3))]
    if opt('l1p', 0) and n == T6 + opt('l1p', 0): side += [lvl_flag(1, (4, 5))]
    if n == HP0 - opt('l0w', 18): vq += [lambda: G.__setitem__('tp5', flag_load(vp5, vP5, F5))]
    if n == HP0: side += [lambda: (check_tags([vp5], lambda: flag_load(vp5, vP5, F5), G['tp5']), G.__setitem__('l0', True), vq.append(res_loads))]
    k = 0
    while side and k < budget:
        if isinstance(side[0], VM) and (P.vm != vm0 or n - lastv < VSP): break
        f = side.pop(0); k += 1
        if f: f()
    if P.vm != vm0: lastv = n
    for e in range(NA+1, 7):
        if n == TT[e] - 1: assert e - NA - 1 in hst
for f in side:
    if f: f()
for f in vq: f()
if G['wd'].get('half'): wd_dma1()
assert not wq
print('wd progress', G['wd']['nd'], G['wd']['nr'], 'hh early', len(ht), file=sys.stderr)
def h_next():
    i = len(ht)
    if i < G['hlim'] and hfree: h_load(i//2, i % 2); return True
    return False
G['hlim'] = 32
h_next(); h_next()
for f in epilogue(6):
    if f: f()
stamp("g1 done")
for r in ACC + [BX, vRS2, vAd, vAd2, vEx]: r.free()
while G['wd']['nr'] < 28:
    wd_read(); wd_dma(); h_next()
I("s_barrier")

GA = [V.alloc(16) for _ in range(4)]
HD = opt('hd', 20)
while len(ht) < opt('hd0', 10): h_next()
P.wait(G['wd']['last'])
P1, P1C, P2, P2C = opt('p1', 5), opt('p1c', 11), opt('p2', 13), opt('p2c', 19)
mj = [(i, q) for i in range(24) for q in range(4)] + [(i, q) for q in (1, 2, 3, 0) for i in range(24, 28)]
red = []
for m, (i, q) in enumerate(mj):
    c, it = order[i]; n = c*7 + it; dt, st = q & 1, q >> 1
    if (i, st) not in ht:
        raise RuntimeError(f"hh {i} not issued")
    if opt('gfine') and m % 8 == 0: stamp(f'm{m}')
    P.wait(ht[i, st])
    I(f"v_mfma_f32_32x32x16_bf16 {GA[q]}, {AWD[8*n+4*dt:8*n+4*dt+4]}, {hreg[i, st]}, {0 if i==0 else GA[q]}")
    if i < 24 and dt == 1: hfree.append(hreg[i, st])
    if len(ht) < 2*i + HD + 2 and (m % 2 == 1 or len(ht) < 2*i + opt('hmin', 10)): h_next()
    if q == 0 and i < 24:
        if i == P1: G['tp'] = flag_load(vp5, vP5, F5 + 0x10000)
        if i == P1C:
            check_tags([vp5], lambda: flag_load(vp5, vP5, F5 + 0x10000), G['tp']); G['hlim'] = 48; opt('gfine') or stamp("L1 ok")
        if i == P2: G['tp'] = flag_load(vp5, vP5, F5 + 0x20000)
        if i == P2C:
            check_tags([vp5], lambda: flag_load(vp5, vP5, F5 + 0x20000), G['tp']); G['hlim'] = 56; opt('gfine') or stamp("L2 ok")
        if i == 0 and not opt('l1p', 0): lvl_flag(1, (4, 5))()
        if i == opt('l2p', 6): lvl_flag(2, (6,))()
        if i == 2: gb_fin()
        if i == 3: gb_fin2()
        if i == 20:
            G['GB'] = GB = [hfree.pop() for _ in range(4)]
            I(f"v_lshlrev_b32 {t1}, 6, {vHH}")
            I(f"v_add_u32 {t1}, {sXdst}, {t1}")
            for n_ in range(4): I(f"ds_read_b128 {GB[n_]}, {t1} offset:{2048+16*n_}")
        if i == 21:
            G['XF'] = XF = [hfree.pop() for _ in range(4)]
            for rho in range(8):
                red.append(lambda rho=rho: (unpack(XF[rho//2][2*(rho%2)], XQ[rho], 0), unpack(XF[rho//2][2*(rho%2)+1], XQ[rho], 1)))
        if i == 23:
            G['RA'] = RA = hfree.pop()
            for qq in range(1, 4):
                red.append(lambda qq=qq: (I(f"s_xor_b32 {sT[0]}, {sWv}, {qq}"), I(f"s_mul_i32 {sT[0]}, {sT[0]}, 12288"), I(f"v_add_u32 {RA[qq]}, {sT[0]}, {vL16}")))
            red.append(lambda: (I(f"s_mul_i32 {sT[0]}, {sWv}, 12288"), I(f"v_add_u32 {RA[0]}, {sT[0]}, {vL16}")))
            red.append(lambda: (I(f"s_lshl_b32 {sT[2]}, {sSQ}, 15"), I(f"s_lshl_b32 {sT[1]}, {sDQ}, 1"), I(f"s_add_u32 {sT[2]}, {sT[2]}, {sT[1]}"), I(f"s_add_u32 {sT[3]}, {sT[2]}, 16384")))
            red.append(lambda: (I(f"v_lshrrev_b32 {t1}, 2, {vL}"), I(f"v_lshlrev_b32 {t1}, 10, {t1}"), I(f"v_and_b32 {t2}, 3, {vL}"), I(f"v_lshl_add_u32 {t1}, {t2}, 4, {t1}")))
            red.append(lambda: (I(f"v_lshlrev_b32 {t2}, 6, {vQ}"), I(f"v_lshl_add_u32 {t2}, {vHH}, 5, {t2}"), I(f"v_add_u32 {t2}, {sXdst}, {t2}"), I(f"v_add_u32 {t0}, {sXdst}, {vL16}")))
    if m >= 101 and (m - 101) // 4 < 2:
        qq = (m - 101)//4 + 1; r = (m - 101) % 4
        I(f"ds_write_b128 {G['RA'][qq]}, {GA[qq][4*r:4*r+4]} offset:{(qq-1)*4096 + r*1024}")
    elif m >= 109:
        r = m - 109
        I(f"ds_write_b128 {G['RA'][3]}, {GA[3][4*r:4*r+4]} offset:{2*4096 + r*1024}")
    elif red: red.pop(0)()
assert not red
I(f"ds_write_b128 {G['RA'][3]}, {GA[3][12:16]} offset:{2*4096 + 3*1024}")
stamp("g2 mfma")
GB, XF, RA = G['GB'], G['XF'], G['RA']
P.wait_all(vm=False)
I("s_barrier")
tl = {}
for r in range(4):
    tl[r] = [I(f"ds_read_b128 {GA[q][4*r:4*r+4]}, {RA[0]} offset:{(q-1)*4096 + r*1024}") for q in range(1, 4)]
OST = OPT.get('ost', '')
for r in range(4):
    P.wait(tl[r])
    for h in (0, 2): I(f"v_pk_add_f32 {GA[1][4*r+h:4*r+h+2]}, {GA[1][4*r+h:4*r+h+2]}, {GA[2][4*r+h:4*r+h+2]}")
    for h in (0, 2): I(f"v_pk_add_f32 {GA[0][4*r+h:4*r+h+2]}, {GA[0][4*r+h:4*r+h+2]}, {GA[3][4*r+h:4*r+h+2]}")
    for h in (0, 2): I(f"v_pk_add_f32 {GA[0][4*r+h:4*r+h+2]}, {GA[0][4*r+h:4*r+h+2]}, {GA[1][4*r+h:4*r+h+2]}")
    for h in (0, 2): I(f"v_pk_fma_f32 {XF[r][h:h+2]}, {GA[0][4*r+h:4*r+h+2]}, {GB[r][h:h+2]}, {XF[r][h:h+2]}")
    for h in (0, 2): I(f"v_cvt_pk_bf16_f32 {XQ[2*r+h//2]}, {XF[r][h]}, {XF[r][h+1]}")
    if r % 2: I(f"ds_write_b128 {t2}, {XQ[2*r-2:2*r+2]} offset:{4096 + 8*(r-1)}")
tl = [I(f"ds_read_b128 {GB[h]}, {t0} offset:{4096+1024*h}") for h in range(2)]
for h in range(2):
    P.wait(tl[h])
    I(f"buffer_store_dwordx4 {GB[h]}, {t1}, {rOUT}, {sT[2+h]} offen {OST}")
stamp("end")
if TSTAMP:
    P.wait_all()
    stamp("drained")
    n = nts[0]
    I("s_waitcnt lgkmcnt(0)")
    I(f"v_writelane_b32 {vTs}, {sTp[n&1][0]}, {n-2}")
    I(f"v_writelane_b32 {vTs}, {sTp[(n+1)&1][0]}, {n-1}")
    I(f"v_subrev_u32 {vTs}, {sT0[0]}, {vTs}")
    I(f"s_memrealtime {sTp[0]}")
    I("s_waitcnt lgkmcnt(0)")
    I(f"v_writelane_b32 {vTs}, {sR0[0]}, 62")
    I(f"v_writelane_b32 {vTs}, {sTp[0][0]}, 63")
    I(f"v_writelane_b32 {vTs}, {sSpin}, 61")
    I(f"s_lshl_b32 {sT[0]}, s2, 10")
    I(f"s_add_u32 {sT[0]}, {sT[0]}, {TS}")
    I(f"v_lshlrev_b32 {t0}, 2, v0")
    I(f"buffer_store_dword {vTs}, {t0}, {rWS}, {sT[0]} offen")
    print(f"\nNTS={n}", file=sys.stderr)
if PROBE:
    I("s_waitcnt lgkmcnt(0)")
    I(f"s_sub_u32 {sT[0]}, {sTp[0][0]}, {sT0[0]}")
    I(f"s_min_u32 {sT[0]}, {sT[0]}, 100000")
    I(f"s_memrealtime {sT0}")
    I("L_spin:")
    I(f"s_memrealtime {sTp[0]}")
    I("s_waitcnt lgkmcnt(0)")
    I(f"s_sub_u32 {sT[1]}, {sTp[0][0]}, {sT0[0]}")
    I(f"s_cmp_lt_u32 {sT[1]}, {sT[0]}")
    I("s_cbranch_scc1 L_spin")
I("L_end:")
I("s_endpgm")
P.ins.extend(slow)
if opt('cpf', 1):
    I(".fill 1536, 4, 0xbf800000")

body = P.finalize()
ref = open(f"cdna_kernels/{NAME}.s.ref").read()
hdr = "".join(l + "\n" for l in ref.split("\n") if l.startswith(";") and "@launch" not in l)
out = hdr + f"; @launch grid=(256,1,1) block=(256,1,1) lds={LDS_SIZE}\n"
out += f"""; NTS={nts[0] if TSTAMP else 0} LAYOUT=10 WSOFF={WSOFF}
.amdgcn_target "amdgcn-amd-amdhsa--gfx950"
.text
.globl {NAME}_kernel
.p2align 8
.type {NAME}_kernel,@function
{NAME}_kernel:
{body}
.section .rodata,"a"
.p2align 6
.amdhsa_kernel {NAME}_kernel
  .amdhsa_next_free_vgpr 512
  .amdhsa_next_free_sgpr 102
  .amdhsa_accum_offset 256
  .amdhsa_group_segment_fixed_size 0
  .amdhsa_kernarg_size 120
  .amdhsa_user_sgpr_count 2
  .amdhsa_user_sgpr_kernarg_segment_ptr 1
  .amdhsa_system_sgpr_workgroup_id_x 1
.end_amdhsa_kernel
"""
dst = [a for a in sys.argv[1:] if not a.startswith('--')][0]
open(dst, "w").write(out)
print(f"instrs {len(P.ins)} nops {P.nops} vgpr hi {V.hi} sgpr hi {S.hi}", file=sys.stderr)
```

```python
import sys
from dsl import *

NAME = "adaLN_cond__ssm_conv_h3__glu_gated_bilinear__prompt"
OPT = {}
for a_ in sys.argv[1:]:
    if a_.startswith('--'):
        k, _, v = a_[2:].partition('='); OPT[k] = v if v else '1'
def opt(k, d=0): return type(d)(OPT.get(k, d))
TSTAMP = opt('ts')
PROBE = tuple(int(x) for x in OPT['probe'].split(',')) if 'probe' in OPT else None
TSOP = 's_memrealtime' if opt('rt') else 's_memtime'
NT = "nt" if opt('nt') else ""

EPOCH=0; F3=0x10000; F4=0x40000; F5=0x60000; F1=0x800000; FY=0x820000; S2=0x840000
MODG=0x90000; STG=0xA8000; C12=0xB0000; MODL2=0x880000
KVG=0x100000; XG=0x500000; X1T=0x900000; WP=0xB00000; WDP=0xF00000; HH=0x1100000; SG=0x1800000; TS=0x1900000
WS_SIZE=0x1A00000
OOB=0x80000000
FSH=opt('fsh', 4); F6=0x18000 if FSH <= 5 else 0xF0000
UB=0; UCH=4608; MODL=9216; CBL=10240; C12L=11264
TAPS=15360; TCOPY=4160; TCH=33280
RED=131072
WL=0; XS=131072; XSW=7168; EX=159744; NG=8
XTO=8192; C12O=10240; CBO=11264; S2O=11776
WDS0=81920; WDW0=20480; REDO=12288
LDS_SIZE=163840
NA = opt('na', 3)

P = Prog(); I = P.I; V = P.V; A = P.A; S = P.S
S.reserve(0, 3); V.reserve(0, 1)
def srd(): return S.alloc(4, 4)
rX, rK, rV, rSH, rTP, rW, rWD, rC, rWM, rOUT, rWS, rD = [srd() for _ in range(12)]
sPG = S.alloc(2, 2); sPU = S.alloc(2, 2)
sXJ = S.alloc(); sGI = S.alloc(); sWv = S.alloc(); sSpin = S.alloc()
sT = [S.alloc() for _ in range(6)]
sZ = [S.alloc() for _ in range(2)]
sC4096 = S.alloc()
sPL = S.alloc(); sPH = S.alloc(); sHI = S.alloc(); sONE = S.alloc()
sD0 = S.alloc()
sTp = [S.alloc(2, 2), S.alloc(2, 2)]; sT0 = S.alloc(2, 2)

class Frags:
    def __init__(self, n, pool=None): self.g = [(pool or V).alloc(4) for _ in range(n)]
    def __getitem__(self, i):
        if isinstance(i, slice):
            assert i.start//4 == (i.stop-1)//4
            return self.g[i.start//4][i.start%4:(i.stop-1)%4+1]
        return self.g[i//4][i%4]
    def free(self):
        for g in self.g: g.free()

nts = [0]
def stamp(name=""):
    if 'win' in OPT and not (name.startswith('w_') or name in ('end', 'drained')): return
    n = nts[0]; nts[0] += 1
    if PROBE:
        if n == PROBE[0]: I(f"s_memrealtime {sT0}")
        if n == PROBE[1]: I(f"s_memrealtime {sTp[0]}")
        return
    if not TSTAMP: return
    if n >= 2: I(f"v_writelane_b32 {vTs}, {sTp[n&1][0]}, {n-2}")
    I(f"{TSOP} {sTp[n&1]}")
    print(f"{n}:{name}", file=sys.stderr, end="  ")

slow = []
def check_tags(tags, reissue, toks):
    R = P.label("chk"); SL = P.label("slow"); D = P.label("ok")
    P.wait(toks)
    mn = V.alloc(); mx = V.alloc()
    I(f"{R}:")
    tg = list(tags)
    if len(tg) == 1:
        I(f"v_cmp_ne_u32 vcc, {tg[0]}, {vTag}")
    else:
        if len(tg) % 2: tg.append(tg[0])
        for i in range(0, len(tg), 2):
            I(f"v_min3_u32 {mn}, {vTag if i==0 else mn}, {tg[i]}, {tg[i+1]}")
            I(f"v_max3_u32 {mx}, {vTag if i==0 else mx}, {tg[i]}, {tg[i+1]}")
        I(f"v_cmp_ne_u32 vcc, {mn}, {mx}")
    I(f"s_cbranch_vccnz {SL}")
    I(f"{D}:")
    mn.free(); mx.free()
    save = (P.ins, P.vm, P.lg, P.vm_done, P.lg_done)
    P.ins = []
    I(f"{SL}:")
    I(f"s_add_u32 {sSpin}, {sSpin}, 1")
    I(f"s_cmp_gt_u32 {sSpin}, 200000")
    I(f"s_cbranch_scc1 {D}")
    reissue()
    I("s_waitcnt vmcnt(0)")
    I(f"s_branch {R}")
    slow.extend(P.ins)
    P.ins, P.vm, P.lg, P.vm_done, P.lg_done = save

def post_flag(vaddr, base):
    I(f"s_mov_b32 {sZ[0]}, {base}")
    return I(f"buffer_store_dword {vTag}, {vaddr}, {rWS}, {sZ[0]} offen sc1")
def flag_load(vp, vaddr, base):
    I(f"s_mov_b32 {sZ[0]}, {base}")
    return I(f"buffer_load_dword {vp}, {vaddr}, {rWS}, {sZ[0]} offen sc1")
def poll(vaddr, base):
    vp = V.alloc()
    t = flag_load(vp, vaddr, base)
    check_tags([vp], lambda: flag_load(vp, vaddr, base), t)
    vp.free()
sRel = S.alloc()
def post_local(vaddr, base):
    if not LOC: return post_flag(vaddr, base)
    I(f"s_mov_b32 {sZ[0]}, {base}")
    return I(f"buffer_store_dword {vTagL}, {vaddr}, {rWS}, {sZ[0]} offen")
def check_local(vp, vpoll, vown, base, tok):
    if not LOC: return check_tags([vp], lambda: flag_load(vp, vpoll, base), tok)
    SL = P.label("lslow"); D = P.label("lok"); RL = P.label("lrel"); AG = P.label("lagain"); NR = P.label("lnorel")
    P.wait(tok)
    I(f"v_cmp_ne_u32 vcc, {vp}, {vTagL}")
    I(f"s_cbranch_vccnz {SL}")
    I(f"{D}:")
    save = (P.ins, P.vm, P.lg, P.vm_done, P.lg_done)
    P.ins = []
    I(f"{SL}:")
    I(f"s_mov_b32 {sRel}, 0")
    I(f"{AG}:")
    I(f"s_add_u32 {sSpin}, {sSpin}, 1")
    I(f"s_cmp_gt_u32 {sSpin}, 200000")
    I(f"s_cbranch_scc1 {D}")
    flag_load(vp, vpoll, base)
    I("s_waitcnt vmcnt(0)")
    I(f"v_cmp_ne_u32 vcc, {vp}, {vTagL}")
    I(f"s_cbranch_vccz {D}")
    I(f"s_cmp_ge_u32 {sRel}, 0x10000")
    I(f"s_cbranch_scc1 {NR}")
    I(f"s_add_u32 {sRel}, {sRel}, 1")
    I(f"s_cmp_ge_u32 {sRel}, {opt('ltry', 40)}")
    I(f"s_cbranch_scc1 {RL}")
    I(f"v_cmp_eq_u32 vcc, {vp}, {vTag}")
    I(f"s_cbranch_vccz {AG}")
    I(f"{RL}:")
    I("buffer_wbl2 sc1")
    I("s_waitcnt vmcnt(0)")
    post_flag(vown, base)
    I(f"s_mov_b32 {sRel}, 0x10000")
    I(f"{NR}:")
    I(f"v_cmp_ne_u32 vcc, {vp}, {vTagL}")
    I(f"v_cmp_ne_u32 {sTp2}, {vp}, {vTag}")
    I(f"s_and_b64 {sTp2}, vcc, {sTp2}")
    I(f"s_cbranch_scc1 {AG}")
    I("s_waitcnt vmcnt(0)")
    I(f"s_branch {D}")
    slow.extend(P.ins)
    P.ins, P.vm, P.lg, P.vm_done, P.lg_done = save
def unpack(dst, src, hi):
    I(f"v_and_b32 {dst}, {sHI}, {src}" if hi else f"v_lshlrev_b32 {dst}, 16, {src}")
def round_bf16(dst, src):
    I(f"v_cvt_pk_bf16_f32 {dst}, {src}, {src}")
    I(f"v_and_b32 {dst}, {sHI}, {dst}")
def lane0(dst, sval, tmp):
    I(f"v_mov_b32 {dst}, {OOB}")
    I(f"v_writelane_b32 {dst}, {sval}, 0")

I("s_cmp_ge_u32 s2, 256")
I("s_cbranch_scc1 L_end")
if PROBE and PROBE[0] == -1: I(f"s_memrealtime {sT0}")
if TSTAMP:
    I(f"{TSOP} {sT0}")
    sR0 = S.alloc(2, 2); I(f"s_memrealtime {sR0}")
for r, off in ((rK,8),(rV,16),(rSH,24),(rWS,112),(rC,80),(rWM,88),(rX,0),(rTP,32),(rWD,72),(rOUT,96)):
    I(f"s_load_dwordx2 {r[0:2]}, s[0:1], {off}")
I(f"s_load_dwordx2 {sPG}, s[0:1], 56")
I(f"s_load_dwordx2 {sPU}, s[0:1], 64")
I(f"s_load_dwordx2 {rD[0:2]}, s[0:1], 40")
vL = V.alloc(); vL16 = V.alloc(); vTag = V.alloc(); vHH = V.alloc(); vQ = V.alloc(); vT16 = V.alloc()
if TSTAMP: vTs = V.alloc()
t0 = V.alloc(); t1 = V.alloc(); t2 = V.alloc()
I(f"s_and_b32 {sXJ}, s2, 7")
I(f"s_lshr_b32 {sGI}, s2, 3")
I(f"v_lshrrev_b32 {t0}, 6, v0")
I(f"v_and_b32 {vL}, 63, v0")
I(f"v_readfirstlane_b32 {sWv}, {t0}")
I(f"v_lshlrev_b32 {vL16}, 4, {vL}")
I(f"v_lshlrev_b32 {vT16}, 4, v0")
def do_cpf():
    global cpa, cpd
    cpa = V.reserve(250, 2); cpd = V.reserve(252, 4)
    I(f"s_getpc_b64 {sTp[0]}")
    I(f"s_and_b32 {sTp[0][0]}, {sTp[0][0]}, 0xffffff00")
    I(f"s_and_b32 {sT[5]}, {sGI}, 7")
    I(f"s_min_u32 {sT[5]}, {sT[5]}, 6")
    I(f"s_lshl_b32 {sT[5]}, {sT[5]}, 12")
    I(f"s_add_u32 {sTp[0][0]}, {sTp[0][0]}, {sT[5]}")
    I(f"s_addc_u32 {sTp[0][1]}, {sTp[0][1]}, 0")
    I(f"v_mov_b32 {cpa[1]}, {sTp[0][1]}")
    I(f"v_add_co_u32 {cpa[0]}, vcc, {sTp[0][0]}, {vT16}")
    I(f"v_addc_co_u32 {cpa[1]}, vcc, 0, {cpa[1]}, vcc")
    I(f"global_load_dwordx4 {cpd}, {cpa}, off")
if opt('cpf', 1) == 1: do_cpf()
for r, n in ((rK,2097152),(rV,2097152),(rSH,4096),(rWS,WS_SIZE),(rC,1024),(rWM,3145728),(rX,2097152),(rTP,2097152),(rWD,1835008),(rOUT,2097152),(rW,1835008),(rD,1024)):
    I(f"s_mov_b32 {r[2]}, {n}")
    I(f"s_mov_b32 {r[3]}, 0x20000")
I(f"v_lshrrev_b32 {vHH}, 5, {vL}")
I(f"v_and_b32 {vQ}, 31, {vL}")
I(f"s_mov_b32 {sSpin}, 0")
I(f"s_movk_i32 {sC4096}, 0x1000")
vB = V.alloc(); vH = V.alloc(); vSH = V.alloc(); vGS = V.alloc()
I(f"s_lshl_b32 {sT[0]}, {sGI}, 16")
I(f"s_lshl_b32 {sT[1]}, {sXJ}, 7")
I(f"s_lshl_b32 {sT[2]}, {sWv}, 5")
I(f"s_add_u32 {sT[1]}, {sT[1]}, {sT[2]}")
I(f"s_add_u32 {sT[0]}, {sT[0]}, {sT[1]}")
I(f"v_lshrrev_b32 {t0}, 3, {vL}")
I(f"v_and_b32 {t1}, 7, {vL}")
I(f"v_lshlrev_b32 {vB}, 13, {t0}")
I(f"v_lshl_add_u32 {vB}, {t1}, 2, {vB}")
I(f"v_add_u32 {vB}, {sT[0]}, {vB}")
I(f"v_subrev_u32 {vH}, 3072, {vB}")
I(f"s_lshl_b32 {sT[2]}, {sT[1]}, 2")
I(f"v_lshlrev_b32 {vSH}, 4, {t1}")
I(f"v_add_u32 {vSH}, {sT[2]}, {vSH}")
I(f"v_mov_b32 {t2}, {EPOCH}")
I("s_waitcnt lgkmcnt(0)")
WSOFF = opt('wsoff', 0) << 20
if WSOFF:
    I(f"s_add_u32 {rWS[0]}, {rWS[0]}, {WSOFF}")
    I(f"s_addc_u32 {rWS[1]}, {rWS[1]}, 0")
LOC = opt('loc', 1); LST = '' if LOC else 'sc1'
vTagL = V.alloc()
PT = V.alloc(4)
Kr = V.alloc(11, 1); Vr = V.alloc(8, 1); SHr = V.alloc(4)
tep = I(f"buffer_load_dword {vTag}, {t2}, {rWS}, 0 offen sc1")
tsh = I(f"buffer_load_dwordx4 {SHr}, {vSH}, {rSH}, 0 offen")
PTA = OPT.get('pta', 'sc1')
def pretouch(base):
    I(f"s_lshl_b32 {sZ[0]}, {sXJ}, 18")
    I(f"s_lshl_b32 {sZ[1]}, {sGI}, 13")
    I(f"s_add_u32 {sZ[0]}, {sZ[0]}, {sZ[1]}")
    I(f"s_add_u32 {sZ[0]}, {sZ[0]}, {base}")
    I(f"s_add_u32 {sZ[1]}, {sZ[0]}, 4096")
    for c in range(2): I(f"buffer_load_dwordx4 {PT}, {vT16}, {rWS}, {sZ[c]} offen {PTA}")
if LOC and opt('ptfirst', 0): pretouch(KVG)
tk = []
for e in range(3): tk.append(I(f"buffer_load_dword {Kr[e]}, {vH}, {rK}, 0 offen offset:{e*1024} {NT}"))
for e in range(8): tk.append(I(f"buffer_load_dword {Kr[3+e]}, {vB}, {rK}, {sC4096 if e>=4 else 0} offen offset:{(e&3)*1024} {NT}"))
tv = [I(f"buffer_load_dword {Vr[e]}, {vB}, {rV}, {sC4096 if e>=4 else 0} offen offset:{(e&3)*1024} {NT}") for e in range(8)]
vH.free(); vSH.free()
if LOC and not opt('ptfirst', 0): pretouch(KVG)
if opt('cpf', 1) == 2: do_cpf()
vBP = V.alloc()
I(f"s_lshl_b32 {sT[2]}, {sT[1]}, 11")
I(f"s_lshl_b32 {sT[3]}, {sGI}, 7")
I(f"s_add_u32 {sT[2]}, {sT[2]}, {sT[3]}")
I(f"v_lshlrev_b32 {vGS}, 13, {t0}")
I(f"v_lshl_add_u32 {vGS}, {t1}, 4, {vGS}")
I(f"s_add_u32 {sT[2]}, {sT[2]}, {KVG}")
I(f"v_add_u32 {vGS}, {sT[2]}, {vGS}")
I(f"v_lshlrev_b32 {vBP}, 5, {t1}")
I(f"v_lshl_add_u32 {vBP}, {t0}, 2, {vBP}")
I(f"s_mov_b32 {sPL}, 0x05040100")
I(f"s_mov_b32 {sPH}, 0x07060302")
I(f"s_mov_b32 {sHI}, 0xffff0000")
I(f"s_mov_b32 {sONE}, 0x3f803f80")
sM = S.alloc(); sKS = S.alloc(); sCB = S.alloc()
I(f"s_and_b32 {sM}, {sGI}, 1")
I(f"s_cmp_eq_u32 {sM}, 0")
I(f"s_cselect_b32 {rW[0]}, {sPG[0]}, {sPU[0]}")
I(f"s_cselect_b32 {rW[1]}, {sPG[1]}, {sPU[1]}")
I(f"s_lshl_b32 {sD0}, {sXJ}, 6")
I(f"s_lshl_b32 {sT[4]}, {sGI}, 1")
I(f"s_add_u32 {sD0}, {sD0}, {sT[4]}")
I(f"s_lshl_b32 {sKS}, {sXJ}, 2")
I(f"s_add_u32 {sKS}, {sKS}, {sWv}")
I(f"s_lshr_b32 {sCB}, {sGI}, 1")
sPG.free(); sTp2 = sPU

G = {}
def A_mod():
    G['vMW'] = vMW = V.alloc(); G['vMC'] = vMC = V.alloc()
    I(f"s_and_b32 {sT[4]}, {sGI}, 3")
    I(f"s_lshl_b32 {sT[4]}, {sT[4]}, 7")
    I(f"v_lshrrev_b32 {t2}, 3, v0")
    I(f"v_add_u32 {t2}, {sT[4]}, {t2}")
    I(f"v_lshlrev_b32 {vMC}, 1, {t2}")
    I(f"v_mul_u32_u24 {vMW}, 6144, {t2}")
    I(f"v_and_b32 {t2}, 7, v0")
    I(f"v_lshl_add_u32 {vMW}, {t2}, 4, {vMW}")
    I(f"s_lshr_b32 {sT[4]}, {sGI}, 2")
    I(f"s_lshl_b32 {sT[4]}, {sT[4]}, 10")
    I(f"s_lshl_b32 {sT[5]}, {sXJ}, 7")
    I(f"s_add_u32 {sT[4]}, {sT[4]}, {sT[5]}")
    I(f"s_cmp_lt_u32 {sGI}, 24")
    I(f"s_cselect_b32 {sT[4]}, {sT[4]}, {OOB}")
    I(f"v_add_u32 {vMW}, {sT[4]}, {vMW}")
def L_mod():
    vMW, vMC = G['vMW'], G['vMC']
    G['Cr'] = Cr = V.alloc(4, 1); G['WMr'] = WMr = V.alloc(16)
    G['tc'] = [I(f"buffer_load_ushort {Cr[i]}, {vMC}, {rC}, 0 offen offset:{64*i}") for i in range(4)]
    G['twm'] = []
    for i in range(4):
        I(f"s_mov_b32 {sT[5]}, {i*32*6144}")
        G['twm'].append(I(f"buffer_load_dwordx4 {WMr[4*i:4*i+4]}, {vMW}, {rWM}, {sT[5]} offen {NT}"))
    vMW.free(); vMC.free()
def L_taps():
    G['TP'] = TP = [V.alloc(8), V.alloc(8)]
    I(f"s_lshl_b32 {sT[4]}, {sD0}, 12")
    I(f"s_add_u32 {sT[5]}, {sT[4]}, 4096")
    I(f"v_subrev_u32 {t2}, 16, {vT16}")
    I(f"v_min_u32 {t2}, {OOB}, {t2}")
    G['ttp'] = []
    for c in range(2):
        G['ttp'].append([I(f"buffer_load_dwordx4 {TP[c][4:8]}, {vT16}, {rTP}, {sT[4+c]} offen"),
                         I(f"buffer_load_dwordx4 {TP[c][0:4]}, {t2}, {rTP}, {sT[4+c]} offen")])
def L_w():
    G['WR'] = WR = V.alloc(16)
    I(f"s_mul_i32 {sT[0]}, {sKS}, {16*3584}")
    I(f"s_mul_i32 {sT[1]}, {sCB}, 224")
    I(f"s_add_u32 {sT[0]}, {sT[0]}, {sT[1]}")
    I(f"v_mul_u32_u24 {t2}, {8*3584}, {vHH}")
    I(f"v_lshl_add_u32 {t2}, {vQ}, 3, {t2}")
    G['twr'] = []
    for e in range(8):
        if e and e % 2 == 0: I(f"s_add_u32 {sT[0]}, {sT[0]}, 7168")
        G['twr'].append(I(f"buffer_load_dwordx2 {WR[2*e:2*e+2]}, {t2}, {rW}, {sT[0]} offen offset:{(e&1)*3584} {NT}"))
def L_x1(e):
    if e == 0: G['Xr'] = V.alloc(8, 1); G['tx'] = []
    G['tx'].append(I(f"buffer_load_dword {G['Xr'][e]}, {vB}, {rX}, {sC4096 if e>=4 else 0} offen offset:{(e&3)*1024}"))
    if e == 7: vB.free()
def L_xr():
    G['XR'] = XR = V.alloc(8)
    I(f"s_lshl_b32 {sT[0]}, s2, 13")
    I(f"s_lshl_b32 {sT[1]}, {sWv}, 11")
    I(f"s_add_u32 {sT[0]}, {sT[0]}, {sT[1]}")
    G['txr'] = [I(f"buffer_load_dwordx4 {XR[4*i:4*i+4]}, {vL16}, {rX}, {sT[0]} offen offset:{1024*i}") for i in range(2)]
def zero_pads():
    z4 = V.alloc(4)
    for i in range(4): I(f"v_mov_b32 {z4[i]}, 0")
    I(f"v_lshlrev_b32 {t2}, 4, {vQ}")
    I(f"v_mul_u32_u24 {t0}, {UCH}, {vHH}")
    I(f"v_add_u32 {t2}, {t2}, {t0}")
    I(f"ds_write_b128 {t2}, {z4} offset:{UB+4096}")
    I(f"v_and_b32 {t2}, 15, {vL}")
    I(f"v_mul_u32_u24 {t2}, {TCOPY}, {t2}")
    I(f"ds_write_b128 {t2}, {z4} offset:{TAPS}")
    z4.free()
def C_tag():
    P.wait(tep)
    pass
    I(f"s_mov_b32 {sT[0]}, 0x9E3779B1")
    I(f"v_mul_lo_u32 {vTag}, {vTag}, {sT[0]}")
    I(f"v_add_u32 {vTag}, 0x7F4A7C15, {vTag}")
    I(f"s_getreg_b32 {sT[0]}, hwreg(HW_REG_XCC_ID, 0, 4)")
    I(f"s_add_u32 {sT[0]}, {sT[0]}, 1")
    I(f"v_xor_b32 {vTagL}, {sT[0]}, {vTag}")
def lane_tr(src):
    GR = Frags(2)
    return GR, [I(f"ds_bpermute_b32 {GR[i]}, {vBP}, {src[i]}") for i in range(8)]
def flag_setup():
    G['vFo'] = V.alloc(); G['vFp'] = V.alloc()
    I(f"s_lshl_b32 {sT[0]}, {sKS}, 5")
    I(f"s_add_u32 {sT[0]}, {sT[0]}, {sGI}")
    I(f"s_lshl_b32 {sT[0]}, {sT[0]}, 7")
    lane0(G['vFo'], sT[0], t1)
    I(f"s_lshr_b32 {sT[0]}, {sGI}, 3")
    I(f"s_lshl_b32 {sT[1]}, {sXJ}, 2")
    I(f"s_add_u32 {sT[0]}, {sT[0]}, {sT[1]}")
    I(f"s_lshl_b32 {sT[0]}, {sT[0]}, 2")
    I(f"s_add_u32 {sT[0]}, {sT[0]}, {sWv}")
    I(f"s_lshl_b32 {sT[0]}, {sT[0]}, 3")
    I(f"v_and_b32 {t0}, 7, {vL}")
    I(f"v_add_lshl_u32 {G['vFp']}, {t0}, {sT[0]}, 7")
def C_kv():
    kf = V.alloc(22); wp = V.alloc(8); acc = V.alloc(16)
    P.wait(tsh)
    for j in range(4):
        for c in range(2): unpack(wp[2*j+c], SHr[2*c + (j>>1)], j & 1)
    stamp('pre-k'); P.wait(tk[:opt('kw', 3)]); G['afterk'](); P.wait(tk); stamp('k in')
    for e in range(11):
        unpack(kf[2*e], Kr[e], 0); unpack(kf[2*e+1], Kr[e], 1)
    for e in range(8): I(f"v_pk_mul_f32 {acc[2*e:2*e+2]}, {kf[2*e:2*e+2]}, {wp[6:8]}")
    for j in (2, 1, 0):
        for e in range(8):
            q = e + 3 - j
            I(f"v_pk_fma_f32 {acc[2*e:2*e+2]}, {kf[2*q:2*q+2]}, {wp[2*j:2*j+2]}, {acc[2*e:2*e+2]}")
    P.wait(tv)
    for e in range(8):
        unpack(kf[2*e], Vr[e], 0); unpack(kf[2*e+1], Vr[e], 1)
    for e in range(8): I(f"v_pk_mul_f32 {acc[2*e:2*e+2]}, {acc[2*e:2*e+2]}, {kf[2*e:2*e+2]}")
    for c in range(2):
        for n in range(4):
            I(f"v_cvt_pk_bf16_f32 {wp[4*c+n]}, {acc[2*(7-2*n)+c]}, {acc[2*(6-2*n)+c]}")
    G['KVt'], tl = lane_tr(wp)
    G['tks'] = []
    for c in range(2):
        P.wait(tl[4*c:4*c+4])
        G['tks'].append(I(f"buffer_store_dwordx4 {G['KVt'][4*c:4*c+4]}, {vGS}, {rWS}, {sC4096 if c else 0} offen {LST}"))
    for r in (kf, wp, acc, Kr, Vr, SHr): r.free()
def C_mod():
    Cr, WMr = G['Cr'], G['WMr']
    P.wait(G['tc'])
    sl = V.alloc(4, 1); sp = V.alloc(2, 1)
    for i in range(4): I(f"v_lshlrev_b32 {Cr[i]}, 16, {Cr[i]}")
    for i in range(4): I(f"v_mul_f32 {sl[i]}, 0xbfb8aa3b, {Cr[i]}")
    for i in range(4): I(f"v_exp_f32 {sl[i]}, {sl[i]}")
    for i in range(4): I(f"v_add_f32 {sl[i]}, 1.0, {sl[i]}")
    for i in range(4): I(f"v_rcp_f32 {sl[i]}, {sl[i]}")
    for i in range(4): I(f"v_mul_f32 {sl[i]}, {sl[i]}, {Cr[i]}")
    I(f"v_cvt_pk_bf16_f32 {sp[0]}, {sl[0]}, {sl[1]}")
    I(f"v_cvt_pk_bf16_f32 {sp[1]}, {sl[2]}, {sl[3]}")
    I(f"v_and_b32 {t0}, 7, {vL}")
    I(f"v_lshlrev_b32 {t0}, 7, {t0}")
    I(f"v_lshrrev_b32 {t1}, 4, {vL}")
    I(f"v_lshl_add_u32 {t0}, {t1}, 5, {t0}")
    I(f"s_lshl_b32 {sT[0]}, {sWv}, 2")
    I(f"v_add_u32 {t0}, {sT[0]}, {t0}")
    ma = V.alloc(8, 1); mp = V.alloc(8, 1)
    for half in range(2):
        P.wait(G['twm'][2*half:2*half+2])
        for j in range(4):
            I(f"v_perm_b32 {mp[2*j]}, {WMr[8*half+4+j]}, {WMr[8*half+j]}, {sPL}")
            I(f"v_perm_b32 {mp[2*j+1]}, {WMr[8*half+4+j]}, {WMr[8*half+j]}, {sPH}")
        for j in range(8):
            I(f"v_dot2_f32_bf16 {ma[j]}, {mp[j]}, {sp[half]}, {0 if half==0 else ma[j]}")
    for i in range(4): I(f"v_permlane32_swap_b32 {ma[i]}, {ma[i+4]}")
    for i in range(4): I(f"v_add_f32 {ma[i]}, {ma[i]}, {ma[i+4]}")
    for i in range(2): I(f"v_permlane16_swap_b32 {ma[i]}, {ma[i+2]}")
    for i in range(2): I(f"v_add_f32 {ma[i]}, {ma[i]}, {ma[i+2]}")
    for i in range(2): I(f"v_add_f32_dpp {ma[i]}, {ma[i]}, {ma[i]} row_ror:8 row_mask:0xf bank_mask:0xf")
    I(f"ds_write_b32 {t0}, {ma[0]} offset:{MODL}")
    I(f"ds_write_b32 {t0}, {ma[1]} offset:{MODL+16}")
    for r in (sl, sp, ma, mp, Cr, WMr): r.free()
def A_mod2():
    I(f"s_lshl_b32 {sT[0]}, {sGI}, 12")
    I(f"s_lshl_b32 {sT[1]}, {sXJ}, 9")
    I(f"s_add_u32 {sT[0]}, {sT[0]}, {sT[1]}")
    I(f"s_add_u32 {sT[0]}, {sT[0]}, {MODG}")
    I(f"s_cmp_lt_u32 {sGI}, 24")
    I(f"s_cselect_b32 {sT[0]}, {sT[0]}, {OOB}")
    I(f"s_cmp_eq_u32 {sWv}, 1")
    I(f"s_cselect_b32 {sT[0]}, {sT[0]}, {OOB}")
    G['vMs'] = V.alloc()
    I(f"v_lshlrev_b32 {t0}, 3, {vL}")
    I(f"v_add_u32 {G['vMs']}, {sT[0]}, {t0}")
def C_mod2():
    vMs = G['vMs']
    I("s_waitcnt lgkmcnt(0)"); P.lg_done = P.lg
    I("s_barrier")
    m4 = V.alloc(4)
    tl = I(f"ds_read_b128 {m4}, {vL16} offset:{MODL}")
    P.wait(tl)
    I(f"v_add_f32 {m4[0]}, {m4[0]}, {m4[1]}")
    I(f"v_add_f32 {m4[2]}, {m4[2]}, {m4[3]}")
    I(f"v_mov_b32 {m4[1]}, {vTag}")
    I(f"v_add_f32 {m4[0]}, {m4[0]}, {m4[2]}")
    if LOC:
        I(f"s_mov_b32 {sT[1]}, {MODL2-MODG}")
        I(f"buffer_store_dwordx2 {m4[0:2]}, {vMs}, {rWS}, {sT[1]} offen")
    G['midmod']()
    I(f"buffer_store_dwordx2 {m4[0:2]}, {vMs}, {rWS}, 0 offen sc1")
    m4.free(); vMs.free()
def C_taps(hk=lambda: None):
    TP = G['TP']
    E1 = V.alloc(6); O0 = V.alloc(6); O1 = V.alloc(6)
    I(f"v_add_u32 {t2}, {TCH}, {vT16}")
    for c in range(2):
        d = TP[c]; ad = vT16 if c == 0 else t2
        P.wait(G['ttp'][c])
        def wr(o, regs):
            I(f"ds_write_b128 {ad}, {regs} offset:{TAPS + 16 + (o-1)*TCOPY}")
            if o > 4: hk()
        wr(4, d[2:6]); wr(8, d[4:8])
        for j in range(6): I(f"v_alignbit_b32 {O0[j]}, {d[j+1]}, {d[j]}, 16")
        wr(1, O0[0:4]); wr(5, O0[2:6])
        for j in range(6): I(f"v_alignbit_b32 {O1[j]}, {d[j+2]}, {d[j+1]}, 16")
        wr(3, O1[0:4]); wr(7, O1[2:6])
        for j in range(6): I(f"v_mov_b32 {E1[j]}, {d[j+1]}")
        wr(2, E1[0:4]); wr(6, E1[2:6])
    for r in TP + [E1, O0, O1]: r.free()
sUY = S.alloc(2)
def L_u():
    G['UR'] = UR = Frags(2)
    I(f"s_lshl_b32 {sUY[0]}, {sD0}, 12")
    I(f"s_add_u32 {sUY[0]}, {sUY[0]}, {KVG}")
    I(f"s_add_u32 {sUY[1]}, {sUY[0]}, 4096")
    G['tu'] = [I(f"buffer_load_dwordx4 {UR[4*c:4*c+4]}, {vT16}, {rWS}, {sUY[c]} offen sc1") for c in range(2)]
def C_u():
    UR = G['UR']
    I(f"v_sub_u32 {t2}, 4080, {vT16}")
    for c in range(2):
        P.wait(G['tu'][c])
        I(f"ds_write_b128 {t2}, {UR[4*c:4*c+4]} offset:{UB+c*UCH}")
    UR.free()
def L_d():
    G['Dr'] = V.alloc(2)
    I(f"s_lshl_b32 {sT[0]}, {sKS}, 5")
    I(f"v_lshrrev_b32 {t0}, 3, {vL}")
    I(f"v_lshlrev_b32 {t0}, 2, {t0}")
    G['td'] = I(f"buffer_load_dword {G['Dr'][0]}, {t0}, {rD}, {sT[0]} offen")
def x_ops():
    ops = []
    def a0(): G['xp'] = V.alloc(8, 1); G['Xt'] = Frags(2); G['txt'] = []; P.wait(G['tx'])
    ops.append(a0)
    for c in range(2):
        for n in range(4):
            ops.append(lambda c=c, n=n: I(f"v_perm_b32 {G['xp'][4*c+n]}, {G['Xr'][2*n+1]}, {G['Xr'][2*n]}, {sPH if c else sPL}"))
    for i in range(8): ops.append(lambda i=i: G['txt'].append(I(f"ds_bpermute_b32 {G['Xt'][i]}, {vBP}, {G['xp'][i]}")))
    ops.append(lambda: (G['Xr'].free(), vBP.free(), G['xp'].free()))
    return ops
def C_st():
    XR = G['XR']
    P.wait(G['txr'])
    q4 = V.alloc(4)
    for n in range(4):
        for r in range(2):
            I(f"v_dot2_f32_bf16 {q4[2*r]}, {XR[4*r+n]}, {sONE}, {0 if n==0 else q4[2*r]}")
            I(f"v_dot2_f32_bf16 {q4[2*r+1]}, {XR[4*r+n]}, {XR[4*r+n]}, {0 if n==0 else q4[2*r+1]}")
    I(f"v_permlane32_swap_b32 {q4[0]}, {q4[2]}")
    I(f"v_permlane32_swap_b32 {q4[1]}, {q4[3]}")
    I(f"v_add_f32 {q4[0]}, {q4[0]}, {q4[2]}")
    I(f"v_add_f32 {q4[1]}, {q4[1]}, {q4[3]}")
    I(f"v_permlane16_swap_b32 {q4[0]}, {q4[1]}")
    I(f"v_add_f32 {q4[0]}, {q4[0]}, {q4[1]}")
    for sh in (8, 4, 2, 1):
        I(f"v_add_f32_dpp {q4[0]}, {q4[0]}, {q4[0]} row_ror:{sh} row_mask:0xf bank_mask:0xf")
    I(f"v_mov_b32 {q4[1]}, {q4[0]}")
    I(f"v_permlane16_swap_b32 {q4[0]}, {q4[1]}")
    finish_stats(q4[0], q4[1], q4[3], t0)
    I(f"v_rsq_f32 {q4[2]}, {t0}")
    I(f"s_lshl_b32 {sT[0]}, s2, 4")
    I(f"s_lshl_b32 {sT[1]}, {sWv}, 12")
    I(f"s_add_u32 {sT[0]}, {sT[0]}, {sT[1]}")
    I(f"s_add_u32 {sT[0]}, {sT[0]}, {STG}")
    I(f"v_cvt_pk_bf16_f32 {q4[0]}, {q4[3]}, {q4[2]}")
    I(f"v_mov_b32 {q4[1]}, {vTag}")
    I(f"v_mov_b32 {q4[2]}, {q4[0]}")
    I(f"v_mov_b32 {q4[3]}, {vTag}")
    I(f"v_permlane32_swap_b32 {q4[0]}, {q4[2]}")
    lane0(t0, sT[0], t1)
    I(f"buffer_store_dwordx4 {q4}, {t0}, {rWS}, 0 offen sc1")
    XR.free(); q4.free()
def finish_stats(vsum, vsq, vnm, vve):
    I(f"v_mul_f32 {vnm}, 0xbb000000, {vsum}")
    I(f"v_mul_f32 {vsq}, 0x3b000000, {vsq}")
    I(f"v_fma_f32 {vve}, -{vnm}, {vnm}, {vsq}")
    I(f"v_max_f32 {vve}, 0, {vve}")
    I(f"v_add_f32 {vve}, 0x3727c5ac, {vve}")
def m_addr():
    G['MA'] = Frags(3); G['vMa'] = vMa = V.alloc()
    I(f"v_and_b32 {t0}, 7, {vL}")
    I(f"v_lshrrev_b32 {t1}, 3, {vL}")
    I(f"v_lshlrev_b32 {vMa}, 4, {t0}")
    I(f"v_lshl_add_u32 {vMa}, {t1}, 12, {vMa}")
    I(f"s_lshl_b32 {sT[0]}, {sKS}, 7")
    I(f"s_add_u32 {sT[0]}, {sT[0]}, {MODG}")
    I(f"v_add_u32 {vMa}, {sT[0]}, {vMa}")
def m_loads(retry=False):
    MA = G['MA']
    if LOC and retry:
        I(f"s_and_b32 {sZ[0]}, {sSpin}, 7")
        I(f"s_cmp_eq_u32 {sZ[0]}, 0")
        I(f"s_cselect_b32 {sZ[0]}, 0, {MODL2-MODG}")
    else: I(f"s_mov_b32 {sZ[0]}, {MODL2-MODG if LOC else 0}")
    out = []
    for j in range(3):
        if j: I(f"s_add_u32 {sZ[0]}, {sZ[0]}, 32768")
        out.append(I(f"buffer_load_dwordx4 {MA.g[j]}, {G['vMa']}, {rWS}, {sZ[0]} offen sc1"))
    return out
def C_wunpack():
    WR = G['WR']
    G['wf'] = wf = Frags(8)
    P.wait(G['twr'])
    for e in range(8):
        for h in range(2):
            unpack(wf[4*e+2*h], WR[2*e+h], 0); unpack(wf[4*e+2*h+1], WR[2*e+h], 1)
def C_m():
    MA = G['MA']
    check_tags([MA[4*j+i] for j in range(3) for i in (1, 3)], lambda: m_loads(True), G['tm'])
    G['vMa'].free()
def m_ops():
    MA = G['MA']; ad = MA[1]; one = MA[3]; on2 = MA[5]
    seq = [f"v_permlane16_swap_b32 {MA[4*j]}, {MA[4*j+2]}" for j in (2, 1, 0)]
    seq += [f"v_add_f32 {MA[4*j]}, {MA[4*j]}, {MA[4*j+2]}" for j in (2, 1, 0)]
    seq += [f"v_add_f32_dpp {MA[4*j]}, {MA[4*j]}, {MA[4*j]} row_ror:8 row_mask:0xf bank_mask:0xf" for j in (2, 1, 0)]
    seq += [f"v_and_b32 {ad}, 7, {vL}", f"v_lshlrev_b32 {ad}, 3, {ad}", f"v_bfe_u32 {one}, {vL}, 4, 1",
            f"v_lshl_add_u32 {ad}, {one}, 2, {ad}", f"v_lshl_add_u32 {ad}, {vHH}, 6, {ad}", f"v_add_u32 {ad}, {sWDs}, {ad}",
            f"v_cvt_f32_u32 {one}, {vHH}"]
    seq += [f"v_cvt_pk_bf16_f32 {MA[4*j]}, {MA[4*j]}, {MA[4*j]}" for j in (2, 1, 0)]
    seq += [f"v_sub_f32 {on2}, 1.0, {one}"]
    seq += [f"v_and_b32 {MA[4*j]}, {sHI}, {MA[4*j]}" for j in (2, 1, 0)]
    seq += [f"v_add_f32 {MA[8]}, {MA[8]}, {on2}", f"v_add_f32 {MA[0]}, {MA[0]}, {one}",
            f"v_cvt_pk_bf16_f32 {MA[8]}, {MA[8]}, {MA[8]}", f"v_cvt_pk_bf16_f32 {MA[0]}, {MA[0]}, {MA[0]}",
            f"v_and_b32 {MA[8]}, {sHI}, {MA[8]}", f"v_and_b32 {MA[0]}, {sHI}, {MA[0]}"]
    seq += [f"ds_write_b32 {ad}, {MA[4*j]} offset:{CBO+128*j}" for j in (2, 1, 0)]
    return [(lambda x=x: I(x)) for x in seq] + [lambda: MA.free()]
sWst = S.alloc()
def w_addr():
    G['vWs'] = vWs = V.alloc(); G['vCw'] = vCw = V.alloc()
    I(f"s_mul_i32 {sWst}, {sCB}, 229376")
    I(f"s_lshl_b32 {sT[1]}, {sM}, 9")
    I(f"s_add_u32 {sWst}, {sWst}, {sT[1]}")
    I(f"s_add_u32 {sWst}, {sWst}, {WP}")
    I(f"s_mul_i32 {sT[1]}, {sKS}, {NA*1024}")
    I(f"s_lshl_b32 {sT[2]}, {sKS}, 10")
    I(f"v_lshrrev_b32 {t0}, 2, {vQ}")
    I(f"v_lshlrev_b32 {vWs}, 10, {t0}")
    I(f"v_add_u32 {vWs}, {sT[1]}, {vWs}")
    I(f"v_lshlrev_b32 {t2}, 15, {t0}")
    I(f"v_add_u32 {t2}, {sT[2]}, {t2}")
    I(f"v_cmp_gt_u32 vcc, {NA}, {t0}")
    I(f"v_mov_b32 {t1}, {OOB}")
    I(f"v_cndmask_b32 {vWs}, {t2}, {vWs}, vcc")
    I(f"v_cmp_gt_u32 vcc, 7, {t0}")
    I(f"v_xor_b32 {t2}, {sM}, {vHH}")
    I(f"v_cndmask_b32 {vWs}, {t1}, {vWs}, vcc")
    I(f"v_lshl_add_u32 {vWs}, {t2}, 6, {vWs}")
    I(f"v_and_b32 {t2}, 3, {vQ}")
    I(f"v_lshl_add_u32 {vWs}, {t2}, 4, {vWs}")
    I(f"v_lshlrev_b32 {vCw}, 6, {t0}")
    I(f"v_lshl_add_u32 {vCw}, {t2}, 2, {vCw}")
    I(f"v_lshl_add_u32 {vCw}, {vHH}, 9, {vCw}")
    I(f"v_add_u32 {vCw}, {sWDs}, {vCw}")
def C_w_reads():
    I(f"v_lshlrev_b32 {t0}, 5, {vHH}")
    I(f"v_add_u32 {t0}, {sWDs}, {t0}")
    G['SBv'] = SBv = Frags(2); G['CBv'] = CBv = Frags(2)
    G['tcb'] = [I(f"ds_read_b128 {CBv[0:4]}, {t0} offset:{CBO+256}"), I(f"ds_read_b128 {CBv[4:8]}, {t0} offset:{CBO+272}"),
                I(f"ds_read_b128 {SBv[0:4]}, {t0} offset:{CBO+192}"), I(f"ds_read_b128 {SBv[4:8]}, {t0} offset:{CBO+208}")]
def wu_ops():
    WR = G['WR']; ops = []
    def st0(): G['wf'] = Frags(8); P.wait(G['twr'])
    ops.append(st0)
    for e in range(8):
        for j in range(4): ops.append(lambda e=e, j=j: unpack(G['wf'][4*e+j], WR[2*e+(j>>1)], j & 1))
    return ops
def w_ops():
    WR = G['WR']; ops = []
    def st0(): G['pr'] = V.alloc(4, 1); G['c1'] = V.alloc(4, 1); G['c2'] = V.alloc(4, 1); P.wait(G['tcb'])
    ops.append(st0)
    G['tws'] = []
    for j in range(4):
        for n in range(4):
            o = 2*(n & 1)
            for ee in range(2):
                ops.append(lambda n=n, j=j, ee=ee, o=o: I(f"v_mul_f32 {G['pr'][o+ee]}, {G['wf'][4*(2*n+ee)+j]}, {G['CBv'][2*n+ee]}"))
            ops.append(lambda n=n, j=j, o=o: I(f"v_cvt_pk_bf16_f32 {WR[4*j+n]}, {G['pr'][o]}, {G['pr'][o+1]}"))
        ops.append(lambda j=j: G['tws'].append(I(f"buffer_store_dwordx4 {WR[4*j:4*j+4]}, {G['vWs']}, {rWS}, {sWst} offen offset:{128*j} sc1")))
    return ops
def c_ops():
    ops = []
    for e in range(8):
        op = "v_mul_f32" if e == 0 else "v_fmac_f32"
        for j in range(4): ops.append(lambda e=e, j=j, op=op: I(f"{op} {G['c1'][j]}, {G['wf'][4*e+j]}, {G['CBv'][e]}"))
        for j in range(4): ops.append(lambda e=e, j=j, op=op: I(f"{op} {G['c2'][j]}, {G['wf'][4*e+j]}, {G['SBv'][e]}"))
    ops.append(None)
    for j in range(4): ops.append(lambda j=j: I(f"v_permlane32_swap_b32 {G['c1'][j]}, {G['c2'][j]}"))
    for j in range(4): ops.append(lambda j=j: I(f"v_add_f32 {G['c1'][j]}, {G['c1'][j]}, {G['c2'][j]}"))
    for j in range(4): ops.append(lambda j=j: I(f"ds_write_b32 {G['vCw']}, {G['c1'][j]} offset:{C12O+16*j}"))
    def fin():
        for k in ('pr', 'CBv', 'SBv', 'vWs', 'wf', 'c1', 'c2', 'vCw', 'WR'): G[k].free()
    ops.append(fin)
    return ops
def C_c12b():
    c8 = V.alloc(8)
    I(f"v_and_b32 {t0}, 127, v0")
    I(f"v_lshlrev_b32 {t0}, 2, {t0}")
    I(f"v_add_u32 {t0}, {WDS0+C12O}, {t0}")
    I(f"v_add_u32 {t1}, {2*WDW0}, {t0}")
    tc = []
    for w in range(4):
        for sel in range(2):
            tc.append(I(f"ds_read_b32 {c8[2*w+sel]}, {t1 if w >= 2 else t0} offset:{WDW0*(w&1) + 512*sel}"))
    I(f"s_lshl_b32 {sT[0]}, {sCB}, 3")
    I(f"s_add_u32 {sT[0]}, {sT[0]}, {sXJ}")
    I(f"s_lshl_b32 {sT[0]}, {sT[0]}, 1")
    I(f"s_add_u32 {sT[0]}, {sT[0]}, {sM}")
    I(f"s_mul_i32 {sT[0]}, {sT[0]}, 896")
    I(f"s_add_u32 {sT[0]}, {sT[0]}, {C12}")
    I(f"v_lshlrev_b32 {t0}, 3, v0")
    I(f"v_mov_b32 {t2}, {OOB}")
    I(f"v_cmp_gt_u32 vcc, 112, v0")
    I(f"v_cndmask_b32 {t0}, {t2}, {t0}, vcc")
    P.wait(tc)
    I(f"v_pk_add_f32 {c8[0:2]}, {c8[0:2]}, {c8[2:4]}")
    I(f"v_pk_add_f32 {c8[4:6]}, {c8[4:6]}, {c8[6:8]}")
    I(f"v_pk_add_f32 {c8[0:2]}, {c8[0:2]}, {c8[4:6]}")
    G['tc12'] = I(f"buffer_store_dwordx2 {c8[0:2]}, {t0}, {rWS}, {sT[0]} offen sc1")
    c8.free()
def A_f3():
    G['vF3'] = V.alloc()
    I(f"s_lshl_b32 {sT[0]}, {sGI}, 5")
    I(f"s_add_u32 {sT[0]}, {sT[0]}, {sKS}")
    I(f"s_lshl_b32 {sT[0]}, {sT[0]}, {FSH}")
    lane0(G['vF3'], sT[0], t1)
def st_addr():
    G['vSt'] = V.alloc()
    I(f"s_lshl_b32 {sT[0]}, {sGI}, 7")
    I(f"s_add_u32 {sT[0]}, {sT[0]}, {STG}")
    I(f"v_and_b32 {t0}, 7, {vL}")
    I(f"v_lshl_add_u32 {G['vSt']}, {t0}, 4, {sT[0]}")
def st_loads():
    SL = G['SL']; out = []
    for w in range(4):
        if w >= 2: I(f"s_movk_i32 {sZ[0]}, {4096*w}")
        out.append(I(f"buffer_load_dwordx4 {SL.g[w]}, {G['vSt']}, {rWS}, {[0, sC4096, sZ[0], sZ[0]][w]} offen sc1"))
    return out
def L_st():
    G['SL'] = Frags(4); G['tsl'] = st_loads()
def C_pre0():
    G['PQ'] = PQ = V.alloc(6)
    I(f"v_lshrrev_b32 {t0}, 3, {vL}")
    I(f"v_lshl_add_u32 {t0}, {t0}, 3, {sWDs}")
    G['tpq'] = [I(f"ds_read_b64 {PQ[2*v:2*v+2]}, {t0} offset:{CBO+64*v}") for v in range(3)]
def C_pre1():
    SL, PQ, Dr = G['SL'], G['PQ'], G['Dr']
    check_tags([SL[2*i+1] for i in range(8)], st_loads, [G['tsl'], G['td']])
    G['vSt'].free()
    for w in range(4):
        g = SL.g[w]
        unpack(g[1], g[2], 1); unpack(g[3], g[2], 0); unpack(g[2], g[0], 0); unpack(g[0], g[0], 1)
    for w in range(4): I(f"v_pk_mul_f32 {SL.g[w][2:4]}, {SL.g[w][2:4]}, {SL.g[w][0:2]}")
    unpack(Dr[1], Dr[0], 1); unpack(Dr[0], Dr[0], 0)
    P.wait(G['tpq'], G['txt'])
    I(f"v_pk_mul_f32 {PQ[0:2]}, {PQ[0:2]}, {PQ[4:6]}")
    I(f"v_pk_mul_f32 {PQ[2:4]}, {PQ[2:4]}, {PQ[4:6]}")
    G['HG'] = Frags(4); G['BS'] = Frags(4)
def C_pre2(c):
    SL, PQ, Dr, HG, BS, Xt, KVt = G['SL'], G['PQ'], G['Dr'], G['HG'], G['BS'], G['Xt'], G['KVt']
    kd = V.alloc(8)
    pr = lambda R, p: R[8*c+2*p:8*c+2*p+2]
    for p in range(4):
        unpack(BS[8*c+2*p], Xt[4*c+p], 0); unpack(BS[8*c+2*p+1], Xt[4*c+p], 1)
        unpack(kd[2*p], KVt[4*c+3-p], 1); unpack(kd[2*p+1], KVt[4*c+3-p], 0)
    for p in range(4): I(f"v_pk_fma_f32 {pr(HG,p)}, {pr(BS,p)}, {SL.g[p][0:2]}, {SL.g[p][2:4]}")
    for p in range(4): I(f"v_pk_mul_f32 {kd[2*p:2*p+2]}, {kd[2*p:2*p+2]}, {Dr} op_sel:[0,{c}] op_sel_hi:[1,{c}]")
    for p in range(4): I(f"v_pk_fma_f32 {pr(HG,p)}, {pr(HG,p)}, {PQ[2:4]}, {PQ[0:2]} op_sel:[0,{c},{c}] op_sel_hi:[1,{c},{c}]")
    for p in range(4): I(f"v_pk_fma_f32 {pr(BS,p)}, {pr(HG,p)}, {kd[2*p:2*p+2]}, {pr(BS,p)}")
    kd.free()
    if c == 1:
        for r in (SL, PQ, Dr, Xt, KVt): r.free()

AWD = A.reserve(0, 224)
order = [(c, it) for c in range(4) for it in range(4)] + [(c, it) for c in range(4) for it in (4, 5)] + [(c, 6) for c in range(4)]
sWo = S.alloc()
def wd_src(i): c, it = order[i]; I(f"s_add_u32 {sWo}, {sWD}, {16384*(c*7+it)}")
sR64 = S.alloc(); sDB = S.alloc(); sWD = S.alloc()
sWDs = S.alloc()
def wd_setup():
    G['vWa'] = vWa = V.alloc(); G['vWb'] = vWb = V.alloc(); G['vWr'] = [V.alloc(), V.alloc()]
    if opt('map2', 1):
        I(f"s_lshr_b32 {sR64}, {sGI}, 2")
        I(f"s_lshr_b32 {sT[0]}, {sXJ}, 1")
        I(f"s_lshl_b32 {sT[0]}, {sT[0]}, 3")
        I(f"s_add_u32 {sR64}, {sR64}, {sT[0]}")
        I(f"s_and_b32 {sDB}, {sGI}, 3")
        I(f"s_and_b32 {sT[0]}, {sXJ}, 1")
        I(f"s_lshl_b32 {sT[0]}, {sT[0]}, 2")
        I(f"s_add_u32 {sDB}, {sDB}, {sT[0]}")
    else:
        I(f"s_lshr_b32 {sR64}, {sGI}, 3")
        I(f"s_lshl_b32 {sT[0]}, {sXJ}, 2")
        I(f"s_add_u32 {sR64}, {sR64}, {sT[0]}")
        I(f"s_and_b32 {sDB}, {sGI}, 7")
    I(f"s_mul_i32 {sWD}, {sWv}, {448*1024}")
    I(f"s_lshl_b32 {sT[0]}, {sDB}, 7")
    I(f"s_add_u32 {sWD}, {sWD}, {sT[0]}")
    I(f"v_bfe_u32 {t0}, {vL}, 3, 2")
    I(f"v_lshlrev_b32 {vWa}, 12, {t0}")
    I(f"v_lshl_add_u32 {vWa}, {vHH}, 10, {vWa}")
    I(f"v_bfe_u32 {t0}, {vL}, 4, 1")
    I(f"v_lshlrev_b32 {t0}, 2, {t0}")
    I(f"v_and_b32 {t1}, 7, {vL}")
    I(f"v_xor_b32 {t0}, {t0}, {t1}")
    I(f"v_lshl_add_u32 {vWa}, {t0}, 4, {vWa}")
    I(f"v_add_u32 {vWb}, 1024, {vWa}")
    r0 = G['vWr'][0]
    I(f"v_bfe_u32 {t0}, {vL}, 2, 2")
    I(f"v_lshlrev_b32 {r0}, 7, {t0}")
    I(f"v_lshl_add_u32 {r0}, {vHH}, 9, {r0}")
    I(f"v_bfe_u32 {t0}, {vL}, 3, 1")
    I(f"s_and_b32 {sT[0]}, {sWv}, 1")
    I(f"v_xor_b32 {t0}, {sT[0]}, {t0}")
    I(f"v_lshl_add_u32 {r0}, {t0}, 6, {r0}")
    I(f"v_and_b32 {t0}, 1, {vL}")
    I(f"v_lshl_add_u32 {r0}, {t0}, 5, {r0}")
    I(f"v_bfe_u32 {t0}, {vL}, 4, 1")
    I(f"v_lshl_add_u32 {r0}, {t0}, 4, {r0}")
    I(f"v_bfe_u32 {t0}, {vL}, 1, 1")
    I(f"v_lshl_add_u32 {r0}, {t0}, 3, {r0}")
    I(f"s_mul_i32 {sWDs}, {sWv}, {WDW0}")
    I(f"s_add_u32 {sWDs}, {sWDs}, {WDS0}")
    I(f"v_add_u32 {r0}, {sWDs}, {r0}")
    I(f"v_xor_b32 {G['vWr'][1]}, 64, {r0}")
    G['wd'] = dict(nd=0, nr=0, free=[6, 7, 8, 9, 0, 1, 2, 3], ban=set(), slot={}, dt={}, rt={}, ti={}, rd={})
def wd_rebase(sbase, nslots):
    W = G['wd']; assert W['nd'] == W['nr']
    I(f"s_sub_u32 {sT[0]}, {sbase}, {sWDs}")
    I(f"s_mov_b32 {sWDs}, {sbase}")
    for r in G['vWr']: I(f"v_add_u32 {r}, {sT[0]}, {r}")
    W['free'] = list(range(nslots)); W['rt'] = {}; W['ban'] = set()
def wd_dma():
    W = G['wd']; n = W['nd']
    if n >= 28 or not W['free']: return False
    sl = W['free'].pop(0); W['slot'][n] = sl
    P.wait(W['rt'].get(sl))
    I(f"s_add_u32 m0, {sWDs}, {2048*sl}")
    wd_src(n)
    W['dt'][n] = [I(f"buffer_load_dwordx4 {G['vWa']}, {rWD}, {sWo} offen lds"),
                  I(f"buffer_load_dwordx4 {G['vWb']}, {rWD}, {sWo} offen offset:1024 lds")]
    W['nd'] = n+1
    return True
def wd_dma1():
    W = G['wd']; n = W['nd']
    if not W.get('half'):
        if n >= 28 or not W['free']: return False
        sl = W['free'].pop(0); W['slot'][n] = sl
        P.wait(W['rt'].get(sl))
        I(f"s_add_u32 m0, {sWDs}, {2048*sl}")
        wd_src(n)
        W['dt'][n] = [I(f"buffer_load_dwordx4 {G['vWa']}, {rWD}, {sWo} offen lds")]
        W['half'] = True
    else:
        I(f"s_add_u32 m0, {sWDs}, {2048*W['slot'][n]}")
        I("s_nop 0")
        W['dt'][n].append(I(f"buffer_load_dwordx4 {G['vWb']}, {rWD}, {sWo} offen offset:1024 lds"))
        W['half'] = False; W['nd'] = n+1; W['ti'][n] = max(G.get('now', 0), G.get('lastst', -99) + opt('sl', 36) - opt('wdl', 20))
    return True
def wd_read():
    W = G['wd']; n = W['nr']
    if n >= W['nd']: return False
    sl = W['slot'][n]
    P.wait(W['dt'][n])
    W['rt'][sl] = [I(f"ds_read_b64_tr_b16 {AWD[8*n+4*dt+2*g:8*n+4*dt+2*g+2]}, {G['vWr'][dt]} offset:{2048*sl+1024*g}") for dt in range(2) for g in range(2)]
    W['last'] = W['rt'][sl]; W['rd'][n] = W['rt'][sl]
    if sl not in W['ban']: W['free'].append(sl)
    W['nr'] = n+1
    return True

def conv(side_per=None):
    vAa = V.alloc(); vBa = V.alloc(); vRW = V.alloc()
    I(f"s_lshr_b32 {sT[0]}, {sWv}, 1")
    I(f"s_and_b32 {sT[1]}, {sWv}, 1")
    I(f"s_lshl_b32 {sT[1]}, {sT[1]}, 8")
    I(f"s_mul_i32 {sT[2]}, {sT[0]}, {TCH}")
    I(f"s_add_u32 {sT[2]}, {sT[2]}, {sT[1]}")
    I(f"s_mul_i32 {sT[3]}, {sT[0]}, {UCH}")
    I(f"s_add_u32 {sT[3]}, {sT[3]}, {sT[1]}")
    I(f"s_add_u32 {sT[3]}, {sT[3]}, {UB+480}")
    I(f"v_and_b32 {t0}, 7, {vL}")
    I(f"v_mul_u32_u24 {vAa}, {TCOPY}, {t0}")
    I(f"v_bfe_u32 {t0}, {vL}, 3, 1")
    I(f"v_lshrrev_b32 {t1}, 4, {vL}")
    I(f"v_add_u32 {t0}, {t0}, {t1}")
    I(f"v_lshl_add_u32 {vAa}, {t0}, 4, {vAa}")
    I(f"v_add_u32 {vAa}, {sT[2]}, {vAa}")
    I(f"v_and_b32 {t0}, 15, {vL}")
    I(f"v_lshlrev_b32 {t2}, 5, {t0}")
    I(f"v_lshlrev_b32 {vBa}, 4, {t1}")
    I(f"v_sub_u32 {vBa}, {vBa}, {t2}")
    I(f"v_add_u32 {vBa}, {sT[3]}, {vBa}")
    I(f"v_and_b32 {vRW}, 1, {t1}")
    I(f"v_lshlrev_b32 {vRW}, 12, {vRW}")
    I(f"v_add_u32 {vRW}, {vRW}, {t2}")
    I(f"v_lshrrev_b32 {t1}, 1, {t1}")
    I(f"v_lshl_add_u32 {vRW}, {t1}, 4, {vRW}")
    I(f"s_mul_i32 {sT[0]}, {sWv}, {WDW0}")
    I(f"s_add_u32 {sT[0]}, {sT[0]}, {WDS0+REDO}")
    I(f"v_add_u32 {vRW}, {sT[0]}, {vRW}")
    G['convaddr'] = (vAa, vBa, vRW)
def conv_run(hook=None):
    vAa, vBa, vRW = G['convaddr']
    D = Frags(8); FA = [Frags(8, A), AWD[192:224]]; FB = [AWD[160:192], Frags(8)]
    def reads(n):
        b = n & 1; out = []
        for t in range(8):
            out.append(lambda t=t: I(f"ds_read_b128 {FA[b][4*t:4*t+4]}, {vAa} offset:{TAPS + 64*n + 512*t}"))
            out.append(lambda t=t: I(f"ds_read_b128 {FB[b][4*t:4*t+4]}, {vBa} offset:{512*(7-t) + 64*n}"))
        return out
    ctok = {0: [f() for f in reads(0)]}
    cnt = 0
    for n in range(4):
        b = n & 1
        nxt = reads(n+1) if n < 3 else []
        ctok[n+1] = []
        if n < 3: pairs = sorted([(t, jj) for t in range(8) for jj in range(8-t)], key=lambda p: (max(p), p))
        else: pairs = sorted([(t, jj) for t in range(8) for jj in range(8-t)], key=lambda p: (p[0]+p[1], p))
        seen = set(); done = {}
        if n > 0: P.wait(ctok[n])
        for i, (t, jj) in enumerate(pairs):
            P.wait(ctok[n][2*t], ctok[n][2*jj+1])
            j = t + jj
            first = (n == 0 and j not in seen); seen.add(j)
            I(f"v_mfma_f32_16x16x32_bf16 {D[4*j:4*j+4]}, {FA[b][4*t:4*t+4]}, {FB[b][4*jj:4*jj+4]}, {0 if first else D[4*j:4*j+4]}")
            if nxt and i >= 1 and i % 2 == 1: ctok[n+1].append(nxt.pop(0)())
            if n == 3:
                if t == j: done[j] = i
                for jd, idn in list(done.items()):
                    if i >= idn + opt('rdel', 6):
                        I(f"ds_write_b128 {vRW}, {D[4*jd:4*jd+4]} offset:{512*jd}"); del done[jd]
            if hook: hook(cnt)
            cnt += 1
        while nxt: ctok[n+1].append(nxt.pop(0)())
    for jd in sorted(done): I(f"ds_write_b128 {vRW}, {D[4*jd:4*jd+4]} offset:{512*jd}")
    assert G['wd']['nr'] <= 20
    for r in [FA[0], FB[1], vAa, vBa, vRW, D]: r.free()

sX1 = S.alloc(2)
def x1_addr():
    G['vRr'] = V.alloc(); G['vRr2'] = V.alloc(); G['vXw'] = vXw = V.alloc(); G['vXr'] = vXr = V.alloc(); G['vS2'] = vS2 = V.alloc()
    I(f"v_add_u32 {G['vRr']}, {WDS0+REDO}, {vT16}")
    I(f"v_add_u32 {G['vRr2']}, {WDS0+REDO+2*WDW0}, {vT16}")
    I(f"v_bfe_u32 {t0}, {vL}, 2, 1")
    I(f"v_lshl_add_u32 {vXw}, {t0}, 10, {sWDs}")
    I(f"v_lshrrev_b32 {t0}, 3, {vL}")
    I(f"v_lshl_add_u32 {vXw}, {t0}, 7, {vXw}")
    I(f"v_and_b32 {t0}, 3, {vL}")
    I(f"v_lshl_add_u32 {vXw}, {t0}, 4, {vXw}")
    I(f"v_lshl_add_u32 {vXr}, {t0}, 3, {sWDs}")
    I(f"v_bfe_u32 {t0}, {vL}, 4, 1")
    I(f"v_lshl_add_u32 {vXr}, {t0}, 5, {vXr}")
    I(f"v_bfe_u32 {t0}, {vL}, 2, 2")
    I(f"v_lshl_add_u32 {vXr}, {t0}, 6, {vXr}")
    I(f"v_lshl_add_u32 {vXr}, {vHH}, 9, {vXr}")
    I(f"s_lshl_b32 {sX1[0]}, {sGI}, 6")
    I(f"s_add_u32 {sX1[0]}, {sX1[0]}, {sKS}")
    I(f"s_lshl_b32 {sX1[0]}, {sX1[0]}, 10")
    I(f"s_add_u32 {sX1[0]}, {sX1[0]}, {X1T}")
    I(f"s_add_u32 {sX1[1]}, {sX1[0]}, 32768")
    I(f"s_lshl_b32 {sT[0]}, {sGI}, 13")
    I(f"s_lshl_b32 {sT[1]}, {sXJ}, 9")
    I(f"s_add_u32 {sT[0]}, {sT[0]}, {sT[1]}")
    I(f"s_add_u32 {sT[0]}, {sT[0]}, {S2}")
    I(f"s_cmp_eq_u32 {sWv}, 0")
    I(f"s_cselect_b32 {sT[0]}, {sT[0]}, {OOB}")
    I(f"v_lshl_add_u32 {vS2}, {vQ}, 4, {sT[0]}")
    I(f"v_lshl_add_u32 {vS2}, {vHH}, 12, {vS2}")
def C_y():
    Y = Frags(8); yo = Frags(2)
    tl = []
    for c in range(2):
        for kh in range(2):
            for h in range(2):
                tl.append(I(f"ds_read_b128 {Y[16*c+8*kh+4*h:16*c+8*kh+4*h+4]}, {G['vRr2'] if c else G['vRr']} offset:{kh*WDW0 + 4096*h}"))
    C_pre0()
    G['tys'] = []
    for c in range(2):
        P.wait(tl[4*c:4*c+4])
        for e in range(0, 8, 2): I(f"v_pk_add_f32 {Y[16*c+e:16*c+e+2]}, {Y[16*c+e:16*c+e+2]}, {Y[16*c+8+e:16*c+8+e+2]}")
        for n in range(4): I(f"v_cvt_pk_bf16_f32 {yo[4*c+n]}, {Y[16*c+2*n]}, {Y[16*c+2*n+1]}")
        G['tys'].append(I(f"buffer_store_dwordx4 {yo[4*c:4*c+4]}, {vT16}, {rWS}, {sUY[c]} offen {LST}"))
    for r in [Y, yo, G['vRr'], G['vRr2']]: r.free()
def L_y():
    G['YL'] = YL = Frags(2)
    G['tyl'] = [I(f"buffer_load_dwordx4 {YL[4*c:4*c+4]}, {vGS}, {rWS}, {sC4096 if c else 0} offen sc1") for c in range(2)]
    vGS.free()
def C_x1():
    HG, BS, YL = G['HG'], G['BS'], G['YL']
    yf = V.alloc(8); F = Frags(2); q = V.alloc(4)
    for c in range(2):
        P.wait(G['tyl'][c])
        for p in range(4): unpack(yf[2*p], YL[4*c+p], 0); unpack(yf[2*p+1], YL[4*c+p], 1)
        for p in range(4): I(f"v_pk_fma_f32 {BS[8*c+2*p:8*c+2*p+2]}, {HG[8*c+2*p:8*c+2*p+2]}, {yf[2*p:2*p+2]}, {BS[8*c+2*p:8*c+2*p+2]}")
        for p in range(4): I(f"v_cvt_pk_bf16_f32 {YL[4*c+p]}, {BS[8*c+2*p]}, {BS[8*c+2*p+1]}")
        I(f"ds_write_b128 {G['vXw']}, {YL[4*c:4*c+4]} offset:{XTO+64*c}")
    tl = [I(f"ds_read_b64_tr_b16 {F[4*b+2*g:4*b+2*g+2]}, {G['vXr']} offset:{XTO+1024*b+256*g}") for b in range(2) for g in range(2)]
    I(f"v_lshl_add_u32 {t0}, {vL}, 3, {sWDs}")
    G['tx1'] = []
    for b in range(2):
        P.wait(tl[2*b:2*b+2])
        G['tx1'].append(I(f"buffer_store_dwordx4 {F.g[b]}, {vL16}, {rWS}, {sX1[b]} offen sc1"))
    for r in range(4):
        for b in range(2):
            I(f"v_dot2_f32_bf16 {q[2*b]}, {F[4*b+r]}, {sONE}, {0 if r==0 else q[2*b]}")
            I(f"v_dot2_f32_bf16 {q[2*b+1]}, {F[4*b+r]}, {F[4*b+r]}, {0 if r==0 else q[2*b+1]}")
    I(f"v_permlane32_swap_b32 {q[0]}, {q[2]}")
    I(f"v_permlane32_swap_b32 {q[1]}, {q[3]}")
    I(f"v_pk_add_f32 {q[0:2]}, {q[0:2]}, {q[2:4]}")
    I(f"ds_write_b64 {t0}, {q[0:2]} offset:{S2O}")
    for r in (HG, BS, YL, yf, F, q, G['vXw'], G['vXr']): r.free()
def C_s2():
    q = V.alloc(8)
    I(f"v_lshlrev_b32 {t0}, 3, {vL}")
    I(f"v_add_u32 {t0}, {WDS0+S2O}, {t0}")
    tl = [I(f"ds_read_b64 {q[2*w:2*w+2]}, {t0} offset:{WDW0*w}") for w in range(4)]
    P.wait(tl)
    I(f"v_pk_add_f32 {q[0:2]}, {q[0:2]}, {q[2:4]}")
    I(f"v_pk_add_f32 {q[4:6]}, {q[4:6]}, {q[6:8]}")
    I(f"v_add_f32 {q[2]}, {q[1]}, {q[5]}")
    I(f"v_add_f32 {q[0]}, {q[0]}, {q[4]}")
    I(f"v_mov_b32 {q[1]}, {vTag}")
    I(f"v_mov_b32 {q[3]}, {vTag}")
    I(f"buffer_store_dwordx4 {q[0:4]}, {G['vS2']}, {rWS}, 0 offen sc1")
    q.free(); G['vS2'].free()

sRB = S.alloc(); sC1 = S.alloc(); sWsrc = S.alloc(); sWdst = S.alloc()
def A_g1():
    G['vF8'] = vF8 = V.alloc(); G['vPA'] = vPA = V.alloc(); G['vP3'] = vP3 = V.alloc()
    I(f"s_and_b32 {sRB}, {sXJ}, 1")
    I(f"s_lshl_b32 {sRB}, {sRB}, 3")
    I(f"s_lshr_b32 {sT[0]}, {sGI}, 2")
    I(f"s_add_u32 {sRB}, {sRB}, {sT[0]}")
    I(f"s_lshr_b32 {sC1}, {sXJ}, 1")
    I(f"s_lshl_b32 {sC1}, {sC1}, 2")
    I(f"s_and_b32 {sT[0]}, {sGI}, 3")
    I(f"s_add_u32 {sC1}, {sC1}, {sT[0]}")
    I(f"s_lshl_b32 {sT[0]}, {sC1}, 6")
    I(f"v_add_lshl_u32 {vP3}, {vL}, {sT[0]}, {FSH}")
    I(f"s_lshl_b32 {sT[0]}, {sGI}, 5")
    I(f"s_add_u32 {sT[0]}, {sT[0]}, {sKS}")
    I(f"v_lshlrev_b32 {vF8}, 10, {vL}")
    I(f"v_add_lshl_u32 {vF8}, {vF8}, {sT[0]}, {FSH}")
    I(f"v_mov_b32 {t1}, {OOB}")
    I(f"v_cmp_gt_u32 vcc, 4, {vL}")
    I(f"s_lshr_b32 {sT[0]}, {sXJ}, 1")
    I(f"s_lshl_b32 {sT[0]}, {sT[0]}, 4")
    I(f"s_add_u32 {sT[0]}, {sT[0]}, {sRB}")
    I(f"s_lshl_b32 {sT[0]}, {sT[0]}, 1")
    I(f"s_lshr_b32 {sT[1]}, {sWv}, 1")
    I(f"s_add_u32 {sT[0]}, {sT[0]}, {sT[1]}")
    I(f"s_lshl_b32 {sT[0]}, {sT[0]}, 5")
    I(f"v_add_lshl_u32 {vPA}, {vQ}, {sT[0]}, {FSH}")
    I(f"v_cndmask_b32 {vF8}, {t1}, {vF8}, vcc")
    I(f"s_mul_i32 {sWsrc}, {sC1}, 229376")
    I(f"s_lshl_b32 {sWdst}, {sWv}, 12")
    I(f"s_add_u32 {sWsrc}, {sWsrc}, {sWdst}")
    I(f"s_add_u32 {sWsrc}, {sWsrc}, {WP}")
def w_dma(src_off, dst_off, n0=0, n1=4):
    I(f"s_add_u32 m0, {sWdst}, {WL + dst_off}")
    I(f"s_add_u32 {sT[0]}, {sWsrc}, {src_off}")
    return [I(f"buffer_load_dwordx4 {vL16}, {rWS}, {sT[0]} offen offset:{1024*n} sc1 lds") for n in range(n0, n1)]
def wd_burst(n):
    for _ in range(n):
        if not wd_dma():
            wd_read(); wd_dma()
flag_setup(); m_addr()
vpf = V.alloc()
if LOC:
    flag_load(vpf, G['vFp'], F1); flag_load(vpf, G['vFp'], FY); m_loads()
zero_pads(); A_mod(); A_mod2()
conv(); wd_setup(); w_addr(); x1_addr(); st_addr(); A_f3(); A_g1()
if opt('ftouch', 1):
    flag_load(vpf, G['vF3'], F3); flag_load(vpf, G['vF8'], F4)
    I(f"s_lshl_b32 {sT[0]}, {sRB}, 2")
    I(f"s_add_u32 {sT[0]}, {sT[0]}, {sWv}")
    I(f"s_lshl_b32 {sT[0]}, {sT[0]}, 4")
    I(f"s_add_u32 {sT[0]}, {sT[0]}, {sC1}")
    I(f"s_lshl_b32 {sT[0]}, {sT[0]}, {FSH}")
    I(f"v_min_u32 {t0}, 2, {vL}")
    I(f"v_lshl_add_u32 {t0}, {t0}, 16, {sT[0]}")
    flag_load(vpf, t0, F5)
def afterk():
    L_xr(); L_mod()
G['afterk'] = afterk
C_tag(); C_kv(); stamp("kv st")
if opt('cpf', 1): cpa.free(); cpd.free()
L_taps()
C_st(); stamp("st")
C_mod(); stamp("mod1")
P.wait(G['tks']); post_local(G['vFo'], F1)
def midmod():
    stamp("mod2")
    tc = [0]
    def thk():
        tc[0] += 1
        if tc[0] == opt('f1i', 1): G['tpf'] = flag_load(vpf, G['vFp'], F1)
        if tc[0] == opt('f1c', 5):
            check_local(vpf, G['vFp'], G['vFo'], F1, G['tpf']); L_u(); G['tm'] = m_loads()
    C_taps(thk); stamp("taps")
G['midmod'] = midmod
C_mod2()
L_w(); PT.free()
C_u(); stamp("U ok")
P.wait_all(vm=False); I("s_barrier")
stamp("bar")
cside = []
H2, WDC = opt('h2', 4), opt('wdc', 8)
def hook(c):
    if c >= opt('hx', 40) and c < opt('hx', 40) + 16 and c % 2 == 0: L_x1((c - opt('hx', 40))//2)
    if c == opt('hx', 40) + 18: L_d()
    if c == H2: C_m(); cside.extend(m_ops() + [C_w_reads, None, None, None] + wu_ops() + w_ops() + c_ops() + x_ops())
    if c == opt('hst', 100): L_st()
    if c == opt('hf3', 130): assert len(G['tws']) == 4; P.wait(G['tws']); post_flag(G['vF3'], F3); G['vF3'].free()
    W = G['wd']
    if c == opt('wdban', 60): W['ban'] = {6, 7, 8, 9}; W['free'] = [x for x in W['free'] if x < 6]
    if c >= opt('wd0', 16) and c % (WDC//2) == 0 and W['nd'] < opt('wdmax', 8): wd_dma1()
    if c > opt('wdr0', 70) and c % WDC == 2 and W['nr'] < opt('wdrmax', 4): wd_read()
    if c == 107: assert all(W['slot'][n] < 6 for n in range(W['nr'], W['nd'])), "RED slots still in use"
    if opt('cfine') and c in (35, 71, 107): stamp(f'c{c}')
    k = 0
    while cside and k < (1 if (c < 108 and c % 2 == 1) else 2):
        f = cside.pop(0); k += 1
        if f: f()
conv_run(hook)
stamp("conv")
print('cside left', len(cside), file=sys.stderr)
for f in cside:
    if f: f()
P.wait_all(vm=False); I("s_barrier")
C_y(); stamp("y st")
print('wd after conv', G['wd']['nd'], G['wd']['nr'], file=sys.stderr)
vP3 = G['vP3']; vPA = G['vPA']; vp3 = V.alloc()
if opt('wda', 4):
    while wd_read(): pass
    for _ in range(opt('wda', 4)): wd_dma()
C_pre1()
P.wait(G['tys']); post_local(G['vFo'], FY); stamp("FY post")
C_pre2(0)
tpf = flag_load(vpf, G['vFp'], FY)
tp3 = flag_load(vp3, vP3, F3)
C_pre2(1)
check_local(vpf, G['vFp'], G['vFo'], FY, tpf); G['vFp'].free(); G['vFo'].free(); vTagL.free(); vpf.free()
L_y(); stamp("FY ok")
wch = {}
def w_group(): i = len(wch); wch[i] = w_dma(16384*i, 16384*i)
F3E = opt('f3e', 1)
def f3chk():
    check_tags([vp3], lambda: flag_load(vp3, vP3, F3), tp3)
if F3E:
    f3chk()
    for _ in range(opt('w1', 2)): w_group()
C_c12b()
C_x1(); stamp("x1 st")
if not F3E: f3chk()
for _ in range(opt('w15', 2)): w_group()
while wd_read(): pass
P.wait(G['tx1']); post_flag(G['vF8'], F4); G['vF8'].free()
stamp("F4 post")
sDQ = S.alloc(); gb2 = V.alloc(4); vGb = V.alloc(); vGB = V.alloc()
I(f"s_and_b32 {sT[3]}, {sWv}, 1")
I(f"s_lshl_b32 {sT[3]}, {sT[3]}, 5")
I(f"s_lshl_b32 {sDQ}, {sDB}, 6")
I(f"s_add_u32 {sDQ}, {sDQ}, {sT[3]}")
I(f"s_lshl_b32 {sT[0]}, {sDQ}, 3")
I(f"s_add_u32 {sT[0]}, {sT[0]}, {MODG + 5*16384}")
I(f"v_lshl_add_u32 {vGb}, {vQ}, 3, {sT[0]}")
I(f"v_lshl_add_u32 {vGb}, {vHH}, 13, {vGb}")
def gb_ld():
    return [I(f"buffer_load_dwordx2 {gb2[2*n:2*n+2]}, {vGb}, {rWS}, {sC4096 if n else 0} offen sc1") for n in range(2)]
tgb = gb_ld()
P.wait_all(vm=False); I("s_barrier")
C_s2()
while len(wch) < 5: w_group()
I("s_barrier")
NPRE = opt('npre', 8); NP4 = opt('np4', 7)
vp4 = V.alloc()
while len(wch) < NPRE:
    if len(wch) == NP4: tp4 = flag_load(vp4, vPA, F4)
    w_group()
if NP4 >= NPRE: tp4 = flag_load(vp4, vPA, F4)
stamp("W pre")
for r in (rK, rV, rSH): r.free()
sXsrc = S.alloc(); sXdst = S.alloc(); sSB = S.alloc(); sHS = S.alloc(); sSG = S.alloc()
I(f"s_lshl_b32 {sSB}, {sRB}, 2")
I(f"s_add_u32 {sSB}, {sSB}, {sWv}")
I(f"s_lshl_b32 {sXsrc}, {sSB}, 15")
I(f"s_add_u32 {sXsrc}, {sXsrc}, {X1T}")
I(f"s_mul_i32 {sXdst}, {sWv}, {XSW}")
I(f"s_add_u32 {sXdst}, {sXdst}, {XS}")
I(f"s_mul_i32 {sHS}, {sSB}, 112")
I(f"s_mul_i32 {sT[0]}, {sC1}, 7")
I(f"s_add_u32 {sHS}, {sHS}, {sT[0]}")
I(f"s_lshl_b32 {sHS}, {sHS}, 10")
I(f"s_add_u32 {sHS}, {sHS}, {HH}")
I(f"s_lshl_b32 {sSG}, {sSB}, 12")
I(f"s_add_u32 {sSG}, {sSG}, {S2}")
ACC = [V.alloc(16) for _ in range(NA+2)]
vAd = V.alloc(); vAd2 = V.alloc(); vEx = V.alloc(); vL16b = V.alloc(); vF5 = V.alloc()
I(f"v_bfe_u32 {t0}, {vL}, 2, 3")
I(f"v_lshlrev_b32 {vAd}, 7, {t0}")
I(f"v_bfe_u32 {t0}, {vL}, 4, 1")
I(f"v_xor_b32 {t0}, {t0}, {vHH}")
I(f"v_lshl_add_u32 {vAd}, {t0}, 6, {vAd}")
I(f"v_and_b32 {t0}, 3, {vL}")
I(f"v_lshl_add_u32 {vAd}, {t0}, 4, {vAd}")
I(f"v_add_u32 {vAd2}, 65536, {vAd}")
I(f"v_lshlrev_b32 {vEx}, 4, {vQ}")
I(f"v_add_u32 {vEx}, {EX}, {vEx}")
I(f"v_add_u32 {vL16b}, 4096, {vL16}")
vCl = V.alloc(); vCe = V.alloc(); sCL = S.alloc()
I(f"s_mul_i32 {sCL}, {sC1}, {8*1792}")
I(f"s_mul_i32 {sT[0]}, {sWv}, 448")
I(f"s_add_u32 {sCL}, {sCL}, {sT[0]}")
I(f"s_add_u32 {sCL}, {sCL}, {C12}")
I(f"v_min_u32 {t0}, 27, {vQ}")
I(f"v_mul_u32_u24 {vCl}, {4*1792}, {vHH}")
I(f"v_lshl_add_u32 {vCl}, {t0}, 4, {vCl}")
I(f"s_and_b32 {sT[0]}, {sWv}, 1")
I(f"s_mul_i32 {sT[0]}, {sT[0]}, 56")
I(f"v_lshl_add_u32 {t0}, {t0}, 1, {vHH}")
I(f"v_add_u32 {t0}, {sT[0]}, {t0}")
I(f"s_lshr_b32 {sT[0]}, {sWv}, 1")
I(f"s_lshl_b32 {sT[0]}, {sT[0]}, 8")
I(f"s_add_u32 {sT[0]}, {sT[0]}, {EX}")
I(f"v_and_b32 {t1}, 15, {t0}")
I(f"v_lshl_add_u32 {vCe}, {t1}, 4, {sT[0]}")
I(f"v_lshrrev_b32 {t0}, 4, {t0}")
I(f"v_lshl_add_u32 {vCe}, {t0}, 9, {vCe}")
I(f"s_lshl_b32 {sT[0]}, {sSB}, 4")
I(f"s_add_u32 {sT[0]}, {sT[0]}, {sC1}")
I(f"s_lshl_b32 {sT[0]}, {sT[0]}, {FSH}")
lane0(vF5, sT[0], t1)
if G['wd']['nr'] < 28: wd_rebase(sXdst, 3)
for _ in range(opt('wdb', 0)): wd_dma()
check_tags([gb2[1], gb2[3]], gb_ld, tgb)
I(f"v_add_f32 {gb2[0]}, {gb2[0]}, {gb2[2]}")
I(f"v_mov_b32 {gb2[1]}, {gb2[0]}")
I(f"v_permlane32_swap_b32 {gb2[0]}, {gb2[1]}")
I(f"v_add_f32 {gb2[0]}, {gb2[0]}, {gb2[1]}")
round_bf16(vGB, gb2[0])
gb2.free(); vGb.free()
check_tags([vp4], lambda: flag_load(vp4, vPA, F4), tp4)
vPA.free(); vp4.free()
published = set(g for g in wch if wch[g][-1][1] < P.vm_done)
stamp("F4 ok")

Bf = Frags(32)
btok = {}
def b_next():
    ks = len(btok)
    if ks >= 32: return False
    if ks and ks % 4 == 0: I(f"s_add_u32 {sXsrc}, {sXsrc}, 4096")
    btok[ks] = I(f"buffer_load_dwordx4 {Bf.g[ks]}, {vL16}, {rWS}, {sXsrc} offen offset:{1024*(ks&3)} sc1")
    return True
for _ in range(opt('b0', 12)): b_next()
I("s_barrier")
AR = A.reserve(224, 32)
SGX = Frags(4); BX = SGX.g[0]; hp = SGX.g[1]; vRS2 = V.alloc()
TMP = ACC[NA+1]
jobs = [(it, ks, ks*NA+it) for ks in range(32) for it in range(NA)]
XD = opt('xd', 22)
tl_ = [(NA, ks, NA*32 + ks) for ks in range(32)]
jobs += tl_[:XD] + [(it, 'x', None) for it in range(NA+1)] + tl_[XD:]
for it in range(NA+1, 7):
    jobs += [(it, 'x', None)] + [(it, ks, it*32 + ks) for ks in range(32)]
NJ = len(jobs); TT = {it: 33*it for it in range(NA, 8)}; T4, T5, T6 = 132, 165, 198; XA = 32*NA + XD
first_job = {}; last_job = {}
for n, (it, ks, fr) in enumerate(jobs):
    if fr is not None:
        first_job.setdefault(fr//16, n); last_job[fr//16] = n
accmap = {it: it % (NA+2) for it in range(7)}
def job_read(n):
    it, ks, fr = jobs[n]
    dst = AR[4*(n%8):4*(n%8)+4]
    if ks == 'x': return I(f"ds_read_b128 {dst}, {vEx} offset:{512*it}")
    assert fr//16 in published, (n, fr)
    off = ((fr//16) % NG)*16384 + (fr % 16)*1024
    if off < 65536: return I(f"ds_read_b128 {dst}, {vAd} offset:{off}")
    return I(f"ds_read_b128 {dst}, {vAd2} offset:{off-65536}")
LOOK = 6
atok = {}
for n in range(LOOK): atok[n] = job_read(n)
stamp("g1 start")

class VM:
    def __init__(self, f): self.f = f
    def __call__(self): return self.f()
side = []
def c12_ops():
    ops = []; tk = []
    CL = TMP
    def l(g):
        if g == 2: I(f"s_add_u32 {sCL}, {sCL}, 3584")
        tk.append(I(f"buffer_load_dwordx4 {CL[4*g:4*g+4]}, {vCl}, {rWS}, {sCL} offen offset:{(g&1)*1792} sc1"))
    for g in range(4): ops.append(lambda g=g: l(g))
    ops2 = [lambda: P.wait(tk)]
    for st in (2, 1):
        for g in range(st):
            for h in range(4):
                ops2.append(lambda g=g, st=st, h=h: I(f"v_add_f32 {CL[4*g+h]}, {CL[4*g+h]}, {CL[4*(g+st)+h]}"))
    ops2.append(None)
    for h in range(2): ops2.append(lambda h=h: I(f"v_permlane32_swap_b32 {CL[h]}, {CL[2+h]}"))
    for h in range(2): ops2.append(lambda h=h: I(f"v_add_f32 {CL[h]}, {CL[h]}, {CL[2+h]}"))
    seq = [f"v_cvt_pk_bf16_f32 {CL[5]}, {CL[0]}, {CL[1]}",
           f"v_lshlrev_b32 {CL[2]}, 16, {CL[5]}",
           f"v_and_b32 {CL[3]}, {sHI}, {CL[5]}",
           f"v_sub_f32 {CL[0]}, {CL[0]}, {CL[2]}",
           f"v_sub_f32 {CL[1]}, {CL[1]}, {CL[3]}",
           f"v_cvt_pk_bf16_f32 {CL[4]}, {CL[2]}, {CL[0]}",
           f"v_cvt_pk_bf16_f32 {CL[6]}, {CL[1]}, {CL[3]}",
           f"v_mov_b32 {CL[7]}, 0"]
    for s_ in seq: ops2.append(lambda s_=s_: I(s_))
    ops2.append(lambda: G.__setitem__('tex', I(f"ds_write_b128 {vCe}, {CL[4:8]}")))
    ops2.append(lambda: (vCl.free(), vCe.free()))
    return ops, ops2
def sg_loads(j0=0, j1=4):
    return [I(f"buffer_load_dwordx4 {SGX.g[j]}, {vL16}, {rWS}, {sSG} offen offset:{1024*j} sc1") for j in range(j0, j1)]
def stats2_ops(tk):
    ops = [lambda: check_tags([SGX[2*i+1] for i in range(8)], sg_loads, tk)] + [None]*6
    for j in range(2):
        for i in (0, 2): ops.append(lambda i=i, j=j: I(f"v_add_f32 {SGX[4*j+i]}, {SGX[4*j+i]}, {SGX[8+4*j+i]}"))
    Z = SGX.g[2]; a, b, c, d = Z[0], Z[1], Z[2], Z[3]; e = SGX.g[3][0]
    seq = [f"v_add_f32 {a}, {SGX[0]}, {SGX[4]}", f"v_add_f32 {c}, {SGX[2]}, {SGX[6]}",
           f"v_mov_b32 {b}, {a}", f"v_mov_b32 {d}, {c}", None,
           f"v_permlane32_swap_b32 {a}, {b}", f"v_permlane32_swap_b32 {c}, {d}",
           f"v_add_f32 {a}, {a}, {b}", f"v_add_f32 {c}, {c}, {d}",
           f"v_mul_f32 {b}, 0xbb000000, {a}", f"v_mul_f32 {c}, 0x3b000000, {c}",
           f"v_fma_f32 {d}, -{b}, {b}, {c}", f"v_max_f32 {d}, 0, {d}", f"v_add_f32 {d}, 0x3727c5ac, {d}",
           f"v_sqrt_f32 {c}, {d}", f"v_rcp_f32 {vRS2}, {d}",
           f"v_cmp_eq_u32 vcc, 0, {vHH}",
           f"v_mov_b32 {BX[3]}, 0",
           f"v_cndmask_b32 {b}, 0, {b}, vcc", f"v_cndmask_b32 {c}, 0, {c}, vcc",
           f"v_cvt_pk_bf16_f32 {BX[0]}, {b}, {b}",
           f"v_cvt_pk_bf16_f32 {e}, {c}, {c}",
           f"v_and_b32 {a}, {sHI}, {BX[0]}", f"v_and_b32 {e}, {sHI}, {e}",
           f"v_sub_f32 {b}, {b}, {a}", f"v_sub_f32 {c}, {c}, {e}",
           f"v_cvt_pk_bf16_f32 {BX[1]}, {b}, {e}",
           f"v_cvt_pk_bf16_f32 {BX[2]}, {e}, {c}"]
    for s_ in seq: ops.append((lambda s_=s_: I(s_)) if s_ else None)
    return ops
hst = {}
def epilogue(it):
    ac = ACC[accmap[it]]; ops = []
    for r in range(8): ops.append(lambda r=r: I(f"v_mul_f32 {ac[r]}, {ac[r]}, {ac[8+r]}"))
    for r in range(8): ops.append(lambda r=r: I(f"v_mul_f32 {ac[r]}, {ac[r]}, {vRS2}"))
    for n in range(4): ops.append(lambda n=n: I(f"v_cvt_pk_bf16_f32 {hp[n]}, {ac[2*n]}, {ac[2*n+1]}"))
    def st():
        G['lastst'] = G['now']
        hst[it] = I(f"buffer_store_dwordx4 {hp}, {vL16 if it < 4 else vL16b}, {rWS}, {sHS} offen offset:{1024*(it&3)} sc1")
    ops.append(VM(st)); ops.append(None)
    return ops
def lvl_flag(level, tiles):
    def f():
        P.wait([hst[t] for t in tiles])
        post_flag(vF5, F5 + level*0x10000)
    return f
def epoch_store():
    I(f"s_or_b32 {sT[0]}, s2, {sWv}")
    I(f"s_cselect_b32 {sT[0]}, {OOB}, {EPOCH}")
    lane0(t0, sT[0], t1)
    I(f"buffer_store_dword {vTag}, {t0}, {rWS}, 0 offen sc1")
sSQ = S.alloc(); sH0 = S.alloc(); sH1 = S.alloc()
ht = {}; hreg = {}; hfree = []
def h_load(i, st):
    c, it = order[i]; n = c*7 + it
    hreg[i, st] = r = hfree.pop(0)
    I(f"s_add_u32 {sT[0]}, {sH1 if st else sH0}, {1024*n}")
    ht[i, st] = I(f"buffer_load_dwordx4 {r}, {vL16}, {rWS}, {sT[0]} offen sc1")
def g2_setup_ops():
    seq = [f"s_lshr_b32 {sT[3]}, {sWv}, 1", f"s_lshl_b32 {sSQ}, {sR64}, 1", f"s_add_u32 {sSQ}, {sSQ}, {sT[3]}",
           f"s_mul_i32 {sT[4]}, {sWv}, 28", f"s_mul_i32 {sH0}, {sSQ}, 112", f"s_add_u32 {sH0}, {sH0}, {sT[4]}",
           f"s_lshl_b32 {sH0}, {sH0}, 10", f"s_add_u32 {sH0}, {sH0}, {HH}",
           f"s_xor_b32 {sT[3]}, {sSQ}, 1", f"s_mul_i32 {sH1}, {sT[3]}, 112", f"s_add_u32 {sH1}, {sH1}, {sT[4]}",
           f"s_lshl_b32 {sH1}, {sH1}, 10", f"s_add_u32 {sH1}, {sH1}, {HH}",
           f"v_and_b32 {t1}, 1, {vL}", f"v_lshlrev_b32 {t1}, 4, {t1}", f"v_bfe_u32 {t2}, {vL}, 1, 2", f"v_add_u32 {t1}, {t1}, {t2}",
           f"s_lshl_b32 {sT[3]}, {sR64}, 5", f"s_lshl_b32 {sT[4]}, {sWv}, 2", f"s_add_u32 {sT[3]}, {sT[3]}, {sT[4]}",
           f"v_add_lshl_u32 {vP5}, {t1}, {sT[3]}, {FSH}"]
    return [(lambda x=x: I(x)) for x in seq]
def res_loads():
    I(f"s_lshl_b32 {sT[0]}, {sSQ}, 15")
    I(f"s_lshl_b32 {sT[1]}, {sDQ}, 6")
    I(f"s_add_u32 {sT[0]}, {sT[0]}, {sT[1]}")
    I(f"s_add_u32 {sT[0]}, {sT[0]}, {X1T}")
    I(f"v_lshl_add_u32 {t0}, {vHH}, 9, {vL16}")
    G['txq'] = [I(f"buffer_load_dwordx4 {XQ[4*n:4*n+4]}, {t0}, {rWS}, {sT[0]} offen offset:{512*n} sc1") for n in range(2)]
c12a, c12b = c12_ops()
sgt = []
wq = []
VSP, BL, WD0, WDL = opt('vsp', 2), opt('bl', 36), opt('wdg', 4), opt('wdl', 20)
vq = []; lastv = -99; lastd = -99
WP_, WDP_, HP0 = opt('wp', 6), opt('wdp', 3), opt('hp0', T6+20)
N6, NC1, NS1, NC2, NS2 = opt('n6', 6), opt('nc1', XA-64), opt('ns1', XA-58), opt('nc2', XA-38), opt('ns2', XA-26)
nextg = NPRE; lastw = -99
for n, (it, ks, fr) in enumerate(jobs):
    need = [g for g in first_job if g not in published and first_job[g] - LOOK <= n + 1]
    freeable = nextg < 14 and (nextg - NG < 0 or last_job[nextg-NG] < n) and n % opt('fb', 32) == opt('fbo', 24)
    exw = (n == XA - 8)
    if exw: assert 'tex' in G
    if need or freeable or exw:
        ready = [g for g in wch if g not in published and len(wch[g]) == 4 and (g in need or wch[g][-1][1] < P.vm_done)]
        for g in need: assert g in ready, (n, g)
        P.wait([wch[g] for g in ready], atok[n], G.get('tex') if exw else None)
        I("s_barrier"); published |= set(ready)
        if opt('dbg'): print(f'\nbar n={n} need={need} ready={ready} lastst', G.get('lastst'), file=sys.stderr)
        while nextg < 14 and (nextg - NG < 0 or last_job[nextg-NG] < n):
            wch[nextg] = []
            for q in range(4): wq.append((first_job[nextg] - opt('wlead', 200), first_job[nextg], lambda g=nextg, q=q: wch[g].extend(w_dma(16384*g, 16384*(g % NG), q, q+1))))
            nextg += 1
    if n in ((32, 64, 96, 128, T5, T6) if not opt('fine') else tuple(range(8, 231, 8))): stamp(f"n{n}")
    if 'win' in OPT and opt('win') <= n < opt('win') + 56*opt('wst', 1) and (n - opt('win')) % opt('wst', 1) == 0: stamp(f'w_{n}'); I(f'; job {n}')
    if n % 2 == 0: P.wait(atok[n], atok.get(n+1), btok.get(ks))
    else: P.wait(atok[n], btok.get(ks))
    ac = ACC[accmap[it]]
    bsrc = BX if ks == 'x' else Bf[4*ks:4*ks+4]
    first = (ks == 0 and it <= NA) or (ks == 'x' and it > NA)
    I(f"v_mfma_f32_32x32x16_bf16 {ac}, {AR[4*(n%8):4*(n%8)+4]}, {bsrc}, {0 if first else ac}")
    if it == 6 and ks != 'x': hfree.append(Bf.g[ks])
    if n + LOOK < NJ: atok[n+LOOK] = job_read(n+LOOK)
    budget = 4
    G['now'] = n
    Wd = G['wd']; vm0 = P.vm
    if n - lastv >= VSP and not any(isinstance(x, VM) for x in side[:3]):
        bdue = len(btok) < 32 and len(btok)*NA - n < BL
        if vq: vq.pop(0)(); budget = 2
        elif bdue: b_next(); budget = 2
        elif wq and wq[0][1] - n < opt('wurg', 300): wq.pop(0)[2](); budget = 1
        elif G.get('l0') and len(hfree) > 1 and len(ht) < 32:
            i = len(ht); h_load(i//2, i % 2); budget = 2
        elif n >= WD0 and n - lastd >= WDP_ and wd_dma1(): lastd = n; budget = 0
        elif wq and n >= wq[0][0]: wq.pop(0)[2](); budget = 1
    if P.vm == vm0 and Wd['nr'] < Wd['nd'] and n - Wd['ti'].get(Wd['nr'], -99) >= WDL: wd_read(); budget = 0
    if n == N6: vq += [epoch_store]
    if n == NC1 - 24: vq += [lambda: G.__setitem__('tp6', flag_load(vp3, vP3, F4))]
    if n == NC1: side += [lambda: (check_tags([vp3], lambda: flag_load(vp3, vP3, F4), G['tp6']), vp3.free(), vP3.free(), vq.extend(c12a))]
    if n == NS1:
        for j in range(4): vq += [lambda j=j: sgt.extend(sg_loads(j, j+1))]
    if n == NC2: side += c12b
    if n == NS2: side += stats2_ops(sgt)
    if n == XA - 1: assert not side, len(side)
    if n == XA + NA + 1:
        SGX.g[2].free(); SGX.g[3].free()
        XQ = Frags(2); vP5 = V.alloc(); vp5 = V.alloc()
        for e in range(NA): side += epilogue(e)
    if n == T4 + 4: side += g2_setup_ops()
    for e in range(NA, 6):
        if n == TT[e+1] + 3: side += epilogue(e)
    if n == opt('l0p', 178): vq += [lvl_flag(0, (0, 1, 2, 3))]
    if opt('l1p', 0) and n == T6 + opt('l1p', 0): side += [lvl_flag(1, (4, 5))]
    if n == HP0 - opt('l0w', 18): vq += [lambda: G.__setitem__('tp5', flag_load(vp5, vP5, F5))]
    if n == HP0: side += [lambda: (check_tags([vp5], lambda: flag_load(vp5, vP5, F5), G['tp5']), G.__setitem__('l0', True), vq.append(res_loads))]
    k = 0
    while side and k < budget:
        if isinstance(side[0], VM) and (P.vm != vm0 or n - lastv < VSP): break
        f = side.pop(0); k += 1
        if f: f()
    if P.vm != vm0: lastv = n
    for e in range(NA+2, 7):
        if n == TT[e] - 1: assert e - NA - 2 in hst
for f in side:
    if f: f()
for f in vq: f()
if G['wd'].get('half'): wd_dma1()
assert not wq
print('wd progress', G['wd']['nd'], G['wd']['nr'], 'hh early', len(ht), file=sys.stderr)
def h_next():
    i = len(ht)
    if i < G['hlim'] and hfree: h_load(i//2, i % 2); return True
    return False
G['hlim'] = 32
h_next(); h_next()
for f in epilogue(6):
    if f: f()
stamp("g1 done")
for r in ACC + [BX, vRS2, vAd, vAd2, vEx]: r.free()
I("s_barrier")

GA = [V.alloc(16) for _ in range(4)]
HD = opt('hd', 20)
while len(ht) < opt('hd0', 10): h_next()
P1, P1C, P2, P2C = opt('p1', 5), opt('p1c', 11), opt('p2', 13), opt('p2c', 19)
mj = [(i, q) for i in range(24) for q in range(4)] + [(i, q) for q in (1, 2, 3, 0) for i in range(24, 28)]
red = []
for m, (i, q) in enumerate(mj):
    c, it = order[i]; n = c*7 + it; dt, st = q & 1, q >> 1
    if (i, st) not in ht:
        raise RuntimeError(f"hh {i} not issued")
    if opt('gfine') and m % 8 == 0: stamp(f'm{m}')
    P.wait(ht[i, st], G['wd']['rd'][i])
    I(f"v_mfma_f32_32x32x16_bf16 {GA[q]}, {AWD[8*i+4*dt:8*i+4*dt+4]}, {hreg[i, st]}, {0 if i==0 else GA[q]}")
    if i < 24 and dt == 1: hfree.append(hreg[i, st])
    G['now'] = NJ + 8 + m; Wd = G['wd']
    if m % 2 == 0 and Wd['nr'] < 28:
        if Wd['nr'] < Wd['nd'] and G['now'] - Wd['ti'].get(Wd['nr'], -99) >= WDL: wd_read()
        else: wd_dma1()
    if len(ht) < 2*i + HD + 2 and (m % 2 == 1 or len(ht) < 2*i + opt('hmin', 10)): h_next()
    if q == 0 and i < 24:
        if i == P1: G['tp'] = flag_load(vp5, vP5, F5 + 0x10000)
        if i == P1C:
            check_tags([vp5], lambda: flag_load(vp5, vP5, F5 + 0x10000), G['tp']); G['hlim'] = 48; opt('gfine') or stamp("L1 ok")
        if i == P2: G['tp'] = flag_load(vp5, vP5, F5 + 0x20000)
        if i == P2C:
            check_tags([vp5], lambda: flag_load(vp5, vP5, F5 + 0x20000), G['tp']); G['hlim'] = 56; opt('gfine') or stamp("L2 ok")
        if i == 0 and not opt('l1p', 0): lvl_flag(1, (4, 5))()
        if i == opt('l2p', 6): lvl_flag(2, (6,))()
        if i == 2:
            I(f"v_lshl_add_u32 {t0}, {vQ}, 2, {sXdst}")
            I(f"ds_write_b32 {t0}, {vGB} offset:6144")
        if i == 20:
            G['GB'] = GB = [hfree.pop() for _ in range(4)]
            I(f"v_lshlrev_b32 {t1}, 6, {vHH}")
            I(f"v_add_u32 {t1}, {sXdst}, {t1}")
            for n_ in range(4): I(f"ds_read_b128 {GB[n_]}, {t1} offset:{6144+16*n_}")
        if i == 21:
            G['XF'] = XF = [hfree.pop() for _ in range(4)]
            P.wait(G['txq'])
            for rho in range(8):
                red.append(lambda rho=rho: (unpack(XF[rho//2][2*(rho%2)], XQ[rho], 0), unpack(XF[rho//2][2*(rho%2)+1], XQ[rho], 1)))
        if i == 23:
            G['RA'] = RA = hfree.pop()
            for qq in range(1, 4):
                red.append(lambda qq=qq: (I(f"s_xor_b32 {sT[0]}, {sWv}, {qq}"), I(f"s_mul_i32 {sT[0]}, {sT[0]}, 12288"), I(f"v_add_u32 {RA[qq]}, {sT[0]}, {vL16}")))
            red.append(lambda: (I(f"s_mul_i32 {sT[0]}, {sWv}, 12288"), I(f"v_add_u32 {RA[0]}, {sT[0]}, {vL16}")))
            red.append(lambda: (I(f"s_lshl_b32 {sT[2]}, {sSQ}, 15"), I(f"s_lshl_b32 {sT[1]}, {sDQ}, 1"), I(f"s_add_u32 {sT[2]}, {sT[2]}, {sT[1]}"), I(f"s_add_u32 {sT[3]}, {sT[2]}, 16384")))
            red.append(lambda: (I(f"v_lshrrev_b32 {t1}, 2, {vL}"), I(f"v_lshlrev_b32 {t1}, 10, {t1}"), I(f"v_and_b32 {t2}, 3, {vL}"), I(f"v_lshl_add_u32 {t1}, {t2}, 4, {t1}")))
            red.append(lambda: (I(f"v_lshlrev_b32 {t2}, 6, {vQ}"), I(f"v_lshl_add_u32 {t2}, {vHH}, 5, {t2}"), I(f"v_add_u32 {t2}, {sXdst}, {t2}"), I(f"v_add_u32 {t0}, {sXdst}, {vL16}")))
    if m >= 101 and (m - 101) // 4 < 2:
        qq = (m - 101)//4 + 1; r = (m - 101) % 4
        I(f"ds_write_b128 {G['RA'][qq]}, {GA[qq][4*r:4*r+4]} offset:{(qq-1)*4096 + r*1024}")
    elif m >= 109:
        r = m - 109
        I(f"ds_write_b128 {G['RA'][3]}, {GA[3][4*r:4*r+4]} offset:{2*4096 + r*1024}")
    elif red: red.pop(0)()
assert not red
I(f"ds_write_b128 {G['RA'][3]}, {GA[3][12:16]} offset:{2*4096 + 3*1024}")
stamp("g2 mfma")
GB, XF, RA = G['GB'], G['XF'], G['RA']
P.wait_all(vm=False)
I("s_barrier")
tl = {}
for r in range(4):
    tl[r] = [I(f"ds_read_b128 {GA[q][4*r:4*r+4]}, {RA[0]} offset:{(q-1)*4096 + r*1024}") for q in range(1, 4)]
OST = OPT.get('ost', '')
for r in range(4):
    P.wait(tl[r])
    for h in (0, 2): I(f"v_pk_add_f32 {GA[1][4*r+h:4*r+h+2]}, {GA[1][4*r+h:4*r+h+2]}, {GA[2][4*r+h:4*r+h+2]}")
    for h in (0, 2): I(f"v_pk_add_f32 {GA[0][4*r+h:4*r+h+2]}, {GA[0][4*r+h:4*r+h+2]}, {GA[3][4*r+h:4*r+h+2]}")
    for h in (0, 2): I(f"v_pk_add_f32 {GA[0][4*r+h:4*r+h+2]}, {GA[0][4*r+h:4*r+h+2]}, {GA[1][4*r+h:4*r+h+2]}")
    for h in (0, 2): I(f"v_pk_fma_f32 {XF[r][h:h+2]}, {GA[0][4*r+h:4*r+h+2]}, {GB[r][h:h+2]}, {XF[r][h:h+2]}")
    for h in (0, 2): I(f"v_cvt_pk_bf16_f32 {XQ[2*r+h//2]}, {XF[r][h]}, {XF[r][h+1]}")
    if r % 2: I(f"ds_write_b128 {t2}, {XQ[2*r-2:2*r+2]} offset:{4096 + 8*(r-1)}")
tl = [I(f"ds_read_b128 {GB[h]}, {t0} offset:{4096+1024*h}") for h in range(2)]
for h in range(2):
    P.wait(tl[h])
    I(f"buffer_store_dwordx4 {GB[h]}, {t1}, {rOUT}, {sT[2+h]} offen {OST}")
stamp("end")
if TSTAMP:
    P.wait_all()
    stamp("drained")
    n = nts[0]
    I("s_waitcnt lgkmcnt(0)")
    I(f"v_writelane_b32 {vTs}, {sTp[n&1][0]}, {n-2}")
    I(f"v_writelane_b32 {vTs}, {sTp[(n+1)&1][0]}, {n-1}")
    I(f"v_subrev_u32 {vTs}, {sT0[0]}, {vTs}")
    I(f"s_memrealtime {sTp[0]}")
    I("s_waitcnt lgkmcnt(0)")
    I(f"v_writelane_b32 {vTs}, {sR0[0]}, 62")
    I(f"v_writelane_b32 {vTs}, {sTp[0][0]}, 63")
    I(f"v_writelane_b32 {vTs}, {sSpin}, 61")
    I(f"s_lshl_b32 {sT[0]}, s2, 10")
    I(f"s_add_u32 {sT[0]}, {sT[0]}, {TS}")
    I(f"v_lshlrev_b32 {t0}, 2, v0")
    I(f"buffer_store_dword {vTs}, {t0}, {rWS}, {sT[0]} offen")
    print(f"\nNTS={n}", file=sys.stderr)
if PROBE:
    I("s_waitcnt lgkmcnt(0)")
    I(f"s_sub_u32 {sT[0]}, {sTp[0][0]}, {sT0[0]}")
    I(f"s_min_u32 {sT[0]}, {sT[0]}, 100000")
    I(f"s_memrealtime {sT0}")
    I("L_spin:")
    I(f"s_memrealtime {sTp[0]}")
    I("s_waitcnt lgkmcnt(0)")
    I(f"s_sub_u32 {sT[1]}, {sTp[0][0]}, {sT0[0]}")
    I(f"s_cmp_lt_u32 {sT[1]}, {sT[0]}")
    I("s_cbranch_scc1 L_spin")
I("L_end:")
I("s_endpgm")
P.ins.extend(slow)
if opt('cpf', 1):
    I(".fill 1536, 4, 0xbf800000")

body = P.finalize()
ref = open(f"cdna_kernels/{NAME}.s.ref").read()
hdr = "".join(l + "\n" for l in ref.split("\n") if l.startswith(";") and "@launch" not in l)
out = hdr + f"; @launch grid=(256,1,1) block=(256,1,1) lds={LDS_SIZE}\n"
out += f"""; NTS={nts[0] if TSTAMP else 0} LAYOUT=10 WSOFF={WSOFF}
.amdgcn_target "amdgcn-amd-amdhsa--gfx950"
.text
.globl {NAME}_kernel
.p2align 8
.type {NAME}_kernel,@function
{NAME}_kernel:
{body}
.section .rodata,"a"
.p2align 6
.amdhsa_kernel {NAME}_kernel
  .amdhsa_next_free_vgpr 512
  .amdhsa_next_free_sgpr 102
  .amdhsa_accum_offset 256
  .amdhsa_group_segment_fixed_size 0
  .amdhsa_kernarg_size 120
  .amdhsa_user_sgpr_count 2
  .amdhsa_user_sgpr_kernarg_segment_ptr 1
  .amdhsa_system_sgpr_workgroup_id_x 1
.end_amdhsa_kernel
"""
dst = [a for a in sys.argv[1:] if not a.startswith('--')][0]
open(dst, "w").write(out)
print(f"instrs {len(P.ins)} nops {P.nops} vgpr hi {V.hi} sgpr hi {S.hi}", file=sys.stderr)
```

```python
import sys
from dsl import *

NAME = "adaLN_cond__ssm_conv_h3__glu_gated_bilinear__prompt"
OPT = {}
for a_ in sys.argv[1:]:
    if a_.startswith('--'):
        k, _, v = a_[2:].partition('='); OPT[k] = v if v else '1'
def opt(k, d=0): return type(d)(OPT.get(k, d))
TSTAMP = opt('ts')
PROBE = tuple(int(x) for x in OPT['probe'].split(',')) if 'probe' in OPT else None
TSOP = 's_memrealtime' if opt('rt') else 's_memtime'
NT = "nt" if opt('nt') else ""

EPOCH=0; F3=0x10000; F4=0x40000; F5=0x60000; F1=0x800000; FY=0x820000; S2=0x840000
MODG=0x90000; STG=0xA8000; C12=0xB0000; MODL2=0x880000
KVG=0x100000; XG=0x500000; X1T=0x900000; WP=0xB00000; WDP=0xF00000; HH=0x1100000; SG=0x1800000; TS=0x1900000
WS_SIZE=0x1A00000
OOB=0x80000000
FSH=opt('fsh', 4); F6=0x18000 if FSH <= 5 else 0xF0000
UB=0; UCH=4608; MODL=9216; CBL=10240; C12L=11264
TAPS=15360; TCOPY=4160; TCH=33280
RED=131072
WL=0; XS=131072; XSW=7168; EX=159744; NG=8
XTO=8192; C12O=10240; CBO=11264; S2O=11776
WDS0=81920; WDW0=20480; REDO=12288
LDS_SIZE=163840
NA = opt('na', 3)

P = Prog(); I = P.I; V = P.V; A = P.A; S = P.S
S.reserve(0, 3); V.reserve(0, 1)
def srd(): return S.alloc(4, 4)
rX, rK, rV, rSH, rTP, rW, rWD, rC, rWM, rOUT, rWS, rD = [srd() for _ in range(12)]
sPG = S.alloc(2, 2); sPU = S.alloc(2, 2)
sXJ = S.alloc(); sGI = S.alloc(); sWv = S.alloc(); sSpin = S.alloc()
sT = [S.alloc() for _ in range(6)]
sZ = [S.alloc() for _ in range(2)]
sC4096 = S.alloc()
sPL = S.alloc(); sPH = S.alloc(); sHI = S.alloc(); sONE = S.alloc()
sD0 = S.alloc()
sTp = [S.alloc(2, 2), S.alloc(2, 2)]; sT0 = S.alloc(2, 2)

class Frags:
    def __init__(self, n, pool=None): self.g = [(pool or V).alloc(4) for _ in range(n)]
    def __getitem__(self, i):
        if isinstance(i, slice):
            assert i.start//4 == (i.stop-1)//4
            return self.g[i.start//4][i.start%4:(i.stop-1)%4+1]
        return self.g[i//4][i%4]
    def free(self):
        for g in self.g: g.free()

nts = [0]
def stamp(name=""):
    if 'win' in OPT and not (name.startswith('w_') or name in ('end', 'drained')): return
    n = nts[0]; nts[0] += 1
    if PROBE:
        if n == PROBE[0]: I(f"s_memrealtime {sT0}")
        if n == PROBE[1]: I(f"s_memrealtime {sTp[0]}")
        return
    if not TSTAMP: return
    if n >= 2: I(f"v_writelane_b32 {vTs}, {sTp[n&1][0]}, {n-2}")
    I(f"{TSOP} {sTp[n&1]}")
    print(f"{n}:{name}", file=sys.stderr, end="  ")

slow = []
def check_tags(tags, reissue, toks):
    R = P.label("chk"); SL = P.label("slow"); D = P.label("ok")
    P.wait(toks)
    mn = V.alloc(); mx = V.alloc()
    I(f"{R}:")
    tg = list(tags)
    if len(tg) == 1:
        I(f"v_cmp_ne_u32 vcc, {tg[0]}, {vTag}")
    else:
        if len(tg) % 2: tg.append(tg[0])
        for i in range(0, len(tg), 2):
            I(f"v_min3_u32 {mn}, {vTag if i==0 else mn}, {tg[i]}, {tg[i+1]}")
            I(f"v_max3_u32 {mx}, {vTag if i==0 else mx}, {tg[i]}, {tg[i+1]}")
        I(f"v_cmp_ne_u32 vcc, {mn}, {mx}")
    I(f"s_cbranch_vccnz {SL}")
    I(f"{D}:")
    mn.free(); mx.free()
    save = (P.ins, P.vm, P.lg, P.vm_done, P.lg_done)
    P.ins = []
    I(f"{SL}:")
    I(f"s_add_u32 {sSpin}, {sSpin}, 1")
    I(f"s_cmp_gt_u32 {sSpin}, 200000")
    I(f"s_cbranch_scc1 {D}")
    reissue()
    I("s_waitcnt vmcnt(0)")
    I(f"s_branch {R}")
    slow.extend(P.ins)
    P.ins, P.vm, P.lg, P.vm_done, P.lg_done = save

def post_flag(vaddr, base):
    I(f"s_mov_b32 {sZ[0]}, {base}")
    return I(f"buffer_store_dword {vTag}, {vaddr}, {rWS}, {sZ[0]} offen sc1")
def flag_load(vp, vaddr, base):
    I(f"s_mov_b32 {sZ[0]}, {base}")
    return I(f"buffer_load_dword {vp}, {vaddr}, {rWS}, {sZ[0]} offen sc1")
def poll(vaddr, base):
    vp = V.alloc()
    t = flag_load(vp, vaddr, base)
    check_tags([vp], lambda: flag_load(vp, vaddr, base), t)
    vp.free()
sRel = S.alloc()
def post_local(vaddr, base):
    if not LOC: return post_flag(vaddr, base)
    I(f"s_mov_b32 {sZ[0]}, {base}")
    return I(f"buffer_store_dword {vTagL}, {vaddr}, {rWS}, {sZ[0]} offen")
def check_local(vp, vpoll, vown, base, tok):
    if not LOC: return check_tags([vp], lambda: flag_load(vp, vpoll, base), tok)
    SL = P.label("lslow"); D = P.label("lok"); RL = P.label("lrel"); AG = P.label("lagain"); NR = P.label("lnorel")
    P.wait(tok)
    I(f"v_cmp_ne_u32 vcc, {vp}, {vTagL}")
    I(f"s_cbranch_vccnz {SL}")
    I(f"{D}:")
    save = (P.ins, P.vm, P.lg, P.vm_done, P.lg_done)
    P.ins = []
    I(f"{SL}:")
    I(f"s_mov_b32 {sRel}, 0")
    I(f"{AG}:")
    I(f"s_add_u32 {sSpin}, {sSpin}, 1")
    I(f"s_cmp_gt_u32 {sSpin}, 200000")
    I(f"s_cbranch_scc1 {D}")
    flag_load(vp, vpoll, base)
    I("s_waitcnt vmcnt(0)")
    I(f"v_cmp_ne_u32 vcc, {vp}, {vTagL}")
    I(f"s_cbranch_vccz {D}")
    I(f"s_cmp_ge_u32 {sRel}, 0x10000")
    I(f"s_cbranch_scc1 {NR}")
    I(f"s_add_u32 {sRel}, {sRel}, 1")
    I(f"s_cmp_ge_u32 {sRel}, {opt('ltry', 40)}")
    I(f"s_cbranch_scc1 {RL}")
    I(f"v_cmp_eq_u32 vcc, {vp}, {vTag}")
    I(f"s_cbranch_vccz {AG}")
    I(f"{RL}:")
    I("buffer_wbl2 sc1")
    I("s_waitcnt vmcnt(0)")
    post_flag(vown, base)
    I(f"s_mov_b32 {sRel}, 0x10000")
    I(f"{NR}:")
    I(f"v_cmp_ne_u32 vcc, {vp}, {vTagL}")
    I(f"v_cmp_ne_u32 {sTp2}, {vp}, {vTag}")
    I(f"s_and_b64 {sTp2}, vcc, {sTp2}")
    I(f"s_cbranch_scc1 {AG}")
    I("s_waitcnt vmcnt(0)")
    I(f"s_branch {D}")
    slow.extend(P.ins)
    P.ins, P.vm, P.lg, P.vm_done, P.lg_done = save
def unpack(dst, src, hi):
    I(f"v_and_b32 {dst}, {sHI}, {src}" if hi else f"v_lshlrev_b32 {dst}, 16, {src}")
def round_bf16(dst, src):
    I(f"v_cvt_pk_bf16_f32 {dst}, {src}, {src}")
    I(f"v_and_b32 {dst}, {sHI}, {dst}")
def lane0(dst, sval, tmp):
    I(f"v_mov_b32 {dst}, {OOB}")
    I(f"v_writelane_b32 {dst}, {sval}, 0")

I("s_cmp_ge_u32 s2, 256")
I("s_cbranch_scc1 L_end")
if PROBE and PROBE[0] == -1: I(f"s_memrealtime {sT0}")
if TSTAMP:
    I(f"{TSOP} {sT0}")
    sR0 = S.alloc(2, 2); I(f"s_memrealtime {sR0}")
for r, off in ((rK,8),(rV,16),(rSH,24),(rWS,112),(rC,80),(rWM,88),(rX,0),(rTP,32),(rWD,72),(rOUT,96)):
    I(f"s_load_dwordx2 {r[0:2]}, s[0:1], {off}")
I(f"s_load_dwordx2 {sPG}, s[0:1], 56")
I(f"s_load_dwordx2 {sPU}, s[0:1], 64")
I(f"s_load_dwordx2 {rD[0:2]}, s[0:1], 40")
vL = V.alloc(); vL16 = V.alloc(); vTag = V.alloc(); vHH = V.alloc(); vQ = V.alloc(); vT16 = V.alloc()
if TSTAMP: vTs = V.alloc()
t0 = V.alloc(); t1 = V.alloc(); t2 = V.alloc()
I(f"s_and_b32 {sXJ}, s2, 7")
I(f"s_lshr_b32 {sGI}, s2, 3")
I(f"v_lshrrev_b32 {t0}, 6, v0")
I(f"v_and_b32 {vL}, 63, v0")
I(f"v_readfirstlane_b32 {sWv}, {t0}")
I(f"v_lshlrev_b32 {vL16}, 4, {vL}")
I(f"v_lshlrev_b32 {vT16}, 4, v0")
def do_cpf():
    global cpa, cpd
    cpa = V.reserve(250, 2); cpd = V.reserve(252, 4)
    I(f"s_getpc_b64 {sTp[0]}")
    I(f"s_and_b32 {sTp[0][0]}, {sTp[0][0]}, 0xffffff00")
    I(f"s_and_b32 {sT[5]}, {sGI}, 7")
    I(f"s_min_u32 {sT[5]}, {sT[5]}, 6")
    I(f"s_lshl_b32 {sT[5]}, {sT[5]}, 12")
    I(f"s_add_u32 {sTp[0][0]}, {sTp[0][0]}, {sT[5]}")
    I(f"s_addc_u32 {sTp[0][1]}, {sTp[0][1]}, 0")
    I(f"v_mov_b32 {cpa[1]}, {sTp[0][1]}")
    I(f"v_add_co_u32 {cpa[0]}, vcc, {sTp[0][0]}, {vT16}")
    I(f"v_addc_co_u32 {cpa[1]}, vcc, 0, {cpa[1]}, vcc")
    I(f"global_load_dwordx4 {cpd}, {cpa}, off")
if opt('cpf', 1) == 1: do_cpf()
for r, n in ((rK,2097152),(rV,2097152),(rSH,4096),(rWS,WS_SIZE),(rC,1024),(rWM,3145728),(rX,2097152),(rTP,2097152),(rWD,1835008),(rOUT,2097152),(rW,1835008),(rD,1024)):
    I(f"s_mov_b32 {r[2]}, {n}")
    I(f"s_mov_b32 {r[3]}, 0x20000")
I(f"v_lshrrev_b32 {vHH}, 5, {vL}")
I(f"v_and_b32 {vQ}, 31, {vL}")
I(f"s_mov_b32 {sSpin}, 0")
I(f"s_movk_i32 {sC4096}, 0x1000")
vB = V.alloc(); vH = V.alloc(); vSH = V.alloc(); vGS = V.alloc()
I(f"s_lshl_b32 {sT[0]}, {sGI}, 16")
I(f"s_lshl_b32 {sT[1]}, {sXJ}, 7")
I(f"s_lshl_b32 {sT[2]}, {sWv}, 5")
I(f"s_add_u32 {sT[1]}, {sT[1]}, {sT[2]}")
I(f"s_add_u32 {sT[0]}, {sT[0]}, {sT[1]}")
I(f"v_lshrrev_b32 {t0}, 3, {vL}")
I(f"v_and_b32 {t1}, 7, {vL}")
I(f"v_lshlrev_b32 {vB}, 13, {t0}")
I(f"v_lshl_add_u32 {vB}, {t1}, 2, {vB}")
I(f"v_add_u32 {vB}, {sT[0]}, {vB}")
I(f"v_subrev_u32 {vH}, 3072, {vB}")
I(f"s_lshl_b32 {sT[2]}, {sT[1]}, 2")
I(f"v_lshlrev_b32 {vSH}, 4, {t1}")
I(f"v_add_u32 {vSH}, {sT[2]}, {vSH}")
I(f"v_mov_b32 {t2}, {EPOCH}")
if opt("sfine"): stamp("s0")
I("s_waitcnt lgkmcnt(0)")
if opt("sfine"): stamp("karg")
WSOFF = opt('wsoff', 0) << 20
if WSOFF:
    I(f"s_add_u32 {rWS[0]}, {rWS[0]}, {WSOFF}")
    I(f"s_addc_u32 {rWS[1]}, {rWS[1]}, 0")
LOC = opt('loc', 1); LST = '' if LOC else 'sc1'
vTagL = V.alloc()
PT = V.alloc(4)
Kr = V.alloc(11, 1); Vr = V.alloc(8, 1); SHr = V.alloc(4)
tep = I(f"buffer_load_dword {vTag}, {t2}, {rWS}, 0 offen sc1")
tsh = I(f"buffer_load_dwordx4 {SHr}, {vSH}, {rSH}, 0 offen")
PTA = OPT.get('pta', 'sc1')
def pretouch(base):
    I(f"s_lshl_b32 {sZ[0]}, {sXJ}, 18")
    I(f"s_lshl_b32 {sZ[1]}, {sGI}, 13")
    I(f"s_add_u32 {sZ[0]}, {sZ[0]}, {sZ[1]}")
    I(f"s_add_u32 {sZ[0]}, {sZ[0]}, {base}")
    I(f"s_add_u32 {sZ[1]}, {sZ[0]}, 4096")
    for c in range(2): I(f"buffer_load_dwordx4 {PT}, {vT16}, {rWS}, {sZ[c]} offen {PTA}")
if LOC and opt('ptfirst', 0): pretouch(KVG)
tk = []
for e in range(3): tk.append(I(f"buffer_load_dword {Kr[e]}, {vH}, {rK}, 0 offen offset:{e*1024} {NT}"))
for e in range(8): tk.append(I(f"buffer_load_dword {Kr[3+e]}, {vB}, {rK}, {sC4096 if e>=4 else 0} offen offset:{(e&3)*1024} {NT}"))
tv = [I(f"buffer_load_dword {Vr[e]}, {vB}, {rV}, {sC4096 if e>=4 else 0} offen offset:{(e&3)*1024} {NT}") for e in range(8)]
vH.free(); vSH.free()
if opt('sfine'): stamp('L1')
if LOC and not opt('ptfirst', 0): pretouch(KVG)
if opt('cpf', 1) == 2: do_cpf()
vBP = V.alloc()
I(f"s_lshl_b32 {sT[2]}, {sT[1]}, 11")
I(f"s_lshl_b32 {sT[3]}, {sGI}, 7")
I(f"s_add_u32 {sT[2]}, {sT[2]}, {sT[3]}")
I(f"v_lshlrev_b32 {vGS}, 13, {t0}")
I(f"v_lshl_add_u32 {vGS}, {t1}, 4, {vGS}")
I(f"s_add_u32 {sT[2]}, {sT[2]}, {KVG}")
I(f"v_add_u32 {vGS}, {sT[2]}, {vGS}")
I(f"v_lshlrev_b32 {vBP}, 5, {t1}")
I(f"v_lshl_add_u32 {vBP}, {t0}, 2, {vBP}")
I(f"s_mov_b32 {sPL}, 0x05040100")
I(f"s_mov_b32 {sPH}, 0x07060302")
I(f"s_mov_b32 {sHI}, 0xffff0000")
I(f"s_mov_b32 {sONE}, 0x3f803f80")
sM = S.alloc(); sKS = S.alloc(); sCB = S.alloc()
I(f"s_and_b32 {sM}, {sGI}, 1")
I(f"s_cmp_eq_u32 {sM}, 0")
I(f"s_cselect_b32 {rW[0]}, {sPG[0]}, {sPU[0]}")
I(f"s_cselect_b32 {rW[1]}, {sPG[1]}, {sPU[1]}")
I(f"s_lshl_b32 {sD0}, {sXJ}, 6")
I(f"s_lshl_b32 {sT[4]}, {sGI}, 1")
I(f"s_add_u32 {sD0}, {sD0}, {sT[4]}")
I(f"s_lshl_b32 {sKS}, {sXJ}, 2")
I(f"s_add_u32 {sKS}, {sKS}, {sWv}")
I(f"s_lshr_b32 {sCB}, {sGI}, 1")
sPG.free(); sTp2 = sPU

G = {}
def A_mod():
    G['vMW'] = vMW = V.alloc(); G['vMC'] = vMC = V.alloc()
    I(f"s_and_b32 {sT[4]}, {sGI}, 3")
    I(f"s_lshl_b32 {sT[4]}, {sT[4]}, 7")
    I(f"v_lshrrev_b32 {t2}, 3, v0")
    I(f"v_add_u32 {t2}, {sT[4]}, {t2}")
    I(f"v_lshlrev_b32 {vMC}, 1, {t2}")
    I(f"v_mul_u32_u24 {vMW}, 6144, {t2}")
    I(f"v_and_b32 {t2}, 7, v0")
    I(f"v_lshl_add_u32 {vMW}, {t2}, 4, {vMW}")
    I(f"s_lshr_b32 {sT[4]}, {sGI}, 2")
    I(f"s_lshl_b32 {sT[4]}, {sT[4]}, 10")
    I(f"s_lshl_b32 {sT[5]}, {sXJ}, 7")
    I(f"s_add_u32 {sT[4]}, {sT[4]}, {sT[5]}")
    I(f"s_cmp_lt_u32 {sGI}, 24")
    I(f"s_cselect_b32 {sT[4]}, {sT[4]}, {OOB}")
    I(f"v_add_u32 {vMW}, {sT[4]}, {vMW}")
def L_mod():
    vMW, vMC = G['vMW'], G['vMC']
    G['Cr'] = Cr = V.alloc(4, 1); G['WMr'] = WMr = V.alloc(16)
    G['tc'] = [I(f"buffer_load_ushort {Cr[i]}, {vMC}, {rC}, 0 offen offset:{64*i}") for i in range(4)]
    G['twm'] = []
    for i in range(4):
        I(f"s_mov_b32 {sT[5]}, {i*32*6144}")
        G['twm'].append(I(f"buffer_load_dwordx4 {WMr[4*i:4*i+4]}, {vMW}, {rWM}, {sT[5]} offen {NT}"))
    vMW.free(); vMC.free()
def L_taps():
    G['TP'] = TP = [V.alloc(8), V.alloc(8)]
    I(f"s_lshl_b32 {sT[4]}, {sD0}, 12")
    I(f"s_add_u32 {sT[5]}, {sT[4]}, 4096")
    I(f"v_subrev_u32 {t2}, 16, {vT16}")
    I(f"v_min_u32 {t2}, {OOB}, {t2}")
    G['ttp'] = []
    for c in range(2):
        G['ttp'].append([I(f"buffer_load_dwordx4 {TP[c][4:8]}, {vT16}, {rTP}, {sT[4+c]} offen"),
                         I(f"buffer_load_dwordx4 {TP[c][0:4]}, {t2}, {rTP}, {sT[4+c]} offen")])
def L_w():
    G['WR'] = WR = V.alloc(16)
    I(f"s_mul_i32 {sT[0]}, {sKS}, {16*3584}")
    I(f"s_mul_i32 {sT[1]}, {sCB}, 224")
    I(f"s_add_u32 {sT[0]}, {sT[0]}, {sT[1]}")
    I(f"v_mul_u32_u24 {t2}, {8*3584}, {vHH}")
    I(f"v_lshl_add_u32 {t2}, {vQ}, 3, {t2}")
    G['twr'] = []
    for e in range(8):
        if e and e % 2 == 0: I(f"s_add_u32 {sT[0]}, {sT[0]}, 7168")
        G['twr'].append(I(f"buffer_load_dwordx2 {WR[2*e:2*e+2]}, {t2}, {rW}, {sT[0]} offen offset:{(e&1)*3584} {NT}"))
def L_x1(e):
    if e == 0: G['Xr'] = V.alloc(8, 1); G['tx'] = []
    G['tx'].append(I(f"buffer_load_dword {G['Xr'][e]}, {vB}, {rX}, {sC4096 if e>=4 else 0} offen offset:{(e&3)*1024}"))
    if e == 7: vB.free()
def L_xr():
    G['XR'] = XR = V.alloc(8)
    I(f"s_lshl_b32 {sT[0]}, s2, 13")
    I(f"s_lshl_b32 {sT[1]}, {sWv}, 11")
    I(f"s_add_u32 {sT[0]}, {sT[0]}, {sT[1]}")
    G['txr'] = [I(f"buffer_load_dwordx4 {XR[4*i:4*i+4]}, {vL16}, {rX}, {sT[0]} offen offset:{1024*i}") for i in range(2)]
def zero_pads():
    z4 = V.alloc(4)
    for i in range(4): I(f"v_mov_b32 {z4[i]}, 0")
    I(f"v_lshlrev_b32 {t2}, 4, {vQ}")
    I(f"v_mul_u32_u24 {t0}, {UCH}, {vHH}")
    I(f"v_add_u32 {t2}, {t2}, {t0}")
    I(f"ds_write_b128 {t2}, {z4} offset:{UB+4096}")
    I(f"v_and_b32 {t2}, 15, {vL}")
    I(f"v_mul_u32_u24 {t2}, {TCOPY}, {t2}")
    I(f"ds_write_b128 {t2}, {z4} offset:{TAPS}")
    z4.free()
def C_tag():
    P.wait(tep)
    pass
    I(f"s_mov_b32 {sT[0]}, 0x9E3779B1")
    I(f"v_mul_lo_u32 {vTag}, {vTag}, {sT[0]}")
    I(f"v_add_u32 {vTag}, 0x7F4A7C15, {vTag}")
    I(f"s_getreg_b32 {sT[0]}, hwreg(HW_REG_XCC_ID, 0, 4)")
    I(f"s_add_u32 {sT[0]}, {sT[0]}, 1")
    I(f"v_xor_b32 {vTagL}, {sT[0]}, {vTag}")
def lane_tr(src):
    GR = Frags(2)
    return GR, [I(f"ds_bpermute_b32 {GR[i]}, {vBP}, {src[i]}") for i in range(8)]
def flag_setup():
    G['vFo'] = V.alloc(); G['vFp'] = V.alloc()
    I(f"s_lshl_b32 {sT[0]}, {sKS}, 5")
    I(f"s_add_u32 {sT[0]}, {sT[0]}, {sGI}")
    I(f"s_lshl_b32 {sT[0]}, {sT[0]}, 7")
    lane0(G['vFo'], sT[0], t1)
    I(f"s_lshr_b32 {sT[0]}, {sGI}, 3")
    I(f"s_lshl_b32 {sT[1]}, {sXJ}, 2")
    I(f"s_add_u32 {sT[0]}, {sT[0]}, {sT[1]}")
    I(f"s_lshl_b32 {sT[0]}, {sT[0]}, 2")
    I(f"s_add_u32 {sT[0]}, {sT[0]}, {sWv}")
    I(f"s_lshl_b32 {sT[0]}, {sT[0]}, 3")
    I(f"v_and_b32 {t0}, 7, {vL}")
    I(f"v_add_lshl_u32 {G['vFp']}, {t0}, {sT[0]}, 7")
def C_kv():
    kf = V.alloc(22); wp = V.alloc(8); acc = V.alloc(16)
    P.wait(tsh)
    for j in range(4):
        for c in range(2): unpack(wp[2*j+c], SHr[2*c + (j>>1)], j & 1)
    stamp('pre-k'); P.wait(tk[:opt('kw', 3)]); G['afterk'](); P.wait(tk); stamp('k in')
    for e in range(11):
        unpack(kf[2*e], Kr[e], 0); unpack(kf[2*e+1], Kr[e], 1)
    for e in range(8): I(f"v_pk_mul_f32 {acc[2*e:2*e+2]}, {kf[2*e:2*e+2]}, {wp[6:8]}")
    for j in (2, 1, 0):
        for e in range(8):
            q = e + 3 - j
            I(f"v_pk_fma_f32 {acc[2*e:2*e+2]}, {kf[2*q:2*q+2]}, {wp[2*j:2*j+2]}, {acc[2*e:2*e+2]}")
    P.wait(tv)
    for e in range(8):
        unpack(kf[2*e], Vr[e], 0); unpack(kf[2*e+1], Vr[e], 1)
    for e in range(8): I(f"v_pk_mul_f32 {acc[2*e:2*e+2]}, {acc[2*e:2*e+2]}, {kf[2*e:2*e+2]}")
    for c in range(2):
        for n in range(4):
            I(f"v_cvt_pk_bf16_f32 {wp[4*c+n]}, {acc[2*(7-2*n)+c]}, {acc[2*(6-2*n)+c]}")
    G['KVt'], tl = lane_tr(wp)
    G['tks'] = []
    for c in range(2):
        P.wait(tl[4*c:4*c+4])
        G['tks'].append(I(f"buffer_store_dwordx4 {G['KVt'][4*c:4*c+4]}, {vGS}, {rWS}, {sC4096 if c else 0} offen {LST}"))
    for r in (kf, wp, acc, Kr, Vr, SHr): r.free()
def C_mod():
    Cr, WMr = G['Cr'], G['WMr']
    P.wait(G['tc'])
    sl = V.alloc(4, 1); sp = V.alloc(2, 1)
    for i in range(4): I(f"v_lshlrev_b32 {Cr[i]}, 16, {Cr[i]}")
    for i in range(4): I(f"v_mul_f32 {sl[i]}, 0xbfb8aa3b, {Cr[i]}")
    for i in range(4): I(f"v_exp_f32 {sl[i]}, {sl[i]}")
    for i in range(4): I(f"v_add_f32 {sl[i]}, 1.0, {sl[i]}")
    for i in range(4): I(f"v_rcp_f32 {sl[i]}, {sl[i]}")
    for i in range(4): I(f"v_mul_f32 {sl[i]}, {sl[i]}, {Cr[i]}")
    I(f"v_cvt_pk_bf16_f32 {sp[0]}, {sl[0]}, {sl[1]}")
    I(f"v_cvt_pk_bf16_f32 {sp[1]}, {sl[2]}, {sl[3]}")
    I(f"v_and_b32 {t0}, 7, {vL}")
    I(f"v_lshlrev_b32 {t0}, 7, {t0}")
    I(f"v_lshrrev_b32 {t1}, 4, {vL}")
    I(f"v_lshl_add_u32 {t0}, {t1}, 5, {t0}")
    I(f"s_lshl_b32 {sT[0]}, {sWv}, 2")
    I(f"v_add_u32 {t0}, {sT[0]}, {t0}")
    ma = V.alloc(8, 1); mp = V.alloc(8, 1)
    for half in range(2):
        P.wait(G['twm'][2*half:2*half+2])
        for j in range(4):
            I(f"v_perm_b32 {mp[2*j]}, {WMr[8*half+4+j]}, {WMr[8*half+j]}, {sPL}")
            I(f"v_perm_b32 {mp[2*j+1]}, {WMr[8*half+4+j]}, {WMr[8*half+j]}, {sPH}")
        for j in range(8):
            I(f"v_dot2_f32_bf16 {ma[j]}, {mp[j]}, {sp[half]}, {0 if half==0 else ma[j]}")
    for i in range(4): I(f"v_permlane32_swap_b32 {ma[i]}, {ma[i+4]}")
    for i in range(4): I(f"v_add_f32 {ma[i]}, {ma[i]}, {ma[i+4]}")
    for i in range(2): I(f"v_permlane16_swap_b32 {ma[i]}, {ma[i+2]}")
    for i in range(2): I(f"v_add_f32 {ma[i]}, {ma[i]}, {ma[i+2]}")
    for i in range(2): I(f"v_add_f32_dpp {ma[i]}, {ma[i]}, {ma[i]} row_ror:8 row_mask:0xf bank_mask:0xf")
    I(f"ds_write_b32 {t0}, {ma[0]} offset:{MODL}")
    I(f"ds_write_b32 {t0}, {ma[1]} offset:{MODL+16}")
    for r in (sl, sp, ma, mp, Cr, WMr): r.free()
def A_mod2():
    I(f"s_lshl_b32 {sT[0]}, {sGI}, 12")
    I(f"s_lshl_b32 {sT[1]}, {sXJ}, 9")
    I(f"s_add_u32 {sT[0]}, {sT[0]}, {sT[1]}")
    I(f"s_add_u32 {sT[0]}, {sT[0]}, {MODG}")
    I(f"s_cmp_lt_u32 {sGI}, 24")
    I(f"s_cselect_b32 {sT[0]}, {sT[0]}, {OOB}")
    I(f"s_cmp_eq_u32 {sWv}, 1")
    I(f"s_cselect_b32 {sT[0]}, {sT[0]}, {OOB}")
    G['vMs'] = V.alloc()
    I(f"v_lshlrev_b32 {t0}, 3, {vL}")
    I(f"v_add_u32 {G['vMs']}, {sT[0]}, {t0}")
def C_mod2():
    vMs = G['vMs']
    I("s_waitcnt lgkmcnt(0)"); P.lg_done = P.lg
    I("s_barrier")
    m4 = V.alloc(4)
    tl = I(f"ds_read_b128 {m4}, {vL16} offset:{MODL}")
    P.wait(tl)
    I(f"v_add_f32 {m4[0]}, {m4[0]}, {m4[1]}")
    I(f"v_add_f32 {m4[2]}, {m4[2]}, {m4[3]}")
    I(f"v_mov_b32 {m4[1]}, {vTag}")
    I(f"v_add_f32 {m4[0]}, {m4[0]}, {m4[2]}")
    if LOC:
        I(f"s_mov_b32 {sT[1]}, {MODL2-MODG}")
        I(f"buffer_store_dwordx2 {m4[0:2]}, {vMs}, {rWS}, {sT[1]} offen")
    G['midmod']()
    I(f"buffer_store_dwordx2 {m4[0:2]}, {vMs}, {rWS}, 0 offen sc1")
    m4.free(); vMs.free()
def C_taps(hk=lambda: None):
    TP = G['TP']
    E1 = V.alloc(6); O0 = V.alloc(6); O1 = V.alloc(6)
    I(f"v_add_u32 {t2}, {TCH}, {vT16}")
    for c in range(2):
        d = TP[c]; ad = vT16 if c == 0 else t2
        P.wait(G['ttp'][c])
        def wr(o, regs):
            I(f"ds_write_b128 {ad}, {regs} offset:{TAPS + 16 + (o-1)*TCOPY}")
            if o > 4: hk()
        wr(4, d[2:6]); wr(8, d[4:8])
        for j in range(6): I(f"v_alignbit_b32 {O0[j]}, {d[j+1]}, {d[j]}, 16")
        wr(1, O0[0:4]); wr(5, O0[2:6])
        for j in range(6): I(f"v_alignbit_b32 {O1[j]}, {d[j+2]}, {d[j+1]}, 16")
        wr(3, O1[0:4]); wr(7, O1[2:6])
        for j in range(6): I(f"v_mov_b32 {E1[j]}, {d[j+1]}")
        wr(2, E1[0:4]); wr(6, E1[2:6])
    for r in TP + [E1, O0, O1]: r.free()
sUY = S.alloc(2)
def L_u():
    G['UR'] = UR = Frags(2)
    I(f"s_lshl_b32 {sUY[0]}, {sD0}, 12")
    I(f"s_add_u32 {sUY[0]}, {sUY[0]}, {KVG}")
    I(f"s_add_u32 {sUY[1]}, {sUY[0]}, 4096")
    G['tu'] = [I(f"buffer_load_dwordx4 {UR[4*c:4*c+4]}, {vT16}, {rWS}, {sUY[c]} offen sc1") for c in range(2)]
def C_u():
    UR = G['UR']
    I(f"v_sub_u32 {t2}, 4080, {vT16}")
    for c in range(2):
        P.wait(G['tu'][c])
        I(f"ds_write_b128 {t2}, {UR[4*c:4*c+4]} offset:{UB+c*UCH}")
    UR.free()
def L_d():
    G['Dr'] = V.alloc(2)
    I(f"s_lshl_b32 {sT[0]}, {sKS}, 5")
    I(f"v_lshrrev_b32 {t0}, 3, {vL}")
    I(f"v_lshlrev_b32 {t0}, 2, {t0}")
    G['td'] = I(f"buffer_load_dword {G['Dr'][0]}, {t0}, {rD}, {sT[0]} offen")
def x_ops():
    ops = []
    def a0(): G['xp'] = V.alloc(8, 1); G['Xt'] = Frags(2); G['txt'] = []; P.wait(G['tx'])
    ops.append(a0)
    for c in range(2):
        for n in range(4):
            ops.append(lambda c=c, n=n: I(f"v_perm_b32 {G['xp'][4*c+n]}, {G['Xr'][2*n+1]}, {G['Xr'][2*n]}, {sPH if c else sPL}"))
    for i in range(8): ops.append(lambda i=i: G['txt'].append(I(f"ds_bpermute_b32 {G['Xt'][i]}, {vBP}, {G['xp'][i]}")))
    ops.append(lambda: (G['Xr'].free(), vBP.free(), G['xp'].free()))
    return ops
def C_st():
    XR = G['XR']
    P.wait(G['txr'])
    q4 = V.alloc(4)
    for n in range(4):
        for r in range(2):
            I(f"v_dot2_f32_bf16 {q4[2*r]}, {XR[4*r+n]}, {sONE}, {0 if n==0 else q4[2*r]}")
            I(f"v_dot2_f32_bf16 {q4[2*r+1]}, {XR[4*r+n]}, {XR[4*r+n]}, {0 if n==0 else q4[2*r+1]}")
    I(f"v_permlane32_swap_b32 {q4[0]}, {q4[2]}")
    I(f"v_permlane32_swap_b32 {q4[1]}, {q4[3]}")
    I(f"v_add_f32 {q4[0]}, {q4[0]}, {q4[2]}")
    I(f"v_add_f32 {q4[1]}, {q4[1]}, {q4[3]}")
    I(f"v_permlane16_swap_b32 {q4[0]}, {q4[1]}")
    I(f"v_add_f32 {q4[0]}, {q4[0]}, {q4[1]}")
    for sh in (8, 4, 2, 1):
        I(f"v_add_f32_dpp {q4[0]}, {q4[0]}, {q4[0]} row_ror:{sh} row_mask:0xf bank_mask:0xf")
    I(f"v_mov_b32 {q4[1]}, {q4[0]}")
    I(f"v_permlane16_swap_b32 {q4[0]}, {q4[1]}")
    finish_stats(q4[0], q4[1], q4[3], t0)
    I(f"v_rsq_f32 {q4[2]}, {t0}")
    I(f"s_lshl_b32 {sT[0]}, s2, 4")
    I(f"s_lshl_b32 {sT[1]}, {sWv}, 12")
    I(f"s_add_u32 {sT[0]}, {sT[0]}, {sT[1]}")
    I(f"s_add_u32 {sT[0]}, {sT[0]}, {STG}")
    I(f"v_cvt_pk_bf16_f32 {q4[0]}, {q4[3]}, {q4[2]}")
    I(f"v_mov_b32 {q4[1]}, {vTag}")
    I(f"v_mov_b32 {q4[2]}, {q4[0]}")
    I(f"v_mov_b32 {q4[3]}, {vTag}")
    I(f"v_permlane32_swap_b32 {q4[0]}, {q4[2]}")
    lane0(t0, sT[0], t1)
    I(f"buffer_store_dwordx4 {q4}, {t0}, {rWS}, 0 offen sc1")
    XR.free(); q4.free()
def finish_stats(vsum, vsq, vnm, vve):
    I(f"v_mul_f32 {vnm}, 0xbb000000, {vsum}")
    I(f"v_mul_f32 {vsq}, 0x3b000000, {vsq}")
    I(f"v_fma_f32 {vve}, -{vnm}, {vnm}, {vsq}")
    I(f"v_max_f32 {vve}, 0, {vve}")
    I(f"v_add_f32 {vve}, 0x3727c5ac, {vve}")
def m_addr():
    G['MA'] = Frags(3); G['vMa'] = vMa = V.alloc()
    I(f"v_and_b32 {t0}, 7, {vL}")
    I(f"v_lshrrev_b32 {t1}, 3, {vL}")
    I(f"v_lshlrev_b32 {vMa}, 4, {t0}")
    I(f"v_lshl_add_u32 {vMa}, {t1}, 12, {vMa}")
    I(f"s_lshl_b32 {sT[0]}, {sKS}, 7")
    I(f"s_add_u32 {sT[0]}, {sT[0]}, {MODG}")
    I(f"v_add_u32 {vMa}, {sT[0]}, {vMa}")
def m_loads(retry=False):
    MA = G['MA']
    if LOC and retry:
        I(f"s_and_b32 {sZ[0]}, {sSpin}, 7")
        I(f"s_cmp_eq_u32 {sZ[0]}, 0")
        I(f"s_cselect_b32 {sZ[0]}, 0, {MODL2-MODG}")
    else: I(f"s_mov_b32 {sZ[0]}, {MODL2-MODG if LOC else 0}")
    out = []
    for j in range(3):
        if j: I(f"s_add_u32 {sZ[0]}, {sZ[0]}, 32768")
        out.append(I(f"buffer_load_dwordx4 {MA.g[j]}, {G['vMa']}, {rWS}, {sZ[0]} offen sc1"))
    return out
def C_wunpack():
    WR = G['WR']
    G['wf'] = wf = Frags(8)
    P.wait(G['twr'])
    for e in range(8):
        for h in range(2):
            unpack(wf[4*e+2*h], WR[2*e+h], 0); unpack(wf[4*e+2*h+1], WR[2*e+h], 1)
def C_m():
    MA = G['MA']
    check_tags([MA[4*j+i] for j in range(3) for i in (1, 3)], lambda: m_loads(True), G['tm'])
    G['vMa'].free()
def m_ops():
    MA = G['MA']; ad = MA[1]; one = MA[3]; on2 = MA[5]
    seq = [f"v_permlane16_swap_b32 {MA[4*j]}, {MA[4*j+2]}" for j in (2, 1, 0)]
    seq += [f"v_add_f32 {MA[4*j]}, {MA[4*j]}, {MA[4*j+2]}" for j in (2, 1, 0)]
    seq += [f"v_add_f32_dpp {MA[4*j]}, {MA[4*j]}, {MA[4*j]} row_ror:8 row_mask:0xf bank_mask:0xf" for j in (2, 1, 0)]
    seq += [f"v_and_b32 {ad}, 7, {vL}", f"v_lshlrev_b32 {ad}, 3, {ad}", f"v_bfe_u32 {one}, {vL}, 4, 1",
            f"v_lshl_add_u32 {ad}, {one}, 2, {ad}", f"v_lshl_add_u32 {ad}, {vHH}, 6, {ad}", f"v_add_u32 {ad}, {sWDs}, {ad}",
            f"v_cvt_f32_u32 {one}, {vHH}"]
    seq += [f"v_cvt_pk_bf16_f32 {MA[4*j]}, {MA[4*j]}, {MA[4*j]}" for j in (2, 1, 0)]
    seq += [f"v_sub_f32 {on2}, 1.0, {one}"]
    seq += [f"v_and_b32 {MA[4*j]}, {sHI}, {MA[4*j]}" for j in (2, 1, 0)]
    seq += [f"v_add_f32 {MA[8]}, {MA[8]}, {on2}", f"v_add_f32 {MA[0]}, {MA[0]}, {one}",
            f"v_cvt_pk_bf16_f32 {MA[8]}, {MA[8]}, {MA[8]}", f"v_cvt_pk_bf16_f32 {MA[0]}, {MA[0]}, {MA[0]}",
            f"v_and_b32 {MA[8]}, {sHI}, {MA[8]}", f"v_and_b32 {MA[0]}, {sHI}, {MA[0]}"]
    seq += [f"ds_write_b32 {ad}, {MA[4*j]} offset:{CBO+128*j}" for j in (2, 1, 0)]
    return [(lambda x=x: I(x)) for x in seq] + [lambda: MA.free()]
sWst = S.alloc()
def w_addr():
    G['vWs'] = vWs = V.alloc(); G['vCw'] = vCw = V.alloc()
    I(f"s_mul_i32 {sWst}, {sCB}, 229376")
    I(f"s_lshl_b32 {sT[1]}, {sM}, 9")
    I(f"s_add_u32 {sWst}, {sWst}, {sT[1]}")
    I(f"s_add_u32 {sWst}, {sWst}, {WP}")
    I(f"s_mul_i32 {sT[1]}, {sKS}, {NA*1024}")
    I(f"s_lshl_b32 {sT[2]}, {sKS}, 10")
    I(f"v_lshrrev_b32 {t0}, 2, {vQ}")
    I(f"v_lshlrev_b32 {vWs}, 10, {t0}")
    I(f"v_add_u32 {vWs}, {sT[1]}, {vWs}")
    I(f"v_lshlrev_b32 {t2}, 15, {t0}")
    I(f"v_add_u32 {t2}, {sT[2]}, {t2}")
    I(f"v_cmp_gt_u32 vcc, {NA}, {t0}")
    I(f"v_mov_b32 {t1}, {OOB}")
    I(f"v_cndmask_b32 {vWs}, {t2}, {vWs}, vcc")
    I(f"v_cmp_gt_u32 vcc, 7, {t0}")
    I(f"v_xor_b32 {t2}, {sM}, {vHH}")
    I(f"v_cndmask_b32 {vWs}, {t1}, {vWs}, vcc")
    I(f"v_lshl_add_u32 {vWs}, {t2}, 6, {vWs}")
    I(f"v_and_b32 {t2}, 3, {vQ}")
    I(f"v_lshl_add_u32 {vWs}, {t2}, 4, {vWs}")
    I(f"v_lshlrev_b32 {vCw}, 6, {t0}")
    I(f"v_lshl_add_u32 {vCw}, {t2}, 2, {vCw}")
    I(f"v_lshl_add_u32 {vCw}, {vHH}, 9, {vCw}")
    I(f"v_add_u32 {vCw}, {sWDs}, {vCw}")
def C_w_reads():
    I(f"v_lshlrev_b32 {t0}, 5, {vHH}")
    I(f"v_add_u32 {t0}, {sWDs}, {t0}")
    G['SBv'] = SBv = Frags(2); G['CBv'] = CBv = Frags(2)
    G['tcb'] = [I(f"ds_read_b128 {CBv[0:4]}, {t0} offset:{CBO+256}"), I(f"ds_read_b128 {CBv[4:8]}, {t0} offset:{CBO+272}"),
                I(f"ds_read_b128 {SBv[0:4]}, {t0} offset:{CBO+192}"), I(f"ds_read_b128 {SBv[4:8]}, {t0} offset:{CBO+208}")]
def wu_ops():
    WR = G['WR']; ops = []
    def st0(): G['wf'] = Frags(8); P.wait(G['twr'])
    ops.append(st0)
    for e in range(8):
        for j in range(4): ops.append(lambda e=e, j=j: unpack(G['wf'][4*e+j], WR[2*e+(j>>1)], j & 1))
    return ops
def w_ops():
    WR = G['WR']; ops = []
    def st0(): G['pr'] = V.alloc(4, 1); G['c1'] = V.alloc(4, 1); G['c2'] = V.alloc(4, 1); P.wait(G['tcb'])
    ops.append(st0)
    G['tws'] = []
    for j in range(4):
        for n in range(4):
            o = 2*(n & 1)
            for ee in range(2):
                ops.append(lambda n=n, j=j, ee=ee, o=o: I(f"v_mul_f32 {G['pr'][o+ee]}, {G['wf'][4*(2*n+ee)+j]}, {G['CBv'][2*n+ee]}"))
            ops.append(lambda n=n, j=j, o=o: I(f"v_cvt_pk_bf16_f32 {WR[4*j+n]}, {G['pr'][o]}, {G['pr'][o+1]}"))
        ops.append(lambda j=j: G['tws'].append(I(f"buffer_store_dwordx4 {WR[4*j:4*j+4]}, {G['vWs']}, {rWS}, {sWst} offen offset:{128*j} sc1")))
    return ops
def c_ops():
    ops = []
    for e in range(8):
        op = "v_mul_f32" if e == 0 else "v_fmac_f32"
        for j in range(4): ops.append(lambda e=e, j=j, op=op: I(f"{op} {G['c1'][j]}, {G['wf'][4*e+j]}, {G['CBv'][e]}"))
        for j in range(4): ops.append(lambda e=e, j=j, op=op: I(f"{op} {G['c2'][j]}, {G['wf'][4*e+j]}, {G['SBv'][e]}"))
    ops.append(None)
    for j in range(4): ops.append(lambda j=j: I(f"v_permlane32_swap_b32 {G['c1'][j]}, {G['c2'][j]}"))
    for j in range(4): ops.append(lambda j=j: I(f"v_add_f32 {G['c1'][j]}, {G['c1'][j]}, {G['c2'][j]}"))
    for j in range(4): ops.append(lambda j=j: I(f"ds_write_b32 {G['vCw']}, {G['c1'][j]} offset:{C12O+16*j}"))
    def fin():
        for k in ('pr', 'CBv', 'SBv', 'vWs', 'wf', 'c1', 'c2', 'vCw', 'WR'): G[k].free()
    ops.append(fin)
    return ops
def C_c12b():
    c8 = V.alloc(8)
    I(f"v_and_b32 {t0}, 127, v0")
    I(f"v_lshlrev_b32 {t0}, 2, {t0}")
    I(f"v_add_u32 {t0}, {WDS0+C12O}, {t0}")
    I(f"v_add_u32 {t1}, {2*WDW0}, {t0}")
    tc = []
    for w in range(4):
        for sel in range(2):
            tc.append(I(f"ds_read_b32 {c8[2*w+sel]}, {t1 if w >= 2 else t0} offset:{WDW0*(w&1) + 512*sel}"))
    I(f"s_lshl_b32 {sT[0]}, {sCB}, 3")
    I(f"s_add_u32 {sT[0]}, {sT[0]}, {sXJ}")
    I(f"s_lshl_b32 {sT[0]}, {sT[0]}, 1")
    I(f"s_add_u32 {sT[0]}, {sT[0]}, {sM}")
    I(f"s_mul_i32 {sT[0]}, {sT[0]}, 896")
    I(f"s_add_u32 {sT[0]}, {sT[0]}, {C12}")
    I(f"v_lshlrev_b32 {t0}, 3, v0")
    I(f"v_mov_b32 {t2}, {OOB}")
    I(f"v_cmp_gt_u32 vcc, 112, v0")
    I(f"v_cndmask_b32 {t0}, {t2}, {t0}, vcc")
    P.wait(tc)
    I(f"v_pk_add_f32 {c8[0:2]}, {c8[0:2]}, {c8[2:4]}")
    I(f"v_pk_add_f32 {c8[4:6]}, {c8[4:6]}, {c8[6:8]}")
    I(f"v_pk_add_f32 {c8[0:2]}, {c8[0:2]}, {c8[4:6]}")
    G['tc12'] = I(f"buffer_store_dwordx2 {c8[0:2]}, {t0}, {rWS}, {sT[0]} offen sc1")
    c8.free()
def A_f3():
    G['vF3'] = V.alloc()
    I(f"s_lshl_b32 {sT[0]}, {sGI}, 5")
    I(f"s_add_u32 {sT[0]}, {sT[0]}, {sKS}")
    I(f"s_lshl_b32 {sT[0]}, {sT[0]}, {FSH}")
    lane0(G['vF3'], sT[0], t1)
def st_addr():
    G['vSt'] = V.alloc()
    I(f"s_lshl_b32 {sT[0]}, {sGI}, 7")
    I(f"s_add_u32 {sT[0]}, {sT[0]}, {STG}")
    I(f"v_and_b32 {t0}, 7, {vL}")
    I(f"v_lshl_add_u32 {G['vSt']}, {t0}, 4, {sT[0]}")
def st_loads():
    SL = G['SL']; out = []
    for w in range(4):
        if w >= 2: I(f"s_movk_i32 {sZ[0]}, {4096*w}")
        out.append(I(f"buffer_load_dwordx4 {SL.g[w]}, {G['vSt']}, {rWS}, {[0, sC4096, sZ[0], sZ[0]][w]} offen sc1"))
    return out
def L_st():
    G['SL'] = Frags(4); G['tsl'] = st_loads()
def C_pre0():
    G['PQ'] = PQ = V.alloc(6)
    I(f"v_lshrrev_b32 {t0}, 3, {vL}")
    I(f"v_lshl_add_u32 {t0}, {t0}, 3, {sWDs}")
    G['tpq'] = [I(f"ds_read_b64 {PQ[2*v:2*v+2]}, {t0} offset:{CBO+64*v}") for v in range(3)]
def C_pre1():
    SL, PQ, Dr = G['SL'], G['PQ'], G['Dr']
    check_tags([SL[2*i+1] for i in range(8)], st_loads, [G['tsl'], G['td']])
    G['vSt'].free()
    for w in range(4):
        g = SL.g[w]
        unpack(g[1], g[2], 1); unpack(g[3], g[2], 0); unpack(g[2], g[0], 0); unpack(g[0], g[0], 1)
    for w in range(4): I(f"v_pk_mul_f32 {SL.g[w][2:4]}, {SL.g[w][2:4]}, {SL.g[w][0:2]}")
    unpack(Dr[1], Dr[0], 1); unpack(Dr[0], Dr[0], 0)
    P.wait(G['tpq'], G['txt'])
    I(f"v_pk_mul_f32 {PQ[0:2]}, {PQ[0:2]}, {PQ[4:6]}")
    I(f"v_pk_mul_f32 {PQ[2:4]}, {PQ[2:4]}, {PQ[4:6]}")
    G['HG'] = Frags(4); G['BS'] = Frags(4)
def C_pre2(c):
    SL, PQ, Dr, HG, BS, Xt, KVt = G['SL'], G['PQ'], G['Dr'], G['HG'], G['BS'], G['Xt'], G['KVt']
    kd = V.alloc(8)
    pr = lambda R, p: R[8*c+2*p:8*c+2*p+2]
    for p in range(4):
        unpack(BS[8*c+2*p], Xt[4*c+p], 0); unpack(BS[8*c+2*p+1], Xt[4*c+p], 1)
        unpack(kd[2*p], KVt[4*c+3-p], 1); unpack(kd[2*p+1], KVt[4*c+3-p], 0)
    for p in range(4): I(f"v_pk_fma_f32 {pr(HG,p)}, {pr(BS,p)}, {SL.g[p][0:2]}, {SL.g[p][2:4]}")
    for p in range(4): I(f"v_pk_mul_f32 {kd[2*p:2*p+2]}, {kd[2*p:2*p+2]}, {Dr} op_sel:[0,{c}] op_sel_hi:[1,{c}]")
    for p in range(4): I(f"v_pk_fma_f32 {pr(HG,p)}, {pr(HG,p)}, {PQ[2:4]}, {PQ[0:2]} op_sel:[0,{c},{c}] op_sel_hi:[1,{c},{c}]")
    for p in range(4): I(f"v_pk_fma_f32 {pr(BS,p)}, {pr(HG,p)}, {kd[2*p:2*p+2]}, {pr(BS,p)}")
    kd.free()
    if c == 1:
        for r in (SL, PQ, Dr, Xt, KVt): r.free()

AWD = A.reserve(0, 224)
order = [(c, it) for c in range(4) for it in range(3)] + [(c, it) for c in range(4) for it in (3, 4)] + [(c, it) for it in (5, 6) for c in range(4)]
FL = 0x8000
sWo = S.alloc()
def wd_src(i): c, it = order[i]; I(f"s_add_u32 {sWo}, {sWD}, {16384*(c*7+it)}")
sR64 = S.alloc(); sDB = S.alloc(); sWD = S.alloc()
sWDs = S.alloc()
def wd_setup():
    G['vWa'] = vWa = V.alloc(); G['vWb'] = vWb = V.alloc(); G['vWr'] = [V.alloc(), V.alloc()]
    if opt('map2', 1):
        I(f"s_lshr_b32 {sR64}, {sGI}, 2")
        I(f"s_lshr_b32 {sT[0]}, {sXJ}, 1")
        I(f"s_lshl_b32 {sT[0]}, {sT[0]}, 3")
        I(f"s_add_u32 {sR64}, {sR64}, {sT[0]}")
        I(f"s_and_b32 {sDB}, {sGI}, 3")
        I(f"s_and_b32 {sT[0]}, {sXJ}, 1")
        I(f"s_lshl_b32 {sT[0]}, {sT[0]}, 2")
        I(f"s_add_u32 {sDB}, {sDB}, {sT[0]}")
    else:
        I(f"s_lshr_b32 {sR64}, {sGI}, 3")
        I(f"s_lshl_b32 {sT[0]}, {sXJ}, 2")
        I(f"s_add_u32 {sR64}, {sR64}, {sT[0]}")
        I(f"s_and_b32 {sDB}, {sGI}, 7")
    I(f"s_mul_i32 {sWD}, {sWv}, {448*1024}")
    I(f"s_lshl_b32 {sT[0]}, {sDB}, 7")
    I(f"s_add_u32 {sWD}, {sWD}, {sT[0]}")
    I(f"v_bfe_u32 {t0}, {vL}, 3, 2")
    I(f"v_lshlrev_b32 {vWa}, 12, {t0}")
    I(f"v_lshl_add_u32 {vWa}, {vHH}, 10, {vWa}")
    I(f"v_bfe_u32 {t0}, {vL}, 4, 1")
    I(f"v_lshlrev_b32 {t0}, 2, {t0}")
    I(f"v_and_b32 {t1}, 7, {vL}")
    I(f"v_xor_b32 {t0}, {t0}, {t1}")
    I(f"v_lshl_add_u32 {vWa}, {t0}, 4, {vWa}")
    I(f"v_add_u32 {vWb}, 1024, {vWa}")
    r0 = G['vWr'][0]
    I(f"v_bfe_u32 {t0}, {vL}, 2, 2")
    I(f"v_lshlrev_b32 {r0}, 7, {t0}")
    I(f"v_lshl_add_u32 {r0}, {vHH}, 9, {r0}")
    I(f"v_bfe_u32 {t0}, {vL}, 3, 1")
    I(f"s_and_b32 {sT[0]}, {sWv}, 1")
    I(f"v_xor_b32 {t0}, {sT[0]}, {t0}")
    I(f"v_lshl_add_u32 {r0}, {t0}, 6, {r0}")
    I(f"v_and_b32 {t0}, 1, {vL}")
    I(f"v_lshl_add_u32 {r0}, {t0}, 5, {r0}")
    I(f"v_bfe_u32 {t0}, {vL}, 4, 1")
    I(f"v_lshl_add_u32 {r0}, {t0}, 4, {r0}")
    I(f"v_bfe_u32 {t0}, {vL}, 1, 1")
    I(f"v_lshl_add_u32 {r0}, {t0}, 3, {r0}")
    I(f"s_mul_i32 {sWDs}, {sWv}, {WDW0}")
    I(f"s_add_u32 {sWDs}, {sWDs}, {WDS0}")
    I(f"v_add_u32 {r0}, {sWDs}, {r0}")
    I(f"v_xor_b32 {G['vWr'][1]}, 64, {r0}")
    G['vWx'] = None
    G['wd'] = dict(nd=0, nr=0, free=[6, 7, 8, 9, 0, 1, 2, 3], ban=set(), slot={}, dt={}, rt={}, ti={}, rd={})
def wd_rebase(sbase, nslots):
    W = G['wd']; assert W['nd'] == W['nr']
    I(f"s_sub_u32 {sT[0]}, {sbase}, {sWDs}")
    I(f"s_mov_b32 {sWDs}, {sbase}")
    for r in G['vWr']: I(f"v_add_u32 {r}, {sT[0]}, {r}")
    W['free'] = list(range(nslots)); W['rt'] = {}; W['ban'] = set()
def wd_dma():
    W = G['wd']; n = W['nd']
    if n >= 28 or not W['free']: return False
    sl = W['free'].pop(0); W['slot'][n] = sl
    P.wait(W['rt'].get(sl))
    I(f"s_add_u32 m0, {sWDs}, {2048*sl}")
    wd_src(n)
    W['dt'][n] = [I(f"buffer_load_dwordx4 {G['vWa']}, {rWD}, {sWo} offen lds"),
                  I(f"buffer_load_dwordx4 {G['vWb']}, {rWD}, {sWo} offen offset:1024 lds")]
    W['nd'] = n+1
    return True
XB = 6*16384
def xoff(sl): k = sl - 100; return (k >> 1)*16384 + (k & 1)*2048
def wd_m0(sl):
    if sl < 100: I(f"s_add_u32 m0, {sWDs}, {2048*sl}")
    else: I(f"s_add_u32 m0, {sWdst}, {XB + xoff(sl)}")
def wd_dma1():
    W = G['wd']; n = W['nd']
    if not W.get('half'):
        if n >= 28 or not W['free']: return False
        sl = W['free'].pop(0); W['slot'][n] = sl
        P.wait(W['rt'].get(sl))
        wd_m0(sl)
        wd_src(n)
        W['dt'][n] = [I(f"buffer_load_dwordx4 {G['vWa']}, {rWD}, {sWo} offen lds")]
        W['half'] = True
    else:
        wd_m0(W['slot'][n])
        I("s_nop 0")
        W['dt'][n].append(I(f"buffer_load_dwordx4 {G['vWb']}, {rWD}, {sWo} offen offset:1024 lds"))
        W['half'] = False; W['nd'] = n+1; W['ti'][n] = max(G.get('now', 0), G.get('lastst', -99) + opt('sl', 44) - opt('wdl', 20))
    return True
def wd_read():
    W = G['wd']; n = W['nr']
    if n >= W['nd']: return False
    sl = W['slot'][n]
    P.wait(W['dt'][n])
    W['rt'][sl] = [I(f"ds_read_b64_tr_b16 {AWD[8*n+4*dt+2*g:8*n+4*dt+2*g+2]}, {G['vWr' if sl < 100 else 'vWx'][dt]} offset:{(2048*sl if sl < 100 else xoff(sl))+1024*g}") for dt in range(2) for g in range(2)]
    W['last'] = W['rt'][sl]; W['rd'][n] = W['rt'][sl]
    if sl not in W['ban']: W['free'].append(sl)
    W['nr'] = n+1
    return True

def conv(side_per=None):
    vAa = V.alloc(); vBa = V.alloc(); vRW = V.alloc()
    I(f"s_lshr_b32 {sT[0]}, {sWv}, 1")
    I(f"s_and_b32 {sT[1]}, {sWv}, 1")
    I(f"s_lshl_b32 {sT[1]}, {sT[1]}, 8")
    I(f"s_mul_i32 {sT[2]}, {sT[0]}, {TCH}")
    I(f"s_add_u32 {sT[2]}, {sT[2]}, {sT[1]}")
    I(f"s_mul_i32 {sT[3]}, {sT[0]}, {UCH}")
    I(f"s_add_u32 {sT[3]}, {sT[3]}, {sT[1]}")
    I(f"s_add_u32 {sT[3]}, {sT[3]}, {UB+480}")
    I(f"v_and_b32 {t0}, 7, {vL}")
    I(f"v_mul_u32_u24 {vAa}, {TCOPY}, {t0}")
    I(f"v_bfe_u32 {t0}, {vL}, 3, 1")
    I(f"v_lshrrev_b32 {t1}, 4, {vL}")
    I(f"v_add_u32 {t0}, {t0}, {t1}")
    I(f"v_lshl_add_u32 {vAa}, {t0}, 4, {vAa}")
    I(f"v_add_u32 {vAa}, {sT[2]}, {vAa}")
    I(f"v_and_b32 {t0}, 15, {vL}")
    I(f"v_lshlrev_b32 {t2}, 5, {t0}")
    I(f"v_lshlrev_b32 {vBa}, 4, {t1}")
    I(f"v_sub_u32 {vBa}, {vBa}, {t2}")
    I(f"v_add_u32 {vBa}, {sT[3]}, {vBa}")
    I(f"v_and_b32 {vRW}, 1, {t1}")
    I(f"v_lshlrev_b32 {vRW}, 12, {vRW}")
    I(f"v_add_u32 {vRW}, {vRW}, {t2}")
    I(f"v_lshrrev_b32 {t1}, 1, {t1}")
    I(f"v_lshl_add_u32 {vRW}, {t1}, 4, {vRW}")
    I(f"s_mul_i32 {sT[0]}, {sWv}, {WDW0}")
    I(f"s_add_u32 {sT[0]}, {sT[0]}, {WDS0+REDO}")
    I(f"v_add_u32 {vRW}, {sT[0]}, {vRW}")
    G['convaddr'] = (vAa, vBa, vRW)
def conv_run(hook=None):
    vAa, vBa, vRW = G['convaddr']
    D = Frags(8); FA = [Frags(8, A), AWD[192:224]]; FB = [AWD[160:192], Frags(8)]
    def reads(n):
        b = n & 1; out = []
        for t in range(8):
            out.append(lambda t=t: I(f"ds_read_b128 {FA[b][4*t:4*t+4]}, {vAa} offset:{TAPS + 64*n + 512*t}"))
            out.append(lambda t=t: I(f"ds_read_b128 {FB[b][4*t:4*t+4]}, {vBa} offset:{512*(7-t) + 64*n}"))
        return out
    ctok = {0: [f() for f in reads(0)]}
    cnt = 0
    for n in range(4):
        b = n & 1
        nxt = reads(n+1) if n < 3 else []
        ctok[n+1] = []
        if n < 3: pairs = sorted([(t, jj) for t in range(8) for jj in range(8-t)], key=lambda p: (max(p), p))
        else: pairs = sorted([(t, jj) for t in range(8) for jj in range(8-t)], key=lambda p: (p[0]+p[1], p))
        seen = set(); done = {}
        if n > 0: P.wait(ctok[n])
        for i, (t, jj) in enumerate(pairs):
            P.wait(ctok[n][2*t], ctok[n][2*jj+1])
            j = t + jj
            first = (n == 0 and j not in seen); seen.add(j)
            I(f"v_mfma_f32_16x16x32_bf16 {D[4*j:4*j+4]}, {FA[b][4*t:4*t+4]}, {FB[b][4*jj:4*jj+4]}, {0 if first else D[4*j:4*j+4]}")
            if nxt and i >= 1 and i % 2 == 1: ctok[n+1].append(nxt.pop(0)())
            if n == 3:
                if t == j: done[j] = i
                for jd, idn in list(done.items()):
                    if i >= idn + opt('rdel', 6):
                        I(f"ds_write_b128 {vRW}, {D[4*jd:4*jd+4]} offset:{512*jd}"); del done[jd]
            if hook: hook(cnt)
            cnt += 1
        while nxt: ctok[n+1].append(nxt.pop(0)())
    for jd in sorted(done): I(f"ds_write_b128 {vRW}, {D[4*jd:4*jd+4]} offset:{512*jd}")
    assert G['wd']['nr'] <= 20
    for r in [FA[0], FB[1], vAa, vBa, vRW, D]: r.free()

sX1 = S.alloc(2)
def x1_addr():
    G['vRr'] = V.alloc(); G['vRr2'] = V.alloc(); G['vXw'] = vXw = V.alloc(); G['vXr'] = vXr = V.alloc(); G['vS2'] = vS2 = V.alloc()
    I(f"v_add_u32 {G['vRr']}, {WDS0+REDO}, {vT16}")
    I(f"v_add_u32 {G['vRr2']}, {WDS0+REDO+2*WDW0}, {vT16}")
    I(f"v_bfe_u32 {t0}, {vL}, 2, 1")
    I(f"v_lshl_add_u32 {vXw}, {t0}, 10, {sWDs}")
    I(f"v_lshrrev_b32 {t0}, 3, {vL}")
    I(f"v_lshl_add_u32 {vXw}, {t0}, 7, {vXw}")
    I(f"v_and_b32 {t0}, 3, {vL}")
    I(f"v_lshl_add_u32 {vXw}, {t0}, 4, {vXw}")
    I(f"v_lshl_add_u32 {vXr}, {t0}, 3, {sWDs}")
    I(f"v_bfe_u32 {t0}, {vL}, 4, 1")
    I(f"v_lshl_add_u32 {vXr}, {t0}, 5, {vXr}")
    I(f"v_bfe_u32 {t0}, {vL}, 2, 2")
    I(f"v_lshl_add_u32 {vXr}, {t0}, 6, {vXr}")
    I(f"v_lshl_add_u32 {vXr}, {vHH}, 9, {vXr}")
    I(f"s_lshl_b32 {sX1[0]}, {sGI}, 6")
    I(f"s_add_u32 {sX1[0]}, {sX1[0]}, {sKS}")
    I(f"s_lshl_b32 {sX1[0]}, {sX1[0]}, 10")
    I(f"s_add_u32 {sX1[0]}, {sX1[0]}, {X1T}")
    I(f"s_add_u32 {sX1[1]}, {sX1[0]}, 32768")
    I(f"s_lshl_b32 {sT[0]}, {sGI}, 13")
    I(f"s_lshl_b32 {sT[1]}, {sXJ}, 9")
    I(f"s_add_u32 {sT[0]}, {sT[0]}, {sT[1]}")
    I(f"s_add_u32 {sT[0]}, {sT[0]}, {S2}")
    I(f"s_cmp_eq_u32 {sWv}, 0")
    I(f"s_cselect_b32 {sT[0]}, {sT[0]}, {OOB}")
    I(f"v_lshl_add_u32 {vS2}, {vQ}, 4, {sT[0]}")
    I(f"v_lshl_add_u32 {vS2}, {vHH}, 12, {vS2}")
def C_y():
    Y = Frags(8); yo = Frags(2)
    tl = []
    for c in range(2):
        for kh in range(2):
            for h in range(2):
                tl.append(I(f"ds_read_b128 {Y[16*c+8*kh+4*h:16*c+8*kh+4*h+4]}, {G['vRr2'] if c else G['vRr']} offset:{kh*WDW0 + 4096*h}"))
    C_pre0()
    G['tys'] = []
    for c in range(2):
        P.wait(tl[4*c:4*c+4])
        for e in range(0, 8, 2): I(f"v_pk_add_f32 {Y[16*c+e:16*c+e+2]}, {Y[16*c+e:16*c+e+2]}, {Y[16*c+8+e:16*c+8+e+2]}")
        for n in range(4): I(f"v_cvt_pk_bf16_f32 {yo[4*c+n]}, {Y[16*c+2*n]}, {Y[16*c+2*n+1]}")
        G['tys'].append(I(f"buffer_store_dwordx4 {yo[4*c:4*c+4]}, {vT16}, {rWS}, {sUY[c]} offen {LST}"))
    for r in [Y, yo, G['vRr'], G['vRr2']]: r.free()
def L_y():
    G['YL'] = YL = Frags(2)
    G['tyl'] = [I(f"buffer_load_dwordx4 {YL[4*c:4*c+4]}, {vGS}, {rWS}, {sC4096 if c else 0} offen sc1") for c in range(2)]
    vGS.free()
def C_x1():
    HG, BS, YL = G['HG'], G['BS'], G['YL']
    yf = V.alloc(8); F = Frags(2); q = V.alloc(4)
    for c in range(2):
        P.wait(G['tyl'][c])
        for p in range(4): unpack(yf[2*p], YL[4*c+p], 0); unpack(yf[2*p+1], YL[4*c+p], 1)
        for p in range(4): I(f"v_pk_fma_f32 {BS[8*c+2*p:8*c+2*p+2]}, {HG[8*c+2*p:8*c+2*p+2]}, {yf[2*p:2*p+2]}, {BS[8*c+2*p:8*c+2*p+2]}")
        for p in range(4): I(f"v_cvt_pk_bf16_f32 {YL[4*c+p]}, {BS[8*c+2*p]}, {BS[8*c+2*p+1]}")
        I(f"ds_write_b128 {G['vXw']}, {YL[4*c:4*c+4]} offset:{XTO+64*c}")
    tl = [I(f"ds_read_b64_tr_b16 {F[4*b+2*g:4*b+2*g+2]}, {G['vXr']} offset:{XTO+1024*b+256*g}") for b in range(2) for g in range(2)]
    I(f"v_lshl_add_u32 {t0}, {vL}, 3, {sWDs}")
    G['tx1'] = []
    for b in range(2):
        P.wait(tl[2*b:2*b+2])
        G['tx1'].append(I(f"buffer_store_dwordx4 {F.g[b]}, {vL16}, {rWS}, {sX1[b]} offen sc1"))
    for r in range(4):
        for b in range(2):
            I(f"v_dot2_f32_bf16 {q[2*b]}, {F[4*b+r]}, {sONE}, {0 if r==0 else q[2*b]}")
            I(f"v_dot2_f32_bf16 {q[2*b+1]}, {F[4*b+r]}, {F[4*b+r]}, {0 if r==0 else q[2*b+1]}")
    I(f"v_permlane32_swap_b32 {q[0]}, {q[2]}")
    I(f"v_permlane32_swap_b32 {q[1]}, {q[3]}")
    I(f"v_pk_add_f32 {q[0:2]}, {q[0:2]}, {q[2:4]}")
    I(f"ds_write_b64 {t0}, {q[0:2]} offset:{S2O}")
    for r in (HG, BS, YL, yf, F, q, G['vXw'], G['vXr']): r.free()
def C_s2():
    q = V.alloc(8)
    I(f"v_lshlrev_b32 {t0}, 3, {vL}")
    I(f"v_add_u32 {t0}, {WDS0+S2O}, {t0}")
    tl = [I(f"ds_read_b64 {q[2*w:2*w+2]}, {t0} offset:{WDW0*w}") for w in range(4)]
    P.wait(tl)
    I(f"v_pk_add_f32 {q[0:2]}, {q[0:2]}, {q[2:4]}")
    I(f"v_pk_add_f32 {q[4:6]}, {q[4:6]}, {q[6:8]}")
    I(f"v_add_f32 {q[2]}, {q[1]}, {q[5]}")
    I(f"v_add_f32 {q[0]}, {q[0]}, {q[4]}")
    I(f"v_mov_b32 {q[1]}, {vTag}")
    I(f"v_mov_b32 {q[3]}, {vTag}")
    I(f"buffer_store_dwordx4 {q[0:4]}, {G['vS2']}, {rWS}, 0 offen sc1")
    q.free(); G['vS2'].free()

sRB = S.alloc(); sC1 = S.alloc(); sWsrc = S.alloc(); sWdst = S.alloc()
def A_g1():
    G['vF8'] = vF8 = V.alloc(); G['vPA'] = vPA = V.alloc(); G['vP3'] = vP3 = V.alloc()
    I(f"s_and_b32 {sRB}, {sXJ}, 1")
    I(f"s_lshl_b32 {sRB}, {sRB}, 3")
    I(f"s_lshr_b32 {sT[0]}, {sGI}, 2")
    I(f"s_add_u32 {sRB}, {sRB}, {sT[0]}")
    I(f"s_lshr_b32 {sC1}, {sXJ}, 1")
    I(f"s_lshl_b32 {sC1}, {sC1}, 2")
    I(f"s_and_b32 {sT[0]}, {sGI}, 3")
    I(f"s_add_u32 {sC1}, {sC1}, {sT[0]}")
    I(f"s_lshl_b32 {sT[0]}, {sC1}, 6")
    I(f"v_add_lshl_u32 {vP3}, {vL}, {sT[0]}, {FSH}")
    I(f"s_lshl_b32 {sT[0]}, {sGI}, 5")
    I(f"s_add_u32 {sT[0]}, {sT[0]}, {sKS}")
    I(f"v_lshlrev_b32 {vF8}, 10, {vL}")
    I(f"v_add_lshl_u32 {vF8}, {vF8}, {sT[0]}, {FSH}")
    I(f"v_mov_b32 {t1}, {OOB}")
    I(f"v_cmp_gt_u32 vcc, 4, {vL}")
    I(f"s_lshr_b32 {sT[0]}, {sXJ}, 1")
    I(f"s_lshl_b32 {sT[0]}, {sT[0]}, 4")
    I(f"s_add_u32 {sT[0]}, {sT[0]}, {sRB}")
    I(f"s_lshl_b32 {sT[0]}, {sT[0]}, 1")
    I(f"s_lshr_b32 {sT[1]}, {sWv}, 1")
    I(f"s_add_u32 {sT[0]}, {sT[0]}, {sT[1]}")
    I(f"s_lshl_b32 {sT[0]}, {sT[0]}, 5")
    I(f"v_add_lshl_u32 {vPA}, {vQ}, {sT[0]}, {FSH}")
    I(f"v_cndmask_b32 {vF8}, {t1}, {vF8}, vcc")
    I(f"s_mul_i32 {sWsrc}, {sC1}, 229376")
    I(f"s_lshl_b32 {sWdst}, {sWv}, 12")
    I(f"s_add_u32 {sWsrc}, {sWsrc}, {sWdst}")
    I(f"s_add_u32 {sWsrc}, {sWsrc}, {WP}")
def w_dma(src_off, dst_off, n0=0, n1=4):
    I(f"s_add_u32 m0, {sWdst}, {WL + dst_off}")
    I(f"s_add_u32 {sT[0]}, {sWsrc}, {src_off}")
    return [I(f"buffer_load_dwordx4 {vL16}, {rWS}, {sT[0]} offen offset:{1024*n} sc1 lds") for n in range(n0, n1)]
def wd_burst(n):
    for _ in range(n):
        if not wd_dma():
            wd_read(); wd_dma()
flag_setup(); m_addr()
vpf = V.alloc()
if LOC:
    flag_load(vpf, G['vFp'], F1); flag_load(vpf, G['vFp'], FY); m_loads()
if opt('sfine'): stamp('touch')
A_mod()
LATE = opt('late', 0)
def ftouch():
    if opt('ftouch', 1):
        flag_load(vpf, G['vF3'], F3); flag_load(vpf, G['vF8'], F4)
        I(f"s_lshl_b32 {sT[0]}, {sRB}, 2")
        I(f"s_add_u32 {sT[0]}, {sT[0]}, {sWv}")
        I(f"s_lshl_b32 {sT[0]}, {sT[0]}, 4")
        I(f"s_add_u32 {sT[0]}, {sT[0]}, {sC1}")
        I(f"s_lshl_b32 {sT[0]}, {sT[0]}, {FSH}")
        I(f"v_min_u32 {t0}, 3, {vL}")
        I(f"v_lshl_add_u32 {t0}, {t0}, 15, {sT[0]}")
        flag_load(vpf, t0, F5)
def setup2():
    zero_pads(); A_mod2(); conv(); wd_setup()
def setup3():
    w_addr(); x1_addr(); st_addr(); A_f3(); A_g1(); ftouch()
if LATE < 2: setup2()
if opt('sfine'): stamp('su2')
if LATE < 1: setup3()
def wd_touch():
    I(f"s_mul_i32 {sT[0]}, s2, 7168")
    I(f"s_add_u32 {sT[1]}, {sT[0]}, 3072")
    for c in range(2): I(f"buffer_load_dwordx4 {PT}, {vT16}, {rWD}, {sT[c]} offen")
def afterk():
    L_xr(); L_mod()
    if opt('early', 1) >= 1: L_taps()
G['afterk'] = afterk
C_tag(); C_kv(); stamp("kv st")
if opt('cpf', 1): cpa.free(); cpd.free()
if opt('early', 1) < 1: L_taps()
if opt('early', 1) >= 2: L_w()
if opt('wdt', 1) == -1: wd_touch()
if LATE >= 2: setup2()
if LATE >= 1: setup3()
C_st(); stamp("st")
C_mod(); stamp("mod1")
P.wait(G['tks']); post_local(G['vFo'], F1)
def midmod():
    stamp("mod2")
    tc = [0]
    def thk():
        tc[0] += 1
        if tc[0] == opt('f1i', 1): G['tpf'] = flag_load(vpf, G['vFp'], F1)
        if tc[0] == opt('f1c', 5):
            check_local(vpf, G['vFp'], G['vFo'], F1, G['tpf']); L_u(); G['tm'] = m_loads()
    C_taps(thk); stamp("taps")
G['midmod'] = midmod
C_mod2()
if opt('early', 1) < 2: L_w()
if opt('wdt', 1) == 1: wd_touch()
C_u(); stamp("U ok")
P.wait_all(vm=False); I("s_barrier")
stamp("bar")
cside = []
H2, WDC = opt('h2', 4), opt('wdc', 8)
def hook(c):
    if c >= opt('hx', 40) and c < opt('hx', 40) + 16 and c % 2 == 0: L_x1((c - opt('hx', 40))//2)
    if c == opt('hx', 40) + 18: L_d()
    if c == H2: C_m(); cside.extend(m_ops() + [C_w_reads, None, None, None] + wu_ops() + w_ops() + c_ops() + x_ops())
    if c == opt('hst', 100): L_st()
    if opt('wdt', 1) > 1 and c == opt('wdt', 1): wd_touch()
    if c == opt('hf3', 130): assert len(G['tws']) == 4; P.wait(G['tws']); post_flag(G['vF3'], F3); G['vF3'].free()
    W = G['wd']
    if c == opt('wdban', 60): W['ban'] = {6, 7, 8, 9}; W['free'] = [x for x in W['free'] if x < 6]
    if c >= opt('wd0', 16) and c % (WDC//2) == 0 and W['nd'] < opt('wdmax', 8): wd_dma1()
    if c > opt('wdr0', 70) and c % WDC == 2 and W['nr'] < opt('wdrmax', 4): wd_read()
    if c == 107: assert all(W['slot'][n] < 6 for n in range(W['nr'], W['nd'])), "RED slots still in use"
    if opt('cfine') and c in (35, 71, 107): stamp(f'c{c}')
    k = 0
    while cside and k < (1 if (c < 108 and c % 2 == 1) else 2):
        f = cside.pop(0); k += 1
        if f: f()
conv_run(hook)
PT.free()
stamp("conv")
print('cside left', len(cside), file=sys.stderr)
for f in cside:
    if f: f()
P.wait_all(vm=False); I("s_barrier")
C_y(); stamp("y st")
print('wd after conv', G['wd']['nd'], G['wd']['nr'], file=sys.stderr)
vP3 = G['vP3']; vPA = G['vPA']; vp3 = V.alloc()
if opt('wda', 4):
    while wd_read(): pass
    for _ in range(opt('wda', 4)): wd_dma()
C_pre1()
P.wait(G['tys']); post_local(G['vFo'], FY); stamp("FY post")
C_pre2(0)
tpf = flag_load(vpf, G['vFp'], FY)
tp3 = flag_load(vp3, vP3, F3)
C_pre2(1)
check_local(vpf, G['vFp'], G['vFo'], FY, tpf); G['vFp'].free(); G['vFo'].free(); vTagL.free(); vpf.free()
L_y(); stamp("FY ok")
wch = {}
def w_group(): i = len(wch); wch[i] = w_dma(16384*i, 16384*i)
F3E = opt('f3e', 1)
def f3chk():
    check_tags([vp3], lambda: flag_load(vp3, vP3, F3), tp3)
if F3E:
    f3chk()
    for _ in range(opt('w1', 2)): w_group()
C_c12b()
C_x1(); stamp("x1 st")
if not F3E: f3chk()
for _ in range(opt('w15', 2)): w_group()
while wd_read(): pass
P.wait(G['tx1']); post_flag(G['vF8'], F4); G['vF8'].free()
stamp("F4 post")
sDQ = S.alloc(); gb2 = V.alloc(4); vGb = V.alloc(); vGB = V.alloc()
I(f"s_and_b32 {sT[3]}, {sWv}, 1")
I(f"s_lshl_b32 {sT[3]}, {sT[3]}, 5")
I(f"s_lshl_b32 {sDQ}, {sDB}, 6")
I(f"s_add_u32 {sDQ}, {sDQ}, {sT[3]}")
I(f"s_lshl_b32 {sT[0]}, {sDQ}, 3")
I(f"s_add_u32 {sT[0]}, {sT[0]}, {MODG + 5*16384}")
I(f"v_lshl_add_u32 {vGb}, {vQ}, 3, {sT[0]}")
I(f"v_lshl_add_u32 {vGb}, {vHH}, 13, {vGb}")
def gb_ld():
    return [I(f"buffer_load_dwordx2 {gb2[2*n:2*n+2]}, {vGb}, {rWS}, {sC4096 if n else 0} offen sc1") for n in range(2)]
tgb = gb_ld()
P.wait_all(vm=False); I("s_barrier")
C_s2()
while len(wch) < 5: w_group()
I("s_barrier")
NPRE = opt('npre', 8); NP4 = opt('np4', 7)
vp4 = V.alloc()
while len(wch) < NPRE:
    if len(wch) == NP4: tp4 = flag_load(vp4, vPA, F4)
    w_group()
if NP4 >= NPRE: tp4 = flag_load(vp4, vPA, F4)
stamp("W pre")
for r in (rK, rV, rSH): r.free()
sXsrc = S.alloc(); sXdst = S.alloc(); sSB = S.alloc(); sHS = S.alloc(); sSG = S.alloc()
I(f"s_lshl_b32 {sSB}, {sRB}, 2")
I(f"s_add_u32 {sSB}, {sSB}, {sWv}")
I(f"s_lshl_b32 {sXsrc}, {sSB}, 15")
I(f"s_add_u32 {sXsrc}, {sXsrc}, {X1T}")
I(f"s_mul_i32 {sXdst}, {sWv}, {XSW}")
I(f"s_add_u32 {sXdst}, {sXdst}, {XS}")
I(f"s_mul_i32 {sHS}, {sSB}, 112")
I(f"s_mul_i32 {sT[0]}, {sC1}, 7")
I(f"s_add_u32 {sHS}, {sHS}, {sT[0]}")
I(f"s_lshl_b32 {sHS}, {sHS}, 10")
I(f"s_add_u32 {sHS}, {sHS}, {HH}")
I(f"s_lshl_b32 {sSG}, {sSB}, 12")
I(f"s_add_u32 {sSG}, {sSG}, {S2}")
ACC = [V.alloc(16) for _ in range(NA+2)]
vAd = V.alloc(); vAd2 = V.alloc(); vEx = V.alloc(); vL16b = V.alloc(); vF5 = V.alloc()
I(f"v_bfe_u32 {t0}, {vL}, 2, 3")
I(f"v_lshlrev_b32 {vAd}, 7, {t0}")
I(f"v_bfe_u32 {t0}, {vL}, 4, 1")
I(f"v_xor_b32 {t0}, {t0}, {vHH}")
I(f"v_lshl_add_u32 {vAd}, {t0}, 6, {vAd}")
I(f"v_and_b32 {t0}, 3, {vL}")
I(f"v_lshl_add_u32 {vAd}, {t0}, 4, {vAd}")
I(f"v_add_u32 {vAd2}, 65536, {vAd}")
I(f"v_lshlrev_b32 {vEx}, 4, {vQ}")
I(f"v_add_u32 {vEx}, {EX}, {vEx}")
I(f"v_add_u32 {vL16b}, 4096, {vL16}")
vCl = V.alloc(); vCe = V.alloc(); sCL = S.alloc()
I(f"s_mul_i32 {sCL}, {sC1}, {8*1792}")
I(f"s_mul_i32 {sT[0]}, {sWv}, 448")
I(f"s_add_u32 {sCL}, {sCL}, {sT[0]}")
I(f"s_add_u32 {sCL}, {sCL}, {C12}")
I(f"v_min_u32 {t0}, 27, {vQ}")
I(f"v_mul_u32_u24 {vCl}, {4*1792}, {vHH}")
I(f"v_lshl_add_u32 {vCl}, {t0}, 4, {vCl}")
I(f"s_and_b32 {sT[0]}, {sWv}, 1")
I(f"s_mul_i32 {sT[0]}, {sT[0]}, 56")
I(f"v_lshl_add_u32 {t0}, {t0}, 1, {vHH}")
I(f"v_add_u32 {t0}, {sT[0]}, {t0}")
I(f"s_lshr_b32 {sT[0]}, {sWv}, 1")
I(f"s_lshl_b32 {sT[0]}, {sT[0]}, 8")
I(f"s_add_u32 {sT[0]}, {sT[0]}, {EX}")
I(f"v_and_b32 {t1}, 15, {t0}")
I(f"v_lshl_add_u32 {vCe}, {t1}, 4, {sT[0]}")
I(f"v_lshrrev_b32 {t0}, 4, {t0}")
I(f"v_lshl_add_u32 {vCe}, {t0}, 9, {vCe}")
I(f"s_lshl_b32 {sT[0]}, {sSB}, 4")
I(f"s_add_u32 {sT[0]}, {sT[0]}, {sC1}")
I(f"s_lshl_b32 {sT[0]}, {sT[0]}, {FSH}")
lane0(vF5, sT[0], t1)
if G['wd']['nr'] < 28: wd_rebase(sXdst, 3)
for _ in range(opt('wdb', 0)): wd_dma()
check_tags([gb2[1], gb2[3]], gb_ld, tgb)
I(f"v_add_f32 {gb2[0]}, {gb2[0]}, {gb2[2]}")
I(f"v_mov_b32 {gb2[1]}, {gb2[0]}")
I(f"v_permlane32_swap_b32 {gb2[0]}, {gb2[1]}")
I(f"v_add_f32 {gb2[0]}, {gb2[0]}, {gb2[1]}")
round_bf16(vGB, gb2[0])
gb2.free(); vGb.free()
check_tags([vp4], lambda: flag_load(vp4, vPA, F4), tp4)
vPA.free(); vp4.free()
published = set(g for g in wch if wch[g][-1][1] < P.vm_done)
stamp("F4 ok")

Bf = Frags(32)
btok = {}
def b_next():
    ks = len(btok)
    if ks >= 32: return False
    if ks and ks % 4 == 0: I(f"s_add_u32 {sXsrc}, {sXsrc}, 4096")
    btok[ks] = I(f"buffer_load_dwordx4 {Bf.g[ks]}, {vL16}, {rWS}, {sXsrc} offen offset:{1024*(ks&3)} sc1")
    return True
for _ in range(opt('b0', 12)): b_next()
I("s_barrier")
AR = A.reserve(224, 32)
SGX = Frags(4); BX = SGX.g[0]; hp = SGX.g[1]; vRS2 = V.alloc()
TMP = ACC[NA+1]
jobs = [(it, ks, ks*NA+it) for ks in range(32) for it in range(NA)]
XD = opt('xd', 10)
tl_ = [(NA, ks, NA*32 + ks) for ks in range(32)]
jobs += tl_[:XD] + [(it, 'x', None) for it in range(NA+1)] + tl_[XD:]
for it in range(NA+1, 7):
    jobs += [(it, 'x', None)] + [(it, ks, it*32 + ks) for ks in range(32)]
NJ = len(jobs); TT = {it: 33*it for it in range(NA, 8)}; T4, T5, T6 = 132, 165, 198; XA = 32*NA + XD
first_job = {}; last_job = {}
for n, (it, ks, fr) in enumerate(jobs):
    if fr is not None:
        first_job.setdefault(fr//16, n); last_job[fr//16] = n
accmap = {it: it % (NA+2) for it in range(7)}
def job_read(n):
    it, ks, fr = jobs[n]
    dst = AR[4*(n%8):4*(n%8)+4]
    if ks == 'x': return I(f"ds_read_b128 {dst}, {vEx} offset:{512*it}")
    assert fr//16 in published, (n, fr)
    off = ((fr//16) % NG)*16384 + (fr % 16)*1024
    if off < 65536: return I(f"ds_read_b128 {dst}, {vAd} offset:{off}")
    return I(f"ds_read_b128 {dst}, {vAd2} offset:{off-65536}")
LOOK = 6
atok = {}
for n in range(LOOK): atok[n] = job_read(n)
stamp("g1 start")

class VM:
    def __init__(self, f): self.f = f
    def __call__(self): return self.f()
side = []
def c12_ops():
    ops = []; tk = []
    CL = TMP
    def l(g):
        if g == 2: I(f"s_add_u32 {sCL}, {sCL}, 3584")
        tk.append(I(f"buffer_load_dwordx4 {CL[4*g:4*g+4]}, {vCl}, {rWS}, {sCL} offen offset:{(g&1)*1792} sc1"))
    for g in range(4): ops.append(lambda g=g: l(g))
    ops2 = [lambda: P.wait(tk)]
    for st in (2, 1):
        for g in range(st):
            for h in range(4):
                ops2.append(lambda g=g, st=st, h=h: I(f"v_add_f32 {CL[4*g+h]}, {CL[4*g+h]}, {CL[4*(g+st)+h]}"))
    ops2.append(None)
    for h in range(2): ops2.append(lambda h=h: I(f"v_permlane32_swap_b32 {CL[h]}, {CL[2+h]}"))
    for h in range(2): ops2.append(lambda h=h: I(f"v_add_f32 {CL[h]}, {CL[h]}, {CL[2+h]}"))
    seq = [f"v_cvt_pk_bf16_f32 {CL[5]}, {CL[0]}, {CL[1]}",
           f"v_lshlrev_b32 {CL[2]}, 16, {CL[5]}",
           f"v_and_b32 {CL[3]}, {sHI}, {CL[5]}",
           f"v_sub_f32 {CL[0]}, {CL[0]}, {CL[2]}",
           f"v_sub_f32 {CL[1]}, {CL[1]}, {CL[3]}",
           f"v_cvt_pk_bf16_f32 {CL[4]}, {CL[2]}, {CL[0]}",
           f"v_cvt_pk_bf16_f32 {CL[6]}, {CL[1]}, {CL[3]}",
           f"v_mov_b32 {CL[7]}, 0"]
    for s_ in seq: ops2.append(lambda s_=s_: I(s_))
    ops2.append(lambda: G.__setitem__('tex', I(f"ds_write_b128 {vCe}, {CL[4:8]}")))
    ops2.append(lambda: (vCl.free(), vCe.free()))
    return ops, ops2
def sg_loads(j0=0, j1=4):
    return [I(f"buffer_load_dwordx4 {SGX.g[j]}, {vL16}, {rWS}, {sSG} offen offset:{1024*j} sc1") for j in range(j0, j1)]
def stats2_ops(tk):
    ops = [lambda: check_tags([SGX[2*i+1] for i in range(8)], sg_loads, tk)] + [None]*6
    for j in range(2):
        for i in (0, 2): ops.append(lambda i=i, j=j: I(f"v_add_f32 {SGX[4*j+i]}, {SGX[4*j+i]}, {SGX[8+4*j+i]}"))
    Z = SGX.g[2]; a, b, c, d = Z[0], Z[1], Z[2], Z[3]; e = SGX.g[3][0]
    seq = [f"v_add_f32 {a}, {SGX[0]}, {SGX[4]}", f"v_add_f32 {c}, {SGX[2]}, {SGX[6]}",
           f"v_mov_b32 {b}, {a}", f"v_mov_b32 {d}, {c}", None,
           f"v_permlane32_swap_b32 {a}, {b}", f"v_permlane32_swap_b32 {c}, {d}",
           f"v_add_f32 {a}, {a}, {b}", f"v_add_f32 {c}, {c}, {d}",
           f"v_mul_f32 {b}, 0xbb000000, {a}", f"v_mul_f32 {c}, 0x3b000000, {c}",
           f"v_fma_f32 {d}, -{b}, {b}, {c}", f"v_max_f32 {d}, 0, {d}", f"v_add_f32 {d}, 0x3727c5ac, {d}",
           f"v_sqrt_f32 {c}, {d}", f"v_rcp_f32 {vRS2}, {d}",
           f"v_cmp_eq_u32 vcc, 0, {vHH}",
           f"v_mov_b32 {BX[3]}, 0",
           f"v_cndmask_b32 {b}, 0, {b}, vcc", f"v_cndmask_b32 {c}, 0, {c}, vcc",
           f"v_cvt_pk_bf16_f32 {BX[0]}, {b}, {b}",
           f"v_cvt_pk_bf16_f32 {e}, {c}, {c}",
           f"v_and_b32 {a}, {sHI}, {BX[0]}", f"v_and_b32 {e}, {sHI}, {e}",
           f"v_sub_f32 {b}, {b}, {a}", f"v_sub_f32 {c}, {c}, {e}",
           f"v_cvt_pk_bf16_f32 {BX[1]}, {b}, {e}",
           f"v_cvt_pk_bf16_f32 {BX[2]}, {e}, {c}"]
    for s_ in seq: ops.append((lambda s_=s_: I(s_)) if s_ else None)
    return ops
hst = {}
def epilogue(it):
    ac = ACC[accmap[it]]; ops = []
    for r in range(8): ops.append(lambda r=r: I(f"v_mul_f32 {ac[r]}, {ac[r]}, {ac[8+r]}"))
    for r in range(8): ops.append(lambda r=r: I(f"v_mul_f32 {ac[r]}, {ac[r]}, {vRS2}"))
    for n in range(4): ops.append(lambda n=n: I(f"v_cvt_pk_bf16_f32 {hp[n]}, {ac[2*n]}, {ac[2*n+1]}"))
    def st():
        G['lastst'] = G['now']
        hst[it] = I(f"buffer_store_dwordx4 {hp}, {vL16 if it < 4 else vL16b}, {rWS}, {sHS} offen offset:{1024*(it&3)} sc1")
    ops.append(VM(st)); ops.append(None)
    return ops
def lvl_flag(level, tiles):
    def f():
        P.wait([hst[t] for t in tiles])
        post_flag(vF5, F5 + level*FL)
    return f
def epoch_store():
    I(f"s_or_b32 {sT[0]}, s2, {sWv}")
    I(f"s_cselect_b32 {sT[0]}, {OOB}, {EPOCH}")
    lane0(t0, sT[0], t1)
    I(f"buffer_store_dword {vTag}, {t0}, {rWS}, 0 offen sc1")
sSQ = S.alloc(); sH0 = S.alloc(); sH1 = S.alloc()
ht = {}; hreg = {}; hfree = []
def h_load(i, st):
    c, it = order[i]; n = c*7 + it
    hreg[i, st] = r = hfree.pop(0)
    I(f"s_add_u32 {sT[0]}, {sH1 if st else sH0}, {1024*n}")
    ht[i, st] = I(f"buffer_load_dwordx4 {r}, {vL16}, {rWS}, {sT[0]} offen sc1")
def g2_setup_ops():
    seq = [f"s_lshr_b32 {sT[3]}, {sWv}, 1", f"s_lshl_b32 {sSQ}, {sR64}, 1", f"s_add_u32 {sSQ}, {sSQ}, {sT[3]}",
           f"s_mul_i32 {sT[4]}, {sWv}, 28", f"s_mul_i32 {sH0}, {sSQ}, 112", f"s_add_u32 {sH0}, {sH0}, {sT[4]}",
           f"s_lshl_b32 {sH0}, {sH0}, 10", f"s_add_u32 {sH0}, {sH0}, {HH}",
           f"s_xor_b32 {sT[3]}, {sSQ}, 1", f"s_mul_i32 {sH1}, {sT[3]}, 112", f"s_add_u32 {sH1}, {sH1}, {sT[4]}",
           f"s_lshl_b32 {sH1}, {sH1}, 10", f"s_add_u32 {sH1}, {sH1}, {HH}",
           f"v_and_b32 {t1}, 1, {vL}", f"v_lshlrev_b32 {t1}, 4, {t1}", f"v_bfe_u32 {t2}, {vL}, 1, 2", f"v_add_u32 {t1}, {t1}, {t2}",
           f"s_lshl_b32 {sT[3]}, {sR64}, 5", f"s_lshl_b32 {sT[4]}, {sWv}, 2", f"s_add_u32 {sT[3]}, {sT[3]}, {sT[4]}",
           f"v_add_lshl_u32 {vP5}, {t1}, {sT[3]}, {FSH}"]
    return [(lambda x=x: I(x)) for x in seq]
def res_loads():
    I(f"s_lshl_b32 {sT[0]}, {sSQ}, 15")
    I(f"s_lshl_b32 {sT[1]}, {sDQ}, 6")
    I(f"s_add_u32 {sT[0]}, {sT[0]}, {sT[1]}")
    I(f"s_add_u32 {sT[0]}, {sT[0]}, {X1T}")
    I(f"v_lshl_add_u32 {t0}, {vHH}, 9, {vL16}")
    G['txq'] = [I(f"buffer_load_dwordx4 {XQ[4*n:4*n+4]}, {t0}, {rWS}, {sT[0]} offen offset:{512*n} sc1") for n in range(2)]
c12a, c12b = c12_ops()
sgt = []
wq = []
VSP, BL, WD0, WDL = opt('vsp', 2), opt('bl', 36), opt('wdg', 4), opt('wdl', 20)
vq = []; lastv = -99; lastd = -99
WP_, WDP_, HP0 = opt('wp', 6), opt('wdp', 2), opt('hp0', T6+6)
N6, NC1, NS1, NC2, NS2 = opt('n6', 6), opt('nc1', XA-64), opt('ns1', XA-58), opt('nc2', XA-38), opt('ns2', XA-26)
nextg = NPRE; lastw = -99; xdone = set()
for n, (it, ks, fr) in enumerate(jobs):
    need = [g for g in first_job if g not in published and first_job[g] - LOOK <= n + 1]
    freeable = nextg < 14 and (nextg - NG < 0 or last_job[nextg-NG] < n) and n % opt('fb', 32) == opt('fbo', 2)
    exw = (n == XA - 8)
    if exw: assert 'tex' in G
    if need or freeable or exw:
        ready = [g for g in wch if g not in published and len(wch[g]) == 4 and (g in need or wch[g][-1][1] < P.vm_done)]
        for g in need: assert g in ready, (n, g)
        P.wait([wch[g] for g in ready], atok[n], G.get('tex') if exw else None)
        I("s_barrier"); published |= set(ready)
        for g in (6, 7):
            if opt('xs', 1) and last_job[g] < n and g not in xdone:
                xdone.add(g); G['wd']['free'] = [100 + 2*(g-6), 101 + 2*(g-6)] + G['wd']['free']
                if G['vWx'] is None:
                    G['vWx'] = [V.alloc(), V.alloc()]
                    I(f"s_sub_u32 {sT[5]}, {sWdst}, {sWDs}"); I(f"s_add_u32 {sT[5]}, {sT[5]}, {XB}")
                    for k_ in range(2): I(f"v_add_u32 {G['vWx'][k_]}, {sT[5]}, {G['vWr'][k_]}")
        if opt('dbg'): print(f'\nbar n={n} need={need} ready={ready} lastst', G.get('lastst'), file=sys.stderr)
        while nextg < 14 and (nextg - NG < 0 or last_job[nextg-NG] < n):
            wch[nextg] = []
            for q in range(4): wq.append((first_job[nextg] - opt('wlead', 200), first_job[nextg], lambda g=nextg, q=q: wch[g].extend(w_dma(16384*g, 16384*(g % NG), q, q+1))))
            nextg += 1
    if n in ((32, 64, 96, 128, T5, T6) if not opt('fine') else tuple(range(8, 231, 8))): stamp(f"n{n}")
    if 'win' in OPT and opt('win') <= n < opt('win') + 56*opt('wst', 1) and (n - opt('win')) % opt('wst', 1) == 0: stamp(f'w_{n}'); I(f'; job {n}')
    if n % 2 == 0: P.wait(atok[n], atok.get(n+1), btok.get(ks))
    else: P.wait(atok[n], btok.get(ks))
    ac = ACC[accmap[it]]
    bsrc = BX if ks == 'x' else Bf[4*ks:4*ks+4]
    first = (ks == 0 and it <= NA) or (ks == 'x' and it > NA)
    I(f"v_mfma_f32_32x32x16_bf16 {ac}, {AR[4*(n%8):4*(n%8)+4]}, {bsrc}, {0 if first else ac}")
    if it == 6 and ks != 'x': hfree.append(Bf.g[ks])
    if n + LOOK < NJ: atok[n+LOOK] = job_read(n+LOOK)
    budget = 4
    G['now'] = n
    Wd = G['wd']; vm0 = P.vm
    if n - lastv >= VSP and not any(isinstance(x, VM) for x in side[:3]):
        bdue = len(btok) < 32 and len(btok)*NA - n < BL
        if vq: vq.pop(0)(); budget = 2
        elif bdue: b_next(); budget = 2
        elif wq and wq[0][1] - n < opt('wurg', 300): wq.pop(0)[2](); budget = 1
        elif G.get('l0') and len(hfree) > 1 and len(ht) < 24:
            i = len(ht); h_load(i//2, i % 2); budget = 2
        elif n >= WD0 and n - lastd >= WDP_ and wd_dma1(): lastd = n; budget = 0
        elif wq and n >= wq[0][0]: wq.pop(0)[2](); budget = 1
    if P.vm == vm0 and Wd['nr'] < Wd['nd'] and n - Wd['ti'].get(Wd['nr'], -99) >= WDL: wd_read(); budget = 0
    if n == N6: vq += [epoch_store]
    if n == NC1 - 24: vq += [lambda: G.__setitem__('tp6', flag_load(vp3, vP3, F4))]
    if n == NC1: side += [lambda: (check_tags([vp3], lambda: flag_load(vp3, vP3, F4), G['tp6']), vp3.free(), vP3.free(), vq.extend(c12a))]
    if n == NS1:
        for j in range(4): vq += [lambda j=j: sgt.extend(sg_loads(j, j+1))]
    if n == NC2: side += c12b
    if n == NS2: side += stats2_ops(sgt)
    if n == XA - 1: assert not side, len(side)
    if n == XA + NA + 1:
        SGX.g[2].free(); SGX.g[3].free()
        XQ = Frags(2); vP5 = V.alloc(); vp5 = V.alloc()
        for e in range(NA): side += epilogue(e)
    if n == T4 + 4: side += g2_setup_ops()
    for e in range(NA, 6):
        if n == TT[e+1] + 3: side += epilogue(e)
    if n == opt('l0p', 168): vq += [lvl_flag(0, (0, 1, 2))]
    if n == opt('l1p', 210): vq += [lvl_flag(1, (3, 4))]
    if n == HP0 - opt('l0w', 14): vq += [lambda: G.__setitem__('tp5', flag_load(vp5, vP5, F5))]
    if n == HP0: side += [lambda: (check_tags([vp5], lambda: flag_load(vp5, vP5, F5), G['tp5']), G.__setitem__('l0', True), vq.append(res_loads))]
    k = 0
    while side and k < budget:
        if isinstance(side[0], VM) and (P.vm != vm0 or n - lastv < VSP): break
        f = side.pop(0); k += 1
        if f: f()
    if P.vm != vm0: lastv = n
    for e in range(NA+2, 7):
        if n == TT[e] - 1: assert e - NA - 2 in hst
for f in side:
    if f: f()
for f in vq: f()
if G['wd'].get('half'): wd_dma1()
assert not wq
print('wd progress', G['wd']['nd'], G['wd']['nr'], 'hh early', len(ht), file=sys.stderr)
def h_next():
    i = len(ht)
    if i < G['hlim'] and hfree: h_load(i//2, i % 2); return True
    return False
G['hlim'] = 24
h_next(); h_next()
for f in epilogue(6):
    if f: f()
stamp("g1 done")
for r in ACC + [BX, vRS2, vAd, vAd2, vEx]: r.free()
I("s_barrier")

GA = [V.alloc(16) for _ in range(4)]
HD = opt('hd', 20)
while len(ht) < opt('hd0', 10): h_next()
PL = {1: (opt('p1', 1), opt('p1c', 6), 40), 2: (opt('p2', 9), opt('p2c', 14), 48), 3: (opt('p3', 15), opt('p3c', 20), 56)}
mj = [(i, q) for i in range(24) for q in range(4)] + [(i, q) for q in (1, 2, 3, 0) for i in range(24, 28)]
red = []
for m, (i, q) in enumerate(mj):
    c, it = order[i]; n = c*7 + it; dt, st = q & 1, q >> 1
    if (i, st) not in ht:
        raise RuntimeError(f"hh {i} not issued")
    if opt('gfine') and m % 8 == 0: stamp(f'm{m}')
    P.wait(ht[i, st], G['wd']['rd'][i])
    I(f"v_mfma_f32_32x32x16_bf16 {GA[q]}, {AWD[8*i+4*dt:8*i+4*dt+4]}, {hreg[i, st]}, {0 if i==0 else GA[q]}")
    if i < 24 and dt == 1: hfree.append(hreg[i, st])
    G['now'] = NJ + 8 + m; Wd = G['wd']
    if m % 2 == 0 and Wd['nr'] < 28:
        if Wd['nr'] < Wd['nd'] and G['now'] - Wd['ti'].get(Wd['nr'], -99) >= WDL: wd_read()
        else: wd_dma1()
    if len(ht) < 2*i + HD + 2 and (m % 2 == 1 or len(ht) < 2*i + opt('hmin', 10)): h_next()
    if q == 0 and i < 24:
        for lv, (pi_, pc_, lim) in PL.items():
            if i == pc_:
                check_tags([vp5], lambda lv=lv: flag_load(vp5, vP5, F5 + lv*FL), G['tp']); G['hlim'] = lim; opt('gfine') or stamp(f"L{lv} ok")
        for lv, (pi_, pc_, lim) in PL.items():
            if i == pi_: G['tp'] = flag_load(vp5, vP5, F5 + lv*FL)
        if i == opt('l2p', 2): lvl_flag(2, (5,))()
        if i == opt('l3p', 8): lvl_flag(3, (6,))()
        if i == 2:
            I(f"v_lshl_add_u32 {t0}, {vQ}, 2, {sXdst}")
            I(f"ds_write_b32 {t0}, {vGB} offset:6144")
        if i == 21:
            G['GB'] = GB = [hfree.pop() for _ in range(4)]
            I(f"v_lshlrev_b32 {t1}, 6, {vHH}")
            I(f"v_add_u32 {t1}, {sXdst}, {t1}")
            for n_ in range(4): I(f"ds_read_b128 {GB[n_]}, {t1} offset:{6144+16*n_}")
        if i == 21:
            G['XF'] = XF = [hfree.pop() for _ in range(4)]
            P.wait(G['txq'])
            for rho in range(8):
                red.append(lambda rho=rho: (unpack(XF[rho//2][2*(rho%2)], XQ[rho], 0), unpack(XF[rho//2][2*(rho%2)+1], XQ[rho], 1)))
        if i == 23:
            G['RA'] = RA = hfree.pop()
            for qq in range(1, 4):
                red.append(lambda qq=qq: (I(f"s_xor_b32 {sT[0]}, {sWv}, {qq}"), I(f"s_mul_i32 {sT[0]}, {sT[0]}, 12288"), I(f"v_add_u32 {RA[qq]}, {sT[0]}, {vL16}")))
            red.append(lambda: (I(f"s_mul_i32 {sT[0]}, {sWv}, 12288"), I(f"v_add_u32 {RA[0]}, {sT[0]}, {vL16}")))
            red.append(lambda: (I(f"s_lshl_b32 {sT[2]}, {sSQ}, 15"), I(f"s_lshl_b32 {sT[1]}, {sDQ}, 1"), I(f"s_add_u32 {sT[2]}, {sT[2]}, {sT[1]}"), I(f"s_add_u32 {sT[3]}, {sT[2]}, 16384")))
            red.append(lambda: (I(f"v_lshrrev_b32 {t1}, 2, {vL}"), I(f"v_lshlrev_b32 {t1}, 10, {t1}"), I(f"v_and_b32 {t2}, 3, {vL}"), I(f"v_lshl_add_u32 {t1}, {t2}, 4, {t1}")))
            red.append(lambda: (I(f"v_lshlrev_b32 {t2}, 6, {vQ}"), I(f"v_lshl_add_u32 {t2}, {vHH}, 5, {t2}"), I(f"v_add_u32 {t2}, {sXdst}, {t2}"), I(f"v_add_u32 {t0}, {sXdst}, {vL16}")))
    if m >= 101 and (m - 101) // 4 < 2:
        qq = (m - 101)//4 + 1; r = (m - 101) % 4
        I(f"ds_write_b128 {G['RA'][qq]}, {GA[qq][4*r:4*r+4]} offset:{(qq-1)*4096 + r*1024}")
    elif m >= 109:
        r = m - 109
        I(f"ds_write_b128 {G['RA'][3]}, {GA[3][4*r:4*r+4]} offset:{2*4096 + r*1024}")
    elif red: red.pop(0)()
assert not red
I(f"ds_write_b128 {G['RA'][3]}, {GA[3][12:16]} offset:{2*4096 + 3*1024}")
stamp("g2 mfma")
GB, XF, RA = G['GB'], G['XF'], G['RA']
P.wait_all(vm=False)
I("s_barrier")
tl = {}
for r in range(4):
    tl[r] = [I(f"ds_read_b128 {GA[q][4*r:4*r+4]}, {RA[0]} offset:{(q-1)*4096 + r*1024}") for q in range(1, 4)]
OST = OPT.get('ost', '')
for r in range(4):
    P.wait(tl[r])
    for h in (0, 2): I(f"v_pk_add_f32 {GA[1][4*r+h:4*r+h+2]}, {GA[1][4*r+h:4*r+h+2]}, {GA[2][4*r+h:4*r+h+2]}")
    for h in (0, 2): I(f"v_pk_add_f32 {GA[0][4*r+h:4*r+h+2]}, {GA[0][4*r+h:4*r+h+2]}, {GA[3][4*r+h:4*r+h+2]}")
    for h in (0, 2): I(f"v_pk_add_f32 {GA[0][4*r+h:4*r+h+2]}, {GA[0][4*r+h:4*r+h+2]}, {GA[1][4*r+h:4*r+h+2]}")
    for h in (0, 2): I(f"v_pk_fma_f32 {XF[r][h:h+2]}, {GA[0][4*r+h:4*r+h+2]}, {GB[r][h:h+2]}, {XF[r][h:h+2]}")
    for h in (0, 2): I(f"v_cvt_pk_bf16_f32 {XQ[2*r+h//2]}, {XF[r][h]}, {XF[r][h+1]}")
    if r % 2: I(f"ds_write_b128 {t2}, {XQ[2*r-2:2*r+2]} offset:{4096 + 8*(r-1)}")
tl = [I(f"ds_read_b128 {GB[h]}, {t0} offset:{4096+1024*h}") for h in range(2)]
for h in range(2):
    P.wait(tl[h])
    I(f"buffer_store_dwordx4 {GB[h]}, {t1}, {rOUT}, {sT[2+h]} offen {OST}")
stamp("end")
if TSTAMP:
    P.wait_all()
    stamp("drained")
    n = nts[0]
    I("s_waitcnt lgkmcnt(0)")
    I(f"v_writelane_b32 {vTs}, {sTp[n&1][0]}, {n-2}")
    I(f"v_writelane_b32 {vTs}, {sTp[(n+1)&1][0]}, {n-1}")
    I(f"v_subrev_u32 {vTs}, {sT0[0]}, {vTs}")
    I(f"s_memrealtime {sTp[0]}")
    I("s_waitcnt lgkmcnt(0)")
    I(f"v_writelane_b32 {vTs}, {sR0[0]}, 62")
    I(f"v_writelane_b32 {vTs}, {sTp[0][0]}, 63")
    I(f"v_writelane_b32 {vTs}, {sSpin}, 61")
    I(f"s_lshl_b32 {sT[0]}, s2, 10")
    I(f"s_add_u32 {sT[0]}, {sT[0]}, {TS}")
    I(f"v_lshlrev_b32 {t0}, 2, v0")
    I(f"buffer_store_dword {vTs}, {t0}, {rWS}, {sT[0]} offen")
    print(f"\nNTS={n}", file=sys.stderr)
if PROBE:
    I("s_waitcnt lgkmcnt(0)")
    I(f"s_sub_u32 {sT[0]}, {sTp[0][0]}, {sT0[0]}")
    I(f"s_min_u32 {sT[0]}, {sT[0]}, 100000")
    I(f"s_memrealtime {sT0}")
    I("L_spin:")
    I(f"s_memrealtime {sTp[0]}")
    I("s_waitcnt lgkmcnt(0)")
    I(f"s_sub_u32 {sT[1]}, {sTp[0][0]}, {sT0[0]}")
    I(f"s_cmp_lt_u32 {sT[1]}, {sT[0]}")
    I("s_cbranch_scc1 L_spin")
I("L_end:")
I("s_endpgm")
P.ins.extend(slow)
if opt('cpf', 1):
    I(".fill 1536, 4, 0xbf800000")

body = P.finalize()
ref = open(f"cdna_kernels/{NAME}.s.ref").read()
hdr = "".join(l + "\n" for l in ref.split("\n") if l.startswith(";") and "@launch" not in l)
out = hdr + f"; @launch grid=(256,1,1) block=(256,1,1) lds={LDS_SIZE}\n"
out += f"""; NTS={nts[0] if TSTAMP else 0} LAYOUT=10 WSOFF={WSOFF}
.amdgcn_target "amdgcn-amd-amdhsa--gfx950"
.text
.globl {NAME}_kernel
.p2align 8
.type {NAME}_kernel,@function
{NAME}_kernel:
{body}
.section .rodata,"a"
.p2align 6
.amdhsa_kernel {NAME}_kernel
  .amdhsa_next_free_vgpr 512
  .amdhsa_next_free_sgpr 102
  .amdhsa_accum_offset 256
  .amdhsa_group_segment_fixed_size 0
  .amdhsa_kernarg_size 120
  .amdhsa_user_sgpr_count 2
  .amdhsa_user_sgpr_kernarg_segment_ptr 1
  .amdhsa_system_sgpr_workgroup_id_x 1
.end_amdhsa_kernel
"""
dst = [a for a in sys.argv[1:] if not a.startswith('--')][0]
open(dst, "w").write(out)
print(f"instrs {len(P.ins)} nops {P.nops} vgpr hi {V.hi} sgpr hi {S.hi}", file=sys.stderr)
```

```python
import sys
from dsl import *

NAME = "adaLN_cond__ssm_conv_h3__glu_gated_bilinear__prompt"
OPT = {}
for a_ in sys.argv[1:]:
    if a_.startswith('--'):
        k, _, v = a_[2:].partition('='); OPT[k] = v if v else '1'
def opt(k, d=0): return type(d)(OPT.get(k, d))
TSTAMP = opt('ts')
PROBE = tuple(int(x) for x in OPT['probe'].split(',')) if 'probe' in OPT else None
TSOP = 's_memrealtime' if opt('rt') else 's_memtime'
NTS_ = OPT.get("nt", "")
def nt(k): return "nt" if k in NTS_ else ""
NT = nt("k")

EPOCH=0; F3=0x10000; F4=0x40000; F5=0x60000; F1=0x800000; FY=0x820000; S2=0x840000
MODG=0x90000; STG=0xA8000; C12=0xB0000; MODL2=0x880000
KVG=0x100000; XG=0x500000; X1T=0x900000; WP=0xB00000; WDP=0xF00000; HH=0x1100000; SG=0x1800000; TS=0x1900000
WS_SIZE=0x1A00000
OOB=0x80000000
FSH=opt('fsh', 4); F6=0x18000 if FSH <= 5 else 0xF0000
UB=0; UCH=4608; MODL=9216; CBL=10240; C12L=11264
TAPS=15360; TCOPY=4160; TCH=33280
RED=131072
WL=0; XS=131072; XSW=7168; EX=159744; NG=8
XTO=8192; C12O=10240; CBO=11264; S2O=11776
WDS0=81920; WDW0=20480; REDO=12288
LDS_SIZE=163840
NA = opt('na', 3)

P = Prog(); I = P.I; V = P.V; A = P.A; S = P.S
S.reserve(0, 3); V.reserve(0, 1)
def srd(): return S.alloc(4, 4)
rX, rK, rV, rSH, rTP, rW, rWD, rC, rWM, rOUT, rWS, rD = [srd() for _ in range(12)]
sPG = S.alloc(2, 2); sPU = S.alloc(2, 2)
sXJ = S.alloc(); sGI = S.alloc(); sWv = S.alloc(); sSpin = S.alloc()
sT = [S.alloc() for _ in range(6)]
sZ = [S.alloc() for _ in range(2)]
sC4096 = S.alloc()
sPL = S.alloc(); sPH = S.alloc(); sHI = S.alloc(); sONE = S.alloc()
sD0 = S.alloc()
sTp = [S.alloc(2, 2), S.alloc(2, 2)]; sT0 = S.alloc(2, 2)

class Frags:
    def __init__(self, n, pool=None): self.g = [(pool or V).alloc(4) for _ in range(n)]
    def __getitem__(self, i):
        if isinstance(i, slice):
            assert i.start//4 == (i.stop-1)//4
            return self.g[i.start//4][i.start%4:(i.stop-1)%4+1]
        return self.g[i//4][i%4]
    def free(self):
        for g in self.g: g.free()

nts = [0]
def stamp(name=""):
    if 'win' in OPT and not (name.startswith('w_') or name in ('end', 'drained')): return
    n = nts[0]; nts[0] += 1
    if PROBE:
        if n == PROBE[0]: I(f"s_memrealtime {sT0}")
        if n == PROBE[1]: I(f"s_memrealtime {sTp[0]}")
        return
    if not TSTAMP: return
    if n >= 2: I(f"v_writelane_b32 {vTs}, {sTp[n&1][0]}, {n-2}")
    I(f"{TSOP} {sTp[n&1]}")
    print(f"{n}:{name}", file=sys.stderr, end="  ")

slow = []
def check_tags(tags, reissue, toks):
    R = P.label("chk"); SL = P.label("slow"); D = P.label("ok")
    P.wait(toks)
    mn = V.alloc(); mx = V.alloc()
    I(f"{R}:")
    tg = list(tags)
    if len(tg) == 1:
        I(f"v_cmp_ne_u32 vcc, {tg[0]}, {vTag}")
    else:
        if len(tg) % 2: tg.append(tg[0])
        for i in range(0, len(tg), 2):
            I(f"v_min3_u32 {mn}, {vTag if i==0 else mn}, {tg[i]}, {tg[i+1]}")
            I(f"v_max3_u32 {mx}, {vTag if i==0 else mx}, {tg[i]}, {tg[i+1]}")
        I(f"v_cmp_ne_u32 vcc, {mn}, {mx}")
    I(f"s_cbranch_vccnz {SL}")
    I(f"{D}:")
    mn.free(); mx.free()
    save = (P.ins, P.vm, P.lg, P.vm_done, P.lg_done)
    P.ins = []
    I(f"{SL}:")
    I(f"s_add_u32 {sSpin}, {sSpin}, 1")
    I(f"s_cmp_gt_u32 {sSpin}, 200000")
    I(f"s_cbranch_scc1 {D}")
    reissue()
    I("s_waitcnt vmcnt(0)")
    I(f"s_branch {R}")
    slow.extend(P.ins)
    P.ins, P.vm, P.lg, P.vm_done, P.lg_done = save

def post_flag(vaddr, base):
    I(f"s_mov_b32 {sZ[0]}, {base}")
    return I(f"buffer_store_dword {vTag}, {vaddr}, {rWS}, {sZ[0]} offen sc1")
def flag_load(vp, vaddr, base):
    I(f"s_mov_b32 {sZ[0]}, {base}")
    return I(f"buffer_load_dword {vp}, {vaddr}, {rWS}, {sZ[0]} offen sc1")
def poll(vaddr, base):
    vp = V.alloc()
    t = flag_load(vp, vaddr, base)
    check_tags([vp], lambda: flag_load(vp, vaddr, base), t)
    vp.free()
sRel = S.alloc()
def post_local(vaddr, base):
    if not LOC: return post_flag(vaddr, base)
    I(f"s_mov_b32 {sZ[0]}, {base}")
    return I(f"buffer_store_dword {vTagL}, {vaddr}, {rWS}, {sZ[0]} offen")
def check_local(vp, vpoll, vown, base, tok):
    if not LOC: return check_tags([vp], lambda: flag_load(vp, vpoll, base), tok)
    SL = P.label("lslow"); D = P.label("lok"); RL = P.label("lrel"); AG = P.label("lagain"); NR = P.label("lnorel")
    P.wait(tok)
    I(f"v_cmp_ne_u32 vcc, {vp}, {vTagL}")
    I(f"s_cbranch_vccnz {SL}")
    I(f"{D}:")
    save = (P.ins, P.vm, P.lg, P.vm_done, P.lg_done)
    P.ins = []
    I(f"{SL}:")
    I(f"s_mov_b32 {sRel}, 0")
    I(f"{AG}:")
    I(f"s_add_u32 {sSpin}, {sSpin}, 1")
    I(f"s_cmp_gt_u32 {sSpin}, 200000")
    I(f"s_cbranch_scc1 {D}")
    flag_load(vp, vpoll, base)
    I("s_waitcnt vmcnt(0)")
    I(f"v_cmp_ne_u32 vcc, {vp}, {vTagL}")
    I(f"s_cbranch_vccz {D}")
    I(f"s_cmp_ge_u32 {sRel}, 0x10000")
    I(f"s_cbranch_scc1 {NR}")
    I(f"s_add_u32 {sRel}, {sRel}, 1")
    I(f"s_cmp_ge_u32 {sRel}, {opt('ltry', 40)}")
    I(f"s_cbranch_scc1 {RL}")
    I(f"v_cmp_eq_u32 vcc, {vp}, {vTag}")
    I(f"s_cbranch_vccz {AG}")
    I(f"{RL}:")
    I("buffer_wbl2 sc1")
    I("s_waitcnt vmcnt(0)")
    post_flag(vown, base)
    I(f"s_mov_b32 {sRel}, 0x10000")
    I(f"{NR}:")
    I(f"v_cmp_ne_u32 vcc, {vp}, {vTagL}")
    I(f"v_cmp_ne_u32 {sTp2}, {vp}, {vTag}")
    I(f"s_and_b64 {sTp2}, vcc, {sTp2}")
    I(f"s_cbranch_scc1 {AG}")
    I("s_waitcnt vmcnt(0)")
    I(f"s_branch {D}")
    slow.extend(P.ins)
    P.ins, P.vm, P.lg, P.vm_done, P.lg_done = save
def unpack(dst, src, hi):
    I(f"v_and_b32 {dst}, {sHI}, {src}" if hi else f"v_lshlrev_b32 {dst}, 16, {src}")
def round_bf16(dst, src):
    I(f"v_cvt_pk_bf16_f32 {dst}, {src}, {src}")
    I(f"v_and_b32 {dst}, {sHI}, {dst}")
def lane0(dst, sval, tmp):
    I(f"v_mov_b32 {dst}, {OOB}")
    I(f"v_writelane_b32 {dst}, {sval}, 0")

I("s_cmp_ge_u32 s2, 256")
I("s_cbranch_scc1 L_end")
if PROBE and PROBE[0] == -1: I(f"s_memrealtime {sT0}")
if TSTAMP:
    I(f"{TSOP} {sT0}")
    sR0 = S.alloc(2, 2); I(f"s_memrealtime {sR0}")
for r, off in ((rK,8),(rV,16),(rSH,24),(rWS,112),(rC,80),(rWM,88),(rX,0),(rTP,32),(rWD,72),(rOUT,96)):
    I(f"s_load_dwordx2 {r[0:2]}, s[0:1], {off}")
I(f"s_load_dwordx2 {sPG}, s[0:1], 56")
I(f"s_load_dwordx2 {sPU}, s[0:1], 64")
I(f"s_load_dwordx2 {rD[0:2]}, s[0:1], 40")
vL = V.alloc(); vL16 = V.alloc(); vTag = V.alloc(); vHH = V.alloc(); vQ = V.alloc(); vT16 = V.alloc()
if TSTAMP: vTs = V.alloc()
t0 = V.alloc(); t1 = V.alloc(); t2 = V.alloc()
I(f"s_and_b32 {sXJ}, s2, 7")
I(f"s_lshr_b32 {sGI}, s2, 3")
I(f"v_lshrrev_b32 {t0}, 6, v0")
I(f"v_and_b32 {vL}, 63, v0")
I(f"v_readfirstlane_b32 {sWv}, {t0}")
I(f"v_lshlrev_b32 {vL16}, 4, {vL}")
I(f"v_lshlrev_b32 {vT16}, 4, v0")
def do_cpf():
    global cpa, cpd
    cpa = V.reserve(250, 2); cpd = V.reserve(252, 4)
    I(f"s_getpc_b64 {sTp[0]}")
    I(f"s_and_b32 {sTp[0][0]}, {sTp[0][0]}, 0xffffff00")
    I(f"s_and_b32 {sT[5]}, {sGI}, 7")
    I(f"s_min_u32 {sT[5]}, {sT[5]}, 6")
    I(f"s_lshl_b32 {sT[5]}, {sT[5]}, 12")
    I(f"s_add_u32 {sTp[0][0]}, {sTp[0][0]}, {sT[5]}")
    I(f"s_addc_u32 {sTp[0][1]}, {sTp[0][1]}, 0")
    I(f"v_mov_b32 {cpa[1]}, {sTp[0][1]}")
    I(f"v_add_co_u32 {cpa[0]}, vcc, {sTp[0][0]}, {vT16}")
    I(f"v_addc_co_u32 {cpa[1]}, vcc, 0, {cpa[1]}, vcc")
    I(f"global_load_dwordx4 {cpd}, {cpa}, off")
if opt('cpf', 1) == 1: do_cpf()
for r, n in ((rK,2097152),(rV,2097152),(rSH,4096),(rWS,WS_SIZE),(rC,1024),(rWM,3145728),(rX,2097152),(rTP,2097152),(rWD,1835008),(rOUT,2097152),(rW,1835008),(rD,1024)):
    I(f"s_mov_b32 {r[2]}, {n}")
    I(f"s_mov_b32 {r[3]}, 0x20000")
I(f"v_lshrrev_b32 {vHH}, 5, {vL}")
I(f"v_and_b32 {vQ}, 31, {vL}")
I(f"s_mov_b32 {sSpin}, 0")
I(f"s_movk_i32 {sC4096}, 0x1000")
vB = V.alloc(); vH = V.alloc(); vSH = V.alloc(); vGS = V.alloc()
I(f"s_lshl_b32 {sT[0]}, {sGI}, 16")
I(f"s_lshl_b32 {sT[1]}, {sXJ}, 7")
I(f"s_lshl_b32 {sT[2]}, {sWv}, 5")
I(f"s_add_u32 {sT[1]}, {sT[1]}, {sT[2]}")
I(f"s_add_u32 {sT[0]}, {sT[0]}, {sT[1]}")
I(f"v_lshrrev_b32 {t0}, 3, {vL}")
I(f"v_and_b32 {t1}, 7, {vL}")
I(f"v_lshlrev_b32 {vB}, 13, {t0}")
I(f"v_lshl_add_u32 {vB}, {t1}, 2, {vB}")
I(f"v_add_u32 {vB}, {sT[0]}, {vB}")
I(f"v_subrev_u32 {vH}, 3072, {vB}")
I(f"s_lshl_b32 {sT[2]}, {sT[1]}, 2")
I(f"v_lshlrev_b32 {vSH}, 4, {t1}")
I(f"v_add_u32 {vSH}, {sT[2]}, {vSH}")
I(f"v_mov_b32 {t2}, {EPOCH}")
if opt("sfine"): stamp("s0")
I("s_waitcnt lgkmcnt(0)")
if opt("sfine"): stamp("karg")
WSOFF = opt('wsoff', 0) << 20
if WSOFF:
    I(f"s_add_u32 {rWS[0]}, {rWS[0]}, {WSOFF}")
    I(f"s_addc_u32 {rWS[1]}, {rWS[1]}, 0")
LOC = opt('loc', 1); LST = '' if LOC else 'sc1'
vTagL = V.alloc()
PT = V.alloc(4)
Kr = V.alloc(11, 1); Vr = V.alloc(8, 1); SHr = V.alloc(4)
tep = I(f"buffer_load_dword {vTag}, {t2}, {rWS}, 0 offen sc1")
tsh = I(f"buffer_load_dwordx4 {SHr}, {vSH}, {rSH}, 0 offen")
PTA = OPT.get('pta', 'sc1')
def pretouch(base):
    I(f"s_lshl_b32 {sZ[0]}, {sXJ}, 18")
    I(f"s_lshl_b32 {sZ[1]}, {sGI}, 13")
    I(f"s_add_u32 {sZ[0]}, {sZ[0]}, {sZ[1]}")
    I(f"s_add_u32 {sZ[0]}, {sZ[0]}, {base}")
    I(f"s_add_u32 {sZ[1]}, {sZ[0]}, 4096")
    for c in range(2): I(f"buffer_load_dwordx4 {PT}, {vT16}, {rWS}, {sZ[c]} offen {PTA}")
if LOC and opt('ptfirst', 0): pretouch(KVG)
tk = []
for e in range(3): tk.append(I(f"buffer_load_dword {Kr[e]}, {vH}, {rK}, 0 offen offset:{e*1024} {NT}"))
for e in range(8): tk.append(I(f"buffer_load_dword {Kr[3+e]}, {vB}, {rK}, {sC4096 if e>=4 else 0} offen offset:{(e&3)*1024} {NT}"))
tv = [I(f"buffer_load_dword {Vr[e]}, {vB}, {rV}, {sC4096 if e>=4 else 0} offen offset:{(e&3)*1024} {NT}") for e in range(8)]
vH.free(); vSH.free()
if opt('sfine'): stamp('L1')
if LOC and not opt('ptfirst', 0): pretouch(KVG)
if opt('cpf', 1) == 2: do_cpf()
vBP = V.alloc()
I(f"s_lshl_b32 {sT[2]}, {sT[1]}, 11")
I(f"s_lshl_b32 {sT[3]}, {sGI}, 7")
I(f"s_add_u32 {sT[2]}, {sT[2]}, {sT[3]}")
I(f"v_lshlrev_b32 {vGS}, 13, {t0}")
I(f"v_lshl_add_u32 {vGS}, {t1}, 4, {vGS}")
I(f"s_add_u32 {sT[2]}, {sT[2]}, {KVG}")
I(f"v_add_u32 {vGS}, {sT[2]}, {vGS}")
I(f"v_lshlrev_b32 {vBP}, 5, {t1}")
I(f"v_lshl_add_u32 {vBP}, {t0}, 2, {vBP}")
I(f"s_mov_b32 {sPL}, 0x05040100")
I(f"s_mov_b32 {sPH}, 0x07060302")
I(f"s_mov_b32 {sHI}, 0xffff0000")
I(f"s_mov_b32 {sONE}, 0x3f803f80")
sM = S.alloc(); sKS = S.alloc(); sCB = S.alloc()
I(f"s_and_b32 {sM}, {sGI}, 1")
I(f"s_cmp_eq_u32 {sM}, 0")
I(f"s_cselect_b32 {rW[0]}, {sPG[0]}, {sPU[0]}")
I(f"s_cselect_b32 {rW[1]}, {sPG[1]}, {sPU[1]}")
I(f"s_lshl_b32 {sD0}, {sXJ}, 6")
I(f"s_lshl_b32 {sT[4]}, {sGI}, 1")
I(f"s_add_u32 {sD0}, {sD0}, {sT[4]}")
I(f"s_lshl_b32 {sKS}, {sXJ}, 2")
I(f"s_add_u32 {sKS}, {sKS}, {sWv}")
I(f"s_lshr_b32 {sCB}, {sGI}, 1")
sPG.free(); sTp2 = sPU

G = {}
def A_mod():
    G['vMW'] = vMW = V.alloc(); G['vMC'] = vMC = V.alloc()
    I(f"s_and_b32 {sT[4]}, {sGI}, 3")
    I(f"s_lshl_b32 {sT[4]}, {sT[4]}, 7")
    I(f"v_lshrrev_b32 {t2}, 3, v0")
    I(f"v_add_u32 {t2}, {sT[4]}, {t2}")
    I(f"v_lshlrev_b32 {vMC}, 1, {t2}")
    I(f"v_mul_u32_u24 {vMW}, 6144, {t2}")
    I(f"v_and_b32 {t2}, 7, v0")
    I(f"v_lshl_add_u32 {vMW}, {t2}, 4, {vMW}")
    I(f"s_lshr_b32 {sT[4]}, {sGI}, 2")
    I(f"s_lshl_b32 {sT[4]}, {sT[4]}, 10")
    I(f"s_lshl_b32 {sT[5]}, {sXJ}, 7")
    I(f"s_add_u32 {sT[4]}, {sT[4]}, {sT[5]}")
    I(f"s_cmp_lt_u32 {sGI}, 24")
    I(f"s_cselect_b32 {sT[4]}, {sT[4]}, {OOB}")
    I(f"v_add_u32 {vMW}, {sT[4]}, {vMW}")
def L_mod():
    vMW, vMC = G['vMW'], G['vMC']
    G['Cr'] = Cr = V.alloc(4, 1); G['WMr'] = WMr = V.alloc(16)
    G['tc'] = [I(f"buffer_load_ushort {Cr[i]}, {vMC}, {rC}, 0 offen offset:{64*i}") for i in range(4)]
    G['twm'] = []
    for i in range(4):
        I(f"s_mov_b32 {sT[5]}, {i*32*6144}")
        G['twm'].append(I(f"buffer_load_dwordx4 {WMr[4*i:4*i+4]}, {vMW}, {rWM}, {sT[5]} offen {nt('m')}"))
    vMW.free(); vMC.free()
def L_taps():
    G['TP'] = TP = [V.alloc(8), V.alloc(8)]
    I(f"s_lshl_b32 {sT[4]}, {sD0}, 12")
    I(f"s_add_u32 {sT[5]}, {sT[4]}, 4096")
    I(f"v_subrev_u32 {t2}, 16, {vT16}")
    I(f"v_min_u32 {t2}, {OOB}, {t2}")
    G['ttp'] = []
    for c in range(2):
        G['ttp'].append([I(f"buffer_load_dwordx4 {TP[c][4:8]}, {vT16}, {rTP}, {sT[4+c]} offen {nt('t')}"),
                         I(f"buffer_load_dwordx4 {TP[c][0:4]}, {t2}, {rTP}, {sT[4+c]} offen {nt('t')}")])
def L_w():
    G['WR'] = WR = V.alloc(16)
    I(f"s_mul_i32 {sT[0]}, {sKS}, {16*3584}")
    I(f"s_mul_i32 {sT[1]}, {sCB}, 224")
    I(f"s_add_u32 {sT[0]}, {sT[0]}, {sT[1]}")
    I(f"v_mul_u32_u24 {t2}, {8*3584}, {vHH}")
    I(f"v_lshl_add_u32 {t2}, {vQ}, 3, {t2}")
    G['twr'] = []
    for e in range(8):
        if e and e % 2 == 0: I(f"s_add_u32 {sT[0]}, {sT[0]}, 7168")
        G['twr'].append(I(f"buffer_load_dwordx2 {WR[2*e:2*e+2]}, {t2}, {rW}, {sT[0]} offen offset:{(e&1)*3584} {nt('w')}"))
def L_x1(e):
    if e == 0: G['Xr'] = V.alloc(8, 1); G['tx'] = []
    G['tx'].append(I(f"buffer_load_dword {G['Xr'][e]}, {vB}, {rX}, {sC4096 if e>=4 else 0} offen offset:{(e&3)*1024}"))
    if e == 7: vB.free()
def L_xr():
    G['XR'] = XR = V.alloc(8)
    I(f"s_lshl_b32 {sT[0]}, s2, 13")
    I(f"s_lshl_b32 {sT[1]}, {sWv}, 11")
    I(f"s_add_u32 {sT[0]}, {sT[0]}, {sT[1]}")
    G['txr'] = [I(f"buffer_load_dwordx4 {XR[4*i:4*i+4]}, {vL16}, {rX}, {sT[0]} offen offset:{1024*i} {nt('r')}") for i in range(2)]
def zero_pads():
    z4 = V.alloc(4)
    for i in range(4): I(f"v_mov_b32 {z4[i]}, 0")
    I(f"v_lshlrev_b32 {t2}, 4, {vQ}")
    I(f"v_mul_u32_u24 {t0}, {UCH}, {vHH}")
    I(f"v_add_u32 {t2}, {t2}, {t0}")
    I(f"ds_write_b128 {t2}, {z4} offset:{UB+4096}")
    I(f"v_and_b32 {t2}, 15, {vL}")
    I(f"v_mul_u32_u24 {t2}, {TCOPY}, {t2}")
    I(f"ds_write_b128 {t2}, {z4} offset:{TAPS}")
    z4.free()
def C_tag():
    P.wait(tep)
    pass
    I(f"s_mov_b32 {sT[0]}, 0x9E3779B1")
    I(f"v_mul_lo_u32 {vTag}, {vTag}, {sT[0]}")
    I(f"v_add_u32 {vTag}, 0x7F4A7C15, {vTag}")
    I(f"s_getreg_b32 {sT[0]}, hwreg(HW_REG_XCC_ID, 0, 4)")
    I(f"s_add_u32 {sT[0]}, {sT[0]}, 1")
    I(f"v_xor_b32 {vTagL}, {sT[0]}, {vTag}")
def lane_tr(src):
    GR = Frags(2)
    return GR, [I(f"ds_bpermute_b32 {GR[i]}, {vBP}, {src[i]}") for i in range(8)]
def flag_setup():
    G['vFo'] = V.alloc(); G['vFp'] = V.alloc()
    I(f"s_lshl_b32 {sT[0]}, {sKS}, 5")
    I(f"s_add_u32 {sT[0]}, {sT[0]}, {sGI}")
    I(f"s_lshl_b32 {sT[0]}, {sT[0]}, 7")
    lane0(G['vFo'], sT[0], t1)
    I(f"s_lshr_b32 {sT[0]}, {sGI}, 3")
    I(f"s_lshl_b32 {sT[1]}, {sXJ}, 2")
    I(f"s_add_u32 {sT[0]}, {sT[0]}, {sT[1]}")
    I(f"s_lshl_b32 {sT[0]}, {sT[0]}, 2")
    I(f"s_add_u32 {sT[0]}, {sT[0]}, {sWv}")
    I(f"s_lshl_b32 {sT[0]}, {sT[0]}, 3")
    I(f"v_and_b32 {t0}, 7, {vL}")
    I(f"v_add_lshl_u32 {G['vFp']}, {t0}, {sT[0]}, 7")
def C_kv():
    kf = V.alloc(22); wp = V.alloc(8); acc = V.alloc(16)
    P.wait(tsh)
    for j in range(4):
        for c in range(2): unpack(wp[2*j+c], SHr[2*c + (j>>1)], j & 1)
    stamp('pre-k'); P.wait(tk[:opt('kw', 3)]); G['afterk'](); P.wait(tk); stamp('k in')
    for e in range(11):
        unpack(kf[2*e], Kr[e], 0); unpack(kf[2*e+1], Kr[e], 1)
    for e in range(8): I(f"v_pk_mul_f32 {acc[2*e:2*e+2]}, {kf[2*e:2*e+2]}, {wp[6:8]}")
    for j in (2, 1, 0):
        for e in range(8):
            q = e + 3 - j
            I(f"v_pk_fma_f32 {acc[2*e:2*e+2]}, {kf[2*q:2*q+2]}, {wp[2*j:2*j+2]}, {acc[2*e:2*e+2]}")
    P.wait(tv)
    for e in range(8):
        unpack(kf[2*e], Vr[e], 0); unpack(kf[2*e+1], Vr[e], 1)
    for e in range(8): I(f"v_pk_mul_f32 {acc[2*e:2*e+2]}, {acc[2*e:2*e+2]}, {kf[2*e:2*e+2]}")
    for c in range(2):
        for n in range(4):
            I(f"v_cvt_pk_bf16_f32 {wp[4*c+n]}, {acc[2*(7-2*n)+c]}, {acc[2*(6-2*n)+c]}")
    G['KVt'], tl = lane_tr(wp)
    G['tks'] = []
    for c in range(2):
        P.wait(tl[4*c:4*c+4])
        G['tks'].append(I(f"buffer_store_dwordx4 {G['KVt'][4*c:4*c+4]}, {vGS}, {rWS}, {sC4096 if c else 0} offen {LST}"))
    for r in (kf, wp, acc, Kr, Vr, SHr): r.free()
def C_mod():
    Cr, WMr = G['Cr'], G['WMr']
    P.wait(G['tc'])
    sl = V.alloc(4, 1); sp = V.alloc(2, 1)
    for i in range(4): I(f"v_lshlrev_b32 {Cr[i]}, 16, {Cr[i]}")
    for i in range(4): I(f"v_mul_f32 {sl[i]}, 0xbfb8aa3b, {Cr[i]}")
    for i in range(4): I(f"v_exp_f32 {sl[i]}, {sl[i]}")
    for i in range(4): I(f"v_add_f32 {sl[i]}, 1.0, {sl[i]}")
    for i in range(4): I(f"v_rcp_f32 {sl[i]}, {sl[i]}")
    for i in range(4): I(f"v_mul_f32 {sl[i]}, {sl[i]}, {Cr[i]}")
    I(f"v_cvt_pk_bf16_f32 {sp[0]}, {sl[0]}, {sl[1]}")
    I(f"v_cvt_pk_bf16_f32 {sp[1]}, {sl[2]}, {sl[3]}")
    I(f"v_and_b32 {t0}, 7, {vL}")
    I(f"v_lshlrev_b32 {t0}, 7, {t0}")
    I(f"v_lshrrev_b32 {t1}, 4, {vL}")
    I(f"v_lshl_add_u32 {t0}, {t1}, 5, {t0}")
    I(f"s_lshl_b32 {sT[0]}, {sWv}, 2")
    I(f"v_add_u32 {t0}, {sT[0]}, {t0}")
    ma = V.alloc(8, 1); mp = V.alloc(8, 1)
    for half in range(2):
        P.wait(G['twm'][2*half:2*half+2])
        for j in range(4):
            I(f"v_perm_b32 {mp[2*j]}, {WMr[8*half+4+j]}, {WMr[8*half+j]}, {sPL}")
            I(f"v_perm_b32 {mp[2*j+1]}, {WMr[8*half+4+j]}, {WMr[8*half+j]}, {sPH}")
        for j in range(8):
            I(f"v_dot2_f32_bf16 {ma[j]}, {mp[j]}, {sp[half]}, {0 if half==0 else ma[j]}")
    for i in range(4): I(f"v_permlane32_swap_b32 {ma[i]}, {ma[i+4]}")
    for i in range(4): I(f"v_add_f32 {ma[i]}, {ma[i]}, {ma[i+4]}")
    for i in range(2): I(f"v_permlane16_swap_b32 {ma[i]}, {ma[i+2]}")
    for i in range(2): I(f"v_add_f32 {ma[i]}, {ma[i]}, {ma[i+2]}")
    for i in range(2): I(f"v_add_f32_dpp {ma[i]}, {ma[i]}, {ma[i]} row_ror:8 row_mask:0xf bank_mask:0xf")
    I(f"ds_write_b32 {t0}, {ma[0]} offset:{MODL}")
    I(f"ds_write_b32 {t0}, {ma[1]} offset:{MODL+16}")
    for r in (sl, sp, ma, mp, Cr, WMr): r.free()
def A_mod2():
    I(f"s_lshl_b32 {sT[0]}, {sGI}, 12")
    I(f"s_lshl_b32 {sT[1]}, {sXJ}, 9")
    I(f"s_add_u32 {sT[0]}, {sT[0]}, {sT[1]}")
    I(f"s_add_u32 {sT[0]}, {sT[0]}, {MODG}")
    I(f"s_cmp_lt_u32 {sGI}, 24")
    I(f"s_cselect_b32 {sT[0]}, {sT[0]}, {OOB}")
    I(f"s_cmp_eq_u32 {sWv}, 1")
    I(f"s_cselect_b32 {sT[0]}, {sT[0]}, {OOB}")
    G['vMs'] = V.alloc()
    I(f"v_lshlrev_b32 {t0}, 3, {vL}")
    I(f"v_add_u32 {G['vMs']}, {sT[0]}, {t0}")
def C_mod2():
    vMs = G['vMs']
    I("s_waitcnt lgkmcnt(0)"); P.lg_done = P.lg
    I("s_barrier")
    m4 = V.alloc(4)
    tl = I(f"ds_read_b128 {m4}, {vL16} offset:{MODL}")
    P.wait(tl)
    I(f"v_add_f32 {m4[0]}, {m4[0]}, {m4[1]}")
    I(f"v_add_f32 {m4[2]}, {m4[2]}, {m4[3]}")
    I(f"v_mov_b32 {m4[1]}, {vTag}")
    I(f"v_add_f32 {m4[0]}, {m4[0]}, {m4[2]}")
    if LOC:
        I(f"s_mov_b32 {sT[1]}, {MODL2-MODG}")
        I(f"buffer_store_dwordx2 {m4[0:2]}, {vMs}, {rWS}, {sT[1]} offen")
    G['midmod']()
    I(f"buffer_store_dwordx2 {m4[0:2]}, {vMs}, {rWS}, 0 offen sc1")
    m4.free(); vMs.free()
def C_taps(hk=lambda: None):
    TP = G['TP']
    E1 = V.alloc(6); O0 = V.alloc(6); O1 = V.alloc(6)
    I(f"v_add_u32 {t2}, {TCH}, {vT16}")
    for c in range(2):
        d = TP[c]; ad = vT16 if c == 0 else t2
        P.wait(G['ttp'][c])
        def wr(o, regs):
            I(f"ds_write_b128 {ad}, {regs} offset:{TAPS + 16 + (o-1)*TCOPY}")
            if o > 4: hk()
        wr(4, d[2:6]); wr(8, d[4:8])
        for j in range(6): I(f"v_alignbit_b32 {O0[j]}, {d[j+1]}, {d[j]}, 16")
        wr(1, O0[0:4]); wr(5, O0[2:6])
        for j in range(6): I(f"v_alignbit_b32 {O1[j]}, {d[j+2]}, {d[j+1]}, 16")
        wr(3, O1[0:4]); wr(7, O1[2:6])
        for j in range(6): I(f"v_mov_b32 {E1[j]}, {d[j+1]}")
        wr(2, E1[0:4]); wr(6, E1[2:6])
    for r in TP + [E1, O0, O1]: r.free()
sUY = S.alloc(2)
def L_u():
    G['UR'] = UR = Frags(2)
    I(f"s_lshl_b32 {sUY[0]}, {sD0}, 12")
    I(f"s_add_u32 {sUY[0]}, {sUY[0]}, {KVG}")
    I(f"s_add_u32 {sUY[1]}, {sUY[0]}, 4096")
    G['tu'] = [I(f"buffer_load_dwordx4 {UR[4*c:4*c+4]}, {vT16}, {rWS}, {sUY[c]} offen sc1") for c in range(2)]
def C_u():
    UR = G['UR']
    I(f"v_sub_u32 {t2}, 4080, {vT16}")
    for c in range(2):
        P.wait(G['tu'][c])
        I(f"ds_write_b128 {t2}, {UR[4*c:4*c+4]} offset:{UB+c*UCH}")
    UR.free()
def L_d():
    G['Dr'] = V.alloc(2)
    I(f"s_lshl_b32 {sT[0]}, {sKS}, 5")
    I(f"v_lshrrev_b32 {t0}, 3, {vL}")
    I(f"v_lshlrev_b32 {t0}, 2, {t0}")
    G['td'] = I(f"buffer_load_dword {G['Dr'][0]}, {t0}, {rD}, {sT[0]} offen")
def x_ops():
    ops = []
    def a0(): G['xp'] = V.alloc(8, 1); G['Xt'] = Frags(2); G['txt'] = []; P.wait(G['tx'])
    ops.append(a0)
    for c in range(2):
        for n in range(4):
            ops.append(lambda c=c, n=n: I(f"v_perm_b32 {G['xp'][4*c+n]}, {G['Xr'][2*n+1]}, {G['Xr'][2*n]}, {sPH if c else sPL}"))
    for i in range(8): ops.append(lambda i=i: G['txt'].append(I(f"ds_bpermute_b32 {G['Xt'][i]}, {vBP}, {G['xp'][i]}")))
    ops.append(lambda: (G['Xr'].free(), vBP.free(), G['xp'].free()))
    return ops
def C_st():
    XR = G['XR']
    P.wait(G['txr'])
    q4 = V.alloc(4)
    for n in range(4):
        for r in range(2):
            I(f"v_dot2_f32_bf16 {q4[2*r]}, {XR[4*r+n]}, {sONE}, {0 if n==0 else q4[2*r]}")
            I(f"v_dot2_f32_bf16 {q4[2*r+1]}, {XR[4*r+n]}, {XR[4*r+n]}, {0 if n==0 else q4[2*r+1]}")
    I(f"v_permlane32_swap_b32 {q4[0]}, {q4[2]}")
    I(f"v_permlane32_swap_b32 {q4[1]}, {q4[3]}")
    I(f"v_add_f32 {q4[0]}, {q4[0]}, {q4[2]}")
    I(f"v_add_f32 {q4[1]}, {q4[1]}, {q4[3]}")
    I(f"v_permlane16_swap_b32 {q4[0]}, {q4[1]}")
    I(f"v_add_f32 {q4[0]}, {q4[0]}, {q4[1]}")
    for sh in (8, 4, 2, 1):
        I(f"v_add_f32_dpp {q4[0]}, {q4[0]}, {q4[0]} row_ror:{sh} row_mask:0xf bank_mask:0xf")
    I(f"v_mov_b32 {q4[1]}, {q4[0]}")
    I(f"v_permlane16_swap_b32 {q4[0]}, {q4[1]}")
    finish_stats(q4[0], q4[1], q4[3], t0)
    I(f"v_rsq_f32 {q4[2]}, {t0}")
    I(f"s_lshl_b32 {sT[0]}, s2, 4")
    I(f"s_lshl_b32 {sT[1]}, {sWv}, 12")
    I(f"s_add_u32 {sT[0]}, {sT[0]}, {sT[1]}")
    I(f"s_add_u32 {sT[0]}, {sT[0]}, {STG}")
    I(f"v_cvt_pk_bf16_f32 {q4[0]}, {q4[3]}, {q4[2]}")
    I(f"v_mov_b32 {q4[1]}, {vTag}")
    I(f"v_mov_b32 {q4[2]}, {q4[0]}")
    I(f"v_mov_b32 {q4[3]}, {vTag}")
    I(f"v_permlane32_swap_b32 {q4[0]}, {q4[2]}")
    lane0(t0, sT[0], t1)
    I(f"buffer_store_dwordx4 {q4}, {t0}, {rWS}, 0 offen sc1")
    XR.free(); q4.free()
def finish_stats(vsum, vsq, vnm, vve):
    I(f"v_mul_f32 {vnm}, 0xbb000000, {vsum}")
    I(f"v_mul_f32 {vsq}, 0x3b000000, {vsq}")
    I(f"v_fma_f32 {vve}, -{vnm}, {vnm}, {vsq}")
    I(f"v_max_f32 {vve}, 0, {vve}")
    I(f"v_add_f32 {vve}, 0x3727c5ac, {vve}")
def m_addr():
    G['MA'] = Frags(3); G['vMa'] = vMa = V.alloc()
    I(f"v_and_b32 {t0}, 7, {vL}")
    I(f"v_lshrrev_b32 {t1}, 3, {vL}")
    I(f"v_lshlrev_b32 {vMa}, 4, {t0}")
    I(f"v_lshl_add_u32 {vMa}, {t1}, 12, {vMa}")
    I(f"s_lshl_b32 {sT[0]}, {sKS}, 7")
    I(f"s_add_u32 {sT[0]}, {sT[0]}, {MODG}")
    I(f"v_add_u32 {vMa}, {sT[0]}, {vMa}")
def m_loads(retry=False):
    MA = G['MA']
    if LOC and retry:
        I(f"s_and_b32 {sZ[0]}, {sSpin}, 7")
        I(f"s_cmp_eq_u32 {sZ[0]}, 0")
        I(f"s_cselect_b32 {sZ[0]}, 0, {MODL2-MODG}")
    else: I(f"s_mov_b32 {sZ[0]}, {MODL2-MODG if LOC else 0}")
    out = []
    for j in range(3):
        if j: I(f"s_add_u32 {sZ[0]}, {sZ[0]}, 32768")
        out.append(I(f"buffer_load_dwordx4 {MA.g[j]}, {G['vMa']}, {rWS}, {sZ[0]} offen sc1"))
    return out
def C_wunpack():
    WR = G['WR']
    G['wf'] = wf = Frags(8)
    P.wait(G['twr'])
    for e in range(8):
        for h in range(2):
            unpack(wf[4*e+2*h], WR[2*e+h], 0); unpack(wf[4*e+2*h+1], WR[2*e+h], 1)
def C_m():
    MA = G['MA']
    check_tags([MA[4*j+i] for j in range(3) for i in (1, 3)], lambda: m_loads(True), G['tm'])
    G['vMa'].free()
def m_ops():
    MA = G['MA']; ad = MA[1]; one = MA[3]; on2 = MA[5]
    seq = [f"v_permlane16_swap_b32 {MA[4*j]}, {MA[4*j+2]}" for j in (2, 1, 0)]
    seq += [f"v_add_f32 {MA[4*j]}, {MA[4*j]}, {MA[4*j+2]}" for j in (2, 1, 0)]
    seq += [f"v_add_f32_dpp {MA[4*j]}, {MA[4*j]}, {MA[4*j]} row_ror:8 row_mask:0xf bank_mask:0xf" for j in (2, 1, 0)]
    seq += [f"v_and_b32 {ad}, 7, {vL}", f"v_lshlrev_b32 {ad}, 3, {ad}", f"v_bfe_u32 {one}, {vL}, 4, 1",
            f"v_lshl_add_u32 {ad}, {one}, 2, {ad}", f"v_lshl_add_u32 {ad}, {vHH}, 6, {ad}", f"v_add_u32 {ad}, {sWDs}, {ad}",
            f"v_cvt_f32_u32 {one}, {vHH}"]
    seq += [f"v_cvt_pk_bf16_f32 {MA[4*j]}, {MA[4*j]}, {MA[4*j]}" for j in (2, 1, 0)]
    seq += [f"v_sub_f32 {on2}, 1.0, {one}"]
    seq += [f"v_and_b32 {MA[4*j]}, {sHI}, {MA[4*j]}" for j in (2, 1, 0)]
    seq += [f"v_add_f32 {MA[8]}, {MA[8]}, {on2}", f"v_add_f32 {MA[0]}, {MA[0]}, {one}",
            f"v_cvt_pk_bf16_f32 {MA[8]}, {MA[8]}, {MA[8]}", f"v_cvt_pk_bf16_f32 {MA[0]}, {MA[0]}, {MA[0]}",
            f"v_and_b32 {MA[8]}, {sHI}, {MA[8]}", f"v_and_b32 {MA[0]}, {sHI}, {MA[0]}"]
    seq += [f"ds_write_b32 {ad}, {MA[4*j]} offset:{CBO+128*j}" for j in (2, 1, 0)]
    return [(lambda x=x: I(x)) for x in seq] + [lambda: MA.free()]
sWst = S.alloc()
def w_addr():
    G['vWs'] = vWs = V.alloc(); G['vCw'] = vCw = V.alloc()
    I(f"s_mul_i32 {sWst}, {sCB}, 229376")
    I(f"s_lshl_b32 {sT[1]}, {sM}, 9")
    I(f"s_add_u32 {sWst}, {sWst}, {sT[1]}")
    I(f"s_add_u32 {sWst}, {sWst}, {WP}")
    I(f"s_mul_i32 {sT[1]}, {sKS}, {NA*1024}")
    I(f"s_lshl_b32 {sT[2]}, {sKS}, 10")
    I(f"v_lshrrev_b32 {t0}, 2, {vQ}")
    I(f"v_lshlrev_b32 {vWs}, 10, {t0}")
    I(f"v_add_u32 {vWs}, {sT[1]}, {vWs}")
    I(f"v_lshlrev_b32 {t2}, 15, {t0}")
    I(f"v_add_u32 {t2}, {sT[2]}, {t2}")
    I(f"v_cmp_gt_u32 vcc, {NA}, {t0}")
    I(f"v_mov_b32 {t1}, {OOB}")
    I(f"v_cndmask_b32 {vWs}, {t2}, {vWs}, vcc")
    I(f"v_cmp_gt_u32 vcc, 7, {t0}")
    I(f"v_xor_b32 {t2}, {sM}, {vHH}")
    I(f"v_cndmask_b32 {vWs}, {t1}, {vWs}, vcc")
    I(f"v_lshl_add_u32 {vWs}, {t2}, 6, {vWs}")
    I(f"v_and_b32 {t2}, 3, {vQ}")
    I(f"v_lshl_add_u32 {vWs}, {t2}, 4, {vWs}")
    I(f"v_lshlrev_b32 {vCw}, 6, {t0}")
    I(f"v_lshl_add_u32 {vCw}, {t2}, 2, {vCw}")
    I(f"v_lshl_add_u32 {vCw}, {vHH}, 9, {vCw}")
    I(f"v_add_u32 {vCw}, {sWDs}, {vCw}")
def C_w_reads():
    I(f"v_lshlrev_b32 {t0}, 5, {vHH}")
    I(f"v_add_u32 {t0}, {sWDs}, {t0}")
    G['SBv'] = SBv = Frags(2); G['CBv'] = CBv = Frags(2)
    G['tcb'] = [I(f"ds_read_b128 {CBv[0:4]}, {t0} offset:{CBO+256}"), I(f"ds_read_b128 {CBv[4:8]}, {t0} offset:{CBO+272}"),
                I(f"ds_read_b128 {SBv[0:4]}, {t0} offset:{CBO+192}"), I(f"ds_read_b128 {SBv[4:8]}, {t0} offset:{CBO+208}")]
def wu_ops():
    WR = G['WR']; ops = []
    def st0(): G['wf'] = Frags(8); P.wait(G['twr'])
    ops.append(st0)
    for e in range(8):
        for j in range(4): ops.append(lambda e=e, j=j: unpack(G['wf'][4*e+j], WR[2*e+(j>>1)], j & 1))
    return ops
def w_ops():
    WR = G['WR']; ops = []
    def st0(): G['pr'] = V.alloc(4, 1); G['c1'] = V.alloc(4, 1); G['c2'] = V.alloc(4, 1); P.wait(G['tcb'])
    ops.append(st0)
    G['tws'] = []
    for j in range(4):
        for n in range(4):
            o = 2*(n & 1)
            for ee in range(2):
                ops.append(lambda n=n, j=j, ee=ee, o=o: I(f"v_mul_f32 {G['pr'][o+ee]}, {G['wf'][4*(2*n+ee)+j]}, {G['CBv'][2*n+ee]}"))
            ops.append(lambda n=n, j=j, o=o: I(f"v_cvt_pk_bf16_f32 {WR[4*j+n]}, {G['pr'][o]}, {G['pr'][o+1]}"))
        ops.append(lambda j=j: G['tws'].append(I(f"buffer_store_dwordx4 {WR[4*j:4*j+4]}, {G['vWs']}, {rWS}, {sWst} offen offset:{128*j} sc1")))
    return ops
def c_ops():
    ops = []
    for e in range(8):
        op = "v_mul_f32" if e == 0 else "v_fmac_f32"
        for j in range(4): ops.append(lambda e=e, j=j, op=op: I(f"{op} {G['c1'][j]}, {G['wf'][4*e+j]}, {G['CBv'][e]}"))
        for j in range(4): ops.append(lambda e=e, j=j, op=op: I(f"{op} {G['c2'][j]}, {G['wf'][4*e+j]}, {G['SBv'][e]}"))
    ops.append(None)
    for j in range(4): ops.append(lambda j=j: I(f"v_permlane32_swap_b32 {G['c1'][j]}, {G['c2'][j]}"))
    for j in range(4): ops.append(lambda j=j: I(f"v_add_f32 {G['c1'][j]}, {G['c1'][j]}, {G['c2'][j]}"))
    for j in range(4): ops.append(lambda j=j: I(f"ds_write_b32 {G['vCw']}, {G['c1'][j]} offset:{C12O+16*j}"))
    def fin():
        for k in ('pr', 'CBv', 'SBv', 'vWs', 'wf', 'c1', 'c2', 'vCw', 'WR'): G[k].free()
    ops.append(fin)
    return ops
def C_c12b():
    c8 = V.alloc(8)
    I(f"v_and_b32 {t0}, 127, v0")
    I(f"v_lshlrev_b32 {t0}, 2, {t0}")
    I(f"v_add_u32 {t0}, {WDS0+C12O}, {t0}")
    I(f"v_add_u32 {t1}, {2*WDW0}, {t0}")
    tc = []
    for w in range(4):
        for sel in range(2):
            tc.append(I(f"ds_read_b32 {c8[2*w+sel]}, {t1 if w >= 2 else t0} offset:{WDW0*(w&1) + 512*sel}"))
    I(f"s_lshl_b32 {sT[0]}, {sCB}, 3")
    I(f"s_add_u32 {sT[0]}, {sT[0]}, {sXJ}")
    I(f"s_lshl_b32 {sT[0]}, {sT[0]}, 1")
    I(f"s_add_u32 {sT[0]}, {sT[0]}, {sM}")
    I(f"s_mul_i32 {sT[0]}, {sT[0]}, 896")
    I(f"s_add_u32 {sT[0]}, {sT[0]}, {C12}")
    I(f"v_lshlrev_b32 {t0}, 3, v0")
    I(f"v_mov_b32 {t2}, {OOB}")
    I(f"v_cmp_gt_u32 vcc, 112, v0")
    I(f"v_cndmask_b32 {t0}, {t2}, {t0}, vcc")
    P.wait(tc)
    I(f"v_pk_add_f32 {c8[0:2]}, {c8[0:2]}, {c8[2:4]}")
    I(f"v_pk_add_f32 {c8[4:6]}, {c8[4:6]}, {c8[6:8]}")
    I(f"v_pk_add_f32 {c8[0:2]}, {c8[0:2]}, {c8[4:6]}")
    G['tc12'] = I(f"buffer_store_dwordx2 {c8[0:2]}, {t0}, {rWS}, {sT[0]} offen sc1")
    c8.free()
def A_f3():
    G['vF3'] = V.alloc()
    I(f"s_lshl_b32 {sT[0]}, {sGI}, 5")
    I(f"s_add_u32 {sT[0]}, {sT[0]}, {sKS}")
    I(f"s_lshl_b32 {sT[0]}, {sT[0]}, {FSH}")
    lane0(G['vF3'], sT[0], t1)
def st_addr():
    G['vSt'] = V.alloc()
    I(f"s_lshl_b32 {sT[0]}, {sGI}, 7")
    I(f"s_add_u32 {sT[0]}, {sT[0]}, {STG}")
    I(f"v_and_b32 {t0}, 7, {vL}")
    I(f"v_lshl_add_u32 {G['vSt']}, {t0}, 4, {sT[0]}")
def st_loads():
    SL = G['SL']; out = []
    for w in range(4):
        if w >= 2: I(f"s_movk_i32 {sZ[0]}, {4096*w}")
        out.append(I(f"buffer_load_dwordx4 {SL.g[w]}, {G['vSt']}, {rWS}, {[0, sC4096, sZ[0], sZ[0]][w]} offen sc1"))
    return out
def L_st():
    G['SL'] = Frags(4); G['tsl'] = st_loads()
def C_pre0():
    G['PQ'] = PQ = V.alloc(6)
    I(f"v_lshrrev_b32 {t0}, 3, {vL}")
    I(f"v_lshl_add_u32 {t0}, {t0}, 3, {sWDs}")
    G['tpq'] = [I(f"ds_read_b64 {PQ[2*v:2*v+2]}, {t0} offset:{CBO+64*v}") for v in range(3)]
def C_pre1():
    SL, PQ, Dr = G['SL'], G['PQ'], G['Dr']
    check_tags([SL[2*i+1] for i in range(8)], st_loads, [G['tsl'], G['td']])
    G['vSt'].free()
    for w in range(4):
        g = SL.g[w]
        unpack(g[1], g[2], 1); unpack(g[3], g[2], 0); unpack(g[2], g[0], 0); unpack(g[0], g[0], 1)
    for w in range(4): I(f"v_pk_mul_f32 {SL.g[w][2:4]}, {SL.g[w][2:4]}, {SL.g[w][0:2]}")
    unpack(Dr[1], Dr[0], 1); unpack(Dr[0], Dr[0], 0)
    P.wait(G['tpq'], G['txt'])
    I(f"v_pk_mul_f32 {PQ[0:2]}, {PQ[0:2]}, {PQ[4:6]}")
    I(f"v_pk_mul_f32 {PQ[2:4]}, {PQ[2:4]}, {PQ[4:6]}")
    G['HG'] = Frags(4); G['BS'] = Frags(4)
def C_pre2(c):
    SL, PQ, Dr, HG, BS, Xt, KVt = G['SL'], G['PQ'], G['Dr'], G['HG'], G['BS'], G['Xt'], G['KVt']
    kd = V.alloc(8)
    pr = lambda R, p: R[8*c+2*p:8*c+2*p+2]
    for p in range(4):
        unpack(BS[8*c+2*p], Xt[4*c+p], 0); unpack(BS[8*c+2*p+1], Xt[4*c+p], 1)
        unpack(kd[2*p], KVt[4*c+3-p], 1); unpack(kd[2*p+1], KVt[4*c+3-p], 0)
    for p in range(4): I(f"v_pk_fma_f32 {pr(HG,p)}, {pr(BS,p)}, {SL.g[p][0:2]}, {SL.g[p][2:4]}")
    for p in range(4): I(f"v_pk_mul_f32 {kd[2*p:2*p+2]}, {kd[2*p:2*p+2]}, {Dr} op_sel:[0,{c}] op_sel_hi:[1,{c}]")
    for p in range(4): I(f"v_pk_fma_f32 {pr(HG,p)}, {pr(HG,p)}, {PQ[2:4]}, {PQ[0:2]} op_sel:[0,{c},{c}] op_sel_hi:[1,{c},{c}]")
    for p in range(4): I(f"v_pk_fma_f32 {pr(BS,p)}, {pr(HG,p)}, {kd[2*p:2*p+2]}, {pr(BS,p)}")
    kd.free()
    if c == 1:
        for r in (SL, PQ, Dr, Xt, KVt): r.free()

AWD = A.reserve(0, 224)
order = [(c, it) for c in range(4) for it in range(3)] + [(c, it) for c in range(4) for it in (3, 4)] + [(c, it) for it in (5, 6) for c in range(4)]
FL = 0x8000
sWo = S.alloc()
def wd_src(i): c, it = order[i]; I(f"s_add_u32 {sWo}, {sWD}, {16384*(c*7+it)}")
sR64 = S.alloc(); sDB = S.alloc(); sWD = S.alloc()
sWDs = S.alloc()
def wd_setup():
    G['vWa'] = vWa = V.alloc(); G['vWb'] = vWb = V.alloc(); G['vWr'] = [V.alloc(), V.alloc()]
    if opt('map2', 1):
        I(f"s_lshr_b32 {sR64}, {sGI}, 2")
        I(f"s_lshr_b32 {sT[0]}, {sXJ}, 1")
        I(f"s_lshl_b32 {sT[0]}, {sT[0]}, 3")
        I(f"s_add_u32 {sR64}, {sR64}, {sT[0]}")
        I(f"s_and_b32 {sDB}, {sGI}, 3")
        I(f"s_and_b32 {sT[0]}, {sXJ}, 1")
        I(f"s_lshl_b32 {sT[0]}, {sT[0]}, 2")
        I(f"s_add_u32 {sDB}, {sDB}, {sT[0]}")
    else:
        I(f"s_lshr_b32 {sR64}, {sGI}, 3")
        I(f"s_lshl_b32 {sT[0]}, {sXJ}, 2")
        I(f"s_add_u32 {sR64}, {sR64}, {sT[0]}")
        I(f"s_and_b32 {sDB}, {sGI}, 7")
    I(f"s_mul_i32 {sWD}, {sWv}, {448*1024}")
    I(f"s_lshl_b32 {sT[0]}, {sDB}, 7")
    I(f"s_add_u32 {sWD}, {sWD}, {sT[0]}")
    I(f"v_bfe_u32 {t0}, {vL}, 3, 2")
    I(f"v_lshlrev_b32 {vWa}, 12, {t0}")
    I(f"v_lshl_add_u32 {vWa}, {vHH}, 10, {vWa}")
    I(f"v_bfe_u32 {t0}, {vL}, 4, 1")
    I(f"v_lshlrev_b32 {t0}, 2, {t0}")
    I(f"v_and_b32 {t1}, 7, {vL}")
    I(f"v_xor_b32 {t0}, {t0}, {t1}")
    I(f"v_lshl_add_u32 {vWa}, {t0}, 4, {vWa}")
    I(f"v_add_u32 {vWb}, 1024, {vWa}")
    r0 = G['vWr'][0]
    I(f"v_bfe_u32 {t0}, {vL}, 2, 2")
    I(f"v_lshlrev_b32 {r0}, 7, {t0}")
    I(f"v_lshl_add_u32 {r0}, {vHH}, 9, {r0}")
    I(f"v_bfe_u32 {t0}, {vL}, 3, 1")
    I(f"s_and_b32 {sT[0]}, {sWv}, 1")
    I(f"v_xor_b32 {t0}, {sT[0]}, {t0}")
    I(f"v_lshl_add_u32 {r0}, {t0}, 6, {r0}")
    I(f"v_and_b32 {t0}, 1, {vL}")
    I(f"v_lshl_add_u32 {r0}, {t0}, 5, {r0}")
    I(f"v_bfe_u32 {t0}, {vL}, 4, 1")
    I(f"v_lshl_add_u32 {r0}, {t0}, 4, {r0}")
    I(f"v_bfe_u32 {t0}, {vL}, 1, 1")
    I(f"v_lshl_add_u32 {r0}, {t0}, 3, {r0}")
    I(f"s_mul_i32 {sWDs}, {sWv}, {WDW0}")
    I(f"s_add_u32 {sWDs}, {sWDs}, {WDS0}")
    I(f"v_add_u32 {r0}, {sWDs}, {r0}")
    I(f"v_xor_b32 {G['vWr'][1]}, 64, {r0}")
    G['vWx'] = None
    G['wd'] = dict(nd=0, nr=0, free=[6, 7, 8, 9, 0, 1, 2, 3], ban=set(), slot={}, dt={}, rt={}, ti={}, rd={})
def wd_rebase(sbase, nslots):
    W = G['wd']; assert W['nd'] == W['nr']
    I(f"s_sub_u32 {sT[0]}, {sbase}, {sWDs}")
    I(f"s_mov_b32 {sWDs}, {sbase}")
    for r in G['vWr']: I(f"v_add_u32 {r}, {sT[0]}, {r}")
    W['free'] = list(range(nslots)); W['rt'] = {}; W['ban'] = set()
def wd_dma():
    W = G['wd']; n = W['nd']
    if n >= 28 or not W['free']: return False
    sl = W['free'].pop(0); W['slot'][n] = sl
    P.wait(W['rt'].get(sl))
    I(f"s_add_u32 m0, {sWDs}, {2048*sl}")
    wd_src(n)
    W['dt'][n] = [I(f"buffer_load_dwordx4 {G['vWa']}, {rWD}, {sWo} offen lds"),
                  I(f"buffer_load_dwordx4 {G['vWb']}, {rWD}, {sWo} offen offset:1024 lds")]
    W['nd'] = n+1
    return True
XB = 6*16384
def xoff(sl): k = sl - 100; return (k >> 1)*16384 + (k & 1)*2048
def wd_m0(sl):
    if sl < 100: I(f"s_add_u32 m0, {sWDs}, {2048*sl}")
    else: I(f"s_add_u32 m0, {sWdst}, {XB + xoff(sl)}")
def wd_dma1():
    W = G['wd']; n = W['nd']
    if not W.get('half'):
        if n >= 28 or not W['free']: return False
        sl = W['free'].pop(0); W['slot'][n] = sl
        P.wait(W['rt'].get(sl))
        wd_m0(sl)
        wd_src(n)
        W['dt'][n] = [I(f"buffer_load_dwordx4 {G['vWa']}, {rWD}, {sWo} offen lds")]
        W['half'] = True
    else:
        wd_m0(W['slot'][n])
        I("s_nop 0")
        W['dt'][n].append(I(f"buffer_load_dwordx4 {G['vWb']}, {rWD}, {sWo} offen offset:1024 lds"))
        W['half'] = False; W['nd'] = n+1; W['ti'][n] = max(G.get('now', 0), G.get('lastst', -99) + opt('sl', 44) - opt('wdl', 20))
    return True
def wd_read():
    W = G['wd']; n = W['nr']
    if n >= W['nd']: return False
    sl = W['slot'][n]
    P.wait(W['dt'][n])
    W['rt'][sl] = [I(f"ds_read_b64_tr_b16 {AWD[8*n+4*dt+2*g:8*n+4*dt+2*g+2]}, {G['vWr' if sl < 100 else 'vWx'][dt]} offset:{(2048*sl if sl < 100 else xoff(sl))+1024*g}") for dt in range(2) for g in range(2)]
    W['last'] = W['rt'][sl]; W['rd'][n] = W['rt'][sl]
    if sl not in W['ban']: W['free'].append(sl)
    W['nr'] = n+1
    return True

def conv(side_per=None):
    vAa = V.alloc(); vBa = V.alloc(); vRW = V.alloc()
    I(f"s_lshr_b32 {sT[0]}, {sWv}, 1")
    I(f"s_and_b32 {sT[1]}, {sWv}, 1")
    I(f"s_lshl_b32 {sT[1]}, {sT[1]}, 8")
    I(f"s_mul_i32 {sT[2]}, {sT[0]}, {TCH}")
    I(f"s_add_u32 {sT[2]}, {sT[2]}, {sT[1]}")
    I(f"s_mul_i32 {sT[3]}, {sT[0]}, {UCH}")
    I(f"s_add_u32 {sT[3]}, {sT[3]}, {sT[1]}")
    I(f"s_add_u32 {sT[3]}, {sT[3]}, {UB+480}")
    I(f"v_and_b32 {t0}, 7, {vL}")
    I(f"v_mul_u32_u24 {vAa}, {TCOPY}, {t0}")
    I(f"v_bfe_u32 {t0}, {vL}, 3, 1")
    I(f"v_lshrrev_b32 {t1}, 4, {vL}")
    I(f"v_add_u32 {t0}, {t0}, {t1}")
    I(f"v_lshl_add_u32 {vAa}, {t0}, 4, {vAa}")
    I(f"v_add_u32 {vAa}, {sT[2]}, {vAa}")
    I(f"v_and_b32 {t0}, 15, {vL}")
    I(f"v_lshlrev_b32 {t2}, 5, {t0}")
    I(f"v_lshlrev_b32 {vBa}, 4, {t1}")
    I(f"v_sub_u32 {vBa}, {vBa}, {t2}")
    I(f"v_add_u32 {vBa}, {sT[3]}, {vBa}")
    I(f"v_and_b32 {vRW}, 1, {t1}")
    I(f"v_lshlrev_b32 {vRW}, 12, {vRW}")
    I(f"v_add_u32 {vRW}, {vRW}, {t2}")
    I(f"v_lshrrev_b32 {t1}, 1, {t1}")
    I(f"v_lshl_add_u32 {vRW}, {t1}, 4, {vRW}")
    I(f"s_mul_i32 {sT[0]}, {sWv}, {WDW0}")
    I(f"s_add_u32 {sT[0]}, {sT[0]}, {WDS0+REDO}")
    I(f"v_add_u32 {vRW}, {sT[0]}, {vRW}")
    G['convaddr'] = (vAa, vBa, vRW)
def conv_run(hook=None):
    vAa, vBa, vRW = G['convaddr']
    D = Frags(8); FA = [Frags(8, A), AWD[192:224]]; FB = [AWD[160:192], Frags(8)]
    def reads(n):
        b = n & 1; out = []
        for t in range(8):
            out.append(lambda t=t: I(f"ds_read_b128 {FA[b][4*t:4*t+4]}, {vAa} offset:{TAPS + 64*n + 512*t}"))
            out.append(lambda t=t: I(f"ds_read_b128 {FB[b][4*t:4*t+4]}, {vBa} offset:{512*(7-t) + 64*n}"))
        return out
    ctok = {0: [f() for f in reads(0)]}
    cnt = 0
    for n in range(4):
        b = n & 1
        nxt = reads(n+1) if n < 3 else []
        ctok[n+1] = []
        if n < 3: pairs = sorted([(t, jj) for t in range(8) for jj in range(8-t)], key=lambda p: (max(p), p))
        else: pairs = sorted([(t, jj) for t in range(8) for jj in range(8-t)], key=lambda p: (p[0]+p[1], p))
        seen = set(); done = {}
        if n > 0: P.wait(ctok[n])
        for i, (t, jj) in enumerate(pairs):
            P.wait(ctok[n][2*t], ctok[n][2*jj+1])
            j = t + jj
            first = (n == 0 and j not in seen); seen.add(j)
            I(f"v_mfma_f32_16x16x32_bf16 {D[4*j:4*j+4]}, {FA[b][4*t:4*t+4]}, {FB[b][4*jj:4*jj+4]}, {0 if first else D[4*j:4*j+4]}")
            if nxt and i >= 1 and i % 2 == 1: ctok[n+1].append(nxt.pop(0)())
            if n == 3:
                if t == j: done[j] = i
                for jd, idn in list(done.items()):
                    if i >= idn + opt('rdel', 6):
                        I(f"ds_write_b128 {vRW}, {D[4*jd:4*jd+4]} offset:{512*jd}"); del done[jd]
            if hook: hook(cnt)
            cnt += 1
        while nxt: ctok[n+1].append(nxt.pop(0)())
    for jd in sorted(done): I(f"ds_write_b128 {vRW}, {D[4*jd:4*jd+4]} offset:{512*jd}")
    assert G['wd']['nr'] <= 20
    for r in [FA[0], FB[1], vAa, vBa, vRW, D]: r.free()

sX1 = S.alloc(2)
def x1_addr():
    G['vRr'] = V.alloc(); G['vRr2'] = V.alloc(); G['vXw'] = vXw = V.alloc(); G['vXr'] = vXr = V.alloc(); G['vS2'] = vS2 = V.alloc()
    I(f"v_add_u32 {G['vRr']}, {WDS0+REDO}, {vT16}")
    I(f"v_add_u32 {G['vRr2']}, {WDS0+REDO+2*WDW0}, {vT16}")
    I(f"v_bfe_u32 {t0}, {vL}, 2, 1")
    I(f"v_lshl_add_u32 {vXw}, {t0}, 10, {sWDs}")
    I(f"v_lshrrev_b32 {t0}, 3, {vL}")
    I(f"v_lshl_add_u32 {vXw}, {t0}, 7, {vXw}")
    I(f"v_and_b32 {t0}, 3, {vL}")
    I(f"v_lshl_add_u32 {vXw}, {t0}, 4, {vXw}")
    I(f"v_lshl_add_u32 {vXr}, {t0}, 3, {sWDs}")
    I(f"v_bfe_u32 {t0}, {vL}, 4, 1")
    I(f"v_lshl_add_u32 {vXr}, {t0}, 5, {vXr}")
    I(f"v_bfe_u32 {t0}, {vL}, 2, 2")
    I(f"v_lshl_add_u32 {vXr}, {t0}, 6, {vXr}")
    I(f"v_lshl_add_u32 {vXr}, {vHH}, 9, {vXr}")
    I(f"s_lshl_b32 {sX1[0]}, {sGI}, 6")
    I(f"s_add_u32 {sX1[0]}, {sX1[0]}, {sKS}")
    I(f"s_lshl_b32 {sX1[0]}, {sX1[0]}, 10")
    I(f"s_add_u32 {sX1[0]}, {sX1[0]}, {X1T}")
    I(f"s_add_u32 {sX1[1]}, {sX1[0]}, 32768")
    I(f"s_lshl_b32 {sT[0]}, {sGI}, 13")
    I(f"s_lshl_b32 {sT[1]}, {sXJ}, 9")
    I(f"s_add_u32 {sT[0]}, {sT[0]}, {sT[1]}")
    I(f"s_add_u32 {sT[0]}, {sT[0]}, {S2}")
    I(f"s_cmp_eq_u32 {sWv}, 0")
    I(f"s_cselect_b32 {sT[0]}, {sT[0]}, {OOB}")
    I(f"v_lshl_add_u32 {vS2}, {vQ}, 4, {sT[0]}")
    I(f"v_lshl_add_u32 {vS2}, {vHH}, 12, {vS2}")
def C_y():
    Y = Frags(8); yo = Frags(2)
    tl = []
    for c in range(2):
        for kh in range(2):
            for h in range(2):
                tl.append(I(f"ds_read_b128 {Y[16*c+8*kh+4*h:16*c+8*kh+4*h+4]}, {G['vRr2'] if c else G['vRr']} offset:{kh*WDW0 + 4096*h}"))
    C_pre0()
    G['tys'] = []
    for c in range(2):
        P.wait(tl[4*c:4*c+4])
        for e in range(0, 8, 2): I(f"v_pk_add_f32 {Y[16*c+e:16*c+e+2]}, {Y[16*c+e:16*c+e+2]}, {Y[16*c+8+e:16*c+8+e+2]}")
        for n in range(4): I(f"v_cvt_pk_bf16_f32 {yo[4*c+n]}, {Y[16*c+2*n]}, {Y[16*c+2*n+1]}")
        G['tys'].append(I(f"buffer_store_dwordx4 {yo[4*c:4*c+4]}, {vT16}, {rWS}, {sUY[c]} offen {LST}"))
    for r in [Y, yo, G['vRr'], G['vRr2']]: r.free()
def L_y():
    G['YL'] = YL = Frags(2)
    G['tyl'] = [I(f"buffer_load_dwordx4 {YL[4*c:4*c+4]}, {vGS}, {rWS}, {sC4096 if c else 0} offen sc1") for c in range(2)]
    vGS.free()
def C_x1():
    HG, BS, YL = G['HG'], G['BS'], G['YL']
    yf = V.alloc(8); F = Frags(2); q = V.alloc(4)
    for c in range(2):
        P.wait(G['tyl'][c])
        for p in range(4): unpack(yf[2*p], YL[4*c+p], 0); unpack(yf[2*p+1], YL[4*c+p], 1)
        for p in range(4): I(f"v_pk_fma_f32 {BS[8*c+2*p:8*c+2*p+2]}, {HG[8*c+2*p:8*c+2*p+2]}, {yf[2*p:2*p+2]}, {BS[8*c+2*p:8*c+2*p+2]}")
        for p in range(4): I(f"v_cvt_pk_bf16_f32 {YL[4*c+p]}, {BS[8*c+2*p]}, {BS[8*c+2*p+1]}")
        I(f"ds_write_b128 {G['vXw']}, {YL[4*c:4*c+4]} offset:{XTO+64*c}")
    tl = [I(f"ds_read_b64_tr_b16 {F[4*b+2*g:4*b+2*g+2]}, {G['vXr']} offset:{XTO+1024*b+256*g}") for b in range(2) for g in range(2)]
    I(f"v_lshl_add_u32 {t0}, {vL}, 3, {sWDs}")
    G['tx1'] = []
    for b in range(2):
        P.wait(tl[2*b:2*b+2])
        G['tx1'].append(I(f"buffer_store_dwordx4 {F.g[b]}, {vL16}, {rWS}, {sX1[b]} offen sc1"))
    for r in range(4):
        for b in range(2):
            I(f"v_dot2_f32_bf16 {q[2*b]}, {F[4*b+r]}, {sONE}, {0 if r==0 else q[2*b]}")
            I(f"v_dot2_f32_bf16 {q[2*b+1]}, {F[4*b+r]}, {F[4*b+r]}, {0 if r==0 else q[2*b+1]}")
    I(f"v_permlane32_swap_b32 {q[0]}, {q[2]}")
    I(f"v_permlane32_swap_b32 {q[1]}, {q[3]}")
    I(f"v_pk_add_f32 {q[0:2]}, {q[0:2]}, {q[2:4]}")
    I(f"ds_write_b64 {t0}, {q[0:2]} offset:{S2O}")
    for r in (HG, BS, YL, yf, F, q, G['vXw'], G['vXr']): r.free()
def C_s2():
    q = V.alloc(8)
    I(f"v_lshlrev_b32 {t0}, 3, {vL}")
    I(f"v_add_u32 {t0}, {WDS0+S2O}, {t0}")
    tl = [I(f"ds_read_b64 {q[2*w:2*w+2]}, {t0} offset:{WDW0*w}") for w in range(4)]
    P.wait(tl)
    I(f"v_pk_add_f32 {q[0:2]}, {q[0:2]}, {q[2:4]}")
    I(f"v_pk_add_f32 {q[4:6]}, {q[4:6]}, {q[6:8]}")
    I(f"v_add_f32 {q[2]}, {q[1]}, {q[5]}")
    I(f"v_add_f32 {q[0]}, {q[0]}, {q[4]}")
    I(f"v_mov_b32 {q[1]}, {vTag}")
    I(f"v_mov_b32 {q[3]}, {vTag}")
    I(f"buffer_store_dwordx4 {q[0:4]}, {G['vS2']}, {rWS}, 0 offen sc1")
    q.free(); G['vS2'].free()

sRB = S.alloc(); sC1 = S.alloc(); sWsrc = S.alloc(); sWdst = S.alloc()
def A_g1():
    G['vF8'] = vF8 = V.alloc(); G['vPA'] = vPA = V.alloc(); G['vP3'] = vP3 = V.alloc()
    I(f"s_and_b32 {sRB}, {sXJ}, 1")
    I(f"s_lshl_b32 {sRB}, {sRB}, 3")
    I(f"s_lshr_b32 {sT[0]}, {sGI}, 2")
    I(f"s_add_u32 {sRB}, {sRB}, {sT[0]}")
    I(f"s_lshr_b32 {sC1}, {sXJ}, 1")
    I(f"s_lshl_b32 {sC1}, {sC1}, 2")
    I(f"s_and_b32 {sT[0]}, {sGI}, 3")
    I(f"s_add_u32 {sC1}, {sC1}, {sT[0]}")
    I(f"s_lshl_b32 {sT[0]}, {sC1}, 6")
    I(f"v_add_lshl_u32 {vP3}, {vL}, {sT[0]}, {FSH}")
    I(f"s_lshl_b32 {sT[0]}, {sGI}, 5")
    I(f"s_add_u32 {sT[0]}, {sT[0]}, {sKS}")
    I(f"v_lshlrev_b32 {vF8}, 10, {vL}")
    I(f"v_add_lshl_u32 {vF8}, {vF8}, {sT[0]}, {FSH}")
    I(f"v_mov_b32 {t1}, {OOB}")
    I(f"v_cmp_gt_u32 vcc, 4, {vL}")
    I(f"s_lshr_b32 {sT[0]}, {sXJ}, 1")
    I(f"s_lshl_b32 {sT[0]}, {sT[0]}, 4")
    I(f"s_add_u32 {sT[0]}, {sT[0]}, {sRB}")
    I(f"s_lshl_b32 {sT[0]}, {sT[0]}, 1")
    I(f"s_lshr_b32 {sT[1]}, {sWv}, 1")
    I(f"s_add_u32 {sT[0]}, {sT[0]}, {sT[1]}")
    I(f"s_lshl_b32 {sT[0]}, {sT[0]}, 5")
    I(f"v_add_lshl_u32 {vPA}, {vQ}, {sT[0]}, {FSH}")
    I(f"v_cndmask_b32 {vF8}, {t1}, {vF8}, vcc")
    I(f"s_mul_i32 {sWsrc}, {sC1}, 229376")
    I(f"s_lshl_b32 {sWdst}, {sWv}, 12")
    I(f"s_add_u32 {sWsrc}, {sWsrc}, {sWdst}")
    I(f"s_add_u32 {sWsrc}, {sWsrc}, {WP}")
def w_dma(src_off, dst_off, n0=0, n1=4):
    I(f"s_add_u32 m0, {sWdst}, {WL + dst_off}")
    I(f"s_add_u32 {sT[0]}, {sWsrc}, {src_off}")
    return [I(f"buffer_load_dwordx4 {vL16}, {rWS}, {sT[0]} offen offset:{1024*n} sc1 lds") for n in range(n0, n1)]
def wd_burst(n):
    for _ in range(n):
        if not wd_dma():
            wd_read(); wd_dma()
flag_setup(); m_addr()
vpf = V.alloc()
if LOC:
    flag_load(vpf, G['vFp'], F1); flag_load(vpf, G['vFp'], FY); m_loads()
if opt('sfine'): stamp('touch')
A_mod()
LATE = opt('late', 0)
def ftouch():
    if opt('ftouch', 1):
        flag_load(vpf, G['vF3'], F3); flag_load(vpf, G['vF8'], F4)
        I(f"s_lshl_b32 {sT[0]}, {sRB}, 2")
        I(f"s_add_u32 {sT[0]}, {sT[0]}, {sWv}")
        I(f"s_lshl_b32 {sT[0]}, {sT[0]}, 4")
        I(f"s_add_u32 {sT[0]}, {sT[0]}, {sC1}")
        I(f"s_lshl_b32 {sT[0]}, {sT[0]}, {FSH}")
        I(f"v_min_u32 {t0}, 3, {vL}")
        I(f"v_lshl_add_u32 {t0}, {t0}, 15, {sT[0]}")
        flag_load(vpf, t0, F5)
def setup2():
    zero_pads(); A_mod2(); conv(); wd_setup()
def setup3():
    w_addr(); x1_addr(); st_addr(); A_f3(); A_g1(); ftouch()
if LATE < 2: setup2()
if opt('sfine'): stamp('su2')
if LATE < 1: setup3()
def wd_touch():
    I(f"s_mul_i32 {sT[0]}, s2, 7168")
    I(f"s_add_u32 {sT[1]}, {sT[0]}, 3072")
    for c in range(2): I(f"buffer_load_dwordx4 {PT}, {vT16}, {rWD}, {sT[c]} offen")
def afterk():
    L_xr(); L_mod()
    if opt('early', 1) >= 1: L_taps()
G['afterk'] = afterk
C_tag(); C_kv(); stamp("kv st")
if opt('cpf', 1): cpa.free(); cpd.free()
if opt('early', 1) < 1: L_taps()
if opt('early', 1) >= 2: L_w()
if opt('wdt', 1) == -1: wd_touch()
if LATE >= 2: setup2()
if LATE >= 1: setup3()
C_st(); stamp("st")
C_mod(); stamp("mod1")
P.wait(G['tks']); post_local(G['vFo'], F1)
def midmod():
    stamp("mod2")
    tc = [0]
    def thk():
        tc[0] += 1
        if tc[0] == opt('f1i', 1): G['tpf'] = flag_load(vpf, G['vFp'], F1)
        if tc[0] == opt('f1c', 5):
            check_local(vpf, G['vFp'], G['vFo'], F1, G['tpf']); L_u(); G['tm'] = m_loads()
    C_taps(thk); stamp("taps")
G['midmod'] = midmod
C_mod2()
if opt('early', 1) < 2: L_w()
if opt('wdt', 1) == 1: wd_touch()
C_u(); stamp("U ok")
P.wait_all(vm=False); I("s_barrier")
stamp("bar")
cside = []
H2, WDC = opt('h2', 4), opt('wdc', 8)
def hook(c):
    if c >= opt('hx', 40) and c < opt('hx', 40) + 16 and c % 2 == 0: L_x1((c - opt('hx', 40))//2)
    if c == opt('hx', 40) + 18: L_d()
    if c == H2: C_m(); cside.extend(m_ops() + [C_w_reads, None, None, None] + wu_ops() + w_ops() + c_ops() + x_ops())
    if c == opt('hst', 100): L_st()
    if opt('wdt', 1) > 1 and c == opt('wdt', 1): wd_touch()
    if c == opt('hf3', 130): assert len(G['tws']) == 4; P.wait(G['tws']); post_flag(G['vF3'], F3); G['vF3'].free()
    W = G['wd']
    if c == opt('wdban', 60): W['ban'] = {6, 7, 8, 9}; W['free'] = [x for x in W['free'] if x < 6]
    if c >= opt('wd0', 16) and c % (WDC//2) == 0 and W['nd'] < opt('wdmax', 8): wd_dma1()
    if c > opt('wdr0', 70) and c % WDC == 2 and W['nr'] < opt('wdrmax', 4): wd_read()
    if c == 107: assert all(W['slot'][n] < 6 for n in range(W['nr'], W['nd'])), "RED slots still in use"
    if opt('cfine') and c in (35, 71, 107): stamp(f'c{c}')
    k = 0
    while cside and k < (1 if (c < 108 and c % 2 == 1) else 2):
        f = cside.pop(0); k += 1
        if f: f()
conv_run(hook)
PT.free()
stamp("conv")
print('cside left', len(cside), file=sys.stderr)
for f in cside:
    if f: f()
P.wait_all(vm=False); I("s_barrier")
C_y(); stamp("y st")
print('wd after conv', G['wd']['nd'], G['wd']['nr'], file=sys.stderr)
vP3 = G['vP3']; vPA = G['vPA']; vp3 = V.alloc()
if opt('wda', 4):
    while wd_read(): pass
    for _ in range(opt('wda', 4)): wd_dma()
C_pre1()
P.wait(G['tys']); post_local(G['vFo'], FY); stamp("FY post")
C_pre2(0)
tpf = flag_load(vpf, G['vFp'], FY)
tp3 = flag_load(vp3, vP3, F3)
C_pre2(1)
check_local(vpf, G['vFp'], G['vFo'], FY, tpf); G['vFp'].free(); G['vFo'].free(); vTagL.free(); vpf.free()
L_y(); stamp("FY ok")
wch = {}
def w_group(): i = len(wch); wch[i] = w_dma(16384*i, 16384*i)
F3E = opt('f3e', 1)
def f3chk():
    check_tags([vp3], lambda: flag_load(vp3, vP3, F3), tp3)
if F3E:
    f3chk()
    for _ in range(opt('w1', 2)): w_group()
C_c12b()
C_x1(); stamp("x1 st")
if not F3E: f3chk()
for _ in range(opt('w15', 2)): w_group()
while wd_read(): pass
P.wait(G['tx1']); post_flag(G['vF8'], F4); G['vF8'].free()
stamp("F4 post")
sDQ = S.alloc(); gb2 = V.alloc(4); vGb = V.alloc(); vGB = V.alloc()
I(f"s_and_b32 {sT[3]}, {sWv}, 1")
I(f"s_lshl_b32 {sT[3]}, {sT[3]}, 5")
I(f"s_lshl_b32 {sDQ}, {sDB}, 6")
I(f"s_add_u32 {sDQ}, {sDQ}, {sT[3]}")
I(f"s_lshl_b32 {sT[0]}, {sDQ}, 3")
I(f"s_add_u32 {sT[0]}, {sT[0]}, {MODG + 5*16384}")
I(f"v_lshl_add_u32 {vGb}, {vQ}, 3, {sT[0]}")
I(f"v_lshl_add_u32 {vGb}, {vHH}, 13, {vGb}")
def gb_ld():
    return [I(f"buffer_load_dwordx2 {gb2[2*n:2*n+2]}, {vGb}, {rWS}, {sC4096 if n else 0} offen sc1") for n in range(2)]
tgb = gb_ld()
P.wait_all(vm=False); I("s_barrier")
C_s2()
while len(wch) < 5: w_group()
I("s_barrier")
NPRE = opt('npre', 8); NP4 = opt('np4', 7)
vp4 = V.alloc()
while len(wch) < NPRE:
    if len(wch) == NP4: tp4 = flag_load(vp4, vPA, F4)
    w_group()
if NP4 >= NPRE: tp4 = flag_load(vp4, vPA, F4)
stamp("W pre")
for r in (rK, rV, rSH): r.free()
sXsrc = S.alloc(); sXdst = S.alloc(); sSB = S.alloc(); sHS = S.alloc(); sSG = S.alloc()
I(f"s_lshl_b32 {sSB}, {sRB}, 2")
I(f"s_add_u32 {sSB}, {sSB}, {sWv}")
I(f"s_lshl_b32 {sXsrc}, {sSB}, 15")
I(f"s_add_u32 {sXsrc}, {sXsrc}, {X1T}")
I(f"s_mul_i32 {sXdst}, {sWv}, {XSW}")
I(f"s_add_u32 {sXdst}, {sXdst}, {XS}")
I(f"s_mul_i32 {sHS}, {sSB}, 112")
I(f"s_mul_i32 {sT[0]}, {sC1}, 7")
I(f"s_add_u32 {sHS}, {sHS}, {sT[0]}")
I(f"s_lshl_b32 {sHS}, {sHS}, 10")
I(f"s_add_u32 {sHS}, {sHS}, {HH}")
I(f"s_lshl_b32 {sSG}, {sSB}, 12")
I(f"s_add_u32 {sSG}, {sSG}, {S2}")
ACC = [V.alloc(16) for _ in range(NA+2)]
vAd = V.alloc(); vAd2 = V.alloc(); vEx = V.alloc(); vL16b = V.alloc(); vF5 = V.alloc()
I(f"v_bfe_u32 {t0}, {vL}, 2, 3")
I(f"v_lshlrev_b32 {vAd}, 7, {t0}")
I(f"v_bfe_u32 {t0}, {vL}, 4, 1")
I(f"v_xor_b32 {t0}, {t0}, {vHH}")
I(f"v_lshl_add_u32 {vAd}, {t0}, 6, {vAd}")
I(f"v_and_b32 {t0}, 3, {vL}")
I(f"v_lshl_add_u32 {vAd}, {t0}, 4, {vAd}")
I(f"v_add_u32 {vAd2}, 65536, {vAd}")
I(f"v_lshlrev_b32 {vEx}, 4, {vQ}")
I(f"v_add_u32 {vEx}, {EX}, {vEx}")
I(f"v_add_u32 {vL16b}, 4096, {vL16}")
vCl = V.alloc(); vCe = V.alloc(); sCL = S.alloc()
I(f"s_mul_i32 {sCL}, {sC1}, {8*1792}")
I(f"s_mul_i32 {sT[0]}, {sWv}, 448")
I(f"s_add_u32 {sCL}, {sCL}, {sT[0]}")
I(f"s_add_u32 {sCL}, {sCL}, {C12}")
I(f"v_min_u32 {t0}, 27, {vQ}")
I(f"v_mul_u32_u24 {vCl}, {4*1792}, {vHH}")
I(f"v_lshl_add_u32 {vCl}, {t0}, 4, {vCl}")
I(f"s_and_b32 {sT[0]}, {sWv}, 1")
I(f"s_mul_i32 {sT[0]}, {sT[0]}, 56")
I(f"v_lshl_add_u32 {t0}, {t0}, 1, {vHH}")
I(f"v_add_u32 {t0}, {sT[0]}, {t0}")
I(f"s_lshr_b32 {sT[0]}, {sWv}, 1")
I(f"s_lshl_b32 {sT[0]}, {sT[0]}, 8")
I(f"s_add_u32 {sT[0]}, {sT[0]}, {EX}")
I(f"v_and_b32 {t1}, 15, {t0}")
I(f"v_lshl_add_u32 {vCe}, {t1}, 4, {sT[0]}")
I(f"v_lshrrev_b32 {t0}, 4, {t0}")
I(f"v_lshl_add_u32 {vCe}, {t0}, 9, {vCe}")
I(f"s_lshl_b32 {sT[0]}, {sSB}, 4")
I(f"s_add_u32 {sT[0]}, {sT[0]}, {sC1}")
I(f"s_lshl_b32 {sT[0]}, {sT[0]}, {FSH}")
lane0(vF5, sT[0], t1)
if G['wd']['nr'] < 28: wd_rebase(sXdst, 3)
for _ in range(opt('wdb', 0)): wd_dma()
check_tags([gb2[1], gb2[3]], gb_ld, tgb)
I(f"v_add_f32 {gb2[0]}, {gb2[0]}, {gb2[2]}")
I(f"v_mov_b32 {gb2[1]}, {gb2[0]}")
I(f"v_permlane32_swap_b32 {gb2[0]}, {gb2[1]}")
I(f"v_add_f32 {gb2[0]}, {gb2[0]}, {gb2[1]}")
round_bf16(vGB, gb2[0])
gb2.free(); vGb.free()
check_tags([vp4], lambda: flag_load(vp4, vPA, F4), tp4)
vPA.free(); vp4.free()
published = set(g for g in wch if wch[g][-1][1] < P.vm_done)
stamp("F4 ok")

Bf = Frags(32)
btok = {}
def b_next():
    ks = len(btok)
    if ks >= 32: return False
    if ks and ks % 4 == 0: I(f"s_add_u32 {sXsrc}, {sXsrc}, 4096")
    btok[ks] = I(f"buffer_load_dwordx4 {Bf.g[ks]}, {vL16}, {rWS}, {sXsrc} offen offset:{1024*(ks&3)} sc1")
    return True
for _ in range(opt('b0', 12)): b_next()
I("s_barrier")
AR = A.reserve(224, 32)
SGX = Frags(4); BX = SGX.g[0]; hp = SGX.g[1]; vRS2 = V.alloc()
TMP = ACC[NA+1]
jobs = [(it, ks, ks*NA+it) for ks in range(32) for it in range(NA)]
XD = opt('xd', 10)
tl_ = [(NA, ks, NA*32 + ks) for ks in range(32)]
jobs += tl_[:XD] + [(it, 'x', None) for it in range(NA+1)] + tl_[XD:]
for it in range(NA+1, 7):
    jobs += [(it, 'x', None)] + [(it, ks, it*32 + ks) for ks in range(32)]
NJ = len(jobs); TT = {it: 33*it for it in range(NA, 8)}; T4, T5, T6 = 132, 165, 198; XA = 32*NA + XD
first_job = {}; last_job = {}
for n, (it, ks, fr) in enumerate(jobs):
    if fr is not None:
        first_job.setdefault(fr//16, n); last_job[fr//16] = n
accmap = {it: it % (NA+2) for it in range(7)}
def job_read(n):
    it, ks, fr = jobs[n]
    dst = AR[4*(n%8):4*(n%8)+4]
    if ks == 'x': return I(f"ds_read_b128 {dst}, {vEx} offset:{512*it}")
    assert fr//16 in published, (n, fr)
    off = ((fr//16) % NG)*16384 + (fr % 16)*1024
    if off < 65536: return I(f"ds_read_b128 {dst}, {vAd} offset:{off}")
    return I(f"ds_read_b128 {dst}, {vAd2} offset:{off-65536}")
LOOK = 6
atok = {}
for n in range(LOOK): atok[n] = job_read(n)
stamp("g1 start")

class VM:
    def __init__(self, f): self.f = f
    def __call__(self): return self.f()
side = []
def c12_ops():
    ops = []; tk = []
    CL = TMP
    def l(g):
        if g == 2: I(f"s_add_u32 {sCL}, {sCL}, 3584")
        tk.append(I(f"buffer_load_dwordx4 {CL[4*g:4*g+4]}, {vCl}, {rWS}, {sCL} offen offset:{(g&1)*1792} sc1"))
    for g in range(4): ops.append(lambda g=g: l(g))
    ops2 = [lambda: P.wait(tk)]
    for st in (2, 1):
        for g in range(st):
            for h in range(4):
                ops2.append(lambda g=g, st=st, h=h: I(f"v_add_f32 {CL[4*g+h]}, {CL[4*g+h]}, {CL[4*(g+st)+h]}"))
    ops2.append(None)
    for h in range(2): ops2.append(lambda h=h: I(f"v_permlane32_swap_b32 {CL[h]}, {CL[2+h]}"))
    for h in range(2): ops2.append(lambda h=h: I(f"v_add_f32 {CL[h]}, {CL[h]}, {CL[2+h]}"))
    seq = [f"v_cvt_pk_bf16_f32 {CL[5]}, {CL[0]}, {CL[1]}",
           f"v_lshlrev_b32 {CL[2]}, 16, {CL[5]}",
           f"v_and_b32 {CL[3]}, {sHI}, {CL[5]}",
           f"v_sub_f32 {CL[0]}, {CL[0]}, {CL[2]}",
           f"v_sub_f32 {CL[1]}, {CL[1]}, {CL[3]}",
           f"v_cvt_pk_bf16_f32 {CL[4]}, {CL[2]}, {CL[0]}",
           f"v_cvt_pk_bf16_f32 {CL[6]}, {CL[1]}, {CL[3]}",
           f"v_mov_b32 {CL[7]}, 0"]
    for s_ in seq: ops2.append(lambda s_=s_: I(s_))
    ops2.append(lambda: G.__setitem__('tex', I(f"ds_write_b128 {vCe}, {CL[4:8]}")))
    ops2.append(lambda: (vCl.free(), vCe.free()))
    return ops, ops2
def sg_loads(j0=0, j1=4):
    return [I(f"buffer_load_dwordx4 {SGX.g[j]}, {vL16}, {rWS}, {sSG} offen offset:{1024*j} sc1") for j in range(j0, j1)]
def stats2_ops(tk):
    ops = [lambda: check_tags([SGX[2*i+1] for i in range(8)], sg_loads, tk)] + [None]*6
    for j in range(2):
        for i in (0, 2): ops.append(lambda i=i, j=j: I(f"v_add_f32 {SGX[4*j+i]}, {SGX[4*j+i]}, {SGX[8+4*j+i]}"))
    Z = SGX.g[2]; a, b, c, d = Z[0], Z[1], Z[2], Z[3]; e = SGX.g[3][0]
    seq = [f"v_add_f32 {a}, {SGX[0]}, {SGX[4]}", f"v_add_f32 {c}, {SGX[2]}, {SGX[6]}",
           f"v_mov_b32 {b}, {a}", f"v_mov_b32 {d}, {c}", None,
           f"v_permlane32_swap_b32 {a}, {b}", f"v_permlane32_swap_b32 {c}, {d}",
           f"v_add_f32 {a}, {a}, {b}", f"v_add_f32 {c}, {c}, {d}",
           f"v_mul_f32 {b}, 0xbb000000, {a}", f"v_mul_f32 {c}, 0x3b000000, {c}",
           f"v_fma_f32 {d}, -{b}, {b}, {c}", f"v_max_f32 {d}, 0, {d}", f"v_add_f32 {d}, 0x3727c5ac, {d}",
           f"v_sqrt_f32 {c}, {d}", f"v_rcp_f32 {vRS2}, {d}",
           f"v_cmp_eq_u32 vcc, 0, {vHH}",
           f"v_mov_b32 {BX[3]}, 0",
           f"v_cndmask_b32 {b}, 0, {b}, vcc", f"v_cndmask_b32 {c}, 0, {c}, vcc",
           f"v_cvt_pk_bf16_f32 {BX[0]}, {b}, {b}",
           f"v_cvt_pk_bf16_f32 {e}, {c}, {c}",
           f"v_and_b32 {a}, {sHI}, {BX[0]}", f"v_and_b32 {e}, {sHI}, {e}",
           f"v_sub_f32 {b}, {b}, {a}", f"v_sub_f32 {c}, {c}, {e}",
           f"v_cvt_pk_bf16_f32 {BX[1]}, {b}, {e}",
           f"v_cvt_pk_bf16_f32 {BX[2]}, {e}, {c}"]
    for s_ in seq: ops.append((lambda s_=s_: I(s_)) if s_ else None)
    return ops
hst = {}
def epilogue(it):
    ac = ACC[accmap[it]]; ops = []
    for r in range(8): ops.append(lambda r=r: I(f"v_mul_f32 {ac[r]}, {ac[r]}, {ac[8+r]}"))
    for r in range(8): ops.append(lambda r=r: I(f"v_mul_f32 {ac[r]}, {ac[r]}, {vRS2}"))
    for n in range(4): ops.append(lambda n=n: I(f"v_cvt_pk_bf16_f32 {hp[n]}, {ac[2*n]}, {ac[2*n+1]}"))
    def st():
        G['lastst'] = G['now']
        hst[it] = I(f"buffer_store_dwordx4 {hp}, {vL16 if it < 4 else vL16b}, {rWS}, {sHS} offen offset:{1024*(it&3)} sc1")
    ops.append(VM(st)); ops.append(None)
    return ops
def lvl_flag(level, tiles):
    def f():
        P.wait([hst[t] for t in tiles])
        post_flag(vF5, F5 + level*FL)
    return f
def epoch_store():
    I(f"s_or_b32 {sT[0]}, s2, {sWv}")
    I(f"s_cselect_b32 {sT[0]}, {OOB}, {EPOCH}")
    lane0(t0, sT[0], t1)
    I(f"buffer_store_dword {vTag}, {t0}, {rWS}, 0 offen sc1")
sSQ = S.alloc(); sH0 = S.alloc(); sH1 = S.alloc()
ht = {}; hreg = {}; hfree = []
def h_load(i, st):
    c, it = order[i]; n = c*7 + it
    hreg[i, st] = r = hfree.pop(0)
    I(f"s_add_u32 {sT[0]}, {sH1 if st else sH0}, {1024*n}")
    ht[i, st] = I(f"buffer_load_dwordx4 {r}, {vL16}, {rWS}, {sT[0]} offen sc1")
def g2_setup_ops():
    seq = [f"s_lshr_b32 {sT[3]}, {sWv}, 1", f"s_lshl_b32 {sSQ}, {sR64}, 1", f"s_add_u32 {sSQ}, {sSQ}, {sT[3]}",
           f"s_mul_i32 {sT[4]}, {sWv}, 28", f"s_mul_i32 {sH0}, {sSQ}, 112", f"s_add_u32 {sH0}, {sH0}, {sT[4]}",
           f"s_lshl_b32 {sH0}, {sH0}, 10", f"s_add_u32 {sH0}, {sH0}, {HH}",
           f"s_xor_b32 {sT[3]}, {sSQ}, 1", f"s_mul_i32 {sH1}, {sT[3]}, 112", f"s_add_u32 {sH1}, {sH1}, {sT[4]}",
           f"s_lshl_b32 {sH1}, {sH1}, 10", f"s_add_u32 {sH1}, {sH1}, {HH}",
           f"v_and_b32 {t1}, 1, {vL}", f"v_lshlrev_b32 {t1}, 4, {t1}", f"v_bfe_u32 {t2}, {vL}, 1, 2", f"v_add_u32 {t1}, {t1}, {t2}",
           f"s_lshl_b32 {sT[3]}, {sR64}, 5", f"s_lshl_b32 {sT[4]}, {sWv}, 2", f"s_add_u32 {sT[3]}, {sT[3]}, {sT[4]}",
           f"v_add_lshl_u32 {vP5}, {t1}, {sT[3]}, {FSH}"]
    return [(lambda x=x: I(x)) for x in seq]
def res_loads():
    I(f"s_lshl_b32 {sT[0]}, {sSQ}, 15")
    I(f"s_lshl_b32 {sT[1]}, {sDQ}, 6")
    I(f"s_add_u32 {sT[0]}, {sT[0]}, {sT[1]}")
    I(f"s_add_u32 {sT[0]}, {sT[0]}, {X1T}")
    I(f"v_lshl_add_u32 {t0}, {vHH}, 9, {vL16}")
    G['txq'] = [I(f"buffer_load_dwordx4 {XQ[4*n:4*n+4]}, {t0}, {rWS}, {sT[0]} offen offset:{512*n} sc1") for n in range(2)]
c12a, c12b = c12_ops()
sgt = []
wq = []
VSP, BL, WD0, WDL = opt('vsp', 2), opt('bl', 36), opt('wdg', 4), opt('wdl', 20)
vq = []; lastv = -99; lastd = -99
WP_, WDP_, HP0 = opt('wp', 6), opt('wdp', 2), opt('hp0', T6+6)
N6, NC1, NS1, NC2, NS2 = opt('n6', 6), opt('nc1', XA-64), opt('ns1', XA-58), opt('nc2', XA-38), opt('ns2', XA-26)
nextg = NPRE; lastw = -99; xdone = set()
for n, (it, ks, fr) in enumerate(jobs):
    need = [g for g in first_job if g not in published and first_job[g] - LOOK <= n + 1]
    freeable = nextg < 14 and (nextg - NG < 0 or last_job[nextg-NG] < n) and n % opt('fb', 32) == opt('fbo', 2)
    exw = (n == XA - 8)
    if exw: assert 'tex' in G
    if need or freeable or exw:
        ready = [g for g in wch if g not in published and len(wch[g]) == 4 and (g in need or wch[g][-1][1] < P.vm_done)]
        for g in need: assert g in ready, (n, g)
        P.wait([wch[g] for g in ready], atok[n], G.get('tex') if exw else None)
        I("s_barrier"); published |= set(ready)
        for g in (6, 7):
            if opt('xs', 1) and last_job[g] < n and g not in xdone:
                xdone.add(g); G['wd']['free'] = [100 + 2*(g-6), 101 + 2*(g-6)] + G['wd']['free']
                if G['vWx'] is None:
                    G['vWx'] = [V.alloc(), V.alloc()]
                    I(f"s_sub_u32 {sT[5]}, {sWdst}, {sWDs}"); I(f"s_add_u32 {sT[5]}, {sT[5]}, {XB}")
                    for k_ in range(2): I(f"v_add_u32 {G['vWx'][k_]}, {sT[5]}, {G['vWr'][k_]}")
        if opt('dbg'): print(f'\nbar n={n} need={need} ready={ready} lastst', G.get('lastst'), file=sys.stderr)
        while nextg < 14 and (nextg - NG < 0 or last_job[nextg-NG] < n):
            wch[nextg] = []
            for q in range(4): wq.append((first_job[nextg] - opt('wlead', 200), first_job[nextg], lambda g=nextg, q=q: wch[g].extend(w_dma(16384*g, 16384*(g % NG), q, q+1))))
            nextg += 1
    if n in ((32, 64, 96, 128, T5, T6) if not opt('fine') else tuple(range(8, 231, 8))): stamp(f"n{n}")
    if 'win' in OPT and opt('win') <= n < opt('win') + 56*opt('wst', 1) and (n - opt('win')) % opt('wst', 1) == 0: stamp(f'w_{n}'); I(f'; job {n}')
    if n % 2 == 0: P.wait(atok[n], atok.get(n+1), btok.get(ks))
    else: P.wait(atok[n], btok.get(ks))
    ac = ACC[accmap[it]]
    bsrc = BX if ks == 'x' else Bf[4*ks:4*ks+4]
    first = (ks == 0 and it <= NA) or (ks == 'x' and it > NA)
    I(f"v_mfma_f32_32x32x16_bf16 {ac}, {AR[4*(n%8):4*(n%8)+4]}, {bsrc}, {0 if first else ac}")
    if it == 6 and ks != 'x': hfree.append(Bf.g[ks])
    if n + LOOK < NJ: atok[n+LOOK] = job_read(n+LOOK)
    budget = 4
    G['now'] = n
    Wd = G['wd']; vm0 = P.vm
    if n - lastv >= VSP and not any(isinstance(x, VM) for x in side[:3]):
        bdue = len(btok) < 32 and len(btok)*NA - n < BL
        if vq: vq.pop(0)(); budget = 2
        elif bdue: b_next(); budget = 2
        elif wq and wq[0][1] - n < opt('wurg', 300): wq.pop(0)[2](); budget = 1
        elif G.get('l0') and len(hfree) > 1 and len(ht) < 24:
            i = len(ht); h_load(i//2, i % 2); budget = 2
        elif n >= WD0 and n - lastd >= WDP_ and wd_dma1(): lastd = n; budget = 0
        elif wq and n >= wq[0][0]: wq.pop(0)[2](); budget = 1
    if P.vm == vm0 and Wd['nr'] < Wd['nd'] and n - Wd['ti'].get(Wd['nr'], -99) >= WDL: wd_read(); budget = 0
    if n == N6: vq += [epoch_store]
    if n == NC1 - 24: vq += [lambda: G.__setitem__('tp6', flag_load(vp3, vP3, F4))]
    if n == NC1: side += [lambda: (check_tags([vp3], lambda: flag_load(vp3, vP3, F4), G['tp6']), vp3.free(), vP3.free(), vq.extend(c12a))]
    if n == NS1:
        for j in range(4): vq += [lambda j=j: sgt.extend(sg_loads(j, j+1))]
    if n == NC2: side += c12b
    if n == NS2: side += stats2_ops(sgt)
    if n == XA - 1: assert not side, len(side)
    if n == XA + NA + 1:
        SGX.g[2].free(); SGX.g[3].free()
        XQ = Frags(2); vP5 = V.alloc(); vp5 = V.alloc()
        for e in range(NA): side += epilogue(e)
    if n == T4 + 4: side += g2_setup_ops()
    for e in range(NA, 6):
        if n == TT[e+1] + 3: side += epilogue(e)
    if n == opt('l0p', 168): vq += [lvl_flag(0, (0, 1, 2))]
    if n == opt('l1p', 210): vq += [lvl_flag(1, (3, 4))]
    if n == HP0 - opt('l0w', 14): vq += [lambda: G.__setitem__('tp5', flag_load(vp5, vP5, F5))]
    if n == HP0: side += [lambda: (check_tags([vp5], lambda: flag_load(vp5, vP5, F5), G['tp5']), G.__setitem__('l0', True), vq.append(res_loads))]
    k = 0
    while side and k < budget:
        if isinstance(side[0], VM) and (P.vm != vm0 or n - lastv < VSP): break
        f = side.pop(0); k += 1
        if f: f()
    if P.vm != vm0: lastv = n
    for e in range(NA+2, 7):
        if n == TT[e] - 1: assert e - NA - 2 in hst
for f in side:
    if f: f()
for f in vq: f()
if G['wd'].get('half'): wd_dma1()
assert not wq
print('wd progress', G['wd']['nd'], G['wd']['nr'], 'hh early', len(ht), file=sys.stderr)
def h_next():
    i = len(ht)
    if i < G['hlim'] and hfree: h_load(i//2, i % 2); return True
    return False
G['hlim'] = 24
h_next(); h_next()
for f in epilogue(6):
    if f: f()
stamp("g1 done")
for r in ACC + [BX, vRS2, vAd, vAd2, vEx]: r.free()
I("s_barrier")

GA = [V.alloc(16) for _ in range(4)]
HD = opt('hd', 20)
while len(ht) < opt('hd0', 10): h_next()
PL = {1: (opt('p1', 1), opt('p1c', 6), 40), 2: (opt('p2', 9), opt('p2c', 14), 48), 3: (opt('p3', 15), opt('p3c', 20), 56)}
mj = [(i, q) for i in range(24) for q in range(4)] + [(i, q) for q in (1, 2, 3, 0) for i in range(24, 28)]
red = []
for m, (i, q) in enumerate(mj):
    c, it = order[i]; n = c*7 + it; dt, st = q & 1, q >> 1
    if (i, st) not in ht:
        raise RuntimeError(f"hh {i} not issued")
    if opt('gfine') and m % 8 == 0: stamp(f'm{m}')
    P.wait(ht[i, st], G['wd']['rd'][i])
    I(f"v_mfma_f32_32x32x16_bf16 {GA[q]}, {AWD[8*i+4*dt:8*i+4*dt+4]}, {hreg[i, st]}, {0 if i==0 else GA[q]}")
    if i < 24 and dt == 1: hfree.append(hreg[i, st])
    G['now'] = NJ + 8 + m; Wd = G['wd']
    if m % 2 == 0 and Wd['nr'] < 28:
        if Wd['nr'] < Wd['nd'] and G['now'] - Wd['ti'].get(Wd['nr'], -99) >= WDL: wd_read()
        else: wd_dma1()
    if len(ht) < 2*i + HD + 2 and (m % 2 == 1 or len(ht) < 2*i + opt('hmin', 10)): h_next()
    if q == 0 and i < 24:
        for lv, (pi_, pc_, lim) in PL.items():
            if i == pc_:
                check_tags([vp5], lambda lv=lv: flag_load(vp5, vP5, F5 + lv*FL), G['tp']); G['hlim'] = lim; opt('gfine') or stamp(f"L{lv} ok")
        for lv, (pi_, pc_, lim) in PL.items():
            if i == pi_: G['tp'] = flag_load(vp5, vP5, F5 + lv*FL)
        if i == opt('l2p', 2): lvl_flag(2, (5,))()
        if i == opt('l3p', 8): lvl_flag(3, (6,))()
        if i == 2:
            I(f"v_lshl_add_u32 {t0}, {vQ}, 2, {sXdst}")
            I(f"ds_write_b32 {t0}, {vGB} offset:6144")
        if i == 21:
            G['GB'] = GB = [hfree.pop() for _ in range(4)]
            I(f"v_lshlrev_b32 {t1}, 6, {vHH}")
            I(f"v_add_u32 {t1}, {sXdst}, {t1}")
            for n_ in range(4): I(f"ds_read_b128 {GB[n_]}, {t1} offset:{6144+16*n_}")
        if i == 21:
            G['XF'] = XF = [hfree.pop() for _ in range(4)]
            P.wait(G['txq'])
            for rho in range(8):
                red.append(lambda rho=rho: (unpack(XF[rho//2][2*(rho%2)], XQ[rho], 0), unpack(XF[rho//2][2*(rho%2)+1], XQ[rho], 1)))
        if i == 23:
            G['RA'] = RA = hfree.pop()
            for qq in range(1, 4):
                red.append(lambda qq=qq: (I(f"s_xor_b32 {sT[0]}, {sWv}, {qq}"), I(f"s_mul_i32 {sT[0]}, {sT[0]}, 12288"), I(f"v_add_u32 {RA[qq]}, {sT[0]}, {vL16}")))
            red.append(lambda: (I(f"s_mul_i32 {sT[0]}, {sWv}, 12288"), I(f"v_add_u32 {RA[0]}, {sT[0]}, {vL16}")))
            red.append(lambda: (I(f"s_lshl_b32 {sT[2]}, {sSQ}, 15"), I(f"s_lshl_b32 {sT[1]}, {sDQ}, 1"), I(f"s_add_u32 {sT[2]}, {sT[2]}, {sT[1]}"), I(f"s_add_u32 {sT[3]}, {sT[2]}, 16384")))
            red.append(lambda: (I(f"v_lshrrev_b32 {t1}, 2, {vL}"), I(f"v_lshlrev_b32 {t1}, 10, {t1}"), I(f"v_and_b32 {t2}, 3, {vL}"), I(f"v_lshl_add_u32 {t1}, {t2}, 4, {t1}")))
            red.append(lambda: (I(f"v_lshlrev_b32 {t2}, 6, {vQ}"), I(f"v_lshl_add_u32 {t2}, {vHH}, 5, {t2}"), I(f"v_add_u32 {t2}, {sXdst}, {t2}"), I(f"v_add_u32 {t0}, {sXdst}, {vL16}")))
    if m >= 101 and (m - 101) // 4 < 2:
        qq = (m - 101)//4 + 1; r = (m - 101) % 4
        I(f"ds_write_b128 {G['RA'][qq]}, {GA[qq][4*r:4*r+4]} offset:{(qq-1)*4096 + r*1024}")
    elif m >= 109:
        r = m - 109
        I(f"ds_write_b128 {G['RA'][3]}, {GA[3][4*r:4*r+4]} offset:{2*4096 + r*1024}")
    elif red: red.pop(0)()
assert not red
I(f"ds_write_b128 {G['RA'][3]}, {GA[3][12:16]} offset:{2*4096 + 3*1024}")
stamp("g2 mfma")
GB, XF, RA = G['GB'], G['XF'], G['RA']
P.wait_all(vm=False)
I("s_barrier")
tl = {}
for r in range(4):
    tl[r] = [I(f"ds_read_b128 {GA[q][4*r:4*r+4]}, {RA[0]} offset:{(q-1)*4096 + r*1024}") for q in range(1, 4)]
OST = OPT.get('ost', '')
for r in range(4):
    P.wait(tl[r])
    for h in (0, 2): I(f"v_pk_add_f32 {GA[1][4*r+h:4*r+h+2]}, {GA[1][4*r+h:4*r+h+2]}, {GA[2][4*r+h:4*r+h+2]}")
    for h in (0, 2): I(f"v_pk_add_f32 {GA[0][4*r+h:4*r+h+2]}, {GA[0][4*r+h:4*r+h+2]}, {GA[3][4*r+h:4*r+h+2]}")
    for h in (0, 2): I(f"v_pk_add_f32 {GA[0][4*r+h:4*r+h+2]}, {GA[0][4*r+h:4*r+h+2]}, {GA[1][4*r+h:4*r+h+2]}")
    for h in (0, 2): I(f"v_pk_fma_f32 {XF[r][h:h+2]}, {GA[0][4*r+h:4*r+h+2]}, {GB[r][h:h+2]}, {XF[r][h:h+2]}")
    for h in (0, 2): I(f"v_cvt_pk_bf16_f32 {XQ[2*r+h//2]}, {XF[r][h]}, {XF[r][h+1]}")
    if r % 2: I(f"ds_write_b128 {t2}, {XQ[2*r-2:2*r+2]} offset:{4096 + 8*(r-1)}")
tl = [I(f"ds_read_b128 {GB[h]}, {t0} offset:{4096+1024*h}") for h in range(2)]
for h in range(2):
    P.wait(tl[h])
    I(f"buffer_store_dwordx4 {GB[h]}, {t1}, {rOUT}, {sT[2+h]} offen {OST}")
stamp("end")
if TSTAMP:
    P.wait_all()
    stamp("drained")
    n = nts[0]
    I("s_waitcnt lgkmcnt(0)")
    I(f"v_writelane_b32 {vTs}, {sTp[n&1][0]}, {n-2}")
    I(f"v_writelane_b32 {vTs}, {sTp[(n+1)&1][0]}, {n-1}")
    I(f"v_subrev_u32 {vTs}, {sT0[0]}, {vTs}")
    I(f"s_memrealtime {sTp[0]}")
    I("s_waitcnt lgkmcnt(0)")
    I(f"v_writelane_b32 {vTs}, {sR0[0]}, 62")
    I(f"v_writelane_b32 {vTs}, {sTp[0][0]}, 63")
    I(f"v_writelane_b32 {vTs}, {sSpin}, 61")
    I(f"s_lshl_b32 {sT[0]}, s2, 10")
    I(f"s_add_u32 {sT[0]}, {sT[0]}, {TS}")
    I(f"v_lshlrev_b32 {t0}, 2, v0")
    I(f"buffer_store_dword {vTs}, {t0}, {rWS}, {sT[0]} offen")
    print(f"\nNTS={n}", file=sys.stderr)
if PROBE:
    I("s_waitcnt lgkmcnt(0)")
    I(f"s_sub_u32 {sT[0]}, {sTp[0][0]}, {sT0[0]}")
    I(f"s_min_u32 {sT[0]}, {sT[0]}, 100000")
    I(f"s_memrealtime {sT0}")
    I("L_spin:")
    I(f"s_memrealtime {sTp[0]}")
    I("s_waitcnt lgkmcnt(0)")
    I(f"s_sub_u32 {sT[1]}, {sTp[0][0]}, {sT0[0]}")
    I(f"s_cmp_lt_u32 {sT[1]}, {sT[0]}")
    I("s_cbranch_scc1 L_spin")
I("L_end:")
I("s_endpgm")
P.ins.extend(slow)
if opt('cpf', 1):
    I(".fill 1536, 4, 0xbf800000")

body = P.finalize()
ref = open(f"cdna_kernels/{NAME}.s.ref").read()
hdr = "".join(l + "\n" for l in ref.split("\n") if l.startswith(";") and "@launch" not in l)
out = hdr + f"; @launch grid=(256,1,1) block=(256,1,1) lds={LDS_SIZE}\n"
out += f"""; NTS={nts[0] if TSTAMP else 0} LAYOUT=10 WSOFF={WSOFF}
.amdgcn_target "amdgcn-amd-amdhsa--gfx950"
.text
.globl {NAME}_kernel
.p2align 8
.type {NAME}_kernel,@function
{NAME}_kernel:
{body}
.section .rodata,"a"
.p2align 6
.amdhsa_kernel {NAME}_kernel
  .amdhsa_next_free_vgpr 512
  .amdhsa_next_free_sgpr 102
  .amdhsa_accum_offset 256
  .amdhsa_group_segment_fixed_size 0
  .amdhsa_kernarg_size 120
  .amdhsa_user_sgpr_count 2
  .amdhsa_user_sgpr_kernarg_segment_ptr 1
  .amdhsa_system_sgpr_workgroup_id_x 1
.end_amdhsa_kernel
"""
dst = [a for a in sys.argv[1:] if not a.startswith('--')][0]
open(dst, "w").write(out)
print(f"instrs {len(P.ins)} nops {P.nops} vgpr hi {V.hi} sgpr hi {S.hi}", file=sys.stderr)
```

```python
import sys
from dsl import *

NAME = "adaLN_cond__ssm_conv_h3__glu_gated_bilinear__prompt"
OPT = {}
for a_ in sys.argv[1:]:
    if a_.startswith('--'):
        k, _, v = a_[2:].partition('='); OPT[k] = v if v else '1'
def opt(k, d=0): return type(d)(OPT.get(k, d))
TSTAMP = opt('ts')
PROBE = tuple(int(x) for x in OPT['probe'].split(',')) if 'probe' in OPT else None
TSOP = 's_memrealtime' if opt('rt') else 's_memtime'
NTS_ = OPT.get("nt", "m")
def nt(k): return "nt" if k in NTS_ else ""
NT = nt("k")

EPOCH=0; F3=0x10000; F4=0x40000; F5=0x60000; F1=0x800000; FY=0x820000; S2=0x840000
MODG=0x90000; STG=0xA8000; C12=0xB0000; MODL2=0x880000
KVG=0x100000; XG=0x500000; X1T=0x900000; WP=0xB00000; WDP=0xF00000; HH=0x1100000; SG=0x1800000; TS=0x1900000
WS_SIZE=0x1A00000
OOB=0x80000000
FSH=opt('fsh', 4); F6=0x18000 if FSH <= 5 else 0xF0000
UB=0; UCH=4608; MODL=9216; CBL=10240; C12L=11264
TAPS=15360; TCOPY=4160; TCH=33280
RED=131072
WL=0; XS=131072; XSW=7168; EX=159744; NG=8
XTO=8192; C12O=10240; CBO=11264; S2O=11776
WDS0=81920; WDW0=20480; REDO=12288
LDS_SIZE=163840
NA = opt('na', 3)

P = Prog(); I = P.I; V = P.V; A = P.A; S = P.S
S.reserve(0, 3); V.reserve(0, 1)
def srd(): return S.alloc(4, 4)
rX, rK, rV, rSH, rTP, rW, rWD, rC, rWM, rOUT, rWS, rD = [srd() for _ in range(12)]
sPG = S.alloc(2, 2); sPU = S.alloc(2, 2)
sXJ = S.alloc(); sGI = S.alloc(); sWv = S.alloc(); sSpin = S.alloc()
sT = [S.alloc() for _ in range(6)]
sZ = [S.alloc() for _ in range(2)]
sC4096 = S.alloc()
sPL = S.alloc(); sPH = S.alloc(); sHI = S.alloc(); sONE = S.alloc()
sD0 = S.alloc()
sTp = [S.alloc(2, 2), S.alloc(2, 2)]; sT0 = S.alloc(2, 2)

class Frags:
    def __init__(self, n, pool=None): self.g = [(pool or V).alloc(4) for _ in range(n)]
    def __getitem__(self, i):
        if isinstance(i, slice):
            assert i.start//4 == (i.stop-1)//4
            return self.g[i.start//4][i.start%4:(i.stop-1)%4+1]
        return self.g[i//4][i%4]
    def free(self):
        for g in self.g: g.free()

nts = [0]
def stamp(name=""):
    if 'win' in OPT and not (name.startswith('w_') or name in ('end', 'drained')): return
    n = nts[0]; nts[0] += 1
    if PROBE:
        if n == PROBE[0]: I(f"s_memrealtime {sT0}")
        if n == PROBE[1]: I(f"s_memrealtime {sTp[0]}")
        return
    if not TSTAMP: return
    if n >= 2: I(f"v_writelane_b32 {vTs}, {sTp[n&1][0]}, {n-2}")
    I(f"{TSOP} {sTp[n&1]}")
    print(f"{n}:{name}", file=sys.stderr, end="  ")

slow = []
def check_tags(tags, reissue, toks):
    R = P.label("chk"); SL = P.label("slow"); D = P.label("ok")
    P.wait(toks)
    mn = V.alloc(); mx = V.alloc()
    I(f"{R}:")
    tg = list(tags)
    if len(tg) == 1:
        I(f"v_cmp_ne_u32 vcc, {tg[0]}, {vTag}")
    else:
        if len(tg) % 2: tg.append(tg[0])
        for i in range(0, len(tg), 2):
            I(f"v_min3_u32 {mn}, {vTag if i==0 else mn}, {tg[i]}, {tg[i+1]}")
            I(f"v_max3_u32 {mx}, {vTag if i==0 else mx}, {tg[i]}, {tg[i+1]}")
        I(f"v_cmp_ne_u32 vcc, {mn}, {mx}")
    I(f"s_cbranch_vccnz {SL}")
    I(f"{D}:")
    mn.free(); mx.free()
    save = (P.ins, P.vm, P.lg, P.vm_done, P.lg_done)
    P.ins = []
    I(f"{SL}:")
    I(f"s_add_u32 {sSpin}, {sSpin}, 1")
    I(f"s_cmp_gt_u32 {sSpin}, 200000")
    I(f"s_cbranch_scc1 {D}")
    reissue()
    I("s_waitcnt vmcnt(0)")
    I(f"s_branch {R}")
    slow.extend(P.ins)
    P.ins, P.vm, P.lg, P.vm_done, P.lg_done = save

def post_flag(vaddr, base):
    I(f"s_mov_b32 {sZ[0]}, {base}")
    return I(f"buffer_store_dword {vTag}, {vaddr}, {rWS}, {sZ[0]} offen sc1")
def flag_load(vp, vaddr, base):
    I(f"s_mov_b32 {sZ[0]}, {base}")
    return I(f"buffer_load_dword {vp}, {vaddr}, {rWS}, {sZ[0]} offen sc1")
def poll(vaddr, base):
    vp = V.alloc()
    t = flag_load(vp, vaddr, base)
    check_tags([vp], lambda: flag_load(vp, vaddr, base), t)
    vp.free()
sRel = S.alloc()
def post_local(vaddr, base):
    if not LOC: return post_flag(vaddr, base)
    I(f"s_mov_b32 {sZ[0]}, {base}")
    return I(f"buffer_store_dword {vTagL}, {vaddr}, {rWS}, {sZ[0]} offen")
def check_local(vp, vpoll, vown, base, tok):
    if not LOC: return check_tags([vp], lambda: flag_load(vp, vpoll, base), tok)
    SL = P.label("lslow"); D = P.label("lok"); RL = P.label("lrel"); AG = P.label("lagain"); NR = P.label("lnorel")
    P.wait(tok)
    I(f"v_cmp_ne_u32 vcc, {vp}, {vTagL}")
    I(f"s_cbranch_vccnz {SL}")
    I(f"{D}:")
    save = (P.ins, P.vm, P.lg, P.vm_done, P.lg_done)
    P.ins = []
    I(f"{SL}:")
    I(f"s_mov_b32 {sRel}, 0")
    I(f"{AG}:")
    I(f"s_add_u32 {sSpin}, {sSpin}, 1")
    I(f"s_cmp_gt_u32 {sSpin}, 200000")
    I(f"s_cbranch_scc1 {D}")
    flag_load(vp, vpoll, base)
    I("s_waitcnt vmcnt(0)")
    I(f"v_cmp_ne_u32 vcc, {vp}, {vTagL}")
    I(f"s_cbranch_vccz {D}")
    I(f"s_cmp_ge_u32 {sRel}, 0x10000")
    I(f"s_cbranch_scc1 {NR}")
    I(f"s_add_u32 {sRel}, {sRel}, 1")
    I(f"s_cmp_ge_u32 {sRel}, {opt('ltry', 40)}")
    I(f"s_cbranch_scc1 {RL}")
    I(f"v_cmp_eq_u32 vcc, {vp}, {vTag}")
    I(f"s_cbranch_vccz {AG}")
    I(f"{RL}:")
    I("buffer_wbl2 sc1")
    I("s_waitcnt vmcnt(0)")
    post_flag(vown, base)
    I(f"s_mov_b32 {sRel}, 0x10000")
    I(f"{NR}:")
    I(f"v_cmp_ne_u32 vcc, {vp}, {vTagL}")
    I(f"v_cmp_ne_u32 {sTp2}, {vp}, {vTag}")
    I(f"s_and_b64 {sTp2}, vcc, {sTp2}")
    I(f"s_cbranch_scc1 {AG}")
    I("s_waitcnt vmcnt(0)")
    I(f"s_branch {D}")
    slow.extend(P.ins)
    P.ins, P.vm, P.lg, P.vm_done, P.lg_done = save
def unpack(dst, src, hi):
    I(f"v_and_b32 {dst}, {sHI}, {src}" if hi else f"v_lshlrev_b32 {dst}, 16, {src}")
def round_bf16(dst, src):
    I(f"v_cvt_pk_bf16_f32 {dst}, {src}, {src}")
    I(f"v_and_b32 {dst}, {sHI}, {dst}")
def lane0(dst, sval, tmp):
    I(f"v_mov_b32 {dst}, {OOB}")
    I(f"v_writelane_b32 {dst}, {sval}, 0")

I("s_cmp_ge_u32 s2, 256")
I("s_cbranch_scc1 L_end")
if PROBE and PROBE[0] == -1: I(f"s_memrealtime {sT0}")
if TSTAMP:
    I(f"{TSOP} {sT0}")
    sR0 = S.alloc(2, 2); I(f"s_memrealtime {sR0}")
for r, off in ((rK,8),(rV,16),(rSH,24),(rWS,112),(rC,80),(rWM,88),(rX,0),(rTP,32),(rWD,72),(rOUT,96)):
    I(f"s_load_dwordx2 {r[0:2]}, s[0:1], {off}")
I(f"s_load_dwordx2 {sPG}, s[0:1], 56")
I(f"s_load_dwordx2 {sPU}, s[0:1], 64")
I(f"s_load_dwordx2 {rD[0:2]}, s[0:1], 40")
vL = V.alloc(); vL16 = V.alloc(); vTag = V.alloc(); vHH = V.alloc(); vQ = V.alloc(); vT16 = V.alloc()
if TSTAMP: vTs = V.alloc()
t0 = V.alloc(); t1 = V.alloc(); t2 = V.alloc()
I(f"s_and_b32 {sXJ}, s2, 7")
I(f"s_lshr_b32 {sGI}, s2, 3")
I(f"v_lshrrev_b32 {t0}, 6, v0")
I(f"v_and_b32 {vL}, 63, v0")
I(f"v_readfirstlane_b32 {sWv}, {t0}")
I(f"v_lshlrev_b32 {vL16}, 4, {vL}")
I(f"v_lshlrev_b32 {vT16}, 4, v0")
def do_cpf():
    global cpa, cpd
    cpa = V.reserve(250, 2); cpd = V.reserve(252, 4)
    I(f"s_getpc_b64 {sTp[0]}")
    I(f"s_and_b32 {sTp[0][0]}, {sTp[0][0]}, 0xffffff00")
    I(f"s_and_b32 {sT[5]}, {sGI}, 7")
    I(f"s_min_u32 {sT[5]}, {sT[5]}, 6")
    I(f"s_lshl_b32 {sT[5]}, {sT[5]}, 12")
    I(f"s_add_u32 {sTp[0][0]}, {sTp[0][0]}, {sT[5]}")
    I(f"s_addc_u32 {sTp[0][1]}, {sTp[0][1]}, 0")
    I(f"v_mov_b32 {cpa[1]}, {sTp[0][1]}")
    I(f"v_add_co_u32 {cpa[0]}, vcc, {sTp[0][0]}, {vT16}")
    I(f"v_addc_co_u32 {cpa[1]}, vcc, 0, {cpa[1]}, vcc")
    I(f"global_load_dwordx4 {cpd}, {cpa}, off")
if opt('cpf', 0) == 1: do_cpf()
for r, n in ((rK,2097152),(rV,2097152),(rSH,4096),(rWS,WS_SIZE),(rC,1024),(rWM,3145728),(rX,2097152),(rTP,2097152),(rWD,1835008),(rOUT,2097152),(rW,1835008),(rD,1024)):
    I(f"s_mov_b32 {r[2]}, {n}")
    I(f"s_mov_b32 {r[3]}, 0x20000")
I(f"v_lshrrev_b32 {vHH}, 5, {vL}")
I(f"v_and_b32 {vQ}, 31, {vL}")
I(f"s_mov_b32 {sSpin}, 0")
I(f"s_movk_i32 {sC4096}, 0x1000")
vB = V.alloc(); vH = V.alloc(); vSH = V.alloc(); vGS = V.alloc()
I(f"s_lshl_b32 {sT[0]}, {sGI}, 16")
I(f"s_lshl_b32 {sT[1]}, {sXJ}, 7")
I(f"s_lshl_b32 {sT[2]}, {sWv}, 5")
I(f"s_add_u32 {sT[1]}, {sT[1]}, {sT[2]}")
I(f"s_add_u32 {sT[0]}, {sT[0]}, {sT[1]}")
I(f"v_lshrrev_b32 {t0}, 3, {vL}")
I(f"v_and_b32 {t1}, 7, {vL}")
I(f"v_lshlrev_b32 {vB}, 13, {t0}")
I(f"v_lshl_add_u32 {vB}, {t1}, 2, {vB}")
I(f"v_add_u32 {vB}, {sT[0]}, {vB}")
I(f"v_subrev_u32 {vH}, 3072, {vB}")
I(f"s_lshl_b32 {sT[2]}, {sT[1]}, 2")
I(f"v_lshlrev_b32 {vSH}, 4, {t1}")
I(f"v_add_u32 {vSH}, {sT[2]}, {vSH}")
I(f"v_mov_b32 {t2}, {EPOCH}")
if opt("sfine"): stamp("s0")
I("s_waitcnt lgkmcnt(0)")
if opt("sfine"): stamp("karg")
WSOFF = opt('wsoff', 0) << 20
if WSOFF:
    I(f"s_add_u32 {rWS[0]}, {rWS[0]}, {WSOFF}")
    I(f"s_addc_u32 {rWS[1]}, {rWS[1]}, 0")
LOC = opt('loc', 1); LST = '' if LOC else 'sc1'
vTagL = V.alloc()
PT = V.alloc(4)
Kr = V.alloc(11, 1); Vr = V.alloc(8, 1); SHr = V.alloc(4)
tep = I(f"buffer_load_dword {vTag}, {t2}, {rWS}, 0 offen sc1")
tsh = I(f"buffer_load_dwordx4 {SHr}, {vSH}, {rSH}, 0 offen")
PTA = OPT.get('pta', 'sc1')
def pretouch(base):
    I(f"s_lshl_b32 {sZ[0]}, {sXJ}, 18")
    I(f"s_lshl_b32 {sZ[1]}, {sGI}, 13")
    I(f"s_add_u32 {sZ[0]}, {sZ[0]}, {sZ[1]}")
    I(f"s_add_u32 {sZ[0]}, {sZ[0]}, {base}")
    I(f"s_add_u32 {sZ[1]}, {sZ[0]}, 4096")
    for c in range(2): I(f"buffer_load_dwordx4 {PT}, {vT16}, {rWS}, {sZ[c]} offen {PTA}")
if LOC and opt('ptfirst', 0): pretouch(KVG)
tk = []
for e in range(3): tk.append(I(f"buffer_load_dword {Kr[e]}, {vH}, {rK}, 0 offen offset:{e*1024} {NT}"))
for e in range(8): tk.append(I(f"buffer_load_dword {Kr[3+e]}, {vB}, {rK}, {sC4096 if e>=4 else 0} offen offset:{(e&3)*1024} {NT}"))
tv = [I(f"buffer_load_dword {Vr[e]}, {vB}, {rV}, {sC4096 if e>=4 else 0} offen offset:{(e&3)*1024} {NT}") for e in range(8)]
vH.free(); vSH.free()
if opt('sfine'): stamp('L1')
if LOC and not opt('ptfirst', 0): pretouch(KVG)
if opt('cpf', 0) == 2: do_cpf()
vBP = V.alloc()
I(f"s_lshl_b32 {sT[2]}, {sT[1]}, 11")
I(f"s_lshl_b32 {sT[3]}, {sGI}, 7")
I(f"s_add_u32 {sT[2]}, {sT[2]}, {sT[3]}")
I(f"v_lshlrev_b32 {vGS}, 13, {t0}")
I(f"v_lshl_add_u32 {vGS}, {t1}, 4, {vGS}")
I(f"s_add_u32 {sT[2]}, {sT[2]}, {KVG}")
I(f"v_add_u32 {vGS}, {sT[2]}, {vGS}")
I(f"v_lshlrev_b32 {vBP}, 5, {t1}")
I(f"v_lshl_add_u32 {vBP}, {t0}, 2, {vBP}")
I(f"s_mov_b32 {sPL}, 0x05040100")
I(f"s_mov_b32 {sPH}, 0x07060302")
I(f"s_mov_b32 {sHI}, 0xffff0000")
I(f"s_mov_b32 {sONE}, 0x3f803f80")
sM = S.alloc(); sKS = S.alloc(); sCB = S.alloc()
I(f"s_and_b32 {sM}, {sGI}, 1")
I(f"s_cmp_eq_u32 {sM}, 0")
I(f"s_cselect_b32 {rW[0]}, {sPG[0]}, {sPU[0]}")
I(f"s_cselect_b32 {rW[1]}, {sPG[1]}, {sPU[1]}")
I(f"s_lshl_b32 {sD0}, {sXJ}, 6")
I(f"s_lshl_b32 {sT[4]}, {sGI}, 1")
I(f"s_add_u32 {sD0}, {sD0}, {sT[4]}")
I(f"s_lshl_b32 {sKS}, {sXJ}, 2")
I(f"s_add_u32 {sKS}, {sKS}, {sWv}")
I(f"s_lshr_b32 {sCB}, {sGI}, 1")
sPG.free(); sTp2 = sPU

G = {}
def A_mod():
    G['vMW'] = vMW = V.alloc(); G['vMC'] = vMC = V.alloc()
    I(f"s_and_b32 {sT[4]}, {sGI}, 3")
    I(f"s_lshl_b32 {sT[4]}, {sT[4]}, 7")
    I(f"v_lshrrev_b32 {t2}, 3, v0")
    I(f"v_add_u32 {t2}, {sT[4]}, {t2}")
    I(f"v_lshlrev_b32 {vMC}, 1, {t2}")
    I(f"v_mul_u32_u24 {vMW}, 6144, {t2}")
    I(f"v_and_b32 {t2}, 7, v0")
    I(f"v_lshl_add_u32 {vMW}, {t2}, 4, {vMW}")
    I(f"s_lshr_b32 {sT[4]}, {sGI}, 2")
    I(f"s_lshl_b32 {sT[4]}, {sT[4]}, 10")
    I(f"s_lshl_b32 {sT[5]}, {sXJ}, 7")
    I(f"s_add_u32 {sT[4]}, {sT[4]}, {sT[5]}")
    I(f"s_cmp_lt_u32 {sGI}, 24")
    I(f"s_cselect_b32 {sT[4]}, {sT[4]}, {OOB}")
    I(f"v_add_u32 {vMW}, {sT[4]}, {vMW}")
def L_mod():
    vMW, vMC = G['vMW'], G['vMC']
    G['Cr'] = Cr = V.alloc(4, 1); G['WMr'] = WMr = V.alloc(16)
    G['tc'] = [I(f"buffer_load_ushort {Cr[i]}, {vMC}, {rC}, 0 offen offset:{64*i}") for i in range(4)]
    G['twm'] = []
    for i in range(4):
        I(f"s_mov_b32 {sT[5]}, {i*32*6144}")
        G['twm'].append(I(f"buffer_load_dwordx4 {WMr[4*i:4*i+4]}, {vMW}, {rWM}, {sT[5]} offen {nt('m')}"))
    vMW.free(); vMC.free()
def L_taps():
    G['TP'] = TP = [V.alloc(8), V.alloc(8)]
    I(f"s_lshl_b32 {sT[4]}, {sD0}, 12")
    I(f"s_add_u32 {sT[5]}, {sT[4]}, 4096")
    I(f"v_subrev_u32 {t2}, 16, {vT16}")
    I(f"v_min_u32 {t2}, {OOB}, {t2}")
    G['ttp'] = []
    for c in range(2):
        G['ttp'].append([I(f"buffer_load_dwordx4 {TP[c][4:8]}, {vT16}, {rTP}, {sT[4+c]} offen {nt('t')}"),
                         I(f"buffer_load_dwordx4 {TP[c][0:4]}, {t2}, {rTP}, {sT[4+c]} offen {nt('t')}")])
def L_w():
    G['WR'] = WR = V.alloc(16)
    I(f"s_mul_i32 {sT[0]}, {sKS}, {16*3584}")
    I(f"s_mul_i32 {sT[1]}, {sCB}, 224")
    I(f"s_add_u32 {sT[0]}, {sT[0]}, {sT[1]}")
    I(f"v_mul_u32_u24 {t2}, {8*3584}, {vHH}")
    I(f"v_lshl_add_u32 {t2}, {vQ}, 3, {t2}")
    G['twr'] = []
    for e in range(8):
        if e and e % 2 == 0: I(f"s_add_u32 {sT[0]}, {sT[0]}, 7168")
        G['twr'].append(I(f"buffer_load_dwordx2 {WR[2*e:2*e+2]}, {t2}, {rW}, {sT[0]} offen offset:{(e&1)*3584} {nt('w')}"))
def L_x1(e):
    if e == 0: G['Xr'] = V.alloc(8, 1); G['tx'] = []
    G['tx'].append(I(f"buffer_load_dword {G['Xr'][e]}, {vB}, {rX}, {sC4096 if e>=4 else 0} offen offset:{(e&3)*1024}"))
    if e == 7: vB.free()
def L_xr():
    G['XR'] = XR = V.alloc(8)
    I(f"s_lshl_b32 {sT[0]}, s2, 13")
    I(f"s_lshl_b32 {sT[1]}, {sWv}, 11")
    I(f"s_add_u32 {sT[0]}, {sT[0]}, {sT[1]}")
    G['txr'] = [I(f"buffer_load_dwordx4 {XR[4*i:4*i+4]}, {vL16}, {rX}, {sT[0]} offen offset:{1024*i} {nt('r')}") for i in range(2)]
def zero_pads():
    z4 = V.alloc(4)
    for i in range(4): I(f"v_mov_b32 {z4[i]}, 0")
    I(f"v_lshlrev_b32 {t2}, 4, {vQ}")
    I(f"v_mul_u32_u24 {t0}, {UCH}, {vHH}")
    I(f"v_add_u32 {t2}, {t2}, {t0}")
    I(f"ds_write_b128 {t2}, {z4} offset:{UB+4096}")
    I(f"v_and_b32 {t2}, 15, {vL}")
    I(f"v_mul_u32_u24 {t2}, {TCOPY}, {t2}")
    I(f"ds_write_b128 {t2}, {z4} offset:{TAPS}")
    z4.free()
def C_tag():
    P.wait(tep)
    pass
    I(f"s_mov_b32 {sT[0]}, 0x9E3779B1")
    I(f"v_mul_lo_u32 {vTag}, {vTag}, {sT[0]}")
    I(f"v_add_u32 {vTag}, 0x7F4A7C15, {vTag}")
    I(f"s_getreg_b32 {sT[0]}, hwreg(HW_REG_XCC_ID, 0, 4)")
    I(f"s_add_u32 {sT[0]}, {sT[0]}, 1")
    I(f"v_xor_b32 {vTagL}, {sT[0]}, {vTag}")
def lane_tr(src):
    GR = Frags(2)
    return GR, [I(f"ds_bpermute_b32 {GR[i]}, {vBP}, {src[i]}") for i in range(8)]
def flag_setup():
    G['vFo'] = V.alloc(); G['vFp'] = V.alloc()
    I(f"s_lshl_b32 {sT[0]}, {sKS}, 5")
    I(f"s_add_u32 {sT[0]}, {sT[0]}, {sGI}")
    I(f"s_lshl_b32 {sT[0]}, {sT[0]}, 7")
    lane0(G['vFo'], sT[0], t1)
    I(f"s_lshr_b32 {sT[0]}, {sGI}, 3")
    I(f"s_lshl_b32 {sT[1]}, {sXJ}, 2")
    I(f"s_add_u32 {sT[0]}, {sT[0]}, {sT[1]}")
    I(f"s_lshl_b32 {sT[0]}, {sT[0]}, 2")
    I(f"s_add_u32 {sT[0]}, {sT[0]}, {sWv}")
    I(f"s_lshl_b32 {sT[0]}, {sT[0]}, 3")
    I(f"v_and_b32 {t0}, 7, {vL}")
    I(f"v_add_lshl_u32 {G['vFp']}, {t0}, {sT[0]}, 7")
def C_kv():
    kf = V.alloc(22); wp = V.alloc(8); acc = V.alloc(16)
    P.wait(tsh)
    for j in range(4):
        for c in range(2): unpack(wp[2*j+c], SHr[2*c + (j>>1)], j & 1)
    stamp('pre-k'); P.wait(tk[:opt('kw', 3)]); G['afterk'](); P.wait(tk); stamp('k in')
    for e in range(11):
        unpack(kf[2*e], Kr[e], 0); unpack(kf[2*e+1], Kr[e], 1)
    for e in range(8): I(f"v_pk_mul_f32 {acc[2*e:2*e+2]}, {kf[2*e:2*e+2]}, {wp[6:8]}")
    for j in (2, 1, 0):
        for e in range(8):
            q = e + 3 - j
            I(f"v_pk_fma_f32 {acc[2*e:2*e+2]}, {kf[2*q:2*q+2]}, {wp[2*j:2*j+2]}, {acc[2*e:2*e+2]}")
    P.wait(tv)
    for e in range(8):
        unpack(kf[2*e], Vr[e], 0); unpack(kf[2*e+1], Vr[e], 1)
    for e in range(8): I(f"v_pk_mul_f32 {acc[2*e:2*e+2]}, {acc[2*e:2*e+2]}, {kf[2*e:2*e+2]}")
    for c in range(2):
        for n in range(4):
            I(f"v_cvt_pk_bf16_f32 {wp[4*c+n]}, {acc[2*(7-2*n)+c]}, {acc[2*(6-2*n)+c]}")
    G['KVt'], tl = lane_tr(wp)
    G['tks'] = []
    for c in range(2):
        P.wait(tl[4*c:4*c+4])
        G['tks'].append(I(f"buffer_store_dwordx4 {G['KVt'][4*c:4*c+4]}, {vGS}, {rWS}, {sC4096 if c else 0} offen {LST}"))
    for r in (kf, wp, acc, Kr, Vr, SHr): r.free()
def C_mod():
    Cr, WMr = G['Cr'], G['WMr']
    P.wait(G['tc'])
    sl = V.alloc(4, 1); sp = V.alloc(2, 1)
    for i in range(4): I(f"v_lshlrev_b32 {Cr[i]}, 16, {Cr[i]}")
    for i in range(4): I(f"v_mul_f32 {sl[i]}, 0xbfb8aa3b, {Cr[i]}")
    for i in range(4): I(f"v_exp_f32 {sl[i]}, {sl[i]}")
    for i in range(4): I(f"v_add_f32 {sl[i]}, 1.0, {sl[i]}")
    for i in range(4): I(f"v_rcp_f32 {sl[i]}, {sl[i]}")
    for i in range(4): I(f"v_mul_f32 {sl[i]}, {sl[i]}, {Cr[i]}")
    I(f"v_cvt_pk_bf16_f32 {sp[0]}, {sl[0]}, {sl[1]}")
    I(f"v_cvt_pk_bf16_f32 {sp[1]}, {sl[2]}, {sl[3]}")
    I(f"v_and_b32 {t0}, 7, {vL}")
    I(f"v_lshlrev_b32 {t0}, 7, {t0}")
    I(f"v_lshrrev_b32 {t1}, 4, {vL}")
    I(f"v_lshl_add_u32 {t0}, {t1}, 5, {t0}")
    I(f"s_lshl_b32 {sT[0]}, {sWv}, 2")
    I(f"v_add_u32 {t0}, {sT[0]}, {t0}")
    ma = V.alloc(8, 1); mp = V.alloc(8, 1)
    for half in range(2):
        P.wait(G['twm'][2*half:2*half+2])
        for j in range(4):
            I(f"v_perm_b32 {mp[2*j]}, {WMr[8*half+4+j]}, {WMr[8*half+j]}, {sPL}")
            I(f"v_perm_b32 {mp[2*j+1]}, {WMr[8*half+4+j]}, {WMr[8*half+j]}, {sPH}")
        for j in range(8):
            I(f"v_dot2_f32_bf16 {ma[j]}, {mp[j]}, {sp[half]}, {0 if half==0 else ma[j]}")
    for i in range(4): I(f"v_permlane32_swap_b32 {ma[i]}, {ma[i+4]}")
    for i in range(4): I(f"v_add_f32 {ma[i]}, {ma[i]}, {ma[i+4]}")
    for i in range(2): I(f"v_permlane16_swap_b32 {ma[i]}, {ma[i+2]}")
    for i in range(2): I(f"v_add_f32 {ma[i]}, {ma[i]}, {ma[i+2]}")
    for i in range(2): I(f"v_add_f32_dpp {ma[i]}, {ma[i]}, {ma[i]} row_ror:8 row_mask:0xf bank_mask:0xf")
    I(f"ds_write_b32 {t0}, {ma[0]} offset:{MODL}")
    I(f"ds_write_b32 {t0}, {ma[1]} offset:{MODL+16}")
    for r in (sl, sp, ma, mp, Cr, WMr): r.free()
def A_mod2():
    I(f"s_lshl_b32 {sT[0]}, {sGI}, 12")
    I(f"s_lshl_b32 {sT[1]}, {sXJ}, 9")
    I(f"s_add_u32 {sT[0]}, {sT[0]}, {sT[1]}")
    I(f"s_add_u32 {sT[0]}, {sT[0]}, {MODG}")
    I(f"s_cmp_lt_u32 {sGI}, 24")
    I(f"s_cselect_b32 {sT[0]}, {sT[0]}, {OOB}")
    I(f"s_cmp_eq_u32 {sWv}, 1")
    I(f"s_cselect_b32 {sT[0]}, {sT[0]}, {OOB}")
    G['vMs'] = V.alloc()
    I(f"v_lshlrev_b32 {t0}, 3, {vL}")
    I(f"v_add_u32 {G['vMs']}, {sT[0]}, {t0}")
def C_mod2():
    vMs = G['vMs']
    I("s_waitcnt lgkmcnt(0)"); P.lg_done = P.lg
    I("s_barrier")
    m4 = V.alloc(4)
    tl = I(f"ds_read_b128 {m4}, {vL16} offset:{MODL}")
    P.wait(tl)
    I(f"v_add_f32 {m4[0]}, {m4[0]}, {m4[1]}")
    I(f"v_add_f32 {m4[2]}, {m4[2]}, {m4[3]}")
    I(f"v_mov_b32 {m4[1]}, {vTag}")
    I(f"v_add_f32 {m4[0]}, {m4[0]}, {m4[2]}")
    if LOC:
        I(f"s_mov_b32 {sT[1]}, {MODL2-MODG}")
        I(f"buffer_store_dwordx2 {m4[0:2]}, {vMs}, {rWS}, {sT[1]} offen")
    G['midmod']()
    I(f"buffer_store_dwordx2 {m4[0:2]}, {vMs}, {rWS}, 0 offen sc1")
    m4.free(); vMs.free()
def C_taps(hk=lambda: None):
    TP = G['TP']
    E1 = V.alloc(6); O0 = V.alloc(6); O1 = V.alloc(6)
    I(f"v_add_u32 {t2}, {TCH}, {vT16}")
    for c in range(2):
        d = TP[c]; ad = vT16 if c == 0 else t2
        P.wait(G['ttp'][c])
        def wr(o, regs):
            I(f"ds_write_b128 {ad}, {regs} offset:{TAPS + 16 + (o-1)*TCOPY}")
            if o > 4: hk()
        wr(4, d[2:6]); wr(8, d[4:8])
        for j in range(6): I(f"v_alignbit_b32 {O0[j]}, {d[j+1]}, {d[j]}, 16")
        wr(1, O0[0:4]); wr(5, O0[2:6])
        for j in range(6): I(f"v_alignbit_b32 {O1[j]}, {d[j+2]}, {d[j+1]}, 16")
        wr(3, O1[0:4]); wr(7, O1[2:6])
        for j in range(6): I(f"v_mov_b32 {E1[j]}, {d[j+1]}")
        wr(2, E1[0:4]); wr(6, E1[2:6])
    for r in TP + [E1, O0, O1]: r.free()
sUY = S.alloc(2)
def L_u():
    G['UR'] = UR = Frags(2)
    I(f"s_lshl_b32 {sUY[0]}, {sD0}, 12")
    I(f"s_add_u32 {sUY[0]}, {sUY[0]}, {KVG}")
    I(f"s_add_u32 {sUY[1]}, {sUY[0]}, 4096")
    G['tu'] = [I(f"buffer_load_dwordx4 {UR[4*c:4*c+4]}, {vT16}, {rWS}, {sUY[c]} offen sc1") for c in range(2)]
def C_u():
    UR = G['UR']
    I(f"v_sub_u32 {t2}, 4080, {vT16}")
    for c in range(2):
        P.wait(G['tu'][c])
        I(f"ds_write_b128 {t2}, {UR[4*c:4*c+4]} offset:{UB+c*UCH}")
    UR.free()
def L_d():
    G['Dr'] = V.alloc(2)
    I(f"s_lshl_b32 {sT[0]}, {sKS}, 5")
    I(f"v_lshrrev_b32 {t0}, 3, {vL}")
    I(f"v_lshlrev_b32 {t0}, 2, {t0}")
    G['td'] = I(f"buffer_load_dword {G['Dr'][0]}, {t0}, {rD}, {sT[0]} offen")
def x_ops():
    ops = []
    def a0(): G['xp'] = V.alloc(8, 1); G['Xt'] = Frags(2); G['txt'] = []; P.wait(G['tx'])
    ops.append(a0)
    for c in range(2):
        for n in range(4):
            ops.append(lambda c=c, n=n: I(f"v_perm_b32 {G['xp'][4*c+n]}, {G['Xr'][2*n+1]}, {G['Xr'][2*n]}, {sPH if c else sPL}"))
    for i in range(8): ops.append(lambda i=i: G['txt'].append(I(f"ds_bpermute_b32 {G['Xt'][i]}, {vBP}, {G['xp'][i]}")))
    ops.append(lambda: (G['Xr'].free(), vBP.free(), G['xp'].free()))
    return ops
def C_st():
    XR = G['XR']
    P.wait(G['txr'])
    q4 = V.alloc(4)
    for n in range(4):
        for r in range(2):
            I(f"v_dot2_f32_bf16 {q4[2*r]}, {XR[4*r+n]}, {sONE}, {0 if n==0 else q4[2*r]}")
            I(f"v_dot2_f32_bf16 {q4[2*r+1]}, {XR[4*r+n]}, {XR[4*r+n]}, {0 if n==0 else q4[2*r+1]}")
    I(f"v_permlane32_swap_b32 {q4[0]}, {q4[2]}")
    I(f"v_permlane32_swap_b32 {q4[1]}, {q4[3]}")
    I(f"v_add_f32 {q4[0]}, {q4[0]}, {q4[2]}")
    I(f"v_add_f32 {q4[1]}, {q4[1]}, {q4[3]}")
    I(f"v_permlane16_swap_b32 {q4[0]}, {q4[1]}")
    I(f"v_add_f32 {q4[0]}, {q4[0]}, {q4[1]}")
    for sh in (8, 4, 2, 1):
        I(f"v_add_f32_dpp {q4[0]}, {q4[0]}, {q4[0]} row_ror:{sh} row_mask:0xf bank_mask:0xf")
    I(f"v_mov_b32 {q4[1]}, {q4[0]}")
    I(f"v_permlane16_swap_b32 {q4[0]}, {q4[1]}")
    finish_stats(q4[0], q4[1], q4[3], t0)
    I(f"v_rsq_f32 {q4[2]}, {t0}")
    I(f"s_lshl_b32 {sT[0]}, s2, 4")
    I(f"s_lshl_b32 {sT[1]}, {sWv}, 12")
    I(f"s_add_u32 {sT[0]}, {sT[0]}, {sT[1]}")
    I(f"s_add_u32 {sT[0]}, {sT[0]}, {STG}")
    I(f"v_cvt_pk_bf16_f32 {q4[0]}, {q4[3]}, {q4[2]}")
    I(f"v_mov_b32 {q4[1]}, {vTag}")
    I(f"v_mov_b32 {q4[2]}, {q4[0]}")
    I(f"v_mov_b32 {q4[3]}, {vTag}")
    I(f"v_permlane32_swap_b32 {q4[0]}, {q4[2]}")
    lane0(t0, sT[0], t1)
    I(f"buffer_store_dwordx4 {q4}, {t0}, {rWS}, 0 offen sc1")
    XR.free(); q4.free()
def finish_stats(vsum, vsq, vnm, vve):
    I(f"v_mul_f32 {vnm}, 0xbb000000, {vsum}")
    I(f"v_mul_f32 {vsq}, 0x3b000000, {vsq}")
    I(f"v_fma_f32 {vve}, -{vnm}, {vnm}, {vsq}")
    I(f"v_max_f32 {vve}, 0, {vve}")
    I(f"v_add_f32 {vve}, 0x3727c5ac, {vve}")
def m_addr():
    G['MA'] = Frags(3); G['vMa'] = vMa = V.alloc()
    I(f"v_and_b32 {t0}, 7, {vL}")
    I(f"v_lshrrev_b32 {t1}, 3, {vL}")
    I(f"v_lshlrev_b32 {vMa}, 4, {t0}")
    I(f"v_lshl_add_u32 {vMa}, {t1}, 12, {vMa}")
    I(f"s_lshl_b32 {sT[0]}, {sKS}, 7")
    I(f"s_add_u32 {sT[0]}, {sT[0]}, {MODG}")
    I(f"v_add_u32 {vMa}, {sT[0]}, {vMa}")
def m_loads(retry=False):
    MA = G['MA']
    if LOC and retry:
        I(f"s_and_b32 {sZ[0]}, {sSpin}, 7")
        I(f"s_cmp_eq_u32 {sZ[0]}, 0")
        I(f"s_cselect_b32 {sZ[0]}, 0, {MODL2-MODG}")
    else: I(f"s_mov_b32 {sZ[0]}, {MODL2-MODG if LOC else 0}")
    out = []
    for j in range(3):
        if j: I(f"s_add_u32 {sZ[0]}, {sZ[0]}, 32768")
        out.append(I(f"buffer_load_dwordx4 {MA.g[j]}, {G['vMa']}, {rWS}, {sZ[0]} offen sc1"))
    return out
def C_wunpack():
    WR = G['WR']
    G['wf'] = wf = Frags(8)
    P.wait(G['twr'])
    for e in range(8):
        for h in range(2):
            unpack(wf[4*e+2*h], WR[2*e+h], 0); unpack(wf[4*e+2*h+1], WR[2*e+h], 1)
def C_m():
    MA = G['MA']
    check_tags([MA[4*j+i] for j in range(3) for i in (1, 3)], lambda: m_loads(True), G['tm'])
    G['vMa'].free()
def m_ops():
    MA = G['MA']; ad = MA[1]; one = MA[3]; on2 = MA[5]
    seq = [f"v_permlane16_swap_b32 {MA[4*j]}, {MA[4*j+2]}" for j in (2, 1, 0)]
    seq += [f"v_add_f32 {MA[4*j]}, {MA[4*j]}, {MA[4*j+2]}" for j in (2, 1, 0)]
    seq += [f"v_add_f32_dpp {MA[4*j]}, {MA[4*j]}, {MA[4*j]} row_ror:8 row_mask:0xf bank_mask:0xf" for j in (2, 1, 0)]
    seq += [f"v_and_b32 {ad}, 7, {vL}", f"v_lshlrev_b32 {ad}, 3, {ad}", f"v_bfe_u32 {one}, {vL}, 4, 1",
            f"v_lshl_add_u32 {ad}, {one}, 2, {ad}", f"v_lshl_add_u32 {ad}, {vHH}, 6, {ad}", f"v_add_u32 {ad}, {sWDs}, {ad}",
            f"v_cvt_f32_u32 {one}, {vHH}"]
    seq += [f"v_cvt_pk_bf16_f32 {MA[4*j]}, {MA[4*j]}, {MA[4*j]}" for j in (2, 1, 0)]
    seq += [f"v_sub_f32 {on2}, 1.0, {one}"]
    seq += [f"v_and_b32 {MA[4*j]}, {sHI}, {MA[4*j]}" for j in (2, 1, 0)]
    seq += [f"v_add_f32 {MA[8]}, {MA[8]}, {on2}", f"v_add_f32 {MA[0]}, {MA[0]}, {one}",
            f"v_cvt_pk_bf16_f32 {MA[8]}, {MA[8]}, {MA[8]}", f"v_cvt_pk_bf16_f32 {MA[0]}, {MA[0]}, {MA[0]}",
            f"v_and_b32 {MA[8]}, {sHI}, {MA[8]}", f"v_and_b32 {MA[0]}, {sHI}, {MA[0]}"]
    seq += [f"ds_write_b32 {ad}, {MA[4*j]} offset:{CBO+128*j}" for j in (2, 1, 0)]
    return [(lambda x=x: I(x)) for x in seq] + [lambda: MA.free()]
sWst = S.alloc()
def w_addr():
    G['vWs'] = vWs = V.alloc(); G['vCw'] = vCw = V.alloc()
    I(f"s_mul_i32 {sWst}, {sCB}, 229376")
    I(f"s_lshl_b32 {sT[1]}, {sM}, 9")
    I(f"s_add_u32 {sWst}, {sWst}, {sT[1]}")
    I(f"s_add_u32 {sWst}, {sWst}, {WP}")
    I(f"s_mul_i32 {sT[1]}, {sKS}, {NA*1024}")
    I(f"s_lshl_b32 {sT[2]}, {sKS}, 10")
    I(f"v_lshrrev_b32 {t0}, 2, {vQ}")
    I(f"v_lshlrev_b32 {vWs}, 10, {t0}")
    I(f"v_add_u32 {vWs}, {sT[1]}, {vWs}")
    I(f"v_lshlrev_b32 {t2}, 15, {t0}")
    I(f"v_add_u32 {t2}, {sT[2]}, {t2}")
    I(f"v_cmp_gt_u32 vcc, {NA}, {t0}")
    I(f"v_mov_b32 {t1}, {OOB}")
    I(f"v_cndmask_b32 {vWs}, {t2}, {vWs}, vcc")
    I(f"v_cmp_gt_u32 vcc, 7, {t0}")
    I(f"v_xor_b32 {t2}, {sM}, {vHH}")
    I(f"v_cndmask_b32 {vWs}, {t1}, {vWs}, vcc")
    I(f"v_lshl_add_u32 {vWs}, {t2}, 6, {vWs}")
    I(f"v_and_b32 {t2}, 3, {vQ}")
    I(f"v_lshl_add_u32 {vWs}, {t2}, 4, {vWs}")
    I(f"v_lshlrev_b32 {vCw}, 6, {t0}")
    I(f"v_lshl_add_u32 {vCw}, {t2}, 2, {vCw}")
    I(f"v_lshl_add_u32 {vCw}, {vHH}, 9, {vCw}")
    I(f"v_add_u32 {vCw}, {sWDs}, {vCw}")
def C_w_reads():
    I(f"v_lshlrev_b32 {t0}, 5, {vHH}")
    I(f"v_add_u32 {t0}, {sWDs}, {t0}")
    G['SBv'] = SBv = Frags(2); G['CBv'] = CBv = Frags(2)
    G['tcb'] = [I(f"ds_read_b128 {CBv[0:4]}, {t0} offset:{CBO+256}"), I(f"ds_read_b128 {CBv[4:8]}, {t0} offset:{CBO+272}"),
                I(f"ds_read_b128 {SBv[0:4]}, {t0} offset:{CBO+192}"), I(f"ds_read_b128 {SBv[4:8]}, {t0} offset:{CBO+208}")]
def wu_ops():
    WR = G['WR']; ops = []
    def st0(): G['wf'] = Frags(8); P.wait(G['twr'])
    ops.append(st0)
    for e in range(8):
        for j in range(4): ops.append(lambda e=e, j=j: unpack(G['wf'][4*e+j], WR[2*e+(j>>1)], j & 1))
    return ops
def w_ops():
    WR = G['WR']; ops = []
    def st0(): G['pr'] = V.alloc(4, 1); G['c1'] = V.alloc(4, 1); G['c2'] = V.alloc(4, 1); P.wait(G['tcb'])
    ops.append(st0)
    G['tws'] = []
    for j in range(4):
        for n in range(4):
            o = 2*(n & 1)
            for ee in range(2):
                ops.append(lambda n=n, j=j, ee=ee, o=o: I(f"v_mul_f32 {G['pr'][o+ee]}, {G['wf'][4*(2*n+ee)+j]}, {G['CBv'][2*n+ee]}"))
            ops.append(lambda n=n, j=j, o=o: I(f"v_cvt_pk_bf16_f32 {WR[4*j+n]}, {G['pr'][o]}, {G['pr'][o+1]}"))
        ops.append(lambda j=j: G['tws'].append(I(f"buffer_store_dwordx4 {WR[4*j:4*j+4]}, {G['vWs']}, {rWS}, {sWst} offen offset:{128*j} sc1")))
    return ops
def c_ops():
    ops = []
    for e in range(8):
        op = "v_mul_f32" if e == 0 else "v_fmac_f32"
        for j in range(4): ops.append(lambda e=e, j=j, op=op: I(f"{op} {G['c1'][j]}, {G['wf'][4*e+j]}, {G['CBv'][e]}"))
        for j in range(4): ops.append(lambda e=e, j=j, op=op: I(f"{op} {G['c2'][j]}, {G['wf'][4*e+j]}, {G['SBv'][e]}"))
    ops.append(None)
    for j in range(4): ops.append(lambda j=j: I(f"v_permlane32_swap_b32 {G['c1'][j]}, {G['c2'][j]}"))
    for j in range(4): ops.append(lambda j=j: I(f"v_add_f32 {G['c1'][j]}, {G['c1'][j]}, {G['c2'][j]}"))
    for j in range(4): ops.append(lambda j=j: I(f"ds_write_b32 {G['vCw']}, {G['c1'][j]} offset:{C12O+16*j}"))
    def fin():
        for k in ('pr', 'CBv', 'SBv', 'vWs', 'wf', 'c1', 'c2', 'vCw', 'WR'): G[k].free()
    ops.append(fin)
    return ops
def C_c12b():
    c8 = V.alloc(8)
    I(f"v_and_b32 {t0}, 127, v0")
    I(f"v_lshlrev_b32 {t0}, 2, {t0}")
    I(f"v_add_u32 {t0}, {WDS0+C12O}, {t0}")
    I(f"v_add_u32 {t1}, {2*WDW0}, {t0}")
    tc = []
    for w in range(4):
        for sel in range(2):
            tc.append(I(f"ds_read_b32 {c8[2*w+sel]}, {t1 if w >= 2 else t0} offset:{WDW0*(w&1) + 512*sel}"))
    I(f"s_lshl_b32 {sT[0]}, {sCB}, 3")
    I(f"s_add_u32 {sT[0]}, {sT[0]}, {sXJ}")
    I(f"s_lshl_b32 {sT[0]}, {sT[0]}, 1")
    I(f"s_add_u32 {sT[0]}, {sT[0]}, {sM}")
    I(f"s_mul_i32 {sT[0]}, {sT[0]}, 896")
    I(f"s_add_u32 {sT[0]}, {sT[0]}, {C12}")
    I(f"v_lshlrev_b32 {t0}, 3, v0")
    I(f"v_mov_b32 {t2}, {OOB}")
    I(f"v_cmp_gt_u32 vcc, 112, v0")
    I(f"v_cndmask_b32 {t0}, {t2}, {t0}, vcc")
    P.wait(tc)
    I(f"v_pk_add_f32 {c8[0:2]}, {c8[0:2]}, {c8[2:4]}")
    I(f"v_pk_add_f32 {c8[4:6]}, {c8[4:6]}, {c8[6:8]}")
    I(f"v_pk_add_f32 {c8[0:2]}, {c8[0:2]}, {c8[4:6]}")
    G['tc12'] = I(f"buffer_store_dwordx2 {c8[0:2]}, {t0}, {rWS}, {sT[0]} offen sc1")
    c8.free()
def A_f3():
    G['vF3'] = V.alloc()
    I(f"s_lshl_b32 {sT[0]}, {sGI}, 5")
    I(f"s_add_u32 {sT[0]}, {sT[0]}, {sKS}")
    I(f"s_lshl_b32 {sT[0]}, {sT[0]}, {FSH}")
    lane0(G['vF3'], sT[0], t1)
def st_addr():
    G['vSt'] = V.alloc()
    I(f"s_lshl_b32 {sT[0]}, {sGI}, 7")
    I(f"s_add_u32 {sT[0]}, {sT[0]}, {STG}")
    I(f"v_and_b32 {t0}, 7, {vL}")
    I(f"v_lshl_add_u32 {G['vSt']}, {t0}, 4, {sT[0]}")
def st_loads():
    SL = G['SL']; out = []
    for w in range(4):
        if w >= 2: I(f"s_movk_i32 {sZ[0]}, {4096*w}")
        out.append(I(f"buffer_load_dwordx4 {SL.g[w]}, {G['vSt']}, {rWS}, {[0, sC4096, sZ[0], sZ[0]][w]} offen sc1"))
    return out
def L_st():
    G['SL'] = Frags(4); G['tsl'] = st_loads()
def C_pre0():
    G['PQ'] = PQ = V.alloc(6)
    I(f"v_lshrrev_b32 {t0}, 3, {vL}")
    I(f"v_lshl_add_u32 {t0}, {t0}, 3, {sWDs}")
    G['tpq'] = [I(f"ds_read_b64 {PQ[2*v:2*v+2]}, {t0} offset:{CBO+64*v}") for v in range(3)]
def C_pre1():
    SL, PQ, Dr = G['SL'], G['PQ'], G['Dr']
    check_tags([SL[2*i+1] for i in range(8)], st_loads, [G['tsl'], G['td']])
    G['vSt'].free()
    for w in range(4):
        g = SL.g[w]
        unpack(g[1], g[2], 1); unpack(g[3], g[2], 0); unpack(g[2], g[0], 0); unpack(g[0], g[0], 1)
    for w in range(4): I(f"v_pk_mul_f32 {SL.g[w][2:4]}, {SL.g[w][2:4]}, {SL.g[w][0:2]}")
    unpack(Dr[1], Dr[0], 1); unpack(Dr[0], Dr[0], 0)
    P.wait(G['tpq'], G['txt'])
    I(f"v_pk_mul_f32 {PQ[0:2]}, {PQ[0:2]}, {PQ[4:6]}")
    I(f"v_pk_mul_f32 {PQ[2:4]}, {PQ[2:4]}, {PQ[4:6]}")
    G['HG'] = Frags(4); G['BS'] = Frags(4)
def C_pre2(c):
    SL, PQ, Dr, HG, BS, Xt, KVt = G['SL'], G['PQ'], G['Dr'], G['HG'], G['BS'], G['Xt'], G['KVt']
    kd = V.alloc(8)
    pr = lambda R, p: R[8*c+2*p:8*c+2*p+2]
    for p in range(4):
        unpack(BS[8*c+2*p], Xt[4*c+p], 0); unpack(BS[8*c+2*p+1], Xt[4*c+p], 1)
        unpack(kd[2*p], KVt[4*c+3-p], 1); unpack(kd[2*p+1], KVt[4*c+3-p], 0)
    for p in range(4): I(f"v_pk_fma_f32 {pr(HG,p)}, {pr(BS,p)}, {SL.g[p][0:2]}, {SL.g[p][2:4]}")
    for p in range(4): I(f"v_pk_mul_f32 {kd[2*p:2*p+2]}, {kd[2*p:2*p+2]}, {Dr} op_sel:[0,{c}] op_sel_hi:[1,{c}]")
    for p in range(4): I(f"v_pk_fma_f32 {pr(HG,p)}, {pr(HG,p)}, {PQ[2:4]}, {PQ[0:2]} op_sel:[0,{c},{c}] op_sel_hi:[1,{c},{c}]")
    for p in range(4): I(f"v_pk_fma_f32 {pr(BS,p)}, {pr(HG,p)}, {kd[2*p:2*p+2]}, {pr(BS,p)}")
    kd.free()
    if c == 1:
        for r in (SL, PQ, Dr, Xt, KVt): r.free()

AWD = A.reserve(0, 224)
order = [(c, it) for c in range(4) for it in range(3)] + [(c, it) for c in range(4) for it in (3, 4)] + [(c, it) for it in (5, 6) for c in range(4)]
FL = 0x8000
sWo = S.alloc()
def wd_src(i): c, it = order[i]; I(f"s_add_u32 {sWo}, {sWD}, {16384*(c*7+it)}")
sR64 = S.alloc(); sDB = S.alloc(); sWD = S.alloc()
sWDs = S.alloc()
def wd_setup():
    G['vWa'] = vWa = V.alloc(); G['vWb'] = vWb = V.alloc(); G['vWr'] = [V.alloc(), V.alloc()]
    if opt('map2', 1):
        I(f"s_lshr_b32 {sR64}, {sGI}, 2")
        I(f"s_lshr_b32 {sT[0]}, {sXJ}, 1")
        I(f"s_lshl_b32 {sT[0]}, {sT[0]}, 3")
        I(f"s_add_u32 {sR64}, {sR64}, {sT[0]}")
        I(f"s_and_b32 {sDB}, {sGI}, 3")
        I(f"s_and_b32 {sT[0]}, {sXJ}, 1")
        I(f"s_lshl_b32 {sT[0]}, {sT[0]}, 2")
        I(f"s_add_u32 {sDB}, {sDB}, {sT[0]}")
    else:
        I(f"s_lshr_b32 {sR64}, {sGI}, 3")
        I(f"s_lshl_b32 {sT[0]}, {sXJ}, 2")
        I(f"s_add_u32 {sR64}, {sR64}, {sT[0]}")
        I(f"s_and_b32 {sDB}, {sGI}, 7")
    I(f"s_mul_i32 {sWD}, {sWv}, {448*1024}")
    I(f"s_lshl_b32 {sT[0]}, {sDB}, 7")
    I(f"s_add_u32 {sWD}, {sWD}, {sT[0]}")
    I(f"v_bfe_u32 {t0}, {vL}, 3, 2")
    I(f"v_lshlrev_b32 {vWa}, 12, {t0}")
    I(f"v_lshl_add_u32 {vWa}, {vHH}, 10, {vWa}")
    I(f"v_bfe_u32 {t0}, {vL}, 4, 1")
    I(f"v_lshlrev_b32 {t0}, 2, {t0}")
    I(f"v_and_b32 {t1}, 7, {vL}")
    I(f"v_xor_b32 {t0}, {t0}, {t1}")
    I(f"v_lshl_add_u32 {vWa}, {t0}, 4, {vWa}")
    I(f"v_add_u32 {vWb}, 1024, {vWa}")
    r0 = G['vWr'][0]
    I(f"v_bfe_u32 {t0}, {vL}, 2, 2")
    I(f"v_lshlrev_b32 {r0}, 7, {t0}")
    I(f"v_lshl_add_u32 {r0}, {vHH}, 9, {r0}")
    I(f"v_bfe_u32 {t0}, {vL}, 3, 1")
    I(f"s_and_b32 {sT[0]}, {sWv}, 1")
    I(f"v_xor_b32 {t0}, {sT[0]}, {t0}")
    I(f"v_lshl_add_u32 {r0}, {t0}, 6, {r0}")
    I(f"v_and_b32 {t0}, 1, {vL}")
    I(f"v_lshl_add_u32 {r0}, {t0}, 5, {r0}")
    I(f"v_bfe_u32 {t0}, {vL}, 4, 1")
    I(f"v_lshl_add_u32 {r0}, {t0}, 4, {r0}")
    I(f"v_bfe_u32 {t0}, {vL}, 1, 1")
    I(f"v_lshl_add_u32 {r0}, {t0}, 3, {r0}")
    I(f"s_mul_i32 {sWDs}, {sWv}, {WDW0}")
    I(f"s_add_u32 {sWDs}, {sWDs}, {WDS0}")
    I(f"v_add_u32 {r0}, {sWDs}, {r0}")
    I(f"v_xor_b32 {G['vWr'][1]}, 64, {r0}")
    G['vWx'] = None
    G['wd'] = dict(nd=0, nr=0, free=[6, 7, 8, 9, 0, 1, 2, 3], ban=set(), slot={}, dt={}, rt={}, ti={}, rd={})
def wd_rebase(sbase, nslots):
    W = G['wd']; assert W['nd'] == W['nr']
    I(f"s_sub_u32 {sT[0]}, {sbase}, {sWDs}")
    I(f"s_mov_b32 {sWDs}, {sbase}")
    for r in G['vWr']: I(f"v_add_u32 {r}, {sT[0]}, {r}")
    W['free'] = list(range(nslots)); W['rt'] = {}; W['ban'] = set()
def wd_dma():
    W = G['wd']; n = W['nd']
    if n >= 28 or not W['free']: return False
    sl = W['free'].pop(0); W['slot'][n] = sl
    P.wait(W['rt'].get(sl))
    I(f"s_add_u32 m0, {sWDs}, {2048*sl}")
    wd_src(n)
    W['dt'][n] = [I(f"buffer_load_dwordx4 {G['vWa']}, {rWD}, {sWo} offen lds"),
                  I(f"buffer_load_dwordx4 {G['vWb']}, {rWD}, {sWo} offen offset:1024 lds")]
    W['nd'] = n+1
    return True
XB = 6*16384
def xoff(sl): k = sl - 100; return (k >> 1)*16384 + (k & 1)*2048
def wd_m0(sl):
    if sl < 100: I(f"s_add_u32 m0, {sWDs}, {2048*sl}")
    else: I(f"s_add_u32 m0, {sWdst}, {XB + xoff(sl)}")
def wd_dma1():
    W = G['wd']; n = W['nd']
    if not W.get('half'):
        if n >= 28 or not W['free']: return False
        sl = W['free'].pop(0); W['slot'][n] = sl
        P.wait(W['rt'].get(sl))
        wd_m0(sl)
        wd_src(n)
        W['dt'][n] = [I(f"buffer_load_dwordx4 {G['vWa']}, {rWD}, {sWo} offen lds")]
        W['half'] = True
    else:
        wd_m0(W['slot'][n])
        I("s_nop 0")
        W['dt'][n].append(I(f"buffer_load_dwordx4 {G['vWb']}, {rWD}, {sWo} offen offset:1024 lds"))
        W['half'] = False; W['nd'] = n+1; W['ti'][n] = max(G.get('now', 0), G.get('lastst', -99) + opt('sl', 44) - opt('wdl', 20))
    return True
def wd_read():
    W = G['wd']; n = W['nr']
    if n >= W['nd']: return False
    sl = W['slot'][n]
    P.wait(W['dt'][n])
    W['rt'][sl] = [I(f"ds_read_b64_tr_b16 {AWD[8*n+4*dt+2*g:8*n+4*dt+2*g+2]}, {G['vWr' if sl < 100 else 'vWx'][dt]} offset:{(2048*sl if sl < 100 else xoff(sl))+1024*g}") for dt in range(2) for g in range(2)]
    W['last'] = W['rt'][sl]; W['rd'][n] = W['rt'][sl]
    if sl not in W['ban']: W['free'].append(sl)
    W['nr'] = n+1
    return True

def conv(side_per=None):
    vAa = V.alloc(); vBa = V.alloc(); vRW = V.alloc()
    I(f"s_lshr_b32 {sT[0]}, {sWv}, 1")
    I(f"s_and_b32 {sT[1]}, {sWv}, 1")
    I(f"s_lshl_b32 {sT[1]}, {sT[1]}, 8")
    I(f"s_mul_i32 {sT[2]}, {sT[0]}, {TCH}")
    I(f"s_add_u32 {sT[2]}, {sT[2]}, {sT[1]}")
    I(f"s_mul_i32 {sT[3]}, {sT[0]}, {UCH}")
    I(f"s_add_u32 {sT[3]}, {sT[3]}, {sT[1]}")
    I(f"s_add_u32 {sT[3]}, {sT[3]}, {UB+480}")
    I(f"v_and_b32 {t0}, 7, {vL}")
    I(f"v_mul_u32_u24 {vAa}, {TCOPY}, {t0}")
    I(f"v_bfe_u32 {t0}, {vL}, 3, 1")
    I(f"v_lshrrev_b32 {t1}, 4, {vL}")
    I(f"v_add_u32 {t0}, {t0}, {t1}")
    I(f"v_lshl_add_u32 {vAa}, {t0}, 4, {vAa}")
    I(f"v_add_u32 {vAa}, {sT[2]}, {vAa}")
    I(f"v_and_b32 {t0}, 15, {vL}")
    I(f"v_lshlrev_b32 {t2}, 5, {t0}")
    I(f"v_lshlrev_b32 {vBa}, 4, {t1}")
    I(f"v_sub_u32 {vBa}, {vBa}, {t2}")
    I(f"v_add_u32 {vBa}, {sT[3]}, {vBa}")
    I(f"v_and_b32 {vRW}, 1, {t1}")
    I(f"v_lshlrev_b32 {vRW}, 12, {vRW}")
    I(f"v_add_u32 {vRW}, {vRW}, {t2}")
    I(f"v_lshrrev_b32 {t1}, 1, {t1}")
    I(f"v_lshl_add_u32 {vRW}, {t1}, 4, {vRW}")
    I(f"s_mul_i32 {sT[0]}, {sWv}, {WDW0}")
    I(f"s_add_u32 {sT[0]}, {sT[0]}, {WDS0+REDO}")
    I(f"v_add_u32 {vRW}, {sT[0]}, {vRW}")
    G['convaddr'] = (vAa, vBa, vRW)
def conv_run(hook=None):
    vAa, vBa, vRW = G['convaddr']
    D = Frags(8); FA = [Frags(8, A), AWD[192:224]]; FB = [AWD[160:192], Frags(8)]
    def reads(n):
        b = n & 1; out = []
        for t in range(8):
            out.append(lambda t=t: I(f"ds_read_b128 {FA[b][4*t:4*t+4]}, {vAa} offset:{TAPS + 64*n + 512*t}"))
            out.append(lambda t=t: I(f"ds_read_b128 {FB[b][4*t:4*t+4]}, {vBa} offset:{512*(7-t) + 64*n}"))
        return out
    ctok = {0: [f() for f in reads(0)]}
    cnt = 0
    for n in range(4):
        b = n & 1
        nxt = reads(n+1) if n < 3 else []
        ctok[n+1] = []
        if n < 3: pairs = sorted([(t, jj) for t in range(8) for jj in range(8-t)], key=lambda p: (max(p), p))
        else: pairs = sorted([(t, jj) for t in range(8) for jj in range(8-t)], key=lambda p: (p[0]+p[1], p))
        seen = set(); done = {}
        if n > 0: P.wait(ctok[n])
        for i, (t, jj) in enumerate(pairs):
            P.wait(ctok[n][2*t], ctok[n][2*jj+1])
            j = t + jj
            first = (n == 0 and j not in seen); seen.add(j)
            I(f"v_mfma_f32_16x16x32_bf16 {D[4*j:4*j+4]}, {FA[b][4*t:4*t+4]}, {FB[b][4*jj:4*jj+4]}, {0 if first else D[4*j:4*j+4]}")
            if nxt and i >= 1 and i % 2 == 1: ctok[n+1].append(nxt.pop(0)())
            if n == 3:
                if t == j: done[j] = i
                for jd, idn in list(done.items()):
                    if i >= idn + opt('rdel', 6):
                        I(f"ds_write_b128 {vRW}, {D[4*jd:4*jd+4]} offset:{512*jd}"); del done[jd]
            if hook: hook(cnt)
            cnt += 1
        while nxt: ctok[n+1].append(nxt.pop(0)())
    for jd in sorted(done): I(f"ds_write_b128 {vRW}, {D[4*jd:4*jd+4]} offset:{512*jd}")
    assert G['wd']['nr'] <= 20
    for r in [FA[0], FB[1], vAa, vBa, vRW, D]: r.free()

sX1 = S.alloc(2)
def x1_addr():
    G['vRr'] = V.alloc(); G['vRr2'] = V.alloc(); G['vXw'] = vXw = V.alloc(); G['vXr'] = vXr = V.alloc(); G['vS2'] = vS2 = V.alloc()
    I(f"v_add_u32 {G['vRr']}, {WDS0+REDO}, {vT16}")
    I(f"v_add_u32 {G['vRr2']}, {WDS0+REDO+2*WDW0}, {vT16}")
    I(f"v_bfe_u32 {t0}, {vL}, 2, 1")
    I(f"v_lshl_add_u32 {vXw}, {t0}, 10, {sWDs}")
    I(f"v_lshrrev_b32 {t0}, 3, {vL}")
    I(f"v_lshl_add_u32 {vXw}, {t0}, 7, {vXw}")
    I(f"v_and_b32 {t0}, 3, {vL}")
    I(f"v_lshl_add_u32 {vXw}, {t0}, 4, {vXw}")
    I(f"v_lshl_add_u32 {vXr}, {t0}, 3, {sWDs}")
    I(f"v_bfe_u32 {t0}, {vL}, 4, 1")
    I(f"v_lshl_add_u32 {vXr}, {t0}, 5, {vXr}")
    I(f"v_bfe_u32 {t0}, {vL}, 2, 2")
    I(f"v_lshl_add_u32 {vXr}, {t0}, 6, {vXr}")
    I(f"v_lshl_add_u32 {vXr}, {vHH}, 9, {vXr}")
    I(f"s_lshl_b32 {sX1[0]}, {sGI}, 6")
    I(f"s_add_u32 {sX1[0]}, {sX1[0]}, {sKS}")
    I(f"s_lshl_b32 {sX1[0]}, {sX1[0]}, 10")
    I(f"s_add_u32 {sX1[0]}, {sX1[0]}, {X1T}")
    I(f"s_add_u32 {sX1[1]}, {sX1[0]}, 32768")
    I(f"s_lshl_b32 {sT[0]}, {sGI}, 13")
    I(f"s_lshl_b32 {sT[1]}, {sXJ}, 9")
    I(f"s_add_u32 {sT[0]}, {sT[0]}, {sT[1]}")
    I(f"s_add_u32 {sT[0]}, {sT[0]}, {S2}")
    I(f"s_cmp_eq_u32 {sWv}, 0")
    I(f"s_cselect_b32 {sT[0]}, {sT[0]}, {OOB}")
    I(f"v_lshl_add_u32 {vS2}, {vQ}, 4, {sT[0]}")
    I(f"v_lshl_add_u32 {vS2}, {vHH}, 12, {vS2}")
def C_y():
    Y = Frags(8); yo = Frags(2)
    tl = []
    for c in range(2):
        for kh in range(2):
            for h in range(2):
                tl.append(I(f"ds_read_b128 {Y[16*c+8*kh+4*h:16*c+8*kh+4*h+4]}, {G['vRr2'] if c else G['vRr']} offset:{kh*WDW0 + 4096*h}"))
    C_pre0()
    G['tys'] = []
    for c in range(2):
        P.wait(tl[4*c:4*c+4])
        for e in range(0, 8, 2): I(f"v_pk_add_f32 {Y[16*c+e:16*c+e+2]}, {Y[16*c+e:16*c+e+2]}, {Y[16*c+8+e:16*c+8+e+2]}")
        for n in range(4): I(f"v_cvt_pk_bf16_f32 {yo[4*c+n]}, {Y[16*c+2*n]}, {Y[16*c+2*n+1]}")
        G['tys'].append(I(f"buffer_store_dwordx4 {yo[4*c:4*c+4]}, {vT16}, {rWS}, {sUY[c]} offen {LST}"))
    for r in [Y, yo, G['vRr'], G['vRr2']]: r.free()
def L_y():
    G['YL'] = YL = Frags(2)
    G['tyl'] = [I(f"buffer_load_dwordx4 {YL[4*c:4*c+4]}, {vGS}, {rWS}, {sC4096 if c else 0} offen sc1") for c in range(2)]
    vGS.free()
def C_x1():
    HG, BS, YL = G['HG'], G['BS'], G['YL']
    yf = V.alloc(8); F = Frags(2); q = V.alloc(4)
    for c in range(2):
        P.wait(G['tyl'][c])
        for p in range(4): unpack(yf[2*p], YL[4*c+p], 0); unpack(yf[2*p+1], YL[4*c+p], 1)
        for p in range(4): I(f"v_pk_fma_f32 {BS[8*c+2*p:8*c+2*p+2]}, {HG[8*c+2*p:8*c+2*p+2]}, {yf[2*p:2*p+2]}, {BS[8*c+2*p:8*c+2*p+2]}")
        for p in range(4): I(f"v_cvt_pk_bf16_f32 {YL[4*c+p]}, {BS[8*c+2*p]}, {BS[8*c+2*p+1]}")
        I(f"ds_write_b128 {G['vXw']}, {YL[4*c:4*c+4]} offset:{XTO+64*c}")
    tl = [I(f"ds_read_b64_tr_b16 {F[4*b+2*g:4*b+2*g+2]}, {G['vXr']} offset:{XTO+1024*b+256*g}") for b in range(2) for g in range(2)]
    I(f"v_lshl_add_u32 {t0}, {vL}, 3, {sWDs}")
    G['tx1'] = []
    for b in range(2):
        P.wait(tl[2*b:2*b+2])
        G['tx1'].append(I(f"buffer_store_dwordx4 {F.g[b]}, {vL16}, {rWS}, {sX1[b]} offen sc1"))
    for r in range(4):
        for b in range(2):
            I(f"v_dot2_f32_bf16 {q[2*b]}, {F[4*b+r]}, {sONE}, {0 if r==0 else q[2*b]}")
            I(f"v_dot2_f32_bf16 {q[2*b+1]}, {F[4*b+r]}, {F[4*b+r]}, {0 if r==0 else q[2*b+1]}")
    I(f"v_permlane32_swap_b32 {q[0]}, {q[2]}")
    I(f"v_permlane32_swap_b32 {q[1]}, {q[3]}")
    I(f"v_pk_add_f32 {q[0:2]}, {q[0:2]}, {q[2:4]}")
    I(f"ds_write_b64 {t0}, {q[0:2]} offset:{S2O}")
    for r in (HG, BS, YL, yf, F, q, G['vXw'], G['vXr']): r.free()
def C_s2():
    q = V.alloc(8)
    I(f"v_lshlrev_b32 {t0}, 3, {vL}")
    I(f"v_add_u32 {t0}, {WDS0+S2O}, {t0}")
    tl = [I(f"ds_read_b64 {q[2*w:2*w+2]}, {t0} offset:{WDW0*w}") for w in range(4)]
    P.wait(tl)
    I(f"v_pk_add_f32 {q[0:2]}, {q[0:2]}, {q[2:4]}")
    I(f"v_pk_add_f32 {q[4:6]}, {q[4:6]}, {q[6:8]}")
    I(f"v_add_f32 {q[2]}, {q[1]}, {q[5]}")
    I(f"v_add_f32 {q[0]}, {q[0]}, {q[4]}")
    I(f"v_mov_b32 {q[1]}, {vTag}")
    I(f"v_mov_b32 {q[3]}, {vTag}")
    I(f"buffer_store_dwordx4 {q[0:4]}, {G['vS2']}, {rWS}, 0 offen sc1")
    q.free(); G['vS2'].free()

sRB = S.alloc(); sC1 = S.alloc(); sWsrc = S.alloc(); sWdst = S.alloc()
def A_g1():
    G['vF8'] = vF8 = V.alloc(); G['vPA'] = vPA = V.alloc(); G['vP3'] = vP3 = V.alloc()
    I(f"s_and_b32 {sRB}, {sXJ}, 1")
    I(f"s_lshl_b32 {sRB}, {sRB}, 3")
    I(f"s_lshr_b32 {sT[0]}, {sGI}, 2")
    I(f"s_add_u32 {sRB}, {sRB}, {sT[0]}")
    I(f"s_lshr_b32 {sC1}, {sXJ}, 1")
    I(f"s_lshl_b32 {sC1}, {sC1}, 2")
    I(f"s_and_b32 {sT[0]}, {sGI}, 3")
    I(f"s_add_u32 {sC1}, {sC1}, {sT[0]}")
    I(f"s_lshl_b32 {sT[0]}, {sC1}, 6")
    I(f"v_add_lshl_u32 {vP3}, {vL}, {sT[0]}, {FSH}")
    I(f"s_lshl_b32 {sT[0]}, {sGI}, 5")
    I(f"s_add_u32 {sT[0]}, {sT[0]}, {sKS}")
    I(f"v_lshlrev_b32 {vF8}, 10, {vL}")
    I(f"v_add_lshl_u32 {vF8}, {vF8}, {sT[0]}, {FSH}")
    I(f"v_mov_b32 {t1}, {OOB}")
    I(f"v_cmp_gt_u32 vcc, 4, {vL}")
    I(f"s_lshr_b32 {sT[0]}, {sXJ}, 1")
    I(f"s_lshl_b32 {sT[0]}, {sT[0]}, 4")
    I(f"s_add_u32 {sT[0]}, {sT[0]}, {sRB}")
    I(f"s_lshl_b32 {sT[0]}, {sT[0]}, 1")
    I(f"s_lshr_b32 {sT[1]}, {sWv}, 1")
    I(f"s_add_u32 {sT[0]}, {sT[0]}, {sT[1]}")
    I(f"s_lshl_b32 {sT[0]}, {sT[0]}, 5")
    I(f"v_add_lshl_u32 {vPA}, {vQ}, {sT[0]}, {FSH}")
    I(f"v_cndmask_b32 {vF8}, {t1}, {vF8}, vcc")
    I(f"s_mul_i32 {sWsrc}, {sC1}, 229376")
    I(f"s_lshl_b32 {sWdst}, {sWv}, 12")
    I(f"s_add_u32 {sWsrc}, {sWsrc}, {sWdst}")
    I(f"s_add_u32 {sWsrc}, {sWsrc}, {WP}")
def w_dma(src_off, dst_off, n0=0, n1=4):
    I(f"s_add_u32 m0, {sWdst}, {WL + dst_off}")
    I(f"s_add_u32 {sT[0]}, {sWsrc}, {src_off}")
    return [I(f"buffer_load_dwordx4 {vL16}, {rWS}, {sT[0]} offen offset:{1024*n} sc1 lds") for n in range(n0, n1)]
def wd_burst(n):
    for _ in range(n):
        if not wd_dma():
            wd_read(); wd_dma()
flag_setup(); m_addr()
vpf = V.alloc()
if LOC:
    flag_load(vpf, G['vFp'], F1); flag_load(vpf, G['vFp'], FY); m_loads()
if opt('sfine'): stamp('touch')
A_mod()
LATE = opt('late', 0)
def ftouch():
    if opt('ftouch', 1):
        flag_load(vpf, G['vF3'], F3); flag_load(vpf, G['vF8'], F4)
        I(f"s_lshl_b32 {sT[0]}, {sRB}, 2")
        I(f"s_add_u32 {sT[0]}, {sT[0]}, {sWv}")
        I(f"s_lshl_b32 {sT[0]}, {sT[0]}, 4")
        I(f"s_add_u32 {sT[0]}, {sT[0]}, {sC1}")
        I(f"s_lshl_b32 {sT[0]}, {sT[0]}, {FSH}")
        I(f"v_min_u32 {t0}, 3, {vL}")
        I(f"v_lshl_add_u32 {t0}, {t0}, 15, {sT[0]}")
        flag_load(vpf, t0, F5)
def setup2():
    zero_pads(); A_mod2(); conv(); wd_setup()
def setup3():
    w_addr(); x1_addr(); st_addr(); A_f3(); A_g1(); ftouch()
if LATE < 2: setup2()
if opt('sfine'): stamp('su2')
if LATE < 1: setup3()
def wd_touch():
    I(f"s_mul_i32 {sT[0]}, s2, 7168")
    I(f"s_add_u32 {sT[1]}, {sT[0]}, 3072")
    for c in range(2): I(f"buffer_load_dwordx4 {PT}, {vT16}, {rWD}, {sT[c]} offen")
def afterk():
    L_xr(); L_mod()
    if opt('early', 1) >= 1: L_taps()
G['afterk'] = afterk
C_tag(); C_kv(); stamp("kv st")
if opt('cpf', 0): cpa.free(); cpd.free()
if opt('early', 1) < 1: L_taps()
if opt('early', 1) >= 2: L_w()
if opt('wdt', 1) == -1: wd_touch()
if LATE >= 2: setup2()
if LATE >= 1: setup3()
C_st(); stamp("st")
C_mod(); stamp("mod1")
P.wait(G['tks']); post_local(G['vFo'], F1)
def midmod():
    stamp("mod2")
    tc = [0]
    def thk():
        tc[0] += 1
        if tc[0] == opt('f1i', 1): G['tpf'] = flag_load(vpf, G['vFp'], F1)
        if tc[0] == opt('f1c', 5):
            check_local(vpf, G['vFp'], G['vFo'], F1, G['tpf']); L_u(); G['tm'] = m_loads()
    C_taps(thk); stamp("taps")
G['midmod'] = midmod
C_mod2()
if opt('early', 1) < 2: L_w()
if opt('wdt', 1) == 1: wd_touch()
C_u(); stamp("U ok")
P.wait_all(vm=False); I("s_barrier")
stamp("bar")
cside = []
H2, WDC = opt('h2', 4), opt('wdc', 8)
def hook(c):
    if c >= opt('hx', 40) and c < opt('hx', 40) + 16 and c % 2 == 0: L_x1((c - opt('hx', 40))//2)
    if c == opt('hx', 40) + 18: L_d()
    if c == H2: C_m(); cside.extend(m_ops() + [C_w_reads, None, None, None] + wu_ops() + w_ops() + c_ops() + x_ops())
    if c == opt('hst', 100): L_st()
    if opt('wdt', 1) > 1 and c == opt('wdt', 1): wd_touch()
    if c == opt('hf3', 130): assert len(G['tws']) == 4; P.wait(G['tws']); post_flag(G['vF3'], F3); G['vF3'].free()
    W = G['wd']
    if c == opt('wdban', 60): W['ban'] = {6, 7, 8, 9}; W['free'] = [x for x in W['free'] if x < 6]
    if c >= opt('wd0', 16) and c % (WDC//2) == 0 and W['nd'] < opt('wdmax', 8): wd_dma1()
    if c > opt('wdr0', 70) and c % WDC == 2 and W['nr'] < opt('wdrmax', 4): wd_read()
    if c == 107: assert all(W['slot'][n] < 6 for n in range(W['nr'], W['nd'])), "RED slots still in use"
    if opt('cfine') and c in (35, 71, 107): stamp(f'c{c}')
    k = 0
    while cside and k < (1 if (c < 108 and c % 2 == 1) else 2):
        f = cside.pop(0); k += 1
        if f: f()
conv_run(hook)
PT.free()
stamp("conv")
print('cside left', len(cside), file=sys.stderr)
for f in cside:
    if f: f()
P.wait_all(vm=False); I("s_barrier")
C_y(); stamp("y st")
print('wd after conv', G['wd']['nd'], G['wd']['nr'], file=sys.stderr)
vP3 = G['vP3']; vPA = G['vPA']; vp3 = V.alloc()
if opt('wda', 4):
    while wd_read(): pass
    for _ in range(opt('wda', 4)): wd_dma()
C_pre1()
P.wait(G['tys']); post_local(G['vFo'], FY); stamp("FY post")
C_pre2(0)
tpf = flag_load(vpf, G['vFp'], FY)
tp3 = flag_load(vp3, vP3, F3)
C_pre2(1)
check_local(vpf, G['vFp'], G['vFo'], FY, tpf); G['vFp'].free(); G['vFo'].free(); vTagL.free(); vpf.free()
L_y(); stamp("FY ok")
wch = {}
def w_group(): i = len(wch); wch[i] = w_dma(16384*i, 16384*i)
F3E = opt('f3e', 1)
def f3chk():
    check_tags([vp3], lambda: flag_load(vp3, vP3, F3), tp3)
if F3E:
    f3chk()
    for _ in range(opt('w1', 2)): w_group()
C_c12b()
C_x1(); stamp("x1 st")
if not F3E: f3chk()
for _ in range(opt('w15', 2)): w_group()
while wd_read(): pass
P.wait(G['tx1']); post_flag(G['vF8'], F4); G['vF8'].free()
stamp("F4 post")
sDQ = S.alloc(); gb2 = V.alloc(4); vGb = V.alloc(); vGB = V.alloc()
I(f"s_and_b32 {sT[3]}, {sWv}, 1")
I(f"s_lshl_b32 {sT[3]}, {sT[3]}, 5")
I(f"s_lshl_b32 {sDQ}, {sDB}, 6")
I(f"s_add_u32 {sDQ}, {sDQ}, {sT[3]}")
I(f"s_lshl_b32 {sT[0]}, {sDQ}, 3")
I(f"s_add_u32 {sT[0]}, {sT[0]}, {MODG + 5*16384}")
I(f"v_lshl_add_u32 {vGb}, {vQ}, 3, {sT[0]}")
I(f"v_lshl_add_u32 {vGb}, {vHH}, 13, {vGb}")
def gb_ld():
    return [I(f"buffer_load_dwordx2 {gb2[2*n:2*n+2]}, {vGb}, {rWS}, {sC4096 if n else 0} offen sc1") for n in range(2)]
tgb = gb_ld()
P.wait_all(vm=False); I("s_barrier")
C_s2()
while len(wch) < 5: w_group()
I("s_barrier")
NPRE = opt('npre', 8); NP4 = opt('np4', 7)
vp4 = V.alloc()
while len(wch) < NPRE:
    if len(wch) == NP4: tp4 = flag_load(vp4, vPA, F4)
    w_group()
if NP4 >= NPRE: tp4 = flag_load(vp4, vPA, F4)
stamp("W pre")
for r in (rK, rV, rSH): r.free()
sXsrc = S.alloc(); sXdst = S.alloc(); sSB = S.alloc(); sHS = S.alloc(); sSG = S.alloc()
I(f"s_lshl_b32 {sSB}, {sRB}, 2")
I(f"s_add_u32 {sSB}, {sSB}, {sWv}")
I(f"s_lshl_b32 {sXsrc}, {sSB}, 15")
I(f"s_add_u32 {sXsrc}, {sXsrc}, {X1T}")
I(f"s_mul_i32 {sXdst}, {sWv}, {XSW}")
I(f"s_add_u32 {sXdst}, {sXdst}, {XS}")
I(f"s_mul_i32 {sHS}, {sSB}, 112")
I(f"s_mul_i32 {sT[0]}, {sC1}, 7")
I(f"s_add_u32 {sHS}, {sHS}, {sT[0]}")
I(f"s_lshl_b32 {sHS}, {sHS}, 10")
I(f"s_add_u32 {sHS}, {sHS}, {HH}")
I(f"s_lshl_b32 {sSG}, {sSB}, 12")
I(f"s_add_u32 {sSG}, {sSG}, {S2}")
ACC = [V.alloc(16) for _ in range(NA+2)]
vAd = V.alloc(); vAd2 = V.alloc(); vEx = V.alloc(); vL16b = V.alloc(); vF5 = V.alloc()
I(f"v_bfe_u32 {t0}, {vL}, 2, 3")
I(f"v_lshlrev_b32 {vAd}, 7, {t0}")
I(f"v_bfe_u32 {t0}, {vL}, 4, 1")
I(f"v_xor_b32 {t0}, {t0}, {vHH}")
I(f"v_lshl_add_u32 {vAd}, {t0}, 6, {vAd}")
I(f"v_and_b32 {t0}, 3, {vL}")
I(f"v_lshl_add_u32 {vAd}, {t0}, 4, {vAd}")
I(f"v_add_u32 {vAd2}, 65536, {vAd}")
I(f"v_lshlrev_b32 {vEx}, 4, {vQ}")
I(f"v_add_u32 {vEx}, {EX}, {vEx}")
I(f"v_add_u32 {vL16b}, 4096, {vL16}")
vCl = V.alloc(); vCe = V.alloc(); sCL = S.alloc()
I(f"s_mul_i32 {sCL}, {sC1}, {8*1792}")
I(f"s_mul_i32 {sT[0]}, {sWv}, 448")
I(f"s_add_u32 {sCL}, {sCL}, {sT[0]}")
I(f"s_add_u32 {sCL}, {sCL}, {C12}")
I(f"v_min_u32 {t0}, 27, {vQ}")
I(f"v_mul_u32_u24 {vCl}, {4*1792}, {vHH}")
I(f"v_lshl_add_u32 {vCl}, {t0}, 4, {vCl}")
I(f"s_and_b32 {sT[0]}, {sWv}, 1")
I(f"s_mul_i32 {sT[0]}, {sT[0]}, 56")
I(f"v_lshl_add_u32 {t0}, {t0}, 1, {vHH}")
I(f"v_add_u32 {t0}, {sT[0]}, {t0}")
I(f"s_lshr_b32 {sT[0]}, {sWv}, 1")
I(f"s_lshl_b32 {sT[0]}, {sT[0]}, 8")
I(f"s_add_u32 {sT[0]}, {sT[0]}, {EX}")
I(f"v_and_b32 {t1}, 15, {t0}")
I(f"v_lshl_add_u32 {vCe}, {t1}, 4, {sT[0]}")
I(f"v_lshrrev_b32 {t0}, 4, {t0}")
I(f"v_lshl_add_u32 {vCe}, {t0}, 9, {vCe}")
I(f"s_lshl_b32 {sT[0]}, {sSB}, 4")
I(f"s_add_u32 {sT[0]}, {sT[0]}, {sC1}")
I(f"s_lshl_b32 {sT[0]}, {sT[0]}, {FSH}")
lane0(vF5, sT[0], t1)
if G['wd']['nr'] < 28: wd_rebase(sXdst, 3)
for _ in range(opt('wdb', 0)): wd_dma()
check_tags([gb2[1], gb2[3]], gb_ld, tgb)
I(f"v_add_f32 {gb2[0]}, {gb2[0]}, {gb2[2]}")
I(f"v_mov_b32 {gb2[1]}, {gb2[0]}")
I(f"v_permlane32_swap_b32 {gb2[0]}, {gb2[1]}")
I(f"v_add_f32 {gb2[0]}, {gb2[0]}, {gb2[1]}")
round_bf16(vGB, gb2[0])
gb2.free(); vGb.free()
check_tags([vp4], lambda: flag_load(vp4, vPA, F4), tp4)
vPA.free(); vp4.free()
published = set(g for g in wch if wch[g][-1][1] < P.vm_done)
stamp("F4 ok")

Bf = Frags(32)
btok = {}
def b_next():
    ks = len(btok)
    if ks >= 32: return False
    if ks and ks % 4 == 0: I(f"s_add_u32 {sXsrc}, {sXsrc}, 4096")
    btok[ks] = I(f"buffer_load_dwordx4 {Bf.g[ks]}, {vL16}, {rWS}, {sXsrc} offen offset:{1024*(ks&3)} sc1")
    return True
for _ in range(opt('b0', 12)): b_next()
I("s_barrier")
AR = A.reserve(224, 32)
SGX = Frags(4); BX = SGX.g[0]; hp = SGX.g[1]; vRS2 = V.alloc()
TMP = ACC[NA+1]
jobs = [(it, ks, ks*NA+it) for ks in range(32) for it in range(NA)]
XD = opt('xd', 10)
tl_ = [(NA, ks, NA*32 + ks) for ks in range(32)]
jobs += tl_[:XD] + [(it, 'x', None) for it in range(NA+1)] + tl_[XD:]
for it in range(NA+1, 7):
    jobs += [(it, 'x', None)] + [(it, ks, it*32 + ks) for ks in range(32)]
NJ = len(jobs); TT = {it: 33*it for it in range(NA, 8)}; T4, T5, T6 = 132, 165, 198; XA = 32*NA + XD
first_job = {}; last_job = {}
for n, (it, ks, fr) in enumerate(jobs):
    if fr is not None:
        first_job.setdefault(fr//16, n); last_job[fr//16] = n
accmap = {it: it % (NA+2) for it in range(7)}
def job_read(n):
    it, ks, fr = jobs[n]
    dst = AR[4*(n%8):4*(n%8)+4]
    if ks == 'x': return I(f"ds_read_b128 {dst}, {vEx} offset:{512*it}")
    assert fr//16 in published, (n, fr)
    off = ((fr//16) % NG)*16384 + (fr % 16)*1024
    if off < 65536: return I(f"ds_read_b128 {dst}, {vAd} offset:{off}")
    return I(f"ds_read_b128 {dst}, {vAd2} offset:{off-65536}")
LOOK = 6
atok = {}
for n in range(LOOK): atok[n] = job_read(n)
stamp("g1 start")

class VM:
    def __init__(self, f): self.f = f
    def __call__(self): return self.f()
side = []
def c12_ops():
    ops = []; tk = []
    CL = TMP
    def l(g):
        if g == 2: I(f"s_add_u32 {sCL}, {sCL}, 3584")
        tk.append(I(f"buffer_load_dwordx4 {CL[4*g:4*g+4]}, {vCl}, {rWS}, {sCL} offen offset:{(g&1)*1792} sc1"))
    for g in range(4): ops.append(lambda g=g: l(g))
    ops2 = [lambda: P.wait(tk)]
    for st in (2, 1):
        for g in range(st):
            for h in range(4):
                ops2.append(lambda g=g, st=st, h=h: I(f"v_add_f32 {CL[4*g+h]}, {CL[4*g+h]}, {CL[4*(g+st)+h]}"))
    ops2.append(None)
    for h in range(2): ops2.append(lambda h=h: I(f"v_permlane32_swap_b32 {CL[h]}, {CL[2+h]}"))
    for h in range(2): ops2.append(lambda h=h: I(f"v_add_f32 {CL[h]}, {CL[h]}, {CL[2+h]}"))
    seq = [f"v_cvt_pk_bf16_f32 {CL[5]}, {CL[0]}, {CL[1]}",
           f"v_lshlrev_b32 {CL[2]}, 16, {CL[5]}",
           f"v_and_b32 {CL[3]}, {sHI}, {CL[5]}",
           f"v_sub_f32 {CL[0]}, {CL[0]}, {CL[2]}",
           f"v_sub_f32 {CL[1]}, {CL[1]}, {CL[3]}",
           f"v_cvt_pk_bf16_f32 {CL[4]}, {CL[2]}, {CL[0]}",
           f"v_cvt_pk_bf16_f32 {CL[6]}, {CL[1]}, {CL[3]}",
           f"v_mov_b32 {CL[7]}, 0"]
    for s_ in seq: ops2.append(lambda s_=s_: I(s_))
    ops2.append(lambda: G.__setitem__('tex', I(f"ds_write_b128 {vCe}, {CL[4:8]}")))
    ops2.append(lambda: (vCl.free(), vCe.free()))
    return ops, ops2
def sg_loads(j0=0, j1=4):
    return [I(f"buffer_load_dwordx4 {SGX.g[j]}, {vL16}, {rWS}, {sSG} offen offset:{1024*j} sc1") for j in range(j0, j1)]
def stats2_ops(tk):
    ops = [lambda: check_tags([SGX[2*i+1] for i in range(8)], sg_loads, tk)] + [None]*6
    for j in range(2):
        for i in (0, 2): ops.append(lambda i=i, j=j: I(f"v_add_f32 {SGX[4*j+i]}, {SGX[4*j+i]}, {SGX[8+4*j+i]}"))
    Z = SGX.g[2]; a, b, c, d = Z[0], Z[1], Z[2], Z[3]; e = SGX.g[3][0]
    seq = [f"v_add_f32 {a}, {SGX[0]}, {SGX[4]}", f"v_add_f32 {c}, {SGX[2]}, {SGX[6]}",
           f"v_mov_b32 {b}, {a}", f"v_mov_b32 {d}, {c}", None,
           f"v_permlane32_swap_b32 {a}, {b}", f"v_permlane32_swap_b32 {c}, {d}",
           f"v_add_f32 {a}, {a}, {b}", f"v_add_f32 {c}, {c}, {d}",
           f"v_mul_f32 {b}, 0xbb000000, {a}", f"v_mul_f32 {c}, 0x3b000000, {c}",
           f"v_fma_f32 {d}, -{b}, {b}, {c}", f"v_max_f32 {d}, 0, {d}", f"v_add_f32 {d}, 0x3727c5ac, {d}",
           f"v_sqrt_f32 {c}, {d}", f"v_rcp_f32 {vRS2}, {d}",
           f"v_cmp_eq_u32 vcc, 0, {vHH}",
           f"v_mov_b32 {BX[3]}, 0",
           f"v_cndmask_b32 {b}, 0, {b}, vcc", f"v_cndmask_b32 {c}, 0, {c}, vcc",
           f"v_cvt_pk_bf16_f32 {BX[0]}, {b}, {b}",
           f"v_cvt_pk_bf16_f32 {e}, {c}, {c}",
           f"v_and_b32 {a}, {sHI}, {BX[0]}", f"v_and_b32 {e}, {sHI}, {e}",
           f"v_sub_f32 {b}, {b}, {a}", f"v_sub_f32 {c}, {c}, {e}",
           f"v_cvt_pk_bf16_f32 {BX[1]}, {b}, {e}",
           f"v_cvt_pk_bf16_f32 {BX[2]}, {e}, {c}"]
    for s_ in seq: ops.append((lambda s_=s_: I(s_)) if s_ else None)
    return ops
hst = {}
def epilogue(it):
    ac = ACC[accmap[it]]; ops = []
    for r in range(8): ops.append(lambda r=r: I(f"v_mul_f32 {ac[r]}, {ac[r]}, {ac[8+r]}"))
    for r in range(8): ops.append(lambda r=r: I(f"v_mul_f32 {ac[r]}, {ac[r]}, {vRS2}"))
    for n in range(4): ops.append(lambda n=n: I(f"v_cvt_pk_bf16_f32 {hp[n]}, {ac[2*n]}, {ac[2*n+1]}"))
    def st():
        G['lastst'] = G['now']
        hst[it] = I(f"buffer_store_dwordx4 {hp}, {vL16 if it < 4 else vL16b}, {rWS}, {sHS} offen offset:{1024*(it&3)} sc1")
    ops.append(VM(st)); ops.append(None)
    return ops
def lvl_flag(level, tiles):
    def f():
        P.wait([hst[t] for t in tiles])
        post_flag(vF5, F5 + level*FL)
    return f
def epoch_store():
    I(f"s_or_b32 {sT[0]}, s2, {sWv}")
    I(f"s_cselect_b32 {sT[0]}, {OOB}, {EPOCH}")
    lane0(t0, sT[0], t1)
    I(f"buffer_store_dword {vTag}, {t0}, {rWS}, 0 offen sc1")
sSQ = S.alloc(); sH0 = S.alloc(); sH1 = S.alloc()
ht = {}; hreg = {}; hfree = []
def h_load(i, st):
    c, it = order[i]; n = c*7 + it
    hreg[i, st] = r = hfree.pop(0)
    I(f"s_add_u32 {sT[0]}, {sH1 if st else sH0}, {1024*n}")
    ht[i, st] = I(f"buffer_load_dwordx4 {r}, {vL16}, {rWS}, {sT[0]} offen sc1")
def g2_setup_ops():
    seq = [f"s_lshr_b32 {sT[3]}, {sWv}, 1", f"s_lshl_b32 {sSQ}, {sR64}, 1", f"s_add_u32 {sSQ}, {sSQ}, {sT[3]}",
           f"s_mul_i32 {sT[4]}, {sWv}, 28", f"s_mul_i32 {sH0}, {sSQ}, 112", f"s_add_u32 {sH0}, {sH0}, {sT[4]}",
           f"s_lshl_b32 {sH0}, {sH0}, 10", f"s_add_u32 {sH0}, {sH0}, {HH}",
           f"s_xor_b32 {sT[3]}, {sSQ}, 1", f"s_mul_i32 {sH1}, {sT[3]}, 112", f"s_add_u32 {sH1}, {sH1}, {sT[4]}",
           f"s_lshl_b32 {sH1}, {sH1}, 10", f"s_add_u32 {sH1}, {sH1}, {HH}",
           f"v_and_b32 {t1}, 1, {vL}", f"v_lshlrev_b32 {t1}, 4, {t1}", f"v_bfe_u32 {t2}, {vL}, 1, 2", f"v_add_u32 {t1}, {t1}, {t2}",
           f"s_lshl_b32 {sT[3]}, {sR64}, 5", f"s_lshl_b32 {sT[4]}, {sWv}, 2", f"s_add_u32 {sT[3]}, {sT[3]}, {sT[4]}",
           f"v_add_lshl_u32 {vP5}, {t1}, {sT[3]}, {FSH}"]
    return [(lambda x=x: I(x)) for x in seq]
def res_loads():
    I(f"s_lshl_b32 {sT[0]}, {sSQ}, 15")
    I(f"s_lshl_b32 {sT[1]}, {sDQ}, 6")
    I(f"s_add_u32 {sT[0]}, {sT[0]}, {sT[1]}")
    I(f"s_add_u32 {sT[0]}, {sT[0]}, {X1T}")
    I(f"v_lshl_add_u32 {t0}, {vHH}, 9, {vL16}")
    G['txq'] = [I(f"buffer_load_dwordx4 {XQ[4*n:4*n+4]}, {t0}, {rWS}, {sT[0]} offen offset:{512*n} sc1") for n in range(2)]
c12a, c12b = c12_ops()
sgt = []
wq = []
VSP, BL, WD0, WDL = opt('vsp', 2), opt('bl', 36), opt('wdg', 4), opt('wdl', 20)
vq = []; lastv = -99; lastd = -99
WP_, WDP_, HP0 = opt('wp', 6), opt('wdp', 2), opt('hp0', T6+6)
N6, NC1, NS1, NC2, NS2 = opt('n6', 6), opt('nc1', XA-64), opt('ns1', XA-58), opt('nc2', XA-38), opt('ns2', XA-26)
nextg = NPRE; lastw = -99; xdone = set()
for n, (it, ks, fr) in enumerate(jobs):
    need = [g for g in first_job if g not in published and first_job[g] - LOOK <= n + 1]
    freeable = nextg < 14 and (nextg - NG < 0 or last_job[nextg-NG] < n) and n % opt('fb', 32) == opt('fbo', 2)
    exw = (n == XA - 8)
    if exw: assert 'tex' in G
    if need or freeable or exw:
        ready = [g for g in wch if g not in published and len(wch[g]) == 4 and (g in need or wch[g][-1][1] < P.vm_done)]
        for g in need: assert g in ready, (n, g)
        P.wait([wch[g] for g in ready], atok[n], G.get('tex') if exw else None)
        I("s_barrier"); published |= set(ready)
        for g in (6, 7):
            if opt('xs', 1) and last_job[g] < n and g not in xdone:
                xdone.add(g); G['wd']['free'] = [100 + 2*(g-6), 101 + 2*(g-6)] + G['wd']['free']
                if G['vWx'] is None:
                    G['vWx'] = [V.alloc(), V.alloc()]
                    I(f"s_sub_u32 {sT[5]}, {sWdst}, {sWDs}"); I(f"s_add_u32 {sT[5]}, {sT[5]}, {XB}")
                    for k_ in range(2): I(f"v_add_u32 {G['vWx'][k_]}, {sT[5]}, {G['vWr'][k_]}")
        if opt('dbg'): print(f'\nbar n={n} need={need} ready={ready} lastst', G.get('lastst'), file=sys.stderr)
        while nextg < 14 and (nextg - NG < 0 or last_job[nextg-NG] < n):
            wch[nextg] = []
            for q in range(4): wq.append((first_job[nextg] - opt('wlead', 200), first_job[nextg], lambda g=nextg, q=q: wch[g].extend(w_dma(16384*g, 16384*(g % NG), q, q+1))))
            nextg += 1
    if n in ((32, 64, 96, 128, T5, T6) if not opt('fine') else tuple(range(8, 231, 8))): stamp(f"n{n}")
    if 'win' in OPT and opt('win') <= n < opt('win') + 56*opt('wst', 1) and (n - opt('win')) % opt('wst', 1) == 0: stamp(f'w_{n}'); I(f'; job {n}')
    if n % 2 == 0: P.wait(atok[n], atok.get(n+1), btok.get(ks))
    else: P.wait(atok[n], btok.get(ks))
    ac = ACC[accmap[it]]
    bsrc = BX if ks == 'x' else Bf[4*ks:4*ks+4]
    first = (ks == 0 and it <= NA) or (ks == 'x' and it > NA)
    I(f"v_mfma_f32_32x32x16_bf16 {ac}, {AR[4*(n%8):4*(n%8)+4]}, {bsrc}, {0 if first else ac}")
    if it == 6 and ks != 'x': hfree.append(Bf.g[ks])
    if n + LOOK < NJ: atok[n+LOOK] = job_read(n+LOOK)
    budget = 4
    G['now'] = n
    Wd = G['wd']; vm0 = P.vm
    if n - lastv >= VSP and not any(isinstance(x, VM) for x in side[:3]):
        bdue = len(btok) < 32 and len(btok)*NA - n < BL
        if vq: vq.pop(0)(); budget = 2
        elif bdue: b_next(); budget = 2
        elif wq and wq[0][1] - n < opt('wurg', 300): wq.pop(0)[2](); budget = 1
        elif G.get('l0') and len(hfree) > 1 and len(ht) < 24:
            i = len(ht); h_load(i//2, i % 2); budget = 2
        elif n >= WD0 and n - lastd >= WDP_ and wd_dma1(): lastd = n; budget = 0
        elif wq and n >= wq[0][0]: wq.pop(0)[2](); budget = 1
    if P.vm == vm0 and Wd['nr'] < Wd['nd'] and n - Wd['ti'].get(Wd['nr'], -99) >= WDL: wd_read(); budget = 0
    if n == N6: vq += [epoch_store]
    if n == NC1 - 24: vq += [lambda: G.__setitem__('tp6', flag_load(vp3, vP3, F4))]
    if n == NC1: side += [lambda: (check_tags([vp3], lambda: flag_load(vp3, vP3, F4), G['tp6']), vp3.free(), vP3.free(), vq.extend(c12a))]
    if n == NS1:
        for j in range(4): vq += [lambda j=j: sgt.extend(sg_loads(j, j+1))]
    if n == NC2: side += c12b
    if n == NS2: side += stats2_ops(sgt)
    if n == XA - 1: assert not side, len(side)
    if n == XA + NA + 1:
        SGX.g[2].free(); SGX.g[3].free()
        XQ = Frags(2); vP5 = V.alloc(); vp5 = V.alloc()
        for e in range(NA): side += epilogue(e)
    if n == T4 + 4: side += g2_setup_ops()
    for e in range(NA, 6):
        if n == TT[e+1] + 3: side += epilogue(e)
    if n == opt('l0p', 168): vq += [lvl_flag(0, (0, 1, 2))]
    if n == opt('l1p', 210): vq += [lvl_flag(1, (3, 4))]
    if n == HP0 - opt('l0w', 14): vq += [lambda: G.__setitem__('tp5', flag_load(vp5, vP5, F5))]
    if n == HP0: side += [lambda: (check_tags([vp5], lambda: flag_load(vp5, vP5, F5), G['tp5']), G.__setitem__('l0', True), vq.append(res_loads))]
    k = 0
    while side and k < budget:
        if isinstance(side[0], VM) and (P.vm != vm0 or n - lastv < VSP): break
        f = side.pop(0); k += 1
        if f: f()
    if P.vm != vm0: lastv = n
    for e in range(NA+2, 7):
        if n == TT[e] - 1: assert e - NA - 2 in hst
for f in side:
    if f: f()
for f in vq: f()
if G['wd'].get('half'): wd_dma1()
assert not wq
print('wd progress', G['wd']['nd'], G['wd']['nr'], 'hh early', len(ht), file=sys.stderr)
def h_next():
    i = len(ht)
    if i < G['hlim'] and hfree: h_load(i//2, i % 2); return True
    return False
G['hlim'] = 24
h_next(); h_next()
for f in epilogue(6):
    if f: f()
stamp("g1 done")
for r in ACC + [BX, vRS2, vAd, vAd2, vEx]: r.free()
I("s_barrier")

GA = [V.alloc(16) for _ in range(4)]
HD = opt('hd', 20)
while len(ht) < opt('hd0', 10): h_next()
PL = {1: (opt('p1', 1), opt('p1c', 6), 40), 2: (opt('p2', 9), opt('p2c', 14), 48), 3: (opt('p3', 15), opt('p3c', 20), 56)}
mj = [(i, q) for i in range(24) for q in range(4)] + [(i, q) for q in (1, 2, 3, 0) for i in range(24, 28)]
red = []
for m, (i, q) in enumerate(mj):
    c, it = order[i]; n = c*7 + it; dt, st = q & 1, q >> 1
    if (i, st) not in ht:
        raise RuntimeError(f"hh {i} not issued")
    if opt('gfine') and m % 8 == 0: stamp(f'm{m}')
    P.wait(ht[i, st], G['wd']['rd'][i])
    I(f"v_mfma_f32_32x32x16_bf16 {GA[q]}, {AWD[8*i+4*dt:8*i+4*dt+4]}, {hreg[i, st]}, {0 if i==0 else GA[q]}")
    if i < 24 and dt == 1: hfree.append(hreg[i, st])
    G['now'] = NJ + 8 + m; Wd = G['wd']
    if m % 2 == 0 and Wd['nr'] < 28:
        if Wd['nr'] < Wd['nd'] and G['now'] - Wd['ti'].get(Wd['nr'], -99) >= WDL: wd_read()
        else: wd_dma1()
    if len(ht) < 2*i + HD + 2 and (m % 2 == 1 or len(ht) < 2*i + opt('hmin', 10)): h_next()
    if q == 0 and i < 24:
        for lv, (pi_, pc_, lim) in PL.items():
            if i == pc_:
                check_tags([vp5], lambda lv=lv: flag_load(vp5, vP5, F5 + lv*FL), G['tp']); G['hlim'] = lim; opt('gfine') or stamp(f"L{lv} ok")
        for lv, (pi_, pc_, lim) in PL.items():
            if i == pi_: G['tp'] = flag_load(vp5, vP5, F5 + lv*FL)
        if i == opt('l2p', 2): lvl_flag(2, (5,))()
        if i == opt('l3p', 8): lvl_flag(3, (6,))()
        if i == 2:
            I(f"v_lshl_add_u32 {t0}, {vQ}, 2, {sXdst}")
            I(f"ds_write_b32 {t0}, {vGB} offset:6144")
        if i == 21:
            G['GB'] = GB = [hfree.pop() for _ in range(4)]
            I(f"v_lshlrev_b32 {t1}, 6, {vHH}")
            I(f"v_add_u32 {t1}, {sXdst}, {t1}")
            for n_ in range(4): I(f"ds_read_b128 {GB[n_]}, {t1} offset:{6144+16*n_}")
        if i == 21:
            G['XF'] = XF = [hfree.pop() for _ in range(4)]
            P.wait(G['txq'])
            for rho in range(8):
                red.append(lambda rho=rho: (unpack(XF[rho//2][2*(rho%2)], XQ[rho], 0), unpack(XF[rho//2][2*(rho%2)+1], XQ[rho], 1)))
        if i == 23:
            G['RA'] = RA = hfree.pop()
            for qq in range(1, 4):
                red.append(lambda qq=qq: (I(f"s_xor_b32 {sT[0]}, {sWv}, {qq}"), I(f"s_mul_i32 {sT[0]}, {sT[0]}, 12288"), I(f"v_add_u32 {RA[qq]}, {sT[0]}, {vL16}")))
            red.append(lambda: (I(f"s_mul_i32 {sT[0]}, {sWv}, 12288"), I(f"v_add_u32 {RA[0]}, {sT[0]}, {vL16}")))
            red.append(lambda: (I(f"s_lshl_b32 {sT[2]}, {sSQ}, 15"), I(f"s_lshl_b32 {sT[1]}, {sDQ}, 1"), I(f"s_add_u32 {sT[2]}, {sT[2]}, {sT[1]}"), I(f"s_add_u32 {sT[3]}, {sT[2]}, 16384")))
            red.append(lambda: (I(f"v_lshrrev_b32 {t1}, 2, {vL}"), I(f"v_lshlrev_b32 {t1}, 10, {t1}"), I(f"v_and_b32 {t2}, 3, {vL}"), I(f"v_lshl_add_u32 {t1}, {t2}, 4, {t1}")))
            red.append(lambda: (I(f"v_lshlrev_b32 {t2}, 6, {vQ}"), I(f"v_lshl_add_u32 {t2}, {vHH}, 5, {t2}"), I(f"v_add_u32 {t2}, {sXdst}, {t2}"), I(f"v_add_u32 {t0}, {sXdst}, {vL16}")))
    if m >= 101 and (m - 101) // 4 < 2:
        qq = (m - 101)//4 + 1; r = (m - 101) % 4
        I(f"ds_write_b128 {G['RA'][qq]}, {GA[qq][4*r:4*r+4]} offset:{(qq-1)*4096 + r*1024}")
    elif m >= 109:
        r = m - 109
        I(f"ds_write_b128 {G['RA'][3]}, {GA[3][4*r:4*r+4]} offset:{2*4096 + r*1024}")
    elif red: red.pop(0)()
assert not red
I(f"ds_write_b128 {G['RA'][3]}, {GA[3][12:16]} offset:{2*4096 + 3*1024}")
stamp("g2 mfma")
GB, XF, RA = G['GB'], G['XF'], G['RA']
P.wait_all(vm=False)
I("s_barrier")
tl = {}
for r in range(4):
    tl[r] = [I(f"ds_read_b128 {GA[q][4*r:4*r+4]}, {RA[0]} offset:{(q-1)*4096 + r*1024}") for q in range(1, 4)]
OST = OPT.get('ost', '')
for r in range(4):
    P.wait(tl[r])
    for h in (0, 2): I(f"v_pk_add_f32 {GA[1][4*r+h:4*r+h+2]}, {GA[1][4*r+h:4*r+h+2]}, {GA[2][4*r+h:4*r+h+2]}")
    for h in (0, 2): I(f"v_pk_add_f32 {GA[0][4*r+h:4*r+h+2]}, {GA[0][4*r+h:4*r+h+2]}, {GA[3][4*r+h:4*r+h+2]}")
    for h in (0, 2): I(f"v_pk_add_f32 {GA[0][4*r+h:4*r+h+2]}, {GA[0][4*r+h:4*r+h+2]}, {GA[1][4*r+h:4*r+h+2]}")
    for h in (0, 2): I(f"v_pk_fma_f32 {XF[r][h:h+2]}, {GA[0][4*r+h:4*r+h+2]}, {GB[r][h:h+2]}, {XF[r][h:h+2]}")
    for h in (0, 2): I(f"v_cvt_pk_bf16_f32 {XQ[2*r+h//2]}, {XF[r][h]}, {XF[r][h+1]}")
    if r % 2: I(f"ds_write_b128 {t2}, {XQ[2*r-2:2*r+2]} offset:{4096 + 8*(r-1)}")
tl = [I(f"ds_read_b128 {GB[h]}, {t0} offset:{4096+1024*h}") for h in range(2)]
for h in range(2):
    P.wait(tl[h])
    I(f"buffer_store_dwordx4 {GB[h]}, {t1}, {rOUT}, {sT[2+h]} offen {OST}")
stamp("end")
if TSTAMP:
    P.wait_all()
    stamp("drained")
    n = nts[0]
    I("s_waitcnt lgkmcnt(0)")
    I(f"v_writelane_b32 {vTs}, {sTp[n&1][0]}, {n-2}")
    I(f"v_writelane_b32 {vTs}, {sTp[(n+1)&1][0]}, {n-1}")
    I(f"v_subrev_u32 {vTs}, {sT0[0]}, {vTs}")
    I(f"s_memrealtime {sTp[0]}")
    I("s_waitcnt lgkmcnt(0)")
    I(f"v_writelane_b32 {vTs}, {sR0[0]}, 62")
    I(f"v_writelane_b32 {vTs}, {sTp[0][0]}, 63")
    I(f"v_writelane_b32 {vTs}, {sSpin}, 61")
    I(f"s_lshl_b32 {sT[0]}, s2, 10")
    I(f"s_add_u32 {sT[0]}, {sT[0]}, {TS}")
    I(f"v_lshlrev_b32 {t0}, 2, v0")
    I(f"buffer_store_dword {vTs}, {t0}, {rWS}, {sT[0]} offen")
    print(f"\nNTS={n}", file=sys.stderr)
if PROBE:
    I("s_waitcnt lgkmcnt(0)")
    I(f"s_sub_u32 {sT[0]}, {sTp[0][0]}, {sT0[0]}")
    I(f"s_mul_i32 {sT[0]}, {sT[0]}, {opt('pmul', 4)}")
    I(f"s_min_u32 {sT[0]}, {sT[0]}, 100000")
    I(f"s_memrealtime {sT0}")
    I("L_spin:")
    I(f"s_memrealtime {sTp[0]}")
    I("s_waitcnt lgkmcnt(0)")
    I(f"s_sub_u32 {sT[1]}, {sTp[0][0]}, {sT0[0]}")
    I(f"s_cmp_lt_u32 {sT[1]}, {sT[0]}")
    I("s_cbranch_scc1 L_spin")
I("L_end:")
I("s_endpgm")
P.ins.extend(slow)
if opt('cpf', 0):
    I(".fill 1536, 4, 0xbf800000")

body = P.finalize()
ref = open(f"cdna_kernels/{NAME}.s.ref").read()
hdr = "".join(l + "\n" for l in ref.split("\n") if l.startswith(";") and "@launch" not in l)
out = hdr + f"; @launch grid=(256,1,1) block=(256,1,1) lds={LDS_SIZE}\n"
out += f"""; NTS={nts[0] if TSTAMP else 0} LAYOUT=10 WSOFF={WSOFF}
.amdgcn_target "amdgcn-amd-amdhsa--gfx950"
.text
.globl {NAME}_kernel
.p2align 8
.type {NAME}_kernel,@function
{NAME}_kernel:
{body}
.section .rodata,"a"
.p2align 6
.amdhsa_kernel {NAME}_kernel
  .amdhsa_next_free_vgpr 512
  .amdhsa_next_free_sgpr 102
  .amdhsa_accum_offset 256
  .amdhsa_group_segment_fixed_size 0
  .amdhsa_kernarg_size 120
  .amdhsa_user_sgpr_count 2
  .amdhsa_user_sgpr_kernarg_segment_ptr 1
  .amdhsa_system_sgpr_workgroup_id_x 1
.end_amdhsa_kernel
"""
dst = [a for a in sys.argv[1:] if not a.startswith('--')][0]
open(dst, "w").write(out)
print(f"instrs {len(P.ins)} nops {P.nops} vgpr hi {V.hi} sgpr hi {S.hi}", file=sys.stderr)
```

```python
import sys
from dsl import *

NAME = "adaLN_cond__ssm_conv_h3__glu_gated_bilinear__prompt"
OPT = {}
for a_ in sys.argv[1:]:
    if a_.startswith('--'):
        k, _, v = a_[2:].partition('='); OPT[k] = v if v else '1'
def opt(k, d=0): return type(d)(OPT.get(k, d))
TSTAMP = opt('ts')
PROBE = tuple(int(x) for x in OPT['probe'].split(',')) if 'probe' in OPT else None
TSOP = 's_memrealtime' if opt('rt') else 's_memtime'
NTS_ = OPT.get("nt", "m")
def nt(k): return "nt" if k in NTS_ else ""
NT = nt("k")

EPOCH=0; F3=0x10000; F4=0x40000; F5=0x60000; F1=0x800000; FY=0x820000; S2=0x840000
MODG=0x90000; STG=0xA8000; C12=0xB0000; MODL2=0x880000
KVG=0x100000; XG=0x500000; X1T=0x900000; WP=0xB00000; WDP=0xF00000; HH=0x1100000; SG=0x1800000; TS=0x1900000
WS_SIZE=0x1A00000
OOB=0x80000000
FSH=opt('fsh', 4); F6=0x18000 if FSH <= 5 else 0xF0000
UB=0; UCH=4608; MODL=9216; CBL=10240; C12L=11264
TAPS=15360; TCOPY=4160; TCH=33280
RED=131072
WL=0; XS=131072; XSW=7168; EX=159744; NG=8
XTO=8192; C12O=10240; CBO=11264; S2O=11776
WDS0=81920; WDW0=20480; REDO=12288
LDS_SIZE=163840
NA = opt('na', 3)

P = Prog(); I = P.I; V = P.V; A = P.A; S = P.S
S.reserve(0, 3); V.reserve(0, 1)
def srd(): return S.alloc(4, 4)
rX, rK, rV, rSH, rTP, rW, rWD, rC, rWM, rOUT, rWS, rD = [srd() for _ in range(12)]
sPG = S.alloc(2, 2); sPU = S.alloc(2, 2)
sXJ = S.alloc(); sGI = S.alloc(); sWv = S.alloc(); sSpin = S.alloc()
sT = [S.alloc() for _ in range(6)]
sZ = [S.alloc() for _ in range(2)]
sC4096 = S.alloc()
sPL = S.alloc(); sPH = S.alloc(); sHI = S.alloc(); sONE = S.alloc()
sD0 = S.alloc()
sTp = [S.alloc(2, 2), S.alloc(2, 2)]; sT0 = S.alloc(2, 2)

class Frags:
    def __init__(self, n, pool=None): self.g = [(pool or V).alloc(4) for _ in range(n)]
    def __getitem__(self, i):
        if isinstance(i, slice):
            assert i.start//4 == (i.stop-1)//4
            return self.g[i.start//4][i.start%4:(i.stop-1)%4+1]
        return self.g[i//4][i%4]
    def free(self):
        for g in self.g: g.free()

nts = [0]
def stamp(name=""):
    if 'win' in OPT and not (name.startswith('w_') or name in ('end', 'drained')): return
    n = nts[0]; nts[0] += 1
    if 'gap' in OPT and n in [int(x) for x in OPT['gap'].split(',')]:
        L = P.label('gap'); I(f's_branch {L}'); I(f".fill {opt('gapn', 1023)}, 4, 0xbf800000"); I(f'{L}:')
    if PROBE:
        if n == PROBE[0]: I(f"s_memrealtime {sT0}")
        if n == PROBE[1]: I(f"s_memrealtime {sTp[0]}")
        return
    if not TSTAMP: return
    if n >= 2: I(f"v_writelane_b32 {vTs}, {sTp[n&1][0]}, {n-2}")
    I(f"{TSOP} {sTp[n&1]}")
    print(f"{n}:{name}", file=sys.stderr, end="  ")

slow = []
def check_tags(tags, reissue, toks):
    R = P.label("chk"); SL = P.label("slow"); D = P.label("ok")
    P.wait(toks)
    mn = V.alloc(); mx = V.alloc()
    I(f"{R}:")
    tg = list(tags)
    if len(tg) == 1:
        I(f"v_cmp_ne_u32 vcc, {tg[0]}, {vTag}")
    else:
        if len(tg) % 2: tg.append(tg[0])
        for i in range(0, len(tg), 2):
            I(f"v_min3_u32 {mn}, {vTag if i==0 else mn}, {tg[i]}, {tg[i+1]}")
            I(f"v_max3_u32 {mx}, {vTag if i==0 else mx}, {tg[i]}, {tg[i+1]}")
        I(f"v_cmp_ne_u32 vcc, {mn}, {mx}")
    I(f"s_cbranch_vccnz {SL}")
    I(f"{D}:")
    mn.free(); mx.free()
    save = (P.ins, P.vm, P.lg, P.vm_done, P.lg_done)
    P.ins = []
    I(f"{SL}:")
    I(f"s_add_u32 {sSpin}, {sSpin}, 1")
    I(f"s_cmp_gt_u32 {sSpin}, 200000")
    I(f"s_cbranch_scc1 {D}")
    reissue()
    I("s_waitcnt vmcnt(0)")
    I(f"s_branch {R}")
    slow.extend(P.ins)
    P.ins, P.vm, P.lg, P.vm_done, P.lg_done = save

def post_flag(vaddr, base):
    I(f"s_mov_b32 {sZ[0]}, {base}")
    return I(f"buffer_store_dword {vTag}, {vaddr}, {rWS}, {sZ[0]} offen sc1")
def flag_load(vp, vaddr, base):
    I(f"s_mov_b32 {sZ[0]}, {base}")
    return I(f"buffer_load_dword {vp}, {vaddr}, {rWS}, {sZ[0]} offen sc1")
def poll(vaddr, base):
    vp = V.alloc()
    t = flag_load(vp, vaddr, base)
    check_tags([vp], lambda: flag_load(vp, vaddr, base), t)
    vp.free()
sRel = S.alloc()
def post_local(vaddr, base):
    if not LOC: return post_flag(vaddr, base)
    I(f"s_mov_b32 {sZ[0]}, {base}")
    return I(f"buffer_store_dword {vTagL}, {vaddr}, {rWS}, {sZ[0]} offen")
def check_local(vp, vpoll, vown, base, tok):
    if not LOC: return check_tags([vp], lambda: flag_load(vp, vpoll, base), tok)
    SL = P.label("lslow"); D = P.label("lok"); RL = P.label("lrel"); AG = P.label("lagain"); NR = P.label("lnorel")
    P.wait(tok)
    I(f"v_cmp_ne_u32 vcc, {vp}, {vTagL}")
    I(f"s_cbranch_vccnz {SL}")
    I(f"{D}:")
    save = (P.ins, P.vm, P.lg, P.vm_done, P.lg_done)
    P.ins = []
    I(f"{SL}:")
    I(f"s_mov_b32 {sRel}, 0")
    I(f"{AG}:")
    I(f"s_add_u32 {sSpin}, {sSpin}, 1")
    I(f"s_cmp_gt_u32 {sSpin}, 200000")
    I(f"s_cbranch_scc1 {D}")
    flag_load(vp, vpoll, base)
    I("s_waitcnt vmcnt(0)")
    I(f"v_cmp_ne_u32 vcc, {vp}, {vTagL}")
    I(f"s_cbranch_vccz {D}")
    I(f"s_cmp_ge_u32 {sRel}, 0x10000")
    I(f"s_cbranch_scc1 {NR}")
    I(f"s_add_u32 {sRel}, {sRel}, 1")
    I(f"s_cmp_ge_u32 {sRel}, {opt('ltry', 40)}")
    I(f"s_cbranch_scc1 {RL}")
    I(f"v_cmp_eq_u32 vcc, {vp}, {vTag}")
    I(f"s_cbranch_vccz {AG}")
    I(f"{RL}:")
    I("buffer_wbl2 sc1")
    I("s_waitcnt vmcnt(0)")
    post_flag(vown, base)
    I(f"s_mov_b32 {sRel}, 0x10000")
    I(f"{NR}:")
    I(f"v_cmp_ne_u32 vcc, {vp}, {vTagL}")
    I(f"v_cmp_ne_u32 {sTp2}, {vp}, {vTag}")
    I(f"s_and_b64 {sTp2}, vcc, {sTp2}")
    I(f"s_cbranch_scc1 {AG}")
    I("s_waitcnt vmcnt(0)")
    I(f"s_branch {D}")
    slow.extend(P.ins)
    P.ins, P.vm, P.lg, P.vm_done, P.lg_done = save
def unpack(dst, src, hi):
    I(f"v_and_b32 {dst}, {sHI}, {src}" if hi else f"v_lshlrev_b32 {dst}, 16, {src}")
def round_bf16(dst, src):
    I(f"v_cvt_pk_bf16_f32 {dst}, {src}, {src}")
    I(f"v_and_b32 {dst}, {sHI}, {dst}")
def lane0(dst, sval, tmp):
    I(f"v_mov_b32 {dst}, {OOB}")
    I(f"v_writelane_b32 {dst}, {sval}, 0")

I("s_cmp_ge_u32 s2, 256")
I("s_cbranch_scc1 L_end")
if PROBE and PROBE[0] == -1: I(f"s_memrealtime {sT0}")
if TSTAMP:
    I(f"{TSOP} {sT0}")
    sR0 = S.alloc(2, 2); I(f"s_memrealtime {sR0}")
for r, off in ((rK,8),(rV,16),(rSH,24),(rWS,112),(rC,80),(rWM,88),(rX,0),(rTP,32),(rWD,72),(rOUT,96)):
    I(f"s_load_dwordx2 {r[0:2]}, s[0:1], {off}")
I(f"s_load_dwordx2 {sPG}, s[0:1], 56")
I(f"s_load_dwordx2 {sPU}, s[0:1], 64")
I(f"s_load_dwordx2 {rD[0:2]}, s[0:1], 40")
vL = V.alloc(); vL16 = V.alloc(); vTag = V.alloc(); vHH = V.alloc(); vQ = V.alloc(); vT16 = V.alloc()
if TSTAMP: vTs = V.alloc()
t0 = V.alloc(); t1 = V.alloc(); t2 = V.alloc()
I(f"s_and_b32 {sXJ}, s2, 7")
I(f"s_lshr_b32 {sGI}, s2, 3")
I(f"v_lshrrev_b32 {t0}, 6, v0")
I(f"v_and_b32 {vL}, 63, v0")
I(f"v_readfirstlane_b32 {sWv}, {t0}")
I(f"v_lshlrev_b32 {vL16}, 4, {vL}")
I(f"v_lshlrev_b32 {vT16}, 4, v0")
def do_cpf():
    global cpa, cpd
    cpa = V.reserve(250, 2); cpd = V.reserve(252, 4)
    I(f"s_getpc_b64 {sTp[0]}")
    I(f"s_and_b32 {sTp[0][0]}, {sTp[0][0]}, 0xffffff00")
    I(f"s_and_b32 {sT[5]}, {sGI}, 7")
    I(f"s_min_u32 {sT[5]}, {sT[5]}, 6")
    I(f"s_lshl_b32 {sT[5]}, {sT[5]}, 12")
    I(f"s_add_u32 {sTp[0][0]}, {sTp[0][0]}, {sT[5]}")
    I(f"s_addc_u32 {sTp[0][1]}, {sTp[0][1]}, 0")
    I(f"v_mov_b32 {cpa[1]}, {sTp[0][1]}")
    I(f"v_add_co_u32 {cpa[0]}, vcc, {sTp[0][0]}, {vT16}")
    I(f"v_addc_co_u32 {cpa[1]}, vcc, 0, {cpa[1]}, vcc")
    I(f"global_load_dwordx4 {cpd}, {cpa}, off")
if opt('cpf', 0) == 1: do_cpf()
for r, n in ((rK,2097152),(rV,2097152),(rSH,4096),(rWS,WS_SIZE),(rC,1024),(rWM,3145728),(rX,2097152),(rTP,2097152),(rWD,1835008),(rOUT,2097152),(rW,1835008),(rD,1024)):
    I(f"s_mov_b32 {r[2]}, {n}")
    I(f"s_mov_b32 {r[3]}, 0x20000")
I(f"v_lshrrev_b32 {vHH}, 5, {vL}")
I(f"v_and_b32 {vQ}, 31, {vL}")
I(f"s_mov_b32 {sSpin}, 0")
I(f"s_movk_i32 {sC4096}, 0x1000")
vB = V.alloc(); vH = V.alloc(); vSH = V.alloc(); vGS = V.alloc()
I(f"s_lshl_b32 {sT[0]}, {sGI}, 16")
I(f"s_lshl_b32 {sT[1]}, {sXJ}, 7")
I(f"s_lshl_b32 {sT[2]}, {sWv}, 5")
I(f"s_add_u32 {sT[1]}, {sT[1]}, {sT[2]}")
I(f"s_add_u32 {sT[0]}, {sT[0]}, {sT[1]}")
I(f"v_lshrrev_b32 {t0}, 3, {vL}")
I(f"v_and_b32 {t1}, 7, {vL}")
I(f"v_lshlrev_b32 {vB}, 13, {t0}")
I(f"v_lshl_add_u32 {vB}, {t1}, 2, {vB}")
I(f"v_add_u32 {vB}, {sT[0]}, {vB}")
I(f"v_subrev_u32 {vH}, 3072, {vB}")
I(f"s_lshl_b32 {sT[2]}, {sT[1]}, 2")
I(f"v_lshlrev_b32 {vSH}, 4, {t1}")
I(f"v_add_u32 {vSH}, {sT[2]}, {vSH}")
I(f"v_mov_b32 {t2}, {EPOCH}")
if opt("sfine"): stamp("s0")
I("s_waitcnt lgkmcnt(0)")
if opt("sfine"): stamp("karg")
WSOFF = opt('wsoff', 0) << 20
if WSOFF:
    I(f"s_add_u32 {rWS[0]}, {rWS[0]}, {WSOFF}")
    I(f"s_addc_u32 {rWS[1]}, {rWS[1]}, 0")
LOC = opt('loc', 1); LST = '' if LOC else 'sc1'
vTagL = V.alloc()
PT = V.alloc(4)
Kr = V.alloc(11, 1); Vr = V.alloc(8, 1); SHr = V.alloc(4)
tep = I(f"buffer_load_dword {vTag}, {t2}, {rWS}, 0 offen sc1")
tsh = I(f"buffer_load_dwordx4 {SHr}, {vSH}, {rSH}, 0 offen")
PTA = OPT.get('pta', 'sc1')
def pretouch(base):
    I(f"s_lshl_b32 {sZ[0]}, {sXJ}, 18")
    I(f"s_lshl_b32 {sZ[1]}, {sGI}, 13")
    I(f"s_add_u32 {sZ[0]}, {sZ[0]}, {sZ[1]}")
    I(f"s_add_u32 {sZ[0]}, {sZ[0]}, {base}")
    I(f"s_add_u32 {sZ[1]}, {sZ[0]}, 4096")
    for c in range(2): I(f"buffer_load_dwordx4 {PT}, {vT16}, {rWS}, {sZ[c]} offen {PTA}")
if LOC and opt('ptfirst', 0): pretouch(KVG)
tk = []
for e in range(3): tk.append(I(f"buffer_load_dword {Kr[e]}, {vH}, {rK}, 0 offen offset:{e*1024} {NT}"))
for e in range(8): tk.append(I(f"buffer_load_dword {Kr[3+e]}, {vB}, {rK}, {sC4096 if e>=4 else 0} offen offset:{(e&3)*1024} {NT}"))
tv = [I(f"buffer_load_dword {Vr[e]}, {vB}, {rV}, {sC4096 if e>=4 else 0} offen offset:{(e&3)*1024} {NT}") for e in range(8)]
vH.free(); vSH.free()
if opt('sfine'): stamp('L1')
if LOC and not opt('ptfirst', 0): pretouch(KVG)
if opt('cpf', 0) == 2: do_cpf()
vBP = V.alloc()
I(f"s_lshl_b32 {sT[2]}, {sT[1]}, 11")
I(f"s_lshl_b32 {sT[3]}, {sGI}, 7")
I(f"s_add_u32 {sT[2]}, {sT[2]}, {sT[3]}")
I(f"v_lshlrev_b32 {vGS}, 13, {t0}")
I(f"v_lshl_add_u32 {vGS}, {t1}, 4, {vGS}")
I(f"s_add_u32 {sT[2]}, {sT[2]}, {KVG}")
I(f"v_add_u32 {vGS}, {sT[2]}, {vGS}")
I(f"v_lshlrev_b32 {vBP}, 5, {t1}")
I(f"v_lshl_add_u32 {vBP}, {t0}, 2, {vBP}")
I(f"s_mov_b32 {sPL}, 0x05040100")
I(f"s_mov_b32 {sPH}, 0x07060302")
I(f"s_mov_b32 {sHI}, 0xffff0000")
I(f"s_mov_b32 {sONE}, 0x3f803f80")
sM = S.alloc(); sKS = S.alloc(); sCB = S.alloc()
I(f"s_and_b32 {sM}, {sGI}, 1")
I(f"s_cmp_eq_u32 {sM}, 0")
I(f"s_cselect_b32 {rW[0]}, {sPG[0]}, {sPU[0]}")
I(f"s_cselect_b32 {rW[1]}, {sPG[1]}, {sPU[1]}")
I(f"s_lshl_b32 {sD0}, {sXJ}, 6")
I(f"s_lshl_b32 {sT[4]}, {sGI}, 1")
I(f"s_add_u32 {sD0}, {sD0}, {sT[4]}")
I(f"s_lshl_b32 {sKS}, {sXJ}, 2")
I(f"s_add_u32 {sKS}, {sKS}, {sWv}")
I(f"s_lshr_b32 {sCB}, {sGI}, 1")
sPG.free(); sTp2 = sPU

G = {}
def A_mod():
    G['vMW'] = vMW = V.alloc(); G['vMC'] = vMC = V.alloc()
    I(f"s_and_b32 {sT[4]}, {sGI}, 3")
    I(f"s_lshl_b32 {sT[4]}, {sT[4]}, 7")
    I(f"v_lshrrev_b32 {t2}, 3, v0")
    I(f"v_add_u32 {t2}, {sT[4]}, {t2}")
    I(f"v_lshlrev_b32 {vMC}, 1, {t2}")
    I(f"v_mul_u32_u24 {vMW}, 6144, {t2}")
    I(f"v_and_b32 {t2}, 7, v0")
    I(f"v_lshl_add_u32 {vMW}, {t2}, 4, {vMW}")
    I(f"s_lshr_b32 {sT[4]}, {sGI}, 2")
    I(f"s_lshl_b32 {sT[4]}, {sT[4]}, 10")
    I(f"s_lshl_b32 {sT[5]}, {sXJ}, 7")
    I(f"s_add_u32 {sT[4]}, {sT[4]}, {sT[5]}")
    I(f"s_cmp_lt_u32 {sGI}, 24")
    I(f"s_cselect_b32 {sT[4]}, {sT[4]}, {OOB}")
    I(f"v_add_u32 {vMW}, {sT[4]}, {vMW}")
def L_mod():
    vMW, vMC = G['vMW'], G['vMC']
    G['Cr'] = Cr = V.alloc(4, 1); G['WMr'] = WMr = V.alloc(16)
    G['tc'] = [I(f"buffer_load_ushort {Cr[i]}, {vMC}, {rC}, 0 offen offset:{64*i}") for i in range(4)]
    G['twm'] = []
    for i in range(4):
        I(f"s_mov_b32 {sT[5]}, {i*32*6144}")
        G['twm'].append(I(f"buffer_load_dwordx4 {WMr[4*i:4*i+4]}, {vMW}, {rWM}, {sT[5]} offen {nt('m')}"))
    vMW.free(); vMC.free()
def L_taps():
    G['TP'] = TP = [V.alloc(8), V.alloc(8)]
    I(f"s_lshl_b32 {sT[4]}, {sD0}, 12")
    I(f"s_add_u32 {sT[5]}, {sT[4]}, 4096")
    I(f"v_subrev_u32 {t2}, 16, {vT16}")
    I(f"v_min_u32 {t2}, {OOB}, {t2}")
    G['ttp'] = []
    for c in range(2):
        G['ttp'].append([I(f"buffer_load_dwordx4 {TP[c][4:8]}, {vT16}, {rTP}, {sT[4+c]} offen {nt('t')}"),
                         I(f"buffer_load_dwordx4 {TP[c][0:4]}, {t2}, {rTP}, {sT[4+c]} offen {nt('t')}")])
def L_w():
    G['WR'] = WR = V.alloc(16)
    I(f"s_mul_i32 {sT[0]}, {sKS}, {16*3584}")
    I(f"s_mul_i32 {sT[1]}, {sCB}, 224")
    I(f"s_add_u32 {sT[0]}, {sT[0]}, {sT[1]}")
    I(f"v_mul_u32_u24 {t2}, {8*3584}, {vHH}")
    I(f"v_lshl_add_u32 {t2}, {vQ}, 3, {t2}")
    G['twr'] = []
    for e in range(8):
        if e and e % 2 == 0: I(f"s_add_u32 {sT[0]}, {sT[0]}, 7168")
        G['twr'].append(I(f"buffer_load_dwordx2 {WR[2*e:2*e+2]}, {t2}, {rW}, {sT[0]} offen offset:{(e&1)*3584} {nt('w')}"))
def L_x1(e):
    if e == 0: G['Xr'] = V.alloc(8, 1); G['tx'] = []
    G['tx'].append(I(f"buffer_load_dword {G['Xr'][e]}, {vB}, {rX}, {sC4096 if e>=4 else 0} offen offset:{(e&3)*1024}"))
    if e == 7: vB.free()
def L_xr():
    G['XR'] = XR = V.alloc(8)
    I(f"s_lshl_b32 {sT[0]}, s2, 13")
    I(f"s_lshl_b32 {sT[1]}, {sWv}, 11")
    I(f"s_add_u32 {sT[0]}, {sT[0]}, {sT[1]}")
    G['txr'] = [I(f"buffer_load_dwordx4 {XR[4*i:4*i+4]}, {vL16}, {rX}, {sT[0]} offen offset:{1024*i} {nt('r')}") for i in range(2)]
def zero_pads():
    z4 = V.alloc(4)
    for i in range(4): I(f"v_mov_b32 {z4[i]}, 0")
    I(f"v_lshlrev_b32 {t2}, 4, {vQ}")
    I(f"v_mul_u32_u24 {t0}, {UCH}, {vHH}")
    I(f"v_add_u32 {t2}, {t2}, {t0}")
    I(f"ds_write_b128 {t2}, {z4} offset:{UB+4096}")
    I(f"v_and_b32 {t2}, 15, {vL}")
    I(f"v_mul_u32_u24 {t2}, {TCOPY}, {t2}")
    I(f"ds_write_b128 {t2}, {z4} offset:{TAPS}")
    z4.free()
def C_tag():
    P.wait(tep)
    pass
    I(f"s_mov_b32 {sT[0]}, 0x9E3779B1")
    I(f"v_mul_lo_u32 {vTag}, {vTag}, {sT[0]}")
    I(f"v_add_u32 {vTag}, 0x7F4A7C15, {vTag}")
    I(f"s_getreg_b32 {sT[0]}, hwreg(HW_REG_XCC_ID, 0, 4)")
    I(f"s_add_u32 {sT[0]}, {sT[0]}, 1")
    I(f"v_xor_b32 {vTagL}, {sT[0]}, {vTag}")
def lane_tr(src):
    GR = Frags(2)
    return GR, [I(f"ds_bpermute_b32 {GR[i]}, {vBP}, {src[i]}") for i in range(8)]
def flag_setup():
    G['vFo'] = V.alloc(); G['vFp'] = V.alloc()
    I(f"s_lshl_b32 {sT[0]}, {sKS}, 5")
    I(f"s_add_u32 {sT[0]}, {sT[0]}, {sGI}")
    I(f"s_lshl_b32 {sT[0]}, {sT[0]}, 7")
    lane0(G['vFo'], sT[0], t1)
    I(f"s_lshr_b32 {sT[0]}, {sGI}, 3")
    I(f"s_lshl_b32 {sT[1]}, {sXJ}, 2")
    I(f"s_add_u32 {sT[0]}, {sT[0]}, {sT[1]}")
    I(f"s_lshl_b32 {sT[0]}, {sT[0]}, 2")
    I(f"s_add_u32 {sT[0]}, {sT[0]}, {sWv}")
    I(f"s_lshl_b32 {sT[0]}, {sT[0]}, 3")
    I(f"v_and_b32 {t0}, 7, {vL}")
    I(f"v_add_lshl_u32 {G['vFp']}, {t0}, {sT[0]}, 7")
def C_kv():
    kf = V.alloc(22); wp = V.alloc(8); acc = V.alloc(16)
    P.wait(tsh)
    for j in range(4):
        for c in range(2): unpack(wp[2*j+c], SHr[2*c + (j>>1)], j & 1)
    stamp('pre-k'); P.wait(tk[:opt('kw', 3)]); G['afterk'](); P.wait(tk); stamp('k in')
    for e in range(11):
        unpack(kf[2*e], Kr[e], 0); unpack(kf[2*e+1], Kr[e], 1)
    for e in range(8): I(f"v_pk_mul_f32 {acc[2*e:2*e+2]}, {kf[2*e:2*e+2]}, {wp[6:8]}")
    for j in (2, 1, 0):
        for e in range(8):
            q = e + 3 - j
            I(f"v_pk_fma_f32 {acc[2*e:2*e+2]}, {kf[2*q:2*q+2]}, {wp[2*j:2*j+2]}, {acc[2*e:2*e+2]}")
    P.wait(tv)
    for e in range(8):
        unpack(kf[2*e], Vr[e], 0); unpack(kf[2*e+1], Vr[e], 1)
    for e in range(8): I(f"v_pk_mul_f32 {acc[2*e:2*e+2]}, {acc[2*e:2*e+2]}, {kf[2*e:2*e+2]}")
    for c in range(2):
        for n in range(4):
            I(f"v_cvt_pk_bf16_f32 {wp[4*c+n]}, {acc[2*(7-2*n)+c]}, {acc[2*(6-2*n)+c]}")
    G['KVt'], tl = lane_tr(wp)
    G['tks'] = []
    for c in range(2):
        P.wait(tl[4*c:4*c+4])
        G['tks'].append(I(f"buffer_store_dwordx4 {G['KVt'][4*c:4*c+4]}, {vGS}, {rWS}, {sC4096 if c else 0} offen {LST}"))
    for r in (kf, wp, acc, Kr, Vr, SHr): r.free()
def C_mod():
    Cr, WMr = G['Cr'], G['WMr']
    P.wait(G['tc'])
    sl = V.alloc(4, 1); sp = V.alloc(2, 1)
    for i in range(4): I(f"v_lshlrev_b32 {Cr[i]}, 16, {Cr[i]}")
    for i in range(4): I(f"v_mul_f32 {sl[i]}, 0xbfb8aa3b, {Cr[i]}")
    for i in range(4): I(f"v_exp_f32 {sl[i]}, {sl[i]}")
    for i in range(4): I(f"v_add_f32 {sl[i]}, 1.0, {sl[i]}")
    for i in range(4): I(f"v_rcp_f32 {sl[i]}, {sl[i]}")
    for i in range(4): I(f"v_mul_f32 {sl[i]}, {sl[i]}, {Cr[i]}")
    I(f"v_cvt_pk_bf16_f32 {sp[0]}, {sl[0]}, {sl[1]}")
    I(f"v_cvt_pk_bf16_f32 {sp[1]}, {sl[2]}, {sl[3]}")
    I(f"v_and_b32 {t0}, 7, {vL}")
    I(f"v_lshlrev_b32 {t0}, 7, {t0}")
    I(f"v_lshrrev_b32 {t1}, 4, {vL}")
    I(f"v_lshl_add_u32 {t0}, {t1}, 5, {t0}")
    I(f"s_lshl_b32 {sT[0]}, {sWv}, 2")
    I(f"v_add_u32 {t0}, {sT[0]}, {t0}")
    ma = V.alloc(8, 1); mp = V.alloc(8, 1)
    for half in range(2):
        P.wait(G['twm'][2*half:2*half+2])
        for j in range(4):
            I(f"v_perm_b32 {mp[2*j]}, {WMr[8*half+4+j]}, {WMr[8*half+j]}, {sPL}")
            I(f"v_perm_b32 {mp[2*j+1]}, {WMr[8*half+4+j]}, {WMr[8*half+j]}, {sPH}")
        for j in range(8):
            I(f"v_dot2_f32_bf16 {ma[j]}, {mp[j]}, {sp[half]}, {0 if half==0 else ma[j]}")
    for i in range(4): I(f"v_permlane32_swap_b32 {ma[i]}, {ma[i+4]}")
    for i in range(4): I(f"v_add_f32 {ma[i]}, {ma[i]}, {ma[i+4]}")
    for i in range(2): I(f"v_permlane16_swap_b32 {ma[i]}, {ma[i+2]}")
    for i in range(2): I(f"v_add_f32 {ma[i]}, {ma[i]}, {ma[i+2]}")
    for i in range(2): I(f"v_add_f32_dpp {ma[i]}, {ma[i]}, {ma[i]} row_ror:8 row_mask:0xf bank_mask:0xf")
    I(f"ds_write_b32 {t0}, {ma[0]} offset:{MODL}")
    I(f"ds_write_b32 {t0}, {ma[1]} offset:{MODL+16}")
    for r in (sl, sp, ma, mp, Cr, WMr): r.free()
def A_mod2():
    I(f"s_lshl_b32 {sT[0]}, {sGI}, 12")
    I(f"s_lshl_b32 {sT[1]}, {sXJ}, 9")
    I(f"s_add_u32 {sT[0]}, {sT[0]}, {sT[1]}")
    I(f"s_add_u32 {sT[0]}, {sT[0]}, {MODG}")
    I(f"s_cmp_lt_u32 {sGI}, 24")
    I(f"s_cselect_b32 {sT[0]}, {sT[0]}, {OOB}")
    I(f"s_cmp_eq_u32 {sWv}, 1")
    I(f"s_cselect_b32 {sT[0]}, {sT[0]}, {OOB}")
    G['vMs'] = V.alloc()
    I(f"v_lshlrev_b32 {t0}, 3, {vL}")
    I(f"v_add_u32 {G['vMs']}, {sT[0]}, {t0}")
def C_mod2():
    vMs = G['vMs']
    I("s_waitcnt lgkmcnt(0)"); P.lg_done = P.lg
    I("s_barrier")
    m4 = V.alloc(4)
    tl = I(f"ds_read_b128 {m4}, {vL16} offset:{MODL}")
    P.wait(tl)
    I(f"v_add_f32 {m4[0]}, {m4[0]}, {m4[1]}")
    I(f"v_add_f32 {m4[2]}, {m4[2]}, {m4[3]}")
    I(f"v_mov_b32 {m4[1]}, {vTag}")
    I(f"v_add_f32 {m4[0]}, {m4[0]}, {m4[2]}")
    if LOC:
        I(f"s_mov_b32 {sT[1]}, {MODL2-MODG}")
        I(f"buffer_store_dwordx2 {m4[0:2]}, {vMs}, {rWS}, {sT[1]} offen")
    G['midmod']()
    I(f"buffer_store_dwordx2 {m4[0:2]}, {vMs}, {rWS}, 0 offen sc1")
    m4.free(); vMs.free()
def C_taps(hk=lambda: None):
    TP = G['TP']
    E1 = V.alloc(6); O0 = V.alloc(6); O1 = V.alloc(6)
    I(f"v_add_u32 {t2}, {TCH}, {vT16}")
    for c in range(2):
        d = TP[c]; ad = vT16 if c == 0 else t2
        P.wait(G['ttp'][c])
        def wr(o, regs):
            I(f"ds_write_b128 {ad}, {regs} offset:{TAPS + 16 + (o-1)*TCOPY}")
            if o > 4: hk()
        wr(4, d[2:6]); wr(8, d[4:8])
        for j in range(6): I(f"v_alignbit_b32 {O0[j]}, {d[j+1]}, {d[j]}, 16")
        wr(1, O0[0:4]); wr(5, O0[2:6])
        for j in range(6): I(f"v_alignbit_b32 {O1[j]}, {d[j+2]}, {d[j+1]}, 16")
        wr(3, O1[0:4]); wr(7, O1[2:6])
        for j in range(6): I(f"v_mov_b32 {E1[j]}, {d[j+1]}")
        wr(2, E1[0:4]); wr(6, E1[2:6])
    for r in TP + [E1, O0, O1]: r.free()
sUY = S.alloc(2)
def L_u():
    G['UR'] = UR = Frags(2)
    I(f"s_lshl_b32 {sUY[0]}, {sD0}, 12")
    I(f"s_add_u32 {sUY[0]}, {sUY[0]}, {KVG}")
    I(f"s_add_u32 {sUY[1]}, {sUY[0]}, 4096")
    G['tu'] = [I(f"buffer_load_dwordx4 {UR[4*c:4*c+4]}, {vT16}, {rWS}, {sUY[c]} offen sc1") for c in range(2)]
def C_u():
    UR = G['UR']
    I(f"v_sub_u32 {t2}, 4080, {vT16}")
    for c in range(2):
        P.wait(G['tu'][c])
        I(f"ds_write_b128 {t2}, {UR[4*c:4*c+4]} offset:{UB+c*UCH}")
    UR.free()
def L_d():
    G['Dr'] = V.alloc(2)
    I(f"s_lshl_b32 {sT[0]}, {sKS}, 5")
    I(f"v_lshrrev_b32 {t0}, 3, {vL}")
    I(f"v_lshlrev_b32 {t0}, 2, {t0}")
    G['td'] = I(f"buffer_load_dword {G['Dr'][0]}, {t0}, {rD}, {sT[0]} offen")
def x_ops():
    ops = []
    def a0(): G['xp'] = V.alloc(8, 1); G['Xt'] = Frags(2); G['txt'] = []; P.wait(G['tx'])
    ops.append(a0)
    for c in range(2):
        for n in range(4):
            ops.append(lambda c=c, n=n: I(f"v_perm_b32 {G['xp'][4*c+n]}, {G['Xr'][2*n+1]}, {G['Xr'][2*n]}, {sPH if c else sPL}"))
    for i in range(8): ops.append(lambda i=i: G['txt'].append(I(f"ds_bpermute_b32 {G['Xt'][i]}, {vBP}, {G['xp'][i]}")))
    ops.append(lambda: (G['Xr'].free(), vBP.free(), G['xp'].free()))
    return ops
def C_st():
    XR = G['XR']
    P.wait(G['txr'])
    q4 = V.alloc(4)
    for n in range(4):
        for r in range(2):
            I(f"v_dot2_f32_bf16 {q4[2*r]}, {XR[4*r+n]}, {sONE}, {0 if n==0 else q4[2*r]}")
            I(f"v_dot2_f32_bf16 {q4[2*r+1]}, {XR[4*r+n]}, {XR[4*r+n]}, {0 if n==0 else q4[2*r+1]}")
    I(f"v_permlane32_swap_b32 {q4[0]}, {q4[2]}")
    I(f"v_permlane32_swap_b32 {q4[1]}, {q4[3]}")
    I(f"v_add_f32 {q4[0]}, {q4[0]}, {q4[2]}")
    I(f"v_add_f32 {q4[1]}, {q4[1]}, {q4[3]}")
    I(f"v_permlane16_swap_b32 {q4[0]}, {q4[1]}")
    I(f"v_add_f32 {q4[0]}, {q4[0]}, {q4[1]}")
    for sh in (8, 4, 2, 1):
        I(f"v_add_f32_dpp {q4[0]}, {q4[0]}, {q4[0]} row_ror:{sh} row_mask:0xf bank_mask:0xf")
    I(f"v_mov_b32 {q4[1]}, {q4[0]}")
    I(f"v_permlane16_swap_b32 {q4[0]}, {q4[1]}")
    finish_stats(q4[0], q4[1], q4[3], t0)
    I(f"v_rsq_f32 {q4[2]}, {t0}")
    I(f"s_lshl_b32 {sT[0]}, s2, 4")
    I(f"s_lshl_b32 {sT[1]}, {sWv}, 12")
    I(f"s_add_u32 {sT[0]}, {sT[0]}, {sT[1]}")
    I(f"s_add_u32 {sT[0]}, {sT[0]}, {STG}")
    I(f"v_cvt_pk_bf16_f32 {q4[0]}, {q4[3]}, {q4[2]}")
    I(f"v_mov_b32 {q4[1]}, {vTag}")
    I(f"v_mov_b32 {q4[2]}, {q4[0]}")
    I(f"v_mov_b32 {q4[3]}, {vTag}")
    I(f"v_permlane32_swap_b32 {q4[0]}, {q4[2]}")
    lane0(t0, sT[0], t1)
    I(f"buffer_store_dwordx4 {q4}, {t0}, {rWS}, 0 offen sc1")
    XR.free(); q4.free()
def finish_stats(vsum, vsq, vnm, vve):
    I(f"v_mul_f32 {vnm}, 0xbb000000, {vsum}")
    I(f"v_mul_f32 {vsq}, 0x3b000000, {vsq}")
    I(f"v_fma_f32 {vve}, -{vnm}, {vnm}, {vsq}")
    I(f"v_max_f32 {vve}, 0, {vve}")
    I(f"v_add_f32 {vve}, 0x3727c5ac, {vve}")
def m_addr():
    G['MA'] = Frags(3); G['vMa'] = vMa = V.alloc()
    I(f"v_and_b32 {t0}, 7, {vL}")
    I(f"v_lshrrev_b32 {t1}, 3, {vL}")
    I(f"v_lshlrev_b32 {vMa}, 4, {t0}")
    I(f"v_lshl_add_u32 {vMa}, {t1}, 12, {vMa}")
    I(f"s_lshl_b32 {sT[0]}, {sKS}, 7")
    I(f"s_add_u32 {sT[0]}, {sT[0]}, {MODG}")
    I(f"v_add_u32 {vMa}, {sT[0]}, {vMa}")
def m_loads(retry=False):
    MA = G['MA']
    if LOC and retry:
        I(f"s_and_b32 {sZ[0]}, {sSpin}, 7")
        I(f"s_cmp_eq_u32 {sZ[0]}, 0")
        I(f"s_cselect_b32 {sZ[0]}, 0, {MODL2-MODG}")
    else: I(f"s_mov_b32 {sZ[0]}, {MODL2-MODG if LOC else 0}")
    out = []
    for j in range(3):
        if j: I(f"s_add_u32 {sZ[0]}, {sZ[0]}, 32768")
        out.append(I(f"buffer_load_dwordx4 {MA.g[j]}, {G['vMa']}, {rWS}, {sZ[0]} offen sc1"))
    return out
def C_wunpack():
    WR = G['WR']
    G['wf'] = wf = Frags(8)
    P.wait(G['twr'])
    for e in range(8):
        for h in range(2):
            unpack(wf[4*e+2*h], WR[2*e+h], 0); unpack(wf[4*e+2*h+1], WR[2*e+h], 1)
def C_m():
    MA = G['MA']
    check_tags([MA[4*j+i] for j in range(3) for i in (1, 3)], lambda: m_loads(True), G['tm'])
    G['vMa'].free()
def m_ops():
    MA = G['MA']; ad = MA[1]; one = MA[3]; on2 = MA[5]
    seq = [f"v_permlane16_swap_b32 {MA[4*j]}, {MA[4*j+2]}" for j in (2, 1, 0)]
    seq += [f"v_add_f32 {MA[4*j]}, {MA[4*j]}, {MA[4*j+2]}" for j in (2, 1, 0)]
    seq += [f"v_add_f32_dpp {MA[4*j]}, {MA[4*j]}, {MA[4*j]} row_ror:8 row_mask:0xf bank_mask:0xf" for j in (2, 1, 0)]
    seq += [f"v_and_b32 {ad}, 7, {vL}", f"v_lshlrev_b32 {ad}, 3, {ad}", f"v_bfe_u32 {one}, {vL}, 4, 1",
            f"v_lshl_add_u32 {ad}, {one}, 2, {ad}", f"v_lshl_add_u32 {ad}, {vHH}, 6, {ad}", f"v_add_u32 {ad}, {sWDs}, {ad}",
            f"v_cvt_f32_u32 {one}, {vHH}"]
    seq += [f"v_cvt_pk_bf16_f32 {MA[4*j]}, {MA[4*j]}, {MA[4*j]}" for j in (2, 1, 0)]
    seq += [f"v_sub_f32 {on2}, 1.0, {one}"]
    seq += [f"v_and_b32 {MA[4*j]}, {sHI}, {MA[4*j]}" for j in (2, 1, 0)]
    seq += [f"v_add_f32 {MA[8]}, {MA[8]}, {on2}", f"v_add_f32 {MA[0]}, {MA[0]}, {one}",
            f"v_cvt_pk_bf16_f32 {MA[8]}, {MA[8]}, {MA[8]}", f"v_cvt_pk_bf16_f32 {MA[0]}, {MA[0]}, {MA[0]}",
            f"v_and_b32 {MA[8]}, {sHI}, {MA[8]}", f"v_and_b32 {MA[0]}, {sHI}, {MA[0]}"]
    seq += [f"ds_write_b32 {ad}, {MA[4*j]} offset:{CBO+128*j}" for j in (2, 1, 0)]
    return [(lambda x=x: I(x)) for x in seq] + [lambda: MA.free()]
sWst = S.alloc()
def w_addr():
    G['vWs'] = vWs = V.alloc(); G['vCw'] = vCw = V.alloc()
    I(f"s_mul_i32 {sWst}, {sCB}, 229376")
    I(f"s_lshl_b32 {sT[1]}, {sM}, 9")
    I(f"s_add_u32 {sWst}, {sWst}, {sT[1]}")
    I(f"s_add_u32 {sWst}, {sWst}, {WP}")
    I(f"s_mul_i32 {sT[1]}, {sKS}, {NA*1024}")
    I(f"s_lshl_b32 {sT[2]}, {sKS}, 10")
    I(f"v_lshrrev_b32 {t0}, 2, {vQ}")
    I(f"v_lshlrev_b32 {vWs}, 10, {t0}")
    I(f"v_add_u32 {vWs}, {sT[1]}, {vWs}")
    I(f"v_lshlrev_b32 {t2}, 15, {t0}")
    I(f"v_add_u32 {t2}, {sT[2]}, {t2}")
    I(f"v_cmp_gt_u32 vcc, {NA}, {t0}")
    I(f"v_mov_b32 {t1}, {OOB}")
    I(f"v_cndmask_b32 {vWs}, {t2}, {vWs}, vcc")
    I(f"v_cmp_gt_u32 vcc, 7, {t0}")
    I(f"v_xor_b32 {t2}, {sM}, {vHH}")
    I(f"v_cndmask_b32 {vWs}, {t1}, {vWs}, vcc")
    I(f"v_lshl_add_u32 {vWs}, {t2}, 6, {vWs}")
    I(f"v_and_b32 {t2}, 3, {vQ}")
    I(f"v_lshl_add_u32 {vWs}, {t2}, 4, {vWs}")
    I(f"v_lshlrev_b32 {vCw}, 6, {t0}")
    I(f"v_lshl_add_u32 {vCw}, {t2}, 2, {vCw}")
    I(f"v_lshl_add_u32 {vCw}, {vHH}, 9, {vCw}")
    I(f"v_add_u32 {vCw}, {sWDs}, {vCw}")
def C_w_reads():
    I(f"v_lshlrev_b32 {t0}, 5, {vHH}")
    I(f"v_add_u32 {t0}, {sWDs}, {t0}")
    G['SBv'] = SBv = Frags(2); G['CBv'] = CBv = Frags(2)
    G['tcb'] = [I(f"ds_read_b128 {CBv[0:4]}, {t0} offset:{CBO+256}"), I(f"ds_read_b128 {CBv[4:8]}, {t0} offset:{CBO+272}"),
                I(f"ds_read_b128 {SBv[0:4]}, {t0} offset:{CBO+192}"), I(f"ds_read_b128 {SBv[4:8]}, {t0} offset:{CBO+208}")]
def wu_ops():
    WR = G['WR']; ops = []
    def st0(): G['wf'] = Frags(8); P.wait(G['twr'])
    ops.append(st0)
    for e in range(8):
        for j in range(4): ops.append(lambda e=e, j=j: unpack(G['wf'][4*e+j], WR[2*e+(j>>1)], j & 1))
    return ops
def w_ops():
    WR = G['WR']; ops = []
    def st0(): G['pr'] = V.alloc(4, 1); G['c1'] = V.alloc(4, 1); G['c2'] = V.alloc(4, 1); P.wait(G['tcb'])
    ops.append(st0)
    G['tws'] = []
    for j in range(4):
        for n in range(4):
            o = 2*(n & 1)
            for ee in range(2):
                ops.append(lambda n=n, j=j, ee=ee, o=o: I(f"v_mul_f32 {G['pr'][o+ee]}, {G['wf'][4*(2*n+ee)+j]}, {G['CBv'][2*n+ee]}"))
            ops.append(lambda n=n, j=j, o=o: I(f"v_cvt_pk_bf16_f32 {WR[4*j+n]}, {G['pr'][o]}, {G['pr'][o+1]}"))
        ops.append(lambda j=j: G['tws'].append(I(f"buffer_store_dwordx4 {WR[4*j:4*j+4]}, {G['vWs']}, {rWS}, {sWst} offen offset:{128*j} sc1")))
    return ops
def c_ops():
    ops = []
    for e in range(8):
        op = "v_mul_f32" if e == 0 else "v_fmac_f32"
        for j in range(4): ops.append(lambda e=e, j=j, op=op: I(f"{op} {G['c1'][j]}, {G['wf'][4*e+j]}, {G['CBv'][e]}"))
        for j in range(4): ops.append(lambda e=e, j=j, op=op: I(f"{op} {G['c2'][j]}, {G['wf'][4*e+j]}, {G['SBv'][e]}"))
    ops.append(None)
    for j in range(4): ops.append(lambda j=j: I(f"v_permlane32_swap_b32 {G['c1'][j]}, {G['c2'][j]}"))
    for j in range(4): ops.append(lambda j=j: I(f"v_add_f32 {G['c1'][j]}, {G['c1'][j]}, {G['c2'][j]}"))
    for j in range(4): ops.append(lambda j=j: I(f"ds_write_b32 {G['vCw']}, {G['c1'][j]} offset:{C12O+16*j}"))
    def fin():
        for k in ('pr', 'CBv', 'SBv', 'vWs', 'wf', 'c1', 'c2', 'vCw', 'WR'): G[k].free()
    ops.append(fin)
    return ops
def C_c12b():
    c8 = V.alloc(8)
    I(f"v_and_b32 {t0}, 127, v0")
    I(f"v_lshlrev_b32 {t0}, 2, {t0}")
    I(f"v_add_u32 {t0}, {WDS0+C12O}, {t0}")
    I(f"v_add_u32 {t1}, {2*WDW0}, {t0}")
    tc = []
    for w in range(4):
        for sel in range(2):
            tc.append(I(f"ds_read_b32 {c8[2*w+sel]}, {t1 if w >= 2 else t0} offset:{WDW0*(w&1) + 512*sel}"))
    I(f"s_lshl_b32 {sT[0]}, {sCB}, 3")
    I(f"s_add_u32 {sT[0]}, {sT[0]}, {sXJ}")
    I(f"s_lshl_b32 {sT[0]}, {sT[0]}, 1")
    I(f"s_add_u32 {sT[0]}, {sT[0]}, {sM}")
    I(f"s_mul_i32 {sT[0]}, {sT[0]}, 896")
    I(f"s_add_u32 {sT[0]}, {sT[0]}, {C12}")
    I(f"v_lshlrev_b32 {t0}, 3, v0")
    I(f"v_mov_b32 {t2}, {OOB}")
    I(f"v_cmp_gt_u32 vcc, 112, v0")
    I(f"v_cndmask_b32 {t0}, {t2}, {t0}, vcc")
    P.wait(tc)
    I(f"v_pk_add_f32 {c8[0:2]}, {c8[0:2]}, {c8[2:4]}")
    I(f"v_pk_add_f32 {c8[4:6]}, {c8[4:6]}, {c8[6:8]}")
    I(f"v_pk_add_f32 {c8[0:2]}, {c8[0:2]}, {c8[4:6]}")
    G['tc12'] = I(f"buffer_store_dwordx2 {c8[0:2]}, {t0}, {rWS}, {sT[0]} offen sc1")
    c8.free()
def A_f3():
    G['vF3'] = V.alloc()
    I(f"s_lshl_b32 {sT[0]}, {sGI}, 5")
    I(f"s_add_u32 {sT[0]}, {sT[0]}, {sKS}")
    I(f"s_lshl_b32 {sT[0]}, {sT[0]}, {FSH}")
    lane0(G['vF3'], sT[0], t1)
def st_addr():
    G['vSt'] = V.alloc()
    I(f"s_lshl_b32 {sT[0]}, {sGI}, 7")
    I(f"s_add_u32 {sT[0]}, {sT[0]}, {STG}")
    I(f"v_and_b32 {t0}, 7, {vL}")
    I(f"v_lshl_add_u32 {G['vSt']}, {t0}, 4, {sT[0]}")
def st_loads():
    SL = G['SL']; out = []
    for w in range(4):
        if w >= 2: I(f"s_movk_i32 {sZ[0]}, {4096*w}")
        out.append(I(f"buffer_load_dwordx4 {SL.g[w]}, {G['vSt']}, {rWS}, {[0, sC4096, sZ[0], sZ[0]][w]} offen sc1"))
    return out
def L_st():
    G['SL'] = Frags(4); G['tsl'] = st_loads()
def C_pre0():
    G['PQ'] = PQ = V.alloc(6)
    I(f"v_lshrrev_b32 {t0}, 3, {vL}")
    I(f"v_lshl_add_u32 {t0}, {t0}, 3, {sWDs}")
    G['tpq'] = [I(f"ds_read_b64 {PQ[2*v:2*v+2]}, {t0} offset:{CBO+64*v}") for v in range(3)]
def C_pre1():
    SL, PQ, Dr = G['SL'], G['PQ'], G['Dr']
    check_tags([SL[2*i+1] for i in range(8)], st_loads, [G['tsl'], G['td']])
    G['vSt'].free()
    for w in range(4):
        g = SL.g[w]
        unpack(g[1], g[2], 1); unpack(g[3], g[2], 0); unpack(g[2], g[0], 0); unpack(g[0], g[0], 1)
    for w in range(4): I(f"v_pk_mul_f32 {SL.g[w][2:4]}, {SL.g[w][2:4]}, {SL.g[w][0:2]}")
    unpack(Dr[1], Dr[0], 1); unpack(Dr[0], Dr[0], 0)
    P.wait(G['tpq'], G['txt'])
    I(f"v_pk_mul_f32 {PQ[0:2]}, {PQ[0:2]}, {PQ[4:6]}")
    I(f"v_pk_mul_f32 {PQ[2:4]}, {PQ[2:4]}, {PQ[4:6]}")
    G['HG'] = Frags(4); G['BS'] = Frags(4)
def C_pre2(c):
    SL, PQ, Dr, HG, BS, Xt, KVt = G['SL'], G['PQ'], G['Dr'], G['HG'], G['BS'], G['Xt'], G['KVt']
    kd = V.alloc(8)
    pr = lambda R, p: R[8*c+2*p:8*c+2*p+2]
    for p in range(4):
        unpack(BS[8*c+2*p], Xt[4*c+p], 0); unpack(BS[8*c+2*p+1], Xt[4*c+p], 1)
        unpack(kd[2*p], KVt[4*c+3-p], 1); unpack(kd[2*p+1], KVt[4*c+3-p], 0)
    for p in range(4): I(f"v_pk_fma_f32 {pr(HG,p)}, {pr(BS,p)}, {SL.g[p][0:2]}, {SL.g[p][2:4]}")
    for p in range(4): I(f"v_pk_mul_f32 {kd[2*p:2*p+2]}, {kd[2*p:2*p+2]}, {Dr} op_sel:[0,{c}] op_sel_hi:[1,{c}]")
    for p in range(4): I(f"v_pk_fma_f32 {pr(HG,p)}, {pr(HG,p)}, {PQ[2:4]}, {PQ[0:2]} op_sel:[0,{c},{c}] op_sel_hi:[1,{c},{c}]")
    for p in range(4): I(f"v_pk_fma_f32 {pr(BS,p)}, {pr(HG,p)}, {kd[2*p:2*p+2]}, {pr(BS,p)}")
    kd.free()
    if c == 1:
        for r in (SL, PQ, Dr, Xt, KVt): r.free()

AWD = A.reserve(0, 224)
order = [(c, it) for c in range(4) for it in range(3)] + [(c, it) for c in range(4) for it in (3, 4)] + [(c, it) for it in (5, 6) for c in range(4)]
FL = 0x8000
sWo = S.alloc()
def wd_src(i): c, it = order[i]; I(f"s_add_u32 {sWo}, {sWD}, {16384*(c*7+it)}")
sR64 = S.alloc(); sDB = S.alloc(); sWD = S.alloc()
sWDs = S.alloc()
def wd_setup():
    G['vWa'] = vWa = V.alloc(); G['vWb'] = vWb = V.alloc(); G['vWr'] = [V.alloc(), V.alloc()]
    if opt('map2', 1):
        I(f"s_lshr_b32 {sR64}, {sGI}, 2")
        I(f"s_lshr_b32 {sT[0]}, {sXJ}, 1")
        I(f"s_lshl_b32 {sT[0]}, {sT[0]}, 3")
        I(f"s_add_u32 {sR64}, {sR64}, {sT[0]}")
        I(f"s_and_b32 {sDB}, {sGI}, 3")
        I(f"s_and_b32 {sT[0]}, {sXJ}, 1")
        I(f"s_lshl_b32 {sT[0]}, {sT[0]}, 2")
        I(f"s_add_u32 {sDB}, {sDB}, {sT[0]}")
    else:
        I(f"s_lshr_b32 {sR64}, {sGI}, 3")
        I(f"s_lshl_b32 {sT[0]}, {sXJ}, 2")
        I(f"s_add_u32 {sR64}, {sR64}, {sT[0]}")
        I(f"s_and_b32 {sDB}, {sGI}, 7")
    I(f"s_mul_i32 {sWD}, {sWv}, {448*1024}")
    I(f"s_lshl_b32 {sT[0]}, {sDB}, 7")
    I(f"s_add_u32 {sWD}, {sWD}, {sT[0]}")
    I(f"v_bfe_u32 {t0}, {vL}, 3, 2")
    I(f"v_lshlrev_b32 {vWa}, 12, {t0}")
    I(f"v_lshl_add_u32 {vWa}, {vHH}, 10, {vWa}")
    I(f"v_bfe_u32 {t0}, {vL}, 4, 1")
    I(f"v_lshlrev_b32 {t0}, 2, {t0}")
    I(f"v_and_b32 {t1}, 7, {vL}")
    I(f"v_xor_b32 {t0}, {t0}, {t1}")
    I(f"v_lshl_add_u32 {vWa}, {t0}, 4, {vWa}")
    I(f"v_add_u32 {vWb}, 1024, {vWa}")
    r0 = G['vWr'][0]
    I(f"v_bfe_u32 {t0}, {vL}, 2, 2")
    I(f"v_lshlrev_b32 {r0}, 7, {t0}")
    I(f"v_lshl_add_u32 {r0}, {vHH}, 9, {r0}")
    I(f"v_bfe_u32 {t0}, {vL}, 3, 1")
    I(f"s_and_b32 {sT[0]}, {sWv}, 1")
    I(f"v_xor_b32 {t0}, {sT[0]}, {t0}")
    I(f"v_lshl_add_u32 {r0}, {t0}, 6, {r0}")
    I(f"v_and_b32 {t0}, 1, {vL}")
    I(f"v_lshl_add_u32 {r0}, {t0}, 5, {r0}")
    I(f"v_bfe_u32 {t0}, {vL}, 4, 1")
    I(f"v_lshl_add_u32 {r0}, {t0}, 4, {r0}")
    I(f"v_bfe_u32 {t0}, {vL}, 1, 1")
    I(f"v_lshl_add_u32 {r0}, {t0}, 3, {r0}")
    I(f"s_mul_i32 {sWDs}, {sWv}, {WDW0}")
    I(f"s_add_u32 {sWDs}, {sWDs}, {WDS0}")
    I(f"v_add_u32 {r0}, {sWDs}, {r0}")
    I(f"v_xor_b32 {G['vWr'][1]}, 64, {r0}")
    G['vWx'] = None
    G['wd'] = dict(nd=0, nr=0, free=[6, 7, 8, 9, 0, 1, 2, 3], ban=set(), slot={}, dt={}, rt={}, ti={}, rd={})
def wd_rebase(sbase, nslots):
    W = G['wd']; assert W['nd'] == W['nr']
    I(f"s_sub_u32 {sT[0]}, {sbase}, {sWDs}")
    I(f"s_mov_b32 {sWDs}, {sbase}")
    for r in G['vWr']: I(f"v_add_u32 {r}, {sT[0]}, {r}")
    W['free'] = list(range(nslots)); W['rt'] = {}; W['ban'] = set()
def wd_dma():
    W = G['wd']; n = W['nd']
    if n >= 28 or not W['free']: return False
    sl = W['free'].pop(0); W['slot'][n] = sl
    P.wait(W['rt'].get(sl))
    I(f"s_add_u32 m0, {sWDs}, {2048*sl}")
    wd_src(n)
    W['dt'][n] = [I(f"buffer_load_dwordx4 {G['vWa']}, {rWD}, {sWo} offen lds"),
                  I(f"buffer_load_dwordx4 {G['vWb']}, {rWD}, {sWo} offen offset:1024 lds")]
    W['nd'] = n+1
    return True
XB = 6*16384
def xoff(sl): k = sl - 100; return (k >> 1)*16384 + (k & 1)*2048
def wd_m0(sl):
    if sl < 100: I(f"s_add_u32 m0, {sWDs}, {2048*sl}")
    else: I(f"s_add_u32 m0, {sWdst}, {XB + xoff(sl)}")
def wd_dma1():
    W = G['wd']; n = W['nd']
    if not W.get('half'):
        if n >= 28 or not W['free']: return False
        sl = W['free'].pop(0); W['slot'][n] = sl
        P.wait(W['rt'].get(sl))
        wd_m0(sl)
        wd_src(n)
        W['dt'][n] = [I(f"buffer_load_dwordx4 {G['vWa']}, {rWD}, {sWo} offen lds")]
        W['half'] = True
    else:
        wd_m0(W['slot'][n])
        I("s_nop 0")
        W['dt'][n].append(I(f"buffer_load_dwordx4 {G['vWb']}, {rWD}, {sWo} offen offset:1024 lds"))
        W['half'] = False; W['nd'] = n+1; W['ti'][n] = max(G.get('now', 0), G.get('lastst', -99) + opt('sl', 44) - opt('wdl', 20))
    return True
def wd_read():
    W = G['wd']; n = W['nr']
    if n >= W['nd']: return False
    sl = W['slot'][n]
    P.wait(W['dt'][n])
    W['rt'][sl] = [I(f"ds_read_b64_tr_b16 {AWD[8*n+4*dt+2*g:8*n+4*dt+2*g+2]}, {G['vWr' if sl < 100 else 'vWx'][dt]} offset:{(2048*sl if sl < 100 else xoff(sl))+1024*g}") for dt in range(2) for g in range(2)]
    W['last'] = W['rt'][sl]; W['rd'][n] = W['rt'][sl]
    if sl not in W['ban']: W['free'].append(sl)
    W['nr'] = n+1
    return True

def conv(side_per=None):
    vAa = V.alloc(); vBa = V.alloc(); vRW = V.alloc()
    I(f"s_lshr_b32 {sT[0]}, {sWv}, 1")
    I(f"s_and_b32 {sT[1]}, {sWv}, 1")
    I(f"s_lshl_b32 {sT[1]}, {sT[1]}, 8")
    I(f"s_mul_i32 {sT[2]}, {sT[0]}, {TCH}")
    I(f"s_add_u32 {sT[2]}, {sT[2]}, {sT[1]}")
    I(f"s_mul_i32 {sT[3]}, {sT[0]}, {UCH}")
    I(f"s_add_u32 {sT[3]}, {sT[3]}, {sT[1]}")
    I(f"s_add_u32 {sT[3]}, {sT[3]}, {UB+480}")
    I(f"v_and_b32 {t0}, 7, {vL}")
    I(f"v_mul_u32_u24 {vAa}, {TCOPY}, {t0}")
    I(f"v_bfe_u32 {t0}, {vL}, 3, 1")
    I(f"v_lshrrev_b32 {t1}, 4, {vL}")
    I(f"v_add_u32 {t0}, {t0}, {t1}")
    I(f"v_lshl_add_u32 {vAa}, {t0}, 4, {vAa}")
    I(f"v_add_u32 {vAa}, {sT[2]}, {vAa}")
    I(f"v_and_b32 {t0}, 15, {vL}")
    I(f"v_lshlrev_b32 {t2}, 5, {t0}")
    I(f"v_lshlrev_b32 {vBa}, 4, {t1}")
    I(f"v_sub_u32 {vBa}, {vBa}, {t2}")
    I(f"v_add_u32 {vBa}, {sT[3]}, {vBa}")
    I(f"v_and_b32 {vRW}, 1, {t1}")
    I(f"v_lshlrev_b32 {vRW}, 12, {vRW}")
    I(f"v_add_u32 {vRW}, {vRW}, {t2}")
    I(f"v_lshrrev_b32 {t1}, 1, {t1}")
    I(f"v_lshl_add_u32 {vRW}, {t1}, 4, {vRW}")
    I(f"s_mul_i32 {sT[0]}, {sWv}, {WDW0}")
    I(f"s_add_u32 {sT[0]}, {sT[0]}, {WDS0+REDO}")
    I(f"v_add_u32 {vRW}, {sT[0]}, {vRW}")
    G['convaddr'] = (vAa, vBa, vRW)
def conv_run(hook=None):
    vAa, vBa, vRW = G['convaddr']
    D = Frags(8); FA = [Frags(8, A), AWD[192:224]]; FB = [AWD[160:192], Frags(8)]
    def reads(n):
        b = n & 1; out = []
        for t in range(8):
            out.append(lambda t=t: I(f"ds_read_b128 {FA[b][4*t:4*t+4]}, {vAa} offset:{TAPS + 64*n + 512*t}"))
            out.append(lambda t=t: I(f"ds_read_b128 {FB[b][4*t:4*t+4]}, {vBa} offset:{512*(7-t) + 64*n}"))
        return out
    ctok = {0: [f() for f in reads(0)]}
    cnt = 0
    for n in range(4):
        b = n & 1
        nxt = reads(n+1) if n < 3 else []
        ctok[n+1] = []
        if n < 3: pairs = sorted([(t, jj) for t in range(8) for jj in range(8-t)], key=lambda p: (max(p), p))
        else: pairs = sorted([(t, jj) for t in range(8) for jj in range(8-t)], key=lambda p: (p[0]+p[1], p))
        seen = set(); done = {}
        if n > 0: P.wait(ctok[n])
        for i, (t, jj) in enumerate(pairs):
            P.wait(ctok[n][2*t], ctok[n][2*jj+1])
            j = t + jj
            first = (n == 0 and j not in seen); seen.add(j)
            I(f"v_mfma_f32_16x16x32_bf16 {D[4*j:4*j+4]}, {FA[b][4*t:4*t+4]}, {FB[b][4*jj:4*jj+4]}, {0 if first else D[4*j:4*j+4]}")
            if nxt and i >= 1 and i % 2 == 1: ctok[n+1].append(nxt.pop(0)())
            if n == 3:
                if t == j: done[j] = i
                for jd, idn in list(done.items()):
                    if i >= idn + opt('rdel', 6):
                        I(f"ds_write_b128 {vRW}, {D[4*jd:4*jd+4]} offset:{512*jd}"); del done[jd]
            if hook: hook(cnt)
            cnt += 1
        while nxt: ctok[n+1].append(nxt.pop(0)())
    for jd in sorted(done): I(f"ds_write_b128 {vRW}, {D[4*jd:4*jd+4]} offset:{512*jd}")
    assert G['wd']['nr'] <= 20
    for r in [FA[0], FB[1], vAa, vBa, vRW, D]: r.free()

sX1 = S.alloc(2)
def x1_addr():
    G['vRr'] = V.alloc(); G['vRr2'] = V.alloc(); G['vXw'] = vXw = V.alloc(); G['vXr'] = vXr = V.alloc(); G['vS2'] = vS2 = V.alloc()
    I(f"v_add_u32 {G['vRr']}, {WDS0+REDO}, {vT16}")
    I(f"v_add_u32 {G['vRr2']}, {WDS0+REDO+2*WDW0}, {vT16}")
    I(f"v_bfe_u32 {t0}, {vL}, 2, 1")
    I(f"v_lshl_add_u32 {vXw}, {t0}, 10, {sWDs}")
    I(f"v_lshrrev_b32 {t0}, 3, {vL}")
    I(f"v_lshl_add_u32 {vXw}, {t0}, 7, {vXw}")
    I(f"v_and_b32 {t0}, 3, {vL}")
    I(f"v_lshl_add_u32 {vXw}, {t0}, 4, {vXw}")
    I(f"v_lshl_add_u32 {vXr}, {t0}, 3, {sWDs}")
    I(f"v_bfe_u32 {t0}, {vL}, 4, 1")
    I(f"v_lshl_add_u32 {vXr}, {t0}, 5, {vXr}")
    I(f"v_bfe_u32 {t0}, {vL}, 2, 2")
    I(f"v_lshl_add_u32 {vXr}, {t0}, 6, {vXr}")
    I(f"v_lshl_add_u32 {vXr}, {vHH}, 9, {vXr}")
    I(f"s_lshl_b32 {sX1[0]}, {sGI}, 6")
    I(f"s_add_u32 {sX1[0]}, {sX1[0]}, {sKS}")
    I(f"s_lshl_b32 {sX1[0]}, {sX1[0]}, 10")
    I(f"s_add_u32 {sX1[0]}, {sX1[0]}, {X1T}")
    I(f"s_add_u32 {sX1[1]}, {sX1[0]}, 32768")
    I(f"s_lshl_b32 {sT[0]}, {sGI}, 13")
    I(f"s_lshl_b32 {sT[1]}, {sXJ}, 9")
    I(f"s_add_u32 {sT[0]}, {sT[0]}, {sT[1]}")
    I(f"s_add_u32 {sT[0]}, {sT[0]}, {S2}")
    I(f"s_cmp_eq_u32 {sWv}, 0")
    I(f"s_cselect_b32 {sT[0]}, {sT[0]}, {OOB}")
    I(f"v_lshl_add_u32 {vS2}, {vQ}, 4, {sT[0]}")
    I(f"v_lshl_add_u32 {vS2}, {vHH}, 12, {vS2}")
def C_y():
    Y = Frags(8); yo = Frags(2)
    tl = []
    for c in range(2):
        for kh in range(2):
            for h in range(2):
                tl.append(I(f"ds_read_b128 {Y[16*c+8*kh+4*h:16*c+8*kh+4*h+4]}, {G['vRr2'] if c else G['vRr']} offset:{kh*WDW0 + 4096*h}"))
    C_pre0()
    G['tys'] = []
    for c in range(2):
        P.wait(tl[4*c:4*c+4])
        for e in range(0, 8, 2): I(f"v_pk_add_f32 {Y[16*c+e:16*c+e+2]}, {Y[16*c+e:16*c+e+2]}, {Y[16*c+8+e:16*c+8+e+2]}")
        for n in range(4): I(f"v_cvt_pk_bf16_f32 {yo[4*c+n]}, {Y[16*c+2*n]}, {Y[16*c+2*n+1]}")
        G['tys'].append(I(f"buffer_store_dwordx4 {yo[4*c:4*c+4]}, {vT16}, {rWS}, {sUY[c]} offen {LST}"))
    for r in [Y, yo, G['vRr'], G['vRr2']]: r.free()
def L_y():
    G['YL'] = YL = Frags(2)
    G['tyl'] = [I(f"buffer_load_dwordx4 {YL[4*c:4*c+4]}, {vGS}, {rWS}, {sC4096 if c else 0} offen sc1") for c in range(2)]
    vGS.free()
def C_x1():
    HG, BS, YL = G['HG'], G['BS'], G['YL']
    yf = V.alloc(8); F = Frags(2); q = V.alloc(4)
    for c in range(2):
        P.wait(G['tyl'][c])
        for p in range(4): unpack(yf[2*p], YL[4*c+p], 0); unpack(yf[2*p+1], YL[4*c+p], 1)
        for p in range(4): I(f"v_pk_fma_f32 {BS[8*c+2*p:8*c+2*p+2]}, {HG[8*c+2*p:8*c+2*p+2]}, {yf[2*p:2*p+2]}, {BS[8*c+2*p:8*c+2*p+2]}")
        for p in range(4): I(f"v_cvt_pk_bf16_f32 {YL[4*c+p]}, {BS[8*c+2*p]}, {BS[8*c+2*p+1]}")
        I(f"ds_write_b128 {G['vXw']}, {YL[4*c:4*c+4]} offset:{XTO+64*c}")
    tl = [I(f"ds_read_b64_tr_b16 {F[4*b+2*g:4*b+2*g+2]}, {G['vXr']} offset:{XTO+1024*b+256*g}") for b in range(2) for g in range(2)]
    I(f"v_lshl_add_u32 {t0}, {vL}, 3, {sWDs}")
    G['tx1'] = []
    for b in range(2):
        P.wait(tl[2*b:2*b+2])
        G['tx1'].append(I(f"buffer_store_dwordx4 {F.g[b]}, {vL16}, {rWS}, {sX1[b]} offen sc1"))
    for r in range(4):
        for b in range(2):
            I(f"v_dot2_f32_bf16 {q[2*b]}, {F[4*b+r]}, {sONE}, {0 if r==0 else q[2*b]}")
            I(f"v_dot2_f32_bf16 {q[2*b+1]}, {F[4*b+r]}, {F[4*b+r]}, {0 if r==0 else q[2*b+1]}")
    I(f"v_permlane32_swap_b32 {q[0]}, {q[2]}")
    I(f"v_permlane32_swap_b32 {q[1]}, {q[3]}")
    I(f"v_pk_add_f32 {q[0:2]}, {q[0:2]}, {q[2:4]}")
    I(f"ds_write_b64 {t0}, {q[0:2]} offset:{S2O}")
    for r in (HG, BS, YL, yf, F, q, G['vXw'], G['vXr']): r.free()
def C_s2():
    q = V.alloc(8)
    I(f"v_lshlrev_b32 {t0}, 3, {vL}")
    I(f"v_add_u32 {t0}, {WDS0+S2O}, {t0}")
    tl = [I(f"ds_read_b64 {q[2*w:2*w+2]}, {t0} offset:{WDW0*w}") for w in range(4)]
    P.wait(tl)
    I(f"v_pk_add_f32 {q[0:2]}, {q[0:2]}, {q[2:4]}")
    I(f"v_pk_add_f32 {q[4:6]}, {q[4:6]}, {q[6:8]}")
    I(f"v_add_f32 {q[2]}, {q[1]}, {q[5]}")
    I(f"v_add_f32 {q[0]}, {q[0]}, {q[4]}")
    I(f"v_mov_b32 {q[1]}, {vTag}")
    I(f"v_mov_b32 {q[3]}, {vTag}")
    I(f"buffer_store_dwordx4 {q[0:4]}, {G['vS2']}, {rWS}, 0 offen sc1")
    q.free(); G['vS2'].free()

sRB = S.alloc(); sC1 = S.alloc(); sWsrc = S.alloc(); sWdst = S.alloc()
def A_g1():
    G['vF8'] = vF8 = V.alloc(); G['vPA'] = vPA = V.alloc(); G['vP3'] = vP3 = V.alloc()
    I(f"s_and_b32 {sRB}, {sXJ}, 1")
    I(f"s_lshl_b32 {sRB}, {sRB}, 3")
    I(f"s_lshr_b32 {sT[0]}, {sGI}, 2")
    I(f"s_add_u32 {sRB}, {sRB}, {sT[0]}")
    I(f"s_lshr_b32 {sC1}, {sXJ}, 1")
    I(f"s_lshl_b32 {sC1}, {sC1}, 2")
    I(f"s_and_b32 {sT[0]}, {sGI}, 3")
    I(f"s_add_u32 {sC1}, {sC1}, {sT[0]}")
    I(f"s_lshl_b32 {sT[0]}, {sC1}, 6")
    I(f"v_add_lshl_u32 {vP3}, {vL}, {sT[0]}, {FSH}")
    I(f"s_lshl_b32 {sT[0]}, {sGI}, 5")
    I(f"s_add_u32 {sT[0]}, {sT[0]}, {sKS}")
    I(f"v_lshlrev_b32 {vF8}, 10, {vL}")
    I(f"v_add_lshl_u32 {vF8}, {vF8}, {sT[0]}, {FSH}")
    I(f"v_mov_b32 {t1}, {OOB}")
    I(f"v_cmp_gt_u32 vcc, 4, {vL}")
    I(f"s_lshr_b32 {sT[0]}, {sXJ}, 1")
    I(f"s_lshl_b32 {sT[0]}, {sT[0]}, 4")
    I(f"s_add_u32 {sT[0]}, {sT[0]}, {sRB}")
    I(f"s_lshl_b32 {sT[0]}, {sT[0]}, 1")
    I(f"s_lshr_b32 {sT[1]}, {sWv}, 1")
    I(f"s_add_u32 {sT[0]}, {sT[0]}, {sT[1]}")
    I(f"s_lshl_b32 {sT[0]}, {sT[0]}, 5")
    I(f"v_add_lshl_u32 {vPA}, {vQ}, {sT[0]}, {FSH}")
    I(f"v_cndmask_b32 {vF8}, {t1}, {vF8}, vcc")
    I(f"s_mul_i32 {sWsrc}, {sC1}, 229376")
    I(f"s_lshl_b32 {sWdst}, {sWv}, 12")
    I(f"s_add_u32 {sWsrc}, {sWsrc}, {sWdst}")
    I(f"s_add_u32 {sWsrc}, {sWsrc}, {WP}")
def w_dma(src_off, dst_off, n0=0, n1=4):
    I(f"s_add_u32 m0, {sWdst}, {WL + dst_off}")
    I(f"s_add_u32 {sT[0]}, {sWsrc}, {src_off}")
    return [I(f"buffer_load_dwordx4 {vL16}, {rWS}, {sT[0]} offen offset:{1024*n} sc1 lds") for n in range(n0, n1)]
def wd_burst(n):
    for _ in range(n):
        if not wd_dma():
            wd_read(); wd_dma()
flag_setup(); m_addr()
vpf = V.alloc()
if LOC:
    flag_load(vpf, G['vFp'], F1); flag_load(vpf, G['vFp'], FY); m_loads()
if opt('sfine'): stamp('touch')
A_mod()
LATE = opt('late', 0)
def ftouch():
    if opt('ftouch', 1):
        flag_load(vpf, G['vF3'], F3); flag_load(vpf, G['vF8'], F4)
        I(f"s_lshl_b32 {sT[0]}, {sRB}, 2")
        I(f"s_add_u32 {sT[0]}, {sT[0]}, {sWv}")
        I(f"s_lshl_b32 {sT[0]}, {sT[0]}, 4")
        I(f"s_add_u32 {sT[0]}, {sT[0]}, {sC1}")
        I(f"s_lshl_b32 {sT[0]}, {sT[0]}, {FSH}")
        I(f"v_min_u32 {t0}, 3, {vL}")
        I(f"v_lshl_add_u32 {t0}, {t0}, 15, {sT[0]}")
        flag_load(vpf, t0, F5)
def setup2():
    zero_pads(); A_mod2(); conv(); wd_setup()
def setup3():
    w_addr(); x1_addr(); st_addr(); A_f3(); A_g1(); ftouch()
if LATE < 2: setup2()
if opt('sfine'): stamp('su2')
if LATE < 1: setup3()
def wd_touch():
    I(f"s_mul_i32 {sT[0]}, s2, 7168")
    I(f"s_add_u32 {sT[1]}, {sT[0]}, 3072")
    for c in range(2): I(f"buffer_load_dwordx4 {PT}, {vT16}, {rWD}, {sT[c]} offen")
def afterk():
    L_xr(); L_mod()
    if opt('early', 1) >= 1: L_taps()
G['afterk'] = afterk
C_tag(); C_kv(); stamp("kv st")
if opt('cpf', 0) in (1, 2): cpa.free(); cpd.free()
if opt('early', 1) < 1: L_taps()
if opt('early', 1) >= 2: L_w()
if opt('wdt', 1) == -1: wd_touch()
if LATE >= 2: setup2()
if LATE >= 1: setup3()
C_st(); stamp("st")
C_mod(); stamp("mod1")
P.wait(G['tks']); post_local(G['vFo'], F1)
def midmod():
    stamp("mod2")
    tc = [0]
    def thk():
        tc[0] += 1
        if tc[0] == opt('f1i', 1): G['tpf'] = flag_load(vpf, G['vFp'], F1)
        if tc[0] == opt('f1c', 5):
            check_local(vpf, G['vFp'], G['vFo'], F1, G['tpf']); L_u(); G['tm'] = m_loads()
    C_taps(thk); stamp("taps")
G['midmod'] = midmod
C_mod2()
if opt('early', 1) < 2: L_w()
if opt('wdt', 1) == 1: wd_touch()
if opt('cpf', 0) == 3:
    ca = V.alloc(2)
    I(f"s_getpc_b64 {sTp2}")
    I(f"s_and_b32 {sTp2[0]}, {sTp2[0]}, 0xffffff00")
    I(f"s_and_b32 {sT[5]}, {sGI}, 7")
    I(f"s_min_u32 {sT[5]}, {sT[5]}, 4")
    I(f"s_lshl_b32 {sT[5]}, {sT[5]}, 12")
    I(f"s_add_u32 {sTp2[0]}, {sTp2[0]}, {sT[5]}")
    I(f"s_addc_u32 {sTp2[1]}, {sTp2[1]}, 0")
    I(f"v_mov_b32 {ca[1]}, {sTp2[1]}")
    I(f"v_add_co_u32 {ca[0]}, vcc, {sTp2[0]}, {vT16}")
    I(f"v_addc_co_u32 {ca[1]}, vcc, 0, {ca[1]}, vcc")
    I(f"global_load_dwordx4 {PT}, {ca}, off")
    ca.free()
C_u(); stamp("U ok")
P.wait_all(vm=False); I("s_barrier")
stamp("bar")
cside = []
H2, WDC = opt('h2', 4), opt('wdc', 8)
def hook(c):
    if c >= opt('hx', 40) and c < opt('hx', 40) + 16 and c % 2 == 0: L_x1((c - opt('hx', 40))//2)
    if c == opt('hx', 40) + 18: L_d()
    if c == H2: C_m(); cside.extend(m_ops() + [C_w_reads, None, None, None] + wu_ops() + w_ops() + c_ops() + x_ops())
    if c == opt('hst', 100): L_st()
    if opt('wdt', 1) > 1 and c == opt('wdt', 1): wd_touch()
    if c == opt('hf3', 130): assert len(G['tws']) == 4; P.wait(G['tws']); post_flag(G['vF3'], F3); G['vF3'].free()
    W = G['wd']
    if c == opt('wdban', 60): W['ban'] = {6, 7, 8, 9}; W['free'] = [x for x in W['free'] if x < 6]
    if c >= opt('wd0', 16) and c % (WDC//2) == 0 and W['nd'] < opt('wdmax', 8): wd_dma1()
    if c > opt('wdr0', 70) and c % WDC == 2 and W['nr'] < opt('wdrmax', 4): wd_read()
    if c == 107: assert all(W['slot'][n] < 6 for n in range(W['nr'], W['nd'])), "RED slots still in use"
    if opt('cfine') and c in (35, 71, 107): stamp(f'c{c}')
    k = 0
    while cside and k < (1 if (c < 108 and c % 2 == 1) else 2):
        f = cside.pop(0); k += 1
        if f: f()
conv_run(hook)
PT.free()
stamp("conv")
print('cside left', len(cside), file=sys.stderr)
for f in cside:
    if f: f()
P.wait_all(vm=False); I("s_barrier")
C_y(); stamp("y st")
print('wd after conv', G['wd']['nd'], G['wd']['nr'], file=sys.stderr)
vP3 = G['vP3']; vPA = G['vPA']; vp3 = V.alloc()
if opt('wda', 4):
    while wd_read(): pass
    for _ in range(opt('wda', 4)): wd_dma()
C_pre1()
P.wait(G['tys']); post_local(G['vFo'], FY); stamp("FY post")
C_pre2(0)
tpf = flag_load(vpf, G['vFp'], FY)
tp3 = flag_load(vp3, vP3, F3)
C_pre2(1)
check_local(vpf, G['vFp'], G['vFo'], FY, tpf); G['vFp'].free(); G['vFo'].free(); vTagL.free(); vpf.free()
L_y(); stamp("FY ok")
wch = {}
def w_group(): i = len(wch); wch[i] = w_dma(16384*i, 16384*i)
F3E = opt('f3e', 1)
def f3chk():
    check_tags([vp3], lambda: flag_load(vp3, vP3, F3), tp3)
if F3E:
    f3chk()
    for _ in range(opt('w1', 2)): w_group()
C_c12b()
C_x1(); stamp("x1 st")
if not F3E: f3chk()
for _ in range(opt('w15', 2)): w_group()
while wd_read(): pass
P.wait(G['tx1']); post_flag(G['vF8'], F4); G['vF8'].free()
stamp("F4 post")
sDQ = S.alloc(); gb2 = V.alloc(4); vGb = V.alloc(); vGB = V.alloc()
I(f"s_and_b32 {sT[3]}, {sWv}, 1")
I(f"s_lshl_b32 {sT[3]}, {sT[3]}, 5")
I(f"s_lshl_b32 {sDQ}, {sDB}, 6")
I(f"s_add_u32 {sDQ}, {sDQ}, {sT[3]}")
I(f"s_lshl_b32 {sT[0]}, {sDQ}, 3")
I(f"s_add_u32 {sT[0]}, {sT[0]}, {MODG + 5*16384}")
I(f"v_lshl_add_u32 {vGb}, {vQ}, 3, {sT[0]}")
I(f"v_lshl_add_u32 {vGb}, {vHH}, 13, {vGb}")
def gb_ld():
    return [I(f"buffer_load_dwordx2 {gb2[2*n:2*n+2]}, {vGb}, {rWS}, {sC4096 if n else 0} offen sc1") for n in range(2)]
tgb = gb_ld()
P.wait_all(vm=False); I("s_barrier")
C_s2()
while len(wch) < 5: w_group()
I("s_barrier")
NPRE = opt('npre', 8); NP4 = opt('np4', 7)
vp4 = V.alloc()
while len(wch) < NPRE:
    if len(wch) == NP4: tp4 = flag_load(vp4, vPA, F4)
    w_group()
if NP4 >= NPRE: tp4 = flag_load(vp4, vPA, F4)
stamp("W pre")
for r in (rK, rV, rSH): r.free()
sXsrc = S.alloc(); sXdst = S.alloc(); sSB = S.alloc(); sHS = S.alloc(); sSG = S.alloc()
I(f"s_lshl_b32 {sSB}, {sRB}, 2")
I(f"s_add_u32 {sSB}, {sSB}, {sWv}")
I(f"s_lshl_b32 {sXsrc}, {sSB}, 15")
I(f"s_add_u32 {sXsrc}, {sXsrc}, {X1T}")
I(f"s_mul_i32 {sXdst}, {sWv}, {XSW}")
I(f"s_add_u32 {sXdst}, {sXdst}, {XS}")
I(f"s_mul_i32 {sHS}, {sSB}, 112")
I(f"s_mul_i32 {sT[0]}, {sC1}, 7")
I(f"s_add_u32 {sHS}, {sHS}, {sT[0]}")
I(f"s_lshl_b32 {sHS}, {sHS}, 10")
I(f"s_add_u32 {sHS}, {sHS}, {HH}")
I(f"s_lshl_b32 {sSG}, {sSB}, 12")
I(f"s_add_u32 {sSG}, {sSG}, {S2}")
ACC = [V.alloc(16) for _ in range(NA+2)]
vAd = V.alloc(); vAd2 = V.alloc(); vEx = V.alloc(); vL16b = V.alloc(); vF5 = V.alloc()
I(f"v_bfe_u32 {t0}, {vL}, 2, 3")
I(f"v_lshlrev_b32 {vAd}, 7, {t0}")
I(f"v_bfe_u32 {t0}, {vL}, 4, 1")
I(f"v_xor_b32 {t0}, {t0}, {vHH}")
I(f"v_lshl_add_u32 {vAd}, {t0}, 6, {vAd}")
I(f"v_and_b32 {t0}, 3, {vL}")
I(f"v_lshl_add_u32 {vAd}, {t0}, 4, {vAd}")
I(f"v_add_u32 {vAd2}, 65536, {vAd}")
I(f"v_lshlrev_b32 {vEx}, 4, {vQ}")
I(f"v_add_u32 {vEx}, {EX}, {vEx}")
I(f"v_add_u32 {vL16b}, 4096, {vL16}")
vCl = V.alloc(); vCe = V.alloc(); sCL = S.alloc()
I(f"s_mul_i32 {sCL}, {sC1}, {8*1792}")
I(f"s_mul_i32 {sT[0]}, {sWv}, 448")
I(f"s_add_u32 {sCL}, {sCL}, {sT[0]}")
I(f"s_add_u32 {sCL}, {sCL}, {C12}")
I(f"v_min_u32 {t0}, 27, {vQ}")
I(f"v_mul_u32_u24 {vCl}, {4*1792}, {vHH}")
I(f"v_lshl_add_u32 {vCl}, {t0}, 4, {vCl}")
I(f"s_and_b32 {sT[0]}, {sWv}, 1")
I(f"s_mul_i32 {sT[0]}, {sT[0]}, 56")
I(f"v_lshl_add_u32 {t0}, {t0}, 1, {vHH}")
I(f"v_add_u32 {t0}, {sT[0]}, {t0}")
I(f"s_lshr_b32 {sT[0]}, {sWv}, 1")
I(f"s_lshl_b32 {sT[0]}, {sT[0]}, 8")
I(f"s_add_u32 {sT[0]}, {sT[0]}, {EX}")
I(f"v_and_b32 {t1}, 15, {t0}")
I(f"v_lshl_add_u32 {vCe}, {t1}, 4, {sT[0]}")
I(f"v_lshrrev_b32 {t0}, 4, {t0}")
I(f"v_lshl_add_u32 {vCe}, {t0}, 9, {vCe}")
I(f"s_lshl_b32 {sT[0]}, {sSB}, 4")
I(f"s_add_u32 {sT[0]}, {sT[0]}, {sC1}")
I(f"s_lshl_b32 {sT[0]}, {sT[0]}, {FSH}")
lane0(vF5, sT[0], t1)
if G['wd']['nr'] < 28: wd_rebase(sXdst, 3)
for _ in range(opt('wdb', 0)): wd_dma()
check_tags([gb2[1], gb2[3]], gb_ld, tgb)
I(f"v_add_f32 {gb2[0]}, {gb2[0]}, {gb2[2]}")
I(f"v_mov_b32 {gb2[1]}, {gb2[0]}")
I(f"v_permlane32_swap_b32 {gb2[0]}, {gb2[1]}")
I(f"v_add_f32 {gb2[0]}, {gb2[0]}, {gb2[1]}")
round_bf16(vGB, gb2[0])
gb2.free(); vGb.free()
check_tags([vp4], lambda: flag_load(vp4, vPA, F4), tp4)
vPA.free(); vp4.free()
published = set(g for g in wch if wch[g][-1][1] < P.vm_done)
stamp("F4 ok")

Bf = Frags(32)
btok = {}
def b_next():
    ks = len(btok)
    if ks >= 32: return False
    if ks and ks % 4 == 0: I(f"s_add_u32 {sXsrc}, {sXsrc}, 4096")
    btok[ks] = I(f"buffer_load_dwordx4 {Bf.g[ks]}, {vL16}, {rWS}, {sXsrc} offen offset:{1024*(ks&3)} sc1")
    return True
for _ in range(opt('b0', 12)): b_next()
I("s_barrier")
AR = A.reserve(224, 32)
SGX = Frags(4); BX = SGX.g[0]; hp = SGX.g[1]; vRS2 = V.alloc()
TMP = ACC[NA+1]
jobs = [(it, ks, ks*NA+it) for ks in range(32) for it in range(NA)]
XD = opt('xd', 10)
tl_ = [(NA, ks, NA*32 + ks) for ks in range(32)]
jobs += tl_[:XD] + [(it, 'x', None) for it in range(NA+1)] + tl_[XD:]
for it in range(NA+1, 7):
    jobs += [(it, 'x', None)] + [(it, ks, it*32 + ks) for ks in range(32)]
NJ = len(jobs); TT = {it: 33*it for it in range(NA, 8)}; T4, T5, T6 = 132, 165, 198; XA = 32*NA + XD
first_job = {}; last_job = {}
for n, (it, ks, fr) in enumerate(jobs):
    if fr is not None:
        first_job.setdefault(fr//16, n); last_job[fr//16] = n
accmap = {it: it % (NA+2) for it in range(7)}
def job_read(n):
    it, ks, fr = jobs[n]
    dst = AR[4*(n%8):4*(n%8)+4]
    if ks == 'x': return I(f"ds_read_b128 {dst}, {vEx} offset:{512*it}")
    assert fr//16 in published, (n, fr)
    off = ((fr//16) % NG)*16384 + (fr % 16)*1024
    if off < 65536: return I(f"ds_read_b128 {dst}, {vAd} offset:{off}")
    return I(f"ds_read_b128 {dst}, {vAd2} offset:{off-65536}")
LOOK = 6
atok = {}
for n in range(LOOK): atok[n] = job_read(n)
stamp("g1 start")

class VM:
    def __init__(self, f): self.f = f
    def __call__(self): return self.f()
side = []
def c12_ops():
    ops = []; tk = []
    CL = TMP
    def l(g):
        if g == 2: I(f"s_add_u32 {sCL}, {sCL}, 3584")
        tk.append(I(f"buffer_load_dwordx4 {CL[4*g:4*g+4]}, {vCl}, {rWS}, {sCL} offen offset:{(g&1)*1792} sc1"))
    for g in range(4): ops.append(lambda g=g: l(g))
    ops2 = [lambda: P.wait(tk)]
    for st in (2, 1):
        for g in range(st):
            for h in range(4):
                ops2.append(lambda g=g, st=st, h=h: I(f"v_add_f32 {CL[4*g+h]}, {CL[4*g+h]}, {CL[4*(g+st)+h]}"))
    ops2.append(None)
    for h in range(2): ops2.append(lambda h=h: I(f"v_permlane32_swap_b32 {CL[h]}, {CL[2+h]}"))
    for h in range(2): ops2.append(lambda h=h: I(f"v_add_f32 {CL[h]}, {CL[h]}, {CL[2+h]}"))
    seq = [f"v_cvt_pk_bf16_f32 {CL[5]}, {CL[0]}, {CL[1]}",
           f"v_lshlrev_b32 {CL[2]}, 16, {CL[5]}",
           f"v_and_b32 {CL[3]}, {sHI}, {CL[5]}",
           f"v_sub_f32 {CL[0]}, {CL[0]}, {CL[2]}",
           f"v_sub_f32 {CL[1]}, {CL[1]}, {CL[3]}",
           f"v_cvt_pk_bf16_f32 {CL[4]}, {CL[2]}, {CL[0]}",
           f"v_cvt_pk_bf16_f32 {CL[6]}, {CL[1]}, {CL[3]}",
           f"v_mov_b32 {CL[7]}, 0"]
    for s_ in seq: ops2.append(lambda s_=s_: I(s_))
    ops2.append(lambda: G.__setitem__('tex', I(f"ds_write_b128 {vCe}, {CL[4:8]}")))
    ops2.append(lambda: (vCl.free(), vCe.free()))
    return ops, ops2
def sg_loads(j0=0, j1=4):
    return [I(f"buffer_load_dwordx4 {SGX.g[j]}, {vL16}, {rWS}, {sSG} offen offset:{1024*j} sc1") for j in range(j0, j1)]
def stats2_ops(tk):
    ops = [lambda: check_tags([SGX[2*i+1] for i in range(8)], sg_loads, tk)] + [None]*6
    for j in range(2):
        for i in (0, 2): ops.append(lambda i=i, j=j: I(f"v_add_f32 {SGX[4*j+i]}, {SGX[4*j+i]}, {SGX[8+4*j+i]}"))
    Z = SGX.g[2]; a, b, c, d = Z[0], Z[1], Z[2], Z[3]; e = SGX.g[3][0]
    seq = [f"v_add_f32 {a}, {SGX[0]}, {SGX[4]}", f"v_add_f32 {c}, {SGX[2]}, {SGX[6]}",
           f"v_mov_b32 {b}, {a}", f"v_mov_b32 {d}, {c}", None,
           f"v_permlane32_swap_b32 {a}, {b}", f"v_permlane32_swap_b32 {c}, {d}",
           f"v_add_f32 {a}, {a}, {b}", f"v_add_f32 {c}, {c}, {d}",
           f"v_mul_f32 {b}, 0xbb000000, {a}", f"v_mul_f32 {c}, 0x3b000000, {c}",
           f"v_fma_f32 {d}, -{b}, {b}, {c}", f"v_max_f32 {d}, 0, {d}", f"v_add_f32 {d}, 0x3727c5ac, {d}",
           f"v_sqrt_f32 {c}, {d}", f"v_rcp_f32 {vRS2}, {d}",
           f"v_cmp_eq_u32 vcc, 0, {vHH}",
           f"v_mov_b32 {BX[3]}, 0",
           f"v_cndmask_b32 {b}, 0, {b}, vcc", f"v_cndmask_b32 {c}, 0, {c}, vcc",
           f"v_cvt_pk_bf16_f32 {BX[0]}, {b}, {b}",
           f"v_cvt_pk_bf16_f32 {e}, {c}, {c}",
           f"v_and_b32 {a}, {sHI}, {BX[0]}", f"v_and_b32 {e}, {sHI}, {e}",
           f"v_sub_f32 {b}, {b}, {a}", f"v_sub_f32 {c}, {c}, {e}",
           f"v_cvt_pk_bf16_f32 {BX[1]}, {b}, {e}",
           f"v_cvt_pk_bf16_f32 {BX[2]}, {e}, {c}"]
    for s_ in seq: ops.append((lambda s_=s_: I(s_)) if s_ else None)
    return ops
hst = {}
def epilogue(it):
    ac = ACC[accmap[it]]; ops = []
    for r in range(8): ops.append(lambda r=r: I(f"v_mul_f32 {ac[r]}, {ac[r]}, {ac[8+r]}"))
    for r in range(8): ops.append(lambda r=r: I(f"v_mul_f32 {ac[r]}, {ac[r]}, {vRS2}"))
    for n in range(4): ops.append(lambda n=n: I(f"v_cvt_pk_bf16_f32 {hp[n]}, {ac[2*n]}, {ac[2*n+1]}"))
    def st():
        G['lastst'] = G['now']
        hst[it] = I(f"buffer_store_dwordx4 {hp}, {vL16 if it < 4 else vL16b}, {rWS}, {sHS} offen offset:{1024*(it&3)} sc1")
    ops.append(VM(st)); ops.append(None)
    return ops
def lvl_flag(level, tiles):
    def f():
        P.wait([hst[t] for t in tiles])
        post_flag(vF5, F5 + level*FL)
    return f
def epoch_store():
    I(f"s_or_b32 {sT[0]}, s2, {sWv}")
    I(f"s_cselect_b32 {sT[0]}, {OOB}, {EPOCH}")
    lane0(t0, sT[0], t1)
    I(f"buffer_store_dword {vTag}, {t0}, {rWS}, 0 offen sc1")
sSQ = S.alloc(); sH0 = S.alloc(); sH1 = S.alloc()
ht = {}; hreg = {}; hfree = []
def h_load(i, st):
    c, it = order[i]; n = c*7 + it
    hreg[i, st] = r = hfree.pop(0)
    I(f"s_add_u32 {sT[0]}, {sH1 if st else sH0}, {1024*n}")
    ht[i, st] = I(f"buffer_load_dwordx4 {r}, {vL16}, {rWS}, {sT[0]} offen sc1")
def g2_setup_ops():
    seq = [f"s_lshr_b32 {sT[3]}, {sWv}, 1", f"s_lshl_b32 {sSQ}, {sR64}, 1", f"s_add_u32 {sSQ}, {sSQ}, {sT[3]}",
           f"s_mul_i32 {sT[4]}, {sWv}, 28", f"s_mul_i32 {sH0}, {sSQ}, 112", f"s_add_u32 {sH0}, {sH0}, {sT[4]}",
           f"s_lshl_b32 {sH0}, {sH0}, 10", f"s_add_u32 {sH0}, {sH0}, {HH}",
           f"s_xor_b32 {sT[3]}, {sSQ}, 1", f"s_mul_i32 {sH1}, {sT[3]}, 112", f"s_add_u32 {sH1}, {sH1}, {sT[4]}",
           f"s_lshl_b32 {sH1}, {sH1}, 10", f"s_add_u32 {sH1}, {sH1}, {HH}",
           f"v_and_b32 {t1}, 1, {vL}", f"v_lshlrev_b32 {t1}, 4, {t1}", f"v_bfe_u32 {t2}, {vL}, 1, 2", f"v_add_u32 {t1}, {t1}, {t2}",
           f"s_lshl_b32 {sT[3]}, {sR64}, 5", f"s_lshl_b32 {sT[4]}, {sWv}, 2", f"s_add_u32 {sT[3]}, {sT[3]}, {sT[4]}",
           f"v_add_lshl_u32 {vP5}, {t1}, {sT[3]}, {FSH}"]
    return [(lambda x=x: I(x)) for x in seq]
def res_loads():
    I(f"s_lshl_b32 {sT[0]}, {sSQ}, 15")
    I(f"s_lshl_b32 {sT[1]}, {sDQ}, 6")
    I(f"s_add_u32 {sT[0]}, {sT[0]}, {sT[1]}")
    I(f"s_add_u32 {sT[0]}, {sT[0]}, {X1T}")
    I(f"v_lshl_add_u32 {t0}, {vHH}, 9, {vL16}")
    G['txq'] = [I(f"buffer_load_dwordx4 {XQ[4*n:4*n+4]}, {t0}, {rWS}, {sT[0]} offen offset:{512*n} sc1") for n in range(2)]
c12a, c12b = c12_ops()
sgt = []
wq = []
VSP, BL, WD0, WDL = opt('vsp', 2), opt('bl', 36), opt('wdg', 4), opt('wdl', 20)
vq = []; lastv = -99; lastd = -99
WP_, WDP_, HP0 = opt('wp', 6), opt('wdp', 2), opt('hp0', T6+6)
N6, NC1, NS1, NC2, NS2 = opt('n6', 6), opt('nc1', XA-64), opt('ns1', XA-58), opt('nc2', XA-38), opt('ns2', XA-26)
nextg = NPRE; lastw = -99; xdone = set()
for n, (it, ks, fr) in enumerate(jobs):
    need = [g for g in first_job if g not in published and first_job[g] - LOOK <= n + 1]
    freeable = nextg < 14 and (nextg - NG < 0 or last_job[nextg-NG] < n) and n % opt('fb', 32) == opt('fbo', 2)
    exw = (n == XA - 8)
    if exw: assert 'tex' in G
    if need or freeable or exw:
        ready = [g for g in wch if g not in published and len(wch[g]) == 4 and (g in need or wch[g][-1][1] < P.vm_done)]
        for g in need: assert g in ready, (n, g)
        P.wait([wch[g] for g in ready], atok[n], G.get('tex') if exw else None)
        I("s_barrier"); published |= set(ready)
        for g in (6, 7):
            if opt('xs', 1) and last_job[g] < n and g not in xdone:
                xdone.add(g); G['wd']['free'] = [100 + 2*(g-6), 101 + 2*(g-6)] + G['wd']['free']
                if G['vWx'] is None:
                    G['vWx'] = [V.alloc(), V.alloc()]
                    I(f"s_sub_u32 {sT[5]}, {sWdst}, {sWDs}"); I(f"s_add_u32 {sT[5]}, {sT[5]}, {XB}")
                    for k_ in range(2): I(f"v_add_u32 {G['vWx'][k_]}, {sT[5]}, {G['vWr'][k_]}")
        if opt('dbg'): print(f'\nbar n={n} need={need} ready={ready} lastst', G.get('lastst'), file=sys.stderr)
        while nextg < 14 and (nextg - NG < 0 or last_job[nextg-NG] < n):
            wch[nextg] = []
            for q in range(4): wq.append((first_job[nextg] - opt('wlead', 200), first_job[nextg], lambda g=nextg, q=q: wch[g].extend(w_dma(16384*g, 16384*(g % NG), q, q+1))))
            nextg += 1
    if n in ((32, 64, 96, 128, T5, T6) if not opt('fine') else tuple(range(8, 231, 8))): stamp(f"n{n}")
    if 'win' in OPT and opt('win') <= n < opt('win') + 56*opt('wst', 1) and (n - opt('win')) % opt('wst', 1) == 0: stamp(f'w_{n}'); I(f'; job {n}')
    if n % 2 == 0: P.wait(atok[n], atok.get(n+1), btok.get(ks))
    else: P.wait(atok[n], btok.get(ks))
    ac = ACC[accmap[it]]
    bsrc = BX if ks == 'x' else Bf[4*ks:4*ks+4]
    first = (ks == 0 and it <= NA) or (ks == 'x' and it > NA)
    I(f"v_mfma_f32_32x32x16_bf16 {ac}, {AR[4*(n%8):4*(n%8)+4]}, {bsrc}, {0 if first else ac}")
    if it == 6 and ks != 'x': hfree.append(Bf.g[ks])
    if n + LOOK < NJ: atok[n+LOOK] = job_read(n+LOOK)
    budget = 4
    G['now'] = n
    Wd = G['wd']; vm0 = P.vm
    if n - lastv >= VSP and not any(isinstance(x, VM) for x in side[:3]):
        bdue = len(btok) < 32 and len(btok)*NA - n < BL
        if vq: vq.pop(0)(); budget = 2
        elif bdue: b_next(); budget = 2
        elif wq and wq[0][1] - n < opt('wurg', 300): wq.pop(0)[2](); budget = 1
        elif G.get('l0') and len(hfree) > 1 and len(ht) < 24:
            i = len(ht); h_load(i//2, i % 2); budget = 2
        elif n >= WD0 and n - lastd >= WDP_ and wd_dma1(): lastd = n; budget = 0
        elif wq and n >= wq[0][0]: wq.pop(0)[2](); budget = 1
    if P.vm == vm0 and Wd['nr'] < Wd['nd'] and n - Wd['ti'].get(Wd['nr'], -99) >= WDL: wd_read(); budget = 0
    if n == N6: vq += [epoch_store]
    if n == NC1 - 24: vq += [lambda: G.__setitem__('tp6', flag_load(vp3, vP3, F4))]
    if n == NC1: side += [lambda: (check_tags([vp3], lambda: flag_load(vp3, vP3, F4), G['tp6']), vp3.free(), vP3.free(), vq.extend(c12a))]
    if n == NS1:
        for j in range(4): vq += [lambda j=j: sgt.extend(sg_loads(j, j+1))]
    if n == NC2: side += c12b
    if n == NS2: side += stats2_ops(sgt)
    if n == XA - 1: assert not side, len(side)
    if n == XA + NA + 1:
        SGX.g[2].free(); SGX.g[3].free()
        XQ = Frags(2); vP5 = V.alloc(); vp5 = V.alloc()
        for e in range(NA): side += epilogue(e)
    if n == T4 + 4: side += g2_setup_ops()
    for e in range(NA, 6):
        if n == TT[e+1] + 3: side += epilogue(e)
    if n == opt('l0p', 168): vq += [lvl_flag(0, (0, 1, 2))]
    if n == opt('l1p', 210): vq += [lvl_flag(1, (3, 4))]
    if n == HP0 - opt('l0w', 14): vq += [lambda: G.__setitem__('tp5', flag_load(vp5, vP5, F5))]
    if n == HP0: side += [lambda: (check_tags([vp5], lambda: flag_load(vp5, vP5, F5), G['tp5']), G.__setitem__('l0', True), vq.append(res_loads))]
    k = 0
    while side and k < budget:
        if isinstance(side[0], VM) and (P.vm != vm0 or n - lastv < VSP): break
        f = side.pop(0); k += 1
        if f: f()
    if P.vm != vm0: lastv = n
    for e in range(NA+2, 7):
        if n == TT[e] - 1: assert e - NA - 2 in hst
for f in side:
    if f: f()
for f in vq: f()
if G['wd'].get('half'): wd_dma1()
assert not wq
print('wd progress', G['wd']['nd'], G['wd']['nr'], 'hh early', len(ht), file=sys.stderr)
def h_next():
    i = len(ht)
    if i < G['hlim'] and hfree: h_load(i//2, i % 2); return True
    return False
G['hlim'] = 24
h_next(); h_next()
for f in epilogue(6):
    if f: f()
stamp("g1 done")
for r in ACC + [BX, vRS2, vAd, vAd2, vEx]: r.free()
I("s_barrier")

GA = [V.alloc(16) for _ in range(4)]
HD = opt('hd', 20)
while len(ht) < opt('hd0', 10): h_next()
PL = {1: (opt('p1', 1), opt('p1c', 6), 40), 2: (opt('p2', 9), opt('p2c', 14), 48), 3: (opt('p3', 15), opt('p3c', 20), 56)}
mj = [(i, q) for i in range(24) for q in range(4)] + [(i, q) for q in (1, 2, 3, 0) for i in range(24, 28)]
red = []
for m, (i, q) in enumerate(mj):
    c, it = order[i]; n = c*7 + it; dt, st = q & 1, q >> 1
    if (i, st) not in ht:
        raise RuntimeError(f"hh {i} not issued")
    if opt('gfine') and m % 8 == 0: stamp(f'm{m}')
    P.wait(ht[i, st], G['wd']['rd'][i])
    I(f"v_mfma_f32_32x32x16_bf16 {GA[q]}, {AWD[8*i+4*dt:8*i+4*dt+4]}, {hreg[i, st]}, {0 if i==0 else GA[q]}")
    if i < 24 and dt == 1: hfree.append(hreg[i, st])
    G['now'] = NJ + 8 + m; Wd = G['wd']
    if m % 2 == 0 and Wd['nr'] < 28:
        if Wd['nr'] < Wd['nd'] and G['now'] - Wd['ti'].get(Wd['nr'], -99) >= WDL: wd_read()
        else: wd_dma1()
    if len(ht) < 2*i + HD + 2 and (m % 2 == 1 or len(ht) < 2*i + opt('hmin', 10)): h_next()
    if q == 0 and i < 24:
        for lv, (pi_, pc_, lim) in PL.items():
            if i == pc_:
                check_tags([vp5], lambda lv=lv: flag_load(vp5, vP5, F5 + lv*FL), G['tp']); G['hlim'] = lim; opt('gfine') or stamp(f"L{lv} ok")
        for lv, (pi_, pc_, lim) in PL.items():
            if i == pi_: G['tp'] = flag_load(vp5, vP5, F5 + lv*FL)
        if i == opt('l2p', 2): lvl_flag(2, (5,))()
        if i == opt('l3p', 8): lvl_flag(3, (6,))()
        if i == 2:
            I(f"v_lshl_add_u32 {t0}, {vQ}, 2, {sXdst}")
            I(f"ds_write_b32 {t0}, {vGB} offset:6144")
        if i == 21:
            G['GB'] = GB = [hfree.pop() for _ in range(4)]
            I(f"v_lshlrev_b32 {t1}, 6, {vHH}")
            I(f"v_add_u32 {t1}, {sXdst}, {t1}")
            for n_ in range(4): I(f"ds_read_b128 {GB[n_]}, {t1} offset:{6144+16*n_}")
        if i == 21:
            G['XF'] = XF = [hfree.pop() for _ in range(4)]
            P.wait(G['txq'])
            for rho in range(8):
                red.append(lambda rho=rho: (unpack(XF[rho//2][2*(rho%2)], XQ[rho], 0), unpack(XF[rho//2][2*(rho%2)+1], XQ[rho], 1)))
        if i == 23:
            G['RA'] = RA = hfree.pop()
            for qq in range(1, 4):
                red.append(lambda qq=qq: (I(f"s_xor_b32 {sT[0]}, {sWv}, {qq}"), I(f"s_mul_i32 {sT[0]}, {sT[0]}, 12288"), I(f"v_add_u32 {RA[qq]}, {sT[0]}, {vL16}")))
            red.append(lambda: (I(f"s_mul_i32 {sT[0]}, {sWv}, 12288"), I(f"v_add_u32 {RA[0]}, {sT[0]}, {vL16}")))
            red.append(lambda: (I(f"s_lshl_b32 {sT[2]}, {sSQ}, 15"), I(f"s_lshl_b32 {sT[1]}, {sDQ}, 1"), I(f"s_add_u32 {sT[2]}, {sT[2]}, {sT[1]}"), I(f"s_add_u32 {sT[3]}, {sT[2]}, 16384")))
            red.append(lambda: (I(f"v_lshrrev_b32 {t1}, 2, {vL}"), I(f"v_lshlrev_b32 {t1}, 10, {t1}"), I(f"v_and_b32 {t2}, 3, {vL}"), I(f"v_lshl_add_u32 {t1}, {t2}, 4, {t1}")))
            red.append(lambda: (I(f"v_lshlrev_b32 {t2}, 6, {vQ}"), I(f"v_lshl_add_u32 {t2}, {vHH}, 5, {t2}"), I(f"v_add_u32 {t2}, {sXdst}, {t2}"), I(f"v_add_u32 {t0}, {sXdst}, {vL16}")))
    if m >= 101 and (m - 101) // 4 < 2:
        qq = (m - 101)//4 + 1; r = (m - 101) % 4
        I(f"ds_write_b128 {G['RA'][qq]}, {GA[qq][4*r:4*r+4]} offset:{(qq-1)*4096 + r*1024}")
    elif m >= 109:
        r = m - 109
        I(f"ds_write_b128 {G['RA'][3]}, {GA[3][4*r:4*r+4]} offset:{2*4096 + r*1024}")
    elif red: red.pop(0)()
assert not red
I(f"ds_write_b128 {G['RA'][3]}, {GA[3][12:16]} offset:{2*4096 + 3*1024}")
stamp("g2 mfma")
GB, XF, RA = G['GB'], G['XF'], G['RA']
P.wait_all(vm=False)
I("s_barrier")
tl = {}
for r in range(4):
    tl[r] = [I(f"ds_read_b128 {GA[q][4*r:4*r+4]}, {RA[0]} offset:{(q-1)*4096 + r*1024}") for q in range(1, 4)]
OST = OPT.get('ost', '')
for r in range(4):
    P.wait(tl[r])
    for h in (0, 2): I(f"v_pk_add_f32 {GA[1][4*r+h:4*r+h+2]}, {GA[1][4*r+h:4*r+h+2]}, {GA[2][4*r+h:4*r+h+2]}")
    for h in (0, 2): I(f"v_pk_add_f32 {GA[0][4*r+h:4*r+h+2]}, {GA[0][4*r+h:4*r+h+2]}, {GA[3][4*r+h:4*r+h+2]}")
    for h in (0, 2): I(f"v_pk_add_f32 {GA[0][4*r+h:4*r+h+2]}, {GA[0][4*r+h:4*r+h+2]}, {GA[1][4*r+h:4*r+h+2]}")
    for h in (0, 2): I(f"v_pk_fma_f32 {XF[r][h:h+2]}, {GA[0][4*r+h:4*r+h+2]}, {GB[r][h:h+2]}, {XF[r][h:h+2]}")
    for h in (0, 2): I(f"v_cvt_pk_bf16_f32 {XQ[2*r+h//2]}, {XF[r][h]}, {XF[r][h+1]}")
    if r % 2: I(f"ds_write_b128 {t2}, {XQ[2*r-2:2*r+2]} offset:{4096 + 8*(r-1)}")
tl = [I(f"ds_read_b128 {GB[h]}, {t0} offset:{4096+1024*h}") for h in range(2)]
for h in range(2):
    P.wait(tl[h])
    I(f"buffer_store_dwordx4 {GB[h]}, {t1}, {rOUT}, {sT[2+h]} offen {OST}")
stamp("end")
if TSTAMP:
    P.wait_all()
    stamp("drained")
    n = nts[0]
    I("s_waitcnt lgkmcnt(0)")
    I(f"v_writelane_b32 {vTs}, {sTp[n&1][0]}, {n-2}")
    I(f"v_writelane_b32 {vTs}, {sTp[(n+1)&1][0]}, {n-1}")
    I(f"v_subrev_u32 {vTs}, {sT0[0]}, {vTs}")
    I(f"s_memrealtime {sTp[0]}")
    I("s_waitcnt lgkmcnt(0)")
    I(f"v_writelane_b32 {vTs}, {sR0[0]}, 62")
    I(f"v_writelane_b32 {vTs}, {sTp[0][0]}, 63")
    I(f"v_writelane_b32 {vTs}, {sSpin}, 61")
    I(f"s_lshl_b32 {sT[0]}, s2, 10")
    I(f"s_add_u32 {sT[0]}, {sT[0]}, {TS}")
    I(f"v_lshlrev_b32 {t0}, 2, v0")
    I(f"buffer_store_dword {vTs}, {t0}, {rWS}, {sT[0]} offen")
    print(f"\nNTS={n}", file=sys.stderr)
if PROBE:
    I("s_waitcnt lgkmcnt(0)")
    I(f"s_sub_u32 {sT[0]}, {sTp[0][0]}, {sT0[0]}")
    I(f"s_mul_i32 {sT[0]}, {sT[0]}, {opt('pmul', 4)}")
    I(f"s_min_u32 {sT[0]}, {sT[0]}, 100000")
    I(f"s_memrealtime {sT0}")
    I("L_spin:")
    I(f"s_memrealtime {sTp[0]}")
    I("s_waitcnt lgkmcnt(0)")
    I(f"s_sub_u32 {sT[1]}, {sTp[0][0]}, {sT0[0]}")
    I(f"s_cmp_lt_u32 {sT[1]}, {sT[0]}")
    I("s_cbranch_scc1 L_spin")
I("L_end:")
I("s_endpgm")
P.ins.extend(slow)
if opt('cpf', 0):
    I(".fill 1536, 4, 0xbf800000")

body = P.finalize()
ref = open(f"cdna_kernels/{NAME}.s.ref").read()
hdr = "".join(l + "\n" for l in ref.split("\n") if l.startswith(";") and "@launch" not in l)
out = hdr + f"; @launch grid=(256,1,1) block=(256,1,1) lds={LDS_SIZE}\n"
out += f"""; NTS={nts[0] if TSTAMP else 0} LAYOUT=10 WSOFF={WSOFF}
.amdgcn_target "amdgcn-amd-amdhsa--gfx950"
.text
.globl {NAME}_kernel
.p2align 8
.type {NAME}_kernel,@function
{NAME}_kernel:
{body}
.section .rodata,"a"
.p2align 6
.amdhsa_kernel {NAME}_kernel
  .amdhsa_next_free_vgpr 512
  .amdhsa_next_free_sgpr 102
  .amdhsa_accum_offset 256
  .amdhsa_group_segment_fixed_size 0
  .amdhsa_kernarg_size 120
  .amdhsa_user_sgpr_count 2
  .amdhsa_user_sgpr_kernarg_segment_ptr 1
  .amdhsa_system_sgpr_workgroup_id_x 1
.end_amdhsa_kernel
"""
dst = [a for a in sys.argv[1:] if not a.startswith('--')][0]
open(dst, "w").write(out)
print(f"instrs {len(P.ins)} nops {P.nops} vgpr hi {V.hi} sgpr hi {S.hi}", file=sys.stderr)
```

```python
import re

class RegPool:
    def __init__(self, n, prefix):
        self.n = n; self.free_ = [True]*n; self.prefix = prefix; self.hi = 0
    def alloc(self, cnt=1, align=None):
        if align is None: align = 1 if cnt == 1 else 2
        for b in range(0, self.n-cnt+1, align):
            if all(self.free_[b:b+cnt]):
                for i in range(b, b+cnt): self.free_[i] = False
                self.hi = max(self.hi, b+cnt)
                return Reg(self.prefix, b, cnt, self)
        raise RuntimeError(f"out of {self.prefix} registers (need {cnt})")
    def reserve(self, b, cnt):
        for i in range(b, b+cnt):
            assert self.free_[i], (self.prefix, i)
            self.free_[i] = False
        self.hi = max(self.hi, b+cnt)
        return Reg(self.prefix, b, cnt, self)
    def nfree(self): return sum(self.free_)

class Reg:
    def __init__(self, p, b, n, pool=None):
        self.p = p; self.b = b; self.n = n; self.pool = pool
    def __str__(self):
        return f"{self.p}{self.b}" if self.n == 1 else f"{self.p}[{self.b}:{self.b+self.n-1}]"
    def __getitem__(self, i):
        if isinstance(i, slice):
            s = i.start or 0; e = self.n if i.stop is None else i.stop
            assert 0 <= s < e <= self.n, (s, e, self.n)
            return Reg(self.p, self.b+s, e-s)
        assert 0 <= i < self.n, (i, self.n)
        return Reg(self.p, self.b+i, 1)
    def free(self):
        for i in range(self.b, self.b+self.n):
            assert not self.pool.free_[i]
            self.pool.free_[i] = True

REG_RE = re.compile(r'\b([vas])(\d+)\b|\b([vas])\[(\d+):(\d+)\]|\b(vcc|exec|m0|scc)\b|\b(vcc_lo|vcc_hi|exec_lo|exec_hi)\b')
def regs_of(op):
    out = set()
    for m in REG_RE.finditer(op):
        if m.group(1): out.add((m.group(1), int(m.group(2))))
        elif m.group(3):
            for i in range(int(m.group(4)), int(m.group(5))+1): out.add((m.group(3), i))
        elif m.group(6): out.add((m.group(6), 0))
        elif m.group(7): out.add((m.group(7)[:-3], 0))
    return out

TRANS = ('v_exp_f32','v_log_f32','v_rcp_f32','v_rsq_f32','v_sqrt_f32','v_sin_f32','v_cos_f32')
class Ins:
    __slots__ = ('text','op','ops','kind','dst','src','passes','srcA','srcB','srcC','dpp','inl')
    def __init__(self, text):
        self.text = text; self.inl = False
        t = text.split(';')[0].strip()
        self.dst = set(); self.src = set(); self.kind = 'other'; self.passes = 0
        self.srcA = self.srcB = self.srcC = set(); self.dpp = False
        if not t or t.endswith(':') or t.startswith('.'):
            self.op = ''; self.kind = 'label' if t.endswith(':') else 'none'; return
        sp = t.split(None, 1); op = self.op = sp[0]
        rest = sp[1] if len(sp) > 1 else ''
        ops = [o.strip() for o in re.split(r',(?![^\[]*\])', rest)] if rest else []
        self.ops = ops
        R = [regs_of(o) for o in ops]
        allr = set().union(*R) if R else set()
        if op.startswith('v_mfma'):
            self.kind = 'mfma'; self.dst = R[0]; self.srcA = R[1]; self.srcB = R[2]; self.srcC = R[3]
            self.src = R[1] | R[2] | R[3]
            self.passes = 8 if '32x32' in op else 4
        elif op.startswith('v_'):
            self.kind = 'valu'
            self.dpp = ('dpp' in op) or ('row_' in rest) or ('quad_perm' in rest)
            if op.startswith('v_cmp'):
                self.dst = R[0]; self.src = set().union(*R[1:])
                if op.startswith('v_cmpx'): self.dst = self.dst | {('exec',0)}
            elif op.startswith('v_permlane') and 'swap' in op:
                self.dst = R[0] | R[1]; self.src = R[0] | R[1]
            elif '_co_' in op:
                self.dst = R[0] | R[1]; self.src = set().union(*R[2:])
            else:
                self.dst = R[0]; self.src = set().union(*R[1:]) if len(R) > 1 else set()
                if op.startswith(('v_fmac','v_dot2c','v_pk_fmac')) or self.dpp: self.src |= R[0]
                if op.startswith('v_cndmask') and len(ops) == 3: self.src |= {('vcc',0)}
        elif op.startswith('ds_'):
            self.kind = 'ds'
            if 'read' in op or 'bpermute' in op or 'swizzle' in op or 'permute' in op or '_rtn' in op:
                self.dst = R[0]; self.src = set().union(*R[1:])
            else: self.src = allr
        elif op.startswith(('buffer_','global_')):
            self.kind = 'vmem'
            islds = bool(re.search(r'\blds\b', rest)) or '_lds_' in op
            if 'load' in op and not islds:
                self.dst = R[0]; self.src = set().union(*R[1:])
            else:
                self.src = allr
                if islds: self.src = self.src | {('m0',0)}
        elif op.startswith('s_'):
            self.kind = 'salu'
            if op.startswith(('s_load','s_buffer_load','s_memtime','s_memrealtime')): self.kind = 'smem'
            if op.startswith(('s_cmp','s_cbranch','s_branch','s_waitcnt','s_barrier','s_nop','s_endpgm','s_sleep','s_setprio')):
                self.src = allr
            else:
                self.dst = R[0] if R else set(); self.src = set().union(*R[1:]) if len(R) > 1 else set()
                if 'saveexec' in op: self.dst = self.dst | {('exec',0)}
    def states(self):
        if self.kind in ('label','none'): return 0
        if self.op == 's_nop': return int(self.ops[0], 0)+1
        return 1

def isv(r): return r[0] in ('v','a')
def iss(r): return r[0] in ('s','vcc')

def need_states(p, c):
    n = 0
    if p.kind == 'valu':
        vd = {r for r in p.dst if isv(r)}; sd = {r for r in p.dst if iss(r)}
        if c.kind == 'mfma' and vd & c.src: n = max(n, 2)
        if c.kind == 'valu':
            if c.dpp and vd & c.src: n = max(n, 2)
            if c.op.startswith('v_permlane') and vd & c.src: n = max(n, 2)
            if c.op.startswith(('v_readlane','v_readfirstlane')) and vd & c.src: n = max(n, 1)
            if p.op.startswith(TRANS) and vd & c.src: n = max(n, 1)
            if sd & c.src: n = max(n, 4 if c.op.startswith(('v_readlane','v_writelane')) else 2)
            if p.op.startswith('v_dot'):
                if vd & (c.src | c.dst):
                    same_acc = (c.op == p.op) and not (vd & set().union(*[regs_of(o) for o in c.ops[1:3]]))
                    if not same_acc: n = max(n, 3)
            if ('op_sel' in p.text or 'sdwa' in p.text) and vd & (c.src | c.dst) and not p.op.startswith('v_pk'): n = max(n, 1)
        if p.op.startswith('v_dot') and c.kind in ('mfma','vmem','ds') and vd & (c.src | c.dst): n = max(n, 3)
        if c.kind == 'vmem' and sd & c.src: n = max(n, 5)
        if c.kind in ('salu','smem') and sd & c.src: n = max(n, 4)
        if c.op.startswith('s_cbranch_vcc') and ('vcc',0) in p.dst: n = max(n, 5)
        if ('exec',0) in p.dst and c.kind in ('valu','mfma'): n = max(n, 5)
    if p.kind == 'salu':
        if ('m0',0) in p.dst and ('m0',0) in c.src and c.kind in ('vmem','ds'): n = max(n, 1)
    if p.kind == 'mfma':
        big = 12 if p.passes == 8 else 8
        if c.kind == 'mfma':
            if p.dst & (c.srcA | c.srcB): n = max(n, big)
            if p.dst & c.srcC and not (p.dst == c.srcC and p.passes == c.passes): n = max(n, big-2)
            if p.dst & c.dst and not (p.dst == c.srcC): n = max(n, big)
        elif c.kind in ('valu','vmem','ds'):
            if p.dst & (c.src | c.dst): n = max(n, big)
            if c.kind == 'valu' and p.srcC & c.dst: n = max(n, 7 if p.passes == 8 else 3)
    if p.kind == 'vmem' and ('store' in p.op) and ('x4' in p.op or 'x3' in p.op):
        data = regs_of(p.ops[0]) if p.op.startswith('buffer') else regs_of(p.ops[1])
        if data & c.dst: n = max(n, 2)
    if p.kind == 'ds' and 'write_b128' in p.op:
        if regs_of(p.ops[1]) & c.dst and c.kind == 'valu': n = max(n, 2)
    return n

class Prog:
    def __init__(self):
        self.ins = []
        self.vm = 0; self.lg = 0
        self.vm_done = 0; self.lg_done = 0
        self.V = RegPool(256, 'v'); self.A = RegPool(256, 'a'); self.S = RegPool(102, 's')
        self.nlabel = 0
    def I(self, text):
        tok = None
        for line in str(text).split('\n'):
            line = line.strip()
            if not line: continue
            i = Ins(line); self.ins.append(i)
            if i.kind == 'vmem': tok = ('vm', self.vm); self.vm += 1
            elif i.kind == 'ds': tok = ('lg', self.lg); self.lg += 1
        return tok
    def wait(self, *toks):
        vm = lg = None
        def flat(ts):
            for t in ts:
                if t is None: continue
                if isinstance(t, (list, tuple)) and not (len(t) == 2 and t[0] in ('vm','lg')): yield from flat(t)
                else: yield t
        for k, i in flat(toks):
            if k == 'vm' and i >= self.vm_done: vm = i if vm is None else max(vm, i)
            if k == 'lg' and i >= self.lg_done: lg = i if lg is None else max(lg, i)
        parts = []
        if vm is not None:
            n = min(self.vm - vm - 1, 63); parts.append(f"vmcnt({n})"); self.vm_done = self.vm - n
        if lg is not None:
            n = min(self.lg - lg - 1, 15); parts.append(f"lgkmcnt({n})"); self.lg_done = self.lg - n
        if parts: self.I("s_waitcnt " + " ".join(parts))
    def wait_all(self, vm=True, lg=True):
        parts = []
        if vm: parts.append("vmcnt(0)"); self.vm_done = self.vm
        if lg: parts.append("lgkmcnt(0)"); self.lg_done = self.lg
        self.I("s_waitcnt " + " ".join(parts))
    def label(self, base='L'):
        self.nlabel += 1; return f"{base}_{self.nlabel}"
    def finalize(self):
        out = []; nn = 0
        for c in self.ins:
            if c.kind not in ('label','none'):
                need = 0; dist = 0
                for p in reversed(out):
                    if dist >= 20: break
                    r = need_states(p, c) - dist
                    if r > need: need = r
                    if c.inl or not p.inl: dist += p.states()
                while need > 0:
                    k = min(need, 16); out.append(Ins(f"s_nop {k-1}")); out[-1].inl = c.inl; need -= k; nn += 1
            out.append(c)
        self.nops = nn
        return "\n".join(("" if i.kind == 'label' else "  ") + i.text for i in out)
```

```python
import sys
from dsl import *

NAME = "adaLN_cond__ssm_conv_h3__glu_gated_bilinear__prompt"
OPT = {}
for a_ in sys.argv[1:]:
    if a_.startswith('--'):
        k, _, v = a_[2:].partition('='); OPT[k] = v if v else '1'
def opt(k, d=0): return type(d)(OPT.get(k, d))
TSTAMP = opt('ts')
PROBE = tuple(int(x) for x in OPT['probe'].split(',')) if 'probe' in OPT else None
TSOP = 's_memrealtime' if opt('rt') else 's_memtime'
NTS_ = OPT.get("nt", "m")
def nt(k): return "nt" if k in NTS_ else ""
NT = nt("k")

EPOCH=0; F3=0x10000; F4=0x40000; F5=0x60000; F1=0x800000; FY=0x820000; S2=0x840000
MODG=0x90000; STG=0xA8000; C12=0xB0000; MODL2=0x880000
KVG=0x100000; XG=0x500000; X1T=0x900000; WP=0xB00000; WDP=0xF00000; HH=0x1100000; SG=0x1800000; TS=0x1900000
WS_SIZE=0x1A00000
OOB=0x80000000
FSH=opt('fsh', 4); F6=0x18000 if FSH <= 5 else 0xF0000
UB=0; UCH=4608; MODL=9216; CBL=10240; C12L=11264
TAPS=15360; TCOPY=4160; TCH=33280
RED=131072
WL=0; XS=131072; XSW=7168; EX=159744; NG=8
XTO=8192; C12O=10240; CBO=11264; S2O=11776
WDS0=81920; WDW0=20480; REDO=12288
LDS_SIZE=163840
NA = opt('na', 3)

P = Prog(); I = P.I; V = P.V; A = P.A; S = P.S
S.reserve(0, 3); V.reserve(0, 1)
def srd(): return S.alloc(4, 4)
rX, rK, rV, rSH, rTP, rW, rWD, rC, rWM, rOUT, rWS, rD = [srd() for _ in range(12)]
sPG = S.alloc(2, 2); sPU = S.alloc(2, 2)
sXJ = S.alloc(); sGI = S.alloc(); sWv = S.alloc(); sSpin = S.alloc()
sT = [S.alloc() for _ in range(6)]
sZ = [S.alloc() for _ in range(2)]
sC4096 = S.alloc()
sPL = S.alloc(); sPH = S.alloc(); sHI = S.alloc(); sONE = S.alloc()
sD0 = S.alloc()
sTp = [S.alloc(2, 2), S.alloc(2, 2)]; sT0 = S.alloc(2, 2)

class Frags:
    def __init__(self, n, pool=None): self.g = [(pool or V).alloc(4) for _ in range(n)]
    def __getitem__(self, i):
        if isinstance(i, slice):
            assert i.start//4 == (i.stop-1)//4
            return self.g[i.start//4][i.start%4:(i.stop-1)%4+1]
        return self.g[i//4][i%4]
    def free(self):
        for g in self.g: g.free()

nts = [0]
def stamp(name=""):
    if 'win' in OPT and not (name.startswith('w_') or name in ('end', 'drained')): return
    n = nts[0]; nts[0] += 1
    if 'gap' in OPT and n in [int(x) for x in OPT['gap'].split(',')]:
        L = P.label('gap'); I(f's_branch {L}'); I(f".fill {opt('gapn', 1023)}, 4, 0xbf800000"); I(f'{L}:')
    if PROBE:
        if n == PROBE[0]: I(f"s_memrealtime {sT0}")
        if n == PROBE[1]: I(f"s_memrealtime {sTp[0]}")
        return
    if not TSTAMP: return
    if n >= 2: I(f"v_writelane_b32 {vTs}, {sTp[n&1][0]}, {n-2}")
    I(f"{TSOP} {sTp[n&1]}")
    print(f"{n}:{name}", file=sys.stderr, end="  ")

slow = []
def check_tags(tags, reissue, toks):
    R = P.label("chk"); SL = P.label("slow"); D = P.label("ok")
    P.wait(toks)
    mn = V.alloc(); mx = V.alloc()
    I(f"{R}:")
    tg = list(tags)
    if len(tg) == 1:
        I(f"v_cmp_ne_u32 vcc, {tg[0]}, {vTag}")
    else:
        if len(tg) % 2: tg.append(tg[0])
        for i in range(0, len(tg), 2):
            I(f"v_min3_u32 {mn}, {vTag if i==0 else mn}, {tg[i]}, {tg[i+1]}")
            I(f"v_max3_u32 {mx}, {vTag if i==0 else mx}, {tg[i]}, {tg[i+1]}")
        I(f"v_cmp_ne_u32 vcc, {mn}, {mx}")
    INL = opt('inl', 0)
    if INL: I(f"s_cbranch_vccz {D}")
    else:
        I(f"s_cbranch_vccnz {SL}")
        I(f"{D}:")
    mn.free(); mx.free()
    save = (P.ins, P.vm, P.lg, P.vm_done, P.lg_done)
    P.ins = []
    I(f"{SL}:")
    if opt('nap', 0): I(f"s_sleep {opt('nap', 0)}")
    I(f"s_add_u32 {sSpin}, {sSpin}, 1")
    I(f"s_cmp_gt_u32 {sSpin}, 200000")
    I(f"s_cbranch_scc1 {D}")
    reissue()
    I("s_waitcnt vmcnt(0)")
    I(f"s_branch {R}")
    for x_ in P.ins: x_.inl = bool(INL)
    (save[0] if INL else slow).extend(P.ins)
    P.ins, P.vm, P.lg, P.vm_done, P.lg_done = save
    if INL: I(f"{D}:")

def post_flag(vaddr, base):
    I(f"s_mov_b32 {sZ[0]}, {base}")
    return I(f"buffer_store_dword {vTag}, {vaddr}, {rWS}, {sZ[0]} offen sc1")
def flag_load(vp, vaddr, base):
    I(f"s_mov_b32 {sZ[0]}, {base}")
    return I(f"buffer_load_dword {vp}, {vaddr}, {rWS}, {sZ[0]} offen sc1")
def poll(vaddr, base):
    vp = V.alloc()
    t = flag_load(vp, vaddr, base)
    check_tags([vp], lambda: flag_load(vp, vaddr, base), t)
    vp.free()
sRel = S.alloc()
def post_local(vaddr, base):
    if not LOC: return post_flag(vaddr, base)
    I(f"s_mov_b32 {sZ[0]}, {base}")
    return I(f"buffer_store_dword {vTagL}, {vaddr}, {rWS}, {sZ[0]} offen")
def check_local(vp, vpoll, vown, base, tok):
    if not LOC: return check_tags([vp], lambda: flag_load(vp, vpoll, base), tok)
    SL = P.label("lslow"); D = P.label("lok"); RL = P.label("lrel"); AG = P.label("lagain"); NR = P.label("lnorel")
    P.wait(tok)
    I(f"v_cmp_ne_u32 vcc, {vp}, {vTagL}")
    INL = opt('inll', 0)
    if INL: I(f"s_cbranch_vccz {D}")
    else:
        I(f"s_cbranch_vccnz {SL}")
        I(f"{D}:")
    save = (P.ins, P.vm, P.lg, P.vm_done, P.lg_done)
    P.ins = []
    I(f"{SL}:")
    I(f"s_mov_b32 {sRel}, 0")
    I(f"{AG}:")
    I(f"s_add_u32 {sSpin}, {sSpin}, 1")
    I(f"s_cmp_gt_u32 {sSpin}, 200000")
    I(f"s_cbranch_scc1 {D}")
    flag_load(vp, vpoll, base)
    I("s_waitcnt vmcnt(0)")
    I(f"v_cmp_ne_u32 vcc, {vp}, {vTagL}")
    I(f"s_cbranch_vccz {D}")
    I(f"s_cmp_ge_u32 {sRel}, 0x10000")
    I(f"s_cbranch_scc1 {NR}")
    I(f"s_add_u32 {sRel}, {sRel}, 1")
    I(f"s_cmp_ge_u32 {sRel}, {opt('ltry', 40)}")
    I(f"s_cbranch_scc1 {RL}")
    I(f"v_cmp_eq_u32 vcc, {vp}, {vTag}")
    I(f"s_cbranch_vccz {AG}")
    I(f"{RL}:")
    I("buffer_wbl2 sc1")
    I("s_waitcnt vmcnt(0)")
    post_flag(vown, base)
    I(f"s_mov_b32 {sRel}, 0x10000")
    I(f"{NR}:")
    I(f"v_cmp_ne_u32 vcc, {vp}, {vTagL}")
    I(f"v_cmp_ne_u32 {sTp2}, {vp}, {vTag}")
    I(f"s_and_b64 {sTp2}, vcc, {sTp2}")
    I(f"s_cbranch_scc1 {AG}")
    I("s_waitcnt vmcnt(0)")
    I(f"s_branch {D}")
    for x_ in P.ins: x_.inl = bool(INL)
    (save[0] if INL else slow).extend(P.ins)
    P.ins, P.vm, P.lg, P.vm_done, P.lg_done = save
    if INL: I(f"{D}:")
def unpack(dst, src, hi):
    I(f"v_and_b32 {dst}, {sHI}, {src}" if hi else f"v_lshlrev_b32 {dst}, 16, {src}")
def round_bf16(dst, src):
    I(f"v_cvt_pk_bf16_f32 {dst}, {src}, {src}")
    I(f"v_and_b32 {dst}, {sHI}, {dst}")
def lane0(dst, sval, tmp):
    I(f"v_mov_b32 {dst}, {OOB}")
    I(f"v_writelane_b32 {dst}, {sval}, 0")

I("s_cmp_ge_u32 s2, 256")
I("s_cbranch_scc1 L_end")
if PROBE and PROBE[0] == -1: I(f"s_memrealtime {sT0}")
if TSTAMP:
    I(f"{TSOP} {sT0}")
    sR0 = S.alloc(2, 2); I(f"s_memrealtime {sR0}")
for r, off in ((rK,8),(rV,16),(rSH,24),(rWS,112),(rC,80),(rWM,88),(rX,0),(rTP,32),(rWD,72),(rOUT,96)):
    I(f"s_load_dwordx2 {r[0:2]}, s[0:1], {off}")
I(f"s_load_dwordx2 {sPG}, s[0:1], 56")
I(f"s_load_dwordx2 {sPU}, s[0:1], 64")
I(f"s_load_dwordx2 {rD[0:2]}, s[0:1], 40")
vL = V.alloc(); vL16 = V.alloc(); vTag = V.alloc(); vHH = V.alloc(); vQ = V.alloc(); vT16 = V.alloc()
if TSTAMP: vTs = V.alloc()
t0 = V.alloc(); t1 = V.alloc(); t2 = V.alloc()
I(f"s_and_b32 {sXJ}, s2, 7")
I(f"s_lshr_b32 {sGI}, s2, 3")
I(f"v_lshrrev_b32 {t0}, 6, v0")
I(f"v_and_b32 {vL}, 63, v0")
I(f"v_readfirstlane_b32 {sWv}, {t0}")
I(f"v_lshlrev_b32 {vL16}, 4, {vL}")
I(f"v_lshlrev_b32 {vT16}, 4, v0")
def do_cpf():
    global cpa, cpd
    cpa = V.reserve(250, 2); cpd = V.reserve(252, 4)
    I(f"s_getpc_b64 {sTp[0]}")
    I(f"s_and_b32 {sTp[0][0]}, {sTp[0][0]}, 0xffffff00")
    I(f"s_and_b32 {sT[5]}, {sGI}, 7")
    I(f"s_min_u32 {sT[5]}, {sT[5]}, 6")
    I(f"s_lshl_b32 {sT[5]}, {sT[5]}, 12")
    I(f"s_add_u32 {sTp[0][0]}, {sTp[0][0]}, {sT[5]}")
    I(f"s_addc_u32 {sTp[0][1]}, {sTp[0][1]}, 0")
    I(f"v_mov_b32 {cpa[1]}, {sTp[0][1]}")
    I(f"v_add_co_u32 {cpa[0]}, vcc, {sTp[0][0]}, {vT16}")
    I(f"v_addc_co_u32 {cpa[1]}, vcc, 0, {cpa[1]}, vcc")
    I(f"global_load_dwordx4 {cpd}, {cpa}, off")
if opt('cpf', 0) == 1: do_cpf()
for r, n in ((rK,2097152),(rV,2097152),(rSH,4096),(rWS,WS_SIZE),(rC,1024),(rWM,3145728),(rX,2097152),(rTP,2097152),(rWD,1835008),(rOUT,2097152),(rW,1835008),(rD,1024)):
    I(f"s_mov_b32 {r[2]}, {n}")
    I(f"s_mov_b32 {r[3]}, 0x20000")
I(f"v_lshrrev_b32 {vHH}, 5, {vL}")
I(f"v_and_b32 {vQ}, 31, {vL}")
I(f"s_mov_b32 {sSpin}, 0")
I(f"s_movk_i32 {sC4096}, 0x1000")
vB = V.alloc(); vH = V.alloc(); vSH = V.alloc(); vGS = V.alloc()
I(f"s_lshl_b32 {sT[0]}, {sGI}, 16")
I(f"s_lshl_b32 {sT[1]}, {sXJ}, 7")
I(f"s_lshl_b32 {sT[2]}, {sWv}, 5")
I(f"s_add_u32 {sT[1]}, {sT[1]}, {sT[2]}")
I(f"s_add_u32 {sT[0]}, {sT[0]}, {sT[1]}")
I(f"v_lshrrev_b32 {t0}, 3, {vL}")
I(f"v_and_b32 {t1}, 7, {vL}")
I(f"v_lshlrev_b32 {vB}, 13, {t0}")
I(f"v_lshl_add_u32 {vB}, {t1}, 2, {vB}")
I(f"v_add_u32 {vB}, {sT[0]}, {vB}")
I(f"v_subrev_u32 {vH}, 3072, {vB}")
I(f"s_lshl_b32 {sT[2]}, {sT[1]}, 2")
I(f"v_lshlrev_b32 {vSH}, 4, {t1}")
I(f"v_add_u32 {vSH}, {sT[2]}, {vSH}")
I(f"v_mov_b32 {t2}, {EPOCH}")
if opt("sfine"): stamp("s0")
I("s_waitcnt lgkmcnt(0)")
if opt("sfine"): stamp("karg")
WSOFF = opt('wsoff', 0) << 20
if WSOFF:
    I(f"s_add_u32 {rWS[0]}, {rWS[0]}, {WSOFF}")
    I(f"s_addc_u32 {rWS[1]}, {rWS[1]}, 0")
LOC = opt('loc', 1); LST = '' if LOC else 'sc1'
vTagL = V.alloc()
PT = V.alloc(4)
Kr = V.alloc(11, 1); Vr = V.alloc(8, 1); SHr = V.alloc(4)
tep = I(f"buffer_load_dword {vTag}, {t2}, {rWS}, 0 offen sc1")
tsh = I(f"buffer_load_dwordx4 {SHr}, {vSH}, {rSH}, 0 offen")
PTA = OPT.get('pta', 'sc1')
def pretouch(base):
    I(f"s_lshl_b32 {sZ[0]}, {sXJ}, 18")
    I(f"s_lshl_b32 {sZ[1]}, {sGI}, 13")
    I(f"s_add_u32 {sZ[0]}, {sZ[0]}, {sZ[1]}")
    I(f"s_add_u32 {sZ[0]}, {sZ[0]}, {base}")
    I(f"s_add_u32 {sZ[1]}, {sZ[0]}, 4096")
    for c in range(2): I(f"buffer_load_dwordx4 {PT}, {vT16}, {rWS}, {sZ[c]} offen {PTA}")
if LOC and opt('ptfirst', 0): pretouch(KVG)
tk = []
for e in range(3): tk.append(I(f"buffer_load_dword {Kr[e]}, {vH}, {rK}, 0 offen offset:{e*1024} {NT}"))
for e in range(8): tk.append(I(f"buffer_load_dword {Kr[3+e]}, {vB}, {rK}, {sC4096 if e>=4 else 0} offen offset:{(e&3)*1024} {NT}"))
tv = [I(f"buffer_load_dword {Vr[e]}, {vB}, {rV}, {sC4096 if e>=4 else 0} offen offset:{(e&3)*1024} {NT}") for e in range(8)]
vH.free(); vSH.free()
if opt('sfine'): stamp('L1')
if LOC and not opt('ptfirst', 0): pretouch(KVG)
if opt('cpf', 0) == 2: do_cpf()
vBP = V.alloc()
I(f"s_lshl_b32 {sT[2]}, {sT[1]}, 11")
I(f"s_lshl_b32 {sT[3]}, {sGI}, 7")
I(f"s_add_u32 {sT[2]}, {sT[2]}, {sT[3]}")
I(f"v_lshlrev_b32 {vGS}, 13, {t0}")
I(f"v_lshl_add_u32 {vGS}, {t1}, 4, {vGS}")
I(f"s_add_u32 {sT[2]}, {sT[2]}, {KVG}")
I(f"v_add_u32 {vGS}, {sT[2]}, {vGS}")
I(f"v_lshlrev_b32 {vBP}, 5, {t1}")
I(f"v_lshl_add_u32 {vBP}, {t0}, 2, {vBP}")
I(f"s_mov_b32 {sPL}, 0x05040100")
I(f"s_mov_b32 {sPH}, 0x07060302")
I(f"s_mov_b32 {sHI}, 0xffff0000")
I(f"s_mov_b32 {sONE}, 0x3f803f80")
sM = S.alloc(); sKS = S.alloc(); sCB = S.alloc()
I(f"s_and_b32 {sM}, {sGI}, 1")
I(f"s_cmp_eq_u32 {sM}, 0")
I(f"s_cselect_b32 {rW[0]}, {sPG[0]}, {sPU[0]}")
I(f"s_cselect_b32 {rW[1]}, {sPG[1]}, {sPU[1]}")
I(f"s_lshl_b32 {sD0}, {sXJ}, 6")
I(f"s_lshl_b32 {sT[4]}, {sGI}, 1")
I(f"s_add_u32 {sD0}, {sD0}, {sT[4]}")
I(f"s_lshl_b32 {sKS}, {sXJ}, 2")
I(f"s_add_u32 {sKS}, {sKS}, {sWv}")
I(f"s_lshr_b32 {sCB}, {sGI}, 1")
sPG.free(); sTp2 = sPU

G = {}
def A_mod():
    G['vMW'] = vMW = V.alloc(); G['vMC'] = vMC = V.alloc()
    I(f"s_and_b32 {sT[4]}, {sGI}, 3")
    I(f"s_lshl_b32 {sT[4]}, {sT[4]}, 7")
    I(f"v_lshrrev_b32 {t2}, 3, v0")
    I(f"v_add_u32 {t2}, {sT[4]}, {t2}")
    I(f"v_lshlrev_b32 {vMC}, 1, {t2}")
    I(f"v_mul_u32_u24 {vMW}, 6144, {t2}")
    I(f"v_and_b32 {t2}, 7, v0")
    I(f"v_lshl_add_u32 {vMW}, {t2}, 4, {vMW}")
    I(f"s_lshr_b32 {sT[4]}, {sGI}, 2")
    I(f"s_lshl_b32 {sT[4]}, {sT[4]}, 10")
    I(f"s_lshl_b32 {sT[5]}, {sXJ}, 7")
    I(f"s_add_u32 {sT[4]}, {sT[4]}, {sT[5]}")
    I(f"s_cmp_lt_u32 {sGI}, 24")
    I(f"s_cselect_b32 {sT[4]}, {sT[4]}, {OOB}")
    I(f"v_add_u32 {vMW}, {sT[4]}, {vMW}")
def L_mod():
    vMW, vMC = G['vMW'], G['vMC']
    G['Cr'] = Cr = V.alloc(4, 1); G['WMr'] = WMr = V.alloc(16)
    G['tc'] = [I(f"buffer_load_ushort {Cr[i]}, {vMC}, {rC}, 0 offen offset:{64*i}") for i in range(4)]
    G['twm'] = []
    for i in range(4):
        I(f"s_mov_b32 {sT[5]}, {i*32*6144}")
        G['twm'].append(I(f"buffer_load_dwordx4 {WMr[4*i:4*i+4]}, {vMW}, {rWM}, {sT[5]} offen {nt('m')}"))
    vMW.free(); vMC.free()
def L_taps():
    G['TP'] = TP = [V.alloc(8), V.alloc(8)]
    I(f"s_lshl_b32 {sT[4]}, {sD0}, 12")
    I(f"s_add_u32 {sT[5]}, {sT[4]}, 4096")
    I(f"v_subrev_u32 {t2}, 16, {vT16}")
    I(f"v_min_u32 {t2}, {OOB}, {t2}")
    G['ttp'] = []
    for c in range(2):
        G['ttp'].append([I(f"buffer_load_dwordx4 {TP[c][4:8]}, {vT16}, {rTP}, {sT[4+c]} offen {nt('t')}"),
                         I(f"buffer_load_dwordx4 {TP[c][0:4]}, {t2}, {rTP}, {sT[4+c]} offen {nt('t')}")])
def L_w():
    G['WR'] = WR = V.alloc(16)
    I(f"s_mul_i32 {sT[0]}, {sKS}, {16*3584}")
    I(f"s_mul_i32 {sT[1]}, {sCB}, 224")
    I(f"s_add_u32 {sT[0]}, {sT[0]}, {sT[1]}")
    I(f"v_mul_u32_u24 {t2}, {8*3584}, {vHH}")
    I(f"v_lshl_add_u32 {t2}, {vQ}, 3, {t2}")
    G['twr'] = []
    for e in range(8):
        if e and e % 2 == 0: I(f"s_add_u32 {sT[0]}, {sT[0]}, 7168")
        G['twr'].append(I(f"buffer_load_dwordx2 {WR[2*e:2*e+2]}, {t2}, {rW}, {sT[0]} offen offset:{(e&1)*3584} {nt('w')}"))
def L_x1(e):
    if e == 0: G['Xr'] = V.alloc(8, 1); G['tx'] = []
    G['tx'].append(I(f"buffer_load_dword {G['Xr'][e]}, {vB}, {rX}, {sC4096 if e>=4 else 0} offen offset:{(e&3)*1024}"))
    if e == 7: vB.free()
def L_xr():
    G['XR'] = XR = V.alloc(8)
    I(f"s_lshl_b32 {sT[0]}, s2, 13")
    I(f"s_lshl_b32 {sT[1]}, {sWv}, 11")
    I(f"s_add_u32 {sT[0]}, {sT[0]}, {sT[1]}")
    G['txr'] = [I(f"buffer_load_dwordx4 {XR[4*i:4*i+4]}, {vL16}, {rX}, {sT[0]} offen offset:{1024*i} {nt('r')}") for i in range(2)]
def zero_pads():
    z4 = V.alloc(4)
    for i in range(4): I(f"v_mov_b32 {z4[i]}, 0")
    I(f"v_lshlrev_b32 {t2}, 4, {vQ}")
    I(f"v_mul_u32_u24 {t0}, {UCH}, {vHH}")
    I(f"v_add_u32 {t2}, {t2}, {t0}")
    I(f"ds_write_b128 {t2}, {z4} offset:{UB+4096}")
    I(f"v_and_b32 {t2}, 15, {vL}")
    I(f"v_mul_u32_u24 {t2}, {TCOPY}, {t2}")
    I(f"ds_write_b128 {t2}, {z4} offset:{TAPS}")
    z4.free()
def C_tag():
    P.wait(tep)
    pass
    I(f"s_mov_b32 {sT[0]}, 0x9E3779B1")
    I(f"v_mul_lo_u32 {vTag}, {vTag}, {sT[0]}")
    I(f"v_add_u32 {vTag}, 0x7F4A7C15, {vTag}")
    I(f"s_getreg_b32 {sT[0]}, hwreg(HW_REG_XCC_ID, 0, 4)")
    I(f"s_add_u32 {sT[0]}, {sT[0]}, 1")
    I(f"v_xor_b32 {vTagL}, {sT[0]}, {vTag}")
def lane_tr(src):
    GR = Frags(2)
    return GR, [I(f"ds_bpermute_b32 {GR[i]}, {vBP}, {src[i]}") for i in range(8)]
def flag_setup():
    G['vFo'] = V.alloc(); G['vFp'] = V.alloc()
    I(f"s_lshl_b32 {sT[0]}, {sKS}, 5")
    I(f"s_add_u32 {sT[0]}, {sT[0]}, {sGI}")
    I(f"s_lshl_b32 {sT[0]}, {sT[0]}, 7")
    lane0(G['vFo'], sT[0], t1)
    I(f"s_lshr_b32 {sT[0]}, {sGI}, 3")
    I(f"s_lshl_b32 {sT[1]}, {sXJ}, 2")
    I(f"s_add_u32 {sT[0]}, {sT[0]}, {sT[1]}")
    I(f"s_lshl_b32 {sT[0]}, {sT[0]}, 2")
    I(f"s_add_u32 {sT[0]}, {sT[0]}, {sWv}")
    I(f"s_lshl_b32 {sT[0]}, {sT[0]}, 3")
    I(f"v_and_b32 {t0}, 7, {vL}")
    I(f"v_add_lshl_u32 {G['vFp']}, {t0}, {sT[0]}, 7")
def C_kv():
    kf = V.alloc(22); wp = V.alloc(8); acc = V.alloc(16)
    P.wait(tsh)
    for j in range(4):
        for c in range(2): unpack(wp[2*j+c], SHr[2*c + (j>>1)], j & 1)
    stamp('pre-k'); P.wait(tk[:opt('kw', 3)]); G['afterk'](); P.wait(tk); stamp('k in')
    for e in range(11):
        unpack(kf[2*e], Kr[e], 0); unpack(kf[2*e+1], Kr[e], 1)
    for e in range(8): I(f"v_pk_mul_f32 {acc[2*e:2*e+2]}, {kf[2*e:2*e+2]}, {wp[6:8]}")
    for j in (2, 1, 0):
        for e in range(8):
            q = e + 3 - j
            I(f"v_pk_fma_f32 {acc[2*e:2*e+2]}, {kf[2*q:2*q+2]}, {wp[2*j:2*j+2]}, {acc[2*e:2*e+2]}")
    P.wait(tv)
    for e in range(8):
        unpack(kf[2*e], Vr[e], 0); unpack(kf[2*e+1], Vr[e], 1)
    for e in range(8): I(f"v_pk_mul_f32 {acc[2*e:2*e+2]}, {acc[2*e:2*e+2]}, {kf[2*e:2*e+2]}")
    for c in range(2):
        for n in range(4):
            I(f"v_cvt_pk_bf16_f32 {wp[4*c+n]}, {acc[2*(7-2*n)+c]}, {acc[2*(6-2*n)+c]}")
    G['KVt'], tl = lane_tr(wp)
    G['tks'] = []
    for c in range(2):
        P.wait(tl[4*c:4*c+4])
        G['tks'].append(I(f"buffer_store_dwordx4 {G['KVt'][4*c:4*c+4]}, {vGS}, {rWS}, {sC4096 if c else 0} offen {LST}"))
    for r in (kf, wp, acc, Kr, Vr, SHr): r.free()
def C_mod():
    Cr, WMr = G['Cr'], G['WMr']
    P.wait(G['tc'])
    sl = V.alloc(4, 1); sp = V.alloc(2, 1)
    for i in range(4): I(f"v_lshlrev_b32 {Cr[i]}, 16, {Cr[i]}")
    for i in range(4): I(f"v_mul_f32 {sl[i]}, 0xbfb8aa3b, {Cr[i]}")
    for i in range(4): I(f"v_exp_f32 {sl[i]}, {sl[i]}")
    for i in range(4): I(f"v_add_f32 {sl[i]}, 1.0, {sl[i]}")
    for i in range(4): I(f"v_rcp_f32 {sl[i]}, {sl[i]}")
    for i in range(4): I(f"v_mul_f32 {sl[i]}, {sl[i]}, {Cr[i]}")
    I(f"v_cvt_pk_bf16_f32 {sp[0]}, {sl[0]}, {sl[1]}")
    I(f"v_cvt_pk_bf16_f32 {sp[1]}, {sl[2]}, {sl[3]}")
    I(f"v_and_b32 {t0}, 7, {vL}")
    I(f"v_lshlrev_b32 {t0}, 7, {t0}")
    I(f"v_lshrrev_b32 {t1}, 4, {vL}")
    I(f"v_lshl_add_u32 {t0}, {t1}, 5, {t0}")
    I(f"s_lshl_b32 {sT[0]}, {sWv}, 2")
    I(f"v_add_u32 {t0}, {sT[0]}, {t0}")
    ma = V.alloc(8, 1); mp = V.alloc(8, 1)
    for half in range(2):
        P.wait(G['twm'][2*half:2*half+2])
        for j in range(4):
            I(f"v_perm_b32 {mp[2*j]}, {WMr[8*half+4+j]}, {WMr[8*half+j]}, {sPL}")
            I(f"v_perm_b32 {mp[2*j+1]}, {WMr[8*half+4+j]}, {WMr[8*half+j]}, {sPH}")
        for j in range(8):
            I(f"v_dot2_f32_bf16 {ma[j]}, {mp[j]}, {sp[half]}, {0 if half==0 else ma[j]}")
    for i in range(4): I(f"v_permlane32_swap_b32 {ma[i]}, {ma[i+4]}")
    for i in range(4): I(f"v_add_f32 {ma[i]}, {ma[i]}, {ma[i+4]}")
    for i in range(2): I(f"v_permlane16_swap_b32 {ma[i]}, {ma[i+2]}")
    for i in range(2): I(f"v_add_f32 {ma[i]}, {ma[i]}, {ma[i+2]}")
    for i in range(2): I(f"v_add_f32_dpp {ma[i]}, {ma[i]}, {ma[i]} row_ror:8 row_mask:0xf bank_mask:0xf")
    I(f"ds_write_b32 {t0}, {ma[0]} offset:{MODL}")
    I(f"ds_write_b32 {t0}, {ma[1]} offset:{MODL+16}")
    for r in (sl, sp, ma, mp, Cr, WMr): r.free()
def A_mod2():
    I(f"s_lshl_b32 {sT[0]}, {sGI}, 12")
    I(f"s_lshl_b32 {sT[1]}, {sXJ}, 9")
    I(f"s_add_u32 {sT[0]}, {sT[0]}, {sT[1]}")
    I(f"s_add_u32 {sT[0]}, {sT[0]}, {MODG}")
    I(f"s_cmp_lt_u32 {sGI}, 24")
    I(f"s_cselect_b32 {sT[0]}, {sT[0]}, {OOB}")
    I(f"s_cmp_eq_u32 {sWv}, 1")
    I(f"s_cselect_b32 {sT[0]}, {sT[0]}, {OOB}")
    G['vMs'] = V.alloc()
    I(f"v_lshlrev_b32 {t0}, 3, {vL}")
    I(f"v_add_u32 {G['vMs']}, {sT[0]}, {t0}")
def C_mod2():
    vMs = G['vMs']
    I("s_waitcnt lgkmcnt(0)"); P.lg_done = P.lg
    I("s_barrier")
    m4 = V.alloc(4)
    tl = I(f"ds_read_b128 {m4}, {vL16} offset:{MODL}")
    P.wait(tl)
    I(f"v_add_f32 {m4[0]}, {m4[0]}, {m4[1]}")
    I(f"v_add_f32 {m4[2]}, {m4[2]}, {m4[3]}")
    I(f"v_mov_b32 {m4[1]}, {vTag}")
    I(f"v_add_f32 {m4[0]}, {m4[0]}, {m4[2]}")
    if LOC:
        I(f"s_mov_b32 {sT[1]}, {MODL2-MODG}")
        I(f"buffer_store_dwordx2 {m4[0:2]}, {vMs}, {rWS}, {sT[1]} offen")
    G['midmod']()
    I(f"buffer_store_dwordx2 {m4[0:2]}, {vMs}, {rWS}, 0 offen sc1")
    m4.free(); vMs.free()
def C_taps(hk=lambda: None):
    TP = G['TP']
    E1 = V.alloc(6); O0 = V.alloc(6); O1 = V.alloc(6)
    I(f"v_add_u32 {t2}, {TCH}, {vT16}")
    for c in range(2):
        d = TP[c]; ad = vT16 if c == 0 else t2
        P.wait(G['ttp'][c])
        def wr(o, regs):
            I(f"ds_write_b128 {ad}, {regs} offset:{TAPS + 16 + (o-1)*TCOPY}")
            if o > 4: hk()
        wr(4, d[2:6]); wr(8, d[4:8])
        for j in range(6): I(f"v_alignbit_b32 {O0[j]}, {d[j+1]}, {d[j]}, 16")
        wr(1, O0[0:4]); wr(5, O0[2:6])
        for j in range(6): I(f"v_alignbit_b32 {O1[j]}, {d[j+2]}, {d[j+1]}, 16")
        wr(3, O1[0:4]); wr(7, O1[2:6])
        for j in range(6): I(f"v_mov_b32 {E1[j]}, {d[j+1]}")
        wr(2, E1[0:4]); wr(6, E1[2:6])
    for r in TP + [E1, O0, O1]: r.free()
sUY = S.alloc(2)
def L_u():
    G['UR'] = UR = Frags(2)
    I(f"s_lshl_b32 {sUY[0]}, {sD0}, 12")
    I(f"s_add_u32 {sUY[0]}, {sUY[0]}, {KVG}")
    I(f"s_add_u32 {sUY[1]}, {sUY[0]}, 4096")
    G['tu'] = [I(f"buffer_load_dwordx4 {UR[4*c:4*c+4]}, {vT16}, {rWS}, {sUY[c]} offen sc1") for c in range(2)]
def C_u():
    UR = G['UR']
    I(f"v_sub_u32 {t2}, 4080, {vT16}")
    for c in range(2):
        P.wait(G['tu'][c])
        I(f"ds_write_b128 {t2}, {UR[4*c:4*c+4]} offset:{UB+c*UCH}")
    UR.free()
def L_d():
    G['Dr'] = V.alloc(2)
    I(f"s_lshl_b32 {sT[0]}, {sKS}, 5")
    I(f"v_lshrrev_b32 {t0}, 3, {vL}")
    I(f"v_lshlrev_b32 {t0}, 2, {t0}")
    G['td'] = I(f"buffer_load_dword {G['Dr'][0]}, {t0}, {rD}, {sT[0]} offen")
def x_ops():
    ops = []
    def a0(): G['xp'] = V.alloc(8, 1); G['Xt'] = Frags(2); G['txt'] = []; P.wait(G['tx'])
    ops.append(a0)
    for c in range(2):
        for n in range(4):
            ops.append(lambda c=c, n=n: I(f"v_perm_b32 {G['xp'][4*c+n]}, {G['Xr'][2*n+1]}, {G['Xr'][2*n]}, {sPH if c else sPL}"))
    for i in range(8): ops.append(lambda i=i: G['txt'].append(I(f"ds_bpermute_b32 {G['Xt'][i]}, {vBP}, {G['xp'][i]}")))
    ops.append(lambda: (G['Xr'].free(), vBP.free(), G['xp'].free()))
    return ops
def C_st():
    XR = G['XR']
    P.wait(G['txr'])
    q4 = V.alloc(4)
    for n in range(4):
        for r in range(2):
            I(f"v_dot2_f32_bf16 {q4[2*r]}, {XR[4*r+n]}, {sONE}, {0 if n==0 else q4[2*r]}")
            I(f"v_dot2_f32_bf16 {q4[2*r+1]}, {XR[4*r+n]}, {XR[4*r+n]}, {0 if n==0 else q4[2*r+1]}")
    I(f"v_permlane32_swap_b32 {q4[0]}, {q4[2]}")
    I(f"v_permlane32_swap_b32 {q4[1]}, {q4[3]}")
    I(f"v_add_f32 {q4[0]}, {q4[0]}, {q4[2]}")
    I(f"v_add_f32 {q4[1]}, {q4[1]}, {q4[3]}")
    I(f"v_permlane16_swap_b32 {q4[0]}, {q4[1]}")
    I(f"v_add_f32 {q4[0]}, {q4[0]}, {q4[1]}")
    for sh in (8, 4, 2, 1):
        I(f"v_add_f32_dpp {q4[0]}, {q4[0]}, {q4[0]} row_ror:{sh} row_mask:0xf bank_mask:0xf")
    I(f"v_mov_b32 {q4[1]}, {q4[0]}")
    I(f"v_permlane16_swap_b32 {q4[0]}, {q4[1]}")
    finish_stats(q4[0], q4[1], q4[3], t0)
    I(f"v_rsq_f32 {q4[2]}, {t0}")
    I(f"s_lshl_b32 {sT[0]}, s2, 4")
    I(f"s_lshl_b32 {sT[1]}, {sWv}, 12")
    I(f"s_add_u32 {sT[0]}, {sT[0]}, {sT[1]}")
    I(f"s_add_u32 {sT[0]}, {sT[0]}, {STG}")
    I(f"v_cvt_pk_bf16_f32 {q4[0]}, {q4[3]}, {q4[2]}")
    I(f"v_mov_b32 {q4[1]}, {vTag}")
    I(f"v_mov_b32 {q4[2]}, {q4[0]}")
    I(f"v_mov_b32 {q4[3]}, {vTag}")
    I(f"v_permlane32_swap_b32 {q4[0]}, {q4[2]}")
    lane0(t0, sT[0], t1)
    I(f"buffer_store_dwordx4 {q4}, {t0}, {rWS}, 0 offen sc1")
    XR.free(); q4.free()
def finish_stats(vsum, vsq, vnm, vve):
    I(f"v_mul_f32 {vnm}, 0xbb000000, {vsum}")
    I(f"v_mul_f32 {vsq}, 0x3b000000, {vsq}")
    I(f"v_fma_f32 {vve}, -{vnm}, {vnm}, {vsq}")
    I(f"v_max_f32 {vve}, 0, {vve}")
    I(f"v_add_f32 {vve}, 0x3727c5ac, {vve}")
def m_addr():
    G['MA'] = Frags(3); G['vMa'] = vMa = V.alloc()
    I(f"v_and_b32 {t0}, 7, {vL}")
    I(f"v_lshrrev_b32 {t1}, 3, {vL}")
    I(f"v_lshlrev_b32 {vMa}, 4, {t0}")
    I(f"v_lshl_add_u32 {vMa}, {t1}, 12, {vMa}")
    I(f"s_lshl_b32 {sT[0]}, {sKS}, 7")
    I(f"s_add_u32 {sT[0]}, {sT[0]}, {MODG}")
    I(f"v_add_u32 {vMa}, {sT[0]}, {vMa}")
def m_loads(retry=False):
    MA = G['MA']
    if LOC and retry:
        I(f"s_and_b32 {sZ[0]}, {sSpin}, 7")
        I(f"s_cmp_eq_u32 {sZ[0]}, 0")
        I(f"s_cselect_b32 {sZ[0]}, 0, {MODL2-MODG}")
    else: I(f"s_mov_b32 {sZ[0]}, {MODL2-MODG if LOC else 0}")
    out = []
    for j in range(3):
        if j: I(f"s_add_u32 {sZ[0]}, {sZ[0]}, 32768")
        out.append(I(f"buffer_load_dwordx4 {MA.g[j]}, {G['vMa']}, {rWS}, {sZ[0]} offen sc1"))
    return out
def C_wunpack():
    WR = G['WR']
    G['wf'] = wf = Frags(8)
    P.wait(G['twr'])
    for e in range(8):
        for h in range(2):
            unpack(wf[4*e+2*h], WR[2*e+h], 0); unpack(wf[4*e+2*h+1], WR[2*e+h], 1)
def C_m():
    MA = G['MA']
    check_tags([MA[4*j+i] for j in range(3) for i in (1, 3)], lambda: m_loads(True), G['tm'])
    G['vMa'].free()
def m_ops():
    MA = G['MA']; ad = MA[1]; one = MA[3]; on2 = MA[5]
    seq = [f"v_permlane16_swap_b32 {MA[4*j]}, {MA[4*j+2]}" for j in (2, 1, 0)]
    seq += [f"v_add_f32 {MA[4*j]}, {MA[4*j]}, {MA[4*j+2]}" for j in (2, 1, 0)]
    seq += [f"v_add_f32_dpp {MA[4*j]}, {MA[4*j]}, {MA[4*j]} row_ror:8 row_mask:0xf bank_mask:0xf" for j in (2, 1, 0)]
    seq += [f"v_and_b32 {ad}, 7, {vL}", f"v_lshlrev_b32 {ad}, 3, {ad}", f"v_bfe_u32 {one}, {vL}, 4, 1",
            f"v_lshl_add_u32 {ad}, {one}, 2, {ad}", f"v_lshl_add_u32 {ad}, {vHH}, 6, {ad}", f"v_add_u32 {ad}, {sWDs}, {ad}",
            f"v_cvt_f32_u32 {one}, {vHH}"]
    seq += [f"v_cvt_pk_bf16_f32 {MA[4*j]}, {MA[4*j]}, {MA[4*j]}" for j in (2, 1, 0)]
    seq += [f"v_sub_f32 {on2}, 1.0, {one}"]
    seq += [f"v_and_b32 {MA[4*j]}, {sHI}, {MA[4*j]}" for j in (2, 1, 0)]
    seq += [f"v_add_f32 {MA[8]}, {MA[8]}, {on2}", f"v_add_f32 {MA[0]}, {MA[0]}, {one}",
            f"v_cvt_pk_bf16_f32 {MA[8]}, {MA[8]}, {MA[8]}", f"v_cvt_pk_bf16_f32 {MA[0]}, {MA[0]}, {MA[0]}",
            f"v_and_b32 {MA[8]}, {sHI}, {MA[8]}", f"v_and_b32 {MA[0]}, {sHI}, {MA[0]}"]
    seq += [f"ds_write_b32 {ad}, {MA[4*j]} offset:{CBO+128*j}" for j in (2, 1, 0)]
    return [(lambda x=x: I(x)) for x in seq] + [lambda: MA.free()]
sWst = S.alloc()
def w_addr():
    G['vWs'] = vWs = V.alloc(); G['vCw'] = vCw = V.alloc()
    I(f"s_mul_i32 {sWst}, {sCB}, 229376")
    I(f"s_lshl_b32 {sT[1]}, {sM}, 9")
    I(f"s_add_u32 {sWst}, {sWst}, {sT[1]}")
    I(f"s_add_u32 {sWst}, {sWst}, {WP}")
    I(f"s_mul_i32 {sT[1]}, {sKS}, {NA*1024}")
    I(f"s_lshl_b32 {sT[2]}, {sKS}, 10")
    I(f"v_lshrrev_b32 {t0}, 2, {vQ}")
    I(f"v_lshlrev_b32 {vWs}, 10, {t0}")
    I(f"v_add_u32 {vWs}, {sT[1]}, {vWs}")
    I(f"v_lshlrev_b32 {t2}, 15, {t0}")
    I(f"v_add_u32 {t2}, {sT[2]}, {t2}")
    I(f"v_cmp_gt_u32 vcc, {NA}, {t0}")
    I(f"v_mov_b32 {t1}, {OOB}")
    I(f"v_cndmask_b32 {vWs}, {t2}, {vWs}, vcc")
    I(f"v_cmp_gt_u32 vcc, 7, {t0}")
    I(f"v_xor_b32 {t2}, {sM}, {vHH}")
    I(f"v_cndmask_b32 {vWs}, {t1}, {vWs}, vcc")
    I(f"v_lshl_add_u32 {vWs}, {t2}, 6, {vWs}")
    I(f"v_and_b32 {t2}, 3, {vQ}")
    I(f"v_lshl_add_u32 {vWs}, {t2}, 4, {vWs}")
    I(f"v_lshlrev_b32 {vCw}, 6, {t0}")
    I(f"v_lshl_add_u32 {vCw}, {t2}, 2, {vCw}")
    I(f"v_lshl_add_u32 {vCw}, {vHH}, 9, {vCw}")
    I(f"v_add_u32 {vCw}, {sWDs}, {vCw}")
def C_w_reads():
    I(f"v_lshlrev_b32 {t0}, 5, {vHH}")
    I(f"v_add_u32 {t0}, {sWDs}, {t0}")
    G['SBv'] = SBv = Frags(2); G['CBv'] = CBv = Frags(2)
    G['tcb'] = [I(f"ds_read_b128 {CBv[0:4]}, {t0} offset:{CBO+256}"), I(f"ds_read_b128 {CBv[4:8]}, {t0} offset:{CBO+272}"),
                I(f"ds_read_b128 {SBv[0:4]}, {t0} offset:{CBO+192}"), I(f"ds_read_b128 {SBv[4:8]}, {t0} offset:{CBO+208}")]
def wu_ops():
    WR = G['WR']; ops = []
    def st0(): G['wf'] = Frags(8); P.wait(G['twr'])
    ops.append(st0)
    for e in range(8):
        for j in range(4): ops.append(lambda e=e, j=j: unpack(G['wf'][4*e+j], WR[2*e+(j>>1)], j & 1))
    return ops
def w_ops():
    WR = G['WR']; ops = []
    def st0(): G['pr'] = V.alloc(4, 1); G['c1'] = V.alloc(4, 1); G['c2'] = V.alloc(4, 1); P.wait(G['tcb'])
    ops.append(st0)
    G['tws'] = []
    for j in range(4):
        for n in range(4):
            o = 2*(n & 1)
            for ee in range(2):
                ops.append(lambda n=n, j=j, ee=ee, o=o: I(f"v_mul_f32 {G['pr'][o+ee]}, {G['wf'][4*(2*n+ee)+j]}, {G['CBv'][2*n+ee]}"))
            ops.append(lambda n=n, j=j, o=o: I(f"v_cvt_pk_bf16_f32 {WR[4*j+n]}, {G['pr'][o]}, {G['pr'][o+1]}"))
        ops.append(lambda j=j: G['tws'].append(I(f"buffer_store_dwordx4 {WR[4*j:4*j+4]}, {G['vWs']}, {rWS}, {sWst} offen offset:{128*j} sc1")))
    return ops
def c_ops():
    ops = []
    for e in range(8):
        op = "v_mul_f32" if e == 0 else "v_fmac_f32"
        for j in range(4): ops.append(lambda e=e, j=j, op=op: I(f"{op} {G['c1'][j]}, {G['wf'][4*e+j]}, {G['CBv'][e]}"))
        for j in range(4): ops.append(lambda e=e, j=j, op=op: I(f"{op} {G['c2'][j]}, {G['wf'][4*e+j]}, {G['SBv'][e]}"))
    ops.append(None)
    for j in range(4): ops.append(lambda j=j: I(f"v_permlane32_swap_b32 {G['c1'][j]}, {G['c2'][j]}"))
    for j in range(4): ops.append(lambda j=j: I(f"v_add_f32 {G['c1'][j]}, {G['c1'][j]}, {G['c2'][j]}"))
    for j in range(4): ops.append(lambda j=j: I(f"ds_write_b32 {G['vCw']}, {G['c1'][j]} offset:{C12O+16*j}"))
    def fin():
        for k in ('pr', 'CBv', 'SBv', 'vWs', 'wf', 'c1', 'c2', 'vCw', 'WR'): G[k].free()
    ops.append(fin)
    return ops
def C_c12b():
    c8 = V.alloc(8)
    I(f"v_and_b32 {t0}, 127, v0")
    I(f"v_lshlrev_b32 {t0}, 2, {t0}")
    I(f"v_add_u32 {t0}, {WDS0+C12O}, {t0}")
    I(f"v_add_u32 {t1}, {2*WDW0}, {t0}")
    tc = []
    for w in range(4):
        for sel in range(2):
            tc.append(I(f"ds_read_b32 {c8[2*w+sel]}, {t1 if w >= 2 else t0} offset:{WDW0*(w&1) + 512*sel}"))
    I(f"s_lshl_b32 {sT[0]}, {sCB}, 3")
    I(f"s_add_u32 {sT[0]}, {sT[0]}, {sXJ}")
    I(f"s_lshl_b32 {sT[0]}, {sT[0]}, 1")
    I(f"s_add_u32 {sT[0]}, {sT[0]}, {sM}")
    I(f"s_mul_i32 {sT[0]}, {sT[0]}, 896")
    I(f"s_add_u32 {sT[0]}, {sT[0]}, {C12}")
    I(f"v_lshlrev_b32 {t0}, 3, v0")
    I(f"v_mov_b32 {t2}, {OOB}")
    I(f"v_cmp_gt_u32 vcc, 112, v0")
    I(f"v_cndmask_b32 {t0}, {t2}, {t0}, vcc")
    P.wait(tc)
    I(f"v_pk_add_f32 {c8[0:2]}, {c8[0:2]}, {c8[2:4]}")
    I(f"v_pk_add_f32 {c8[4:6]}, {c8[4:6]}, {c8[6:8]}")
    I(f"v_pk_add_f32 {c8[0:2]}, {c8[0:2]}, {c8[4:6]}")
    G['tc12'] = I(f"buffer_store_dwordx2 {c8[0:2]}, {t0}, {rWS}, {sT[0]} offen sc1")
    c8.free()
def A_f3():
    G['vF3'] = V.alloc()
    I(f"s_lshl_b32 {sT[0]}, {sGI}, 5")
    I(f"s_add_u32 {sT[0]}, {sT[0]}, {sKS}")
    I(f"s_lshl_b32 {sT[0]}, {sT[0]}, {FSH}")
    lane0(G['vF3'], sT[0], t1)
def st_addr():
    G['vSt'] = V.alloc()
    I(f"s_lshl_b32 {sT[0]}, {sGI}, 7")
    I(f"s_add_u32 {sT[0]}, {sT[0]}, {STG}")
    I(f"v_and_b32 {t0}, 7, {vL}")
    I(f"v_lshl_add_u32 {G['vSt']}, {t0}, 4, {sT[0]}")
def st_loads():
    SL = G['SL']; out = []
    for w in range(4):
        if w >= 2: I(f"s_movk_i32 {sZ[0]}, {4096*w}")
        out.append(I(f"buffer_load_dwordx4 {SL.g[w]}, {G['vSt']}, {rWS}, {[0, sC4096, sZ[0], sZ[0]][w]} offen sc1"))
    return out
def L_st():
    G['SL'] = Frags(4); G['tsl'] = st_loads()
def C_pre0():
    G['PQ'] = PQ = V.alloc(6)
    I(f"v_lshrrev_b32 {t0}, 3, {vL}")
    I(f"v_lshl_add_u32 {t0}, {t0}, 3, {sWDs}")
    G['tpq'] = [I(f"ds_read_b64 {PQ[2*v:2*v+2]}, {t0} offset:{CBO+64*v}") for v in range(3)]
def C_pre1():
    SL, PQ, Dr = G['SL'], G['PQ'], G['Dr']
    check_tags([SL[2*i+1] for i in range(8)], st_loads, [G['tsl'], G['td']])
    G['vSt'].free()
    for w in range(4):
        g = SL.g[w]
        unpack(g[1], g[2], 1); unpack(g[3], g[2], 0); unpack(g[2], g[0], 0); unpack(g[0], g[0], 1)
    for w in range(4): I(f"v_pk_mul_f32 {SL.g[w][2:4]}, {SL.g[w][2:4]}, {SL.g[w][0:2]}")
    unpack(Dr[1], Dr[0], 1); unpack(Dr[0], Dr[0], 0)
    P.wait(G['tpq'], G['txt'])
    I(f"v_pk_mul_f32 {PQ[0:2]}, {PQ[0:2]}, {PQ[4:6]}")
    I(f"v_pk_mul_f32 {PQ[2:4]}, {PQ[2:4]}, {PQ[4:6]}")
    G['HG'] = Frags(4); G['BS'] = Frags(4)
def C_pre2(c):
    SL, PQ, Dr, HG, BS, Xt, KVt = G['SL'], G['PQ'], G['Dr'], G['HG'], G['BS'], G['Xt'], G['KVt']
    kd = V.alloc(8)
    pr = lambda R, p: R[8*c+2*p:8*c+2*p+2]
    for p in range(4):
        unpack(BS[8*c+2*p], Xt[4*c+p], 0); unpack(BS[8*c+2*p+1], Xt[4*c+p], 1)
        unpack(kd[2*p], KVt[4*c+3-p], 1); unpack(kd[2*p+1], KVt[4*c+3-p], 0)
    for p in range(4): I(f"v_pk_fma_f32 {pr(HG,p)}, {pr(BS,p)}, {SL.g[p][0:2]}, {SL.g[p][2:4]}")
    for p in range(4): I(f"v_pk_mul_f32 {kd[2*p:2*p+2]}, {kd[2*p:2*p+2]}, {Dr} op_sel:[0,{c}] op_sel_hi:[1,{c}]")
    for p in range(4): I(f"v_pk_fma_f32 {pr(HG,p)}, {pr(HG,p)}, {PQ[2:4]}, {PQ[0:2]} op_sel:[0,{c},{c}] op_sel_hi:[1,{c},{c}]")
    for p in range(4): I(f"v_pk_fma_f32 {pr(BS,p)}, {pr(HG,p)}, {kd[2*p:2*p+2]}, {pr(BS,p)}")
    kd.free()
    if c == 1:
        for r in (SL, PQ, Dr, Xt, KVt): r.free()

AWD = A.reserve(0, 224)
order = [(c, it) for c in range(4) for it in range(3)] + [(c, it) for c in range(4) for it in (3, 4)] + [(c, it) for it in (5, 6) for c in range(4)]
FL = 0x8000
sWo = S.alloc()
def wd_src(i): c, it = order[i]; I(f"s_add_u32 {sWo}, {sWD}, {16384*(c*7+it)}")
sR64 = S.alloc(); sDB = S.alloc(); sWD = S.alloc()
sWDs = S.alloc()
def wd_setup():
    G['vWa'] = vWa = V.alloc(); G['vWb'] = vWb = V.alloc(); G['vWr'] = [V.alloc(), V.alloc()]
    if opt('map2', 1):
        I(f"s_lshr_b32 {sR64}, {sGI}, 2")
        I(f"s_lshr_b32 {sT[0]}, {sXJ}, 1")
        I(f"s_lshl_b32 {sT[0]}, {sT[0]}, 3")
        I(f"s_add_u32 {sR64}, {sR64}, {sT[0]}")
        I(f"s_and_b32 {sDB}, {sGI}, 3")
        I(f"s_and_b32 {sT[0]}, {sXJ}, 1")
        I(f"s_lshl_b32 {sT[0]}, {sT[0]}, 2")
        I(f"s_add_u32 {sDB}, {sDB}, {sT[0]}")
    else:
        I(f"s_lshr_b32 {sR64}, {sGI}, 3")
        I(f"s_lshl_b32 {sT[0]}, {sXJ}, 2")
        I(f"s_add_u32 {sR64}, {sR64}, {sT[0]}")
        I(f"s_and_b32 {sDB}, {sGI}, 7")
    I(f"s_mul_i32 {sWD}, {sWv}, {448*1024}")
    I(f"s_lshl_b32 {sT[0]}, {sDB}, 7")
    I(f"s_add_u32 {sWD}, {sWD}, {sT[0]}")
    I(f"v_bfe_u32 {t0}, {vL}, 3, 2")
    I(f"v_lshlrev_b32 {vWa}, 12, {t0}")
    I(f"v_lshl_add_u32 {vWa}, {vHH}, 10, {vWa}")
    I(f"v_bfe_u32 {t0}, {vL}, 4, 1")
    I(f"v_lshlrev_b32 {t0}, 2, {t0}")
    I(f"v_and_b32 {t1}, 7, {vL}")
    I(f"v_xor_b32 {t0}, {t0}, {t1}")
    I(f"v_lshl_add_u32 {vWa}, {t0}, 4, {vWa}")
    I(f"v_add_u32 {vWb}, 1024, {vWa}")
    r0 = G['vWr'][0]
    I(f"v_bfe_u32 {t0}, {vL}, 2, 2")
    I(f"v_lshlrev_b32 {r0}, 7, {t0}")
    I(f"v_lshl_add_u32 {r0}, {vHH}, 9, {r0}")
    I(f"v_bfe_u32 {t0}, {vL}, 3, 1")
    I(f"s_and_b32 {sT[0]}, {sWv}, 1")
    I(f"v_xor_b32 {t0}, {sT[0]}, {t0}")
    I(f"v_lshl_add_u32 {r0}, {t0}, 6, {r0}")
    I(f"v_and_b32 {t0}, 1, {vL}")
    I(f"v_lshl_add_u32 {r0}, {t0}, 5, {r0}")
    I(f"v_bfe_u32 {t0}, {vL}, 4, 1")
    I(f"v_lshl_add_u32 {r0}, {t0}, 4, {r0}")
    I(f"v_bfe_u32 {t0}, {vL}, 1, 1")
    I(f"v_lshl_add_u32 {r0}, {t0}, 3, {r0}")
    I(f"s_mul_i32 {sWDs}, {sWv}, {WDW0}")
    I(f"s_add_u32 {sWDs}, {sWDs}, {WDS0}")
    I(f"v_add_u32 {r0}, {sWDs}, {r0}")
    I(f"v_xor_b32 {G['vWr'][1]}, 64, {r0}")
    G['vWx'] = None
    G['wd'] = dict(nd=0, nr=0, free=[6, 7, 8, 9, 0, 1, 2, 3], ban=set(), slot={}, dt={}, rt={}, ti={}, rd={})
def wd_rebase(sbase, nslots):
    W = G['wd']; assert W['nd'] == W['nr']
    I(f"s_sub_u32 {sT[0]}, {sbase}, {sWDs}")
    I(f"s_mov_b32 {sWDs}, {sbase}")
    for r in G['vWr']: I(f"v_add_u32 {r}, {sT[0]}, {r}")
    W['free'] = list(range(nslots)); W['rt'] = {}; W['ban'] = set()
def wd_dma():
    W = G['wd']; n = W['nd']
    if n >= 28 or not W['free']: return False
    sl = W['free'].pop(0); W['slot'][n] = sl
    P.wait(W['rt'].get(sl))
    I(f"s_add_u32 m0, {sWDs}, {2048*sl}")
    wd_src(n)
    W['dt'][n] = [I(f"buffer_load_dwordx4 {G['vWa']}, {rWD}, {sWo} offen lds"),
                  I(f"buffer_load_dwordx4 {G['vWb']}, {rWD}, {sWo} offen offset:1024 lds")]
    W['nd'] = n+1
    return True
XB = 6*16384
def xoff(sl): k = sl - 100; return (k >> 1)*16384 + (k & 1)*2048
def wd_m0(sl):
    if sl < 100: I(f"s_add_u32 m0, {sWDs}, {2048*sl}")
    else: I(f"s_add_u32 m0, {sWdst}, {XB + xoff(sl)}")
def wd_dma1():
    W = G['wd']; n = W['nd']
    if not W.get('half'):
        if n >= 28 or not W['free']: return False
        sl = W['free'].pop(0); W['slot'][n] = sl
        P.wait(W['rt'].get(sl))
        wd_m0(sl)
        wd_src(n)
        W['dt'][n] = [I(f"buffer_load_dwordx4 {G['vWa']}, {rWD}, {sWo} offen lds")]
        W['half'] = True
    else:
        wd_m0(W['slot'][n])
        I("s_nop 0")
        W['dt'][n].append(I(f"buffer_load_dwordx4 {G['vWb']}, {rWD}, {sWo} offen offset:1024 lds"))
        W['half'] = False; W['nd'] = n+1; W['ti'][n] = max(G.get('now', 0), G.get('lastst', -99) + opt('sl', 44) - opt('wdl', 20))
    return True
def wd_read():
    W = G['wd']; n = W['nr']
    if n >= W['nd']: return False
    sl = W['slot'][n]
    P.wait(W['dt'][n])
    W['rt'][sl] = [I(f"ds_read_b64_tr_b16 {AWD[8*n+4*dt+2*g:8*n+4*dt+2*g+2]}, {G['vWr' if sl < 100 else 'vWx'][dt]} offset:{(2048*sl if sl < 100 else xoff(sl))+1024*g}") for dt in range(2) for g in range(2)]
    W['last'] = W['rt'][sl]; W['rd'][n] = W['rt'][sl]
    if sl not in W['ban']: W['free'].append(sl)
    W['nr'] = n+1
    return True

def conv(side_per=None):
    vAa = V.alloc(); vBa = V.alloc(); vRW = V.alloc()
    I(f"s_lshr_b32 {sT[0]}, {sWv}, 1")
    I(f"s_and_b32 {sT[1]}, {sWv}, 1")
    I(f"s_lshl_b32 {sT[1]}, {sT[1]}, 8")
    I(f"s_mul_i32 {sT[2]}, {sT[0]}, {TCH}")
    I(f"s_add_u32 {sT[2]}, {sT[2]}, {sT[1]}")
    I(f"s_mul_i32 {sT[3]}, {sT[0]}, {UCH}")
    I(f"s_add_u32 {sT[3]}, {sT[3]}, {sT[1]}")
    I(f"s_add_u32 {sT[3]}, {sT[3]}, {UB+480}")
    I(f"v_and_b32 {t0}, 7, {vL}")
    I(f"v_mul_u32_u24 {vAa}, {TCOPY}, {t0}")
    I(f"v_bfe_u32 {t0}, {vL}, 3, 1")
    I(f"v_lshrrev_b32 {t1}, 4, {vL}")
    I(f"v_add_u32 {t0}, {t0}, {t1}")
    I(f"v_lshl_add_u32 {vAa}, {t0}, 4, {vAa}")
    I(f"v_add_u32 {vAa}, {sT[2]}, {vAa}")
    I(f"v_and_b32 {t0}, 15, {vL}")
    I(f"v_lshlrev_b32 {t2}, 5, {t0}")
    I(f"v_lshlrev_b32 {vBa}, 4, {t1}")
    I(f"v_sub_u32 {vBa}, {vBa}, {t2}")
    I(f"v_add_u32 {vBa}, {sT[3]}, {vBa}")
    I(f"v_and_b32 {vRW}, 1, {t1}")
    I(f"v_lshlrev_b32 {vRW}, 12, {vRW}")
    I(f"v_add_u32 {vRW}, {vRW}, {t2}")
    I(f"v_lshrrev_b32 {t1}, 1, {t1}")
    I(f"v_lshl_add_u32 {vRW}, {t1}, 4, {vRW}")
    I(f"s_mul_i32 {sT[0]}, {sWv}, {WDW0}")
    I(f"s_add_u32 {sT[0]}, {sT[0]}, {WDS0+REDO}")
    I(f"v_add_u32 {vRW}, {sT[0]}, {vRW}")
    G['convaddr'] = (vAa, vBa, vRW)
def conv_run(hook=None):
    vAa, vBa, vRW = G['convaddr']
    D = Frags(8); FA = [Frags(8, A), AWD[192:224]]; FB = [AWD[160:192], Frags(8)]
    def reads(n):
        b = n & 1; out = []
        for t in range(8):
            out.append(lambda t=t: I(f"ds_read_b128 {FA[b][4*t:4*t+4]}, {vAa} offset:{TAPS + 64*n + 512*t}"))
            out.append(lambda t=t: I(f"ds_read_b128 {FB[b][4*t:4*t+4]}, {vBa} offset:{512*(7-t) + 64*n}"))
        return out
    ctok = {0: [f() for f in reads(0)]}
    cnt = 0
    for n in range(4):
        b = n & 1
        nxt = reads(n+1) if n < 3 else []
        ctok[n+1] = []
        if n < 3: pairs = sorted([(t, jj) for t in range(8) for jj in range(8-t)], key=lambda p: (max(p), p))
        else: pairs = sorted([(t, jj) for t in range(8) for jj in range(8-t)], key=lambda p: (p[0]+p[1], p))
        seen = set(); done = {}
        if n > 0: P.wait(ctok[n])
        for i, (t, jj) in enumerate(pairs):
            P.wait(ctok[n][2*t], ctok[n][2*jj+1])
            j = t + jj
            first = (n == 0 and j not in seen); seen.add(j)
            I(f"v_mfma_f32_16x16x32_bf16 {D[4*j:4*j+4]}, {FA[b][4*t:4*t+4]}, {FB[b][4*jj:4*jj+4]}, {0 if first else D[4*j:4*j+4]}")
            if nxt and i >= 1 and i % 2 == 1: ctok[n+1].append(nxt.pop(0)())
            if n == 3:
                if t == j: done[j] = i
                for jd, idn in list(done.items()):
                    if i >= idn + opt('rdel', 6):
                        I(f"ds_write_b128 {vRW}, {D[4*jd:4*jd+4]} offset:{512*jd}"); del done[jd]
            if hook: hook(cnt)
            cnt += 1
        while nxt: ctok[n+1].append(nxt.pop(0)())
    for jd in sorted(done): I(f"ds_write_b128 {vRW}, {D[4*jd:4*jd+4]} offset:{512*jd}")
    assert G['wd']['nr'] <= 20
    for r in [FA[0], FB[1], vAa, vBa, vRW, D]: r.free()

sX1 = S.alloc(2)
def x1_addr():
    G['vRr'] = V.alloc(); G['vRr2'] = V.alloc(); G['vXw'] = vXw = V.alloc(); G['vXr'] = vXr = V.alloc(); G['vS2'] = vS2 = V.alloc()
    I(f"v_add_u32 {G['vRr']}, {WDS0+REDO}, {vT16}")
    I(f"v_add_u32 {G['vRr2']}, {WDS0+REDO+2*WDW0}, {vT16}")
    I(f"v_bfe_u32 {t0}, {vL}, 2, 1")
    I(f"v_lshl_add_u32 {vXw}, {t0}, 10, {sWDs}")
    I(f"v_lshrrev_b32 {t0}, 3, {vL}")
    I(f"v_lshl_add_u32 {vXw}, {t0}, 7, {vXw}")
    I(f"v_and_b32 {t0}, 3, {vL}")
    I(f"v_lshl_add_u32 {vXw}, {t0}, 4, {vXw}")
    I(f"v_lshl_add_u32 {vXr}, {t0}, 3, {sWDs}")
    I(f"v_bfe_u32 {t0}, {vL}, 4, 1")
    I(f"v_lshl_add_u32 {vXr}, {t0}, 5, {vXr}")
    I(f"v_bfe_u32 {t0}, {vL}, 2, 2")
    I(f"v_lshl_add_u32 {vXr}, {t0}, 6, {vXr}")
    I(f"v_lshl_add_u32 {vXr}, {vHH}, 9, {vXr}")
    I(f"s_lshl_b32 {sX1[0]}, {sGI}, 6")
    I(f"s_add_u32 {sX1[0]}, {sX1[0]}, {sKS}")
    I(f"s_lshl_b32 {sX1[0]}, {sX1[0]}, 10")
    I(f"s_add_u32 {sX1[0]}, {sX1[0]}, {X1T}")
    I(f"s_add_u32 {sX1[1]}, {sX1[0]}, 32768")
    I(f"s_lshl_b32 {sT[0]}, {sGI}, 13")
    I(f"s_lshl_b32 {sT[1]}, {sXJ}, 9")
    I(f"s_add_u32 {sT[0]}, {sT[0]}, {sT[1]}")
    I(f"s_add_u32 {sT[0]}, {sT[0]}, {S2}")
    I(f"s_cmp_eq_u32 {sWv}, 0")
    I(f"s_cselect_b32 {sT[0]}, {sT[0]}, {OOB}")
    I(f"v_lshl_add_u32 {vS2}, {vQ}, 4, {sT[0]}")
    I(f"v_lshl_add_u32 {vS2}, {vHH}, 12, {vS2}")
def C_y():
    Y = Frags(8); yo = Frags(2)
    tl = []
    for c in range(2):
        for kh in range(2):
            for h in range(2):
                tl.append(I(f"ds_read_b128 {Y[16*c+8*kh+4*h:16*c+8*kh+4*h+4]}, {G['vRr2'] if c else G['vRr']} offset:{kh*WDW0 + 4096*h}"))
    C_pre0()
    G['tys'] = []
    for c in range(2):
        P.wait(tl[4*c:4*c+4])
        for e in range(0, 8, 2): I(f"v_pk_add_f32 {Y[16*c+e:16*c+e+2]}, {Y[16*c+e:16*c+e+2]}, {Y[16*c+8+e:16*c+8+e+2]}")
        for n in range(4): I(f"v_cvt_pk_bf16_f32 {yo[4*c+n]}, {Y[16*c+2*n]}, {Y[16*c+2*n+1]}")
        G['tys'].append(I(f"buffer_store_dwordx4 {yo[4*c:4*c+4]}, {vT16}, {rWS}, {sUY[c]} offen {LST}"))
    for r in [Y, yo, G['vRr'], G['vRr2']]: r.free()
def L_y():
    G['YL'] = YL = Frags(2)
    G['tyl'] = [I(f"buffer_load_dwordx4 {YL[4*c:4*c+4]}, {vGS}, {rWS}, {sC4096 if c else 0} offen sc1") for c in range(2)]
    vGS.free()
def C_x1():
    HG, BS, YL = G['HG'], G['BS'], G['YL']
    yf = V.alloc(8); F = Frags(2); q = V.alloc(4)
    for c in range(2):
        P.wait(G['tyl'][c])
        for p in range(4): unpack(yf[2*p], YL[4*c+p], 0); unpack(yf[2*p+1], YL[4*c+p], 1)
        for p in range(4): I(f"v_pk_fma_f32 {BS[8*c+2*p:8*c+2*p+2]}, {HG[8*c+2*p:8*c+2*p+2]}, {yf[2*p:2*p+2]}, {BS[8*c+2*p:8*c+2*p+2]}")
        for p in range(4): I(f"v_cvt_pk_bf16_f32 {YL[4*c+p]}, {BS[8*c+2*p]}, {BS[8*c+2*p+1]}")
        I(f"ds_write_b128 {G['vXw']}, {YL[4*c:4*c+4]} offset:{XTO+64*c}")
    tl = [I(f"ds_read_b64_tr_b16 {F[4*b+2*g:4*b+2*g+2]}, {G['vXr']} offset:{XTO+1024*b+256*g}") for b in range(2) for g in range(2)]
    I(f"v_lshl_add_u32 {t0}, {vL}, 3, {sWDs}")
    G['tx1'] = []
    for b in range(2):
        P.wait(tl[2*b:2*b+2])
        G['tx1'].append(I(f"buffer_store_dwordx4 {F.g[b]}, {vL16}, {rWS}, {sX1[b]} offen sc1"))
    for r in range(4):
        for b in range(2):
            I(f"v_dot2_f32_bf16 {q[2*b]}, {F[4*b+r]}, {sONE}, {0 if r==0 else q[2*b]}")
            I(f"v_dot2_f32_bf16 {q[2*b+1]}, {F[4*b+r]}, {F[4*b+r]}, {0 if r==0 else q[2*b+1]}")
    I(f"v_permlane32_swap_b32 {q[0]}, {q[2]}")
    I(f"v_permlane32_swap_b32 {q[1]}, {q[3]}")
    I(f"v_pk_add_f32 {q[0:2]}, {q[0:2]}, {q[2:4]}")
    I(f"ds_write_b64 {t0}, {q[0:2]} offset:{S2O}")
    for r in (HG, BS, YL, yf, F, q, G['vXw'], G['vXr']): r.free()
def C_s2():
    q = V.alloc(8)
    I(f"v_lshlrev_b32 {t0}, 3, {vL}")
    I(f"v_add_u32 {t0}, {WDS0+S2O}, {t0}")
    tl = [I(f"ds_read_b64 {q[2*w:2*w+2]}, {t0} offset:{WDW0*w}") for w in range(4)]
    P.wait(tl)
    I(f"v_pk_add_f32 {q[0:2]}, {q[0:2]}, {q[2:4]}")
    I(f"v_pk_add_f32 {q[4:6]}, {q[4:6]}, {q[6:8]}")
    I(f"v_add_f32 {q[2]}, {q[1]}, {q[5]}")
    I(f"v_add_f32 {q[0]}, {q[0]}, {q[4]}")
    I(f"v_mov_b32 {q[1]}, {vTag}")
    I(f"v_mov_b32 {q[3]}, {vTag}")
    I(f"buffer_store_dwordx4 {q[0:4]}, {G['vS2']}, {rWS}, 0 offen sc1")
    q.free(); G['vS2'].free()

sRB = S.alloc(); sC1 = S.alloc(); sWsrc = S.alloc(); sWdst = S.alloc()
def A_g1():
    G['vF8'] = vF8 = V.alloc(); G['vPA'] = vPA = V.alloc(); G['vP3'] = vP3 = V.alloc()
    I(f"s_and_b32 {sRB}, {sXJ}, 1")
    I(f"s_lshl_b32 {sRB}, {sRB}, 3")
    I(f"s_lshr_b32 {sT[0]}, {sGI}, 2")
    I(f"s_add_u32 {sRB}, {sRB}, {sT[0]}")
    I(f"s_lshr_b32 {sC1}, {sXJ}, 1")
    I(f"s_lshl_b32 {sC1}, {sC1}, 2")
    I(f"s_and_b32 {sT[0]}, {sGI}, 3")
    I(f"s_add_u32 {sC1}, {sC1}, {sT[0]}")
    I(f"s_lshl_b32 {sT[0]}, {sC1}, 6")
    I(f"v_add_lshl_u32 {vP3}, {vL}, {sT[0]}, {FSH}")
    I(f"s_lshl_b32 {sT[0]}, {sGI}, 5")
    I(f"s_add_u32 {sT[0]}, {sT[0]}, {sKS}")
    I(f"v_lshlrev_b32 {vF8}, 10, {vL}")
    I(f"v_add_lshl_u32 {vF8}, {vF8}, {sT[0]}, {FSH}")
    I(f"v_mov_b32 {t1}, {OOB}")
    I(f"v_cmp_gt_u32 vcc, 4, {vL}")
    I(f"s_lshr_b32 {sT[0]}, {sXJ}, 1")
    I(f"s_lshl_b32 {sT[0]}, {sT[0]}, 4")
    I(f"s_add_u32 {sT[0]}, {sT[0]}, {sRB}")
    I(f"s_lshl_b32 {sT[0]}, {sT[0]}, 1")
    I(f"s_lshr_b32 {sT[1]}, {sWv}, 1")
    I(f"s_add_u32 {sT[0]}, {sT[0]}, {sT[1]}")
    I(f"s_lshl_b32 {sT[0]}, {sT[0]}, 5")
    I(f"v_add_lshl_u32 {vPA}, {vQ}, {sT[0]}, {FSH}")
    I(f"v_cndmask_b32 {vF8}, {t1}, {vF8}, vcc")
    I(f"s_mul_i32 {sWsrc}, {sC1}, 229376")
    I(f"s_lshl_b32 {sWdst}, {sWv}, 12")
    I(f"s_add_u32 {sWsrc}, {sWsrc}, {sWdst}")
    I(f"s_add_u32 {sWsrc}, {sWsrc}, {WP}")
def w_dma(src_off, dst_off, n0=0, n1=4):
    I(f"s_add_u32 m0, {sWdst}, {WL + dst_off}")
    I(f"s_add_u32 {sT[0]}, {sWsrc}, {src_off}")
    return [I(f"buffer_load_dwordx4 {vL16}, {rWS}, {sT[0]} offen offset:{1024*n} sc1 lds") for n in range(n0, n1)]
def wd_burst(n):
    for _ in range(n):
        if not wd_dma():
            wd_read(); wd_dma()
flag_setup(); m_addr()
vpf = V.alloc()
if LOC:
    flag_load(vpf, G['vFp'], F1); flag_load(vpf, G['vFp'], FY); m_loads()
if opt('sfine'): stamp('touch')
A_mod()
LATE = opt('late', 0)
def ftouch():
    if opt('ftouch', 1):
        flag_load(vpf, G['vF3'], F3); flag_load(vpf, G['vF8'], F4)
        I(f"s_lshl_b32 {sT[0]}, {sRB}, 2")
        I(f"s_add_u32 {sT[0]}, {sT[0]}, {sWv}")
        I(f"s_lshl_b32 {sT[0]}, {sT[0]}, 4")
        I(f"s_add_u32 {sT[0]}, {sT[0]}, {sC1}")
        I(f"s_lshl_b32 {sT[0]}, {sT[0]}, {FSH}")
        I(f"v_min_u32 {t0}, 3, {vL}")
        I(f"v_lshl_add_u32 {t0}, {t0}, 15, {sT[0]}")
        flag_load(vpf, t0, F5)
def setup2():
    zero_pads(); A_mod2(); conv(); wd_setup()
def setup3():
    w_addr(); x1_addr(); st_addr(); A_f3(); A_g1(); ftouch()
if LATE < 2: setup2()
if opt('sfine'): stamp('su2')
if LATE < 1: setup3()
def wd_touch():
    I(f"s_mul_i32 {sT[0]}, s2, 7168")
    I(f"s_add_u32 {sT[1]}, {sT[0]}, 3072")
    for c in range(2): I(f"buffer_load_dwordx4 {PT}, {vT16}, {rWD}, {sT[c]} offen")
def afterk():
    L_xr(); L_mod()
    if opt('early', 1) >= 1: L_taps()
G['afterk'] = afterk
C_tag(); C_kv(); stamp("kv st")
if opt('cpf', 0) in (1, 2): cpa.free(); cpd.free()
if opt('early', 1) < 1: L_taps()
if opt('early', 1) >= 2: L_w()
if opt('wdt', 1) == -1: wd_touch()
if LATE >= 2: setup2()
if LATE >= 1: setup3()
C_st(); stamp("st")
C_mod(); stamp("mod1")
P.wait(G['tks']); post_local(G['vFo'], F1)
def midmod():
    stamp("mod2")
    tc = [0]
    def thk():
        tc[0] += 1
        if tc[0] == opt('f1i', 1): G['tpf'] = flag_load(vpf, G['vFp'], F1)
        if tc[0] == opt('f1c', 5):
            check_local(vpf, G['vFp'], G['vFo'], F1, G['tpf']); L_u(); G['tm'] = m_loads()
    C_taps(thk); stamp("taps")
G['midmod'] = midmod
C_mod2()
if opt('early', 1) < 2: L_w()
if opt('wdt', 1) == 1: wd_touch()
if opt('cpf', 0) == 3:
    ca = V.alloc(2)
    I(f"s_getpc_b64 {sTp2}")
    I(f"s_and_b32 {sTp2[0]}, {sTp2[0]}, 0xffffff00")
    I(f"s_and_b32 {sT[5]}, {sGI}, 7")
    I(f"s_min_u32 {sT[5]}, {sT[5]}, 4")
    I(f"s_lshl_b32 {sT[5]}, {sT[5]}, 12")
    I(f"s_add_u32 {sTp2[0]}, {sTp2[0]}, {sT[5]}")
    I(f"s_addc_u32 {sTp2[1]}, {sTp2[1]}, 0")
    I(f"v_mov_b32 {ca[1]}, {sTp2[1]}")
    I(f"v_add_co_u32 {ca[0]}, vcc, {sTp2[0]}, {vT16}")
    I(f"v_addc_co_u32 {ca[1]}, vcc, 0, {ca[1]}, vcc")
    I(f"global_load_dwordx4 {PT}, {ca}, off")
    ca.free()
C_u(); stamp("U ok")
P.wait_all(vm=False); I("s_barrier")
stamp("bar")
cside = []
H2, WDC = opt('h2', 4), opt('wdc', 8)
def hook(c):
    if c >= opt('hx', 40) and c < opt('hx', 40) + 16 and c % 2 == 0: L_x1((c - opt('hx', 40))//2)
    if c == opt('hx', 40) + 18: L_d()
    if c == H2: C_m(); cside.extend(m_ops() + [C_w_reads, None, None, None] + wu_ops() + w_ops() + c_ops() + x_ops())
    if c == opt('hst', 100): L_st()
    if opt('wdt', 1) > 1 and c == opt('wdt', 1): wd_touch()
    if c == opt('hf3', 130): assert len(G['tws']) == 4; P.wait(G['tws']); post_flag(G['vF3'], F3); G['vF3'].free()
    W = G['wd']
    if c == opt('wdban', 60): W['ban'] = {6, 7, 8, 9}; W['free'] = [x for x in W['free'] if x < 6]
    if c >= opt('wd0', 16) and c % (WDC//2) == 0 and W['nd'] < opt('wdmax', 8): wd_dma1()
    if c > opt('wdr0', 70) and c % WDC == 2 and W['nr'] < opt('wdrmax', 4): wd_read()
    if c == 107: assert all(W['slot'][n] < 6 for n in range(W['nr'], W['nd'])), "RED slots still in use"
    if opt('cfine') and c in (35, 71, 107): stamp(f'c{c}')
    k = 0
    while cside and k < (1 if (c < 108 and c % 2 == 1) else 2):
        f = cside.pop(0); k += 1
        if f: f()
conv_run(hook)
PT.free()
stamp("conv")
print('cside left', len(cside), file=sys.stderr)
for f in cside:
    if f: f()
P.wait_all(vm=False); I("s_barrier")
C_y(); stamp("y st")
print('wd after conv', G['wd']['nd'], G['wd']['nr'], file=sys.stderr)
vP3 = G['vP3']; vPA = G['vPA']; vp3 = V.alloc()
if opt('wda', 4):
    while wd_read(): pass
    for _ in range(opt('wda', 4)): wd_dma()
C_pre1()
P.wait(G['tys']); post_local(G['vFo'], FY); stamp("FY post")
C_pre2(0)
tpf = flag_load(vpf, G['vFp'], FY)
tp3 = flag_load(vp3, vP3, F3)
C_pre2(1)
check_local(vpf, G['vFp'], G['vFo'], FY, tpf); G['vFp'].free(); G['vFo'].free(); vTagL.free(); vpf.free()
L_y(); stamp("FY ok")
wch = {}
def w_group(): i = len(wch); wch[i] = w_dma(16384*i, 16384*i)
F3E = opt('f3e', 1)
def f3chk():
    check_tags([vp3], lambda: flag_load(vp3, vP3, F3), tp3)
if F3E:
    f3chk()
    for _ in range(opt('w1', 2)): w_group()
C_c12b()
C_x1(); stamp("x1 st")
if not F3E: f3chk()
for _ in range(opt('w15', 2)): w_group()
while wd_read(): pass
P.wait(G['tx1']); post_flag(G['vF8'], F4); G['vF8'].free()
stamp("F4 post")
sDQ = S.alloc(); gb2 = V.alloc(4); vGb = V.alloc(); vGB = V.alloc()
I(f"s_and_b32 {sT[3]}, {sWv}, 1")
I(f"s_lshl_b32 {sT[3]}, {sT[3]}, 5")
I(f"s_lshl_b32 {sDQ}, {sDB}, 6")
I(f"s_add_u32 {sDQ}, {sDQ}, {sT[3]}")
I(f"s_lshl_b32 {sT[0]}, {sDQ}, 3")
I(f"s_add_u32 {sT[0]}, {sT[0]}, {MODG + 5*16384}")
I(f"v_lshl_add_u32 {vGb}, {vQ}, 3, {sT[0]}")
I(f"v_lshl_add_u32 {vGb}, {vHH}, 13, {vGb}")
def gb_ld():
    return [I(f"buffer_load_dwordx2 {gb2[2*n:2*n+2]}, {vGb}, {rWS}, {sC4096 if n else 0} offen sc1") for n in range(2)]
tgb = gb_ld()
P.wait_all(vm=False); I("s_barrier")
C_s2()
while len(wch) < 5: w_group()
I("s_barrier")
NPRE = opt('npre', 8); NP4 = opt('np4', 7)
vp4 = V.alloc()
while len(wch) < NPRE:
    if len(wch) == NP4: tp4 = flag_load(vp4, vPA, F4)
    w_group()
if NP4 >= NPRE: tp4 = flag_load(vp4, vPA, F4)
stamp("W pre")
for r in (rK, rV, rSH): r.free()
sXsrc = S.alloc(); sXdst = S.alloc(); sSB = S.alloc(); sHS = S.alloc(); sSG = S.alloc()
I(f"s_lshl_b32 {sSB}, {sRB}, 2")
I(f"s_add_u32 {sSB}, {sSB}, {sWv}")
I(f"s_lshl_b32 {sXsrc}, {sSB}, 15")
I(f"s_add_u32 {sXsrc}, {sXsrc}, {X1T}")
I(f"s_mul_i32 {sXdst}, {sWv}, {XSW}")
I(f"s_add_u32 {sXdst}, {sXdst}, {XS}")
I(f"s_mul_i32 {sHS}, {sSB}, 112")
I(f"s_mul_i32 {sT[0]}, {sC1}, 7")
I(f"s_add_u32 {sHS}, {sHS}, {sT[0]}")
I(f"s_lshl_b32 {sHS}, {sHS}, 10")
I(f"s_add_u32 {sHS}, {sHS}, {HH}")
I(f"s_lshl_b32 {sSG}, {sSB}, 12")
I(f"s_add_u32 {sSG}, {sSG}, {S2}")
ACC = [V.alloc(16) for _ in range(NA+2)]
vAd = V.alloc(); vAd2 = V.alloc(); vEx = V.alloc(); vL16b = V.alloc(); vF5 = V.alloc()
I(f"v_bfe_u32 {t0}, {vL}, 2, 3")
I(f"v_lshlrev_b32 {vAd}, 7, {t0}")
I(f"v_bfe_u32 {t0}, {vL}, 4, 1")
I(f"v_xor_b32 {t0}, {t0}, {vHH}")
I(f"v_lshl_add_u32 {vAd}, {t0}, 6, {vAd}")
I(f"v_and_b32 {t0}, 3, {vL}")
I(f"v_lshl_add_u32 {vAd}, {t0}, 4, {vAd}")
I(f"v_add_u32 {vAd2}, 65536, {vAd}")
I(f"v_lshlrev_b32 {vEx}, 4, {vQ}")
I(f"v_add_u32 {vEx}, {EX}, {vEx}")
I(f"v_add_u32 {vL16b}, 4096, {vL16}")
vCl = V.alloc(); vCe = V.alloc(); sCL = S.alloc()
I(f"s_mul_i32 {sCL}, {sC1}, {8*1792}")
I(f"s_mul_i32 {sT[0]}, {sWv}, 448")
I(f"s_add_u32 {sCL}, {sCL}, {sT[0]}")
I(f"s_add_u32 {sCL}, {sCL}, {C12}")
I(f"v_min_u32 {t0}, 27, {vQ}")
I(f"v_mul_u32_u24 {vCl}, {4*1792}, {vHH}")
I(f"v_lshl_add_u32 {vCl}, {t0}, 4, {vCl}")
I(f"s_and_b32 {sT[0]}, {sWv}, 1")
I(f"s_mul_i32 {sT[0]}, {sT[0]}, 56")
I(f"v_lshl_add_u32 {t0}, {t0}, 1, {vHH}")
I(f"v_add_u32 {t0}, {sT[0]}, {t0}")
I(f"s_lshr_b32 {sT[0]}, {sWv}, 1")
I(f"s_lshl_b32 {sT[0]}, {sT[0]}, 8")
I(f"s_add_u32 {sT[0]}, {sT[0]}, {EX}")
I(f"v_and_b32 {t1}, 15, {t0}")
I(f"v_lshl_add_u32 {vCe}, {t1}, 4, {sT[0]}")
I(f"v_lshrrev_b32 {t0}, 4, {t0}")
I(f"v_lshl_add_u32 {vCe}, {t0}, 9, {vCe}")
I(f"s_lshl_b32 {sT[0]}, {sSB}, 4")
I(f"s_add_u32 {sT[0]}, {sT[0]}, {sC1}")
I(f"s_lshl_b32 {sT[0]}, {sT[0]}, {FSH}")
lane0(vF5, sT[0], t1)
if G['wd']['nr'] < 28: wd_rebase(sXdst, 3)
for _ in range(opt('wdb', 0)): wd_dma()
check_tags([gb2[1], gb2[3]], gb_ld, tgb)
I(f"v_add_f32 {gb2[0]}, {gb2[0]}, {gb2[2]}")
I(f"v_mov_b32 {gb2[1]}, {gb2[0]}")
I(f"v_permlane32_swap_b32 {gb2[0]}, {gb2[1]}")
I(f"v_add_f32 {gb2[0]}, {gb2[0]}, {gb2[1]}")
round_bf16(vGB, gb2[0])
gb2.free(); vGb.free()
check_tags([vp4], lambda: flag_load(vp4, vPA, F4), tp4)
vPA.free(); vp4.free()
published = set(g for g in wch if wch[g][-1][1] < P.vm_done)
stamp("F4 ok")

Bf = Frags(32)
btok = {}
def b_next():
    ks = len(btok)
    if ks >= 32: return False
    if ks and ks % 4 == 0: I(f"s_add_u32 {sXsrc}, {sXsrc}, 4096")
    btok[ks] = I(f"buffer_load_dwordx4 {Bf.g[ks]}, {vL16}, {rWS}, {sXsrc} offen offset:{1024*(ks&3)} sc1")
    return True
for _ in range(opt('b0', 12)): b_next()
I("s_barrier")
AR = A.reserve(224, 32)
SGX = Frags(4); BX = SGX.g[0]; hp = SGX.g[1]; vRS2 = V.alloc()
TMP = ACC[NA+1]
jobs = [(it, ks, ks*NA+it) for ks in range(32) for it in range(NA)]
XD = opt('xd', 10)
tl_ = [(NA, ks, NA*32 + ks) for ks in range(32)]
jobs += tl_[:XD] + [(it, 'x', None) for it in range(NA+1)] + tl_[XD:]
for it in range(NA+1, 7):
    jobs += [(it, 'x', None)] + [(it, ks, it*32 + ks) for ks in range(32)]
NJ = len(jobs); TT = {it: 33*it for it in range(NA, 8)}; T4, T5, T6 = 132, 165, 198; XA = 32*NA + XD
first_job = {}; last_job = {}
for n, (it, ks, fr) in enumerate(jobs):
    if fr is not None:
        first_job.setdefault(fr//16, n); last_job[fr//16] = n
accmap = {it: it % (NA+2) for it in range(7)}
def job_read(n):
    it, ks, fr = jobs[n]
    dst = AR[4*(n%8):4*(n%8)+4]
    if ks == 'x': return I(f"ds_read_b128 {dst}, {vEx} offset:{512*it}")
    assert fr//16 in published, (n, fr)
    off = ((fr//16) % NG)*16384 + (fr % 16)*1024
    if off < 65536: return I(f"ds_read_b128 {dst}, {vAd} offset:{off}")
    return I(f"ds_read_b128 {dst}, {vAd2} offset:{off-65536}")
LOOK = 6
atok = {}
for n in range(LOOK): atok[n] = job_read(n)
stamp("g1 start")

class VM:
    def __init__(self, f): self.f = f
    def __call__(self): return self.f()
side = []
def c12_ops():
    ops = []; tk = []
    CL = TMP
    def l(g):
        if g == 2: I(f"s_add_u32 {sCL}, {sCL}, 3584")
        tk.append(I(f"buffer_load_dwordx4 {CL[4*g:4*g+4]}, {vCl}, {rWS}, {sCL} offen offset:{(g&1)*1792} sc1"))
    for g in range(4): ops.append(lambda g=g: l(g))
    ops2 = [lambda: P.wait(tk)]
    for st in (2, 1):
        for g in range(st):
            for h in range(4):
                ops2.append(lambda g=g, st=st, h=h: I(f"v_add_f32 {CL[4*g+h]}, {CL[4*g+h]}, {CL[4*(g+st)+h]}"))
    ops2.append(None)
    for h in range(2): ops2.append(lambda h=h: I(f"v_permlane32_swap_b32 {CL[h]}, {CL[2+h]}"))
    for h in range(2): ops2.append(lambda h=h: I(f"v_add_f32 {CL[h]}, {CL[h]}, {CL[2+h]}"))
    seq = [f"v_cvt_pk_bf16_f32 {CL[5]}, {CL[0]}, {CL[1]}",
           f"v_lshlrev_b32 {CL[2]}, 16, {CL[5]}",
           f"v_and_b32 {CL[3]}, {sHI}, {CL[5]}",
           f"v_sub_f32 {CL[0]}, {CL[0]}, {CL[2]}",
           f"v_sub_f32 {CL[1]}, {CL[1]}, {CL[3]}",
           f"v_cvt_pk_bf16_f32 {CL[4]}, {CL[2]}, {CL[0]}",
           f"v_cvt_pk_bf16_f32 {CL[6]}, {CL[1]}, {CL[3]}",
           f"v_mov_b32 {CL[7]}, 0"]
    for s_ in seq: ops2.append(lambda s_=s_: I(s_))
    ops2.append(lambda: G.__setitem__('tex', I(f"ds_write_b128 {vCe}, {CL[4:8]}")))
    ops2.append(lambda: (vCl.free(), vCe.free()))
    return ops, ops2
def sg_loads(j0=0, j1=4):
    return [I(f"buffer_load_dwordx4 {SGX.g[j]}, {vL16}, {rWS}, {sSG} offen offset:{1024*j} sc1") for j in range(j0, j1)]
def stats2_ops(tk):
    ops = [lambda: check_tags([SGX[2*i+1] for i in range(8)], sg_loads, tk)] + [None]*6
    for j in range(2):
        for i in (0, 2): ops.append(lambda i=i, j=j: I(f"v_add_f32 {SGX[4*j+i]}, {SGX[4*j+i]}, {SGX[8+4*j+i]}"))
    Z = SGX.g[2]; a, b, c, d = Z[0], Z[1], Z[2], Z[3]; e = SGX.g[3][0]
    seq = [f"v_add_f32 {a}, {SGX[0]}, {SGX[4]}", f"v_add_f32 {c}, {SGX[2]}, {SGX[6]}",
           f"v_mov_b32 {b}, {a}", f"v_mov_b32 {d}, {c}", None,
           f"v_permlane32_swap_b32 {a}, {b}", f"v_permlane32_swap_b32 {c}, {d}",
           f"v_add_f32 {a}, {a}, {b}", f"v_add_f32 {c}, {c}, {d}",
           f"v_mul_f32 {b}, 0xbb000000, {a}", f"v_mul_f32 {c}, 0x3b000000, {c}",
           f"v_fma_f32 {d}, -{b}, {b}, {c}", f"v_max_f32 {d}, 0, {d}", f"v_add_f32 {d}, 0x3727c5ac, {d}",
           f"v_sqrt_f32 {c}, {d}", f"v_rcp_f32 {vRS2}, {d}",
           f"v_cmp_eq_u32 vcc, 0, {vHH}",
           f"v_mov_b32 {BX[3]}, 0",
           f"v_cndmask_b32 {b}, 0, {b}, vcc", f"v_cndmask_b32 {c}, 0, {c}, vcc",
           f"v_cvt_pk_bf16_f32 {BX[0]}, {b}, {b}",
           f"v_cvt_pk_bf16_f32 {e}, {c}, {c}",
           f"v_and_b32 {a}, {sHI}, {BX[0]}", f"v_and_b32 {e}, {sHI}, {e}",
           f"v_sub_f32 {b}, {b}, {a}", f"v_sub_f32 {c}, {c}, {e}",
           f"v_cvt_pk_bf16_f32 {BX[1]}, {b}, {e}",
           f"v_cvt_pk_bf16_f32 {BX[2]}, {e}, {c}"]
    for s_ in seq: ops.append((lambda s_=s_: I(s_)) if s_ else None)
    return ops
hst = {}
def epilogue(it):
    ac = ACC[accmap[it]]; ops = []
    for r in range(8): ops.append(lambda r=r: I(f"v_mul_f32 {ac[r]}, {ac[r]}, {ac[8+r]}"))
    for r in range(8): ops.append(lambda r=r: I(f"v_mul_f32 {ac[r]}, {ac[r]}, {vRS2}"))
    for n in range(4): ops.append(lambda n=n: I(f"v_cvt_pk_bf16_f32 {hp[n]}, {ac[2*n]}, {ac[2*n+1]}"))
    def st():
        G['lastst'] = G['now']
        hst[it] = I(f"buffer_store_dwordx4 {hp}, {vL16 if it < 4 else vL16b}, {rWS}, {sHS} offen offset:{1024*(it&3)} sc1")
    ops.append(VM(st)); ops.append(None)
    return ops
def lvl_flag(level, tiles):
    def f():
        P.wait([hst[t] for t in tiles])
        post_flag(vF5, F5 + level*FL)
    return f
def epoch_store():
    I(f"s_or_b32 {sT[0]}, s2, {sWv}")
    I(f"s_cselect_b32 {sT[0]}, {OOB}, {EPOCH}")
    lane0(t0, sT[0], t1)
    I(f"buffer_store_dword {vTag}, {t0}, {rWS}, 0 offen sc1")
sSQ = S.alloc(); sH0 = S.alloc(); sH1 = S.alloc()
ht = {}; hreg = {}; hfree = []
def h_load(i, st):
    c, it = order[i]; n = c*7 + it
    hreg[i, st] = r = hfree.pop(0)
    I(f"s_add_u32 {sT[0]}, {sH1 if st else sH0}, {1024*n}")
    ht[i, st] = I(f"buffer_load_dwordx4 {r}, {vL16}, {rWS}, {sT[0]} offen sc1")
def g2_setup_ops():
    seq = [f"s_lshr_b32 {sT[3]}, {sWv}, 1", f"s_lshl_b32 {sSQ}, {sR64}, 1", f"s_add_u32 {sSQ}, {sSQ}, {sT[3]}",
           f"s_mul_i32 {sT[4]}, {sWv}, 28", f"s_mul_i32 {sH0}, {sSQ}, 112", f"s_add_u32 {sH0}, {sH0}, {sT[4]}",
           f"s_lshl_b32 {sH0}, {sH0}, 10", f"s_add_u32 {sH0}, {sH0}, {HH}",
           f"s_xor_b32 {sT[3]}, {sSQ}, 1", f"s_mul_i32 {sH1}, {sT[3]}, 112", f"s_add_u32 {sH1}, {sH1}, {sT[4]}",
           f"s_lshl_b32 {sH1}, {sH1}, 10", f"s_add_u32 {sH1}, {sH1}, {HH}",
           f"v_and_b32 {t1}, 1, {vL}", f"v_lshlrev_b32 {t1}, 4, {t1}", f"v_bfe_u32 {t2}, {vL}, 1, 2", f"v_add_u32 {t1}, {t1}, {t2}",
           f"s_lshl_b32 {sT[3]}, {sR64}, 5", f"s_lshl_b32 {sT[4]}, {sWv}, 2", f"s_add_u32 {sT[3]}, {sT[3]}, {sT[4]}",
           f"v_add_lshl_u32 {vP5}, {t1}, {sT[3]}, {FSH}"]
    return [(lambda x=x: I(x)) for x in seq]
def res_loads():
    I(f"s_lshl_b32 {sT[0]}, {sSQ}, 15")
    I(f"s_lshl_b32 {sT[1]}, {sDQ}, 6")
    I(f"s_add_u32 {sT[0]}, {sT[0]}, {sT[1]}")
    I(f"s_add_u32 {sT[0]}, {sT[0]}, {X1T}")
    I(f"v_lshl_add_u32 {t0}, {vHH}, 9, {vL16}")
    G['txq'] = [I(f"buffer_load_dwordx4 {XQ[4*n:4*n+4]}, {t0}, {rWS}, {sT[0]} offen offset:{512*n} sc1") for n in range(2)]
c12a, c12b = c12_ops()
sgt = []
wq = []
VSP, BL, WD0, WDL = opt('vsp', 2), opt('bl', 36), opt('wdg', 4), opt('wdl', 20)
vq = []; lastv = -99; lastd = -99
WP_, WDP_, HP0 = opt('wp', 6), opt('wdp', 2), opt('hp0', T6+6)
N6, NC1, NS1, NC2, NS2 = opt('n6', 6), opt('nc1', XA-64), opt('ns1', XA-58), opt('nc2', XA-38), opt('ns2', XA-26)
nextg = NPRE; lastw = -99; xdone = set()
for n, (it, ks, fr) in enumerate(jobs):
    need = [g for g in first_job if g not in published and first_job[g] - LOOK <= n + 1]
    freeable = nextg < 14 and (nextg - NG < 0 or last_job[nextg-NG] < n) and n % opt('fb', 32) == opt('fbo', 2)
    exw = (n == XA - 8)
    if exw: assert 'tex' in G
    if need or freeable or exw:
        ready = [g for g in wch if g not in published and len(wch[g]) == 4 and (g in need or wch[g][-1][1] < P.vm_done)]
        for g in need: assert g in ready, (n, g)
        P.wait([wch[g] for g in ready], atok[n], G.get('tex') if exw else None)
        I("s_barrier"); published |= set(ready)
        for g in (6, 7):
            if opt('xs', 1) and last_job[g] < n and g not in xdone:
                xdone.add(g); G['wd']['free'] = [100 + 2*(g-6), 101 + 2*(g-6)] + G['wd']['free']
                if G['vWx'] is None:
                    G['vWx'] = [V.alloc(), V.alloc()]
                    I(f"s_sub_u32 {sT[5]}, {sWdst}, {sWDs}"); I(f"s_add_u32 {sT[5]}, {sT[5]}, {XB}")
                    for k_ in range(2): I(f"v_add_u32 {G['vWx'][k_]}, {sT[5]}, {G['vWr'][k_]}")
        if opt('dbg'): print(f'\nbar n={n} need={need} ready={ready} lastst', G.get('lastst'), file=sys.stderr)
        while nextg < 14 and (nextg - NG < 0 or last_job[nextg-NG] < n):
            wch[nextg] = []
            for q in range(4): wq.append((first_job[nextg] - opt('wlead', 200), first_job[nextg], lambda g=nextg, q=q: wch[g].extend(w_dma(16384*g, 16384*(g % NG), q, q+1))))
            nextg += 1
    if n in ((32, 64, 96, 128, T5, T6) if not opt('fine') else tuple(range(8, 231, 8))): stamp(f"n{n}")
    if 'win' in OPT and opt('win') <= n < opt('win') + 56*opt('wst', 1) and (n - opt('win')) % opt('wst', 1) == 0: stamp(f'w_{n}'); I(f'; job {n}')
    if n % 2 == 0: P.wait(atok[n], atok.get(n+1), btok.get(ks))
    else: P.wait(atok[n], btok.get(ks))
    ac = ACC[accmap[it]]
    bsrc = BX if ks == 'x' else Bf[4*ks:4*ks+4]
    first = (ks == 0 and it <= NA) or (ks == 'x' and it > NA)
    I(f"v_mfma_f32_32x32x16_bf16 {ac}, {AR[4*(n%8):4*(n%8)+4]}, {bsrc}, {0 if first else ac}")
    if it == 6 and ks != 'x': hfree.append(Bf.g[ks])
    if n + LOOK < NJ: atok[n+LOOK] = job_read(n+LOOK)
    budget = 4
    G['now'] = n
    Wd = G['wd']; vm0 = P.vm
    if n - lastv >= VSP and not any(isinstance(x, VM) for x in side[:3]):
        bdue = len(btok) < 32 and len(btok)*NA - n < BL
        if vq: vq.pop(0)(); budget = 2
        elif bdue: b_next(); budget = 2
        elif wq and wq[0][1] - n < opt('wurg', 300): wq.pop(0)[2](); budget = 1
        elif G.get('l0') and len(hfree) > 1 and len(ht) < 24:
            i = len(ht); h_load(i//2, i % 2); budget = 2
        elif n >= WD0 and n - lastd >= WDP_ and wd_dma1(): lastd = n; budget = 0
        elif wq and n >= wq[0][0]: wq.pop(0)[2](); budget = 1
    if P.vm == vm0 and Wd['nr'] < Wd['nd'] and n - Wd['ti'].get(Wd['nr'], -99) >= WDL: wd_read(); budget = 0
    if n == N6: vq += [epoch_store]
    if n == NC1 - 24: vq += [lambda: G.__setitem__('tp6', flag_load(vp3, vP3, F4))]
    if n == NC1: side += [lambda: (check_tags([vp3], lambda: flag_load(vp3, vP3, F4), G['tp6']), vp3.free(), vP3.free(), vq.extend(c12a))]
    if n == NS1:
        for j in range(4): vq += [lambda j=j: sgt.extend(sg_loads(j, j+1))]
    if n == NC2: side += c12b
    if n == NS2: side += stats2_ops(sgt)
    if n == XA - 1: assert not side, len(side)
    if n == XA + NA + 1:
        SGX.g[2].free(); SGX.g[3].free()
        XQ = Frags(2); vP5 = V.alloc(); vp5 = V.alloc()
        for e in range(NA): side += epilogue(e)
    if n == T4 + 4: side += g2_setup_ops()
    for e in range(NA, 6):
        if n == TT[e+1] + 3: side += epilogue(e)
    if n == opt('l0p', 168): vq += [lvl_flag(0, (0, 1, 2))]
    if n == opt('l1p', 210): vq += [lvl_flag(1, (3, 4))]
    if n == HP0 - opt('l0w', 14): vq += [lambda: G.__setitem__('tp5', flag_load(vp5, vP5, F5))]
    if n == HP0: side += [lambda: (check_tags([vp5], lambda: flag_load(vp5, vP5, F5), G['tp5']), G.__setitem__('l0', True), vq.append(res_loads))]
    k = 0
    while side and k < budget:
        if isinstance(side[0], VM) and (P.vm != vm0 or n - lastv < VSP): break
        f = side.pop(0); k += 1
        if f: f()
    if P.vm != vm0: lastv = n
    for e in range(NA+2, 7):
        if n == TT[e] - 1: assert e - NA - 2 in hst
for f in side:
    if f: f()
for f in vq: f()
if G['wd'].get('half'): wd_dma1()
assert not wq
print('wd progress', G['wd']['nd'], G['wd']['nr'], 'hh early', len(ht), file=sys.stderr)
def h_next():
    i = len(ht)
    if i < G['hlim'] and hfree: h_load(i//2, i % 2); return True
    return False
G['hlim'] = 24
h_next(); h_next()
for f in epilogue(6):
    if f: f()
stamp("g1 done")
for r in ACC + [BX, vRS2, vAd, vAd2, vEx]: r.free()
I("s_barrier")

GA = [V.alloc(16) for _ in range(4)]
HD = opt('hd', 20)
while len(ht) < opt('hd0', 10): h_next()
PL = {1: (opt('p1', 1), opt('p1c', 6), 40), 2: (opt('p2', 9), opt('p2c', 14), 48), 3: (opt('p3', 15), opt('p3c', 20), 56)}
mj = [(i, q) for i in range(24) for q in range(4)] + [(i, q) for q in (1, 2, 3, 0) for i in range(24, 28)]
red = []
for m, (i, q) in enumerate(mj):
    c, it = order[i]; n = c*7 + it; dt, st = q & 1, q >> 1
    if (i, st) not in ht:
        raise RuntimeError(f"hh {i} not issued")
    if opt('gfine') and m % 8 == 0: stamp(f'm{m}')
    P.wait(ht[i, st], G['wd']['rd'][i])
    I(f"v_mfma_f32_32x32x16_bf16 {GA[q]}, {AWD[8*i+4*dt:8*i+4*dt+4]}, {hreg[i, st]}, {0 if i==0 else GA[q]}")
    if i < 24 and dt == 1: hfree.append(hreg[i, st])
    G['now'] = NJ + 8 + m; Wd = G['wd']
    if m % 2 == 0 and Wd['nr'] < 28:
        if Wd['nr'] < Wd['nd'] and G['now'] - Wd['ti'].get(Wd['nr'], -99) >= WDL: wd_read()
        else: wd_dma1()
    if len(ht) < 2*i + HD + 2 and (m % 2 == 1 or len(ht) < 2*i + opt('hmin', 10)): h_next()
    if q == 0 and i < 24:
        for lv, (pi_, pc_, lim) in PL.items():
            if i == pc_:
                check_tags([vp5], lambda lv=lv: flag_load(vp5, vP5, F5 + lv*FL), G['tp']); G['hlim'] = lim; opt('gfine') or stamp(f"L{lv} ok")
        for lv, (pi_, pc_, lim) in PL.items():
            if i == pi_: G['tp'] = flag_load(vp5, vP5, F5 + lv*FL)
        if i == opt('l2p', 2): lvl_flag(2, (5,))()
        if i == opt('l3p', 8): lvl_flag(3, (6,))()
        if i == 2:
            I(f"v_lshl_add_u32 {t0}, {vQ}, 2, {sXdst}")
            I(f"ds_write_b32 {t0}, {vGB} offset:6144")
        if i == 21:
            G['GB'] = GB = [hfree.pop() for _ in range(4)]
            I(f"v_lshlrev_b32 {t1}, 6, {vHH}")
            I(f"v_add_u32 {t1}, {sXdst}, {t1}")
            for n_ in range(4): I(f"ds_read_b128 {GB[n_]}, {t1} offset:{6144+16*n_}")
        if i == 21:
            G['XF'] = XF = [hfree.pop() for _ in range(4)]
            P.wait(G['txq'])
            for rho in range(8):
                red.append(lambda rho=rho: (unpack(XF[rho//2][2*(rho%2)], XQ[rho], 0), unpack(XF[rho//2][2*(rho%2)+1], XQ[rho], 1)))
        if i == 23:
            G['RA'] = RA = hfree.pop()
            for qq in range(1, 4):
                red.append(lambda qq=qq: (I(f"s_xor_b32 {sT[0]}, {sWv}, {qq}"), I(f"s_mul_i32 {sT[0]}, {sT[0]}, 12288"), I(f"v_add_u32 {RA[qq]}, {sT[0]}, {vL16}")))
            red.append(lambda: (I(f"s_mul_i32 {sT[0]}, {sWv}, 12288"), I(f"v_add_u32 {RA[0]}, {sT[0]}, {vL16}")))
            red.append(lambda: (I(f"s_lshl_b32 {sT[2]}, {sSQ}, 15"), I(f"s_lshl_b32 {sT[1]}, {sDQ}, 1"), I(f"s_add_u32 {sT[2]}, {sT[2]}, {sT[1]}"), I(f"s_add_u32 {sT[3]}, {sT[2]}, 16384")))
            red.append(lambda: (I(f"v_lshrrev_b32 {t1}, 2, {vL}"), I(f"v_lshlrev_b32 {t1}, 10, {t1}"), I(f"v_and_b32 {t2}, 3, {vL}"), I(f"v_lshl_add_u32 {t1}, {t2}, 4, {t1}")))
            red.append(lambda: (I(f"v_lshlrev_b32 {t2}, 6, {vQ}"), I(f"v_lshl_add_u32 {t2}, {vHH}, 5, {t2}"), I(f"v_add_u32 {t2}, {sXdst}, {t2}"), I(f"v_add_u32 {t0}, {sXdst}, {vL16}")))
    if m >= 101 and (m - 101) // 4 < 2:
        qq = (m - 101)//4 + 1; r = (m - 101) % 4
        I(f"ds_write_b128 {G['RA'][qq]}, {GA[qq][4*r:4*r+4]} offset:{(qq-1)*4096 + r*1024}")
    elif m >= 109:
        r = m - 109
        I(f"ds_write_b128 {G['RA'][3]}, {GA[3][4*r:4*r+4]} offset:{2*4096 + r*1024}")
    elif red: red.pop(0)()
assert not red
I(f"ds_write_b128 {G['RA'][3]}, {GA[3][12:16]} offset:{2*4096 + 3*1024}")
stamp("g2 mfma")
GB, XF, RA = G['GB'], G['XF'], G['RA']
P.wait_all(vm=False)
I("s_barrier")
tl = {}
for r in range(4):
    tl[r] = [I(f"ds_read_b128 {GA[q][4*r:4*r+4]}, {RA[0]} offset:{(q-1)*4096 + r*1024}") for q in range(1, 4)]
OST = OPT.get('ost', '')
for r in range(4):
    P.wait(tl[r])
    for h in (0, 2): I(f"v_pk_add_f32 {GA[1][4*r+h:4*r+h+2]}, {GA[1][4*r+h:4*r+h+2]}, {GA[2][4*r+h:4*r+h+2]}")
    for h in (0, 2): I(f"v_pk_add_f32 {GA[0][4*r+h:4*r+h+2]}, {GA[0][4*r+h:4*r+h+2]}, {GA[3][4*r+h:4*r+h+2]}")
    for h in (0, 2): I(f"v_pk_add_f32 {GA[0][4*r+h:4*r+h+2]}, {GA[0][4*r+h:4*r+h+2]}, {GA[1][4*r+h:4*r+h+2]}")
    for h in (0, 2): I(f"v_pk_fma_f32 {XF[r][h:h+2]}, {GA[0][4*r+h:4*r+h+2]}, {GB[r][h:h+2]}, {XF[r][h:h+2]}")
    for h in (0, 2): I(f"v_cvt_pk_bf16_f32 {XQ[2*r+h//2]}, {XF[r][h]}, {XF[r][h+1]}")
    if r % 2: I(f"ds_write_b128 {t2}, {XQ[2*r-2:2*r+2]} offset:{4096 + 8*(r-1)}")
tl = [I(f"ds_read_b128 {GB[h]}, {t0} offset:{4096+1024*h}") for h in range(2)]
for h in range(2):
    P.wait(tl[h])
    I(f"buffer_store_dwordx4 {GB[h]}, {t1}, {rOUT}, {sT[2+h]} offen {OST}")
stamp("end")
if TSTAMP:
    P.wait_all()
    stamp("drained")
    n = nts[0]
    I("s_waitcnt lgkmcnt(0)")
    I(f"v_writelane_b32 {vTs}, {sTp[n&1][0]}, {n-2}")
    I(f"v_writelane_b32 {vTs}, {sTp[(n+1)&1][0]}, {n-1}")
    I(f"v_subrev_u32 {vTs}, {sT0[0]}, {vTs}")
    I(f"s_memrealtime {sTp[0]}")
    I("s_waitcnt lgkmcnt(0)")
    I(f"v_writelane_b32 {vTs}, {sR0[0]}, 62")
    I(f"v_writelane_b32 {vTs}, {sTp[0][0]}, 63")
    I(f"v_writelane_b32 {vTs}, {sSpin}, 61")
    I(f"s_lshl_b32 {sT[0]}, s2, 10")
    I(f"s_add_u32 {sT[0]}, {sT[0]}, {TS}")
    I(f"v_lshlrev_b32 {t0}, 2, v0")
    I(f"buffer_store_dword {vTs}, {t0}, {rWS}, {sT[0]} offen")
    print(f"\nNTS={n}", file=sys.stderr)
if PROBE:
    I("s_waitcnt lgkmcnt(0)")
    I(f"s_sub_u32 {sT[0]}, {sTp[0][0]}, {sT0[0]}")
    I(f"s_mul_i32 {sT[0]}, {sT[0]}, {opt('pmul', 4)}")
    I(f"s_min_u32 {sT[0]}, {sT[0]}, 100000")
    I(f"s_memrealtime {sT0}")
    I("L_spin:")
    I(f"s_memrealtime {sTp[0]}")
    I("s_waitcnt lgkmcnt(0)")
    I(f"s_sub_u32 {sT[1]}, {sTp[0][0]}, {sT0[0]}")
    I(f"s_cmp_lt_u32 {sT[1]}, {sT[0]}")
    I("s_cbranch_scc1 L_spin")
I("L_end:")
I("s_endpgm")
P.ins.extend(slow)
if opt('cpf', 0):
    I(".fill 1536, 4, 0xbf800000")

body = P.finalize()
ref = open(f"cdna_kernels/{NAME}.s.ref").read()
hdr = "".join(l + "\n" for l in ref.split("\n") if l.startswith(";") and "@launch" not in l)
out = hdr + f"; @launch grid=(256,1,1) block=(256,1,1) lds={LDS_SIZE}\n"
out += f"""; NTS={nts[0] if TSTAMP else 0} LAYOUT=10 WSOFF={WSOFF}
.amdgcn_target "amdgcn-amd-amdhsa--gfx950"
.text
.globl {NAME}_kernel
.p2align 8
.type {NAME}_kernel,@function
{NAME}_kernel:
{body}
.section .rodata,"a"
.p2align 6
.amdhsa_kernel {NAME}_kernel
  .amdhsa_next_free_vgpr 512
  .amdhsa_next_free_sgpr 102
  .amdhsa_accum_offset 256
  .amdhsa_group_segment_fixed_size 0
  .amdhsa_kernarg_size 120
  .amdhsa_user_sgpr_count 2
  .amdhsa_user_sgpr_kernarg_segment_ptr 1
  .amdhsa_system_sgpr_workgroup_id_x 1
.end_amdhsa_kernel
"""
dst = [a for a in sys.argv[1:] if not a.startswith('--')][0]
open(dst, "w").write(out)
print(f"instrs {len(P.ins)} nops {P.nops} vgpr hi {V.hi} sgpr hi {S.hi}", file=sys.stderr)
```

```python
import sys
from dsl import *

NAME = "adaLN_cond__ssm_conv_h3__glu_gated_bilinear__prompt"
OPT = {}
for a_ in sys.argv[1:]:
    if a_.startswith('--'):
        k, _, v = a_[2:].partition('='); OPT[k] = v if v else '1'
def opt(k, d=0): return type(d)(OPT.get(k, d))
TSTAMP = opt('ts')
PROBE = tuple(int(x) for x in OPT['probe'].split(',')) if 'probe' in OPT else None
TSOP = 's_memrealtime' if opt('rt') else 's_memtime'
NTS_ = OPT.get("nt", "m")
def nt(k): return "nt" if k in NTS_ else ""
NT = nt("k")

EPOCH=0; F3=0x10000; F4=0x40000; F5=0x60000; F1=0x800000; FY=0x820000; S2=0x840000
MODG=0x90000; STG=0xA8000; C12=0xB0000; MODL2=0x880000
KVG=0x100000; XG=0x500000; X1T=0x900000; WP=0xB00000; WDP=0xF00000; HH=0x1100000; SG=0x1800000; TS=0x1900000
WS_SIZE=0x1A00000
OOB=0x80000000
FSH=opt('fsh', 4); F6=0x18000 if FSH <= 5 else 0xF0000
UB=0; UCH=4608; MODL=9216; CBL=10240; C12L=11264
TAPS=15360; TCOPY=4160; TCH=33280
RED=131072
WL=0; XS=131072; XSW=7168; EX=159744; NG=8
XTO=8192; C12O=10240; CBO=11264; S2O=11776
WDS0=81920; WDW0=20480; REDO=12288
LDS_SIZE=163840
NA = opt('na', 3)

P = Prog(); I = P.I; V = P.V; A = P.A; S = P.S
S.reserve(0, 3); V.reserve(0, 1)
def srd(): return S.alloc(4, 4)
rX, rK, rV, rSH, rTP, rW, rWD, rC, rWM, rOUT, rWS, rD = [srd() for _ in range(12)]
sPG = S.alloc(2, 2); sPU = S.alloc(2, 2)
sXJ = S.alloc(); sGI = S.alloc(); sWv = S.alloc(); sSpin = S.alloc()
sT = [S.alloc() for _ in range(6)]
sZ = [S.alloc() for _ in range(2)]
sC4096 = S.alloc()
sPL = S.alloc(); sPH = S.alloc(); sHI = S.alloc(); sONE = S.alloc()
sD0 = S.alloc()
sTp = [S.alloc(2, 2), S.alloc(2, 2)]; sT0 = S.alloc(2, 2)

class Frags:
    def __init__(self, n, pool=None): self.g = [(pool or V).alloc(4) for _ in range(n)]
    def __getitem__(self, i):
        if isinstance(i, slice):
            assert i.start//4 == (i.stop-1)//4
            return self.g[i.start//4][i.start%4:(i.stop-1)%4+1]
        return self.g[i//4][i%4]
    def free(self):
        for g in self.g: g.free()

nts = [0]
def stamp(name=""):
    if 'win' in OPT and not (name.startswith('w_') or name in ('end', 'drained')): return
    n = nts[0]; nts[0] += 1
    if 'gap' in OPT and n in [int(x) for x in OPT['gap'].split(',')]:
        L = P.label('gap'); I(f's_branch {L}'); I(f".fill {opt('gapn', 1023)}, 4, 0xbf800000"); I(f'{L}:')
    if PROBE:
        if n == PROBE[0]: I(f"s_memrealtime {sT0}")
        if n == PROBE[1]: I(f"s_memrealtime {sTp[0]}")
        return
    if not TSTAMP: return
    if n >= 2: I(f"v_writelane_b32 {vTs}, {sTp[n&1][0]}, {n-2}")
    I(f"{TSOP} {sTp[n&1]}")
    print(f"{n}:{name}", file=sys.stderr, end="  ")

slow = []
def check_tags(tags, reissue, toks):
    R = P.label("chk"); SL = P.label("slow"); D = P.label("ok")
    P.wait(toks)
    mn = V.alloc(); mx = V.alloc()
    I(f"{R}:")
    tg = list(tags)
    if len(tg) == 1:
        I(f"v_cmp_ne_u32 vcc, {tg[0]}, {vTag}")
    else:
        if len(tg) % 2: tg.append(tg[0])
        for i in range(0, len(tg), 2):
            I(f"v_min3_u32 {mn}, {vTag if i==0 else mn}, {tg[i]}, {tg[i+1]}")
            I(f"v_max3_u32 {mx}, {vTag if i==0 else mx}, {tg[i]}, {tg[i+1]}")
        I(f"v_cmp_ne_u32 vcc, {mn}, {mx}")
    INL = opt('inl', 0)
    if INL: I(f"s_cbranch_vccz {D}")
    else:
        I(f"s_cbranch_vccnz {SL}")
        I(f"{D}:")
    mn.free(); mx.free()
    save = (P.ins, P.vm, P.lg, P.vm_done, P.lg_done)
    P.ins = []
    I(f"{SL}:")
    if opt('nap', 0): I(f"s_sleep {opt('nap', 0)}")
    I(f"s_add_u32 {sSpin}, {sSpin}, 1")
    I(f"s_cmp_gt_u32 {sSpin}, 200000")
    I(f"s_cbranch_scc1 {D}")
    reissue()
    I("s_waitcnt vmcnt(0)")
    I(f"s_branch {R}")
    for x_ in P.ins: x_.inl = bool(INL)
    (save[0] if INL else slow).extend(P.ins)
    P.ins, P.vm, P.lg, P.vm_done, P.lg_done = save
    if INL: I(f"{D}:")

def post_flag(vaddr, base):
    I(f"s_mov_b32 {sZ[0]}, {base}")
    return I(f"buffer_store_dword {vTag}, {vaddr}, {rWS}, {sZ[0]} offen sc1")
def flag_load(vp, vaddr, base):
    I(f"s_mov_b32 {sZ[0]}, {base}")
    return I(f"buffer_load_dword {vp}, {vaddr}, {rWS}, {sZ[0]} offen sc1")
def poll(vaddr, base):
    vp = V.alloc()
    t = flag_load(vp, vaddr, base)
    check_tags([vp], lambda: flag_load(vp, vaddr, base), t)
    vp.free()
sRel = S.alloc()
def post_local(vaddr, base):
    if not LOC: return post_flag(vaddr, base)
    I(f"s_mov_b32 {sZ[0]}, {base}")
    return I(f"buffer_store_dword {vTagL}, {vaddr}, {rWS}, {sZ[0]} offen")
def check_local(vp, vpoll, vown, base, tok):
    if not LOC: return check_tags([vp], lambda: flag_load(vp, vpoll, base), tok)
    SL = P.label("lslow"); D = P.label("lok"); RL = P.label("lrel"); AG = P.label("lagain"); NR = P.label("lnorel")
    P.wait(tok)
    I(f"v_cmp_ne_u32 vcc, {vp}, {vTagL}")
    INL = opt('inll', 0)
    if INL: I(f"s_cbranch_vccz {D}")
    else:
        I(f"s_cbranch_vccnz {SL}")
        I(f"{D}:")
    save = (P.ins, P.vm, P.lg, P.vm_done, P.lg_done)
    P.ins = []
    I(f"{SL}:")
    I(f"s_mov_b32 {sRel}, 0")
    I(f"{AG}:")
    I(f"s_add_u32 {sSpin}, {sSpin}, 1")
    I(f"s_cmp_gt_u32 {sSpin}, 200000")
    I(f"s_cbranch_scc1 {D}")
    flag_load(vp, vpoll, base)
    I("s_waitcnt vmcnt(0)")
    I(f"v_cmp_ne_u32 vcc, {vp}, {vTagL}")
    I(f"s_cbranch_vccz {D}")
    I(f"s_cmp_ge_u32 {sRel}, 0x10000")
    I(f"s_cbranch_scc1 {NR}")
    I(f"s_add_u32 {sRel}, {sRel}, 1")
    I(f"s_cmp_ge_u32 {sRel}, {opt('ltry', 40)}")
    I(f"s_cbranch_scc1 {RL}")
    I(f"v_cmp_eq_u32 vcc, {vp}, {vTag}")
    I(f"s_cbranch_vccz {AG}")
    I(f"{RL}:")
    I("buffer_wbl2 sc1")
    I("s_waitcnt vmcnt(0)")
    post_flag(vown, base)
    I(f"s_mov_b32 {sRel}, 0x10000")
    I(f"{NR}:")
    I(f"v_cmp_ne_u32 vcc, {vp}, {vTagL}")
    I(f"v_cmp_ne_u32 {sTp2}, {vp}, {vTag}")
    I(f"s_and_b64 {sTp2}, vcc, {sTp2}")
    I(f"s_cbranch_scc1 {AG}")
    I("s_waitcnt vmcnt(0)")
    I(f"s_branch {D}")
    for x_ in P.ins: x_.inl = bool(INL)
    (save[0] if INL else slow).extend(P.ins)
    P.ins, P.vm, P.lg, P.vm_done, P.lg_done = save
    if INL: I(f"{D}:")
def unpack(dst, src, hi):
    I(f"v_and_b32 {dst}, {sHI}, {src}" if hi else f"v_lshlrev_b32 {dst}, 16, {src}")
def round_bf16(dst, src):
    I(f"v_cvt_pk_bf16_f32 {dst}, {src}, {src}")
    I(f"v_and_b32 {dst}, {sHI}, {dst}")
def lane0(dst, sval, tmp):
    I(f"v_mov_b32 {dst}, {OOB}")
    I(f"v_writelane_b32 {dst}, {sval}, 0")

I("s_cmp_ge_u32 s2, 256")
I("s_cbranch_scc1 L_end")
if PROBE and PROBE[0] == -1: I(f"s_memrealtime {sT0}")
if TSTAMP:
    I(f"{TSOP} {sT0}")
    sR0 = S.alloc(2, 2); I(f"s_memrealtime {sR0}")
for r, off in ((rK,8),(rV,16),(rSH,24),(rWS,112),(rC,80),(rWM,88),(rX,0),(rTP,32),(rWD,72),(rOUT,96)):
    I(f"s_load_dwordx2 {r[0:2]}, s[0:1], {off}")
I(f"s_load_dwordx2 {sPG}, s[0:1], 56")
I(f"s_load_dwordx2 {sPU}, s[0:1], 64")
I(f"s_load_dwordx2 {rD[0:2]}, s[0:1], 40")
vL = V.alloc(); vL16 = V.alloc(); vTag = V.alloc(); vHH = V.alloc(); vQ = V.alloc(); vT16 = V.alloc()
if TSTAMP: vTs = V.alloc()
t0 = V.alloc(); t1 = V.alloc(); t2 = V.alloc()
I(f"s_and_b32 {sXJ}, s2, 7")
I(f"s_lshr_b32 {sGI}, s2, 3")
I(f"v_lshrrev_b32 {t0}, 6, v0")
I(f"v_and_b32 {vL}, 63, v0")
I(f"v_readfirstlane_b32 {sWv}, {t0}")
I(f"v_lshlrev_b32 {vL16}, 4, {vL}")
I(f"v_lshlrev_b32 {vT16}, 4, v0")
def do_cpf():
    global cpa, cpd
    cpa = V.reserve(250, 2); cpd = V.reserve(252, 4)
    I(f"s_getpc_b64 {sTp[0]}")
    I(f"s_and_b32 {sTp[0][0]}, {sTp[0][0]}, 0xffffff00")
    I(f"s_and_b32 {sT[5]}, {sGI}, 7")
    I(f"s_min_u32 {sT[5]}, {sT[5]}, 6")
    I(f"s_lshl_b32 {sT[5]}, {sT[5]}, 12")
    I(f"s_add_u32 {sTp[0][0]}, {sTp[0][0]}, {sT[5]}")
    I(f"s_addc_u32 {sTp[0][1]}, {sTp[0][1]}, 0")
    I(f"v_mov_b32 {cpa[1]}, {sTp[0][1]}")
    I(f"v_add_co_u32 {cpa[0]}, vcc, {sTp[0][0]}, {vT16}")
    I(f"v_addc_co_u32 {cpa[1]}, vcc, 0, {cpa[1]}, vcc")
    I(f"global_load_dwordx4 {cpd}, {cpa}, off")
if opt('cpf', 0) == 1: do_cpf()
for r, n in ((rK,2097152),(rV,2097152),(rSH,4096),(rWS,WS_SIZE),(rC,1024),(rWM,3145728),(rX,2097152),(rTP,2097152),(rWD,1835008),(rOUT,2097152),(rW,1835008),(rD,1024)):
    I(f"s_mov_b32 {r[2]}, {n}")
    I(f"s_mov_b32 {r[3]}, 0x20000")
I(f"v_lshrrev_b32 {vHH}, 5, {vL}")
I(f"v_and_b32 {vQ}, 31, {vL}")
I(f"s_mov_b32 {sSpin}, 0")
I(f"s_movk_i32 {sC4096}, 0x1000")
vB = V.alloc(); vH = V.alloc(); vSH = V.alloc(); vGS = V.alloc()
I(f"s_lshl_b32 {sT[0]}, {sGI}, 16")
I(f"s_lshl_b32 {sT[1]}, {sXJ}, 7")
I(f"s_lshl_b32 {sT[2]}, {sWv}, 5")
I(f"s_add_u32 {sT[1]}, {sT[1]}, {sT[2]}")
I(f"s_add_u32 {sT[0]}, {sT[0]}, {sT[1]}")
I(f"v_lshrrev_b32 {t0}, 3, {vL}")
I(f"v_and_b32 {t1}, 7, {vL}")
I(f"v_lshlrev_b32 {vB}, 13, {t0}")
I(f"v_lshl_add_u32 {vB}, {t1}, 2, {vB}")
I(f"v_add_u32 {vB}, {sT[0]}, {vB}")
I(f"v_subrev_u32 {vH}, 3072, {vB}")
I(f"s_lshl_b32 {sT[2]}, {sT[1]}, 2")
I(f"v_lshlrev_b32 {vSH}, 4, {t1}")
I(f"v_add_u32 {vSH}, {sT[2]}, {vSH}")
I(f"v_mov_b32 {t2}, {EPOCH}")
if opt("sfine"): stamp("s0")
I("s_waitcnt lgkmcnt(0)")
if opt("sfine"): stamp("karg")
WSOFF = opt('wsoff', 0) << 20
if WSOFF:
    I(f"s_add_u32 {rWS[0]}, {rWS[0]}, {WSOFF}")
    I(f"s_addc_u32 {rWS[1]}, {rWS[1]}, 0")
LOC = opt('loc', 1); LST = '' if LOC else 'sc1'
vTagL = V.alloc()
PT = V.alloc(4)
Kr = V.alloc(11, 1); Vr = V.alloc(8, 1); SHr = V.alloc(4)
tep = I(f"buffer_load_dword {vTag}, {t2}, {rWS}, 0 offen sc1")
tsh = I(f"buffer_load_dwordx4 {SHr}, {vSH}, {rSH}, 0 offen")
PTA = OPT.get('pta', 'sc1')
def pretouch(base):
    I(f"s_lshl_b32 {sZ[0]}, {sXJ}, 18")
    I(f"s_lshl_b32 {sZ[1]}, {sGI}, 13")
    I(f"s_add_u32 {sZ[0]}, {sZ[0]}, {sZ[1]}")
    I(f"s_add_u32 {sZ[0]}, {sZ[0]}, {base}")
    I(f"s_add_u32 {sZ[1]}, {sZ[0]}, 4096")
    for c in range(2): I(f"buffer_load_dwordx4 {PT}, {vT16}, {rWS}, {sZ[c]} offen {PTA}")
if LOC and opt('ptfirst', 0): pretouch(KVG)
tk = []
for e in range(3): tk.append(I(f"buffer_load_dword {Kr[e]}, {vH}, {rK}, 0 offen offset:{e*1024} {NT}"))
for e in range(8): tk.append(I(f"buffer_load_dword {Kr[3+e]}, {vB}, {rK}, {sC4096 if e>=4 else 0} offen offset:{(e&3)*1024} {NT}"))
tv = [I(f"buffer_load_dword {Vr[e]}, {vB}, {rV}, {sC4096 if e>=4 else 0} offen offset:{(e&3)*1024} {NT}") for e in range(8)]
vH.free(); vSH.free()
if opt('sfine'): stamp('L1')
if LOC and not opt('ptfirst', 0): pretouch(KVG)
if opt('cpf', 0) == 2: do_cpf()
vBP = V.alloc()
I(f"s_lshl_b32 {sT[2]}, {sT[1]}, 11")
I(f"s_lshl_b32 {sT[3]}, {sGI}, 7")
I(f"s_add_u32 {sT[2]}, {sT[2]}, {sT[3]}")
I(f"v_lshlrev_b32 {vGS}, 13, {t0}")
I(f"v_lshl_add_u32 {vGS}, {t1}, 4, {vGS}")
I(f"s_add_u32 {sT[2]}, {sT[2]}, {KVG}")
I(f"v_add_u32 {vGS}, {sT[2]}, {vGS}")
I(f"v_lshlrev_b32 {vBP}, 5, {t1}")
I(f"v_lshl_add_u32 {vBP}, {t0}, 2, {vBP}")
I(f"s_mov_b32 {sPL}, 0x05040100")
I(f"s_mov_b32 {sPH}, 0x07060302")
I(f"s_mov_b32 {sHI}, 0xffff0000")
I(f"s_mov_b32 {sONE}, 0x3f803f80")
sM = S.alloc(); sKS = S.alloc(); sCB = S.alloc()
I(f"s_and_b32 {sM}, {sGI}, 1")
I(f"s_cmp_eq_u32 {sM}, 0")
I(f"s_cselect_b32 {rW[0]}, {sPG[0]}, {sPU[0]}")
I(f"s_cselect_b32 {rW[1]}, {sPG[1]}, {sPU[1]}")
I(f"s_lshl_b32 {sD0}, {sXJ}, 6")
I(f"s_lshl_b32 {sT[4]}, {sGI}, 1")
I(f"s_add_u32 {sD0}, {sD0}, {sT[4]}")
I(f"s_lshl_b32 {sKS}, {sXJ}, 2")
I(f"s_add_u32 {sKS}, {sKS}, {sWv}")
I(f"s_lshr_b32 {sCB}, {sGI}, 1")
sPG.free(); sTp2 = sPU

G = {}
def A_mod():
    G['vMW'] = vMW = V.alloc(); G['vMC'] = vMC = V.alloc()
    I(f"s_and_b32 {sT[4]}, {sGI}, 3")
    I(f"s_lshl_b32 {sT[4]}, {sT[4]}, 7")
    I(f"v_lshrrev_b32 {t2}, 3, v0")
    I(f"v_add_u32 {t2}, {sT[4]}, {t2}")
    I(f"v_lshlrev_b32 {vMC}, 1, {t2}")
    I(f"v_mul_u32_u24 {vMW}, 6144, {t2}")
    I(f"v_and_b32 {t2}, 7, v0")
    I(f"v_lshl_add_u32 {vMW}, {t2}, 4, {vMW}")
    I(f"s_lshr_b32 {sT[4]}, {sGI}, 2")
    I(f"s_lshl_b32 {sT[4]}, {sT[4]}, 10")
    I(f"s_lshl_b32 {sT[5]}, {sXJ}, 7")
    I(f"s_add_u32 {sT[4]}, {sT[4]}, {sT[5]}")
    I(f"s_cmp_lt_u32 {sGI}, 24")
    I(f"s_cselect_b32 {sT[4]}, {sT[4]}, {OOB}")
    I(f"v_add_u32 {vMW}, {sT[4]}, {vMW}")
def L_mod():
    vMW, vMC = G['vMW'], G['vMC']
    G['Cr'] = Cr = V.alloc(4, 1); G['WMr'] = WMr = V.alloc(16)
    G['tc'] = [I(f"buffer_load_ushort {Cr[i]}, {vMC}, {rC}, 0 offen offset:{64*i}") for i in range(4)]
    G['twm'] = []
    for i in range(4):
        I(f"s_mov_b32 {sT[5]}, {i*32*6144}")
        G['twm'].append(I(f"buffer_load_dwordx4 {WMr[4*i:4*i+4]}, {vMW}, {rWM}, {sT[5]} offen {nt('m')}"))
    vMW.free(); vMC.free()
def L_taps():
    G['TP'] = TP = [V.alloc(8), V.alloc(8)]
    I(f"s_lshl_b32 {sT[4]}, {sD0}, 12")
    I(f"s_add_u32 {sT[5]}, {sT[4]}, 4096")
    I(f"v_subrev_u32 {t2}, 16, {vT16}")
    I(f"v_min_u32 {t2}, {OOB}, {t2}")
    G['ttp'] = []
    for c in range(2):
        G['ttp'].append([I(f"buffer_load_dwordx4 {TP[c][4:8]}, {vT16}, {rTP}, {sT[4+c]} offen {nt('t')}"),
                         I(f"buffer_load_dwordx4 {TP[c][0:4]}, {t2}, {rTP}, {sT[4+c]} offen {nt('t')}")])
def L_w():
    G['WR'] = WR = V.alloc(16)
    I(f"s_mul_i32 {sT[0]}, {sKS}, {16*3584}")
    I(f"s_mul_i32 {sT[1]}, {sCB}, 224")
    I(f"s_add_u32 {sT[0]}, {sT[0]}, {sT[1]}")
    I(f"v_mul_u32_u24 {t2}, {8*3584}, {vHH}")
    I(f"v_lshl_add_u32 {t2}, {vQ}, 3, {t2}")
    G['twr'] = []
    for e in range(8):
        if e and e % 2 == 0: I(f"s_add_u32 {sT[0]}, {sT[0]}, 7168")
        G['twr'].append(I(f"buffer_load_dwordx2 {WR[2*e:2*e+2]}, {t2}, {rW}, {sT[0]} offen offset:{(e&1)*3584} {nt('w')}"))
def L_x1(e):
    if e == 0: G['Xr'] = V.alloc(8, 1); G['tx'] = []
    G['tx'].append(I(f"buffer_load_dword {G['Xr'][e]}, {vB}, {rX}, {sC4096 if e>=4 else 0} offen offset:{(e&3)*1024}"))
    if e == 7: vB.free()
def L_xr():
    G['XR'] = XR = V.alloc(8)
    I(f"s_lshl_b32 {sT[0]}, s2, 13")
    I(f"s_lshl_b32 {sT[1]}, {sWv}, 11")
    I(f"s_add_u32 {sT[0]}, {sT[0]}, {sT[1]}")
    G['txr'] = [I(f"buffer_load_dwordx4 {XR[4*i:4*i+4]}, {vL16}, {rX}, {sT[0]} offen offset:{1024*i} {nt('r')}") for i in range(2)]
def zero_pads():
    z4 = V.alloc(4)
    for i in range(4): I(f"v_mov_b32 {z4[i]}, 0")
    I(f"v_lshlrev_b32 {t2}, 4, {vQ}")
    I(f"v_mul_u32_u24 {t0}, {UCH}, {vHH}")
    I(f"v_add_u32 {t2}, {t2}, {t0}")
    I(f"ds_write_b128 {t2}, {z4} offset:{UB+4096}")
    I(f"v_and_b32 {t2}, 15, {vL}")
    I(f"v_mul_u32_u24 {t2}, {TCOPY}, {t2}")
    I(f"ds_write_b128 {t2}, {z4} offset:{TAPS}")
    z4.free()
def C_tag():
    P.wait(tep)
    pass
    I(f"s_mov_b32 {sT[0]}, 0x9E3779B1")
    I(f"v_mul_lo_u32 {vTag}, {vTag}, {sT[0]}")
    I(f"v_add_u32 {vTag}, 0x7F4A7C15, {vTag}")
    I(f"s_getreg_b32 {sT[0]}, hwreg(HW_REG_XCC_ID, 0, 4)")
    I(f"s_add_u32 {sT[0]}, {sT[0]}, 1")
    I(f"v_xor_b32 {vTagL}, {sT[0]}, {vTag}")
def lane_tr(src):
    GR = Frags(2)
    return GR, [I(f"ds_bpermute_b32 {GR[i]}, {vBP}, {src[i]}") for i in range(8)]
def flag_setup():
    G['vFo'] = V.alloc(); G['vFp'] = V.alloc()
    I(f"s_lshl_b32 {sT[0]}, {sKS}, 5")
    I(f"s_add_u32 {sT[0]}, {sT[0]}, {sGI}")
    I(f"s_lshl_b32 {sT[0]}, {sT[0]}, 7")
    lane0(G['vFo'], sT[0], t1)
    I(f"s_lshr_b32 {sT[0]}, {sGI}, 3")
    I(f"s_lshl_b32 {sT[1]}, {sXJ}, 2")
    I(f"s_add_u32 {sT[0]}, {sT[0]}, {sT[1]}")
    I(f"s_lshl_b32 {sT[0]}, {sT[0]}, 2")
    I(f"s_add_u32 {sT[0]}, {sT[0]}, {sWv}")
    I(f"s_lshl_b32 {sT[0]}, {sT[0]}, 3")
    I(f"v_and_b32 {t0}, 7, {vL}")
    I(f"v_add_lshl_u32 {G['vFp']}, {t0}, {sT[0]}, 7")
def C_kv():
    kf = V.alloc(22); wp = V.alloc(8); acc = V.alloc(16)
    P.wait(tsh)
    for j in range(4):
        for c in range(2): unpack(wp[2*j+c], SHr[2*c + (j>>1)], j & 1)
    stamp('pre-k'); P.wait(tk[:opt('kw', 3)]); G['afterk'](); P.wait(tk); stamp('k in')
    for e in range(11):
        unpack(kf[2*e], Kr[e], 0); unpack(kf[2*e+1], Kr[e], 1)
    for e in range(8): I(f"v_pk_mul_f32 {acc[2*e:2*e+2]}, {kf[2*e:2*e+2]}, {wp[6:8]}")
    for j in (2, 1, 0):
        for e in range(8):
            q = e + 3 - j
            I(f"v_pk_fma_f32 {acc[2*e:2*e+2]}, {kf[2*q:2*q+2]}, {wp[2*j:2*j+2]}, {acc[2*e:2*e+2]}")
    P.wait(tv)
    for e in range(8):
        unpack(kf[2*e], Vr[e], 0); unpack(kf[2*e+1], Vr[e], 1)
    for e in range(8): I(f"v_pk_mul_f32 {acc[2*e:2*e+2]}, {acc[2*e:2*e+2]}, {kf[2*e:2*e+2]}")
    for c in range(2):
        for n in range(4):
            I(f"v_cvt_pk_bf16_f32 {wp[4*c+n]}, {acc[2*(7-2*n)+c]}, {acc[2*(6-2*n)+c]}")
    G['KVt'], tl = lane_tr(wp)
    G['tks'] = []
    for c in range(2):
        P.wait(tl[4*c:4*c+4])
        G['tks'].append(I(f"buffer_store_dwordx4 {G['KVt'][4*c:4*c+4]}, {vGS}, {rWS}, {sC4096 if c else 0} offen {LST}"))
    for r in (kf, wp, acc, Kr, Vr, SHr): r.free()
def C_mod():
    Cr, WMr = G['Cr'], G['WMr']
    P.wait(G['tc'])
    sl = V.alloc(4, 1); sp = V.alloc(2, 1)
    for i in range(4): I(f"v_lshlrev_b32 {Cr[i]}, 16, {Cr[i]}")
    for i in range(4): I(f"v_mul_f32 {sl[i]}, 0xbfb8aa3b, {Cr[i]}")
    for i in range(4): I(f"v_exp_f32 {sl[i]}, {sl[i]}")
    for i in range(4): I(f"v_add_f32 {sl[i]}, 1.0, {sl[i]}")
    for i in range(4): I(f"v_rcp_f32 {sl[i]}, {sl[i]}")
    for i in range(4): I(f"v_mul_f32 {sl[i]}, {sl[i]}, {Cr[i]}")
    I(f"v_cvt_pk_bf16_f32 {sp[0]}, {sl[0]}, {sl[1]}")
    I(f"v_cvt_pk_bf16_f32 {sp[1]}, {sl[2]}, {sl[3]}")
    I(f"v_and_b32 {t0}, 7, {vL}")
    I(f"v_lshlrev_b32 {t0}, 7, {t0}")
    I(f"v_lshrrev_b32 {t1}, 4, {vL}")
    I(f"v_lshl_add_u32 {t0}, {t1}, 5, {t0}")
    I(f"s_lshl_b32 {sT[0]}, {sWv}, 2")
    I(f"v_add_u32 {t0}, {sT[0]}, {t0}")
    ma = V.alloc(8, 1); mp = V.alloc(8, 1)
    for half in range(2):
        P.wait(G['twm'][2*half:2*half+2])
        for j in range(4):
            I(f"v_perm_b32 {mp[2*j]}, {WMr[8*half+4+j]}, {WMr[8*half+j]}, {sPL}")
            I(f"v_perm_b32 {mp[2*j+1]}, {WMr[8*half+4+j]}, {WMr[8*half+j]}, {sPH}")
        for j in range(8):
            I(f"v_dot2_f32_bf16 {ma[j]}, {mp[j]}, {sp[half]}, {0 if half==0 else ma[j]}")
    for i in range(4): I(f"v_permlane32_swap_b32 {ma[i]}, {ma[i+4]}")
    for i in range(4): I(f"v_add_f32 {ma[i]}, {ma[i]}, {ma[i+4]}")
    for i in range(2): I(f"v_permlane16_swap_b32 {ma[i]}, {ma[i+2]}")
    for i in range(2): I(f"v_add_f32 {ma[i]}, {ma[i]}, {ma[i+2]}")
    for i in range(2): I(f"v_add_f32_dpp {ma[i]}, {ma[i]}, {ma[i]} row_ror:8 row_mask:0xf bank_mask:0xf")
    I(f"ds_write_b32 {t0}, {ma[0]} offset:{MODL}")
    I(f"ds_write_b32 {t0}, {ma[1]} offset:{MODL+16}")
    for r in (sl, sp, ma, mp, Cr, WMr): r.free()
def A_mod2():
    I(f"s_lshl_b32 {sT[0]}, {sGI}, 12")
    I(f"s_lshl_b32 {sT[1]}, {sXJ}, 9")
    I(f"s_add_u32 {sT[0]}, {sT[0]}, {sT[1]}")
    I(f"s_add_u32 {sT[0]}, {sT[0]}, {MODG}")
    I(f"s_cmp_lt_u32 {sGI}, 24")
    I(f"s_cselect_b32 {sT[0]}, {sT[0]}, {OOB}")
    I(f"s_cmp_eq_u32 {sWv}, 1")
    I(f"s_cselect_b32 {sT[0]}, {sT[0]}, {OOB}")
    G['vMs'] = V.alloc()
    I(f"v_lshlrev_b32 {t0}, 3, {vL}")
    I(f"v_add_u32 {G['vMs']}, {sT[0]}, {t0}")
def C_mod2():
    vMs = G['vMs']
    I("s_waitcnt lgkmcnt(0)"); P.lg_done = P.lg
    I("s_barrier")
    m4 = V.alloc(4)
    tl = I(f"ds_read_b128 {m4}, {vL16} offset:{MODL}")
    P.wait(tl)
    I(f"v_add_f32 {m4[0]}, {m4[0]}, {m4[1]}")
    I(f"v_add_f32 {m4[2]}, {m4[2]}, {m4[3]}")
    I(f"v_mov_b32 {m4[1]}, {vTag}")
    I(f"v_add_f32 {m4[0]}, {m4[0]}, {m4[2]}")
    if LOC:
        I(f"s_mov_b32 {sT[1]}, {MODL2-MODG}")
        I(f"buffer_store_dwordx2 {m4[0:2]}, {vMs}, {rWS}, {sT[1]} offen")
    G['midmod']()
    I(f"buffer_store_dwordx2 {m4[0:2]}, {vMs}, {rWS}, 0 offen sc1")
    m4.free(); vMs.free()
def C_taps(hk=lambda: None):
    TP = G['TP']
    E1 = V.alloc(6); O0 = V.alloc(6); O1 = V.alloc(6)
    I(f"v_add_u32 {t2}, {TCH}, {vT16}")
    for c in range(2):
        d = TP[c]; ad = vT16 if c == 0 else t2
        P.wait(G['ttp'][c])
        def wr(o, regs):
            I(f"ds_write_b128 {ad}, {regs} offset:{TAPS + 16 + (o-1)*TCOPY}")
            if o > 4: hk()
        wr(4, d[2:6]); wr(8, d[4:8])
        for j in range(6): I(f"v_alignbit_b32 {O0[j]}, {d[j+1]}, {d[j]}, 16")
        wr(1, O0[0:4]); wr(5, O0[2:6])
        for j in range(6): I(f"v_alignbit_b32 {O1[j]}, {d[j+2]}, {d[j+1]}, 16")
        wr(3, O1[0:4]); wr(7, O1[2:6])
        for j in range(6): I(f"v_mov_b32 {E1[j]}, {d[j+1]}")
        wr(2, E1[0:4]); wr(6, E1[2:6])
    for r in TP + [E1, O0, O1]: r.free()
sUY = S.alloc(2)
def L_u():
    G['UR'] = UR = Frags(2)
    I(f"s_lshl_b32 {sUY[0]}, {sD0}, 12")
    I(f"s_add_u32 {sUY[0]}, {sUY[0]}, {KVG}")
    I(f"s_add_u32 {sUY[1]}, {sUY[0]}, 4096")
    G['tu'] = [I(f"buffer_load_dwordx4 {UR[4*c:4*c+4]}, {vT16}, {rWS}, {sUY[c]} offen sc1") for c in range(2)]
def C_u():
    UR = G['UR']
    I(f"v_sub_u32 {t2}, 4080, {vT16}")
    for c in range(2):
        P.wait(G['tu'][c])
        I(f"ds_write_b128 {t2}, {UR[4*c:4*c+4]} offset:{UB+c*UCH}")
    UR.free()
def L_d():
    G['Dr'] = V.alloc(2)
    I(f"s_lshl_b32 {sT[0]}, {sKS}, 5")
    I(f"v_lshrrev_b32 {t0}, 3, {vL}")
    I(f"v_lshlrev_b32 {t0}, 2, {t0}")
    G['td'] = I(f"buffer_load_dword {G['Dr'][0]}, {t0}, {rD}, {sT[0]} offen")
def x_ops():
    ops = []
    def a0(): G['xp'] = V.alloc(8, 1); G['Xt'] = Frags(2); G['txt'] = []; P.wait(G['tx'])
    ops.append(a0)
    for c in range(2):
        for n in range(4):
            ops.append(lambda c=c, n=n: I(f"v_perm_b32 {G['xp'][4*c+n]}, {G['Xr'][2*n+1]}, {G['Xr'][2*n]}, {sPH if c else sPL}"))
    for i in range(8): ops.append(lambda i=i: G['txt'].append(I(f"ds_bpermute_b32 {G['Xt'][i]}, {vBP}, {G['xp'][i]}")))
    ops.append(lambda: (G['Xr'].free(), vBP.free(), G['xp'].free()))
    return ops
def C_st():
    XR = G['XR']
    P.wait(G['txr'])
    q4 = V.alloc(4)
    for n in range(4):
        for r in range(2):
            I(f"v_dot2_f32_bf16 {q4[2*r]}, {XR[4*r+n]}, {sONE}, {0 if n==0 else q4[2*r]}")
            I(f"v_dot2_f32_bf16 {q4[2*r+1]}, {XR[4*r+n]}, {XR[4*r+n]}, {0 if n==0 else q4[2*r+1]}")
    I(f"v_permlane32_swap_b32 {q4[0]}, {q4[2]}")
    I(f"v_permlane32_swap_b32 {q4[1]}, {q4[3]}")
    I(f"v_add_f32 {q4[0]}, {q4[0]}, {q4[2]}")
    I(f"v_add_f32 {q4[1]}, {q4[1]}, {q4[3]}")
    I(f"v_permlane16_swap_b32 {q4[0]}, {q4[1]}")
    I(f"v_add_f32 {q4[0]}, {q4[0]}, {q4[1]}")
    for sh in (8, 4, 2, 1):
        I(f"v_add_f32_dpp {q4[0]}, {q4[0]}, {q4[0]} row_ror:{sh} row_mask:0xf bank_mask:0xf")
    I(f"v_mov_b32 {q4[1]}, {q4[0]}")
    I(f"v_permlane16_swap_b32 {q4[0]}, {q4[1]}")
    finish_stats(q4[0], q4[1], q4[3], t0)
    I(f"v_rsq_f32 {q4[2]}, {t0}")
    I(f"s_lshl_b32 {sT[0]}, s2, 4")
    I(f"s_lshl_b32 {sT[1]}, {sWv}, 12")
    I(f"s_add_u32 {sT[0]}, {sT[0]}, {sT[1]}")
    I(f"s_add_u32 {sT[0]}, {sT[0]}, {STG}")
    I(f"v_cvt_pk_bf16_f32 {q4[0]}, {q4[3]}, {q4[2]}")
    I(f"v_mov_b32 {q4[1]}, {vTag}")
    I(f"v_mov_b32 {q4[2]}, {q4[0]}")
    I(f"v_mov_b32 {q4[3]}, {vTag}")
    I(f"v_permlane32_swap_b32 {q4[0]}, {q4[2]}")
    lane0(t0, sT[0], t1)
    I(f"buffer_store_dwordx4 {q4}, {t0}, {rWS}, 0 offen sc1")
    XR.free(); q4.free()
def finish_stats(vsum, vsq, vnm, vve):
    I(f"v_mul_f32 {vnm}, 0xbb000000, {vsum}")
    I(f"v_mul_f32 {vsq}, 0x3b000000, {vsq}")
    I(f"v_fma_f32 {vve}, -{vnm}, {vnm}, {vsq}")
    I(f"v_max_f32 {vve}, 0, {vve}")
    I(f"v_add_f32 {vve}, 0x3727c5ac, {vve}")
def m_addr():
    G['MA'] = Frags(3); G['vMa'] = vMa = V.alloc()
    I(f"v_and_b32 {t0}, 7, {vL}")
    I(f"v_lshrrev_b32 {t1}, 3, {vL}")
    I(f"v_lshlrev_b32 {vMa}, 4, {t0}")
    I(f"v_lshl_add_u32 {vMa}, {t1}, 12, {vMa}")
    I(f"s_lshl_b32 {sT[0]}, {sKS}, 7")
    I(f"s_add_u32 {sT[0]}, {sT[0]}, {MODG}")
    I(f"v_add_u32 {vMa}, {sT[0]}, {vMa}")
def m_loads(retry=False):
    MA = G['MA']
    if LOC and retry:
        I(f"s_and_b32 {sZ[0]}, {sSpin}, 7")
        I(f"s_cmp_eq_u32 {sZ[0]}, 0")
        I(f"s_cselect_b32 {sZ[0]}, 0, {MODL2-MODG}")
    else: I(f"s_mov_b32 {sZ[0]}, {MODL2-MODG if LOC else 0}")
    out = []
    for j in range(3):
        if j: I(f"s_add_u32 {sZ[0]}, {sZ[0]}, 32768")
        out.append(I(f"buffer_load_dwordx4 {MA.g[j]}, {G['vMa']}, {rWS}, {sZ[0]} offen sc1"))
    return out
def C_wunpack():
    WR = G['WR']
    G['wf'] = wf = Frags(8)
    P.wait(G['twr'])
    for e in range(8):
        for h in range(2):
            unpack(wf[4*e+2*h], WR[2*e+h], 0); unpack(wf[4*e+2*h+1], WR[2*e+h], 1)
def C_m():
    MA = G['MA']
    check_tags([MA[4*j+i] for j in range(3) for i in (1, 3)], lambda: m_loads(True), G['tm'])
    G['vMa'].free()
def m_ops():
    MA = G['MA']; ad = MA[1]; one = MA[3]; on2 = MA[5]
    seq = [f"v_permlane16_swap_b32 {MA[4*j]}, {MA[4*j+2]}" for j in (2, 1, 0)]
    seq += [f"v_add_f32 {MA[4*j]}, {MA[4*j]}, {MA[4*j+2]}" for j in (2, 1, 0)]
    seq += [f"v_add_f32_dpp {MA[4*j]}, {MA[4*j]}, {MA[4*j]} row_ror:8 row_mask:0xf bank_mask:0xf" for j in (2, 1, 0)]
    seq += [f"v_and_b32 {ad}, 7, {vL}", f"v_lshlrev_b32 {ad}, 3, {ad}", f"v_bfe_u32 {one}, {vL}, 4, 1",
            f"v_lshl_add_u32 {ad}, {one}, 2, {ad}", f"v_lshl_add_u32 {ad}, {vHH}, 6, {ad}", f"v_add_u32 {ad}, {sWDs}, {ad}",
            f"v_cvt_f32_u32 {one}, {vHH}"]
    seq += [f"v_cvt_pk_bf16_f32 {MA[4*j]}, {MA[4*j]}, {MA[4*j]}" for j in (2, 1, 0)]
    seq += [f"v_sub_f32 {on2}, 1.0, {one}"]
    seq += [f"v_and_b32 {MA[4*j]}, {sHI}, {MA[4*j]}" for j in (2, 1, 0)]
    seq += [f"v_add_f32 {MA[8]}, {MA[8]}, {on2}", f"v_add_f32 {MA[0]}, {MA[0]}, {one}",
            f"v_cvt_pk_bf16_f32 {MA[8]}, {MA[8]}, {MA[8]}", f"v_cvt_pk_bf16_f32 {MA[0]}, {MA[0]}, {MA[0]}",
            f"v_and_b32 {MA[8]}, {sHI}, {MA[8]}", f"v_and_b32 {MA[0]}, {sHI}, {MA[0]}"]
    seq += [f"ds_write_b32 {ad}, {MA[4*j]} offset:{CBO+128*j}" for j in (2, 1, 0)]
    return [(lambda x=x: I(x)) for x in seq] + [lambda: MA.free()]
sWst = S.alloc()
def w_addr():
    G['vWs'] = vWs = V.alloc(); G['vCw'] = vCw = V.alloc()
    I(f"s_mul_i32 {sWst}, {sCB}, 229376")
    I(f"s_lshl_b32 {sT[1]}, {sM}, 9")
    I(f"s_add_u32 {sWst}, {sWst}, {sT[1]}")
    I(f"s_add_u32 {sWst}, {sWst}, {WP}")
    I(f"s_mul_i32 {sT[1]}, {sKS}, {NA*1024}")
    I(f"s_lshl_b32 {sT[2]}, {sKS}, 10")
    I(f"v_lshrrev_b32 {t0}, 2, {vQ}")
    I(f"v_lshlrev_b32 {vWs}, 10, {t0}")
    I(f"v_add_u32 {vWs}, {sT[1]}, {vWs}")
    I(f"v_lshlrev_b32 {t2}, 15, {t0}")
    I(f"v_add_u32 {t2}, {sT[2]}, {t2}")
    I(f"v_cmp_gt_u32 vcc, {NA}, {t0}")
    I(f"v_mov_b32 {t1}, {OOB}")
    I(f"v_cndmask_b32 {vWs}, {t2}, {vWs}, vcc")
    I(f"v_cmp_gt_u32 vcc, 7, {t0}")
    I(f"v_xor_b32 {t2}, {sM}, {vHH}")
    I(f"v_cndmask_b32 {vWs}, {t1}, {vWs}, vcc")
    I(f"v_lshl_add_u32 {vWs}, {t2}, 6, {vWs}")
    I(f"v_and_b32 {t2}, 3, {vQ}")
    I(f"v_lshl_add_u32 {vWs}, {t2}, 4, {vWs}")
    I(f"v_lshlrev_b32 {vCw}, 6, {t0}")
    I(f"v_lshl_add_u32 {vCw}, {t2}, 2, {vCw}")
    I(f"v_lshl_add_u32 {vCw}, {vHH}, 9, {vCw}")
    I(f"v_add_u32 {vCw}, {sWDs}, {vCw}")
def C_w_reads():
    I(f"v_lshlrev_b32 {t0}, 5, {vHH}")
    I(f"v_add_u32 {t0}, {sWDs}, {t0}")
    G['SBv'] = SBv = Frags(2); G['CBv'] = CBv = Frags(2)
    G['tcb'] = [I(f"ds_read_b128 {CBv[0:4]}, {t0} offset:{CBO+256}"), I(f"ds_read_b128 {CBv[4:8]}, {t0} offset:{CBO+272}"),
                I(f"ds_read_b128 {SBv[0:4]}, {t0} offset:{CBO+192}"), I(f"ds_read_b128 {SBv[4:8]}, {t0} offset:{CBO+208}")]
def wu_ops():
    WR = G['WR']; ops = []
    def st0(): G['wf'] = Frags(8); P.wait(G['twr'])
    ops.append(st0)
    for e in range(8):
        for j in range(4): ops.append(lambda e=e, j=j: unpack(G['wf'][4*e+j], WR[2*e+(j>>1)], j & 1))
    return ops
def w_ops():
    WR = G['WR']; ops = []
    def st0(): G['pr'] = V.alloc(4, 1); G['c1'] = V.alloc(4, 1); G['c2'] = V.alloc(4, 1); P.wait(G['tcb'])
    ops.append(st0)
    G['tws'] = []
    for j in range(4):
        for n in range(4):
            o = 2*(n & 1)
            for ee in range(2):
                ops.append(lambda n=n, j=j, ee=ee, o=o: I(f"v_mul_f32 {G['pr'][o+ee]}, {G['wf'][4*(2*n+ee)+j]}, {G['CBv'][2*n+ee]}"))
            ops.append(lambda n=n, j=j, o=o: I(f"v_cvt_pk_bf16_f32 {WR[4*j+n]}, {G['pr'][o]}, {G['pr'][o+1]}"))
        ops.append(lambda j=j: G['tws'].append(I(f"buffer_store_dwordx4 {WR[4*j:4*j+4]}, {G['vWs']}, {rWS}, {sWst} offen offset:{128*j} sc1")))
    return ops
def c_ops():
    ops = []
    for e in range(8):
        op = "v_mul_f32" if e == 0 else "v_fmac_f32"
        for j in range(4): ops.append(lambda e=e, j=j, op=op: I(f"{op} {G['c1'][j]}, {G['wf'][4*e+j]}, {G['CBv'][e]}"))
        for j in range(4): ops.append(lambda e=e, j=j, op=op: I(f"{op} {G['c2'][j]}, {G['wf'][4*e+j]}, {G['SBv'][e]}"))
    ops.append(None)
    for j in range(4): ops.append(lambda j=j: I(f"v_permlane32_swap_b32 {G['c1'][j]}, {G['c2'][j]}"))
    for j in range(4): ops.append(lambda j=j: I(f"v_add_f32 {G['c1'][j]}, {G['c1'][j]}, {G['c2'][j]}"))
    for j in range(4): ops.append(lambda j=j: I(f"ds_write_b32 {G['vCw']}, {G['c1'][j]} offset:{C12O+16*j}"))
    def fin():
        for k in ('pr', 'CBv', 'SBv', 'vWs', 'wf', 'c1', 'c2', 'vCw', 'WR'): G[k].free()
    ops.append(fin)
    return ops
def C_c12b():
    c8 = V.alloc(8)
    I(f"v_and_b32 {t0}, 127, v0")
    I(f"v_lshlrev_b32 {t0}, 2, {t0}")
    I(f"v_add_u32 {t0}, {WDS0+C12O}, {t0}")
    I(f"v_add_u32 {t1}, {2*WDW0}, {t0}")
    tc = []
    for w in range(4):
        for sel in range(2):
            tc.append(I(f"ds_read_b32 {c8[2*w+sel]}, {t1 if w >= 2 else t0} offset:{WDW0*(w&1) + 512*sel}"))
    I(f"s_lshl_b32 {sT[0]}, {sCB}, 3")
    I(f"s_add_u32 {sT[0]}, {sT[0]}, {sXJ}")
    I(f"s_lshl_b32 {sT[0]}, {sT[0]}, 1")
    I(f"s_add_u32 {sT[0]}, {sT[0]}, {sM}")
    I(f"s_mul_i32 {sT[0]}, {sT[0]}, 896")
    I(f"s_add_u32 {sT[0]}, {sT[0]}, {C12}")
    I(f"v_lshlrev_b32 {t0}, 3, v0")
    I(f"v_mov_b32 {t2}, {OOB}")
    I(f"v_cmp_gt_u32 vcc, 112, v0")
    I(f"v_cndmask_b32 {t0}, {t2}, {t0}, vcc")
    P.wait(tc)
    I(f"v_pk_add_f32 {c8[0:2]}, {c8[0:2]}, {c8[2:4]}")
    I(f"v_pk_add_f32 {c8[4:6]}, {c8[4:6]}, {c8[6:8]}")
    I(f"v_pk_add_f32 {c8[0:2]}, {c8[0:2]}, {c8[4:6]}")
    G['tc12'] = I(f"buffer_store_dwordx2 {c8[0:2]}, {t0}, {rWS}, {sT[0]} offen sc1")
    c8.free()
def A_f3():
    G['vF3'] = V.alloc()
    I(f"s_lshl_b32 {sT[0]}, {sGI}, 5")
    I(f"s_add_u32 {sT[0]}, {sT[0]}, {sKS}")
    I(f"s_lshl_b32 {sT[0]}, {sT[0]}, {FSH}")
    lane0(G['vF3'], sT[0], t1)
def st_addr():
    G['vSt'] = V.alloc()
    I(f"s_lshl_b32 {sT[0]}, {sGI}, 7")
    I(f"s_add_u32 {sT[0]}, {sT[0]}, {STG}")
    I(f"v_and_b32 {t0}, 7, {vL}")
    I(f"v_lshl_add_u32 {G['vSt']}, {t0}, 4, {sT[0]}")
def st_loads():
    SL = G['SL']; out = []
    for w in range(4):
        if w >= 2: I(f"s_movk_i32 {sZ[0]}, {4096*w}")
        out.append(I(f"buffer_load_dwordx4 {SL.g[w]}, {G['vSt']}, {rWS}, {[0, sC4096, sZ[0], sZ[0]][w]} offen sc1"))
    return out
def L_st():
    G['SL'] = Frags(4); G['tsl'] = st_loads()
def C_pre0():
    G['PQ'] = PQ = V.alloc(6)
    I(f"v_lshrrev_b32 {t0}, 3, {vL}")
    I(f"v_lshl_add_u32 {t0}, {t0}, 3, {sWDs}")
    G['tpq'] = [I(f"ds_read_b64 {PQ[2*v:2*v+2]}, {t0} offset:{CBO+64*v}") for v in range(3)]
def C_pre1():
    SL, PQ, Dr = G['SL'], G['PQ'], G['Dr']
    check_tags([SL[2*i+1] for i in range(8)], st_loads, [G['tsl'], G['td']])
    G['vSt'].free()
    for w in range(4):
        g = SL.g[w]
        unpack(g[1], g[2], 1); unpack(g[3], g[2], 0); unpack(g[2], g[0], 0); unpack(g[0], g[0], 1)
    for w in range(4): I(f"v_pk_mul_f32 {SL.g[w][2:4]}, {SL.g[w][2:4]}, {SL.g[w][0:2]}")
    unpack(Dr[1], Dr[0], 1); unpack(Dr[0], Dr[0], 0)
    P.wait(G['tpq'], G['txt'])
    I(f"v_pk_mul_f32 {PQ[0:2]}, {PQ[0:2]}, {PQ[4:6]}")
    I(f"v_pk_mul_f32 {PQ[2:4]}, {PQ[2:4]}, {PQ[4:6]}")
    G['HG'] = Frags(4); G['BS'] = Frags(4)
def C_pre2(c):
    SL, PQ, Dr, HG, BS, Xt, KVt = G['SL'], G['PQ'], G['Dr'], G['HG'], G['BS'], G['Xt'], G['KVt']
    kd = V.alloc(8)
    pr = lambda R, p: R[8*c+2*p:8*c+2*p+2]
    for p in range(4):
        unpack(BS[8*c+2*p], Xt[4*c+p], 0); unpack(BS[8*c+2*p+1], Xt[4*c+p], 1)
        unpack(kd[2*p], KVt[4*c+3-p], 1); unpack(kd[2*p+1], KVt[4*c+3-p], 0)
    for p in range(4): I(f"v_pk_fma_f32 {pr(HG,p)}, {pr(BS,p)}, {SL.g[p][0:2]}, {SL.g[p][2:4]}")
    for p in range(4): I(f"v_pk_mul_f32 {kd[2*p:2*p+2]}, {kd[2*p:2*p+2]}, {Dr} op_sel:[0,{c}] op_sel_hi:[1,{c}]")
    for p in range(4): I(f"v_pk_fma_f32 {pr(HG,p)}, {pr(HG,p)}, {PQ[2:4]}, {PQ[0:2]} op_sel:[0,{c},{c}] op_sel_hi:[1,{c},{c}]")
    for p in range(4): I(f"v_pk_fma_f32 {pr(BS,p)}, {pr(HG,p)}, {kd[2*p:2*p+2]}, {pr(BS,p)}")
    kd.free()
    if c == 1:
        for r in (SL, PQ, Dr, Xt, KVt): r.free()

AWD = A.reserve(0, 224)
order = [(c, it) for c in range(4) for it in range(3)] + [(c, it) for c in range(4) for it in (3, 4)] + [(c, it) for it in (5, 6) for c in range(4)]
FL = 0x8000
sWo = S.alloc()
def wd_src(i): c, it = order[i]; I(f"s_add_u32 {sWo}, {sWD}, {16384*(c*7+it)}")
sR64 = S.alloc(); sDB = S.alloc(); sWD = S.alloc()
sWDs = S.alloc()
def wd_setup():
    G['vWa'] = vWa = V.alloc(); G['vWb'] = vWb = V.alloc(); G['vWr'] = [V.alloc(), V.alloc()]
    if opt('map2', 1):
        I(f"s_lshr_b32 {sR64}, {sGI}, 2")
        I(f"s_lshr_b32 {sT[0]}, {sXJ}, 1")
        I(f"s_lshl_b32 {sT[0]}, {sT[0]}, 3")
        I(f"s_add_u32 {sR64}, {sR64}, {sT[0]}")
        I(f"s_and_b32 {sDB}, {sGI}, 3")
        I(f"s_and_b32 {sT[0]}, {sXJ}, 1")
        I(f"s_lshl_b32 {sT[0]}, {sT[0]}, 2")
        I(f"s_add_u32 {sDB}, {sDB}, {sT[0]}")
    else:
        I(f"s_lshr_b32 {sR64}, {sGI}, 3")
        I(f"s_lshl_b32 {sT[0]}, {sXJ}, 2")
        I(f"s_add_u32 {sR64}, {sR64}, {sT[0]}")
        I(f"s_and_b32 {sDB}, {sGI}, 7")
    I(f"s_mul_i32 {sWD}, {sWv}, {448*1024}")
    I(f"s_lshl_b32 {sT[0]}, {sDB}, 7")
    I(f"s_add_u32 {sWD}, {sWD}, {sT[0]}")
    I(f"v_bfe_u32 {t0}, {vL}, 3, 2")
    I(f"v_lshlrev_b32 {vWa}, 12, {t0}")
    I(f"v_lshl_add_u32 {vWa}, {vHH}, 10, {vWa}")
    I(f"v_bfe_u32 {t0}, {vL}, 4, 1")
    I(f"v_lshlrev_b32 {t0}, 2, {t0}")
    I(f"v_and_b32 {t1}, 7, {vL}")
    I(f"v_xor_b32 {t0}, {t0}, {t1}")
    I(f"v_lshl_add_u32 {vWa}, {t0}, 4, {vWa}")
    I(f"v_add_u32 {vWb}, 1024, {vWa}")
    r0 = G['vWr'][0]
    I(f"v_bfe_u32 {t0}, {vL}, 2, 2")
    I(f"v_lshlrev_b32 {r0}, 7, {t0}")
    I(f"v_lshl_add_u32 {r0}, {vHH}, 9, {r0}")
    I(f"v_bfe_u32 {t0}, {vL}, 3, 1")
    I(f"s_and_b32 {sT[0]}, {sWv}, 1")
    I(f"v_xor_b32 {t0}, {sT[0]}, {t0}")
    I(f"v_lshl_add_u32 {r0}, {t0}, 6, {r0}")
    I(f"v_and_b32 {t0}, 1, {vL}")
    I(f"v_lshl_add_u32 {r0}, {t0}, 5, {r0}")
    I(f"v_bfe_u32 {t0}, {vL}, 4, 1")
    I(f"v_lshl_add_u32 {r0}, {t0}, 4, {r0}")
    I(f"v_bfe_u32 {t0}, {vL}, 1, 1")
    I(f"v_lshl_add_u32 {r0}, {t0}, 3, {r0}")
    I(f"s_mul_i32 {sWDs}, {sWv}, {WDW0}")
    I(f"s_add_u32 {sWDs}, {sWDs}, {WDS0}")
    I(f"v_add_u32 {r0}, {sWDs}, {r0}")
    I(f"v_xor_b32 {G['vWr'][1]}, 64, {r0}")
    G['vWx'] = None
    G['wd'] = dict(nd=0, nr=0, free=[6, 7, 8, 9, 0, 1, 2, 3], ban=set(), slot={}, dt={}, rt={}, ti={}, rd={})
def wd_rebase(sbase, nslots):
    W = G['wd']; assert W['nd'] == W['nr']
    I(f"s_sub_u32 {sT[0]}, {sbase}, {sWDs}")
    I(f"s_mov_b32 {sWDs}, {sbase}")
    for r in G['vWr']: I(f"v_add_u32 {r}, {sT[0]}, {r}")
    W['free'] = list(range(nslots)); W['rt'] = {}; W['ban'] = set()
def wd_dma():
    W = G['wd']; n = W['nd']
    if n >= 28 or not W['free']: return False
    sl = W['free'].pop(0); W['slot'][n] = sl
    P.wait(W['rt'].get(sl))
    I(f"s_add_u32 m0, {sWDs}, {2048*sl}")
    wd_src(n)
    W['dt'][n] = [I(f"buffer_load_dwordx4 {G['vWa']}, {rWD}, {sWo} offen lds"),
                  I(f"buffer_load_dwordx4 {G['vWb']}, {rWD}, {sWo} offen offset:1024 lds")]
    W['nd'] = n+1
    return True
XB = 6*16384
def xoff(sl): k = sl - 100; return (k >> 1)*16384 + (k & 1)*2048
def wd_m0(sl):
    if sl < 100: I(f"s_add_u32 m0, {sWDs}, {2048*sl}")
    else: I(f"s_add_u32 m0, {sWdst}, {XB + xoff(sl)}")
def wd_dma1():
    W = G['wd']; n = W['nd']
    if not W.get('half'):
        if n >= 28 or not W['free']: return False
        sl = W['free'].pop(0); W['slot'][n] = sl
        P.wait(W['rt'].get(sl))
        wd_m0(sl)
        wd_src(n)
        W['dt'][n] = [I(f"buffer_load_dwordx4 {G['vWa']}, {rWD}, {sWo} offen lds")]
        W['half'] = True
    else:
        wd_m0(W['slot'][n])
        I("s_nop 0")
        W['dt'][n].append(I(f"buffer_load_dwordx4 {G['vWb']}, {rWD}, {sWo} offen offset:1024 lds"))
        W['half'] = False; W['nd'] = n+1; W['ti'][n] = max(G.get('now', 0), G.get('lastst', -99) + opt('sl', 44) - opt('wdl', 20))
    return True
def wd_read():
    W = G['wd']; n = W['nr']
    if n >= W['nd']: return False
    sl = W['slot'][n]
    P.wait(W['dt'][n])
    W['rt'][sl] = [I(f"ds_read_b64_tr_b16 {AWD[8*n+4*dt+2*g:8*n+4*dt+2*g+2]}, {G['vWr' if sl < 100 else 'vWx'][dt]} offset:{(2048*sl if sl < 100 else xoff(sl))+1024*g}") for dt in range(2) for g in range(2)]
    W['last'] = W['rt'][sl]; W['rd'][n] = W['rt'][sl]
    if sl not in W['ban']: W['free'].append(sl)
    W['nr'] = n+1
    return True

def conv(side_per=None):
    vAa = V.alloc(); vBa = V.alloc(); vRW = V.alloc()
    I(f"s_lshr_b32 {sT[0]}, {sWv}, 1")
    I(f"s_and_b32 {sT[1]}, {sWv}, 1")
    I(f"s_lshl_b32 {sT[1]}, {sT[1]}, 8")
    I(f"s_mul_i32 {sT[2]}, {sT[0]}, {TCH}")
    I(f"s_add_u32 {sT[2]}, {sT[2]}, {sT[1]}")
    I(f"s_mul_i32 {sT[3]}, {sT[0]}, {UCH}")
    I(f"s_add_u32 {sT[3]}, {sT[3]}, {sT[1]}")
    I(f"s_add_u32 {sT[3]}, {sT[3]}, {UB+480}")
    I(f"v_and_b32 {t0}, 7, {vL}")
    I(f"v_mul_u32_u24 {vAa}, {TCOPY}, {t0}")
    I(f"v_bfe_u32 {t0}, {vL}, 3, 1")
    I(f"v_lshrrev_b32 {t1}, 4, {vL}")
    I(f"v_add_u32 {t0}, {t0}, {t1}")
    I(f"v_lshl_add_u32 {vAa}, {t0}, 4, {vAa}")
    I(f"v_add_u32 {vAa}, {sT[2]}, {vAa}")
    I(f"v_and_b32 {t0}, 15, {vL}")
    I(f"v_lshlrev_b32 {t2}, 5, {t0}")
    I(f"v_lshlrev_b32 {vBa}, 4, {t1}")
    I(f"v_sub_u32 {vBa}, {vBa}, {t2}")
    I(f"v_add_u32 {vBa}, {sT[3]}, {vBa}")
    I(f"v_and_b32 {vRW}, 1, {t1}")
    I(f"v_lshlrev_b32 {vRW}, 12, {vRW}")
    I(f"v_add_u32 {vRW}, {vRW}, {t2}")
    I(f"v_lshrrev_b32 {t1}, 1, {t1}")
    I(f"v_lshl_add_u32 {vRW}, {t1}, 4, {vRW}")
    I(f"s_mul_i32 {sT[0]}, {sWv}, {WDW0}")
    I(f"s_add_u32 {sT[0]}, {sT[0]}, {WDS0+REDO}")
    I(f"v_add_u32 {vRW}, {sT[0]}, {vRW}")
    G['convaddr'] = (vAa, vBa, vRW)
def conv_run(hook=None):
    vAa, vBa, vRW = G['convaddr']
    D = Frags(8); FA = [Frags(8, A), AWD[192:224]]; FB = [AWD[160:192], Frags(8)]
    def reads(n):
        b = n & 1; out = []
        for t in range(8):
            out.append(lambda t=t: I(f"ds_read_b128 {FA[b][4*t:4*t+4]}, {vAa} offset:{TAPS + 64*n + 512*t}"))
            out.append(lambda t=t: I(f"ds_read_b128 {FB[b][4*t:4*t+4]}, {vBa} offset:{512*(7-t) + 64*n}"))
        return out
    ctok = {0: [f() for f in reads(0)]}
    cnt = 0
    for n in range(4):
        b = n & 1
        nxt = reads(n+1) if n < 3 else []
        ctok[n+1] = []
        if n < 3: pairs = sorted([(t, jj) for t in range(8) for jj in range(8-t)], key=lambda p: (max(p), p))
        else: pairs = sorted([(t, jj) for t in range(8) for jj in range(8-t)], key=lambda p: (p[0]+p[1], p))
        seen = set(); done = {}
        if n > 0: P.wait(ctok[n])
        for i, (t, jj) in enumerate(pairs):
            P.wait(ctok[n][2*t], ctok[n][2*jj+1])
            j = t + jj
            first = (n == 0 and j not in seen); seen.add(j)
            I(f"v_mfma_f32_16x16x32_bf16 {D[4*j:4*j+4]}, {FA[b][4*t:4*t+4]}, {FB[b][4*jj:4*jj+4]}, {0 if first else D[4*j:4*j+4]}")
            if nxt and i >= 1 and i % 2 == 1: ctok[n+1].append(nxt.pop(0)())
            if n == 3:
                if t == j: done[j] = i
                for jd, idn in list(done.items()):
                    if i >= idn + opt('rdel', 6):
                        I(f"ds_write_b128 {vRW}, {D[4*jd:4*jd+4]} offset:{512*jd}"); del done[jd]
            if hook: hook(cnt)
            cnt += 1
        while nxt: ctok[n+1].append(nxt.pop(0)())
    for jd in sorted(done): I(f"ds_write_b128 {vRW}, {D[4*jd:4*jd+4]} offset:{512*jd}")
    assert G['wd']['nr'] <= 20
    for r in [FA[0], FB[1], vAa, vBa, vRW, D]: r.free()

sX1 = S.alloc(2)
def x1_addr():
    G['vRr'] = V.alloc(); G['vRr2'] = V.alloc(); G['vXw'] = vXw = V.alloc(); G['vXr'] = vXr = V.alloc(); G['vS2'] = vS2 = V.alloc()
    I(f"v_add_u32 {G['vRr']}, {WDS0+REDO}, {vT16}")
    I(f"v_add_u32 {G['vRr2']}, {WDS0+REDO+2*WDW0}, {vT16}")
    I(f"v_bfe_u32 {t0}, {vL}, 2, 1")
    I(f"v_lshl_add_u32 {vXw}, {t0}, 10, {sWDs}")
    I(f"v_lshrrev_b32 {t0}, 3, {vL}")
    I(f"v_lshl_add_u32 {vXw}, {t0}, 7, {vXw}")
    I(f"v_and_b32 {t0}, 3, {vL}")
    I(f"v_lshl_add_u32 {vXw}, {t0}, 4, {vXw}")
    I(f"v_lshl_add_u32 {vXr}, {t0}, 3, {sWDs}")
    I(f"v_bfe_u32 {t0}, {vL}, 4, 1")
    I(f"v_lshl_add_u32 {vXr}, {t0}, 5, {vXr}")
    I(f"v_bfe_u32 {t0}, {vL}, 2, 2")
    I(f"v_lshl_add_u32 {vXr}, {t0}, 6, {vXr}")
    I(f"v_lshl_add_u32 {vXr}, {vHH}, 9, {vXr}")
    I(f"s_lshl_b32 {sX1[0]}, {sGI}, 6")
    I(f"s_add_u32 {sX1[0]}, {sX1[0]}, {sKS}")
    I(f"s_lshl_b32 {sX1[0]}, {sX1[0]}, 10")
    I(f"s_add_u32 {sX1[0]}, {sX1[0]}, {X1T}")
    I(f"s_add_u32 {sX1[1]}, {sX1[0]}, 32768")
    I(f"s_lshl_b32 {sT[0]}, {sGI}, 13")
    I(f"s_lshl_b32 {sT[1]}, {sXJ}, 9")
    I(f"s_add_u32 {sT[0]}, {sT[0]}, {sT[1]}")
    I(f"s_add_u32 {sT[0]}, {sT[0]}, {S2}")
    I(f"s_cmp_eq_u32 {sWv}, 0")
    I(f"s_cselect_b32 {sT[0]}, {sT[0]}, {OOB}")
    I(f"v_lshl_add_u32 {vS2}, {vQ}, 4, {sT[0]}")
    I(f"v_lshl_add_u32 {vS2}, {vHH}, 12, {vS2}")
def C_y():
    Y = Frags(8); yo = Frags(2)
    tl = []
    for c in range(2):
        for kh in range(2):
            for h in range(2):
                tl.append(I(f"ds_read_b128 {Y[16*c+8*kh+4*h:16*c+8*kh+4*h+4]}, {G['vRr2'] if c else G['vRr']} offset:{kh*WDW0 + 4096*h}"))
    C_pre0()
    G['tys'] = []
    for c in range(2):
        P.wait(tl[4*c:4*c+4])
        for e in range(0, 8, 2): I(f"v_pk_add_f32 {Y[16*c+e:16*c+e+2]}, {Y[16*c+e:16*c+e+2]}, {Y[16*c+8+e:16*c+8+e+2]}")
        for n in range(4): I(f"v_cvt_pk_bf16_f32 {yo[4*c+n]}, {Y[16*c+2*n]}, {Y[16*c+2*n+1]}")
        G['tys'].append(I(f"buffer_store_dwordx4 {yo[4*c:4*c+4]}, {vT16}, {rWS}, {sUY[c]} offen {LST}"))
    for r in [Y, yo, G['vRr'], G['vRr2']]: r.free()
def L_y():
    G['YL'] = YL = Frags(2)
    G['tyl'] = [I(f"buffer_load_dwordx4 {YL[4*c:4*c+4]}, {vGS}, {rWS}, {sC4096 if c else 0} offen sc1") for c in range(2)]
    vGS.free()
def C_x1():
    HG, BS, YL = G['HG'], G['BS'], G['YL']
    yf = V.alloc(8); F = Frags(2); q = V.alloc(4)
    for c in range(2):
        P.wait(G['tyl'][c])
        for p in range(4): unpack(yf[2*p], YL[4*c+p], 0); unpack(yf[2*p+1], YL[4*c+p], 1)
        for p in range(4): I(f"v_pk_fma_f32 {BS[8*c+2*p:8*c+2*p+2]}, {HG[8*c+2*p:8*c+2*p+2]}, {yf[2*p:2*p+2]}, {BS[8*c+2*p:8*c+2*p+2]}")
        for p in range(4): I(f"v_cvt_pk_bf16_f32 {YL[4*c+p]}, {BS[8*c+2*p]}, {BS[8*c+2*p+1]}")
        I(f"ds_write_b128 {G['vXw']}, {YL[4*c:4*c+4]} offset:{XTO+64*c}")
    tl = [I(f"ds_read_b64_tr_b16 {F[4*b+2*g:4*b+2*g+2]}, {G['vXr']} offset:{XTO+1024*b+256*g}") for b in range(2) for g in range(2)]
    I(f"v_lshl_add_u32 {t0}, {vL}, 3, {sWDs}")
    G['tx1'] = []
    for b in range(2):
        P.wait(tl[2*b:2*b+2])
        G['tx1'].append(I(f"buffer_store_dwordx4 {F.g[b]}, {vL16}, {rWS}, {sX1[b]} offen sc1"))
    for r in range(4):
        for b in range(2):
            I(f"v_dot2_f32_bf16 {q[2*b]}, {F[4*b+r]}, {sONE}, {0 if r==0 else q[2*b]}")
            I(f"v_dot2_f32_bf16 {q[2*b+1]}, {F[4*b+r]}, {F[4*b+r]}, {0 if r==0 else q[2*b+1]}")
    I(f"v_permlane32_swap_b32 {q[0]}, {q[2]}")
    I(f"v_permlane32_swap_b32 {q[1]}, {q[3]}")
    I(f"v_pk_add_f32 {q[0:2]}, {q[0:2]}, {q[2:4]}")
    I(f"ds_write_b64 {t0}, {q[0:2]} offset:{S2O}")
    for r in (HG, BS, YL, yf, F, q, G['vXw'], G['vXr']): r.free()
def C_s2():
    q = V.alloc(8)
    I(f"v_lshlrev_b32 {t0}, 3, {vL}")
    I(f"v_add_u32 {t0}, {WDS0+S2O}, {t0}")
    tl = [I(f"ds_read_b64 {q[2*w:2*w+2]}, {t0} offset:{WDW0*w}") for w in range(4)]
    P.wait(tl)
    I(f"v_pk_add_f32 {q[0:2]}, {q[0:2]}, {q[2:4]}")
    I(f"v_pk_add_f32 {q[4:6]}, {q[4:6]}, {q[6:8]}")
    I(f"v_add_f32 {q[2]}, {q[1]}, {q[5]}")
    I(f"v_add_f32 {q[0]}, {q[0]}, {q[4]}")
    I(f"v_mov_b32 {q[1]}, {vTag}")
    I(f"v_mov_b32 {q[3]}, {vTag}")
    I(f"buffer_store_dwordx4 {q[0:4]}, {G['vS2']}, {rWS}, 0 offen sc1")
    q.free(); G['vS2'].free()

sRB = S.alloc(); sC1 = S.alloc(); sWsrc = S.alloc(); sWdst = S.alloc()
def A_g1():
    G['vF8'] = vF8 = V.alloc(); G['vPA'] = vPA = V.alloc(); G['vP3'] = vP3 = V.alloc()
    I(f"s_and_b32 {sRB}, {sXJ}, 1")
    I(f"s_lshl_b32 {sRB}, {sRB}, 3")
    I(f"s_lshr_b32 {sT[0]}, {sGI}, 2")
    I(f"s_add_u32 {sRB}, {sRB}, {sT[0]}")
    I(f"s_lshr_b32 {sC1}, {sXJ}, 1")
    I(f"s_lshl_b32 {sC1}, {sC1}, 2")
    I(f"s_and_b32 {sT[0]}, {sGI}, 3")
    I(f"s_add_u32 {sC1}, {sC1}, {sT[0]}")
    I(f"s_lshl_b32 {sT[0]}, {sC1}, 6")
    I(f"v_add_lshl_u32 {vP3}, {vL}, {sT[0]}, {FSH}")
    I(f"s_lshl_b32 {sT[0]}, {sGI}, 5")
    I(f"s_add_u32 {sT[0]}, {sT[0]}, {sKS}")
    I(f"v_lshlrev_b32 {vF8}, 10, {vL}")
    I(f"v_add_lshl_u32 {vF8}, {vF8}, {sT[0]}, {FSH}")
    I(f"v_mov_b32 {t1}, {OOB}")
    I(f"v_cmp_gt_u32 vcc, 4, {vL}")
    I(f"s_lshr_b32 {sT[0]}, {sXJ}, 1")
    I(f"s_lshl_b32 {sT[0]}, {sT[0]}, 4")
    I(f"s_add_u32 {sT[0]}, {sT[0]}, {sRB}")
    I(f"s_lshl_b32 {sT[0]}, {sT[0]}, 1")
    I(f"s_lshr_b32 {sT[1]}, {sWv}, 1")
    I(f"s_add_u32 {sT[0]}, {sT[0]}, {sT[1]}")
    I(f"s_lshl_b32 {sT[0]}, {sT[0]}, 5")
    I(f"v_add_lshl_u32 {vPA}, {vQ}, {sT[0]}, {FSH}")
    I(f"v_cndmask_b32 {vF8}, {t1}, {vF8}, vcc")
    I(f"s_mul_i32 {sWsrc}, {sC1}, 229376")
    I(f"s_lshl_b32 {sWdst}, {sWv}, 12")
    I(f"s_add_u32 {sWsrc}, {sWsrc}, {sWdst}")
    I(f"s_add_u32 {sWsrc}, {sWsrc}, {WP}")
def w_dma(src_off, dst_off, n0=0, n1=4):
    I(f"s_add_u32 m0, {sWdst}, {WL + dst_off}")
    I(f"s_add_u32 {sT[0]}, {sWsrc}, {src_off}")
    return [I(f"buffer_load_dwordx4 {vL16}, {rWS}, {sT[0]} offen offset:{1024*n} sc1 lds") for n in range(n0, n1)]
def wd_burst(n):
    for _ in range(n):
        if not wd_dma():
            wd_read(); wd_dma()
flag_setup(); m_addr()
vpf = V.alloc()
if LOC:
    flag_load(vpf, G['vFp'], F1); flag_load(vpf, G['vFp'], FY); m_loads()
if opt('sfine'): stamp('touch')
A_mod()
LATE = opt('late', 0)
def ftouch():
    if opt('ftouch', 1):
        flag_load(vpf, G['vF3'], F3); flag_load(vpf, G['vF8'], F4)
        I(f"s_lshl_b32 {sT[0]}, {sRB}, 2")
        I(f"s_add_u32 {sT[0]}, {sT[0]}, {sWv}")
        I(f"s_lshl_b32 {sT[0]}, {sT[0]}, 4")
        I(f"s_add_u32 {sT[0]}, {sT[0]}, {sC1}")
        I(f"s_lshl_b32 {sT[0]}, {sT[0]}, {FSH}")
        I(f"v_min_u32 {t0}, 3, {vL}")
        I(f"v_lshl_add_u32 {t0}, {t0}, 15, {sT[0]}")
        flag_load(vpf, t0, F5)
def ptouch():
    TL = OPT.get('tlb', 'o')
    if 'o' in TL:
        I(f"s_lshl_b32 {sT[0]}, {sR64}, 16")
        lane0(t0, sT[0], t1)
        I(f"buffer_load_dword {vpf}, {t0}, {rOUT}, 0 offen")
    if 'w' in TL:
        I(f"v_min_u32 {t0}, 12, {vL}")
        I(f"v_lshlrev_b32 {t0}, 21, {t0}")
        I(f"v_add_u32 {t0}, 0x8000, {t0}")
        I(f"buffer_load_dword {vpf}, {t0}, {rWS}, 0 offen")
    if 'd' in TL:
        I(f"v_mov_b32 {t0}, 0")
        for r in (rD, rWD, rW): I(f"buffer_load_dword {vpf}, {t0}, {r}, 0 offen")
def setup2():
    zero_pads(); A_mod2(); conv(); wd_setup()
def setup3():
    w_addr(); x1_addr(); st_addr(); A_f3(); A_g1(); ftouch()
    if opt('tlbp', 1) == 0: ptouch()
if LATE < 2: setup2()
if opt('sfine'): stamp('su2')
if LATE < 1: setup3()
def wd_touch():
    I(f"s_mul_i32 {sT[0]}, s2, 7168")
    I(f"s_add_u32 {sT[1]}, {sT[0]}, 3072")
    for c in range(2): I(f"buffer_load_dwordx4 {PT}, {vT16}, {rWD}, {sT[c]} offen")
def afterk():
    L_xr(); L_mod()
    if opt('early', 1) >= 1: L_taps()
G['afterk'] = afterk
C_tag(); C_kv(); stamp("kv st")
if opt('cpf', 0) in (1, 2): cpa.free(); cpd.free()
if opt('early', 1) < 1: L_taps()
if opt('early', 1) >= 2: L_w()
if opt('wdt', 1) == -1: wd_touch()
if LATE >= 2: setup2()
if LATE >= 1: setup3()
C_st(); stamp("st")
C_mod(); stamp("mod1")
P.wait(G['tks']); post_local(G['vFo'], F1)
def midmod():
    stamp("mod2")
    tc = [0]
    def thk():
        tc[0] += 1
        if tc[0] == opt('f1i', 1): G['tpf'] = flag_load(vpf, G['vFp'], F1)
        if tc[0] == opt('f1c', 5):
            check_local(vpf, G['vFp'], G['vFo'], F1, G['tpf']); L_u(); G['tm'] = m_loads()
    C_taps(thk); stamp("taps")
G['midmod'] = midmod
C_mod2()
if opt('early', 1) < 2: L_w()
if opt('wdt', 1) == 1: wd_touch()
if opt('tlbp', 1) == 1: ptouch()
if opt('cpf', 0) == 3:
    ca = V.alloc(2)
    I(f"s_getpc_b64 {sTp2}")
    I(f"s_and_b32 {sTp2[0]}, {sTp2[0]}, 0xffffff00")
    I(f"s_and_b32 {sT[5]}, {sGI}, 7")
    I(f"s_min_u32 {sT[5]}, {sT[5]}, 4")
    I(f"s_lshl_b32 {sT[5]}, {sT[5]}, 12")
    I(f"s_add_u32 {sTp2[0]}, {sTp2[0]}, {sT[5]}")
    I(f"s_addc_u32 {sTp2[1]}, {sTp2[1]}, 0")
    I(f"v_mov_b32 {ca[1]}, {sTp2[1]}")
    I(f"v_add_co_u32 {ca[0]}, vcc, {sTp2[0]}, {vT16}")
    I(f"v_addc_co_u32 {ca[1]}, vcc, 0, {ca[1]}, vcc")
    I(f"global_load_dwordx4 {PT}, {ca}, off")
    ca.free()
C_u(); stamp("U ok")
P.wait_all(vm=False); I("s_barrier")
stamp("bar")
cside = []
H2, WDC = opt('h2', 4), opt('wdc', 8)
def hook(c):
    if c >= opt('hx', 40) and c < opt('hx', 40) + 16 and c % 2 == 0: L_x1((c - opt('hx', 40))//2)
    if c == opt('hx', 40) + 18: L_d()
    if c == H2: C_m(); cside.extend(m_ops() + [C_w_reads, None, None, None] + wu_ops() + w_ops() + c_ops() + x_ops())
    if c == opt('hst', 100): L_st()
    if opt('wdt', 1) > 1 and c == opt('wdt', 1): wd_touch()
    if c == opt('hf3', 130): assert len(G['tws']) == 4; P.wait(G['tws']); post_flag(G['vF3'], F3); G['vF3'].free()
    W = G['wd']
    if c == opt('wdban', 60): W['ban'] = {6, 7, 8, 9}; W['free'] = [x for x in W['free'] if x < 6]
    if c >= opt('wd0', 16) and c % (WDC//2) == 0 and W['nd'] < opt('wdmax', 8): wd_dma1()
    if c > opt('wdr0', 70) and c % WDC == 2 and W['nr'] < opt('wdrmax', 4): wd_read()
    if c == 107: assert all(W['slot'][n] < 6 for n in range(W['nr'], W['nd'])), "RED slots still in use"
    if opt('cfine') and c in (35, 71, 107): stamp(f'c{c}')
    k = 0
    while cside and k < (1 if (c < 108 and c % 2 == 1) else 2):
        f = cside.pop(0); k += 1
        if f: f()
conv_run(hook)
PT.free()
stamp("conv")
print('cside left', len(cside), file=sys.stderr)
for f in cside:
    if f: f()
P.wait_all(vm=False); I("s_barrier")
C_y(); stamp("y st")
print('wd after conv', G['wd']['nd'], G['wd']['nr'], file=sys.stderr)
vP3 = G['vP3']; vPA = G['vPA']; vp3 = V.alloc()
if opt('wda', 4):
    while wd_read(): pass
    for _ in range(opt('wda', 4)): wd_dma()
C_pre1()
P.wait(G['tys']); post_local(G['vFo'], FY); stamp("FY post")
C_pre2(0)
tpf = flag_load(vpf, G['vFp'], FY)
tp3 = flag_load(vp3, vP3, F3)
C_pre2(1)
check_local(vpf, G['vFp'], G['vFo'], FY, tpf); G['vFp'].free(); G['vFo'].free(); vTagL.free(); vpf.free()
L_y(); stamp("FY ok")
wch = {}
def w_group(): i = len(wch); wch[i] = w_dma(16384*i, 16384*i)
F3E = opt('f3e', 1)
def f3chk():
    check_tags([vp3], lambda: flag_load(vp3, vP3, F3), tp3)
if F3E:
    f3chk()
    for _ in range(opt('w1', 2)): w_group()
C_c12b()
C_x1(); stamp("x1 st")
if not F3E: f3chk()
for _ in range(opt('w15', 2)): w_group()
while wd_read(): pass
P.wait(G['tx1']); post_flag(G['vF8'], F4); G['vF8'].free()
stamp("F4 post")
sDQ = S.alloc(); gb2 = V.alloc(4); vGb = V.alloc(); vGB = V.alloc()
I(f"s_and_b32 {sT[3]}, {sWv}, 1")
I(f"s_lshl_b32 {sT[3]}, {sT[3]}, 5")
I(f"s_lshl_b32 {sDQ}, {sDB}, 6")
I(f"s_add_u32 {sDQ}, {sDQ}, {sT[3]}")
I(f"s_lshl_b32 {sT[0]}, {sDQ}, 3")
I(f"s_add_u32 {sT[0]}, {sT[0]}, {MODG + 5*16384}")
I(f"v_lshl_add_u32 {vGb}, {vQ}, 3, {sT[0]}")
I(f"v_lshl_add_u32 {vGb}, {vHH}, 13, {vGb}")
def gb_ld():
    return [I(f"buffer_load_dwordx2 {gb2[2*n:2*n+2]}, {vGb}, {rWS}, {sC4096 if n else 0} offen sc1") for n in range(2)]
tgb = gb_ld()
P.wait_all(vm=False); I("s_barrier")
C_s2()
while len(wch) < 5: w_group()
I("s_barrier")
NPRE = opt('npre', 8); NP4 = opt('np4', 7)
vp4 = V.alloc()
while len(wch) < NPRE:
    if len(wch) == NP4: tp4 = flag_load(vp4, vPA, F4)
    w_group()
if NP4 >= NPRE: tp4 = flag_load(vp4, vPA, F4)
stamp("W pre")
for r in (rK, rV, rSH): r.free()
sXsrc = S.alloc(); sXdst = S.alloc(); sSB = S.alloc(); sHS = S.alloc(); sSG = S.alloc()
I(f"s_lshl_b32 {sSB}, {sRB}, 2")
I(f"s_add_u32 {sSB}, {sSB}, {sWv}")
I(f"s_lshl_b32 {sXsrc}, {sSB}, 15")
I(f"s_add_u32 {sXsrc}, {sXsrc}, {X1T}")
I(f"s_mul_i32 {sXdst}, {sWv}, {XSW}")
I(f"s_add_u32 {sXdst}, {sXdst}, {XS}")
I(f"s_mul_i32 {sHS}, {sSB}, 112")
I(f"s_mul_i32 {sT[0]}, {sC1}, 7")
I(f"s_add_u32 {sHS}, {sHS}, {sT[0]}")
I(f"s_lshl_b32 {sHS}, {sHS}, 10")
I(f"s_add_u32 {sHS}, {sHS}, {HH}")
I(f"s_lshl_b32 {sSG}, {sSB}, 12")
I(f"s_add_u32 {sSG}, {sSG}, {S2}")
ACC = [V.alloc(16) for _ in range(NA+2)]
vAd = V.alloc(); vAd2 = V.alloc(); vEx = V.alloc(); vL16b = V.alloc(); vF5 = V.alloc()
I(f"v_bfe_u32 {t0}, {vL}, 2, 3")
I(f"v_lshlrev_b32 {vAd}, 7, {t0}")
I(f"v_bfe_u32 {t0}, {vL}, 4, 1")
I(f"v_xor_b32 {t0}, {t0}, {vHH}")
I(f"v_lshl_add_u32 {vAd}, {t0}, 6, {vAd}")
I(f"v_and_b32 {t0}, 3, {vL}")
I(f"v_lshl_add_u32 {vAd}, {t0}, 4, {vAd}")
I(f"v_add_u32 {vAd2}, 65536, {vAd}")
I(f"v_lshlrev_b32 {vEx}, 4, {vQ}")
I(f"v_add_u32 {vEx}, {EX}, {vEx}")
I(f"v_add_u32 {vL16b}, 4096, {vL16}")
vCl = V.alloc(); vCe = V.alloc(); sCL = S.alloc()
I(f"s_mul_i32 {sCL}, {sC1}, {8*1792}")
I(f"s_mul_i32 {sT[0]}, {sWv}, 448")
I(f"s_add_u32 {sCL}, {sCL}, {sT[0]}")
I(f"s_add_u32 {sCL}, {sCL}, {C12}")
I(f"v_min_u32 {t0}, 27, {vQ}")
I(f"v_mul_u32_u24 {vCl}, {4*1792}, {vHH}")
I(f"v_lshl_add_u32 {vCl}, {t0}, 4, {vCl}")
I(f"s_and_b32 {sT[0]}, {sWv}, 1")
I(f"s_mul_i32 {sT[0]}, {sT[0]}, 56")
I(f"v_lshl_add_u32 {t0}, {t0}, 1, {vHH}")
I(f"v_add_u32 {t0}, {sT[0]}, {t0}")
I(f"s_lshr_b32 {sT[0]}, {sWv}, 1")
I(f"s_lshl_b32 {sT[0]}, {sT[0]}, 8")
I(f"s_add_u32 {sT[0]}, {sT[0]}, {EX}")
I(f"v_and_b32 {t1}, 15, {t0}")
I(f"v_lshl_add_u32 {vCe}, {t1}, 4, {sT[0]}")
I(f"v_lshrrev_b32 {t0}, 4, {t0}")
I(f"v_lshl_add_u32 {vCe}, {t0}, 9, {vCe}")
I(f"s_lshl_b32 {sT[0]}, {sSB}, 4")
I(f"s_add_u32 {sT[0]}, {sT[0]}, {sC1}")
I(f"s_lshl_b32 {sT[0]}, {sT[0]}, {FSH}")
lane0(vF5, sT[0], t1)
if G['wd']['nr'] < 28: wd_rebase(sXdst, 3)
for _ in range(opt('wdb', 0)): wd_dma()
check_tags([gb2[1], gb2[3]], gb_ld, tgb)
I(f"v_add_f32 {gb2[0]}, {gb2[0]}, {gb2[2]}")
I(f"v_mov_b32 {gb2[1]}, {gb2[0]}")
I(f"v_permlane32_swap_b32 {gb2[0]}, {gb2[1]}")
I(f"v_add_f32 {gb2[0]}, {gb2[0]}, {gb2[1]}")
round_bf16(vGB, gb2[0])
gb2.free(); vGb.free()
check_tags([vp4], lambda: flag_load(vp4, vPA, F4), tp4)
vPA.free(); vp4.free()
published = set(g for g in wch if wch[g][-1][1] < P.vm_done)
stamp("F4 ok")

Bf = Frags(32)
btok = {}
def b_next():
    ks = len(btok)
    if ks >= 32: return False
    if ks and ks % 4 == 0: I(f"s_add_u32 {sXsrc}, {sXsrc}, 4096")
    btok[ks] = I(f"buffer_load_dwordx4 {Bf.g[ks]}, {vL16}, {rWS}, {sXsrc} offen offset:{1024*(ks&3)} sc1")
    return True
for _ in range(opt('b0', 12)): b_next()
I("s_barrier")
AR = A.reserve(224, 32)
SGX = Frags(4); BX = SGX.g[0]; hp = SGX.g[1]; vRS2 = V.alloc()
TMP = ACC[NA+1]
jobs = [(it, ks, ks*NA+it) for ks in range(32) for it in range(NA)]
XD = opt('xd', 10)
tl_ = [(NA, ks, NA*32 + ks) for ks in range(32)]
jobs += tl_[:XD] + [(it, 'x', None) for it in range(NA+1)] + tl_[XD:]
for it in range(NA+1, 7):
    jobs += [(it, 'x', None)] + [(it, ks, it*32 + ks) for ks in range(32)]
NJ = len(jobs); TT = {it: 33*it for it in range(NA, 8)}; T4, T5, T6 = 132, 165, 198; XA = 32*NA + XD
first_job = {}; last_job = {}
for n, (it, ks, fr) in enumerate(jobs):
    if fr is not None:
        first_job.setdefault(fr//16, n); last_job[fr//16] = n
accmap = {it: it % (NA+2) for it in range(7)}
def job_read(n):
    it, ks, fr = jobs[n]
    dst = AR[4*(n%8):4*(n%8)+4]
    if ks == 'x': return I(f"ds_read_b128 {dst}, {vEx} offset:{512*it}")
    assert fr//16 in published, (n, fr)
    off = ((fr//16) % NG)*16384 + (fr % 16)*1024
    if off < 65536: return I(f"ds_read_b128 {dst}, {vAd} offset:{off}")
    return I(f"ds_read_b128 {dst}, {vAd2} offset:{off-65536}")
LOOK = 6
atok = {}
for n in range(LOOK): atok[n] = job_read(n)
stamp("g1 start")

class VM:
    def __init__(self, f): self.f = f
    def __call__(self): return self.f()
side = []
def c12_ops():
    ops = []; tk = []
    CL = TMP
    def l(g):
        if g == 2: I(f"s_add_u32 {sCL}, {sCL}, 3584")
        tk.append(I(f"buffer_load_dwordx4 {CL[4*g:4*g+4]}, {vCl}, {rWS}, {sCL} offen offset:{(g&1)*1792} sc1"))
    for g in range(4): ops.append(lambda g=g: l(g))
    ops2 = [lambda: P.wait(tk)]
    for st in (2, 1):
        for g in range(st):
            for h in range(4):
                ops2.append(lambda g=g, st=st, h=h: I(f"v_add_f32 {CL[4*g+h]}, {CL[4*g+h]}, {CL[4*(g+st)+h]}"))
    ops2.append(None)
    for h in range(2): ops2.append(lambda h=h: I(f"v_permlane32_swap_b32 {CL[h]}, {CL[2+h]}"))
    for h in range(2): ops2.append(lambda h=h: I(f"v_add_f32 {CL[h]}, {CL[h]}, {CL[2+h]}"))
    seq = [f"v_cvt_pk_bf16_f32 {CL[5]}, {CL[0]}, {CL[1]}",
           f"v_lshlrev_b32 {CL[2]}, 16, {CL[5]}",
           f"v_and_b32 {CL[3]}, {sHI}, {CL[5]}",
           f"v_sub_f32 {CL[0]}, {CL[0]}, {CL[2]}",
           f"v_sub_f32 {CL[1]}, {CL[1]}, {CL[3]}",
           f"v_cvt_pk_bf16_f32 {CL[4]}, {CL[2]}, {CL[0]}",
           f"v_cvt_pk_bf16_f32 {CL[6]}, {CL[1]}, {CL[3]}",
           f"v_mov_b32 {CL[7]}, 0"]
    for s_ in seq: ops2.append(lambda s_=s_: I(s_))
    ops2.append(lambda: G.__setitem__('tex', I(f"ds_write_b128 {vCe}, {CL[4:8]}")))
    ops2.append(lambda: (vCl.free(), vCe.free()))
    return ops, ops2
def sg_loads(j0=0, j1=4):
    return [I(f"buffer_load_dwordx4 {SGX.g[j]}, {vL16}, {rWS}, {sSG} offen offset:{1024*j} sc1") for j in range(j0, j1)]
def stats2_ops(tk):
    ops = [lambda: check_tags([SGX[2*i+1] for i in range(8)], sg_loads, tk)] + [None]*6
    for j in range(2):
        for i in (0, 2): ops.append(lambda i=i, j=j: I(f"v_add_f32 {SGX[4*j+i]}, {SGX[4*j+i]}, {SGX[8+4*j+i]}"))
    Z = SGX.g[2]; a, b, c, d = Z[0], Z[1], Z[2], Z[3]; e = SGX.g[3][0]
    seq = [f"v_add_f32 {a}, {SGX[0]}, {SGX[4]}", f"v_add_f32 {c}, {SGX[2]}, {SGX[6]}",
           f"v_mov_b32 {b}, {a}", f"v_mov_b32 {d}, {c}", None,
           f"v_permlane32_swap_b32 {a}, {b}", f"v_permlane32_swap_b32 {c}, {d}",
           f"v_add_f32 {a}, {a}, {b}", f"v_add_f32 {c}, {c}, {d}",
           f"v_mul_f32 {b}, 0xbb000000, {a}", f"v_mul_f32 {c}, 0x3b000000, {c}",
           f"v_fma_f32 {d}, -{b}, {b}, {c}", f"v_max_f32 {d}, 0, {d}", f"v_add_f32 {d}, 0x3727c5ac, {d}",
           f"v_sqrt_f32 {c}, {d}", f"v_rcp_f32 {vRS2}, {d}",
           f"v_cmp_eq_u32 vcc, 0, {vHH}",
           f"v_mov_b32 {BX[3]}, 0",
           f"v_cndmask_b32 {b}, 0, {b}, vcc", f"v_cndmask_b32 {c}, 0, {c}, vcc",
           f"v_cvt_pk_bf16_f32 {BX[0]}, {b}, {b}",
           f"v_cvt_pk_bf16_f32 {e}, {c}, {c}",
           f"v_and_b32 {a}, {sHI}, {BX[0]}", f"v_and_b32 {e}, {sHI}, {e}",
           f"v_sub_f32 {b}, {b}, {a}", f"v_sub_f32 {c}, {c}, {e}",
           f"v_cvt_pk_bf16_f32 {BX[1]}, {b}, {e}",
           f"v_cvt_pk_bf16_f32 {BX[2]}, {e}, {c}"]
    for s_ in seq: ops.append((lambda s_=s_: I(s_)) if s_ else None)
    return ops
hst = {}
def epilogue(it):
    ac = ACC[accmap[it]]; ops = []
    for r in range(8): ops.append(lambda r=r: I(f"v_mul_f32 {ac[r]}, {ac[r]}, {ac[8+r]}"))
    for r in range(8): ops.append(lambda r=r: I(f"v_mul_f32 {ac[r]}, {ac[r]}, {vRS2}"))
    for n in range(4): ops.append(lambda n=n: I(f"v_cvt_pk_bf16_f32 {hp[n]}, {ac[2*n]}, {ac[2*n+1]}"))
    def st():
        G['lastst'] = G['now']
        hst[it] = I(f"buffer_store_dwordx4 {hp}, {vL16 if it < 4 else vL16b}, {rWS}, {sHS} offen offset:{1024*(it&3)} sc1")
    ops.append(VM(st)); ops.append(None)
    return ops
def lvl_flag(level, tiles):
    def f():
        P.wait([hst[t] for t in tiles])
        post_flag(vF5, F5 + level*FL)
    return f
def epoch_store():
    I(f"s_or_b32 {sT[0]}, s2, {sWv}")
    I(f"s_cselect_b32 {sT[0]}, {OOB}, {EPOCH}")
    lane0(t0, sT[0], t1)
    I(f"buffer_store_dword {vTag}, {t0}, {rWS}, 0 offen sc1")
sSQ = S.alloc(); sH0 = S.alloc(); sH1 = S.alloc()
ht = {}; hreg = {}; hfree = []
def h_load(i, st):
    c, it = order[i]; n = c*7 + it
    hreg[i, st] = r = hfree.pop(0)
    I(f"s_add_u32 {sT[0]}, {sH1 if st else sH0}, {1024*n}")
    ht[i, st] = I(f"buffer_load_dwordx4 {r}, {vL16}, {rWS}, {sT[0]} offen sc1")
def g2_setup_ops():
    seq = [f"s_lshr_b32 {sT[3]}, {sWv}, 1", f"s_lshl_b32 {sSQ}, {sR64}, 1", f"s_add_u32 {sSQ}, {sSQ}, {sT[3]}",
           f"s_mul_i32 {sT[4]}, {sWv}, 28", f"s_mul_i32 {sH0}, {sSQ}, 112", f"s_add_u32 {sH0}, {sH0}, {sT[4]}",
           f"s_lshl_b32 {sH0}, {sH0}, 10", f"s_add_u32 {sH0}, {sH0}, {HH}",
           f"s_xor_b32 {sT[3]}, {sSQ}, 1", f"s_mul_i32 {sH1}, {sT[3]}, 112", f"s_add_u32 {sH1}, {sH1}, {sT[4]}",
           f"s_lshl_b32 {sH1}, {sH1}, 10", f"s_add_u32 {sH1}, {sH1}, {HH}",
           f"v_and_b32 {t1}, 1, {vL}", f"v_lshlrev_b32 {t1}, 4, {t1}", f"v_bfe_u32 {t2}, {vL}, 1, 2", f"v_add_u32 {t1}, {t1}, {t2}",
           f"s_lshl_b32 {sT[3]}, {sR64}, 5", f"s_lshl_b32 {sT[4]}, {sWv}, 2", f"s_add_u32 {sT[3]}, {sT[3]}, {sT[4]}",
           f"v_add_lshl_u32 {vP5}, {t1}, {sT[3]}, {FSH}"]
    return [(lambda x=x: I(x)) for x in seq]
def res_loads():
    I(f"s_lshl_b32 {sT[0]}, {sSQ}, 15")
    I(f"s_lshl_b32 {sT[1]}, {sDQ}, 6")
    I(f"s_add_u32 {sT[0]}, {sT[0]}, {sT[1]}")
    I(f"s_add_u32 {sT[0]}, {sT[0]}, {X1T}")
    I(f"v_lshl_add_u32 {t0}, {vHH}, 9, {vL16}")
    G['txq'] = [I(f"buffer_load_dwordx4 {XQ[4*n:4*n+4]}, {t0}, {rWS}, {sT[0]} offen offset:{512*n} sc1") for n in range(2)]
c12a, c12b = c12_ops()
sgt = []
wq = []
VSP, BL, WD0, WDL = opt('vsp', 2), opt('bl', 36), opt('wdg', 4), opt('wdl', 20)
vq = []; lastv = -99; lastd = -99
WP_, WDP_, HP0 = opt('wp', 6), opt('wdp', 2), opt('hp0', T6+6)
N6, NC1, NS1, NC2, NS2 = opt('n6', 6), opt('nc1', XA-64), opt('ns1', XA-58), opt('nc2', XA-38), opt('ns2', XA-26)
nextg = NPRE; lastw = -99; xdone = set()
for n, (it, ks, fr) in enumerate(jobs):
    need = [g for g in first_job if g not in published and first_job[g] - LOOK <= n + 1]
    freeable = nextg < 14 and (nextg - NG < 0 or last_job[nextg-NG] < n) and n % opt('fb', 32) == opt('fbo', 2)
    exw = (n == XA - 8)
    if exw: assert 'tex' in G
    if need or freeable or exw:
        ready = [g for g in wch if g not in published and len(wch[g]) == 4 and (g in need or wch[g][-1][1] < P.vm_done)]
        for g in need: assert g in ready, (n, g)
        P.wait([wch[g] for g in ready], atok[n], G.get('tex') if exw else None)
        I("s_barrier"); published |= set(ready)
        for g in (6, 7):
            if opt('xs', 1) and last_job[g] < n and g not in xdone:
                xdone.add(g); G['wd']['free'] = [100 + 2*(g-6), 101 + 2*(g-6)] + G['wd']['free']
                if G['vWx'] is None:
                    G['vWx'] = [V.alloc(), V.alloc()]
                    I(f"s_sub_u32 {sT[5]}, {sWdst}, {sWDs}"); I(f"s_add_u32 {sT[5]}, {sT[5]}, {XB}")
                    for k_ in range(2): I(f"v_add_u32 {G['vWx'][k_]}, {sT[5]}, {G['vWr'][k_]}")
        if opt('dbg'): print(f'\nbar n={n} need={need} ready={ready} lastst', G.get('lastst'), file=sys.stderr)
        while nextg < 14 and (nextg - NG < 0 or last_job[nextg-NG] < n):
            wch[nextg] = []
            for q in range(4): wq.append((first_job[nextg] - opt('wlead', 200), first_job[nextg], lambda g=nextg, q=q: wch[g].extend(w_dma(16384*g, 16384*(g % NG), q, q+1))))
            nextg += 1
    if n in ((32, 64, 96, 128, T5, T6) if not opt('fine') else tuple(range(8, 231, 8))): stamp(f"n{n}")
    if 'win' in OPT and opt('win') <= n < opt('win') + 56*opt('wst', 1) and (n - opt('win')) % opt('wst', 1) == 0: stamp(f'w_{n}'); I(f'; job {n}')
    if n % 2 == 0: P.wait(atok[n], atok.get(n+1), btok.get(ks))
    else: P.wait(atok[n], btok.get(ks))
    ac = ACC[accmap[it]]
    bsrc = BX if ks == 'x' else Bf[4*ks:4*ks+4]
    first = (ks == 0 and it <= NA) or (ks == 'x' and it > NA)
    I(f"v_mfma_f32_32x32x16_bf16 {ac}, {AR[4*(n%8):4*(n%8)+4]}, {bsrc}, {0 if first else ac}")
    if it == 6 and ks != 'x': hfree.append(Bf.g[ks])
    if n + LOOK < NJ: atok[n+LOOK] = job_read(n+LOOK)
    budget = 4
    G['now'] = n
    Wd = G['wd']; vm0 = P.vm
    if n - lastv >= VSP and not any(isinstance(x, VM) for x in side[:3]):
        bdue = len(btok) < 32 and len(btok)*NA - n < BL
        if vq: vq.pop(0)(); budget = 2
        elif bdue: b_next(); budget = 2
        elif wq and wq[0][1] - n < opt('wurg', 300): wq.pop(0)[2](); budget = 1
        elif G.get('l0') and len(hfree) > 1 and len(ht) < 24:
            i = len(ht); h_load(i//2, i % 2); budget = 2
        elif n >= WD0 and n - lastd >= WDP_ and wd_dma1(): lastd = n; budget = 0
        elif wq and n >= wq[0][0]: wq.pop(0)[2](); budget = 1
    if P.vm == vm0 and Wd['nr'] < Wd['nd'] and n - Wd['ti'].get(Wd['nr'], -99) >= WDL: wd_read(); budget = 0
    if n == N6: vq += [epoch_store]
    if n == NC1 - 24: vq += [lambda: G.__setitem__('tp6', flag_load(vp3, vP3, F4))]
    if n == NC1: side += [lambda: (check_tags([vp3], lambda: flag_load(vp3, vP3, F4), G['tp6']), vp3.free(), vP3.free(), vq.extend(c12a))]
    if n == NS1:
        for j in range(4): vq += [lambda j=j: sgt.extend(sg_loads(j, j+1))]
    if n == NC2: side += c12b
    if n == NS2: side += stats2_ops(sgt)
    if n == XA - 1: assert not side, len(side)
    if n == XA + NA + 1:
        SGX.g[2].free(); SGX.g[3].free()
        XQ = Frags(2); vP5 = V.alloc(); vp5 = V.alloc()
        for e in range(NA): side += epilogue(e)
    if n == T4 + 4: side += g2_setup_ops()
    for e in range(NA, 6):
        if n == TT[e+1] + 3: side += epilogue(e)
    if n == opt('l0p', 168): vq += [lvl_flag(0, (0, 1, 2))]
    if n == opt('l1p', 210): vq += [lvl_flag(1, (3, 4))]
    if n == HP0 - opt('l0w', 14): vq += [lambda: G.__setitem__('tp5', flag_load(vp5, vP5, F5))]
    if n == HP0: side += [lambda: (check_tags([vp5], lambda: flag_load(vp5, vP5, F5), G['tp5']), G.__setitem__('l0', True), vq.append(res_loads))]
    k = 0
    while side and k < budget:
        if isinstance(side[0], VM) and (P.vm != vm0 or n - lastv < VSP): break
        f = side.pop(0); k += 1
        if f: f()
    if P.vm != vm0: lastv = n
    for e in range(NA+2, 7):
        if n == TT[e] - 1: assert e - NA - 2 in hst
for f in side:
    if f: f()
for f in vq: f()
if G['wd'].get('half'): wd_dma1()
assert not wq
print('wd progress', G['wd']['nd'], G['wd']['nr'], 'hh early', len(ht), file=sys.stderr)
def h_next():
    i = len(ht)
    if i < G['hlim'] and hfree: h_load(i//2, i % 2); return True
    return False
G['hlim'] = 24
h_next(); h_next()
for f in epilogue(6):
    if f: f()
stamp("g1 done")
for r in ACC + [BX, vRS2, vAd, vAd2, vEx]: r.free()
I("s_barrier")

GA = [V.alloc(16) for _ in range(4)]
HD = opt('hd', 20)
while len(ht) < opt('hd0', 10): h_next()
PL = {1: (opt('p1', 1), opt('p1c', 6), 40), 2: (opt('p2', 9), opt('p2c', 14), 48), 3: (opt('p3', 15), opt('p3c', 20), 56)}
mj = [(i, q) for i in range(24) for q in range(4)] + [(i, q) for q in (1, 2, 3, 0) for i in range(24, 28)]
red = []
for m, (i, q) in enumerate(mj):
    c, it = order[i]; n = c*7 + it; dt, st = q & 1, q >> 1
    if (i, st) not in ht:
        raise RuntimeError(f"hh {i} not issued")
    if opt('gfine') and m % 8 == 0: stamp(f'm{m}')
    P.wait(ht[i, st], G['wd']['rd'][i])
    I(f"v_mfma_f32_32x32x16_bf16 {GA[q]}, {AWD[8*i+4*dt:8*i+4*dt+4]}, {hreg[i, st]}, {0 if i==0 else GA[q]}")
    if i < 24 and dt == 1: hfree.append(hreg[i, st])
    G['now'] = NJ + 8 + m; Wd = G['wd']
    if m % 2 == 0 and Wd['nr'] < 28:
        if Wd['nr'] < Wd['nd'] and G['now'] - Wd['ti'].get(Wd['nr'], -99) >= WDL: wd_read()
        else: wd_dma1()
    if len(ht) < 2*i + HD + 2 and (m % 2 == 1 or len(ht) < 2*i + opt('hmin', 10)): h_next()
    if q == 0 and i < 24:
        for lv, (pi_, pc_, lim) in PL.items():
            if i == pc_:
                check_tags([vp5], lambda lv=lv: flag_load(vp5, vP5, F5 + lv*FL), G['tp']); G['hlim'] = lim; opt('gfine') or stamp(f"L{lv} ok")
        for lv, (pi_, pc_, lim) in PL.items():
            if i == pi_: G['tp'] = flag_load(vp5, vP5, F5 + lv*FL)
        if i == opt('l2p', 2): lvl_flag(2, (5,))()
        if i == opt('l3p', 8): lvl_flag(3, (6,))()
        if i == 2:
            I(f"v_lshl_add_u32 {t0}, {vQ}, 2, {sXdst}")
            I(f"ds_write_b32 {t0}, {vGB} offset:6144")
        if i == 21:
            G['GB'] = GB = [hfree.pop() for _ in range(4)]
            I(f"v_lshlrev_b32 {t1}, 6, {vHH}")
            I(f"v_add_u32 {t1}, {sXdst}, {t1}")
            for n_ in range(4): I(f"ds_read_b128 {GB[n_]}, {t1} offset:{6144+16*n_}")
        if i == 21:
            G['XF'] = XF = [hfree.pop() for _ in range(4)]
            P.wait(G['txq'])
            for rho in range(8):
                red.append(lambda rho=rho: (unpack(XF[rho//2][2*(rho%2)], XQ[rho], 0), unpack(XF[rho//2][2*(rho%2)+1], XQ[rho], 1)))
        if i == 23:
            G['RA'] = RA = hfree.pop()
            for qq in range(1, 4):
                red.append(lambda qq=qq: (I(f"s_xor_b32 {sT[0]}, {sWv}, {qq}"), I(f"s_mul_i32 {sT[0]}, {sT[0]}, 12288"), I(f"v_add_u32 {RA[qq]}, {sT[0]}, {vL16}")))
            red.append(lambda: (I(f"s_mul_i32 {sT[0]}, {sWv}, 12288"), I(f"v_add_u32 {RA[0]}, {sT[0]}, {vL16}")))
            red.append(lambda: (I(f"s_lshl_b32 {sT[2]}, {sSQ}, 15"), I(f"s_lshl_b32 {sT[1]}, {sDQ}, 1"), I(f"s_add_u32 {sT[2]}, {sT[2]}, {sT[1]}"), I(f"s_add_u32 {sT[3]}, {sT[2]}, 16384")))
            red.append(lambda: (I(f"v_lshrrev_b32 {t1}, 2, {vL}"), I(f"v_lshlrev_b32 {t1}, 10, {t1}"), I(f"v_and_b32 {t2}, 3, {vL}"), I(f"v_lshl_add_u32 {t1}, {t2}, 4, {t1}")))
            red.append(lambda: (I(f"v_lshlrev_b32 {t2}, 6, {vQ}"), I(f"v_lshl_add_u32 {t2}, {vHH}, 5, {t2}"), I(f"v_add_u32 {t2}, {sXdst}, {t2}"), I(f"v_add_u32 {t0}, {sXdst}, {vL16}")))
    if m >= 101 and (m - 101) // 4 < 2:
        qq = (m - 101)//4 + 1; r = (m - 101) % 4
        I(f"ds_write_b128 {G['RA'][qq]}, {GA[qq][4*r:4*r+4]} offset:{(qq-1)*4096 + r*1024}")
    elif m >= 109:
        r = m - 109
        I(f"ds_write_b128 {G['RA'][3]}, {GA[3][4*r:4*r+4]} offset:{2*4096 + r*1024}")
    elif red: red.pop(0)()
assert not red
I(f"ds_write_b128 {G['RA'][3]}, {GA[3][12:16]} offset:{2*4096 + 3*1024}")
stamp("g2 mfma")
GB, XF, RA = G['GB'], G['XF'], G['RA']
P.wait_all(vm=False)
I("s_barrier")
tl = {}
for r in range(4):
    tl[r] = [I(f"ds_read_b128 {GA[q][4*r:4*r+4]}, {RA[0]} offset:{(q-1)*4096 + r*1024}") for q in range(1, 4)]
OST = OPT.get('ost', '')
for r in range(4):
    P.wait(tl[r])
    for h in (0, 2): I(f"v_pk_add_f32 {GA[1][4*r+h:4*r+h+2]}, {GA[1][4*r+h:4*r+h+2]}, {GA[2][4*r+h:4*r+h+2]}")
    for h in (0, 2): I(f"v_pk_add_f32 {GA[0][4*r+h:4*r+h+2]}, {GA[0][4*r+h:4*r+h+2]}, {GA[3][4*r+h:4*r+h+2]}")
    for h in (0, 2): I(f"v_pk_add_f32 {GA[0][4*r+h:4*r+h+2]}, {GA[0][4*r+h:4*r+h+2]}, {GA[1][4*r+h:4*r+h+2]}")
    for h in (0, 2): I(f"v_pk_fma_f32 {XF[r][h:h+2]}, {GA[0][4*r+h:4*r+h+2]}, {GB[r][h:h+2]}, {XF[r][h:h+2]}")
    for h in (0, 2): I(f"v_cvt_pk_bf16_f32 {XQ[2*r+h//2]}, {XF[r][h]}, {XF[r][h+1]}")
    if r % 2: I(f"ds_write_b128 {t2}, {XQ[2*r-2:2*r+2]} offset:{4096 + 8*(r-1)}")
tl = [I(f"ds_read_b128 {GB[h]}, {t0} offset:{4096+1024*h}") for h in range(2)]
for h in range(2):
    P.wait(tl[h])
    I(f"buffer_store_dwordx4 {GB[h]}, {t1}, {rOUT}, {sT[2+h]} offen {OST}")
stamp("end")
if TSTAMP:
    P.wait_all()
    stamp("drained")
    n = nts[0]
    I("s_waitcnt lgkmcnt(0)")
    I(f"v_writelane_b32 {vTs}, {sTp[n&1][0]}, {n-2}")
    I(f"v_writelane_b32 {vTs}, {sTp[(n+1)&1][0]}, {n-1}")
    I(f"v_subrev_u32 {vTs}, {sT0[0]}, {vTs}")
    I(f"s_memrealtime {sTp[0]}")
    I("s_waitcnt lgkmcnt(0)")
    I(f"v_writelane_b32 {vTs}, {sR0[0]}, 62")
    I(f"v_writelane_b32 {vTs}, {sTp[0][0]}, 63")
    I(f"v_writelane_b32 {vTs}, {sSpin}, 61")
    I(f"s_lshl_b32 {sT[0]}, s2, 10")
    I(f"s_add_u32 {sT[0]}, {sT[0]}, {TS}")
    I(f"v_lshlrev_b32 {t0}, 2, v0")
    I(f"buffer_store_dword {vTs}, {t0}, {rWS}, {sT[0]} offen")
    print(f"\nNTS={n}", file=sys.stderr)
if PROBE:
    I("s_waitcnt lgkmcnt(0)")
    I(f"s_sub_u32 {sT[0]}, {sTp[0][0]}, {sT0[0]}")
    I(f"s_mul_i32 {sT[0]}, {sT[0]}, {opt('pmul', 4)}")
    I(f"s_min_u32 {sT[0]}, {sT[0]}, 100000")
    I(f"s_memrealtime {sT0}")
    I("L_spin:")
    I(f"s_memrealtime {sTp[0]}")
    I("s_waitcnt lgkmcnt(0)")
    I(f"s_sub_u32 {sT[1]}, {sTp[0][0]}, {sT0[0]}")
    I(f"s_cmp_lt_u32 {sT[1]}, {sT[0]}")
    I("s_cbranch_scc1 L_spin")
I("L_end:")
I("s_endpgm")
P.ins.extend(slow)
if opt('cpf', 0):
    I(".fill 1536, 4, 0xbf800000")

body = P.finalize()
ref = open(f"cdna_kernels/{NAME}.s.ref").read()
hdr = "".join(l + "\n" for l in ref.split("\n") if l.startswith(";") and "@launch" not in l)
out = hdr + f"; @launch grid=(256,1,1) block=(256,1,1) lds={LDS_SIZE}\n"
out += f"""; NTS={nts[0] if TSTAMP else 0} LAYOUT=10 WSOFF={WSOFF}
.amdgcn_target "amdgcn-amd-amdhsa--gfx950"
.text
.globl {NAME}_kernel
.p2align 8
.type {NAME}_kernel,@function
{NAME}_kernel:
{body}
.section .rodata,"a"
.p2align 6
.amdhsa_kernel {NAME}_kernel
  .amdhsa_next_free_vgpr 512
  .amdhsa_next_free_sgpr 102
  .amdhsa_accum_offset 256
  .amdhsa_group_segment_fixed_size 0
  .amdhsa_kernarg_size 120
  .amdhsa_user_sgpr_count 2
  .amdhsa_user_sgpr_kernarg_segment_ptr 1
  .amdhsa_system_sgpr_workgroup_id_x 1
.end_amdhsa_kernel
"""
dst = [a for a in sys.argv[1:] if not a.startswith('--')][0]
open(dst, "w").write(out)
print(f"instrs {len(P.ins)} nops {P.nops} vgpr hi {V.hi} sgpr hi {S.hi}", file=sys.stderr)
```
